```python
import torch

def _softmax(x, axis=-1):
    return torch.softmax(x, dim=axis)
def _gelu(x):
    return torch.nn.functional.gelu(x, approximate="tanh")
def _silu(x):
    return torch.nn.functional.silu(x)
def _sigmoid(x):
    return torch.sigmoid(x)
def _layernorm(x, axis=-1, eps=1e-5):
    m = x.mean(dim=axis, keepdim=True)
    v = x.var(dim=axis, keepdim=True, unbiased=False)
    return (x - m) / torch.sqrt(v + eps)
def _scatter_add(tgt, idx, src, axis=0):
    return tgt.clone().index_add_(axis, idx, src)
def _segment_sum(src, seg, n):
    out = torch.zeros((n,) + src.shape[1:], dtype=src.dtype)
    return out.index_add_(0, seg, src)
def _pad(x, pw):
    flat = tuple(v for pair in reversed(pw) for v in pair)
    return torch.nn.functional.pad(x, flat)

kernel_name = 'interleave_layers__ssm_conv_h3__glu_gated_glu__prompt'

def setup_inputs():

    _w = (lambda a: (lambda t: t.to(torch.bfloat16) if t.is_floating_point() else t)(torch.as_tensor(a)))
    def _A_setup():
        B, S, D = 1, 2048, 512
        ks = 4
        return {
            "q": _w((lambda *s: torch.randn(*s, dtype=torch.bfloat16) * 0.05)(B, S, D)),
            "k": _w((lambda *s: torch.randn(*s, dtype=torch.bfloat16) * 0.4)(B, S, D)),
            "v": _w((lambda *s: torch.randn(*s, dtype=torch.bfloat16) * 0.4)(B, S, D)),
            "shift_k": _w((lambda *s: torch.randn(*s, dtype=torch.bfloat16) * 0.4)(D, ks) * 0.5),
            "ssm_k": _w((lambda *s: torch.randn(*s, dtype=torch.bfloat16) * 0.4)(D, S) * (1.0 / S ** 0.5)),
            "ssm_D": _w((lambda *s: torch.randn(*s, dtype=torch.bfloat16) * 0.4)(D)),
        }
    _A_in = _A_setup()

    def _B_setup():
        B, S, D, F = 1, 2048, 512, 1792
        return {
            "x": _w((lambda *s: torch.randn(*s, dtype=torch.bfloat16) * 0.05)(B, S, D)),
            "w_gate": _w((lambda *s: torch.randn(*s, dtype=torch.bfloat16) * 0.05)(D, F)),
            "w_up": _w((lambda *s: torch.randn(*s, dtype=torch.bfloat16) * 0.05)(D, F)),
            "w_down": _w((lambda *s: torch.randn(*s, dtype=torch.bfloat16) * 0.05)(F, D)),
        }
    _B_in = _B_setup()

    return {
        "A_q": _A_in["q"],
        "A_k": _A_in["k"],
        "A_v": _A_in["v"],
        "A_shift_k": _A_in["shift_k"],
        "A_ssm_k": _A_in["ssm_k"],
        "A_ssm_D": _A_in["ssm_D"],
        "B_x": _B_in["x"],
        "B_w_gate": _B_in["w_gate"],
        "B_w_up": _B_in["w_up"],
        "B_w_down": _B_in["w_down"],
    }

def reference(A_q, A_k, A_v, A_shift_k, A_ssm_k, A_ssm_D, B_x, B_w_gate, B_w_up, B_w_down):
    def _A_ref(q, k, v, shift_k, ssm_k, ssm_D):
        B, S, D = q.shape
        ks = shift_k.shape[-1]
        k_pad = _pad(k, ((0, 0), (ks - 1, 0), (0, 0)))
        k_shift = torch.zeros_like(k)
        for t in range(ks):
            k_shift = k_shift + k_pad[:, t:t + S, :] * shift_k[:, ks - 1 - t][None, None, :]
        kv = k_shift * v
        L = 2 * S
        kv_pad = _pad(kv, ((0, 0), (0, S), (0, 0)))
        kf_pad = _pad(ssm_k, ((0, 0), (0, S)))
        kv_f = (lambda x, axes=(-2,-1): torch.fft.rfft2(x.float(), dim=axes))(kv_pad[:, None, :, :], axes=(1, 2))
        kf_f = (lambda x, axes=(-2,-1): torch.fft.rfft2(x.float(), dim=axes))(kf_pad[:, None, :], axes=(1, 2))
        kf_f = (lambda x, *d: x.permute(*d))(kf_f, 1, 2, 0)
        y_f = kv_f * kf_f[None, :, :, :]
        y = (lambda x, s, axes=(-2,-1): torch.fft.irfft2(x, s=s, dim=axes).to(torch.bfloat16))(y_f, (1, L), axes=(1, 2))[:, 0, :S, :]
        y = y + kv * ssm_D[None, None, :]
        return q * y

    def _B_ref(x, w_gate, w_up, w_down):
        g = torch.einsum("bsd,df->bsf", x, w_gate)
        u = torch.einsum("bsd,df->bsf", x, w_up)
        h = _sigmoid(g) * u
        return torch.einsum("bsf,fd->bsd", h, w_down)

    x = A_q
    x = x + _A_ref(_layernorm(x, axis=-1), A_k, A_v, A_shift_k, A_ssm_k, A_ssm_D)
    x = x + _B_ref(_layernorm(x, axis=-1), B_w_gate, B_w_up, B_w_down)
    x = x + _A_ref(_layernorm(x, axis=-1), A_k, A_v, A_shift_k, A_ssm_k, A_ssm_D)
    x = x + _B_ref(_layernorm(x, axis=-1), B_w_gate, B_w_up, B_w_down)
    return x
```

```python
class Asm:
    def __init__(self):
        self.L = []
        self.nlabel = 0
    def __call__(self, s=''):
        for line in s.split('\n'):
            line = line.rstrip()
            if not line.strip(): continue
            if line.strip().endswith(':') or line.startswith('.') or line.startswith(';'):
                self.L.append(line.strip() if line.strip().endswith(':') else line)
            else:
                self.L.append('    ' + line.strip())
    def raw(self, s): self.L.append(s)
    def label(self, base='L'):
        self.nlabel += 1
        return f"{base}_{self.nlabel}"
    def text(self): return '\n'.join(self.L) + '\n'
def v(i, n=1): return f"v{i}" if n == 1 else f"v[{i}:{i+n-1}]"
def a(i, n=1): return f"a{i}" if n == 1 else f"a[{i}:{i+n-1}]"
def s(i, n=1): return f"s{i}" if n == 1 else f"s[{i}:{i+n-1}]"
def srd(A, dst, src, nbytes):
    A(f"""s_mov_b32 s{dst}, s{src}
    s_and_b32 s{dst+1}, s{src+1}, 0xffff
    s_mov_b32 s{dst+2}, {nbytes}
    s_mov_b32 s{dst+3}, 0x20000""")
```

```python
NAME = 'interleave_layers__ssm_conv_h3__glu_gated_glu__prompt'
KERNARG_COMMENT = """; Kernarg layout (104 bytes, ptrs only, base s[0:1]):
"""
TARGET = '.amdgcn_target "amdgcn-amd-amdhsa--gfx950"\n.text\n'

def kd(name, vgpr, sgpr=96, accum=None):
    if accum is None:
        accum = (vgpr + 3) // 4 * 4
    return f""".section .rodata,"a"
.p2align 6
.amdhsa_kernel {name}
  .amdhsa_next_free_vgpr {vgpr}
  .amdhsa_next_free_sgpr {sgpr}
  .amdhsa_accum_offset {accum}
  .amdhsa_group_segment_fixed_size 0
  .amdhsa_kernarg_size 104
  .amdhsa_user_sgpr_count 2
  .amdhsa_user_sgpr_kernarg_segment_ptr 1
  .amdhsa_system_sgpr_workgroup_id_x 1
.end_amdhsa_kernel
.text
"""
def head(name):
    return f".globl {name}\n.p2align 8\n.type {name},@function\n{name}:\n"
def v(i, n=1):
    return f"v{i}" if n == 1 else f"v[{i}:{i+n-1}]"
def a(i, n=1):
    return f"a{i}" if n == 1 else f"a[{i}:{i+n-1}]"
def s(i, n=1):
    return f"s{i}" if n == 1 else f"s[{i}:{i+n-1}]"
```

```python
import re

class Emit:
    def __init__(self):
        self.L = []
        self.vmq = []
        self.dsq = []
        self.nl = 0
        self.tail = []
    def __call__(self, s):
        for line in s.split('\n'):
            line = line.strip()
            if not line or line.startswith(';'): continue
            self.L.append(line)
    def label(self, base):
        self.nl += 1
        return f"{base}_{self.nl}"
    def vm(self, text, tag=None):
        self.L.append(text.strip()); self.vmq.append(tag)
        assert len(self.vmq) <= 63 or True
    def vm_after(self, tag):
        idx = [i for i, t in enumerate(self.vmq) if t == tag]
        if not idx: return None
        return len(self.vmq) - 1 - idx[-1]
    def wait_vm(self, tag):
        n = self.vm_after(tag)
        if n is None: return False
        if n > 63:
            n = 63
        self.L.append(f"s_waitcnt vmcnt({n})")
        self.vmq = self.vmq[len(self.vmq) - n:] if n > 0 else []
        return True
    def wait_vm_all(self):
        self.L.append("s_waitcnt vmcnt(0)"); self.vmq = []
    def ds(self, text, tag=None):
        self.L.append(text.strip()); self.dsq.append(tag)
    def wait_ds(self, tag):
        idx = [i for i, t in enumerate(self.dsq) if t == tag]
        if not idx: return False
        n = len(self.dsq) - 1 - idx[-1]
        if n > 15: n = 15
        self.L.append(f"s_waitcnt lgkmcnt({n})")
        self.dsq = self.dsq[len(self.dsq) - n:] if n > 0 else []
        return True
    def wait_ds_all(self):
        self.L.append("s_waitcnt lgkmcnt(0)"); self.dsq = []
    def out_of_line(self, text):
        for line in text.split('\n'):
            line = line.strip()
            if line and not line.startswith(';'): self.tail.append(line)

REG = re.compile(r'^(v|a|s)(\d+)$|^(v|a|s)\[(\d+):(\d+)\]$')
def regs(op):
    op = op.strip()
    if op in ('vcc', 'vcc_lo', 'vcc_hi'): return {('s', 'vcc')}
    if op == 'exec': return {('s', 'exec')}
    if op == 'm0': return {('s', 'm0')}
    m = REG.match(op)
    if not m: return set()
    if m.group(1): return {(m.group(1), int(m.group(2)))}
    return {(m.group(3), i) for i in range(int(m.group(4)), int(m.group(5)) + 1)}

TRANS = ('v_exp_f32', 'v_log_f32', 'v_rcp_f32', 'v_rsq_f32', 'v_sqrt_f32', 'v_sin_f32', 'v_cos_f32')
class I:
    __slots__ = ('text', 'op', 'kind', 'dst', 'src', 'passes', 'srcC', 'dpp', 'big_store_data', 'lds_dma', 'nop')
def parse(text):
    i = I(); i.text = text; i.nop = 1
    t = text.split(';')[0].strip()
    parts = t.split(None, 1)
    op = parts[0]; rest = parts[1] if len(parts) > 1 else ''
    i.op = op; i.dst = set(); i.src = set(); i.passes = 0; i.srcC = set(); i.dpp = False; i.big_store_data = set(); i.lds_dma = False
    ops = []; cur = ''; depth = 0
    for ch in rest:
        if ch == '[': depth += 1
        if ch == ']': depth -= 1
        if ch == ',' and depth == 0: ops.append(cur.strip()); cur = ''
        else: cur += ch
    if cur.strip(): ops.append(cur.strip())
    mods = ''
    if ops:
        toks = ops[-1].split()
        ops[-1] = toks[0]; mods = ' '.join(toks[1:])
    if op.endswith(':'):
        i.kind = 'label'; i.nop = 0; return i
    if op == 's_nop':
        i.kind = 'salu'; i.nop = int(ops[0], 0) + 1; return i
    if op.startswith('v_mfma'):
        i.kind = 'mfma'; i.passes = 8 if '32x32x16' in op else 4
        i.dst = regs(ops[0]); i.src = regs(ops[1]) | regs(ops[2]); i.srcC = regs(ops[3]); return i
    if op.startswith('v_'):
        i.kind = 'valu'
        i.dpp = ('row_' in mods) or ('_dpp' in op) or ('quad_perm' in mods)
        if op.startswith('v_cmp'):
            i.dst = regs(ops[0]); i.src = set().union(*[regs(o) for o in ops[1:]])
        elif op.startswith('v_permlane'):
            i.dst = regs(ops[0]) | regs(ops[1]); i.src = set(i.dst)
        else:
            i.dst = regs(ops[0]); i.src = set().union(*[regs(o) for o in ops[1:]]) if len(ops) > 1 else set()
            if op.startswith(('v_fmac', 'v_mac', 'v_writelane', 'v_dot2c')) or i.dpp: i.src |= i.dst
            if op.startswith('v_cndmask') and len(ops) == 3: i.src |= {('s', 'vcc')}
            if op.startswith(('v_add_co', 'v_sub_co', 'v_addc_co')): i.dst |= regs(ops[1])
        return i
    if op.startswith('ds_'):
        i.kind = 'ds'
        if op.startswith('ds_read'):
            i.dst = regs(ops[0]); i.src = regs(ops[1])
        else:
            i.src = set().union(*[regs(o) for o in ops])
        return i
    if op.startswith(('buffer_', 'global_')):
        i.kind = 'vmem'
        allm = mods + ' ' + ' '.join(ops)
        if op in ('buffer_wbl2', 'buffer_inv'): return i
        lds = (' lds' in ' ' + mods) or ('_lds_' in op)
        i.lds_dma = lds
        if 'store' in op or 'atomic' in op:
            i.src = set().union(*[regs(o) for o in ops])
            if 'x4' in op or 'x3' in op:
                i.big_store_data = regs(ops[0]) if op.startswith('buffer_') else regs(ops[1])
        elif lds:
            i.src = set().union(*[regs(o) for o in ops]) | {('s', 'm0')}
        else:
            i.dst = regs(ops[0]); i.src = set().union(*[regs(o) for o in ops[1:]])
        return i
    if op.startswith('s_'):
        i.kind = 'salu'
        nodst = ('s_cmp', 's_cbranch', 's_branch', 's_waitcnt', 's_barrier', 's_endpgm', 's_setprio', 's_sleep', 's_bitcmp')
        if op.startswith(nodst):
            i.src = set().union(*[regs(o) for o in ops]) if ops else set()
        else:
            i.dst = regs(ops[0]); i.src = set().union(*[regs(o) for o in ops[1:]]) if len(ops) > 1 else set()
        return i
    raise ValueError(text)

def need(p, c):
    n = 0
    vreg = lambda S: {r for r in S if r[0] in 'va'}
    if p.kind == 'mfma':
        big = p.passes == 8
        if c.kind == 'mfma':
            if p.dst & c.src: n = max(n, 12 if big else 8)
            ov = p.dst & c.srcC
            if ov and (c.srcC != p.dst or c.passes != p.passes): n = max(n, 10 if big else 6)
        elif c.kind == 'valu':
            if p.dst & (c.src | c.dst): n = max(n, 12 if big else 8)
            if p.srcC & c.dst: n = max(n, 7 if big else 3)
        elif c.kind in ('ds', 'vmem'):
            if p.dst & (c.src | c.dst): n = max(n, 12 if big else 8)
    elif p.kind == 'valu':
        pv = vreg(p.dst); ps = p.dst - pv
        if c.kind == 'mfma' and pv & (c.src | c.srcC): n = max(n, 2)
        if c.kind == 'valu':
            if c.dpp and pv & c.src: n = max(n, 2)
            if c.op.startswith('v_permlane') and pv & c.src: n = max(n, 2)
            if c.op.startswith(('v_readlane', 'v_readfirstlane')) and pv & c.src: n = max(n, 1)
            if p.op in TRANS and c.op not in TRANS and pv & c.src: n = max(n, 1)
            if ps & c.src: n = max(n, 2)
            if p.op.startswith('v_dot') and (pv & (c.src | c.dst)) and not (p.op == c.op): n = max(n, 3)
        if c.kind == 'vmem' and ps & c.src: n = max(n, 5)
    elif p.kind == 'vmem':
        if p.big_store_data:
            if c.kind == 'valu' and p.big_store_data & c.dst: n = max(n, 2)
            elif c.kind in ('mfma', 'ds', 'vmem') and p.big_store_data & c.dst: n = max(n, 2)
    elif p.kind == 'salu':
        if ('s', 'm0') in p.dst and c.kind == 'vmem' and c.lds_dma: n = max(n, 1)
    return n

def hazard_pass(lines, verbose=False):
    out = []; hist = []
    added = 0
    for ln in lines:
        c = parse(ln)
        if c.kind == 'label':
            out.append(ln); continue
        dist = 0; short = 0; why = None
        for p in reversed(hist):
            r = need(p, c)
            if r > dist and r - dist > short:
                short = r - dist; why = p.text
            dist += p.nop
            if dist >= 13: break
        if short:
            k = short
            while k > 0:
                m = min(k, 16)
                nop = parse(f"s_nop {m-1}"); hist.append(nop); out.append(f"s_nop {m-1}"); k -= m
            added += short
            if verbose: print(f"  hazard: +{short} before `{ln}`  (after `{why}`)")
        hist.append(c); out.append(ln)
        if len(hist) > 40: hist = hist[-20:]
    if verbose: print('hazard pass: inserted', added, 'wait states')
    return out
```

```python
import sys
sys.path.insert(0, 'gen')
from asmlib import *
from layout import *
from common import head, kd

HC_J = 4160; HC_CH = 4*HC_J
XR = 2*HC_CH
XR_P = 4640; XR_CH = 9472
KT = XR; VT = XR + 9216
K0_LDS = XR + 2*XR_CH
K1_FLAG_BYTES = 131072

def gen_k0(name='k0_kernel', stamps=False, pf_lines=256, force_slow=False):
    A = Asm()
    A.raw(head(name).rstrip())
    SREG = [80,82,84,86,88,90,92,94,100,14,0]
    nst = [0]
    names = []
    def stamp(i, wait=False):
        if stamps:
            r = SREG[nst[0]]; nst[0] += 1; names.append(i)
            A(f"s_memtime s[{r}:{r+1}]")
            if wait: A("s_waitcnt lgkmcnt(0)")
    A(f"""
    s_cmp_ge_u32 s2, 256
    s_cbranch_scc1 L_k0_end
    s_load_dwordx4 s[24:27], s[0:1], 88
    s_load_dwordx4 s[4:7], s[0:1], 8
    s_load_dwordx4 s[8:11], s[0:1], 24
    s_load_dwordx2 s[12:13], s[0:1], 40
    s_load_dwordx4 s[16:19], s[0:1], 56
    s_load_dwordx2 s[20:21], s[0:1], 72
    """)
    if stamps: A("s_memrealtime s[96:97]")
    stamp(0)
    A(f"""
    s_getreg_b32 s79, hwreg(HW_REG_XCC_ID, 0, 4)
    s_getpc_b64 s[56:57]
    v_lshlrev_b32 v1, 6, v0
    v_min_u32 v1, {64*(pf_lines-1)}, v1
    s_and_b32 s44, s2, 7
    s_lshr_b32 s45, s2, 3           ; m
    v_lshrrev_b32 v2, 6, v0
    v_and_b32 v3, 31, v0            ; cp
    v_readfirstlane_b32 s46, v2     ; wave
    v_lshrrev_b32 v4, 5, v0         ; tg
    s_lshl_b32 s49, s44, 6
    s_lshl_b32 s50, s45, 1
    s_add_u32 s49, s49, s50
    s_lshl_b32 s50, s49, 1
    s_lshl_b32 s52, s46, 10         ; wave*1024
    s_lshl_b32 s53, s49, 12         ; cB0*4096
    v_lshrrev_b32 v5, 3, v0
    v_and_b32 v6, 7, v0
    v_lshlrev_b32 v5, 10, v5
    v_lshl_add_u32 v5, v6, 4, v5
    s_lshl_b32 s47, s45, 16         ; T0*1024
    s_lshl_b32 s48, s44, 7
    s_add_u32 s47, s47, s48
    v_add_u32 v5, s47, v5
    v_add_u32 v6, 0xfffff000, v5
    v_add_u32 v7, 0x7000, v5        ; k rows +32  (32768-4096)
    v_add_u32 v8, 0xfffffc00, v5
    v_add_u32 v9, 0x7c00, v5        ; v rows +32
    v_lshlrev_b32 v46, 4, v0
    s_waitcnt lgkmcnt(0)
    """)
    srd(A, 28, 4, 2097152)
    srd(A, 36, 6, 2097152)
    def dma(vaddr, srdreg, m0expr_lines, soff='0'):
        A(m0expr_lines)
        A(f"s_nop 0\nbuffer_load_dwordx4 {vaddr}, s[{srdreg}:{srdreg+3}], {soff} offen lds")
    dma('v6', 28, f"s_add_u32 s54, s52, {KT}\ns_mov_b32 m0, s54")
    dma('v8', 36, f"s_add_u32 s54, s52, {VT}\ns_mov_b32 m0, s54")
    dma('v7', 28, f"s_add_u32 s54, s52, {KT+4096}\ns_mov_b32 m0, s54")
    dma('v9', 36, f"s_add_u32 s54, s52, {VT+4096}\ns_mov_b32 m0, s54")
    A(f"""
    s_cmp_gt_u32 s46, 1
    s_cbranch_scc1 L_k0_noextra
    v_and_b32 v10, 63, v0
    v_lshrrev_b32 v11, 3, v10
    v_and_b32 v10, 7, v10
    v_lshlrev_b32 v11, 10, v11
    v_lshl_add_u32 v11, v10, 4, v11
    v_add_u32 v11, s47, v11
    s_cmp_eq_u32 s46, 0
    s_cbranch_scc0 L_k0_extrav
    v_add_u32 v11, 0xf000, v11      ; +60 rows (64-4)
    s_mov_b32 m0, {KT+8192}
    s_nop 0
    buffer_load_dwordx4 v11, s[28:31], 0 offen lds
    s_branch L_k0_noextra
L_k0_extrav:
    v_add_u32 v11, 0xfc00, v11      ; +63 rows (64-1)
    s_mov_b32 m0, {VT+8192}
    s_nop 0
    buffer_load_dwordx4 v11, s[36:39], 0 offen lds
L_k0_noextra:
    global_load_dword v12, v1, s[56:57]
    s_lshl_b32 s48, s44, 9
    v_lshlrev_b32 v10, 4, v3
    v_add_u32 v10, s48, v10
    global_load_dwordx4 v[36:39], v10, s[8:9]
    """)
    srd(A, 32, 10, 2097152)
    A(f"""
    s_load_dword s51, s[12:13], s50
    v_lshrrev_b32 v11, 7, v0        ; ch
    v_bfe_u32 v13, v0, 5, 2         ; j
    v_and_b32 v14, 31, v0           ; p
    v_lshl_add_u32 v15, v13, 1, v14
    v_add_u32 v15, -30, v15         ; idx
    v_add_u32 v41, s49, v11         ; channel
    v_lshlrev_b32 v41, 12, v41
    v_lshl_add_u32 v41, v15, 1, v41
    v_cmp_gt_i32 vcc, 0, v15
    v_mov_b32 v42, -16
    s_nop 0
    v_cndmask_b32 v41, v41, v42, vcc
    buffer_load_ushort v40, v41, s[32:35], 0 offen
    v_mul_u32_u24 v43, {HC_CH}, v11
    v_mul_u32_u24 v44, {HC_J}, v13
    v_add_u32 v43, v43, v44
    v_lshl_add_u32 v43, v14, 1, v43
    """)
    for ch in range(2):
        for j in range(4):
            A(f"""
            s_add_u32 s54, s53, {ch*4096 + 4 + 4*j}
            s_add_u32 s55, s52, {ch*HC_CH + j*HC_J + 64}
            s_mov_b32 m0, s55
            s_nop 0
            buffer_load_dwordx4 v46, s[32:35], s54 offen lds
            """)
    A("""
    s_waitcnt vmcnt(8)
    s_barrier
    """)
    stamp(1)
    A(f"""
    v_lshlrev_b32 v5, 10, v4        ; tg*8*128
    v_lshl_add_u32 v5, v3, 2, v5
    v_add_u32 v6, {KT}, v5
    v_add_u32 v7, {VT}, v5
    """)
    for x in range(0, 12, 2): A(f"ds_read2_b32 v[{16+x}:{17+x}], v6 offset0:{32*x} offset1:{32*(x+1)}" if 32*(x+1) < 256 else "")
    A("v_add_u32 v8, 1024, v6\nv_add_u32 v9, 1024, v7")
    for x in range(8, 12, 2): A(f"ds_read2_b32 v[{16+x}:{17+x}], v8 offset0:{32*(x-8)} offset1:{32*(x-7)}")
    for x in range(0, 8, 2): A(f"ds_read2_b32 v[{28+x}:{29+x}], v7 offset0:{32*x} offset1:{32*(x+1)}")
    A("ds_read_b32 v36, v9\n" if False else "")
    A("ds_read_b32 v60, v9")
    A("ds_write_b16 v43, v40")
    A("""
    v_lshlrev_b32 v136, 16, v36
    v_lshlrev_b32 v137, 16, v38
    v_and_b32 v138, 0xffff0000, v36
    v_and_b32 v139, 0xffff0000, v38
    v_lshlrev_b32 v140, 16, v37
    v_lshlrev_b32 v141, 16, v39
    v_and_b32 v142, 0xffff0000, v37
    v_and_b32 v143, 0xffff0000, v39
    s_waitcnt lgkmcnt(0)
    """)
    stamp('lds')
    for i in range(12):
        A(f"v_lshlrev_b32 v{96+2*i}, 16, v{16+i}\nv_and_b32 v{97+2*i}, 0xffff0000, v{16+i}")
    for i in range(9):
        src = 28+i if i < 8 else 60
        A(f"v_lshlrev_b32 v{164+2*i}, 16, v{src}\nv_and_b32 v{165+2*i}, 0xffff0000, v{src}")
    def K(x): return f"v[{96+2*x}:{97+2*x}]"
    def KV(i): return 144 + 2*i
    for i in range(9):
        A(f"v_pk_mul_f32 v[{KV(i)}:{KV(i)+1}], v[136:137], {K(i+3)}")
    for tap in (1,2,3):
        for i in range(9):
            A(f"v_pk_fma_f32 v[{KV(i)}:{KV(i)+1}], v[{136+2*tap}:{137+2*tap}], {K(i+3-tap)}, v[{KV(i)}:{KV(i)+1}]")
    for i in range(9):
        A(f"v_pk_mul_f32 v[{KV(i)}:{KV(i)+1}], v[{KV(i)}:{KV(i)+1}], v[{164+2*i}:{165+2*i}]")
    A(f"""
    s_lshl_b32 s47, s44, 19         ; gamma*64*8192
    s_lshl_b32 s48, s45, 7
    s_sub_u32 s47, s47, s48
    s_add_u32 s47, s47, {WS_KVT + 4080}
    v_lshlrev_b32 v5, 14, v3        ; cp*2*8192
    v_lshlrev_b32 v6, 4, v4
    v_sub_u32 v5, v5, v6
    v_add_u32 v5, s47, v5
    v_add_u32 v6, 8192, v5
    v_add_u32 v7, 4096, v5
    v_add_u32 v8, 12288, v5
    """)
    for c in range(2):
        for d in range(4):
            A(f"v_cvt_pk_bf16_f32 v{16+8*c+d}, v{KV(8-2*d)+c}, v{KV(7-2*d)+c}")
        for d in range(4):
            A(f"v_cvt_pk_bf16_f32 v{20+8*c+d}, v{KV(7-2*d)+c}, v{KV(6-2*d)+c}")
    stamp('cmp')
    A("""
    global_store_dwordx4 v5, v[16:19], s[26:27]
    global_store_dwordx4 v7, v[20:23], s[26:27]
    global_store_dwordx4 v6, v[24:27], s[26:27]
    global_store_dwordx4 v8, v[28:31], s[26:27]
    """)
    stamp(2)
    srd(A, 36, 16, 1835008)
    srd(A, 40, 18, 1835008)
    srd(A, 64, 20, 1835008)
    srd(A, 68, 26, WS_SRD_BYTES)
    A("""
    s_lshr_b32 s58, s2, 2           ; kg
    s_and_b32 s59, s2, 3            ; fq
    s_mul_i32 s60, s58, 28672       ; kg*8*3584
    s_mul_i32 s61, s59, 896         ; fq*448*2
    s_add_u32 s60, s60, s61
    v_lshlrev_b32 v47, 2, v0
    v_add_u32 v47, s60, v47         ; W1 source offset (thread t<224)
    s_lshl_b32 s61, s2, 13          ; kg*8*1024
    v_lshlrev_b32 v48, 2, v0
    v_add_u32 v48, s61, v48         ; Wd source; >= 1835008 for kg>=224 -> OOB reads 0
    v_add_u32 v49, 4096, v48
    v_mul_u32_u24 v5, 1171, v0
    v_lshrrev_b32 v5, 16, v5        ; role_local = t/56
    v_mul_u32_u24 v6, 56, v5
    v_sub_u32 v6, v0, v6            ; rem
    s_lshl_b32 s47, s59, 2
    v_add_u32 v5, s47, v5           ; role
    v_mul_u32_u24 v5, 7, v5
    v_lshrrev_b32 v7, 3, v6         ; tau
    v_add_u32 v5, v5, v7            ; role*7+tau
    v_lshlrev_b32 v5, 15, v5        ; *32 KB
    v_and_b32 v6, 7, v6             ; h = fi/2
    v_and_b32 v7, 1, v6
    v_lshlrev_b32 v7, 1, v7
    v_and_b32 v8, 2, v6
    v_lshl_or_b32 v7, v8, 2, v7
    v_and_b32 v8, 4, v6
    v_or_b32 v7, v7, v8             ; row
    s_lshr_b32 s47, s58, 1          ; kappa
    s_lshl_b32 s47, s47, 10
    s_and_b32 s48, s58, 1           ; hi
    s_lshl_b32 s48, s48, 9
    s_add_u32 s47, s47, s48
    """ + f"s_add_u32 s47, s47, {WS_W1F}" + """
    v_lshl_add_u32 v5, v7, 4, v5
    v_add_u32 v50, s47, v5          ; gate dest ; up dest = +256
    v_cmp_gt_u32 vcc, 224, v0
    v_mov_b32 v6, 0xf0000000
    s_nop 0
    v_cndmask_b32 v47, v6, v47, vcc    ; t>=224 -> OOB
    v_cndmask_b32 v50, v6, v50, vcc
    s_lshr_b32 s47, s2, 1           ; kf
    s_mul_i32 s48, s47, 2341        ; /28 : 2341/65536
    s_lshr_b32 s48, s48, 16         ; w'
    s_mul_i32 s60, s48, 28
    s_sub_u32 s60, s47, s60         ; k'
    s_mul_i32 s48, s48, 57344       ; w'*28*2*1024
    s_lshl_b32 s60, s60, 11         ; k'*2048
    s_add_u32 s48, s48, s60
    s_and_b32 s60, s2, 1
    s_lshl_b32 s60, s60, 9          ; hi*512
    s_add_u32 s48, s48, s60
    """ + f"s_add_u32 s48, s48, {WS_WDF}" + """
    s_cmp_ge_u32 s2, 224
    s_cselect_b32 s48, 0xf0000000, s48
    v_lshrrev_b32 v6, 5, v0
    v_mul_u32_u24 v6, 229376, v6    ; j*4*57344
    v_bfe_u32 v7, v0, 4, 1
    v_lshl_add_u32 v6, v7, 10, v6   ; dt*1024
    v_and_b32 v7, 15, v0
    v_and_b32 v8, 1, v7
    v_lshlrev_b32 v8, 1, v8
    v_and_b32 v9, 2, v7
    v_lshl_or_b32 v8, v9, 2, v8
    v_and_b32 v9, 4, v7
    v_or_b32 v8, v8, v9
    v_and_b32 v9, 8, v7
    v_lshl_or_b32 v8, v9, 1, v8     ; row
    v_lshl_add_u32 v6, v8, 4, v6
    v_add_u32 v51, s48, v6
    s_mov_b32 s62, 0x05040100
    s_mov_b32 s63, 0x07060302
    """)
    for i in range(1, 8): A(f"s_mov_b32 s{71+i}, {3584*i}")
    A(f"""
    v_and_b32 v4, 63, v0            ; lane
    v_and_b32 v5, 15, v4
    v_lshrrev_b32 v6, 4, v4         ; g
    v_and_b32 v7, 3, v4             ; j' = r&3
    v_bfe_u32 v8, v4, 2, 2          ; q = r>>2
    s_lshr_b32 s47, s46, 1          ; ch
    s_and_b32 s48, s46, 1
    s_lshl_b32 s48, s48, 8          ; 64*rho0 = 64*4*(w&1)
    s_mul_i32 s60, s47, {HC_CH}
    s_add_u32 s60, s60, s48
    v_mul_u32_u24 v9, {HC_J}, v7
    v_add_u32 v11, v6, v8
    v_lshl_add_u32 v9, v11, 4, v9
    v_add_u32 v2, s60, v9           ; vA
    s_mul_i32 s60, s47, {XR_CH}
    s_add_u32 s60, s60, s48
    s_add_u32 s60, s60, {XR + 16*252 - 3584}
    v_and_b32 v7, 7, v4             ; n'
    v_bfe_u32 v8, v4, 3, 1          ; par'
    v_mul_u32_u24 v8, {XR_P}, v8
    v_lshlrev_b32 v11, 6, v7        ; 64 n'
    v_sub_u32 v8, v8, v11
    v_lshl_add_u32 v8, v6, 4, v8    ; + 16 g
    v_add_u32 v3, s60, v8           ; vB
    s_lshl_b32 s60, s49, 13
    s_add_u32 s60, s60, {WS_KVT}
    v_add_u32 v12, s60, v46
    v_lshrrev_b32 v5, 5, v0
    v_mul_u32_u24 v5, {XR_CH}, v5
    v_bfe_u32 v6, v0, 4, 1          ; par
    v_mul_u32_u24 v6, {XR_P}, v6
    v_add_u32 v5, v5, v6
    v_and_b32 v6, 15, v0
    v_lshl_add_u32 v5, v6, 5, v5
    v_add_u32 v5, {XR+4096}, v5
    v_mov_b32 v8, 0
    v_mov_b32 v9, 0
    v_mov_b32 v10, 0
    v_mov_b32 v11, 0
    s_waitcnt vmcnt(4)
    """)
    stamp('hdma')
    A("""
    s_waitcnt vmcnt(0)
    s_barrier
    """)
    stamp(3)
    A(f"""
    s_cmp_lg_u32 s46, 0
    s_cbranch_scc1 L_k0_nopoll
    s_and_b32 s79, s79, 7
    s_lshl_b32 s47, s44, 5
    s_add_u32 s54, s47, s45
    v_mov_b32 v17, s54
    s_or_b32 s54, s79, 0x10
    v_mov_b32 v7, s54
    global_store_byte v17, v7, s[24:25]
    s_mul_i32 s55, s54, 0x01010101
    v_and_b32 v18, 7, v0
    v_lshlrev_b32 v18, 2, v18
    v_add_u32 v18, s47, v18
    ds_write_b128 v5, v[8:11]
    ds_write_b128 v5, v[8:11] offset:16
    s_mul_i32 s48, s2, {K1_FLAG_BYTES//256}
    v_lshlrev_b32 v6, 3, v0
    v_add_u32 v6, s48, v6
    global_store_dwordx2 v6, v[8:9], s[26:27]
    s_mov_b32 s48, 0
    s_mov_b32 s3, 0
    s_mov_b32 s58, 0x1f1f1f1f
    s_mov_b32 s59, 0x20202020
    {'s_mov_b32 s55, -1' if force_slow else ''}
L_k0_poll:
    global_load_dword v19, v18, s[24:25] sc1
    s_add_u32 s48, s48, 1
    s_waitcnt vmcnt(0)
    v_and_b32 v20, s58, v19
    v_cmp_ne_u32 vcc, s55, v20
    v_and_b32 v20, s59, v19
    s_nop 3
    s_cbranch_vccz L_k0_nopoll
    s_cmp_eq_u32 s3, 0
    s_cbranch_scc0 L_k0_poll_s
    s_cmp_lt_u32 s48, {1 if force_slow else 48}
    s_cbranch_scc1 L_k0_poll
    s_mov_b32 s3, 1
    buffer_wbl2 sc1
    s_waitcnt vmcnt(0)
    s_or_b32 s54, s54, 0x20
    v_mov_b32 v7, s54
    global_store_byte v17, v7, s[24:25] sc1
    s_waitcnt vmcnt(0)
    s_branch L_k0_poll_r
L_k0_poll_s:
    v_cmp_ne_u32 vcc, s59, v20
    s_nop 4
    s_cbranch_vccz L_k0_slowdone
    s_cmp_gt_u32 s48, 0x8000
    s_cbranch_scc1 L_k0_slowdone
L_k0_poll_r:
    buffer_wbl2 sc1
    s_waitcnt vmcnt(0)
    buffer_inv sc1
    s_waitcnt vmcnt(0)
    s_branch L_k0_poll
L_k0_slowdone:
    buffer_inv sc1
    s_waitcnt vmcnt(0)
L_k0_nopoll:
    s_barrier
    """)
    stamp(4)
    for ch in range(2):
        for par in range(2):
            A(f"""
            s_add_u32 s54, s52, {XR + ch*XR_CH + par*XR_P}
            s_mov_b32 m0, s54
            v_add_u32 v13, {ch*8192 + par*4096}, v12
            global_load_lds_dwordx4 v13, s[26:27] sc1
            """)
    ACC = 192
    for i in range(32): A(f"v_mov_b32 v{ACC+i}, 0")
    A("""
    s_waitcnt vmcnt(0) lgkmcnt(0)
    s_barrier
    """)
    stamp(5, True)
    WR = 224
    wl = []
    for (base, sr) in ((WR, 36), (WR+8, 40)):
        for i in range(8):
            so = '0' if i == 0 else f"s{71+i}"
            wl.append(f"buffer_load_dword v{base+i}, v47, s[{sr}:{sr+3}], {so} offen")
    for i in range(4): wl.append(f"buffer_load_dword v{WR+16+i}, v48, s[64:67], 0 offen offset:{1024*i}")
    for i in range(4): wl.append(f"buffer_load_dword v{WR+20+i}, v49, s[64:67], 0 offen offset:{1024*i}")
    wops = []
    def transp(src, dst):
        for d in range(4): wops.append(f"v_perm_b32 v{dst+d}, v{src+2*d+1}, v{src+2*d}, s62")
        for d in range(4): wops.append(f"v_perm_b32 v{dst+4+d}, v{src+2*d+1}, v{src+2*d}, s63")
    transp(WR, 16)
    wops.append("buffer_store_dwordx4 v[16:19], v50, s[68:71], 0 offen")
    wops.append("buffer_store_dwordx4 v[20:23], v50, s[68:71], 0 offen offset:16")
    transp(WR+8, 24)
    wops.append("buffer_store_dwordx4 v[24:27], v50, s[68:71], 0 offen offset:256")
    wops.append("buffer_store_dwordx4 v[28:31], v50, s[68:71], 0 offen offset:272")
    transp(WR+16, 32)
    wops.append("buffer_store_dwordx4 v[32:35], v51, s[68:71], 0 offen")
    wops.append("buffer_store_dwordx4 v[36:39], v51, s[68:71], 0 offen offset:16")
    def AF(st, g): return 64 + 32*st + 4*g
    def BF(st, u): return 128 + 32*st + 4*u
    def rdA(st, g, rho): return f"ds_read_b128 v[{AF(st,g)}:{AF(st,g)+3}], v2 offset:{512*g + 64*rho}"
    def rdB(st, u, rho): return f"ds_read_b128 v[{BF(st,u)}:{BF(st,u)+3}], v3 offset:{512*(7-u) + 64*rho}"
    pairs = [(t, g) for t in range(8) for g in range(t+1)]
    order = []
    for t in range(8):
        order.append(('B', t)); order.append(('A', t))
    def mf(st, t, g):
        return f"v_mfma_f32_16x16x32_bf16 v[{ACC+4*t}:{ACC+4*t+3}], v[{AF(st,g)}:{AF(st,g)+3}], v[{BF(st,t-g)}:{BF(st,t-g)+3}], v[{ACC+4*t}:{ACC+4*t+3}]"
    for rho in range(4):
        st = rho & 1
        nxt = []
        if rho < 3:
            nxt = [ (rdB(st^1, x, rho+1) if k == 'B' else rdA(st^1, x, rho+1)) for (k, x) in order ]
        if rho == 0:
            reads = [ (rdB(0, x, 0) if k == 'B' else rdA(0, x, 0)) for (k, x) in order ]
            for r_ in reads[:14]: A(r_)
            issued = 14; done = 0
            allq = reads + nxt
            wq = list(wl)
            for (t, g) in pairs:
                need = 2*(t+1)
                if g == 0:
                    A(f"s_waitcnt lgkmcnt({issued-need})")
                    done = need
                A(mf(0, t, g))
                if wq: A(wq.pop(0))
                if t == 7 and g == 4:
                    done += 6
                    A(f"s_waitcnt lgkmcnt({issued-done})")
                if issued < len(allq) and issued - done < 14:
                    A(allq[issued]); issued += 1
            assert issued == len(allq) and not wq
        else:
            A("s_waitcnt lgkmcnt(0)")
            k = 0
            wq = list(wops) if rho == 3 else []
            if wq: A("s_waitcnt vmcnt(0)")
            for idx, (t, g) in enumerate(pairs):
                A(mf(st, t, g))
                if nxt and idx % 2 == 0 and k < 16:
                    A(nxt[k]); k += 1
                if wq: A(wq.pop(0))
            assert not wq
    stamp(6)
    A("""
    s_barrier
    v_lshlrev_b32 v5, 4, v4         ; lane*16
    s_lshl_b32 s47, s46, 13
    v_add_u32 v6, s47, v5
    s_nop 4
    """)
    for t in range(8):
        A(f"ds_write_b128 v6, v[{ACC+4*t}:{ACC+4*t+3}] offset:{1024*t}")
    A(f"""
    s_lshl_b32 s47, s46, 11         ; 2w*1024
    v_add_u32 v7, s47, v5
    v_and_b32 v8, 7, v4             ; n'
    v_bfe_u32 v13, v4, 3, 1         ; par'
    v_lshrrev_b32 v9, 4, v4         ; g
    v_lshlrev_b32 v10, 6, v8        ; 2*32 n'
    v_lshl_add_u32 v10, v9, 4, v10  ; + 2*8 g
    v_mul_u32_u24 v14, {XR_P}, v13
    v_sub_u32 v10, v14, v10
    s_lshl_b32 s48, s46, 10         ; 512*2w
    s_sub_u32 s48, {XR + 4080 - 512}, s48
    v_add_u32 v10, s48, v10
    s_add_u32 s60, s53, s47         ; cp*8192 + 2w*1024
    s_add_u32 s60, s60, {WS_Y2}
    v_lshlrev_b32 v11, 7, v8        ; 4*32 n'
    v_lshl_add_u32 v11, v9, 5, v11  ; 4*8 g
    v_lshl_add_u32 v11, v13, 4, v11 ; 4*4 par'
    v_add_u32 v11, s60, v11
    s_lshl_b32 s60, s51, 16
    s_and_b32 s61, s51, 0xffff0000  ; D ch1
    s_waitcnt lgkmcnt(0)
    s_barrier
    """)
    for tau in range(2):
        for src in range(4):
            A(f"ds_read_b128 v[{64+32*tau+4*src}:{67+32*tau+4*src}], v7 offset:{8192*src + 1024*tau}")
        for ch in range(2):
            A(f"ds_read_b128 v[{128+8*tau+4*ch}:{131+8*tau+4*ch}], v10 offset:{ch*XR_CH + 512*(1-tau)}")
    for tau in range(2):
        A(f"s_waitcnt lgkmcnt({6 if tau == 0 else 0})")
        base = 64 + 32*tau
        for ch in range(2):
            sD = 's60' if ch == 0 else 's61'
            kvr = 128 + 8*tau + 4*ch
            for r in range(4):
                y = base + 8*ch + r
                A(f"v_add_f32 v{y}, v{y}, v{y+4}")
            for d in range(4):
                A(f"v_lshlrev_b32 v{kvr+d}, 16, v{kvr+d}")
            for r in range(4):
                y = base + 8*ch + r
                A(f"v_fmac_f32 v{y}, {sD}, v{kvr+3-r}")
        for r in range(4):
            A(f"v_cvt_pk_bf16_f32 v{148+r}, v{base+r}, v{base+8+r}")
        o = 152 + 4*tau
        A(f"""
        v_mov_b32 v{o}, v150
        v_mov_b32 v{o+1}, v148
        v_mov_b32 v{o+2}, v151
        v_mov_b32 v{o+3}, v149
        v_mov_b32_dpp v{o}, v148 row_ror:8 row_mask:0xf bank_mask:0x3
        v_mov_b32_dpp v{o+1}, v150 row_ror:8 row_mask:0xf bank_mask:0xc
        v_mov_b32_dpp v{o+2}, v149 row_ror:8 row_mask:0xf bank_mask:0x3
        v_mov_b32_dpp v{o+3}, v151 row_ror:8 row_mask:0xf bank_mask:0xc
        """)
        A(f"global_store_dwordx4 v11, v[{o}:{o+3}], s[26:27] offset:{1024*tau}")
    stamp(7)
    if stamps:
        A("""
        s_waitcnt vmcnt(0)
        s_memtime s[22:23]
        s_memrealtime s[98:99]
        s_waitcnt lgkmcnt(0)
        s_cmp_lg_u32 s46, 0
        s_cbranch_scc1 L_k0_end
        """)
        for i in range(1, nst[0]): A(f"s_sub_u32 s{SREG[i]}, s{SREG[i]}, s80")
        A("s_sub_u32 s22, s22, s80")
        for i in range(16): A(f"v_mov_b32 v{16+i}, 0")
        for i in range(1, nst[0]): A(f"v_mov_b32 v{16+i}, s{SREG[i]}")
        A("v_mov_b32 v16, s96\nv_mov_b32 v28, s22\nv_mov_b32 v29, s98\nv_mov_b32 v30, s3")
        print('stamps:', names)
        A(f"""
        s_lshl_b32 s47, s2, 6
        s_add_u32 s47, s47, {WS_STAMP}
        v_mov_b32 v5, s47
        v_cmp_eq_u32 vcc, 0, v0
        s_and_saveexec_b64 s[14:15], vcc
        global_store_dwordx4 v5, v[16:19], s[26:27]
        global_store_dwordx4 v5, v[20:23], s[26:27] offset:16
        global_store_dwordx4 v5, v[24:27], s[26:27] offset:32
        global_store_dwordx4 v5, v[28:31], s[26:27] offset:48
        """)
    A("L_k0_end:\ns_endpgm")
    return A.text() + kd(name, 256, 102)

if __name__ == '__main__':
    from common import TARGET, KERNARG_COMMENT
    st = 'stamps' in sys.argv
    txt = KERNARG_COMMENT + f"; @launch kernel=k0_kernel grid=(256,1,1) block=(256,1,1) lds={K0_LDS}\n" + TARGET + gen_k0(stamps=st, force_slow='slow' in sys.argv)
    txt += ".text\n.fill 4096, 4, 0xbf800000\n"
    open(sys.argv[1], 'w').write(txt)
```

```python
WS_FLAGS = 0x0000000
WS_K0F   = 0x0010000
WS_KVT   = 0x0100000
WS_Y2    = 0x0500000
WS_W1F   = 0x0700000
WS_WDF   = 0x0B00000
WS_XN    = 0x0D00000
WS_XM    = 0x1100000
WS_H     = 0x1500000
WS_X2    = 0x2300000
WS_STAMP = 0x2600000
WS_SRD_BYTES = 0x2800000
FL_XCC = 0x0000
FL_XN  = 0x1000
FL_H   = 0x4000
FL_X2  = 0xC000
```

```python
import sys
sys.path.insert(0, 'gen')
from emit import *
from layout import *
from common import head, kd

K1_LDS = 163840
SLOT = 32768
STATS = 4*SLOT + 31744
SCR = SLOT
OOB = 0x80000000
VL16, VA1, VA2, VP8, VP16, VF0, VR = 1, 2, 3, 4, 5, 6, 7
VSTW, VSTR = 11, 12
VRW = [13, 14, 15]; VRR = 16
VPOLL, VONE, VXCC = 17, 18, 19
RING = 32
ACC = [64, 80, 96, 112]
XR = 128
A_WD = 0; A_Y = 224; A_T4 = 232
S_WS = 4; S_Q = 8; S_OUT = 12
S_W, S_ROLE, S_C, S_TH, S_J, S_EXP, S_XCC, S_W1K = 16, 17, 18, 19, 20, 21, 22, 23
S_R, S_XNL, S_HST, S_HLD, S_XML, S_W1, S_FXNS, S_FXNL, S_FHS, S_FHL, S_FX2S, S_FX2L = range(34, 46)
S_T0, S_T1, S_T2, S_T3, S_HI = 46, 47, 48, 49, 31
S_NL2E = 50
LA = 6
def vr(b, n=1): return f"v{b}" if n == 1 else f"v[{b}:{b+n-1}]"
def ar(b, n=1): return f"a{b}" if n == 1 else f"a[{b}:{b+n-1}]"

LAYERS = [
    dict(tau=[0, 1, 2, 3, 4, 5, 6], slot=[0, 1, 2, 3, 4, 0, 1]),
    dict(tau=[5, 2, 3, 4, 6, 0, 1], slot=[0, 2, 3, 4, 1, 0, 2]),
]

def gen_k1(name='k1_kernel', stamps=False, force_slow=False, opt=None):
    opt = opt or {}
    E = Emit()
    SREG = list(range(52, 100, 2)); names = []
    DEF = ['start', 'qy', 'R0s1', 'R0st', 'R0pub', 'L0xnok', 'L0g1', 'L0s96', 'L0s224', 'L0g2end', 'L0st', 'x2pub', 'x2ok', 'R1s1', 'R1st', 'R1pub', 'L1xnok', 'L1g1', 'L1s96', 'L1s224', 'L1g2end', 'L1st', 'end']
    enabled = set(opt.get('st', DEF)) | {'start', 'end'}
    def stamp(nm):
        if stamps and nm in enabled:
            r = SREG[len(names)]; names.append(nm)
            E(f"s_memtime s[{r}:{r+1}]")
    WSRD = f"s[{S_WS}:{S_WS+3}]"

    def sadd(dst, base, const):
        if const == 0: E(f"s_mov_b32 s{dst}, s{base}")
        else: E(f"s_add_u32 s{dst}, s{base}, {const}")
    def dma_tile(tau, slot, ilist, tag):
        first = True
        for i in ilist:
            if first:
                sadd(S_T0, S_W1, tau*32768 + i*4096)
                E(f"s_add_u32 m0, s{S_W1K}, {slot*SLOT + i*4096}")
                E("s_nop 0")
                first = False
            else:
                E(f"s_add_u32 m0, m0, 4096")
                E(f"s_add_u32 s{S_T0}, s{S_T0}, 4096")
            E.vm(f"buffer_load_dwordx4 v{VL16}, {WSRD}, s{S_T0} offen lds", tag)
    def dma_ops(tau, slot, ilist, tag):
        ops = []
        for i in ilist:
            def f(i=i):
                E(f"s_add_u32 m0, s{S_W1K}, {slot*SLOT + i*4096}")
                sadd(S_T0, S_W1, tau*32768 + i*4096)
                E.vm(f"buffer_load_dwordx4 v{VL16}, {WSRD}, s{S_T0} offen lds", tag)
            ops.append(f)
        return ops
    def publish(sbase, const, tag):
        E.wait_vm(tag)
        ls = E.label('L_pubs'); lb = E.label('L_pubb')
        sadd(S_T1, sbase, const)
        E(f"s_cmp_eq_u32 s{S_EXP}, 1")
        E(f"s_cbranch_scc0 {ls}")
        E.vm(f"buffer_store_dword v{VONE}, v{VF0}, {WSRD}, s{S_T1} offen", None)
        E(f"{lb}:")
        E.out_of_line(f"""
        {ls}:
        buffer_wbl2 sc1
        s_waitcnt vmcnt(0)
        buffer_store_dword v{VONE}, v{VF0}, {WSRD}, s{S_T1} offen sc1
        s_branch {lb}""")
    def poll_issue(voff, sbase, const, tag, dst=VPOLL, sreg=S_T2):
        sadd(sreg, sbase, const)
        E.vm(f"buffer_load_dword v{dst}, v{voff}, {WSRD}, s{sreg} offen sc1", tag)
    def poll_check(voff, sbase, const, tag, dst=VPOLL):
        E.wait_vm(tag)
        ls = E.label('L_polls'); lb = E.label('L_pollb'); ll = E.label('L_polll'); ld = E.label('L_polld')
        E(f"v_cmp_ne_u32 vcc, s{S_EXP}, v{dst}")
        E(f"s_cbranch_vccnz {ls}")
        E(f"{lb}:")
        E.out_of_line(f"""
        {ls}:
        s_add_u32 s{S_T2}, s{sbase}, {const}
        s_mov_b32 s{S_T3}, 0
        {ll}:
        s_cmp_eq_u32 s{S_EXP}, 1
        s_cbranch_scc1 {ld}
        buffer_inv sc1
        s_waitcnt vmcnt(0)
        {ld}:
        buffer_load_dword v{dst}, v{voff}, {WSRD}, s{S_T2} offen sc1
        s_add_u32 s{S_T3}, s{S_T3}, 1
        s_waitcnt vmcnt(0)
        v_cmp_ne_u32 vcc, 1, v{dst}
        s_cmp_gt_u32 s{S_T3}, 0x4000
        s_cbranch_scc1 {ld}x
        s_cbranch_vccnz {ll}
        {ld}x:
        s_cmp_eq_u32 s{S_EXP}, 1
        s_cbranch_scc1 {lb}
        buffer_inv sc1
        s_waitcnt vmcnt(0)
        s_branch {lb}""")

    E.L.append(head(name).rstrip())
    E(f"""
    s_cmp_ge_u32 s2, 256
    s_cbranch_scc1 L_k1_end
    s_load_dwordx2 s[24:25], s[0:1], 0
    s_load_dwordx2 s[26:27], s[0:1], 80
    s_load_dwordx2 s[28:29], s[0:1], 96
    """)
    if stamps: E("s_memrealtime s[100:101]")
    stamp('start')
    E(f"""
    s_getreg_b32 s{S_XCC}, hwreg(HW_REG_XCC_ID, 0, 4)
    s_getpc_b64 s[32:33]
    L_k1_pc:
    v_lshrrev_b32 v2, 6, v0
    v_and_b32 v8, 63, v0
    s_lshr_b32 s30, s2, 3
    v_readfirstlane_b32 s{S_W}, v2
    s_and_b32 s{S_ROLE}, s30, 15
    s_lshr_b32 s30, s30, 4
    s_lshl_b32 s30, s30, 3
    s_and_b32 s{S_C}, s2, 7
    s_add_u32 s{S_C}, s{S_C}, s30
    s_lshr_b32 s{S_TH}, s{S_ROLE}, 3
    s_and_b32 s{S_J}, s{S_ROLE}, 7
    s_lshl_b32 s{S_W1K}, s{S_W}, 10
    v_lshlrev_b32 v{VL16}, 4, v8
    v_and_b32 v20, 7, v8                     ; tok
    v_bfe_u32 v21, v8, 3, 1                  ; hi
    v_lshrrev_b32 v22, 4, v8                 ; ks
    v_lshlrev_b32 v9, 10, v20
    v_lshl_add_u32 v9, v22, 5, v9
    v_lshl_add_u32 v9, v21, 4, v9
    v_lshlrev_b32 v10, 16, v22
    v_lshl_add_u32 v10, v21, 15, v10
    v_lshl_add_u32 v10, v20, 2, v10
    s_lshl_b32 s30, s{S_C}, 7
    s_lshl_b32 s{S_T0}, s{S_ROLE}, 3
    s_add_u32 s30, s30, s{S_T0}              ; T0
    s_lshl_b32 s{S_T0}, s30, 10
    s_lshl_b32 s{S_T1}, s{S_W}, 8
    s_add_u32 s{S_T0}, s{S_T0}, s{S_T1}      ; q soffset
    s_lshl_b32 s{S_T1}, s30, 2
    s_lshl_b32 s{S_T2}, s{S_W}, 19
    s_add_u32 s{S_T1}, s{S_T1}, s{S_T2}
    s_add_u32 s{S_T1}, s{S_T1}, {WS_Y2}      ; Y soffset
    s_mul_i32 s{S_W1}, s{S_ROLE}, 229376
    s_add_u32 s{S_W1}, s{S_W1}, s{S_W1K}
    s_add_u32 s{S_W1}, s{S_W1}, {WS_W1F}
    v_lshlrev_b32 v23, 6, v0
    v_min_u32 v24, L_k1_codeend-L_k1_pc-64, v23
    v_add_u32 v23, 16384, v23
    v_min_u32 v23, L_k1_codeend-L_k1_pc-64, v23
    s_waitcnt lgkmcnt(0)
    """)
    stamp('karg')
    E(f"""
    s_mov_b32 s{S_Q}, s24
    s_and_b32 s{S_Q+1}, s25, 0xffff
    s_mov_b32 s{S_Q+2}, 2097152
    s_mov_b32 s{S_Q+3}, 0x20000
    s_mov_b32 s{S_WS}, s28
    s_and_b32 s{S_WS+1}, s29, 0xffff
    s_mov_b32 s{S_WS+2}, {WS_SRD_BYTES}
    s_mov_b32 s{S_WS+3}, 0x20000
    """)
    X, Y = 128, 136
    E.vm(f"buffer_load_dwordx4 v[{X}:{X+3}], v9, s[{S_Q}:{S_Q+3}], s{S_T0} offen", 'q')
    E.vm(f"buffer_load_dwordx4 v[{X+4}:{X+7}], v9, s[{S_Q}:{S_Q+3}], s{S_T0} offen offset:128", 'q')
    for c2 in range(2):
        for i in range(4):
            E.vm(f"buffer_load_dword v{Y+4*c2+i}, v10, {WSRD}, s{S_T1} offen", 'y')
            if (c2, i) != (1, 3):
                E(f"s_add_u32 s{S_T1}, s{S_T1}, {8192 if i < 3 else 32*8192 - 3*8192}")
    E.vm("global_load_dword v25, v24, s[32:33]", 'pf')
    E.vm("global_load_dword v26, v23, s[32:33]", 'pf')
    L1 = LAYERS[0]
    for i in range(4):
        for p in range(3):
            for f in dma_ops(L1['tau'][p], L1['slot'][p], [i], 'w1a'): f()
    E(f"""
    s_mov_b32 s{S_OUT}, s26
    s_and_b32 s{S_OUT+1}, s27, 0xffff
    s_mov_b32 s{S_OUT+2}, 2097152
    s_mov_b32 s{S_OUT+3}, 0x20000
    s_mov_b32 s{S_HI}, 0xffff0000
    s_mov_b32 s{S_NL2E}, 0xbfb8aa3b          ; -log2(e)
    s_mov_b32 s{S_EXP}, 1
    s_and_b32 s{S_XCC}, s{S_XCC}, 7
    s_or_b32 s{S_XCC}, s{S_XCC}, 0x10
    v_add_u32 v{VA1}, 65536, v{VL16}
    v_add_u32 v{VA2}, 131072, v{VL16}
    v_lshlrev_b32 v{VP8}, 2, v20
    v_and_b32 v{VP16}, 15, v8
    v_lshlrev_b32 v{VP16}, 2, v{VP16}
    v_mov_b32 v{VF0}, {OOB}
    v_cmp_eq_u32 vcc, 0, v8
    v_mov_b32 v{VONE}, 1
    s_lshr_b32 s30, s{S_ROLE}, 2             ; tt_r
    s_and_b32 s24, s{S_ROLE}, 3
    v_cndmask_b32 v{VF0}, v{VF0}, 0, vcc
    """.replace(f"v_cndmask_b32 v{VF0}, v{VF0}, 0, vcc", f"v_mov_b32 v27, 0\nv_cndmask_b32 v{VF0}, v{VF0}, v27, vcc"))
    E(f"""
    s_lshl_b32 s25, s24, 7
    v_lshlrev_b32 v{VR}, 10, v22
    v_lshl_add_u32 v{VR}, v21, 9, v{VR}
    v_lshl_add_u32 v{VR}, v20, 4, v{VR}
    v_add_u32 v{VR}, s25, v{VR}
    ; stats addresses
    v_lshlrev_b32 v{VSTR}, 5, v20
    v_add_u32 v{VSTR}, {STATS}, v{VSTR}
    v_and_b32 v27, 1, v22
    v_lshl_add_u32 v{VSTW}, v27, 2, v{VSTR}
    s_lshl_b32 s25, s{S_W}, 3
    v_add_u32 v{VSTW}, s25, v{VSTW}
    ; bases
    s_lshl_b32 s25, s{S_C}, 17               ; c*131072
    s_lshl_b32 s26, s30, 15
    s_add_u32 s{S_R}, s25, s26
    s_lshl_b32 s26, s{S_W}, 13
    s_add_u32 s{S_R}, s{S_R}, s26            ; c*131072 + tt_r*32768 + w*8192
    s_lshl_b32 s26, s{S_W}, 15
    s_add_u32 s{S_XNL}, s25, s26             ; c*131072 + w*32768
    s_lshl_b32 s26, s{S_C}, 2
    s_add_u32 s27, s26, s{S_W}
    s_mul_i32 s27, s27, 114688
    s_mul_i32 s28, s{S_ROLE}, 7168
    s_add_u32 s{S_HST}, s27, s28             ; (4c+w)*114688 + role*7168
    s_lshl_b32 s27, s{S_TH}, 1
    s_add_u32 s27, s27, s26
    s_mul_i32 s27, s27, 114688
    s_mul_i32 s28, s{S_W}, 28672
    s_add_u32 s{S_HLD}, s27, s28             ; (4c+2th)*114688 + 28w*1024
    s_and_b32 s26, s{S_W}, 1
    s_lshl_b32 s26, s26, 1
    s_lshr_b32 s27, s{S_W}, 1
    s_add_u32 s26, s26, s27
    s_lshl_b32 s27, s{S_J}, 2
    s_add_u32 s26, s26, s27                  ; kappa_o = 4j + 2(w&1) + (w>>1)
    s_lshl_b32 s27, s26, 10
    s_lshl_b32 s28, s{S_TH}, 16
    s_add_u32 s27, s27, s28
    s_add_u32 s{S_XML}, s27, s25
    ; flags
    s_lshl_b32 s25, s{S_C}, 8
    s_lshl_b32 s27, s30, 6
    s_add_u32 s27, s27, s25
    s_lshl_b32 s28, s24, 4
    s_add_u32 s27, s27, s28
    s_lshl_b32 s28, s{S_W}, 2
    s_add_u32 s{S_FXNS}, s27, s28
    s_lshl_b32 s27, s{S_W}, 6
    s_add_u32 s{S_FXNL}, s25, s27            ; c*256 + w*64
    s_lshl_b32 s25, s{S_C}, 10
    s_lshr_b32 s27, s{S_W}, 1
    s_lshl_b32 s27, s27, 7
    s_add_u32 s27, s27, s25
    s_lshl_b32 s29, s{S_ROLE}, 3
    s_add_u32 s27, s27, s29
    s_and_b32 s29, s{S_W}, 1
    s_lshl_b32 s29, s29, 2
    s_add_u32 s{S_FHS}, s27, s29             ; c*1024 + (w>>1)*128 + role*8 + (w&1)*4
    s_lshl_b32 s27, s{S_TH}, 7
    s_add_u32 s27, s27, s25
    s_lshl_b32 s29, s{S_W}, 5
    s_add_u32 s{S_FHL}, s27, s29             ; c*1024 + th*128 + w*32
    s_lshl_b32 s25, s{S_C}, 9
    s_lshl_b32 s27, s{S_TH}, 7
    s_add_u32 s27, s27, s25
    s_lshl_b32 s29, s{S_J}, 4
    s_add_u32 s27, s27, s29
    s_add_u32 s{S_FX2S}, s27, s28            ; c*512 + th*128 + j*16 + w*4
    s_lshr_b32 s27, s30, 1
    s_lshl_b32 s27, s27, 7
    s_add_u32 s27, s27, s25
    s_lshl_b32 s29, s{S_W}, 5
    s_add_u32 s{S_FX2L}, s27, s29            ; c*512 + (tt_r>>1)*128 + w*32
    s_mul_i32 s25, s{S_W}, 6144
    s_add_u32 s25, s25, {SCR}
    v_add_u32 v{VRR}, s25, v{VL16}
    """)
    for m in (1, 2, 3):
        E(f"""
        s_xor_b32 s25, s{S_W}, {m}
        s_mul_i32 s25, s25, 6144
        s_add_u32 s25, s25, {SCR + (m-1)*2048}
        v_add_u32 v{VRW[m-1]}, s25, v{VL16}
        """)
    E(f"""
    s_lshl_b32 s25, s{S_C}, 7
    s_lshl_b32 s26, s{S_ROLE}, 2
    s_add_u32 s26, s26, s25
    s_add_u32 s26, s26, {FL_XCC}
    v_mov_b32 v27, s{S_XCC}
    """)
    E.vm(f"buffer_store_dword v27, v{VF0}, {WSRD}, s26 offen", 'xccst')
    E(f"s_add_u32 s51, s25, {FL_XCC}")

    XF, YF, T = 144, 160, 176
    def stats(src, rnd, between=None):
        P, Q = 192, 194
        E(f"v_pk_add_f32 v[{P}:{P+1}], v[{src}:{src+1}], v[{src+2}:{src+3}]")
        E(f"v_pk_mul_f32 v[{Q}:{Q+1}], v[{src}:{src+1}], v[{src}:{src+1}]")
        for i in range(1, 8):
            E(f"v_pk_fma_f32 v[{Q}:{Q+1}], v[{src+2*i}:{src+2*i+1}], v[{src+2*i}:{src+2*i+1}], v[{Q}:{Q+1}]")
            if i >= 2: E(f"v_pk_add_f32 v[{P}:{P+1}], v[{P}:{P+1}], v[{src+2*i}:{src+2*i+1}]")
        E(f"""
        v_add_f32 v{P}, v{P}, v{P+1}
        v_add_f32 v{Q}, v{Q}, v{Q+1}
        v_permlane16_swap_b32 v{P}, v{Q}
        v_add_f32 v{P}, v{P}, v{Q}
        v_add_f32_dpp v{P}, v{P}, v{P} row_ror:8 row_mask:0xf bank_mask:0xf
        v_mov_b32 v{P+1}, v{P}
        v_permlane32_swap_b32 v{P}, v{P+1}
        v_add_f32 v{P}, v{P}, v{P+1}
        s_mov_b64 exec, 0x00ff00ff
        """)
        E.ds(f"ds_write_b32 v{VSTW}, v{P} offset:{rnd*256}", 'stw')
        E("s_mov_b64 exec, -1")
        E.wait_ds('stw')
        E("s_barrier")
        E.ds(f"ds_read_b128 v[196:199], v{VSTR} offset:{rnd*256}", 'str')
        E.ds(f"ds_read_b128 v[200:203], v{VSTR} offset:{rnd*256+16}", 'str')
        if between: between()
        E.wait_ds('str')
        E(f"""
        v_pk_add_f32 v[196:197], v[196:197], v[198:199]
        v_pk_add_f32 v[200:201], v[200:201], v[202:203]
        v_pk_add_f32 v[196:197], v[196:197], v[200:201]
        v_mul_f32 v196, 0x3b000000, v196
        v_mul_f32 v197, 0x3b000000, v197
        v_fma_f32 v197, -v196, v196, v197
        v_max_f32 v197, 0, v197
        v_add_f32 v197, 0x3727c5ac, v197
        v_rsq_f32 v204, v197
        s_nop 0
        v_mul_f32 v206, -v196, v204
        """.replace("v_mul_f32 v206, -v196, v204", "v_mul_f32_e64 v206, -v196, v204"))
    def norm(dst, src):
        for i in range(8):
            E(f"v_pk_fma_f32 v[{dst+2*i}:{dst+2*i+1}], v[{src+2*i}:{src+2*i+1}], v[204:205], v[206:207] op_sel_hi:[1,0,0]")
    def unpack(dst, src, n):
        for i in range(n):
            E(f"v_lshlrev_b32 v{dst+2*i}, 16, v{src+i}")
            E(f"v_and_b32 v{dst+2*i+1}, s{S_HI}, v{src+i}")
    def R(L):
        lay = L*16*131072
        unpack(XF, X, 8)
        def mid1():
            if L == 0:
                E.vm(f"buffer_load_dword v{VXCC}, v{VP16}, {WSRD}, s51 offen sc1", 'xcc')
            else:
                for f in dma_ops(6, 1, range(8), 'w1r'): f()
            unpack(YF, Y, 8)
        stats(XF, 0, mid1)
        stamp(f'R{L}s1')
        norm(T, XF)
        for i in range(8):
            E(f"v_pk_fma_f32 v[{XF+2*i}:{XF+2*i+1}], v[{T+2*i}:{T+2*i+1}], v[{YF+2*i}:{YF+2*i+1}], v[{XF+2*i}:{XF+2*i+1}]")
        M = 208
        for i in range(8):
            E(f"v_cvt_pk_bf16_f32 v{M+i}, v{XF+2*i}, v{XF+2*i+1}")
        sadd(S_T0, S_R, WS_XM + lay); sadd(S_T1, S_R, WS_XM + lay + 4096)
        E.vm(f"buffer_store_dwordx4 v[{M}:{M+3}], v{VR}, {WSRD}, s{S_T0} offen", 'rst')
        E.vm(f"buffer_store_dwordx4 v[{M+4}:{M+7}], v{VR}, {WSRD}, s{S_T1} offen", 'rst')
        stats(XF, 1)
        norm(T, XF)
        N = 216
        for i in range(8):
            E(f"v_cvt_pk_bf16_f32 v{N+i}, v{T+2*i}, v{T+2*i+1}")
        sadd(S_T0, S_R, WS_XN + lay); sadd(S_T1, S_R, WS_XN + lay + 4096)
        E.vm(f"buffer_store_dwordx4 v[{N}:{N+3}], v{VR}, {WSRD}, s{S_T0} offen", 'rst')
        E.vm(f"buffer_store_dwordx4 v[{N+4}:{N+7}], v{VR}, {WSRD}, s{S_T1} offen", 'rst')
        stamp(f'R{L}st')
        if L == 0:
            for i in range(4, 8):
                for p in range(3):
                    for f in dma_ops(L1['tau'][p], L1['slot'][p], [i], 'w1b'): f()
            E.wait_vm('xcc')
            ls = E.label('L_xccs'); lb = E.label('L_xccb'); ll = E.label('L_xccl')
            E(f"v_cmp_ne_u32 vcc, s{S_XCC}, v{VXCC}")
            if force_slow: E(f"s_branch {ls}")
            else: E(f"s_cbranch_vccnz {ls}")
            E(f"{lb}:")
            E.out_of_line(f"""
            {ls}:
            s_mov_b32 s{S_T3}, 0
            {ll}:
            buffer_load_dword v{VXCC}, v{VP16}, {WSRD}, s51 offen sc1
            s_add_u32 s{S_T3}, s{S_T3}, 1
            s_waitcnt vmcnt(0)
            v_cmp_ne_u32 vcc, s{S_XCC}, v{VXCC}
            {'s_branch ' + ll + 'x' if force_slow else ''}
            s_cbranch_vccz {lb}
            s_cmp_lt_u32 s{S_T3}, 48
            s_cbranch_scc1 {ll}
            {ll}x:
            s_mov_b32 s{S_EXP}, 2
            s_branch {lb}""")
        publish(S_FXNS, FL_XN + L*16*256, 'rst')
        stamp(f'R{L}pub')

    def layer(L):
        cfg = LAYERS[L]; tau = cfg['tau']; slot = cfg['slot']
        lay = L*16*131072; hl = L*64*114688
        poll_issue(VP16, S_FXNL, FL_XN + L*16*256, 'pxn')
        poll_check(VP16, S_FXNL, FL_XN + L*16*256, 'pxn')
        stamp(f'L{L}xnok')
        sadd(S_T0, S_XNL, WS_XN + lay)
        for k in range(32):
            off = (k & 3)*1024
            E.vm(f"buffer_load_dwordx4 v[{XR+4*k}:{XR+4*k+3}], v{VL16}, {WSRD}, s{S_T0} offen" + (f" offset:{off}" if off else ""), f'x{k}')
            if (k & 3) == 3 and k < 31: E(f"s_add_u32 s{S_T0}, s{S_T0}, 4096")
        seq = []
        for k in range(32):
            for p in range(3): seq.append(('g1', p, k))
        for p in range(3, 7):
            for k in range(32): seq.append(('g1', p, k))
        accp = [0, 1, 2, 3, 0, 1, 2]
        def a_addr(p, k):
            s = slot[p]
            base = [VL16, VL16, VA1, VA1, VA2][s]
            off = (s & 1)*SLOT + k*1024 if s < 4 else k*1024
            return base, off
        def is_areg(p, k): return tau[p] == 4 and k == 31
        def rd(i):
            _, p, k = seq[i]
            if is_areg(p, k): return
            b, off = a_addr(p, k)
            r = RING + 4*(i % 8)
            E.ds(f"ds_read_b128 v[{r}:{r+3}], v{b} offset:{off}", f'a{i}')
        stA = [0, 1, 2]; stB = [3, 4, 5]; stC = [6]
        def blocks(tt, ps): return [(tt, rho, p) for p in ps for rho in range(4)]
        b1 = blocks(1, stB)
        order = blocks(0, stA) + blocks(1, stA) + blocks(0, stB) + b1[:opt.get('b1_first', 4)] + blocks(0, stC) + b1[opt.get('b1_first', 4):] + blocks(1, stC)
        assert len(order) == 56
        last0 = max(n for n, b in enumerate(order) if b[0] == 0)
        acc2 = {0: [ACC[0], ACC[1]], 1: [ACC[3], ACC[2]]}
        def hload(n):
            tt, rho, p = order[n]
            r = XR + 4*(n % 32)
            E(f"s_add_u32 s{S_T0}, s{S_HLD}, {WS_H + hl + tt*114688 + (rho*7 + tau[p])*1024}")
            E.vm(f"buffer_load_dwordx4 v[{r}:{r+3}], v{VL16}, {WSRD}, s{S_T0} offen", f'h{n}')
        F = {}
        def at(i, f): F.setdefault(i, []).append(f)
        def spread(ops, start, per):
            i = start; c = 0
            for o in ops:
                at(i, o); c += 1
                if c == per: i += 1; c = 0
            return i if c == 0 else i + 1
        def T_(s): return lambda: E(s)
        def epi_ops(p):
            c = ACC[accp[p]]
            ops = []
            for e in range(8): ops.append(T_(f"v_mul_f32 v{c+e}, s{S_NL2E}, v{c+e}"))
            for e in range(8): ops.append(T_(f"v_exp_f32 v{c+e}, v{c+e}"))
            for e in range(8): ops.append(T_(f"v_add_f32 v{c+e}, 1.0, v{c+e}"))
            for e in range(8): ops.append(T_(f"v_rcp_f32 v{c+e}, v{c+e}"))
            for e in range(8): ops.append(T_(f"v_mul_f32 v{c+e}, v{c+e}, v{c+8+e}"))
            for e in range(4): ops.append(T_(f"v_cvt_pk_bf16_f32 v{c+8+e}, v{c+2*e}, v{c+2*e+1}"))
            stage = 'A' if p < 3 else ('B' if p < 6 else 'C')
            def st(p=p, c=c, stage=stage):
                E(f"s_add_u32 s{S_T1}, s{S_HST}, {WS_H + hl + tau[p]*1024}")
                E.vm(f"buffer_store_dwordx4 v[{c+8}:{c+11}], v{VL16}, {WSRD}, s{S_T1} offen", 'h' + stage)
            ops.append(st)
            return ops
        per = 3
        e0 = spread(epi_ops(0), 99, per)
        e1 = spread(epi_ops(1), e0, per)
        e2 = spread(epi_ops(2), e1, per)
        assert e0 <= 126
        e3 = spread(epi_ops(3), max(e2, 131), per)
        e4 = spread(epi_ops(4), max(e3, 163), per)
        e5 = spread(epi_ops(5), max(e4, 195), per)
        e6 = spread(epi_ops(6), 227, per)
        assert e1 <= 158 and e2 <= 190 and e4 <= 222, (e0, e1, e2, e3, e4, e5, e6)
        def barrier(): E("s_barrier")
        if L == 0:
            ops = dma_ops(3, 3, range(8), 'w3') + dma_ops(4, 4, range(8), 'w4')
            def t4areg():
                E(f"s_sub_u32 s{S_T0}, s{S_W1}, s{S_W1K}")
                E(f"s_add_u32 s{S_T0}, s{S_T0}, {4*32768 + 31*1024}")
                E.vm(f"buffer_load_dwordx4 {ar(A_T4, 4)}, v{VL16}, {WSRD}, s{S_T0} offen", 'w4')
            ops.append(t4areg)
            spread(ops, 0, 1)
        def wd_ops(kps, tag):
            ops = []
            for kp in kps:
                for pd in range(2):
                    def f(kp=kp, pd=pd):
                        E(f"s_add_u32 s{S_T0}, s30, {kp*2048}")
                        E.vm(f"buffer_load_dwordx4 {ar(A_WD + 8*kp + 4*pd, 4)}, v{20+pd}, {WSRD}, s{S_T0} offen", tag)
                    ops.append(f)
            return ops
        if L == 0:
            def wd_setup():
                E(f"""
                s_lshl_b32 s30, s{S_J}, 2
                s_add_u32 s30, s30, s{S_W}
                s_mul_i32 s30, s30, 57344
                s_add_u32 s30, s30, {WS_WDF}
                s_lshr_b32 s25, s{S_W}, 1
                s_lshl_b32 s25, s25, 8          ; 16*(w>>1)*16
                v_xor_b32 v22, s25, v{VL16}
                s_and_b32 s25, s{S_W}, 1
                s_lshl_b32 s25, s25, 10
                v_add_u32 v20, s25, v22
                s_xor_b32 s25, s25, 1024
                v_add_u32 v21, s25, v22
                """)
            at(0, wd_setup)
            kseq = []
            for (tt, rho, p) in order:
                kp = rho*7 + tau[p]
                if kp not in kseq: kseq.append(kp)
            n1 = opt.get('wd_first', 12)
            spread(wd_ops(kseq[:n1], 'wd1'), 18, 1)
            spread(wd_ops(kseq[n1:], 'wd2'), opt.get('wd2_at', 162), 1)
            def bx():
                E.wait_vm('w3'); barrier()
            at(89, bx)
            def by():
                E.wait_vm('w4'); barrier()
            at(121, by)
        def b1f(): barrier()
        at(97, b1f)
        spread(dma_ops(tau[5], slot[5], range(8), 'w5'), 97, 2)
        spread(dma_ops(tau[6], slot[6], range(8), 'w6'), opt.get('w6_at', 101), 2)
        def b2():
            E.wait_vm('w5'); barrier()
        at(153, b2)
        def b3():
            E.wait_vm('w6'); barrier()
        at(185, b3)
        fh = FL_H + L*16*1024
        at(opt.get('pubA', 160), lambda: publish(S_FHS, fh, 'hA'))
        at(opt.get('pollA', 170), lambda: poll_issue(VP8, S_FHL, fh, 'pA'))
        at(opt.get('chkA', 188), lambda: poll_check(VP8, S_FHL, fh, 'pA'))
        for n in range(24): at(192 + n, lambda n=n: hload(n))
        at(opt.get('pubB', 225), lambda: publish(S_FHS, fh + 256, 'hB'))
        at(opt.get('pollB', 232), lambda: poll_issue(VP8, S_FHL, fh + 256, 'pB'))
        chkB = opt.get('chkB', 246)
        at(chkB, lambda: poll_check(VP8, S_FHL, fh + 256, 'pB'))
        at(opt.get('pubC', 258), lambda: publish(S_FHS, fh + 512, 'hC'))
        at(opt.get('pollC', 264), lambda: poll_issue(VP8, S_FHL, fh + 512, 'pC'))
        chkC = opt.get('chkC', 278)
        at(chkC, lambda: poll_check(VP8, S_FHL, fh + 512, 'pC'))
        G2 = 224
        pend = [n for n in range(24, 56)]
        pend.sort(key=lambda n: (order[n][2] == 6, n) if False else n)
        cur = chkB
        sched = []
        for n in pend:
            p = order[n][2]
            earliest = chkC if p == 6 else chkB
            free = G2 + 2*(n - 32) + 1 if n >= 32 else G2
            sched.append((max(earliest, free), n))
        sched.sort()
        t = 0
        for (e, n) in sched:
            t = max(t, e)
            at(t, lambda n=n: hload(n))
            need_by = G2 + 2*n
            assert t < need_by - 4, (n, t, need_by)
            t += 1
        XM0 = 20; XM1 = 24
        def xmld():
            sadd(S_T0, S_XML, WS_XM + lay); sadd(S_T1, S_XML, WS_XM + lay + 32768)
            E.vm(f"buffer_load_dwordx4 v[{XM0}:{XM0+3}], v{VL16}, {WSRD}, s{S_T0} offen", 'xm')
            E.vm(f"buffer_load_dwordx4 v[{XM1}:{XM1+3}], v{VL16}, {WSRD}, s{S_T1} offen", 'xm')
        at(229, xmld)
        at(228, barrier)
        RB = RING
        def red_write_ops(tt):
            ops = []
            for m in (1, 2, 3):
                pd, g = m & 1, m >> 1
                src = acc2[tt][pd] + 8*g
                for hlf in range(2):
                    ops.append(lambda m=m, src=src, hlf=hlf: E.ds(f"ds_write_b128 v{VRW[m-1]}, v[{src+4*hlf}:{src+4*hlf+3}] offset:{1024*hlf}", 'rw'))
            return ops
        def red_read_ops():
            ops = []
            for m in range(3):
                for hlf in range(2):
                    ops.append(lambda m=m, hlf=hlf: E.ds(f"ds_read_b128 v[{RB+8*m+4*hlf}:{RB+8*m+4*hlf+3}], v{VRR} offset:{2048*m+1024*hlf}", 'rr'))
            return ops
        def red_math_ops(tt):
            own = acc2[tt][0]
            xm = XM0 if tt == 0 else XM1
            ops = []
            ops.append(lambda: E.wait_ds('rr'))
            for e in range(8): ops.append(T_(f"v_add_f32 v{RB+e}, v{RB+e}, v{RB+8+e}"))
            for e in range(8): ops.append(T_(f"v_add_f32 v{own+e}, v{own+e}, v{RB+16+e}"))
            ops.append(lambda: E.wait_vm('xm'))
            for e in range(4):
                ops.append(T_(f"v_lshlrev_b32 v{RB+8+2*e}, 16, v{xm+e}"))
                ops.append(T_(f"v_and_b32 v{RB+9+2*e}, s{S_HI}, v{xm+e}"))
            for e in range(8): ops.append(T_(f"v_add_f32 v{own+e}, v{own+e}, v{RB+e}"))
            for e in range(8): ops.append(T_(f"v_add_f32 v{own+e}, v{own+e}, v{RB+8+e}"))
            for e in range(4): ops.append(T_(f"v_cvt_pk_bf16_f32 v{RB+e}, v{own+2*e}, v{own+2*e+1}"))
            def st():
                if L == 0:
                    sadd(S_T0, S_XML, WS_X2 + tt*32768)
                    E.vm(f"buffer_store_dwordx4 v[{RB}:{RB+3}], v{VL16}, {WSRD}, s{S_T0} offen", f'x2{tt}')
                else:
                    sadd(S_T0, 30, tt*32768)
                    E.vm(f"buffer_store_dwordx4 v[{RB}:{RB+3}], v28, s[{S_OUT}:{S_OUT+3}], s{S_T0} offen", f'x2{tt}')
            ops.append(st)
            return ops
        if L == 1:
            def out_setup():
                E(f"""
                v_and_b32 v28, 31, v0
                v_lshlrev_b32 v28, 10, v28
                v_bfe_u32 v29, v0, 5, 1
                v_lshl_add_u32 v28, v29, 4, v28
                s_lshl_b32 s30, s{S_C}, 17
                s_lshl_b32 s25, s{S_TH}, 16
                s_add_u32 s30, s30, s25
                s_and_b32 s25, s{S_W}, 1
                s_lshl_b32 s25, s25, 1
                s_lshr_b32 s26, s{S_W}, 1
                s_add_u32 s25, s25, s26
                s_lshl_b32 s26, s{S_J}, 2
                s_add_u32 s25, s25, s26
                s_lshl_b32 s25, s25, 5
                s_add_u32 s30, s30, s25
                """)
            at(10, out_setup)
        m0_last = G2 + 2*last0 + 1
        w0 = m0_last + 4
        t = spread(red_write_ops(0), w0, 1)
        def rbar():
            E.wait_ds('rw'); barrier()
        at(t + 1, rbar)
        t = spread(red_read_ops(), t + 1, 2)
        lastslot = G2 + 111
        mops = red_math_ops(0)
        room = lastslot - (t + 1)
        per0 = max(3, -(-len(mops) // max(room, 1)))
        t = spread(mops, t + 1, per0)
        tt0_done = t
        E.wait_vm('x0')
        E("s_barrier")
        stamp(f'L{L}g1')
        for i in range(LA): rd(i)
        def emit_fill(i):
            for f in F.pop(i, []): f()
        for i in range(224):
            _, p, k = seq[i]
            stamp(f'L{L}s{i}')
            if p < 3 and (i % 3) == 0 and k > 0: E.wait_vm(f'x{k}')
            if is_areg(p, k):
                asrc = ar(A_T4, 4)
            else:
                E.wait_ds(f'a{i}')
                r = RING + 4*(i % 8); asrc = vr(r, 4)
            c = ACC[accp[p]]
            first = (k == 0)
            E(f"v_mfma_f32_32x32x16_bf16 v[{c}:{c+15}], {asrc}, v[{XR+4*k}:{XR+4*k+3}], {'0' if first else f'v[{c}:{c+15}]'}")
            emit_fill(i)
            if i + LA < 224: rd(i + LA)
        for n in range(56):
            tt, rho, p = order[n]
            kp = rho*7 + tau[p]
            firstb = not any(o[0] == tt for o in order[:n])
            for pd in range(2):
                i = G2 + 2*n + pd
                stamp(f'L{L}s{i}')
                if pd == 0:
                    E.wait_vm(f'h{n}')
                    if L == 0:
                        E.wait_vm('wd1') if n == 0 else None
                        if kseq.index(kp) >= n1: E.wait_vm('wd2')
                c = acc2[tt][pd]; r = XR + 4*(n % 32)
                E(f"v_mfma_f32_32x32x16_bf16 v[{c}:{c+15}], {ar(A_WD + 8*kp + 4*pd, 4)}, v[{r}:{r+3}], {'0' if firstb else f'v[{c}:{c+15}]'}")
                emit_fill(i)
        stamp(f'L{L}g2end')
        for i in sorted(F.keys()):
            assert i > lastslot, i
            emit_fill(i)
        if L == 0 and opt.get('pub0_early', True):
            pass
        E("s_barrier")
        for f in red_write_ops(1): f()
        E.wait_ds('rw'); E("s_barrier")
        for f in red_read_ops(): f()
        for f in red_math_ops(1): f()
        stamp(f'L{L}st')
        if L == 0:
            publish(S_FX2S, FL_X2, 'x21')
            stamp('x2pub')

    stamp('issued')
    if stamps and 'q' in enabled:
        E.wait_vm('q'); stamp('q')
    E.wait_vm('y')
    stamp('qy')
    if stamps and 'pf' in enabled:
        E.wait_vm('pf'); stamp('pf')
    if stamps and 'w1a' in enabled:
        E.wait_vm('w1a'); stamp('w1a')
    for i in range(8): E(f"v_accvgpr_write_b32 a{A_Y+i}, v{Y+i}")
    R(0)
    layer(0)
    poll_issue(VP8, S_FX2L, FL_X2, 'px2')
    poll_check(VP8, S_FX2L, FL_X2, 'px2')
    stamp('x2ok')
    sadd(S_T0, S_R, WS_X2); sadd(S_T1, S_R, WS_X2 + 4096)
    E.vm(f"buffer_load_dwordx4 v[{X}:{X+3}], v{VR}, {WSRD}, s{S_T0} offen", 'x2l')
    E.vm(f"buffer_load_dwordx4 v[{X+4}:{X+7}], v{VR}, {WSRD}, s{S_T1} offen", 'x2l')
    for i in range(8): E(f"v_accvgpr_read_b32 v{Y+i}, a{A_Y+i}")
    E.wait_vm('x2l')
    R(1)
    layer(1)
    E.wait_vm_all()
    if stamps:
        stamp('end')
        E("s_memrealtime s[2:3]".replace('s[2:3]', 's[24:25]'))
        E(f"""
        s_waitcnt lgkmcnt(0)
        s_cmp_lg_u32 s{S_W}, 0
        s_cbranch_scc1 L_k1_end
        """)
        n = len(names)
        for i in range(1, n): E(f"s_sub_u32 s{SREG[i]}, s{SREG[i]}, s{SREG[0]}")
        E("v_mov_b32 v64, s100")
        for i in range(1, n): E(f"v_mov_b32 v{64+i}, s{SREG[i]}")
        for i in range(n, 30): E(f"v_mov_b32 v{64+i}, 0")
        E(f"v_mov_b32 v94, s{S_EXP}\nv_mov_b32 v95, s24")
        E(f"""
        s_lshl_b32 s25, s2, 7
        s_add_u32 s25, s25, {WS_STAMP + 0x10000}
        """)
        for q in range(8):
            E(f"buffer_store_dwordx4 v[{64+4*q}:{67+4*q}], v{VF0}, {WSRD}, s25 offen offset:{16*q}")
        E("s_waitcnt vmcnt(0)")
        print('k1 stamps:', ','.join(names))
        open('last_stamps.txt', 'w').write(','.join(names))
    E("L_k1_end:")
    E("s_endpgm")
    main = hazard_pass(E.L[1:], verbose=opt.get('verbose', False))
    tail = []
    for ln in E.tail:
        tail.append(ln)
    txt = E.L[0] + '\n' + '\n'.join(('    ' + l if not l.endswith(':') else l) for l in main) + '\n'
    txt += '\n'.join(('    ' + l if not l.endswith(':') else l) for l in tail) + '\n'
    txt += "L_k1_codeend:\n    s_endpgm\n"
    return txt + kd(name, 512, 102, accum=256)

if __name__ == '__main__':
    from common import TARGET, KERNARG_COMMENT
    import k0
    st = 'stamps' in sys.argv; slow = 'slow' in sys.argv
    opt = {'verbose': 'v' in sys.argv}
    for a in sys.argv[2:]:
        if '=' in a:
            k_, v_ = a.split('=')
            opt[k_] = v_.split(',') if k_ == 'st' else int(v_)
    txt = KERNARG_COMMENT
    txt += f"; @launch kernel=k0_kernel grid=(256,1,1) block=(256,1,1) lds={k0.K0_LDS}\n"
    txt += f"; @launch kernel=k1_kernel grid=(256,1,1) block=(256,1,1) lds={K1_LDS}\n"
    txt += TARGET + k0.gen_k0(stamps=False, force_slow=slow, pf_lines=opt.get('k0pf', 200)) + gen_k1(stamps=st, force_slow=slow, opt=opt)
    txt += ".text\n.fill 64, 4, 0xbf800000\n"
    open(sys.argv[1], 'w').write(txt)
```

```python
import sys
sys.path.insert(0, 'gen')
from emit import *
from layout import *
from common import head, kd

K1_LDS = 163840
SLOT = 32768
STATS = 4*SLOT + 31744
SCR = SLOT
OOB = 0x80000000
VL16, VA1, VA2, VP8, VP16, VF0, VR = 1, 2, 3, 4, 5, 6, 7
VSTW, VSTR = 11, 12
VRW = [13, 14, 15]; VRR = 16
VPOLL, VONE, VXCC = 17, 18, 19
RING = 32
ACC = [64, 80, 96, 112]
XR = 128
A_WD = 0; A_Y = 224; A_T4 = 232
S_WS = 4; S_Q = 8; S_OUT = 12
S_W, S_ROLE, S_C, S_TH, S_J, S_EXP, S_XCC, S_W1K = 16, 17, 18, 19, 20, 21, 22, 23
S_R, S_XNL, S_HST, S_HLD, S_XML, S_W1, S_FXNS, S_FXNL, S_FHS, S_FHL, S_FX2S, S_FX2L = range(34, 46)
S_T0, S_T1, S_T2, S_T3, S_HI = 46, 47, 48, 49, 31
S_NL2E = 50
LA = 6
def vr(b, n=1): return f"v{b}" if n == 1 else f"v[{b}:{b+n-1}]"
def ar(b, n=1): return f"a{b}" if n == 1 else f"a[{b}:{b+n-1}]"

LAYERS = [
    dict(tau=[0, 1, 2, 3, 4, 5, 6], slot=[0, 1, 2, 3, 4, 0, 1]),
    dict(tau=[5, 2, 3, 4, 6, 0, 1], slot=[0, 2, 3, 4, 1, 0, 2]),
]

def gen_k1(name='k1_kernel', stamps=False, force_slow=False, opt=None):
    opt = opt or {}
    E = Emit()
    SREG = list(range(52, 100, 2)); names = []
    DEF = ['start', 'qy', 'R0s1', 'R0st', 'R0pub', 'L0xnok', 'L0g1', 'L0s96', 'L0s224', 'L0g2end', 'L0st', 'x2pub', 'x2ok', 'R1s1', 'R1st', 'R1pub', 'L1xnok', 'L1g1', 'L1s96', 'L1s224', 'L1g2end', 'L1st', 'end']
    enabled = set(opt.get('st', DEF)) | {'start', 'end'}
    def stamp(nm):
        if stamps and nm in enabled:
            r = SREG[len(names)]; names.append(nm)
            E(f"s_memtime s[{r}:{r+1}]")
    WSRD = f"s[{S_WS}:{S_WS+3}]"

    def sadd(dst, base, const):
        if const == 0: E(f"s_mov_b32 s{dst}, s{base}")
        else: E(f"s_add_u32 s{dst}, s{base}, {const}")
    def dma_tile(tau, slot, ilist, tag):
        first = True
        for i in ilist:
            if first:
                sadd(S_T0, S_W1, tau*32768 + i*4096)
                E(f"s_add_u32 m0, s{S_W1K}, {slot*SLOT + i*4096}")
                E("s_nop 0")
                first = False
            else:
                E(f"s_add_u32 m0, m0, 4096")
                E(f"s_add_u32 s{S_T0}, s{S_T0}, 4096")
            E.vm(f"buffer_load_dwordx4 v{VL16}, {WSRD}, s{S_T0} offen lds", tag)
    def dma_ops(tau, slot, ilist, tag):
        ops = []
        for i in ilist:
            def f(i=i):
                E(f"s_add_u32 m0, s{S_W1K}, {slot*SLOT + i*4096}")
                sadd(S_T0, S_W1, tau*32768 + i*4096)
                E.vm(f"buffer_load_dwordx4 v{VL16}, {WSRD}, s{S_T0} offen lds", tag)
            ops.append(f)
        return ops
    def publish(sbase, const, tag):
        E.wait_vm(tag)
        ls = E.label('L_pubs'); lb = E.label('L_pubb')
        sadd(S_T1, sbase, const)
        E(f"s_cmp_eq_u32 s{S_EXP}, 1")
        E(f"s_cbranch_scc0 {ls}")
        E.vm(f"buffer_store_dword v{VONE}, v{VF0}, {WSRD}, s{S_T1} offen", None)
        E(f"{lb}:")
        E.out_of_line(f"""
        {ls}:
        buffer_wbl2 sc1
        s_waitcnt vmcnt(0)
        buffer_store_dword v{VONE}, v{VF0}, {WSRD}, s{S_T1} offen sc1
        s_branch {lb}""")
    def poll_issue(voff, sbase, const, tag, dst=VPOLL, sreg=S_T2):
        sadd(sreg, sbase, const)
        E.vm(f"buffer_load_dword v{dst}, v{voff}, {WSRD}, s{sreg} offen sc1", tag)
    def poll_check(voff, sbase, const, tag, dst=VPOLL):
        E.wait_vm(tag)
        ls = E.label('L_polls'); lb = E.label('L_pollb'); ll = E.label('L_polll'); ld = E.label('L_polld')
        E(f"v_cmp_ne_u32 vcc, s{S_EXP}, v{dst}")
        E(f"s_cbranch_vccnz {ls}")
        E(f"{lb}:")
        E.out_of_line(f"""
        {ls}:
        s_add_u32 s{S_T2}, s{sbase}, {const}
        s_mov_b32 s{S_T3}, 0
        {ll}:
        s_cmp_eq_u32 s{S_EXP}, 1
        s_cbranch_scc1 {ld}
        buffer_inv sc1
        s_waitcnt vmcnt(0)
        {ld}:
        buffer_load_dword v{dst}, v{voff}, {WSRD}, s{S_T2} offen sc1
        s_add_u32 s{S_T3}, s{S_T3}, 1
        s_waitcnt vmcnt(0)
        v_cmp_ne_u32 vcc, 1, v{dst}
        s_cmp_gt_u32 s{S_T3}, 0x4000
        s_cbranch_scc1 {ld}x
        s_cbranch_vccnz {ll}
        {ld}x:
        s_cmp_eq_u32 s{S_EXP}, 1
        s_cbranch_scc1 {lb}
        buffer_inv sc1
        s_waitcnt vmcnt(0)
        s_branch {lb}""")

    E.L.append(head(name).rstrip())
    E(f"""
    s_cmp_ge_u32 s2, 256
    s_cbranch_scc1 L_k1_end
    s_load_dwordx2 s[24:25], s[0:1], 0
    s_load_dwordx2 s[26:27], s[0:1], 80
    s_load_dwordx2 s[28:29], s[0:1], 96
    """)
    if stamps: E("s_memrealtime s[100:101]")
    stamp('start')
    E(f"""
    s_getreg_b32 s{S_XCC}, hwreg(HW_REG_XCC_ID, 0, 4)
    s_getpc_b64 s[32:33]
    L_k1_pc:
    v_lshrrev_b32 v2, 6, v0
    v_and_b32 v8, 63, v0
    s_lshr_b32 s30, s2, 3
    v_readfirstlane_b32 s{S_W}, v2
    s_and_b32 s{S_ROLE}, s30, 15
    s_lshr_b32 s30, s30, 4
    s_lshl_b32 s30, s30, 3
    s_and_b32 s{S_C}, s2, 7
    s_add_u32 s{S_C}, s{S_C}, s30
    s_lshr_b32 s{S_TH}, s{S_ROLE}, 3
    s_and_b32 s{S_J}, s{S_ROLE}, 7
    s_lshl_b32 s{S_W1K}, s{S_W}, 10
    v_lshlrev_b32 v{VL16}, 4, v8
    v_and_b32 v20, 7, v8                     ; tok
    v_bfe_u32 v21, v8, 3, 1                  ; hi
    v_lshrrev_b32 v22, 4, v8                 ; ks
    v_lshlrev_b32 v9, 10, v20
    v_lshl_add_u32 v9, v22, 5, v9
    v_lshl_add_u32 v9, v21, 4, v9
    v_lshlrev_b32 v10, 16, v22
    v_lshl_add_u32 v10, v21, 15, v10
    v_lshl_add_u32 v10, v20, 2, v10
    s_lshl_b32 s30, s{S_C}, 7
    s_lshl_b32 s{S_T0}, s{S_ROLE}, 3
    s_add_u32 s30, s30, s{S_T0}              ; T0
    s_lshl_b32 s{S_T0}, s30, 10
    s_lshl_b32 s{S_T1}, s{S_W}, 8
    s_add_u32 s{S_T0}, s{S_T0}, s{S_T1}      ; q soffset
    s_lshl_b32 s{S_T1}, s30, 2
    s_lshl_b32 s{S_T2}, s{S_W}, 19
    s_add_u32 s{S_T1}, s{S_T1}, s{S_T2}
    s_add_u32 s{S_T1}, s{S_T1}, {WS_Y2}      ; Y soffset
    s_mul_i32 s{S_W1}, s{S_ROLE}, 229376
    s_add_u32 s{S_W1}, s{S_W1}, s{S_W1K}
    s_add_u32 s{S_W1}, s{S_W1}, {WS_W1F}
    v_lshlrev_b32 v23, 6, v0
    v_min_u32 v24, L_k1_codeend-L_k1_pc-64, v23
    v_add_u32 v23, 16384, v23
    v_min_u32 v23, L_k1_codeend-L_k1_pc-64, v23
    s_waitcnt lgkmcnt(0)
    """)
    stamp('karg')
    E(f"""
    s_mov_b32 s{S_Q}, s24
    s_and_b32 s{S_Q+1}, s25, 0xffff
    s_mov_b32 s{S_Q+2}, 2097152
    s_mov_b32 s{S_Q+3}, 0x20000
    s_mov_b32 s{S_WS}, s28
    s_and_b32 s{S_WS+1}, s29, 0xffff
    s_mov_b32 s{S_WS+2}, {WS_SRD_BYTES}
    s_mov_b32 s{S_WS+3}, 0x20000
    """)
    X, Y = 128, 136
    E.vm(f"buffer_load_dwordx4 v[{X}:{X+3}], v9, s[{S_Q}:{S_Q+3}], s{S_T0} offen", 'q')
    E.vm(f"buffer_load_dwordx4 v[{X+4}:{X+7}], v9, s[{S_Q}:{S_Q+3}], s{S_T0} offen offset:128", 'q')
    for c2 in range(2):
        for i in range(4):
            E.vm(f"buffer_load_dword v{Y+4*c2+i}, v10, {WSRD}, s{S_T1} offen", 'y')
            if (c2, i) != (1, 3):
                E(f"s_add_u32 s{S_T1}, s{S_T1}, {8192 if i < 3 else 32*8192 - 3*8192}")
    E.vm("global_load_dword v25, v24, s[32:33]", 'pf')
    E.vm("global_load_dword v26, v23, s[32:33]", 'pf')
    L1 = LAYERS[0]
    for i in range(4):
        for p in range(3):
            for f in dma_ops(L1['tau'][p], L1['slot'][p], [i], 'w1a'): f()
    E(f"""
    s_mov_b32 s{S_OUT}, s26
    s_and_b32 s{S_OUT+1}, s27, 0xffff
    s_mov_b32 s{S_OUT+2}, 2097152
    s_mov_b32 s{S_OUT+3}, 0x20000
    s_mov_b32 s{S_HI}, 0xffff0000
    s_mov_b32 s{S_NL2E}, 0xbfb8aa3b          ; -log2(e)
    s_mov_b32 s{S_EXP}, 1
    s_and_b32 s{S_XCC}, s{S_XCC}, 7
    s_or_b32 s{S_XCC}, s{S_XCC}, 0x10
    v_add_u32 v{VA1}, 65536, v{VL16}
    v_add_u32 v{VA2}, 131072, v{VL16}
    v_lshlrev_b32 v{VP8}, 2, v20
    v_and_b32 v{VP16}, 15, v8
    v_lshlrev_b32 v{VP16}, 2, v{VP16}
    v_mov_b32 v{VF0}, {OOB}
    v_cmp_eq_u32 vcc, 0, v8
    v_mov_b32 v{VONE}, 1
    s_lshr_b32 s30, s{S_ROLE}, 2             ; tt_r
    s_and_b32 s24, s{S_ROLE}, 3
    v_cndmask_b32 v{VF0}, v{VF0}, 0, vcc
    """.replace(f"v_cndmask_b32 v{VF0}, v{VF0}, 0, vcc", f"v_mov_b32 v27, 0\nv_cndmask_b32 v{VF0}, v{VF0}, v27, vcc"))
    E(f"""
    s_lshl_b32 s25, s24, 7
    v_lshlrev_b32 v{VR}, 10, v22
    v_lshl_add_u32 v{VR}, v21, 9, v{VR}
    v_lshl_add_u32 v{VR}, v20, 4, v{VR}
    v_add_u32 v{VR}, s25, v{VR}
    ; stats addresses
    v_lshlrev_b32 v{VSTR}, 5, v20
    v_add_u32 v{VSTR}, {STATS}, v{VSTR}
    v_and_b32 v27, 1, v22
    v_lshl_add_u32 v{VSTW}, v27, 2, v{VSTR}
    s_lshl_b32 s25, s{S_W}, 3
    v_add_u32 v{VSTW}, s25, v{VSTW}
    ; bases
    s_lshl_b32 s25, s{S_C}, 17               ; c*131072
    s_lshl_b32 s26, s30, 15
    s_add_u32 s{S_R}, s25, s26
    s_lshl_b32 s26, s{S_W}, 13
    s_add_u32 s{S_R}, s{S_R}, s26            ; c*131072 + tt_r*32768 + w*8192
    s_lshl_b32 s26, s{S_W}, 15
    s_add_u32 s{S_XNL}, s25, s26             ; c*131072 + w*32768
    s_lshl_b32 s26, s{S_C}, 2
    s_add_u32 s27, s26, s{S_W}
    s_mul_i32 s27, s27, 114688
    s_mul_i32 s28, s{S_ROLE}, 7168
    s_add_u32 s{S_HST}, s27, s28             ; (4c+w)*114688 + role*7168
    s_lshl_b32 s27, s{S_TH}, 1
    s_add_u32 s27, s27, s26
    s_mul_i32 s27, s27, 114688
    s_mul_i32 s28, s{S_W}, 28672
    s_add_u32 s{S_HLD}, s27, s28             ; (4c+2th)*114688 + 28w*1024
    s_and_b32 s26, s{S_W}, 1
    s_lshl_b32 s26, s26, 1
    s_lshr_b32 s27, s{S_W}, 1
    s_add_u32 s26, s26, s27
    s_lshl_b32 s27, s{S_J}, 2
    s_add_u32 s26, s26, s27                  ; kappa_o = 4j + 2(w&1) + (w>>1)
    s_lshl_b32 s27, s26, 10
    s_lshl_b32 s28, s{S_TH}, 16
    s_add_u32 s27, s27, s28
    s_add_u32 s{S_XML}, s27, s25
    ; flags
    s_lshl_b32 s25, s{S_C}, 8
    s_lshl_b32 s27, s30, 6
    s_add_u32 s27, s27, s25
    s_lshl_b32 s28, s24, 4
    s_add_u32 s27, s27, s28
    s_lshl_b32 s28, s{S_W}, 2
    s_add_u32 s{S_FXNS}, s27, s28
    s_lshl_b32 s27, s{S_W}, 6
    s_add_u32 s{S_FXNL}, s25, s27            ; c*256 + w*64
    s_lshl_b32 s25, s{S_C}, 10
    s_lshr_b32 s27, s{S_W}, 1
    s_lshl_b32 s27, s27, 7
    s_add_u32 s27, s27, s25
    s_lshl_b32 s29, s{S_ROLE}, 3
    s_add_u32 s27, s27, s29
    s_and_b32 s29, s{S_W}, 1
    s_lshl_b32 s29, s29, 2
    s_add_u32 s{S_FHS}, s27, s29             ; c*1024 + (w>>1)*128 + role*8 + (w&1)*4
    s_lshl_b32 s27, s{S_TH}, 7
    s_add_u32 s27, s27, s25
    s_lshl_b32 s29, s{S_W}, 5
    s_add_u32 s{S_FHL}, s27, s29             ; c*1024 + th*128 + w*32
    s_lshl_b32 s25, s{S_C}, 9
    s_lshl_b32 s27, s{S_TH}, 7
    s_add_u32 s27, s27, s25
    s_lshl_b32 s29, s{S_J}, 4
    s_add_u32 s27, s27, s29
    s_add_u32 s{S_FX2S}, s27, s28            ; c*512 + th*128 + j*16 + w*4
    s_lshr_b32 s27, s30, 1
    s_lshl_b32 s27, s27, 7
    s_add_u32 s27, s27, s25
    s_lshl_b32 s29, s{S_W}, 5
    s_add_u32 s{S_FX2L}, s27, s29            ; c*512 + (tt_r>>1)*128 + w*32
    s_mul_i32 s25, s{S_W}, 6144
    s_add_u32 s25, s25, {SCR}
    v_add_u32 v{VRR}, s25, v{VL16}
    """)
    for m in (1, 2, 3):
        E(f"""
        s_xor_b32 s25, s{S_W}, {m}
        s_mul_i32 s25, s25, 6144
        s_add_u32 s25, s25, {SCR + (m-1)*2048}
        v_add_u32 v{VRW[m-1]}, s25, v{VL16}
        """)
    E(f"""
    s_lshl_b32 s25, s{S_C}, 7
    s_lshl_b32 s26, s{S_ROLE}, 2
    s_add_u32 s26, s26, s25
    s_add_u32 s26, s26, {FL_XCC}
    v_mov_b32 v27, s{S_XCC}
    """)
    E.vm(f"buffer_store_dword v27, v{VF0}, {WSRD}, s26 offen", 'xccst')
    E(f"s_add_u32 s51, s25, {FL_XCC}")

    XF, YF, T = 144, 160, 176
    def stats(src, rnd, between=None):
        P, Q = 192, 194
        E(f"v_pk_add_f32 v[{P}:{P+1}], v[{src}:{src+1}], v[{src+2}:{src+3}]")
        E(f"v_pk_mul_f32 v[{Q}:{Q+1}], v[{src}:{src+1}], v[{src}:{src+1}]")
        for i in range(1, 8):
            E(f"v_pk_fma_f32 v[{Q}:{Q+1}], v[{src+2*i}:{src+2*i+1}], v[{src+2*i}:{src+2*i+1}], v[{Q}:{Q+1}]")
            if i >= 2: E(f"v_pk_add_f32 v[{P}:{P+1}], v[{P}:{P+1}], v[{src+2*i}:{src+2*i+1}]")
        E(f"""
        v_add_f32 v{P}, v{P}, v{P+1}
        v_add_f32 v{Q}, v{Q}, v{Q+1}
        v_permlane16_swap_b32 v{P}, v{Q}
        v_add_f32 v{P}, v{P}, v{Q}
        v_add_f32_dpp v{P}, v{P}, v{P} row_ror:8 row_mask:0xf bank_mask:0xf
        v_mov_b32 v{P+1}, v{P}
        v_permlane32_swap_b32 v{P}, v{P+1}
        v_add_f32 v{P}, v{P}, v{P+1}
        s_mov_b64 exec, 0x00ff00ff
        """)
        E.ds(f"ds_write_b32 v{VSTW}, v{P} offset:{rnd*256}", 'stw')
        E("s_mov_b64 exec, -1")
        E.wait_ds('stw')
        E("s_barrier")
        E.ds(f"ds_read_b128 v[196:199], v{VSTR} offset:{rnd*256}", 'str')
        E.ds(f"ds_read_b128 v[200:203], v{VSTR} offset:{rnd*256+16}", 'str')
        if between: between()
        E.wait_ds('str')
        E(f"""
        v_pk_add_f32 v[196:197], v[196:197], v[198:199]
        v_pk_add_f32 v[200:201], v[200:201], v[202:203]
        v_pk_add_f32 v[196:197], v[196:197], v[200:201]
        v_mul_f32 v196, 0x3b000000, v196
        v_mul_f32 v197, 0x3b000000, v197
        v_fma_f32 v197, -v196, v196, v197
        v_max_f32 v197, 0, v197
        v_add_f32 v197, 0x3727c5ac, v197
        v_rsq_f32 v204, v197
        s_nop 0
        v_mul_f32 v206, -v196, v204
        """.replace("v_mul_f32 v206, -v196, v204", "v_mul_f32_e64 v206, -v196, v204"))
    def norm(dst, src):
        for i in range(8):
            E(f"v_pk_fma_f32 v[{dst+2*i}:{dst+2*i+1}], v[{src+2*i}:{src+2*i+1}], v[204:205], v[206:207] op_sel_hi:[1,0,0]")
    def unpack(dst, src, n):
        for i in range(n):
            E(f"v_lshlrev_b32 v{dst+2*i}, 16, v{src+i}")
            E(f"v_and_b32 v{dst+2*i+1}, s{S_HI}, v{src+i}")
    def R(L):
        lay = 0 if opt.get('alias') else L*16*131072
        unpack(XF, X, 8)
        def mid1():
            if L == 0:
                E.vm(f"buffer_load_dword v{VXCC}, v{VP16}, {WSRD}, s51 offen sc1", 'xcc')
            else:
                for f in dma_ops(6, 1, range(8), 'w1r'): f()
            unpack(YF, Y, 8)
        stats(XF, 0, mid1)
        stamp(f'R{L}s1')
        norm(T, XF)
        for i in range(8):
            E(f"v_pk_fma_f32 v[{XF+2*i}:{XF+2*i+1}], v[{T+2*i}:{T+2*i+1}], v[{YF+2*i}:{YF+2*i+1}], v[{XF+2*i}:{XF+2*i+1}]")
        M = 208
        for i in range(8):
            E(f"v_cvt_pk_bf16_f32 v{M+i}, v{XF+2*i}, v{XF+2*i+1}")
        sadd(S_T0, S_R, WS_XM + lay); sadd(S_T1, S_R, WS_XM + lay + 4096)
        E.vm(f"buffer_store_dwordx4 v[{M}:{M+3}], v{VR}, {WSRD}, s{S_T0} offen", 'rst')
        E.vm(f"buffer_store_dwordx4 v[{M+4}:{M+7}], v{VR}, {WSRD}, s{S_T1} offen", 'rst')
        stats(XF, 1)
        norm(T, XF)
        N = 216
        for i in range(8):
            E(f"v_cvt_pk_bf16_f32 v{N+i}, v{T+2*i}, v{T+2*i+1}")
        sadd(S_T0, S_R, WS_XN + lay); sadd(S_T1, S_R, WS_XN + lay + 4096)
        E.vm(f"buffer_store_dwordx4 v[{N}:{N+3}], v{VR}, {WSRD}, s{S_T0} offen", 'rst')
        E.vm(f"buffer_store_dwordx4 v[{N+4}:{N+7}], v{VR}, {WSRD}, s{S_T1} offen", 'rst')
        stamp(f'R{L}st')
        if L == 0:
            for i in range(4, 8):
                for p in range(3):
                    for f in dma_ops(L1['tau'][p], L1['slot'][p], [i], 'w1b'): f()
            E.wait_vm('xcc')
            ls = E.label('L_xccs'); lb = E.label('L_xccb'); ll = E.label('L_xccl')
            E(f"v_cmp_ne_u32 vcc, s{S_XCC}, v{VXCC}")
            if force_slow: E(f"s_branch {ls}")
            else: E(f"s_cbranch_vccnz {ls}")
            E(f"{lb}:")
            E.out_of_line(f"""
            {ls}:
            s_mov_b32 s{S_T3}, 0
            {ll}:
            buffer_load_dword v{VXCC}, v{VP16}, {WSRD}, s51 offen sc1
            s_add_u32 s{S_T3}, s{S_T3}, 1
            s_waitcnt vmcnt(0)
            v_cmp_ne_u32 vcc, s{S_XCC}, v{VXCC}
            {'s_branch ' + ll + 'x' if force_slow else ''}
            s_cbranch_vccz {lb}
            s_cmp_lt_u32 s{S_T3}, 48
            s_cbranch_scc1 {ll}
            {ll}x:
            s_mov_b32 s{S_EXP}, 2
            s_branch {lb}""")
        publish(S_FXNS, FL_XN + L*16*256, 'rst')
        stamp(f'R{L}pub')

    def layer(L):
        cfg = LAYERS[L]; tau = cfg['tau']; slot = cfg['slot']
        lay = L*16*131072; hl = L*64*114688
        if opt.get('alias'): lay = 0; hl = 0
        poll_issue(VP16, S_FXNL, FL_XN + L*16*256, 'pxn')
        poll_check(VP16, S_FXNL, FL_XN + L*16*256, 'pxn')
        stamp(f'L{L}xnok')
        sadd(S_T0, S_XNL, WS_XN + lay)
        for k in range(32):
            off = (k & 3)*1024
            E.vm(f"buffer_load_dwordx4 v[{XR+4*k}:{XR+4*k+3}], v{VL16}, {WSRD}, s{S_T0} offen" + (f" offset:{off}" if off else ""), f'x{k}')
            if (k & 3) == 3 and k < 31: E(f"s_add_u32 s{S_T0}, s{S_T0}, 4096")
        seq = []
        for k in range(32):
            for p in range(3): seq.append(('g1', p, k))
        for p in range(3, 7):
            for k in range(32): seq.append(('g1', p, k))
        accp = [0, 1, 2, 3, 0, 1, 2]
        def a_addr(p, k):
            s = slot[p]
            base = [VL16, VL16, VA1, VA1, VA2][s]
            off = (s & 1)*SLOT + k*1024 if s < 4 else k*1024
            return base, off
        def is_areg(p, k): return tau[p] == 4 and k == 31
        def rd(i):
            _, p, k = seq[i]
            if is_areg(p, k): return
            b, off = a_addr(p, k)
            r = RING + 4*(i % 8)
            E.ds(f"ds_read_b128 v[{r}:{r+3}], v{b} offset:{off}", f'a{i}')
        stA = [0, 1, 2]; stB = [3, 4, 5]; stC = [6]
        def blocks(tt, ps): return [(tt, rho, p) for p in ps for rho in range(4)]
        b1 = blocks(1, stB)
        order = blocks(0, stA) + blocks(1, stA) + blocks(0, stB) + b1[:opt.get('b1_first', 4)] + blocks(0, stC) + b1[opt.get('b1_first', 4):] + blocks(1, stC)
        assert len(order) == 56
        last0 = max(n for n, b in enumerate(order) if b[0] == 0)
        acc2 = {0: [ACC[0], ACC[1]], 1: [ACC[3], ACC[2]]}
        def hload(n):
            tt, rho, p = order[n]
            r = XR + 4*(n % 32)
            E(f"s_add_u32 s{S_T0}, s{S_HLD}, {WS_H + hl + tt*114688 + (rho*7 + tau[p])*1024}")
            E.vm(f"buffer_load_dwordx4 v[{r}:{r+3}], v{VL16}, {WSRD}, s{S_T0} offen", f'h{n}')
        F = {}
        def at(i, f): F.setdefault(i, []).append(f)
        def spread(ops, start, per):
            i = start; c = 0
            for o in ops:
                at(i, o); c += 1
                if c == per: i += 1; c = 0
            return i if c == 0 else i + 1
        def T_(s): return lambda: E(s)
        def epi_ops(p):
            c = ACC[accp[p]]
            ops = []
            for e in range(8): ops.append(T_(f"v_mul_f32 v{c+e}, s{S_NL2E}, v{c+e}"))
            for e in range(8): ops.append(T_(f"v_exp_f32 v{c+e}, v{c+e}"))
            for e in range(8): ops.append(T_(f"v_add_f32 v{c+e}, 1.0, v{c+e}"))
            for e in range(8): ops.append(T_(f"v_rcp_f32 v{c+e}, v{c+e}"))
            for e in range(8): ops.append(T_(f"v_mul_f32 v{c+e}, v{c+e}, v{c+8+e}"))
            for e in range(4): ops.append(T_(f"v_cvt_pk_bf16_f32 v{c+8+e}, v{c+2*e}, v{c+2*e+1}"))
            stage = 'A' if p < 3 else ('B' if p < 6 else 'C')
            def st(p=p, c=c, stage=stage):
                E(f"s_add_u32 s{S_T1}, s{S_HST}, {WS_H + hl + tau[p]*1024}")
                E.vm(f"buffer_store_dwordx4 v[{c+8}:{c+11}], v{VL16}, {WSRD}, s{S_T1} offen", 'h' + stage)
            ops.append(st)
            return ops
        per = 3
        e0 = spread(epi_ops(0), 99, per)
        e1 = spread(epi_ops(1), e0, per)
        e2 = spread(epi_ops(2), e1, per)
        assert e0 <= 126
        e3 = spread(epi_ops(3), max(e2, 131), per)
        e4 = spread(epi_ops(4), max(e3, 163), per)
        e5 = spread(epi_ops(5), max(e4, 195), per)
        e6 = spread(epi_ops(6), 227, per)
        assert e1 <= 158 and e2 <= 190 and e4 <= 222, (e0, e1, e2, e3, e4, e5, e6)
        def barrier(): E("s_barrier")
        if L == 0:
            ops = dma_ops(3, 3, range(8), 'w3') + dma_ops(4, 4, range(8), 'w4')
            def t4areg():
                E(f"s_sub_u32 s{S_T0}, s{S_W1}, s{S_W1K}")
                E(f"s_add_u32 s{S_T0}, s{S_T0}, {4*32768 + 31*1024}")
                E.vm(f"buffer_load_dwordx4 {ar(A_T4, 4)}, v{VL16}, {WSRD}, s{S_T0} offen", 'w4')
            ops.append(t4areg)
            spread(ops, 0, 1)
        def wd_ops(kps, tag):
            ops = []
            for kp in kps:
                for pd in range(2):
                    def f(kp=kp, pd=pd):
                        E(f"s_add_u32 s{S_T0}, s30, {kp*2048}")
                        E.vm(f"buffer_load_dwordx4 {ar(A_WD + 8*kp + 4*pd, 4)}, v{20+pd}, {WSRD}, s{S_T0} offen", tag)
                    ops.append(f)
            return ops
        if L == 0:
            def wd_setup():
                E(f"""
                s_lshl_b32 s30, s{S_J}, 2
                s_add_u32 s30, s30, s{S_W}
                s_mul_i32 s30, s30, 57344
                s_add_u32 s30, s30, {WS_WDF}
                s_lshr_b32 s25, s{S_W}, 1
                s_lshl_b32 s25, s25, 8          ; 16*(w>>1)*16
                v_xor_b32 v22, s25, v{VL16}
                s_and_b32 s25, s{S_W}, 1
                s_lshl_b32 s25, s25, 10
                v_add_u32 v20, s25, v22
                s_xor_b32 s25, s25, 1024
                v_add_u32 v21, s25, v22
                """)
            at(0, wd_setup)
            kseq = []
            for (tt, rho, p) in order:
                kp = rho*7 + tau[p]
                if kp not in kseq: kseq.append(kp)
            n1 = opt.get('wd_first', 12)
            spread(wd_ops(kseq[:n1], 'wd1'), 18, 1)
            spread(wd_ops(kseq[n1:], 'wd2'), opt.get('wd2_at', 162), 1)
            def bx():
                E.wait_vm('w3'); barrier()
            at(89, bx)
            def by():
                E.wait_vm('w4'); barrier()
            at(121, by)
        def b1f(): barrier()
        at(97, b1f)
        spread(dma_ops(tau[5], slot[5], range(8), 'w5'), 97, 2)
        spread(dma_ops(tau[6], slot[6], range(8), 'w6'), opt.get('w6_at', 101), 2)
        def b2():
            E.wait_vm('w5'); barrier()
        at(153, b2)
        def b3():
            E.wait_vm('w6'); barrier()
        at(185, b3)
        fh = FL_H + L*16*1024
        at(opt.get('pubA', 160), lambda: publish(S_FHS, fh, 'hA'))
        at(opt.get('pollA', 170), lambda: poll_issue(VP8, S_FHL, fh, 'pA'))
        at(opt.get('chkA', 188), lambda: poll_check(VP8, S_FHL, fh, 'pA'))
        for n in range(24): at(192 + n, lambda n=n: hload(n))
        at(opt.get('pubB', 225), lambda: publish(S_FHS, fh + 256, 'hB'))
        at(opt.get('pollB', 232), lambda: poll_issue(VP8, S_FHL, fh + 256, 'pB'))
        chkB = opt.get('chkB', 246)
        at(chkB, lambda: poll_check(VP8, S_FHL, fh + 256, 'pB'))
        at(opt.get('pubC', 258), lambda: publish(S_FHS, fh + 512, 'hC'))
        at(opt.get('pollC', 264), lambda: poll_issue(VP8, S_FHL, fh + 512, 'pC'))
        chkC = opt.get('chkC', 278)
        at(chkC, lambda: poll_check(VP8, S_FHL, fh + 512, 'pC'))
        G2 = 224
        pend = [n for n in range(24, 56)]
        pend.sort(key=lambda n: (order[n][2] == 6, n) if False else n)
        cur = chkB
        sched = []
        for n in pend:
            p = order[n][2]
            earliest = chkC if p == 6 else chkB
            free = G2 + 2*(n - 32) + 1 if n >= 32 else G2
            sched.append((max(earliest, free), n))
        sched.sort()
        t = 0
        for (e, n) in sched:
            t = max(t, e)
            at(t, lambda n=n: hload(n))
            need_by = G2 + 2*n
            assert t < need_by - 4, (n, t, need_by)
            t += 1
        XM0 = 20; XM1 = 24
        def xmld():
            sadd(S_T0, S_XML, WS_XM + lay); sadd(S_T1, S_XML, WS_XM + lay + 32768)
            E.vm(f"buffer_load_dwordx4 v[{XM0}:{XM0+3}], v{VL16}, {WSRD}, s{S_T0} offen", 'xm')
            E.vm(f"buffer_load_dwordx4 v[{XM1}:{XM1+3}], v{VL16}, {WSRD}, s{S_T1} offen", 'xm')
        at(229, xmld)
        at(228, barrier)
        RB = RING
        def red_write_ops(tt):
            ops = []
            for m in (1, 2, 3):
                pd, g = m & 1, m >> 1
                src = acc2[tt][pd] + 8*g
                for hlf in range(2):
                    ops.append(lambda m=m, src=src, hlf=hlf: E.ds(f"ds_write_b128 v{VRW[m-1]}, v[{src+4*hlf}:{src+4*hlf+3}] offset:{1024*hlf}", 'rw'))
            return ops
        def red_read_ops():
            ops = []
            for m in range(3):
                for hlf in range(2):
                    ops.append(lambda m=m, hlf=hlf: E.ds(f"ds_read_b128 v[{RB+8*m+4*hlf}:{RB+8*m+4*hlf+3}], v{VRR} offset:{2048*m+1024*hlf}", 'rr'))
            return ops
        def red_math_ops(tt):
            own = acc2[tt][0]
            xm = XM0 if tt == 0 else XM1
            ops = []
            ops.append(lambda: E.wait_ds('rr'))
            for e in range(8): ops.append(T_(f"v_add_f32 v{RB+e}, v{RB+e}, v{RB+8+e}"))
            for e in range(8): ops.append(T_(f"v_add_f32 v{own+e}, v{own+e}, v{RB+16+e}"))
            ops.append(lambda: E.wait_vm('xm'))
            for e in range(4):
                ops.append(T_(f"v_lshlrev_b32 v{RB+8+2*e}, 16, v{xm+e}"))
                ops.append(T_(f"v_and_b32 v{RB+9+2*e}, s{S_HI}, v{xm+e}"))
            for e in range(8): ops.append(T_(f"v_add_f32 v{own+e}, v{own+e}, v{RB+e}"))
            for e in range(8): ops.append(T_(f"v_add_f32 v{own+e}, v{own+e}, v{RB+8+e}"))
            for e in range(4): ops.append(T_(f"v_cvt_pk_bf16_f32 v{RB+e}, v{own+2*e}, v{own+2*e+1}"))
            def st():
                if L == 0:
                    sadd(S_T0, S_XML, (WS_XN if opt.get('alias') else WS_X2) + tt*32768)
                    E.vm(f"buffer_store_dwordx4 v[{RB}:{RB+3}], v{VL16}, {WSRD}, s{S_T0} offen", f'x2{tt}')
                else:
                    sadd(S_T0, 30, tt*32768)
                    E.vm(f"buffer_store_dwordx4 v[{RB}:{RB+3}], v28, s[{S_OUT}:{S_OUT+3}], s{S_T0} offen", f'x2{tt}')
            ops.append(st)
            return ops
        if L == 1:
            def out_setup():
                E(f"""
                v_and_b32 v28, 31, v0
                v_lshlrev_b32 v28, 10, v28
                v_bfe_u32 v29, v0, 5, 1
                v_lshl_add_u32 v28, v29, 4, v28
                s_lshl_b32 s30, s{S_C}, 17
                s_lshl_b32 s25, s{S_TH}, 16
                s_add_u32 s30, s30, s25
                s_and_b32 s25, s{S_W}, 1
                s_lshl_b32 s25, s25, 1
                s_lshr_b32 s26, s{S_W}, 1
                s_add_u32 s25, s25, s26
                s_lshl_b32 s26, s{S_J}, 2
                s_add_u32 s25, s25, s26
                s_lshl_b32 s25, s25, 5
                s_add_u32 s30, s30, s25
                """)
            at(10, out_setup)
        m0_last = G2 + 2*last0 + 1
        w0 = m0_last + 4
        t = spread(red_write_ops(0), w0, 1)
        def rbar():
            E.wait_ds('rw'); barrier()
        at(t + 1, rbar)
        t = spread(red_read_ops(), t + 1, 2)
        lastslot = G2 + 111
        mops = red_math_ops(0)
        room = lastslot - (t + 1)
        per0 = max(3, -(-len(mops) // max(room, 1)))
        t = spread(mops, t + 1, per0)
        tt0_done = t
        E.wait_vm('x0')
        E("s_barrier")
        stamp(f'L{L}g1')
        for i in range(LA): rd(i)
        def emit_fill(i):
            for f in F.pop(i, []): f()
        for i in range(224):
            _, p, k = seq[i]
            stamp(f'L{L}s{i}')
            if p < 3 and (i % 3) == 0 and k > 0: E.wait_vm(f'x{k}')
            if is_areg(p, k):
                asrc = ar(A_T4, 4)
            else:
                E.wait_ds(f'a{i}')
                r = RING + 4*(i % 8); asrc = vr(r, 4)
            c = ACC[accp[p]]
            first = (k == 0)
            E(f"v_mfma_f32_32x32x16_bf16 v[{c}:{c+15}], {asrc}, v[{XR+4*k}:{XR+4*k+3}], {'0' if first else f'v[{c}:{c+15}]'}")
            emit_fill(i)
            if i + LA < 224: rd(i + LA)
        for n in range(56):
            tt, rho, p = order[n]
            kp = rho*7 + tau[p]
            firstb = not any(o[0] == tt for o in order[:n])
            for pd in range(2):
                i = G2 + 2*n + pd
                stamp(f'L{L}s{i}')
                if pd == 0:
                    E.wait_vm(f'h{n}')
                    if L == 0:
                        E.wait_vm('wd1') if n == 0 else None
                        if kseq.index(kp) >= n1: E.wait_vm('wd2')
                c = acc2[tt][pd]; r = XR + 4*(n % 32)
                E(f"v_mfma_f32_32x32x16_bf16 v[{c}:{c+15}], {ar(A_WD + 8*kp + 4*pd, 4)}, v[{r}:{r+3}], {'0' if firstb else f'v[{c}:{c+15}]'}")
                emit_fill(i)
        stamp(f'L{L}g2end')
        for i in sorted(F.keys()):
            assert i > lastslot, i
            emit_fill(i)
        if L == 0 and opt.get('pub0_early', True):
            pass
        E("s_barrier")
        for f in red_write_ops(1): f()
        E.wait_ds('rw'); E("s_barrier")
        for f in red_read_ops(): f()
        for f in red_math_ops(1): f()
        stamp(f'L{L}st')
        if L == 0:
            publish(S_FX2S, FL_X2, 'x21')
            stamp('x2pub')

    stamp('issued')
    if stamps and 'q' in enabled:
        E.wait_vm('q'); stamp('q')
    E.wait_vm('y')
    stamp('qy')
    if stamps and 'pf' in enabled:
        E.wait_vm('pf'); stamp('pf')
    if stamps and 'w1a' in enabled:
        E.wait_vm('w1a'); stamp('w1a')
    for i in range(8): E(f"v_accvgpr_write_b32 a{A_Y+i}, v{Y+i}")
    R(0)
    layer(0)
    poll_issue(VP8, S_FX2L, FL_X2, 'px2')
    poll_check(VP8, S_FX2L, FL_X2, 'px2')
    stamp('x2ok')
    X2B = WS_XN if opt.get('alias') else WS_X2
    sadd(S_T0, S_R, X2B); sadd(S_T1, S_R, X2B + 4096)
    E.vm(f"buffer_load_dwordx4 v[{X}:{X+3}], v{VR}, {WSRD}, s{S_T0} offen", 'x2l')
    E.vm(f"buffer_load_dwordx4 v[{X+4}:{X+7}], v{VR}, {WSRD}, s{S_T1} offen", 'x2l')
    for i in range(8): E(f"v_accvgpr_read_b32 v{Y+i}, a{A_Y+i}")
    E.wait_vm('x2l')
    R(1)
    layer(1)
    E.wait_vm_all()
    if stamps:
        stamp('end')
        E("s_memrealtime s[2:3]".replace('s[2:3]', 's[24:25]'))
        E(f"""
        s_waitcnt lgkmcnt(0)
        s_cmp_lg_u32 s{S_W}, 0
        s_cbranch_scc1 L_k1_end
        """)
        n = len(names)
        for i in range(1, n): E(f"s_sub_u32 s{SREG[i]}, s{SREG[i]}, s{SREG[0]}")
        E("v_mov_b32 v64, s100")
        for i in range(1, n): E(f"v_mov_b32 v{64+i}, s{SREG[i]}")
        for i in range(n, 30): E(f"v_mov_b32 v{64+i}, 0")
        E(f"v_mov_b32 v94, s{S_EXP}\nv_mov_b32 v95, s24")
        E(f"""
        s_lshl_b32 s25, s2, 7
        s_add_u32 s25, s25, {WS_STAMP + 0x10000}
        """)
        for q in range(8):
            E(f"buffer_store_dwordx4 v[{64+4*q}:{67+4*q}], v{VF0}, {WSRD}, s25 offen offset:{16*q}")
        E("s_waitcnt vmcnt(0)")
        if opt.get('dbg'):
            E(f"""
            s_load_dwordx2 s[26:27], s[0:1], 88
            s_lshl_b32 s25, s2, 6
            s_add_u32 s25, s25, {WS_STAMP}
            buffer_load_dword v70, v{VF0}, {WSRD}, s25 offen
            buffer_load_dword v71, v{VF0}, {WSRD}, s25 offen offset:52
            s_waitcnt vmcnt(0) lgkmcnt(0)
            v_not_b32 v72, v70
            v_not_b32 v73, v71
            v_not_b32 v74, v64
            v_not_b32 v75, v95
            v_mov_b32 v76, 0
            v_cmp_eq_u32 vcc, 0, v0
            s_and_saveexec_b64 s[28:29], vcc
            global_atomic_umax v76, v72, s[26:27]
            global_atomic_umax v76, v70, s[26:27] offset:4
            global_atomic_umax v76, v73, s[26:27] offset:8
            global_atomic_umax v76, v71, s[26:27] offset:12
            global_atomic_umax v76, v74, s[26:27] offset:16
            global_atomic_umax v76, v64, s[26:27] offset:20
            global_atomic_umax v76, v75, s[26:27] offset:24
            global_atomic_umax v76, v95, s[26:27] offset:28
            s_waitcnt vmcnt(0)
            """)
        print('k1 stamps:', ','.join(names))
        open('last_stamps.txt', 'w').write(','.join(names))
    E("L_k1_end:")
    E("s_endpgm")
    main = hazard_pass(E.L[1:], verbose=opt.get('verbose', False))
    tail = []
    for ln in E.tail:
        tail.append(ln)
    txt = E.L[0] + '\n' + '\n'.join(('    ' + l if not l.endswith(':') else l) for l in main) + '\n'
    txt += '\n'.join(('    ' + l if not l.endswith(':') else l) for l in tail) + '\n'
    txt += "L_k1_codeend:\n    s_endpgm\n"
    return txt + kd(name, 512, 102, accum=256)

if __name__ == '__main__':
    from common import TARGET, KERNARG_COMMENT
    import k0
    st = 'stamps' in sys.argv; slow = 'slow' in sys.argv
    opt = {'verbose': 'v' in sys.argv}
    for a in sys.argv[2:]:
        if '=' in a:
            k_, v_ = a.split('=')
            opt[k_] = v_.split(',') if k_ == 'st' else int(v_)
    txt = KERNARG_COMMENT
    txt += f"; @launch kernel=k0_kernel grid=(256,1,1) block=(256,1,1) lds={k0.K0_LDS}\n"
    txt += f"; @launch kernel=k1_kernel grid=(256,1,1) block=(256,1,1) lds={K1_LDS}\n"
    txt += TARGET + k0.gen_k0(stamps=('k0st' in sys.argv), force_slow=slow, pf_lines=opt.get('k0pf', 200)) + gen_k1(stamps=st, force_slow=slow, opt=opt)
    txt += ".text\n.fill 64, 4, 0xbf800000\n"
    open(sys.argv[1], 'w').write(txt)
```

```python
import sys
sys.path.insert(0, 'gen')
from emit import *
from layout import *
from common import head, kd

K1_LDS = 163840
SLOT = 32768
STATS = 4*SLOT + 31744
SCR = SLOT
OOB = 0x80000000
VL16, VA1, VA2, VP8, VP16, VF0, VR = 1, 2, 3, 4, 5, 6, 7
VSTW, VSTR = 11, 12
VRW = [13, 14, 15]; VRR = 16
VPOLL, VONE, VXCC = 17, 18, 19
RING = 32
ACC = [64, 80, 96, 112]
XR = 128
A_WD = 0; A_Y = 224; A_T4 = 232
S_WS = 4; S_Q = 8; S_OUT = 12
S_W, S_ROLE, S_C, S_TH, S_J, S_EXP, S_XCC, S_W1K = 16, 17, 18, 19, 20, 21, 22, 23
S_R, S_XNL, S_HST, S_HLD, S_XML, S_W1, S_FXNS, S_FXNL, S_FHS, S_FHL, S_FX2S, S_FX2L = range(34, 46)
S_T0, S_T1, S_T2, S_T3, S_HI = 46, 47, 48, 49, 31
S_NL2E = 50
LA = 6
def vr(b, n=1): return f"v{b}" if n == 1 else f"v[{b}:{b+n-1}]"
def ar(b, n=1): return f"a{b}" if n == 1 else f"a[{b}:{b+n-1}]"

LAYERS = [
    dict(tau=[0, 1, 2, 3, 4, 5, 6], slot=[0, 1, 2, 3, 4, 0, 1]),
    dict(tau=[5, 2, 3, 4, 6, 0, 1], slot=[0, 2, 3, 4, 1, 0, 2]),
]

def gen_k1(name='k1_kernel', stamps=False, force_slow=False, opt=None):
    opt = opt or {}
    E = Emit()
    LSC = ' sc1' if opt.get('lsc', 1) else ''
    XSC = ' sc1' if opt.get('xmsc') else ''
    SREG = list(range(52, 100, 2)); names = []
    DEF = ['start', 'qy', 'R0s1', 'R0st', 'R0pub', 'L0xnok', 'L0g1', 'L0s96', 'L0s224', 'L0g2end', 'L0st', 'x2pub', 'x2ok', 'R1s1', 'R1st', 'R1pub', 'L1xnok', 'L1g1', 'L1s96', 'L1s224', 'L1g2end', 'L1st', 'end']
    enabled = set(opt.get('st', DEF)) | {'start', 'end'}
    def stamp(nm):
        if stamps and nm in enabled:
            r = SREG[len(names)]; names.append(nm)
            E(f"s_memtime s[{r}:{r+1}]")
    WSRD = f"s[{S_WS}:{S_WS+3}]"

    def sadd(dst, base, const):
        if const == 0: E(f"s_mov_b32 s{dst}, s{base}")
        else: E(f"s_add_u32 s{dst}, s{base}, {const}")
    def dma_tile(tau, slot, ilist, tag):
        first = True
        for i in ilist:
            if first:
                sadd(S_T0, S_W1, tau*32768 + i*4096)
                E(f"s_add_u32 m0, s{S_W1K}, {slot*SLOT + i*4096}")
                E("s_nop 0")
                first = False
            else:
                E(f"s_add_u32 m0, m0, 4096")
                E(f"s_add_u32 s{S_T0}, s{S_T0}, 4096")
            E.vm(f"buffer_load_dwordx4 v{VL16}, {WSRD}, s{S_T0} offen lds", tag)
    def dma_ops(tau, slot, ilist, tag):
        ops = []
        for i in ilist:
            def f(i=i):
                E(f"s_add_u32 m0, s{S_W1K}, {slot*SLOT + i*4096}")
                sadd(S_T0, S_W1, tau*32768 + i*4096)
                E.vm(f"buffer_load_dwordx4 v{VL16}, {WSRD}, s{S_T0} offen lds", tag)
            ops.append(f)
        return ops
    def publish(sbase, const, tag):
        E.wait_vm(tag)
        ls = E.label('L_pubs'); lb = E.label('L_pubb')
        sadd(S_T1, sbase, const)
        E(f"s_cmp_eq_u32 s{S_EXP}, 1")
        E(f"s_cbranch_scc0 {ls}")
        E.vm(f"buffer_store_dword v{VONE}, v{VF0}, {WSRD}, s{S_T1} offen", None)
        E(f"{lb}:")
        E.out_of_line(f"""
        {ls}:
        buffer_wbl2 sc1
        s_waitcnt vmcnt(0)
        buffer_store_dword v{VONE}, v{VF0}, {WSRD}, s{S_T1} offen sc1
        s_branch {lb}""")
    def poll_issue(voff, sbase, const, tag, dst=VPOLL, sreg=S_T2):
        sadd(sreg, sbase, const)
        E.vm(f"buffer_load_dword v{dst}, v{voff}, {WSRD}, s{sreg} offen sc1", tag)
    def poll_check(voff, sbase, const, tag, dst=VPOLL):
        E.wait_vm(tag)
        ls = E.label('L_polls'); lb = E.label('L_pollb'); ll = E.label('L_polll'); ld = E.label('L_polld')
        E(f"v_cmp_ne_u32 vcc, s{S_EXP}, v{dst}")
        E(f"s_cbranch_vccnz {ls}")
        E(f"{lb}:")
        E.out_of_line(f"""
        {ls}:
        s_add_u32 s{S_T2}, s{sbase}, {const}
        s_mov_b32 s{S_T3}, 0
        {ll}:
        s_cmp_eq_u32 s{S_EXP}, 1
        s_cbranch_scc1 {ld}
        buffer_inv sc1
        s_waitcnt vmcnt(0)
        {ld}:
        buffer_load_dword v{dst}, v{voff}, {WSRD}, s{S_T2} offen sc1
        s_add_u32 s{S_T3}, s{S_T3}, 1
        s_waitcnt vmcnt(0)
        v_cmp_ne_u32 vcc, 1, v{dst}
        s_cmp_gt_u32 s{S_T3}, 0x4000
        s_cbranch_scc1 {ld}x
        s_cbranch_vccnz {ll}
        {ld}x:
        s_cmp_eq_u32 s{S_EXP}, 1
        s_cbranch_scc1 {lb}
        buffer_inv sc1
        s_waitcnt vmcnt(0)
        s_branch {lb}""")

    E.L.append(head(name).rstrip())
    E(f"""
    s_cmp_ge_u32 s2, 256
    s_cbranch_scc1 L_k1_end
    s_load_dwordx2 s[24:25], s[0:1], 0
    s_load_dwordx2 s[26:27], s[0:1], 80
    s_load_dwordx2 s[28:29], s[0:1], 96
    """)
    if stamps: E("s_memrealtime s[100:101]")
    stamp('start')
    E(f"""
    s_getreg_b32 s{S_XCC}, hwreg(HW_REG_XCC_ID, 0, 4)
    s_getpc_b64 s[32:33]
    L_k1_pc:
    v_lshrrev_b32 v2, 6, v0
    v_and_b32 v8, 63, v0
    s_lshr_b32 s30, s2, 3
    v_readfirstlane_b32 s{S_W}, v2
    s_and_b32 s{S_ROLE}, s30, 15
    s_lshr_b32 s30, s30, 4
    s_lshl_b32 s30, s30, 3
    s_and_b32 s{S_C}, s2, 7
    s_add_u32 s{S_C}, s{S_C}, s30
    s_lshr_b32 s{S_TH}, s{S_ROLE}, 3
    s_and_b32 s{S_J}, s{S_ROLE}, 7
    s_lshl_b32 s{S_W1K}, s{S_W}, 10
    v_lshlrev_b32 v{VL16}, 4, v8
    v_and_b32 v20, 7, v8                     ; tok
    v_bfe_u32 v21, v8, 3, 1                  ; hi
    v_lshrrev_b32 v22, 4, v8                 ; ks
    v_lshlrev_b32 v9, 10, v20
    v_lshl_add_u32 v9, v22, 5, v9
    v_lshl_add_u32 v9, v21, 4, v9
    v_lshlrev_b32 v10, 16, v22
    v_lshl_add_u32 v10, v21, 15, v10
    v_lshl_add_u32 v10, v20, 2, v10
    s_lshl_b32 s30, s{S_C}, 7
    s_lshl_b32 s{S_T0}, s{S_ROLE}, 3
    s_add_u32 s30, s30, s{S_T0}              ; T0
    s_lshl_b32 s{S_T0}, s30, 10
    s_lshl_b32 s{S_T1}, s{S_W}, 8
    s_add_u32 s{S_T0}, s{S_T0}, s{S_T1}      ; q soffset
    s_lshl_b32 s{S_T1}, s30, 2
    s_lshl_b32 s{S_T2}, s{S_W}, 19
    s_add_u32 s{S_T1}, s{S_T1}, s{S_T2}
    s_add_u32 s{S_T1}, s{S_T1}, {WS_Y2}      ; Y soffset
    s_mul_i32 s{S_W1}, s{S_ROLE}, 229376
    s_add_u32 s{S_W1}, s{S_W1}, s{S_W1K}
    s_add_u32 s{S_W1}, s{S_W1}, {WS_W1F}
    v_lshlrev_b32 v23, 6, v0
    v_min_u32 v24, L_k1_codeend-L_k1_pc-64, v23
    v_add_u32 v23, 16384, v23
    v_min_u32 v23, L_k1_codeend-L_k1_pc-64, v23
    s_waitcnt lgkmcnt(0)
    """)
    stamp('karg')
    E(f"""
    s_mov_b32 s{S_Q}, s24
    s_and_b32 s{S_Q+1}, s25, 0xffff
    s_mov_b32 s{S_Q+2}, 2097152
    s_mov_b32 s{S_Q+3}, 0x20000
    s_mov_b32 s{S_WS}, s28
    s_and_b32 s{S_WS+1}, s29, 0xffff
    s_mov_b32 s{S_WS+2}, {WS_SRD_BYTES}
    s_mov_b32 s{S_WS+3}, 0x20000
    """)
    X, Y = 128, 136
    E.vm(f"buffer_load_dwordx4 v[{X}:{X+3}], v9, s[{S_Q}:{S_Q+3}], s{S_T0} offen", 'q')
    E.vm(f"buffer_load_dwordx4 v[{X+4}:{X+7}], v9, s[{S_Q}:{S_Q+3}], s{S_T0} offen offset:128", 'q')
    for c2 in range(2):
        for i in range(4):
            E.vm(f"buffer_load_dword v{Y+4*c2+i}, v10, {WSRD}, s{S_T1} offen", 'y')
            if (c2, i) != (1, 3):
                E(f"s_add_u32 s{S_T1}, s{S_T1}, {8192 if i < 3 else 32*8192 - 3*8192}")
    E.vm("global_load_dword v25, v24, s[32:33]", 'pf')
    E.vm("global_load_dword v26, v23, s[32:33]", 'pf')
    L1 = LAYERS[0]
    for i in range(4):
        for p in range(3):
            for f in dma_ops(L1['tau'][p], L1['slot'][p], [i], 'w1a'): f()
    E(f"""
    s_mov_b32 s{S_OUT}, s26
    s_and_b32 s{S_OUT+1}, s27, 0xffff
    s_mov_b32 s{S_OUT+2}, 2097152
    s_mov_b32 s{S_OUT+3}, 0x20000
    s_mov_b32 s{S_HI}, 0xffff0000
    s_mov_b32 s{S_NL2E}, 0xbfb8aa3b          ; -log2(e)
    s_mov_b32 s{S_EXP}, 1
    s_and_b32 s{S_XCC}, s{S_XCC}, 7
    s_or_b32 s{S_XCC}, s{S_XCC}, 0x10
    v_add_u32 v{VA1}, 65536, v{VL16}
    v_add_u32 v{VA2}, 131072, v{VL16}
    v_lshlrev_b32 v{VP8}, 2, v20
    v_and_b32 v{VP16}, 15, v8
    v_lshlrev_b32 v{VP16}, 2, v{VP16}
    v_mov_b32 v{VF0}, {OOB}
    v_cmp_eq_u32 vcc, 0, v8
    v_mov_b32 v{VONE}, 1
    s_lshr_b32 s30, s{S_ROLE}, 2             ; tt_r
    s_and_b32 s24, s{S_ROLE}, 3
    v_cndmask_b32 v{VF0}, v{VF0}, 0, vcc
    """.replace(f"v_cndmask_b32 v{VF0}, v{VF0}, 0, vcc", f"v_mov_b32 v27, 0\nv_cndmask_b32 v{VF0}, v{VF0}, v27, vcc"))
    E(f"""
    s_lshl_b32 s25, s24, 7
    v_lshlrev_b32 v{VR}, 10, v22
    v_lshl_add_u32 v{VR}, v21, 9, v{VR}
    v_lshl_add_u32 v{VR}, v20, 4, v{VR}
    v_add_u32 v{VR}, s25, v{VR}
    ; stats addresses
    v_lshlrev_b32 v{VSTR}, 5, v20
    v_add_u32 v{VSTR}, {STATS}, v{VSTR}
    v_and_b32 v27, 1, v22
    v_lshl_add_u32 v{VSTW}, v27, 2, v{VSTR}
    s_lshl_b32 s25, s{S_W}, 3
    v_add_u32 v{VSTW}, s25, v{VSTW}
    ; bases
    s_lshl_b32 s25, s{S_C}, 17               ; c*131072
    s_lshl_b32 s26, s30, 15
    s_add_u32 s{S_R}, s25, s26
    s_lshl_b32 s26, s{S_W}, 13
    s_add_u32 s{S_R}, s{S_R}, s26            ; c*131072 + tt_r*32768 + w*8192
    s_lshl_b32 s26, s{S_W}, 15
    s_add_u32 s{S_XNL}, s25, s26             ; c*131072 + w*32768
    s_lshl_b32 s26, s{S_C}, 2
    s_add_u32 s27, s26, s{S_W}
    s_mul_i32 s27, s27, 114688
    s_mul_i32 s28, s{S_ROLE}, 7168
    s_add_u32 s{S_HST}, s27, s28             ; (4c+w)*114688 + role*7168
    s_lshl_b32 s27, s{S_TH}, 1
    s_add_u32 s27, s27, s26
    s_mul_i32 s27, s27, 114688
    s_mul_i32 s28, s{S_W}, 28672
    s_add_u32 s{S_HLD}, s27, s28             ; (4c+2th)*114688 + 28w*1024
    s_and_b32 s26, s{S_W}, 1
    s_lshl_b32 s26, s26, 1
    s_lshr_b32 s27, s{S_W}, 1
    s_add_u32 s26, s26, s27
    s_lshl_b32 s27, s{S_J}, 2
    s_add_u32 s26, s26, s27                  ; kappa_o = 4j + 2(w&1) + (w>>1)
    s_lshl_b32 s27, s26, 10
    s_lshl_b32 s28, s{S_TH}, 16
    s_add_u32 s27, s27, s28
    s_add_u32 s{S_XML}, s27, s25
    ; flags
    s_lshl_b32 s25, s{S_C}, 8
    s_lshl_b32 s27, s30, 6
    s_add_u32 s27, s27, s25
    s_lshl_b32 s28, s24, 4
    s_add_u32 s27, s27, s28
    s_lshl_b32 s28, s{S_W}, 2
    s_add_u32 s{S_FXNS}, s27, s28
    s_lshl_b32 s27, s{S_W}, 6
    s_add_u32 s{S_FXNL}, s25, s27            ; c*256 + w*64
    s_lshl_b32 s25, s{S_C}, 10
    s_lshr_b32 s27, s{S_W}, 1
    s_lshl_b32 s27, s27, 7
    s_add_u32 s27, s27, s25
    s_lshl_b32 s29, s{S_ROLE}, 3
    s_add_u32 s27, s27, s29
    s_and_b32 s29, s{S_W}, 1
    s_lshl_b32 s29, s29, 2
    s_add_u32 s{S_FHS}, s27, s29             ; c*1024 + (w>>1)*128 + role*8 + (w&1)*4
    s_lshl_b32 s27, s{S_TH}, 7
    s_add_u32 s27, s27, s25
    s_lshl_b32 s29, s{S_W}, 5
    s_add_u32 s{S_FHL}, s27, s29             ; c*1024 + th*128 + w*32
    s_lshl_b32 s25, s{S_C}, 9
    s_lshl_b32 s27, s{S_TH}, 7
    s_add_u32 s27, s27, s25
    s_lshl_b32 s29, s{S_J}, 4
    s_add_u32 s27, s27, s29
    s_add_u32 s{S_FX2S}, s27, s28            ; c*512 + th*128 + j*16 + w*4
    s_lshr_b32 s27, s30, 1
    s_lshl_b32 s27, s27, 7
    s_add_u32 s27, s27, s25
    s_lshl_b32 s29, s{S_W}, 5
    s_add_u32 s{S_FX2L}, s27, s29            ; c*512 + (tt_r>>1)*128 + w*32
    s_mul_i32 s25, s{S_W}, 6144
    s_add_u32 s25, s25, {SCR}
    v_add_u32 v{VRR}, s25, v{VL16}
    """)
    for m in (1, 2, 3):
        E(f"""
        s_xor_b32 s25, s{S_W}, {m}
        s_mul_i32 s25, s25, 6144
        s_add_u32 s25, s25, {SCR + (m-1)*2048}
        v_add_u32 v{VRW[m-1]}, s25, v{VL16}
        """)
    E(f"""
    s_lshl_b32 s25, s{S_C}, 7
    s_lshl_b32 s26, s{S_ROLE}, 2
    s_add_u32 s26, s26, s25
    s_add_u32 s26, s26, {FL_XCC}
    v_mov_b32 v27, s{S_XCC}
    """)
    E.vm(f"buffer_store_dword v27, v{VF0}, {WSRD}, s26 offen", 'xccst')
    E(f"s_add_u32 s51, s25, {FL_XCC}")

    XF, YF, T = 144, 160, 176
    def stats(src, rnd, between=None):
        P, Q = 192, 194
        E(f"v_pk_add_f32 v[{P}:{P+1}], v[{src}:{src+1}], v[{src+2}:{src+3}]")
        E(f"v_pk_mul_f32 v[{Q}:{Q+1}], v[{src}:{src+1}], v[{src}:{src+1}]")
        for i in range(1, 8):
            E(f"v_pk_fma_f32 v[{Q}:{Q+1}], v[{src+2*i}:{src+2*i+1}], v[{src+2*i}:{src+2*i+1}], v[{Q}:{Q+1}]")
            if i >= 2: E(f"v_pk_add_f32 v[{P}:{P+1}], v[{P}:{P+1}], v[{src+2*i}:{src+2*i+1}]")
        E(f"""
        v_add_f32 v{P}, v{P}, v{P+1}
        v_add_f32 v{Q}, v{Q}, v{Q+1}
        v_permlane16_swap_b32 v{P}, v{Q}
        v_add_f32 v{P}, v{P}, v{Q}
        v_add_f32_dpp v{P}, v{P}, v{P} row_ror:8 row_mask:0xf bank_mask:0xf
        v_mov_b32 v{P+1}, v{P}
        v_permlane32_swap_b32 v{P}, v{P+1}
        v_add_f32 v{P}, v{P}, v{P+1}
        s_mov_b64 exec, 0x00ff00ff
        """)
        E.ds(f"ds_write_b32 v{VSTW}, v{P} offset:{rnd*256}", 'stw')
        E("s_mov_b64 exec, -1")
        E.wait_ds('stw')
        E("s_barrier")
        E.ds(f"ds_read_b128 v[196:199], v{VSTR} offset:{rnd*256}", 'str')
        E.ds(f"ds_read_b128 v[200:203], v{VSTR} offset:{rnd*256+16}", 'str')
        if between: between()
        E.wait_ds('str')
        E(f"""
        v_pk_add_f32 v[196:197], v[196:197], v[198:199]
        v_pk_add_f32 v[200:201], v[200:201], v[202:203]
        v_pk_add_f32 v[196:197], v[196:197], v[200:201]
        v_mul_f32 v196, 0x3b000000, v196
        v_mul_f32 v197, 0x3b000000, v197
        v_fma_f32 v197, -v196, v196, v197
        v_max_f32 v197, 0, v197
        v_add_f32 v197, 0x3727c5ac, v197
        v_rsq_f32 v204, v197
        s_nop 0
        v_mul_f32 v206, -v196, v204
        """.replace("v_mul_f32 v206, -v196, v204", "v_mul_f32_e64 v206, -v196, v204"))
    def norm(dst, src):
        for i in range(8):
            E(f"v_pk_fma_f32 v[{dst+2*i}:{dst+2*i+1}], v[{src+2*i}:{src+2*i+1}], v[204:205], v[206:207] op_sel_hi:[1,0,0]")
    def unpack(dst, src, n):
        for i in range(n):
            E(f"v_lshlrev_b32 v{dst+2*i}, 16, v{src+i}")
            E(f"v_and_b32 v{dst+2*i+1}, s{S_HI}, v{src+i}")
    def R(L):
        lay = 0 if opt.get('alias') else L*16*131072
        unpack(XF, X, 8)
        def mid1():
            if L == 0:
                E.vm(f"buffer_load_dword v{VXCC}, v{VP16}, {WSRD}, s51 offen sc1", 'xcc')
            else:
                for f in dma_ops(6, 1, range(8), 'w1r'): f()
            unpack(YF, Y, 8)
        stats(XF, 0, mid1)
        stamp(f'R{L}s1')
        norm(T, XF)
        for i in range(8):
            E(f"v_pk_fma_f32 v[{XF+2*i}:{XF+2*i+1}], v[{T+2*i}:{T+2*i+1}], v[{YF+2*i}:{YF+2*i+1}], v[{XF+2*i}:{XF+2*i+1}]")
        M = 208
        for i in range(8):
            E(f"v_cvt_pk_bf16_f32 v{M+i}, v{XF+2*i}, v{XF+2*i+1}")
        sadd(S_T0, S_R, WS_XM + lay); sadd(S_T1, S_R, WS_XM + lay + 4096)
        E.vm(f"buffer_store_dwordx4 v[{M}:{M+3}], v{VR}, {WSRD}, s{S_T0} offen" + XSC, 'rst')
        E.vm(f"buffer_store_dwordx4 v[{M+4}:{M+7}], v{VR}, {WSRD}, s{S_T1} offen" + XSC, 'rst')
        stats(XF, 1)
        norm(T, XF)
        N = 216
        for i in range(8):
            E(f"v_cvt_pk_bf16_f32 v{N+i}, v{T+2*i}, v{T+2*i+1}")
        sadd(S_T0, S_R, WS_XN + lay); sadd(S_T1, S_R, WS_XN + lay + 4096)
        E.vm(f"buffer_store_dwordx4 v[{N}:{N+3}], v{VR}, {WSRD}, s{S_T0} offen", 'rst')
        E.vm(f"buffer_store_dwordx4 v[{N+4}:{N+7}], v{VR}, {WSRD}, s{S_T1} offen", 'rst')
        stamp(f'R{L}st')
        if L == 0:
            for i in range(4, 8):
                for p in range(3):
                    for f in dma_ops(L1['tau'][p], L1['slot'][p], [i], 'w1b'): f()
            E.wait_vm('xcc')
            ls = E.label('L_xccs'); lb = E.label('L_xccb'); ll = E.label('L_xccl')
            E(f"v_cmp_ne_u32 vcc, s{S_XCC}, v{VXCC}")
            if force_slow: E(f"s_branch {ls}")
            else: E(f"s_cbranch_vccnz {ls}")
            E(f"{lb}:")
            E.out_of_line(f"""
            {ls}:
            s_mov_b32 s{S_T3}, 0
            {ll}:
            buffer_load_dword v{VXCC}, v{VP16}, {WSRD}, s51 offen sc1
            s_add_u32 s{S_T3}, s{S_T3}, 1
            s_waitcnt vmcnt(0)
            v_cmp_ne_u32 vcc, s{S_XCC}, v{VXCC}
            {'s_branch ' + ll + 'x' if force_slow else ''}
            s_cbranch_vccz {lb}
            s_cmp_lt_u32 s{S_T3}, 48
            s_cbranch_scc1 {ll}
            {ll}x:
            s_mov_b32 s{S_EXP}, 2
            s_branch {lb}""")
        publish(S_FXNS, FL_XN + L*16*256, 'rst')
        stamp(f'R{L}pub')

    def layer(L):
        cfg = LAYERS[L]; tau = cfg['tau']; slot = cfg['slot']
        lay = L*16*131072; hl = L*64*114688
        if opt.get('alias'): lay = 0; hl = 0
        poll_issue(VP16, S_FXNL, FL_XN + L*16*256, 'pxn')
        poll_check(VP16, S_FXNL, FL_XN + L*16*256, 'pxn')
        stamp(f'L{L}xnok')
        sadd(S_T0, S_XNL, WS_XN + lay)
        for k in range(32):
            off = (k & 3)*1024
            E.vm(f"buffer_load_dwordx4 v[{XR+4*k}:{XR+4*k+3}], v{VL16}, {WSRD}, s{S_T0} offen" + (f" offset:{off}" if off else "") + LSC, f'x{k}')
            if (k & 3) == 3 and k < 31: E(f"s_add_u32 s{S_T0}, s{S_T0}, 4096")
        seq = []
        for k in range(32):
            for p in range(3): seq.append(('g1', p, k))
        for p in range(3, 7):
            for k in range(32): seq.append(('g1', p, k))
        accp = [0, 1, 2, 3, 0, 1, 2]
        def a_addr(p, k):
            s = slot[p]
            base = [VL16, VL16, VA1, VA1, VA2][s]
            off = (s & 1)*SLOT + k*1024 if s < 4 else k*1024
            return base, off
        def is_areg(p, k): return tau[p] == 4 and k == 31
        def rd(i):
            _, p, k = seq[i]
            if is_areg(p, k): return
            b, off = a_addr(p, k)
            r = RING + 4*(i % 8)
            E.ds(f"ds_read_b128 v[{r}:{r+3}], v{b} offset:{off}", f'a{i}')
        stA = [0, 1, 2]; stB = [3, 4, 5]; stC = [6]
        def blocks(tt, ps): return [(tt, rho, p) for p in ps for rho in range(4)]
        b1 = blocks(1, stB)
        order = blocks(0, stA) + blocks(1, stA) + blocks(0, stB) + b1[:opt.get('b1_first', 4)] + blocks(0, stC) + b1[opt.get('b1_first', 4):] + blocks(1, stC)
        assert len(order) == 56
        last0 = max(n for n, b in enumerate(order) if b[0] == 0)
        acc2 = {0: [ACC[0], ACC[1]], 1: [ACC[3], ACC[2]]}
        def hload(n):
            tt, rho, p = order[n]
            r = XR + 4*(n % 32)
            E(f"s_add_u32 s{S_T0}, s{S_HLD}, {WS_H + hl + tt*114688 + (rho*7 + tau[p])*1024}")
            E.vm(f"buffer_load_dwordx4 v[{r}:{r+3}], v{VL16}, {WSRD}, s{S_T0} offen" + LSC, f'h{n}')
        F = {}
        def at(i, f): F.setdefault(i, []).append(f)
        def spread(ops, start, per):
            i = start; c = 0
            for o in ops:
                at(i, o); c += 1
                if c == per: i += 1; c = 0
            return i if c == 0 else i + 1
        def T_(s): return lambda: E(s)
        def epi_ops(p):
            c = ACC[accp[p]]
            ops = []
            for e in range(8): ops.append(T_(f"v_mul_f32 v{c+e}, s{S_NL2E}, v{c+e}"))
            for e in range(8): ops.append(T_(f"v_exp_f32 v{c+e}, v{c+e}"))
            for e in range(8): ops.append(T_(f"v_add_f32 v{c+e}, 1.0, v{c+e}"))
            for e in range(8): ops.append(T_(f"v_rcp_f32 v{c+e}, v{c+e}"))
            for e in range(8): ops.append(T_(f"v_mul_f32 v{c+e}, v{c+e}, v{c+8+e}"))
            for e in range(4): ops.append(T_(f"v_cvt_pk_bf16_f32 v{c+8+e}, v{c+2*e}, v{c+2*e+1}"))
            stage = 'A' if p < 3 else ('B' if p < 6 else 'C')
            def st(p=p, c=c, stage=stage):
                E(f"s_add_u32 s{S_T1}, s{S_HST}, {WS_H + hl + tau[p]*1024}")
                E.vm(f"buffer_store_dwordx4 v[{c+8}:{c+11}], v{VL16}, {WSRD}, s{S_T1} offen" + (' sc1' if stage in opt.get(f'hsc{L}', '') else ''), 'h' + stage)
            ops.append(st)
            return ops
        per = 3
        e0 = spread(epi_ops(0), 99, per)
        e1 = spread(epi_ops(1), e0, per)
        e2 = spread(epi_ops(2), e1, per)
        assert e0 <= 126
        e3 = spread(epi_ops(3), max(e2, 131), per)
        e4 = spread(epi_ops(4), max(e3, 163), per)
        e5 = spread(epi_ops(5), max(e4, 195), per)
        e6 = spread(epi_ops(6), 227, per)
        assert e1 <= 158 and e2 <= 190 and e4 <= 222, (e0, e1, e2, e3, e4, e5, e6)
        def barrier(): E("s_barrier")
        if L == 0:
            ops = dma_ops(3, 3, range(8), 'w3') + dma_ops(4, 4, range(8), 'w4')
            def t4areg():
                E(f"s_sub_u32 s{S_T0}, s{S_W1}, s{S_W1K}")
                E(f"s_add_u32 s{S_T0}, s{S_T0}, {4*32768 + 31*1024}")
                E.vm(f"buffer_load_dwordx4 {ar(A_T4, 4)}, v{VL16}, {WSRD}, s{S_T0} offen", 'w4')
            ops.append(t4areg)
            spread(ops, 0, 1)
        def wd_ops(kps, tag):
            ops = []
            for kp in kps:
                for pd in range(2):
                    def f(kp=kp, pd=pd):
                        E(f"s_add_u32 s{S_T0}, s30, {kp*2048}")
                        E.vm(f"buffer_load_dwordx4 {ar(A_WD + 8*kp + 4*pd, 4)}, v{20+pd}, {WSRD}, s{S_T0} offen", tag)
                    ops.append(f)
            return ops
        if L == 0:
            def wd_setup():
                E(f"""
                s_lshl_b32 s30, s{S_J}, 2
                s_add_u32 s30, s30, s{S_W}
                s_mul_i32 s30, s30, 57344
                s_add_u32 s30, s30, {WS_WDF}
                s_lshr_b32 s25, s{S_W}, 1
                s_lshl_b32 s25, s25, 8          ; 16*(w>>1)*16
                v_xor_b32 v22, s25, v{VL16}
                s_and_b32 s25, s{S_W}, 1
                s_lshl_b32 s25, s25, 10
                v_add_u32 v20, s25, v22
                s_xor_b32 s25, s25, 1024
                v_add_u32 v21, s25, v22
                """)
            at(0, wd_setup)
            kseq = []
            for (tt, rho, p) in order:
                kp = rho*7 + tau[p]
                if kp not in kseq: kseq.append(kp)
            n1 = opt.get('wd_first', 12)
            spread(wd_ops(kseq[:n1], 'wd1'), 18, 1)
            spread(wd_ops(kseq[n1:], 'wd2'), opt.get('wd2_at', 162), 1)
            def bx():
                E.wait_vm('w3'); barrier()
            at(89, bx)
            def by():
                E.wait_vm('w4'); barrier()
            at(121, by)
        def b1f(): barrier()
        at(97, b1f)
        spread(dma_ops(tau[5], slot[5], range(8), 'w5'), 97, 2)
        spread(dma_ops(tau[6], slot[6], range(8), 'w6'), opt.get('w6_at', 101), 2)
        def b2():
            E.wait_vm('w5'); barrier()
        at(153, b2)
        def b3():
            E.wait_vm('w6'); barrier()
        at(185, b3)
        fh = FL_H + L*16*1024
        at(opt.get('pubA', 160), lambda: publish(S_FHS, fh, 'hA'))
        at(opt.get('pollA', 170), lambda: poll_issue(VP8, S_FHL, fh, 'pA'))
        at(opt.get('chkA', 188), lambda: poll_check(VP8, S_FHL, fh, 'pA'))
        for n in range(24): at(192 + n, lambda n=n: hload(n))
        at(opt.get('pubB', 225), lambda: publish(S_FHS, fh + 256, 'hB'))
        at(opt.get('pollB', 232), lambda: poll_issue(VP8, S_FHL, fh + 256, 'pB'))
        chkB = opt.get('chkB', 246)
        at(chkB, lambda: poll_check(VP8, S_FHL, fh + 256, 'pB'))
        at(opt.get('pubC', 258), lambda: publish(S_FHS, fh + 512, 'hC'))
        at(opt.get('pollC', 264), lambda: poll_issue(VP8, S_FHL, fh + 512, 'pC'))
        chkC = opt.get('chkC', 278)
        at(chkC, lambda: poll_check(VP8, S_FHL, fh + 512, 'pC'))
        G2 = 224
        pend = [n for n in range(24, 56)]
        pend.sort(key=lambda n: (order[n][2] == 6, n) if False else n)
        cur = chkB
        sched = []
        for n in pend:
            p = order[n][2]
            earliest = chkC if p == 6 else chkB
            free = G2 + 2*(n - 32) + 1 if n >= 32 else G2
            sched.append((max(earliest, free), n))
        sched.sort()
        t = 0
        for (e, n) in sched:
            t = max(t, e)
            at(t, lambda n=n: hload(n))
            need_by = G2 + 2*n
            assert t < need_by - 4, (n, t, need_by)
            t += 1
        XM0 = 20; XM1 = 24
        def xmld():
            sadd(S_T0, S_XML, WS_XM + lay); sadd(S_T1, S_XML, WS_XM + lay + 32768)
            E.vm(f"buffer_load_dwordx4 v[{XM0}:{XM0+3}], v{VL16}, {WSRD}, s{S_T0} offen" + LSC, 'xm')
            E.vm(f"buffer_load_dwordx4 v[{XM1}:{XM1+3}], v{VL16}, {WSRD}, s{S_T1} offen" + LSC, 'xm')
        at(229, xmld)
        at(228, barrier)
        RB = RING
        def red_write_ops(tt):
            ops = []
            for m in (1, 2, 3):
                pd, g = m & 1, m >> 1
                src = acc2[tt][pd] + 8*g
                for hlf in range(2):
                    ops.append(lambda m=m, src=src, hlf=hlf: E.ds(f"ds_write_b128 v{VRW[m-1]}, v[{src+4*hlf}:{src+4*hlf+3}] offset:{1024*hlf}", 'rw'))
            return ops
        def red_read_ops():
            ops = []
            for m in range(3):
                for hlf in range(2):
                    ops.append(lambda m=m, hlf=hlf: E.ds(f"ds_read_b128 v[{RB+8*m+4*hlf}:{RB+8*m+4*hlf+3}], v{VRR} offset:{2048*m+1024*hlf}", 'rr'))
            return ops
        def red_math_ops(tt):
            own = acc2[tt][0]
            xm = XM0 if tt == 0 else XM1
            ops = []
            ops.append(lambda: E.wait_ds('rr'))
            for e in range(8): ops.append(T_(f"v_add_f32 v{RB+e}, v{RB+e}, v{RB+8+e}"))
            for e in range(8): ops.append(T_(f"v_add_f32 v{own+e}, v{own+e}, v{RB+16+e}"))
            ops.append(lambda: E.wait_vm('xm'))
            for e in range(4):
                ops.append(T_(f"v_lshlrev_b32 v{RB+8+2*e}, 16, v{xm+e}"))
                ops.append(T_(f"v_and_b32 v{RB+9+2*e}, s{S_HI}, v{xm+e}"))
            for e in range(8): ops.append(T_(f"v_add_f32 v{own+e}, v{own+e}, v{RB+e}"))
            for e in range(8): ops.append(T_(f"v_add_f32 v{own+e}, v{own+e}, v{RB+8+e}"))
            for e in range(4): ops.append(T_(f"v_cvt_pk_bf16_f32 v{RB+e}, v{own+2*e}, v{own+2*e+1}"))
            def st():
                if L == 0:
                    sadd(S_T0, S_XML, (WS_XN if opt.get('alias') else WS_X2) + tt*32768)
                    E.vm(f"buffer_store_dwordx4 v[{RB}:{RB+3}], v{VL16}, {WSRD}, s{S_T0} offen", f'x2{tt}')
                else:
                    sadd(S_T0, 30, tt*32768)
                    E.vm(f"buffer_store_dwordx4 v[{RB}:{RB+3}], v28, s[{S_OUT}:{S_OUT+3}], s{S_T0} offen" + (' sc1' if opt.get('outsc') else '') + (' nt' if opt.get('outnt') else ''), f'x2{tt}')
            ops.append(st)
            return ops
        if L == 1:
            def out_setup():
                E(f"""
                v_and_b32 v28, 31, v0
                v_lshlrev_b32 v28, 10, v28
                v_bfe_u32 v29, v0, 5, 1
                v_lshl_add_u32 v28, v29, 4, v28
                s_lshl_b32 s30, s{S_C}, 17
                s_lshl_b32 s25, s{S_TH}, 16
                s_add_u32 s30, s30, s25
                s_and_b32 s25, s{S_W}, 1
                s_lshl_b32 s25, s25, 1
                s_lshr_b32 s26, s{S_W}, 1
                s_add_u32 s25, s25, s26
                s_lshl_b32 s26, s{S_J}, 2
                s_add_u32 s25, s25, s26
                s_lshl_b32 s25, s25, 5
                s_add_u32 s30, s30, s25
                """)
            at(10, out_setup)
        m0_last = G2 + 2*last0 + 1
        w0 = m0_last + 4
        t = spread(red_write_ops(0), w0, 1)
        def rbar():
            E.wait_ds('rw'); barrier()
        at(t + 1, rbar)
        t = spread(red_read_ops(), t + 1, 2)
        lastslot = G2 + 111
        mops = red_math_ops(0)
        room = lastslot - (t + 1)
        per0 = max(3, -(-len(mops) // max(room, 1)))
        t = spread(mops, t + 1, per0)
        tt0_done = t
        E.wait_vm('x0')
        E("s_barrier")
        stamp(f'L{L}g1')
        for i in range(LA): rd(i)
        def emit_fill(i):
            for f in F.pop(i, []): f()
        for i in range(224):
            _, p, k = seq[i]
            stamp(f'L{L}s{i}')
            if p < 3 and (i % 3) == 0 and k > 0: E.wait_vm(f'x{k}')
            if is_areg(p, k):
                asrc = ar(A_T4, 4)
            else:
                E.wait_ds(f'a{i}')
                r = RING + 4*(i % 8); asrc = vr(r, 4)
            c = ACC[accp[p]]
            first = (k == 0)
            E(f"v_mfma_f32_32x32x16_bf16 v[{c}:{c+15}], {asrc}, v[{XR+4*k}:{XR+4*k+3}], {'0' if first else f'v[{c}:{c+15}]'}")
            emit_fill(i)
            if i + LA < 224: rd(i + LA)
        for n in range(56):
            tt, rho, p = order[n]
            kp = rho*7 + tau[p]
            firstb = not any(o[0] == tt for o in order[:n])
            for pd in range(2):
                i = G2 + 2*n + pd
                stamp(f'L{L}s{i}')
                if pd == 0:
                    E.wait_vm(f'h{n}')
                    if L == 0:
                        E.wait_vm('wd1') if n == 0 else None
                        if kseq.index(kp) >= n1: E.wait_vm('wd2')
                c = acc2[tt][pd]; r = XR + 4*(n % 32)
                E(f"v_mfma_f32_32x32x16_bf16 v[{c}:{c+15}], {ar(A_WD + 8*kp + 4*pd, 4)}, v[{r}:{r+3}], {'0' if firstb else f'v[{c}:{c+15}]'}")
                emit_fill(i)
        stamp(f'L{L}g2end')
        for i in sorted(F.keys()):
            assert i > lastslot, i
            emit_fill(i)
        if L == 0 and opt.get('pub0_early', True):
            pass
        E("s_barrier")
        for f in red_write_ops(1): f()
        E.wait_ds('rw'); E("s_barrier")
        for f in red_read_ops(): f()
        for f in red_math_ops(1): f()
        stamp(f'L{L}st')
        if L == 0:
            publish(S_FX2S, FL_X2, 'x21')
            stamp('x2pub')

    stamp('issued')
    if stamps and 'q' in enabled:
        E.wait_vm('q'); stamp('q')
    E.wait_vm('y')
    stamp('qy')
    if stamps and 'pf' in enabled:
        E.wait_vm('pf'); stamp('pf')
    if stamps and 'w1a' in enabled:
        E.wait_vm('w1a'); stamp('w1a')
    for i in range(8): E(f"v_accvgpr_write_b32 a{A_Y+i}, v{Y+i}")
    R(0)
    layer(0)
    poll_issue(VP8, S_FX2L, FL_X2, 'px2')
    poll_check(VP8, S_FX2L, FL_X2, 'px2')
    stamp('x2ok')
    X2B = WS_XN if opt.get('alias') else WS_X2
    sadd(S_T0, S_R, X2B); sadd(S_T1, S_R, X2B + 4096)
    E.vm(f"buffer_load_dwordx4 v[{X}:{X+3}], v{VR}, {WSRD}, s{S_T0} offen" + LSC, 'x2l')
    E.vm(f"buffer_load_dwordx4 v[{X+4}:{X+7}], v{VR}, {WSRD}, s{S_T1} offen" + LSC, 'x2l')
    for i in range(8): E(f"v_accvgpr_read_b32 v{Y+i}, a{A_Y+i}")
    E.wait_vm('x2l')
    R(1)
    layer(1)
    E.wait_vm_all()
    if stamps:
        stamp('end')
        E("s_memrealtime s[2:3]".replace('s[2:3]', 's[24:25]'))
        E(f"""
        s_waitcnt lgkmcnt(0)
        s_cmp_lg_u32 s{S_W}, 0
        s_cbranch_scc1 L_k1_end
        """)
        n = len(names)
        for i in range(1, n): E(f"s_sub_u32 s{SREG[i]}, s{SREG[i]}, s{SREG[0]}")
        E("v_mov_b32 v64, s100")
        for i in range(1, n): E(f"v_mov_b32 v{64+i}, s{SREG[i]}")
        for i in range(n, 30): E(f"v_mov_b32 v{64+i}, 0")
        E(f"v_mov_b32 v94, s{S_EXP}\nv_mov_b32 v95, s24")
        E(f"""
        s_lshl_b32 s25, s2, 7
        s_add_u32 s25, s25, {WS_STAMP + 0x10000}
        """)
        for q in range(8):
            E(f"buffer_store_dwordx4 v[{64+4*q}:{67+4*q}], v{VF0}, {WSRD}, s25 offen offset:{16*q}")
        E("s_waitcnt vmcnt(0)")
        if opt.get('dbg'):
            E(f"""
            s_load_dwordx2 s[26:27], s[0:1], 88
            s_lshl_b32 s25, s2, 6
            s_add_u32 s25, s25, {WS_STAMP}
            buffer_load_dword v70, v{VF0}, {WSRD}, s25 offen
            buffer_load_dword v71, v{VF0}, {WSRD}, s25 offen offset:52
            s_waitcnt vmcnt(0) lgkmcnt(0)
            v_not_b32 v72, v70
            v_not_b32 v73, v71
            v_not_b32 v74, v64
            v_not_b32 v75, v95
            v_mov_b32 v76, 0
            v_cmp_eq_u32 vcc, 0, v0
            s_and_saveexec_b64 s[28:29], vcc
            global_atomic_umax v76, v72, s[26:27]
            global_atomic_umax v76, v70, s[26:27] offset:4
            global_atomic_umax v76, v73, s[26:27] offset:8
            global_atomic_umax v76, v71, s[26:27] offset:12
            global_atomic_umax v76, v74, s[26:27] offset:16
            global_atomic_umax v76, v64, s[26:27] offset:20
            global_atomic_umax v76, v75, s[26:27] offset:24
            global_atomic_umax v76, v95, s[26:27] offset:28
            s_waitcnt vmcnt(0)
            """)
        print('k1 stamps:', ','.join(names))
        open('last_stamps.txt', 'w').write(','.join(names))
    E("L_k1_end:")
    E("s_endpgm")
    main = hazard_pass(E.L[1:], verbose=opt.get('verbose', False))
    tail = []
    for ln in E.tail:
        tail.append(ln)
    txt = E.L[0] + '\n' + '\n'.join(('    ' + l if not l.endswith(':') else l) for l in main) + '\n'
    txt += '\n'.join(('    ' + l if not l.endswith(':') else l) for l in tail) + '\n'
    txt += "L_k1_codeend:\n    s_endpgm\n"
    return txt + kd(name, 512, 102, accum=256)

if __name__ == '__main__':
    from common import TARGET, KERNARG_COMMENT
    import k0
    st = 'stamps' in sys.argv; slow = 'slow' in sys.argv
    opt = {'verbose': 'v' in sys.argv}
    for a in sys.argv[2:]:
        if '=' in a:
            k_, v_ = a.split('=')
            opt[k_] = v_.split(',') if k_ == 'st' else (v_ if k_.startswith('hsc') else int(v_))
    txt = KERNARG_COMMENT
    txt += f"; @launch kernel=k0_kernel grid=(256,1,1) block=(256,1,1) lds={k0.K0_LDS}\n"
    txt += f"; @launch kernel=k1_kernel grid=(256,1,1) block=(256,1,1) lds={K1_LDS}\n"
    txt += TARGET + k0.gen_k0(stamps=('k0st' in sys.argv), force_slow=slow, pf_lines=opt.get('k0pf', 200)) + gen_k1(stamps=st, force_slow=slow, opt=opt)
    txt += ".text\n.fill 64, 4, 0xbf800000\n"
    open(sys.argv[1], 'w').write(txt)
```

```python
import re

class Emit:
    def __init__(self):
        self.L = []
        self.vmq = []
        self.dsq = []
        self.nl = 0
        self.tail = []
        self.seen = set()
    def __call__(self, s):
        for line in s.split('\n'):
            line = line.strip()
            if not line or line.startswith(';'): continue
            self.L.append(line)
    def label(self, base):
        self.nl += 1
        return f"{base}_{self.nl}"
    def vm(self, text, tag=None):
        self.L.append(text.strip()); self.vmq.append(tag); self.seen.add(tag)
        assert len(self.vmq) <= 63 or True
    def vm_after(self, tag):
        idx = [i for i, t in enumerate(self.vmq) if t == tag]
        if not idx: return None
        return len(self.vmq) - 1 - idx[-1]
    def wait_vm(self, tag):
        assert tag in self.seen, f'wait on a tag that was never issued: {tag}'
        n = self.vm_after(tag)
        if n is None: return False
        if n > 63:
            n = 63
        self.L.append(f"s_waitcnt vmcnt({n})")
        self.vmq = self.vmq[len(self.vmq) - n:] if n > 0 else []
        return True
    def wait_vm_all(self):
        self.L.append("s_waitcnt vmcnt(0)"); self.vmq = []
    def ds(self, text, tag=None):
        self.L.append(text.strip()); self.dsq.append(tag); self.seen.add(('ds', tag))
    def wait_ds(self, tag):
        assert ('ds', tag) in self.seen, f'wait on a ds tag that was never issued: {tag}'
        idx = [i for i, t in enumerate(self.dsq) if t == tag]
        if not idx: return False
        n = len(self.dsq) - 1 - idx[-1]
        if n > 15: n = 15
        self.L.append(f"s_waitcnt lgkmcnt({n})")
        self.dsq = self.dsq[len(self.dsq) - n:] if n > 0 else []
        return True
    def wait_ds_all(self):
        self.L.append("s_waitcnt lgkmcnt(0)"); self.dsq = []
    def out_of_line(self, text):
        for line in text.split('\n'):
            line = line.strip()
            if line and not line.startswith(';'): self.tail.append(line)

REG = re.compile(r'^(v|a|s)(\d+)$|^(v|a|s)\[(\d+):(\d+)\]$')
def regs(op):
    op = op.strip()
    if op in ('vcc', 'vcc_lo', 'vcc_hi'): return {('s', 'vcc')}
    if op == 'exec': return {('s', 'exec')}
    if op == 'm0': return {('s', 'm0')}
    m = REG.match(op)
    if not m: return set()
    if m.group(1): return {(m.group(1), int(m.group(2)))}
    return {(m.group(3), i) for i in range(int(m.group(4)), int(m.group(5)) + 1)}

TRANS = ('v_exp_f32', 'v_log_f32', 'v_rcp_f32', 'v_rsq_f32', 'v_sqrt_f32', 'v_sin_f32', 'v_cos_f32')
class I:
    __slots__ = ('text', 'op', 'kind', 'dst', 'src', 'passes', 'srcC', 'dpp', 'big_store_data', 'lds_dma', 'nop')
def parse(text):
    i = I(); i.text = text; i.nop = 1
    t = text.split(';')[0].strip()
    parts = t.split(None, 1)
    op = parts[0]; rest = parts[1] if len(parts) > 1 else ''
    i.op = op; i.dst = set(); i.src = set(); i.passes = 0; i.srcC = set(); i.dpp = False; i.big_store_data = set(); i.lds_dma = False
    ops = []; cur = ''; depth = 0
    for ch in rest:
        if ch == '[': depth += 1
        if ch == ']': depth -= 1
        if ch == ',' and depth == 0: ops.append(cur.strip()); cur = ''
        else: cur += ch
    if cur.strip(): ops.append(cur.strip())
    mods = ''
    if ops:
        toks = ops[-1].split()
        ops[-1] = toks[0]; mods = ' '.join(toks[1:])
    if op.endswith(':'):
        i.kind = 'label'; i.nop = 0; return i
    if op == 's_nop':
        i.kind = 'salu'; i.nop = int(ops[0], 0) + 1; return i
    if op.startswith('v_mfma'):
        i.kind = 'mfma'; i.passes = 8 if '32x32x16' in op else 4
        i.dst = regs(ops[0]); i.src = regs(ops[1]) | regs(ops[2]); i.srcC = regs(ops[3]); return i
    if op.startswith('v_'):
        i.kind = 'valu'
        i.dpp = ('row_' in mods) or ('_dpp' in op) or ('quad_perm' in mods)
        if op.startswith('v_cmp'):
            i.dst = regs(ops[0]); i.src = set().union(*[regs(o) for o in ops[1:]])
        elif op.startswith('v_permlane'):
            i.dst = regs(ops[0]) | regs(ops[1]); i.src = set(i.dst)
        else:
            i.dst = regs(ops[0]); i.src = set().union(*[regs(o) for o in ops[1:]]) if len(ops) > 1 else set()
            if op.startswith(('v_fmac', 'v_mac', 'v_writelane', 'v_dot2c')) or i.dpp: i.src |= i.dst
            if op.startswith('v_cndmask') and len(ops) == 3: i.src |= {('s', 'vcc')}
            if op.startswith(('v_add_co', 'v_sub_co', 'v_addc_co')): i.dst |= regs(ops[1])
        return i
    if op.startswith('ds_'):
        i.kind = 'ds'
        if op.startswith('ds_read'):
            i.dst = regs(ops[0]); i.src = regs(ops[1])
        else:
            i.src = set().union(*[regs(o) for o in ops])
        return i
    if op.startswith(('buffer_', 'global_')):
        i.kind = 'vmem'
        allm = mods + ' ' + ' '.join(ops)
        if op in ('buffer_wbl2', 'buffer_inv'): return i
        lds = (' lds' in ' ' + mods) or ('_lds_' in op)
        i.lds_dma = lds
        if 'store' in op or 'atomic' in op:
            i.src = set().union(*[regs(o) for o in ops])
            if 'x4' in op or 'x3' in op:
                i.big_store_data = regs(ops[0]) if op.startswith('buffer_') else regs(ops[1])
        elif lds:
            i.src = set().union(*[regs(o) for o in ops]) | {('s', 'm0')}
        else:
            i.dst = regs(ops[0]); i.src = set().union(*[regs(o) for o in ops[1:]])
        return i
    if op.startswith('s_'):
        i.kind = 'salu'
        nodst = ('s_cmp', 's_cbranch', 's_branch', 's_waitcnt', 's_barrier', 's_endpgm', 's_setprio', 's_sleep', 's_bitcmp')
        if op.startswith(nodst):
            i.src = set().union(*[regs(o) for o in ops]) if ops else set()
        else:
            i.dst = regs(ops[0]); i.src = set().union(*[regs(o) for o in ops[1:]]) if len(ops) > 1 else set()
        return i
    raise ValueError(text)

def need(p, c):
    n = 0
    vreg = lambda S: {r for r in S if r[0] in 'va'}
    if p.kind == 'mfma':
        big = p.passes == 8
        if c.kind == 'mfma':
            if p.dst & c.src: n = max(n, 12 if big else 8)
            ov = p.dst & c.srcC
            if ov and (c.srcC != p.dst or c.passes != p.passes): n = max(n, 10 if big else 6)
        elif c.kind == 'valu':
            if p.dst & (c.src | c.dst): n = max(n, 12 if big else 8)
            if p.srcC & c.dst: n = max(n, 7 if big else 3)
        elif c.kind in ('ds', 'vmem'):
            if p.dst & (c.src | c.dst): n = max(n, 12 if big else 8)
    elif p.kind == 'valu':
        pv = vreg(p.dst); ps = p.dst - pv
        if c.kind == 'mfma' and pv & (c.src | c.srcC): n = max(n, 2)
        if c.kind == 'valu':
            if c.dpp and pv & c.src: n = max(n, 2)
            if c.op.startswith('v_permlane') and pv & c.src: n = max(n, 2)
            if c.op.startswith(('v_readlane', 'v_readfirstlane')) and pv & c.src: n = max(n, 1)
            if p.op in TRANS and c.op not in TRANS and pv & c.src: n = max(n, 1)
            if ps & c.src: n = max(n, 2)
            if p.op.startswith('v_dot') and (pv & (c.src | c.dst)) and not (p.op == c.op): n = max(n, 3)
        if c.kind == 'vmem' and ps & c.src: n = max(n, 5)
    elif p.kind == 'vmem':
        if p.big_store_data:
            if c.kind == 'valu' and p.big_store_data & c.dst: n = max(n, 2)
            elif c.kind in ('mfma', 'ds', 'vmem') and p.big_store_data & c.dst: n = max(n, 2)
    elif p.kind == 'salu':
        if ('s', 'm0') in p.dst and c.kind == 'vmem' and c.lds_dma: n = max(n, 1)
    return n

def hazard_pass(lines, verbose=False):
    out = []; hist = []
    added = 0
    for ln in lines:
        c = parse(ln)
        if c.kind == 'label':
            out.append(ln); continue
        dist = 0; short = 0; why = None
        for p in reversed(hist):
            r = need(p, c)
            if r > dist and r - dist > short:
                short = r - dist; why = p.text
            dist += p.nop
            if dist >= 13: break
        if short:
            k = short
            while k > 0:
                m = min(k, 16)
                nop = parse(f"s_nop {m-1}"); hist.append(nop); out.append(f"s_nop {m-1}"); k -= m
            added += short
            if verbose: print(f"  hazard: +{short} before `{ln}`  (after `{why}`)")
        hist.append(c); out.append(ln)
        if len(hist) > 40: hist = hist[-20:]
    if verbose: print('hazard pass: inserted', added, 'wait states')
    return out
```

```python
import sys
sys.path.insert(0, 'gen')
from emit import *
from layout import *
from common import head, kd

K1_LDS = 163840
SLOT = 32768
SCR = SLOT
STATS = SLOT + 24576
OOB = 0x80000000
VL16, VA1, VA2, VP8, VP16, VF0, VR = 1, 2, 3, 4, 5, 6, 7
VSTW, VSTR = 11, 12
VRW = [13, 14, 15]; VRR = 16
VPOLL, VONE, VXCC = 17, 18, 19
RING = 32
ACC = [64, 80, 96, 112]
XR = 128
A_WD = 0; A_Y = 224; A_T4 = 232
S_WS = 4; S_Q = 8; S_OUT = 12
S_W, S_ROLE, S_C, S_TH, S_J, S_EXP, S_XCC, S_W1K = 16, 17, 18, 19, 20, 21, 22, 23
S_R, S_XNL, S_HST, S_HLD, S_XML, S_W1, S_FXNS, S_FXNL, S_FHS, S_FHL, S_FX2S, S_FX2L = range(34, 46)
S_T0, S_T1, S_T2, S_T3, S_HI = 46, 47, 48, 49, 31
S_LN2 = 98
S_DA, S_XA = 50, 3
S_HA = [96, 97]; S_HS = [94, 95]
LA = 6
def vr(b, n=1): return f"v{b}" if n == 1 else f"v[{b}:{b+n-1}]"
def ar(b, n=1): return f"a{b}" if n == 1 else f"a[{b}:{b+n-1}]"

LAYERS = [
    dict(tau=[0, 1, 2, 3, 4, 5, 6], slot=[2, 3, 4, 0, 1, 2, 3]),
    dict(tau=[5, 6, 2, 3, 4, 0, 1], slot=[2, 3, 4, 0, 1, 2, 3]),
]
LOG2E = 0x3fb8aa3b; LN2 = 0x3f317218
A_H = 236

def gen_k1(name='k1_kernel', stamps=False, force_slow=False, opt=None):
    opt = opt or {}
    E = Emit()
    LSC = ' sc1' if opt.get('lsc', 1) else ''
    XSC = ' sc1' if opt.get('xmsc') else ''
    SREG = list(range(52, 94, 2)); names = []
    DEF = ['start', 'qy', 'R0s1', 'R0st', 'R0pub', 'L0xnok', 'L0g1', 'L0s96', 'L0s224', 'L0g2end', 'L0st', 'x2ok', 'R1st', 'R1pub', 'L1xnok', 'L1g1', 'L1s96', 'L1s224', 'L1g2end', 'L1st', 'end']
    enabled = set(opt.get('st', DEF)) | {'start', 'end'}
    def stamp(nm):
        if stamps and nm in enabled and not MODE['slow']:
            r = SREG[len(names)]; names.append(nm)
            E(f"s_memtime s[{r}:{r+1}]")
    WSRD = f"s[{S_WS}:{S_WS+3}]"
    MODE = {'slow': False}

    def sadd(dst, base, const):
        if const == 0: E(f"s_mov_b32 s{dst}, s{base}")
        else: E(f"s_add_u32 s{dst}, s{base}, {const}")
    def dma_stream(tau, slot, tag, ilist=range(8)):
        ops = []; cur = None
        for i in ilist:
            if cur != (i >> 2):
                cur = i >> 2
                ops.append((4, False, lambda g=cur: E(f"s_add_u32 m0, s{S_W1K}, {slot*SLOT + g*4096}")))
                ops.append((4, False, lambda g=cur: sadd(S_DA, S_W1, tau*32768 + g*4096)))
            off = (i & 3)*1024
            ops.append((4, True, lambda off=off: E.vm(f"buffer_load_dwordx4 v{VL16}, {WSRD}, s{S_DA} offen" + (f" offset:{off}" if off else "") + " lds", tag)))
        return ops
    def dma_now(tau, slot, tag, ilist=range(8)):
        for (_, _, f) in dma_stream(tau, slot, tag, ilist): f()
    def publish(sbase, const, tag, wait=True):
        o = f" offset:{const}" if const else ""
        if MODE['slow']:
            E.wait_vm_all()
            E("buffer_wbl2 sc1\ns_waitcnt vmcnt(0)")
            E.vm(f"buffer_store_dword v{VONE}, v{VF0}, {WSRD}, s{sbase} offen{o} sc1", None)
            return
        if wait: E.wait_vm(tag)
        E.vm(f"buffer_store_dword v{VONE}, v{VF0}, {WSRD}, s{sbase} offen{o}", None)
    def poll_issue(voff, sbase, const, tag, dst=VPOLL):
        o = f" offset:{const}" if const else ""
        if MODE['slow']: E.seen.add(tag); return
        E.vm(f"buffer_load_dword v{dst}, v{voff}, {WSRD}, s{sbase} offen{o} sc1", tag)
    def poll_check(voff, sbase, const, tag, dst=VPOLL, wait=True):
        o = f" offset:{const}" if const else ""
        ls = E.label('L_polls'); lb = E.label('L_pollb'); ll = E.label('L_polll')
        if MODE['slow']:
            E.wait_vm_all()
            E(f"""
            s_mov_b32 s{S_T3}, 0
            {ll}:
            buffer_inv sc1
            s_waitcnt vmcnt(0)
            buffer_load_dword v{dst}, v{voff}, {WSRD}, s{sbase} offen{o} sc1
            s_add_u32 s{S_T3}, s{S_T3}, 1
            s_waitcnt vmcnt(0)
            v_cmp_ne_u32 vcc, 1, v{dst}
            s_cmp_gt_u32 s{S_T3}, 0x4000
            s_cbranch_scc1 {lb}
            s_cbranch_vccnz {ll}
            {lb}:
            buffer_inv sc1
            s_waitcnt vmcnt(0)""")
            return
        if wait: E.wait_vm(tag)
        E(f"v_cmp_ne_u32 vcc, 1, v{dst}")
        E(f"s_cbranch_vccnz {ls}")
        E(f"{lb}:")
        E.out_of_line(f"""
        {ls}:
        s_mov_b32 s{S_T3}, 0
        {ll}:
        buffer_load_dword v{dst}, v{voff}, {WSRD}, s{sbase} offen{o} sc1
        s_add_u32 s{S_T3}, s{S_T3}, 1
        s_waitcnt vmcnt(0)
        v_cmp_ne_u32 vcc, 1, v{dst}
        s_cbranch_vccz {lb}
        s_cmp_lt_u32 s{S_T3}, 0x4000
        s_cbranch_scc1 {ll}
        s_branch {lb}""")

    E.L.append(head(name).rstrip())
    E(f"""
    s_cmp_ge_u32 s2, 256
    s_cbranch_scc1 L_k1_end
    s_load_dwordx2 s[24:25], s[0:1], 0
    s_load_dwordx2 s[26:27], s[0:1], 80
    s_load_dwordx2 s[28:29], s[0:1], 96
    """)
    if stamps: E("s_memrealtime s[100:101]")
    stamp('start')
    E(f"""
    s_getreg_b32 s{S_XCC}, hwreg(HW_REG_XCC_ID, 0, 4)
    s_getpc_b64 s[32:33]
    L_k1_pc:
    v_lshrrev_b32 v2, 6, v0
    v_and_b32 v8, 63, v0
    s_lshr_b32 s30, s2, 3
    v_readfirstlane_b32 s{S_W}, v2
    s_and_b32 s{S_ROLE}, s30, 15
    s_lshr_b32 s30, s30, 4
    s_lshl_b32 s30, s30, 3
    s_and_b32 s{S_C}, s2, 7
    s_add_u32 s{S_C}, s{S_C}, s30
    s_lshr_b32 s{S_TH}, s{S_ROLE}, 3
    s_and_b32 s{S_J}, s{S_ROLE}, 7
    s_lshl_b32 s{S_W1K}, s{S_W}, 13
    v_lshlrev_b32 v{VL16}, 4, v8
    v_and_b32 v20, 7, v8                     ; tok
    v_bfe_u32 v21, v8, 3, 1                  ; hi
    v_lshrrev_b32 v22, 4, v8                 ; ks
    v_lshlrev_b32 v9, 10, v20
    v_lshl_add_u32 v9, v22, 5, v9
    v_lshl_add_u32 v9, v21, 4, v9
    v_lshlrev_b32 v10, 16, v22
    v_lshl_add_u32 v10, v21, 15, v10
    v_lshl_add_u32 v10, v20, 2, v10
    s_lshl_b32 s30, s{S_C}, 7
    s_lshl_b32 s{S_T0}, s{S_ROLE}, 3
    s_add_u32 s30, s30, s{S_T0}              ; T0
    s_lshl_b32 s{S_T0}, s30, 10
    s_lshl_b32 s{S_T1}, s{S_W}, 8
    s_add_u32 s{S_T0}, s{S_T0}, s{S_T1}      ; q soffset
    s_lshl_b32 s{S_T1}, s30, 2
    s_lshl_b32 s{S_T2}, s{S_W}, 19
    s_add_u32 s{S_T1}, s{S_T1}, s{S_T2}
    s_add_u32 s{S_T1}, s{S_T1}, {WS_Y2}      ; Y soffset
    s_mul_i32 s{S_W1}, s{S_ROLE}, 229376
    s_add_u32 s{S_W1}, s{S_W1}, s{S_W1K}
    s_add_u32 s{S_W1}, s{S_W1}, {WS_W1F}
    v_lshlrev_b32 v23, 6, v0
    v_min_u32 v24, L_k1_codeend-L_k1_pc-64, v23
    v_add_u32 v23, 16384, v23
    v_min_u32 v23, L_k1_codeend-L_k1_pc-64, v23
    s_waitcnt lgkmcnt(0)
    """)
    stamp('karg')
    E(f"""
    s_mov_b32 s{S_Q}, s24
    s_and_b32 s{S_Q+1}, s25, 0xffff
    s_mov_b32 s{S_Q+2}, 2097152
    s_mov_b32 s{S_Q+3}, 0x20000
    s_mov_b32 s{S_WS}, s28
    s_and_b32 s{S_WS+1}, s29, 0xffff
    s_mov_b32 s{S_WS+2}, {WS_SRD_BYTES}
    s_mov_b32 s{S_WS+3}, 0x20000
    """)
    X, Y = 128, 136
    E.vm(f"buffer_load_dwordx4 v[{X}:{X+3}], v9, s[{S_Q}:{S_Q+3}], s{S_T0} offen", 'q')
    E.vm(f"buffer_load_dwordx4 v[{X+4}:{X+7}], v9, s[{S_Q}:{S_Q+3}], s{S_T0} offen offset:128", 'q')
    for c2 in range(2):
        for i in range(4):
            E.vm(f"buffer_load_dword v{Y+4*c2+i}, v10, {WSRD}, s{S_T1} offen", 'y')
            if (c2, i) != (1, 3):
                E(f"s_add_u32 s{S_T1}, s{S_T1}, {8192 if i < 3 else 32*8192 - 3*8192}")
    E.vm("global_load_dword v25, v24, s[32:33]", 'pf')
    E.vm("global_load_dword v26, v23, s[32:33]", 'pf')
    L1 = LAYERS[0]
    for p in range(3): dma_now(L1['tau'][p], L1['slot'][p], 'w1a', range(4))
    E(f"""
    s_mov_b32 s{S_OUT}, s26
    s_and_b32 s{S_OUT+1}, s27, 0xffff
    s_mov_b32 s{S_OUT+2}, 2097152
    s_mov_b32 s{S_OUT+3}, 0x20000
    s_mov_b32 s{S_HI}, 0xffff0000
    s_mov_b32 s{S_LN2}, {LN2:#x}
    s_mov_b32 s{S_LN2+1}, {LN2:#x}
    s_mov_b32 s{S_EXP}, 1
    s_and_b32 s{S_XCC}, s{S_XCC}, 7
    s_or_b32 s{S_XCC}, s{S_XCC}, 0x10
    v_add_u32 v{VA1}, 65536, v{VL16}
    v_add_u32 v{VA2}, 131072, v{VL16}
    v_lshlrev_b32 v{VP8}, 2, v20
    v_and_b32 v{VP16}, 15, v8
    v_lshlrev_b32 v{VP16}, 2, v{VP16}
    v_mov_b32 v{VF0}, {OOB}
    v_cmp_eq_u32 vcc, 0, v8
    v_mov_b32 v{VONE}, 1
    s_lshr_b32 s30, s{S_ROLE}, 2             ; tt_r
    s_and_b32 s24, s{S_ROLE}, 3
    v_cndmask_b32 v{VF0}, v{VF0}, 0, vcc
    """.replace(f"v_cndmask_b32 v{VF0}, v{VF0}, 0, vcc", f"v_mov_b32 v27, 0\nv_cndmask_b32 v{VF0}, v{VF0}, v27, vcc"))
    E(f"""
    s_lshl_b32 s25, s24, 7
    v_lshlrev_b32 v{VR}, 10, v22
    v_lshl_add_u32 v{VR}, v21, 9, v{VR}
    v_lshl_add_u32 v{VR}, v20, 4, v{VR}
    v_add_u32 v{VR}, s25, v{VR}
    ; stats addresses
    v_lshlrev_b32 v{VSTR}, 5, v20
    v_add_u32 v{VSTR}, {STATS}, v{VSTR}
    v_and_b32 v27, 1, v22
    v_lshl_add_u32 v{VSTW}, v27, 2, v{VSTR}
    s_lshl_b32 s25, s{S_W}, 3
    v_add_u32 v{VSTW}, s25, v{VSTW}
    ; bases
    s_lshl_b32 s25, s{S_C}, 17               ; c*131072
    s_lshl_b32 s26, s30, 15
    s_add_u32 s{S_R}, s25, s26
    s_lshl_b32 s26, s{S_W}, 13
    s_add_u32 s{S_R}, s{S_R}, s26            ; c*131072 + tt_r*32768 + w*8192
    s_lshl_b32 s26, s{S_W}, 15
    s_add_u32 s{S_XNL}, s25, s26             ; c*131072 + w*32768
    s_lshl_b32 s26, s{S_C}, 2
    s_add_u32 s27, s26, s{S_W}
    s_mul_i32 s27, s27, 114688
    s_lshr_b32 s28, s{S_ROLE}, 2
    s_mul_i32 s28, s28, 28
    s_and_b32 s29, s{S_ROLE}, 3
    s_add_u32 s28, s28, s29
    s_lshl_b32 s28, s28, 10
    s_add_u32 s{S_HST}, s27, s28
    s_lshl_b32 s27, s{S_TH}, 1
    s_add_u32 s27, s27, s26
    s_mul_i32 s27, s27, 114688
    s_mul_i32 s28, s{S_W}, 28672
    s_add_u32 s{S_HLD}, s27, s28             ; (4c+2th)*114688 + 28w*1024
    s_and_b32 s26, s{S_W}, 1
    s_lshl_b32 s26, s26, 1
    s_lshr_b32 s27, s{S_W}, 1
    s_add_u32 s26, s26, s27
    s_lshl_b32 s27, s{S_J}, 2
    s_add_u32 s26, s26, s27                  ; kappa_o = 4j + 2(w&1) + (w>>1)
    s_lshl_b32 s27, s26, 10
    s_lshl_b32 s28, s{S_TH}, 16
    s_add_u32 s27, s27, s28
    s_add_u32 s{S_XML}, s27, s25
    ; flags
    s_lshl_b32 s25, s{S_C}, 8
    s_lshl_b32 s27, s30, 6
    s_add_u32 s27, s27, s25
    s_lshl_b32 s28, s24, 4
    s_add_u32 s27, s27, s28
    s_lshl_b32 s28, s{S_W}, 2
    s_add_u32 s{S_FXNS}, s27, s28
    s_lshl_b32 s27, s{S_W}, 6
    s_add_u32 s{S_FXNL}, s25, s27            ; c*256 + w*64
    s_lshl_b32 s25, s{S_C}, 10
    s_lshr_b32 s27, s{S_W}, 1
    s_lshl_b32 s27, s27, 7
    s_add_u32 s27, s27, s25
    s_lshl_b32 s29, s{S_ROLE}, 3
    s_add_u32 s27, s27, s29
    s_and_b32 s29, s{S_W}, 1
    s_lshl_b32 s29, s29, 2
    s_add_u32 s{S_FHS}, s27, s29             ; c*1024 + (w>>1)*128 + role*8 + (w&1)*4
    s_lshl_b32 s27, s{S_TH}, 7
    s_add_u32 s27, s27, s25
    s_lshl_b32 s29, s{S_W}, 5
    s_add_u32 s{S_FHL}, s27, s29             ; c*1024 + th*128 + w*32
    s_lshl_b32 s25, s{S_C}, 9
    s_lshl_b32 s27, s{S_TH}, 7
    s_add_u32 s27, s27, s25
    s_lshl_b32 s29, s{S_J}, 4
    s_add_u32 s27, s27, s29
    s_add_u32 s{S_FX2S}, s27, s28            ; c*512 + th*128 + j*16 + w*4
    s_lshr_b32 s27, s30, 1
    s_lshl_b32 s27, s27, 7
    s_add_u32 s27, s27, s25
    s_lshl_b32 s29, s{S_W}, 5
    s_add_u32 s{S_FX2L}, s27, s29            ; c*512 + (tt_r>>1)*128 + w*32
    s_add_u32 s{S_FXNS}, s{S_FXNS}, {FL_XN}
    s_add_u32 s{S_FXNL}, s{S_FXNL}, {FL_XN}
    s_add_u32 s{S_FHS}, s{S_FHS}, {FL_H}
    s_add_u32 s{S_FHL}, s{S_FHL}, {FL_H}
    s_add_u32 s{S_FX2S}, s{S_FX2S}, {FL_X2}
    s_add_u32 s{S_FX2L}, s{S_FX2L}, {FL_X2}
    s_mul_i32 s25, s{S_W}, 6144
    s_add_u32 s25, s25, {SCR}
    v_add_u32 v{VRR}, s25, v{VL16}
    """)
    for m in (1, 2, 3):
        E(f"""
        s_xor_b32 s25, s{S_W}, {m}
        s_mul_i32 s25, s25, 6144
        s_add_u32 s25, s25, {SCR + (m-1)*2048}
        v_add_u32 v{VRW[m-1]}, s25, v{VL16}
        """)
    E(f"""
    s_lshl_b32 s25, s{S_C}, 7
    s_lshl_b32 s26, s{S_ROLE}, 2
    s_add_u32 s26, s26, s25
    s_add_u32 s26, s26, {FL_XCC}
    v_mov_b32 v27, s{S_XCC}
    """)
    E.vm(f"buffer_store_dword v27, v{VF0}, {WSRD}, s26 offen", 'xccst')
    E(f"s_add_u32 s51, s25, {FL_XCC}")

    XF, YF, T = 144, 160, 176
    def stats(src, rnd, between=None, scale=False):
        P, Q = 192, 194
        E(f"v_pk_add_f32 v[{P}:{P+1}], v[{src}:{src+1}], v[{src+2}:{src+3}]")
        E(f"v_pk_mul_f32 v[{Q}:{Q+1}], v[{src}:{src+1}], v[{src}:{src+1}]")
        for i in range(1, 8):
            E(f"v_pk_fma_f32 v[{Q}:{Q+1}], v[{src+2*i}:{src+2*i+1}], v[{src+2*i}:{src+2*i+1}], v[{Q}:{Q+1}]")
            if i >= 2: E(f"v_pk_add_f32 v[{P}:{P+1}], v[{P}:{P+1}], v[{src+2*i}:{src+2*i+1}]")
        E(f"""
        v_add_f32 v{P}, v{P}, v{P+1}
        v_add_f32 v{Q}, v{Q}, v{Q+1}
        v_permlane16_swap_b32 v{P}, v{Q}
        v_add_f32 v{P}, v{P}, v{Q}
        v_add_f32_dpp v{P}, v{P}, v{P} row_ror:8 row_mask:0xf bank_mask:0xf
        v_mov_b32 v{P+1}, v{P}
        v_permlane32_swap_b32 v{P}, v{P+1}
        v_add_f32 v{P}, v{P}, v{P+1}
        s_mov_b64 exec, 0x00ff00ff
        """)
        E.ds(f"ds_write_b32 v{VSTW}, v{P} offset:{rnd*256}", 'stw')
        E("s_mov_b64 exec, -1")
        E.wait_ds('stw')
        E("s_barrier")
        E.ds(f"ds_read_b128 v[196:199], v{VSTR} offset:{rnd*256}", 'str')
        E.ds(f"ds_read_b128 v[200:203], v{VSTR} offset:{rnd*256+16}", 'str')
        if between: between()
        E.wait_ds('str')
        E(f"""
        v_pk_add_f32 v[196:197], v[196:197], v[198:199]
        v_pk_add_f32 v[200:201], v[200:201], v[202:203]
        v_pk_add_f32 v[196:197], v[196:197], v[200:201]
        v_mul_f32 v196, 0x3b000000, v196
        v_mul_f32 v197, 0x3b000000, v197
        v_fma_f32 v197, -v196, v196, v197
        v_max_f32 v197, 0, v197
        v_add_f32 v197, 0x3727c5ac, v197
        v_rsq_f32 v204, v197
        s_nop 0
        """)
        if scale: E(f"v_mul_f32 v204, {LOG2E:#x}, v204")
        E("v_mul_f32_e64 v206, -v196, v204")
    def norm(dst, src):
        for i in range(8):
            E(f"v_pk_fma_f32 v[{dst+2*i}:{dst+2*i+1}], v[{src+2*i}:{src+2*i+1}], v[204:205], v[206:207] op_sel_hi:[1,0,0]")
    def unpack(dst, src, n):
        for i in range(n):
            E(f"v_lshlrev_b32 v{dst+2*i}, 16, v{src+i}")
            E(f"v_and_b32 v{dst+2*i+1}, s{S_HI}, v{src+i}")
    def R(L):
        unpack(XF, X, 8)
        def mid1():
            if L == 0:
                E.vm(f"buffer_load_dword v{VXCC}, v{VP16}, {WSRD}, s51 offen sc1", 'xcc')
            unpack(YF, Y, 8)
        stats(XF, 0, mid1)
        stamp(f'R{L}s1')
        norm(T, XF)
        for i in range(8):
            E(f"v_pk_fma_f32 v[{XF+2*i}:{XF+2*i+1}], v[{T+2*i}:{T+2*i+1}], v[{YF+2*i}:{YF+2*i+1}], v[{XF+2*i}:{XF+2*i+1}]")
        M = 208
        for i in range(8):
            E(f"v_cvt_pk_bf16_f32 v{M+i}, v{XF+2*i}, v{XF+2*i+1}")
        sadd(S_T0, S_R, WS_XM); sadd(S_T1, S_R, WS_XM + 4096)
        E.vm(f"buffer_store_dwordx4 v[{M}:{M+3}], v{VR}, {WSRD}, s{S_T0} offen" + XSC, 'rst')
        E.vm(f"buffer_store_dwordx4 v[{M+4}:{M+7}], v{VR}, {WSRD}, s{S_T1} offen" + XSC, 'rst')
        stats(XF, 1, scale=True)
        norm(T, XF)
        N = 216
        for i in range(8):
            E(f"v_cvt_pk_bf16_f32 v{N+i}, v{T+2*i}, v{T+2*i+1}")
        sadd(S_T0, S_R, WS_XN); sadd(S_T1, S_R, WS_XN + 4096)
        E.vm(f"buffer_store_dwordx4 v[{N}:{N+3}], v{VR}, {WSRD}, s{S_T0} offen", 'rst')
        E.vm(f"buffer_store_dwordx4 v[{N+4}:{N+7}], v{VR}, {WSRD}, s{S_T1} offen", 'rst')
        stamp(f'R{L}st')
    def mode_decision():
        if True:
            E.wait_vm('xcc')
            ls = E.label('L_xccs'); lb = E.label('L_xccb'); ll = E.label('L_xccl')
            E(f"v_cmp_ne_u32 vcc, s{S_XCC}, v{VXCC}")
            if force_slow: E(f"s_branch {ls}")
            else: E(f"s_cbranch_vccnz {ls}")
            E(f"{lb}:")
            E.out_of_line(f"""
            {ls}:
            s_mov_b32 s{S_T3}, 0
            {ll}:
            buffer_load_dword v{VXCC}, v{VP16}, {WSRD}, s51 offen sc1
            s_add_u32 s{S_T3}, s{S_T3}, 1
            s_waitcnt vmcnt(0)
            v_cmp_ne_u32 vcc, s{S_XCC}, v{VXCC}
            {'s_branch ' + ll + 'x' if force_slow else ''}
            s_cbranch_vccz {lb}
            s_cmp_lt_u32 s{S_T3}, 48
            s_cbranch_scc1 {ll}
            {ll}x:
            s_branch L_k1_slow""")
    def Rpub(L):
        publish(S_FXNS, 0, 'rst')
        E("s_barrier")
        stamp(f'R{L}pub')

    def layer(L):
        cfg = LAYERS[L]; tau = cfg['tau']; slot = cfg['slot']
        O = lambda k, d: opt.get(f'{k}{L}', opt.get(k, d))
        G2 = 224; NS = 336; lastslot = NS - 1
        BUD = O('bud', 24); VGAP = O('vgap', 2)
        F = {}; cost = [0]*(NS + 64); vslots = set()
        for i in range(G2):
            if i + LA < G2: cost[i] += 4
            if i % 2 == 0: cost[i] += 4
            if i < 96 and i % 3 == 0 and i > 0: cost[i] += 4
        for i in range(G2, NS, 2): cost[i] += 4
        RANK = {'m': 0, 's': 1, 'v': 2}
        def at(i, f, c=4, k='v'): F.setdefault(i, ([], [], []))[RANK[k]].append(f); cost[i] += c
        last = {'k': 'm', 't': -1}
        def put(t, f, c=4, k='v', vm=False, chain=False):
            if vm: k = 'm'
            if chain:
                t = max(t, last['t'] + (1 if RANK[k] < RANK[last['k']] else 0))
            while cost[t] + c > BUD or (vm and any((t + d) in vslots for d in range(-VGAP + 1, VGAP))): t += 1
            if vm: vslots.add(t)
            at(t, f, c, k); last['k'] = k; last['t'] = t
            return t
        def stream(t, ops):
            first = True
            for (c, vm, f) in ops:
                t = put(t, f, c, 's', vm, chain=not first); first = False
            return t
        def T_(s): return lambda: E(s)
        def barrier(): E("s_barrier")
        poll_issue(VP16, S_FXNL, 0, f'pxn{L}')
        poll_check(VP16, S_FXNL, 0, f'pxn{L}')
        stamp(f'L{L}xnok')
        def xops(k):
            ops = []
            if k % 4 == 0: ops.append((4, False, lambda: sadd(S_XA, S_XNL, WS_XN + (k >> 2)*4096)))
            off = (k & 3)*1024
            ops.append((4, True, lambda: E.vm(f"buffer_load_dwordx4 v[{XR+4*k}:{XR+4*k+3}], v{VL16}, {WSRD}, s{S_XA} offen" + (f" offset:{off}" if off else "") + LSC, f'x{L}_{k}')))
            return ops
        n_up = O('nup', 5)
        for k in range(n_up):
            for (_, _, f) in xops(k): f()
        seq = []
        for k in range(32):
            for p in range(3): seq.append(('g1', p, k))
        for p in range(3, 7):
            for k in range(32): seq.append(('g1', p, k))
        accp = [0, 1, 2, 3, 0, 1, 2]
        def a_addr(p, k):
            s = slot[p]
            base = [VL16, VL16, VA1, VA1, VA2][s]
            off = (s & 1)*SLOT + k*1024 if s < 4 else k*1024
            return base, off
        def rd(i):
            _, p, k = seq[i]
            b, off = a_addr(p, k)
            r = RING + 4*(i % 8)
            E.ds(f"ds_read_b128 v[{r}:{r+3}], v{b} offset:{off}", f'a{L}_{i}')
        stA = [0, 1, 2]; stB = [3, 4, 5]; stC = [6]
        def blocks(tt, ps): return [(tt, rho, p) for p in ps for rho in range(4)]
        b1 = blocks(1, stB); nb1 = O('b1_first', 4)
        order = blocks(0, stA) + blocks(1, stA) + blocks(0, stB) + b1[:nb1] + blocks(0, stC) + b1[nb1:] + blocks(1, stC)
        assert len(order) == 56
        last0 = max(n for n, b in enumerate(order) if b[0] == 0)
        acc2 = {0: [ACC[0], ACC[1]], 1: [ACC[3], ACC[2]]}
        NH = 37
        def hreg(n):
            q = n % NH
            return ar(A_H + 4*q, 4) if q < 5 else vr(XR + 4*(q - 5), 4)
        def epilogue(p, o):
            c = ACC[accp[p]]
            for e in range(8):
                at(o + e, T_(f"v_exp_f32_e64 v{c+e}, -v{c+e}"), 8)
                at(o + e + 1, T_(f"v_add_f32 v{c+e}, 1.0, v{c+e}"))
                at(o + 8 + e, T_(f"v_rcp_f32 v{c+e}, v{c+e}"), 8)
                at(o + 9 + e, T_(f"v_mul_f32 v{c+e}, v{c+e}, v{c+8+e}"))
        def epilogue2(p, o):
            c = ACC[accp[p]]
            t = 0
            for k in range(4):
                t = put(max(t, o + 11 + 2*k), T_(f"v_cvt_pk_bf16_f32 v{c+8+k}, v{c+2*k}, v{c+2*k+1}"))
            stage = 'A' if p < 3 else ('B' if p < 6 else 'C')
            put(o + 10, T_(f"s_add_u32 s{S_HS[p & 1]}, s{S_HST}, {WS_H + tau[p]*4096}"), k='s')
            return put(t + 1, lambda: E.vm(f"buffer_store_dwordx4 v[{c+8}:{c+11}], v{VL16}, {WSRD}, s{S_HS[p & 1]} offen" + (' sc1' if stage in opt.get(f'hsc{L}', '') else ''), f'h{stage}{L}'), vm=True)
        eo = [99, 115, 131, 147, 163, 196, 228]
        for p in range(7): epilogue(p, eo[p])
        est = [epilogue2(p, eo[p]) for p in range(7)]
        assert est[0] < 126 and est[1] < 158 and est[2] < 190 and est[5] < 222 and est[6] < 248, est
        at(121, lambda: (E.wait_vm(f'w4{L}'), barrier()), 8, 's')
        at(96, barrier, 4, 's')
        at(153, lambda: (E.wait_vm(f'w5{L}'), barrier()), 8, 's')
        at(185, lambda: (E.wait_vm(f'w6{L}'), barrier()), 8, 's')
        t = 0
        for k in range(n_up, 32):
            t = stream(max(t + (1 if k % 4 == 0 and k > n_up else 0), O('xsp', 2)*(k - n_up)), xops(k))
        t = stream(t + 1, dma_stream(tau[4], slot[4], f'w4{L}'))
        w4end = t
        t = stream(97, dma_stream(tau[5], slot[5], f'w5{L}'))
        w5end = t
        t = stream(t + 1, dma_stream(tau[6], slot[6], f'w6{L}'))
        w6end = t
        assert w4end < 108 and w5end < 140 and w6end < 172, (w4end, w5end, w6end)
        XM0 = 20; XM1 = 24
        def xm_ops(tt):
            return [(4, False, lambda: sadd(S_XA, S_XML, WS_XM + tt*32768)),
                    (4, True, lambda: E.vm(f"buffer_load_dwordx4 v[{XM0+4*tt}:{XM0+4*tt+3}], v{VL16}, {WSRD}, s{S_XA} offen" + LSC, f'xm{L}'))]
        stream(stream(O('xm_at', 152), xm_ops(0)) + 1, xm_ops(1))
        fh = 0
        pub = {}; chk = {}
        for (st_, k, e) in (('A', 0, est[2]), ('B', 1, est[5]), ('C', 2, est[6])):
            tp = put(O('pub' + st_, e + 12), lambda st_=st_: E.wait_vm(f'h{st_}{L}'), k='s')
            tp = put(tp, lambda st_=st_, k=k: publish(S_FHS, fh + 256*k, f'h{st_}{L}', wait=False), 4, 'm', chain=True)
            tq = put(O('poll' + st_, tp + 8), lambda st_=st_, k=k: poll_issue(VP8, S_FHL, fh + 256*k, f'p{st_}{L}'), 4, 'm')
            tc = put(O('chk' + st_, tq + (12 if st_ == 'A' else 14)), lambda st_=st_: E.wait_vm(f'p{st_}{L}'), k='s')
            tc = put(tc, lambda st_=st_, k=k: poll_check(VP8, S_FHL, fh + 256*k, f'p{st_}{L}', wait=False), 8, 'v', chain=True)
            pub[st_] = tp; chk[st_] = tc
        hslot = {}
        for n0 in range(0, 56, 4):
            tt, _, p = order[n0]
            sreg = S_HA[(n0 >> 2) & 1]
            rdy = chk['A' if p < 3 else 'B' if p < 6 else 'C'] + 1
            prev = max([hslot[m] for m in range(max(0, n0 - 8), max(0, n0 - 4))], default=0)
            ta = put(max(prev, rdy - 3), lambda tt=tt, p=p, sreg=sreg: E(f"s_add_u32 s{sreg}, s{S_HLD}, {WS_H + tt*114688 + tau[p]*4096}"), k='s') + 1
            for n in range(n0, n0 + 4):
                assert order[n][0] == tt and order[n][2] == p and order[n][1] == n - n0
                q = n % NH
                if n < NH: free = 0 if q < 5 else 192 + (q - 5) + 1
                else: free = G2 + 2*(n - NH) + 2
                off = (n - n0)*1024
                hslot[n] = put(max(rdy, free, ta), lambda n=n, sreg=sreg, off=off: E.vm(f"buffer_load_dwordx4 {hreg(n)}, v{VL16}, {WSRD}, s{sreg} offen" + (f" offset:{off}" if off else "") + LSC, f'h{L}_{n}'), vm=True)
                assert hslot[n] < G2 + 2*n - 6, (L, n, hslot[n])
        if opt.get('verbose'): print('L', L, 'est', est, 'w', w4end, w5end, w6end, 'pub', pub, 'chk', chk, 'h', [hslot[n] for n in range(56)])
        kseq = []
        for (tt, rho, p) in order:
            kp = rho*7 + tau[p]
            if kp not in kseq: kseq.append(kp)
        if L == 0:
            def wd_setup():
                E(f"""
                s_lshl_b32 s30, s{S_J}, 2
                s_add_u32 s30, s30, s{S_W}
                s_mul_i32 s30, s30, 57344
                s_add_u32 s30, s30, {WS_WDF}
                s_lshr_b32 s25, s{S_W}, 1
                s_lshl_b32 s25, s25, 8          ; 16*(w>>1)*16
                v_xor_b32 v22, s25, v{VL16}
                s_and_b32 s25, s{S_W}, 1
                s_lshl_b32 s25, s25, 10
                v_add_u32 v28, s25, v22
                s_xor_b32 s25, s25, 1024
                v_add_u32 v29, s25, v22
                """)
            wd_setup()
            t = O('wd_at', 70)
            for kp in kseq:
                at(t - 1, lambda kp=kp: E(f"s_add_u32 s26, s30, {kp*2048}"), 0, 's')
                for pd in range(2):
                    while t in vslots: t += 1
                    at(t, lambda kp=kp, pd=pd: E.vm(f"buffer_load_dwordx4 {ar(A_WD + 8*kp + 4*pd, 4)}, v{28+pd}, {WSRD}, s26 offen", f'wd{kp}'), 0, 'm'); t += O('wd_sp', 2)
            if opt.get('verbose'): print('last Wd load at', t)
        RB = RING
        def red_write_ops(tt):
            ops = []
            for m in (1, 3, 2):
                pd, g = m & 1, m >> 1
                src = acc2[tt][pd] + 8*g
                for hlf in range(2):
                    ops.append(lambda m=m, src=src, hlf=hlf: E.ds(f"ds_write_b128 v{VRW[m-1]}, v[{src+4*hlf}:{src+4*hlf+3}] offset:{1024*hlf}", f'rw{L}{tt}'))
            return ops
        def red_read_ops(tt):
            ops = []
            for m in range(3):
                for hlf in range(2):
                    ops.append(lambda m=m, hlf=hlf: E.ds(f"ds_read_b128 v[{RB+8*m+4*hlf}:{RB+8*m+4*hlf+3}], v{VRR} offset:{2048*m+1024*hlf}", f'rr{L}{tt}'))
            return ops
        def out_store(tt, src):
            if L == 0:
                sadd(S_T0, S_XML, WS_XN + tt*32768)
                E.vm(f"buffer_store_dwordx4 v[{src}:{src+3}], v{VL16}, {WSRD}, s{S_T0} offen", f'x2{tt}')
            else:
                sadd(S_T0, 30, tt*32768)
                E.vm(f"buffer_store_dwordx4 v[{src}:{src+3}], v28, s[{S_OUT}:{S_OUT+3}], s{S_T0} offen" + (' sc1' if opt.get('outsc') else ''), f'o2{tt}')
        if L == 1:
            def out_setup():
                return [T_(x) for x in f"""v_and_b32 v28, 31, v0
                v_lshlrev_b32 v28, 10, v28
                v_bfe_u32 v29, v0, 5, 1
                v_lshl_add_u32 v28, v29, 4, v28
                s_lshl_b32 s30, s{S_C}, 17
                s_lshl_b32 s25, s{S_TH}, 16
                s_add_u32 s30, s30, s25
                s_and_b32 s25, s{S_W}, 1
                s_lshl_b32 s25, s25, 1
                s_lshr_b32 s26, s{S_W}, 1
                s_add_u32 s25, s25, s26
                s_lshl_b32 s26, s{S_J}, 2
                s_add_u32 s25, s25, s26
                s_lshl_b32 s25, s25, 5
                s_add_u32 s30, s30, s25""".split('\n')]
            t = 72
            for f in out_setup(): t = put(t, f, k='v', chain=True)
        XU = RB + 24
        t = put(G2 + 26, lambda: E.wait_vm(f'xm{L}'), k='s')
        for e in range(4):
            t = put(t, T_(f"v_lshlrev_b32 v{XU+2*e}, 16, v{XM1+e}"))
            t = put(t, T_(f"v_and_b32 v{XU+1+2*e}, s{S_HI}, v{XM1+e}"))
        m0_last = G2 + 2*last0 + 1
        t = m0_last + 5
        for f in red_write_ops(0): t = put(t, f, 8, 'm')
        t = put(t + 1, lambda: (E.wait_ds(f'rw{L}0'), barrier()), 8, 's')
        t += 1
        for f in red_read_ops(0): t = put(t, f, 4, 'm')
        own = acc2[0][0]
        t = put(t + 3, lambda: E.wait_ds(f'rr{L}0'), k='s')
        tb = t
        for e in range(8): t = put(t, T_(f"v_add_f32 v{RB+e}, v{RB+e}, v{RB+8+e}"))
        for e in range(8): t = put(t, T_(f"v_add_f32 v{own+e}, v{own+e}, v{RB+16+e}"))
        for e in range(4):
            t = put(t, T_(f"v_lshlrev_b32 v{RB+8+2*e}, 16, v{XM0+e}"))
            t = put(t, T_(f"v_and_b32 v{RB+9+2*e}, s{S_HI}, v{XM0+e}"))
        for e in range(8): t = put(t, T_(f"v_add_f32 v{own+e}, v{own+e}, v{RB+e}"))
        for e in range(8): t = put(t, T_(f"v_fma_f32 v{own+e}, v{own+e}, s{S_LN2}, v{RB+8+e}"))
        for e in range(4): t = put(t, T_(f"v_cvt_pk_bf16_f32 v{RB+e}, v{own+2*e}, v{own+2*e+1}"))
        t = put(t + 1, lambda: out_store(0, RB), 8, 'm')
        if opt.get('verbose'): print('tt0 reduction done at', t)
        put(tb + 1, barrier, k='s')
        E.wait_vm(f'x{L}_0')
        stamp(f'L{L}g1')
        for i in range(LA): rd(i)
        def emit_fill(i, mid=None):
            fm, fs, fv = F.pop(i, ([], [], []))
            if mid: mid()
            for f in fm + fs + fv: f()
        for i in range(224):
            _, p, k = seq[i]
            stamp(f'L{L}s{i}')
            if p < 3 and (i % 3) == 0 and k > 0: E.wait_vm(f'x{L}_{k}')
            if i % 2 == 0: E.wait_ds(f'a{L}_{i+1}')
            r = RING + 4*(i % 8)
            c = ACC[accp[p]]
            E(f"v_mfma_f32_32x32x16_bf16 v[{c}:{c+15}], {vr(r, 4)}, v[{XR+4*k}:{XR+4*k+3}], {'0' if k == 0 else f'v[{c}:{c+15}]'}")
            emit_fill(i, (lambda: rd(i + LA)) if i + LA < 224 else None)
        seen_kp = set()
        for n in range(56):
            tt, rho, p = order[n]
            kp = rho*7 + tau[p]
            firstb = not any(o[0] == tt for o in order[:n])
            for ii, pd in enumerate((1, 0) if n in (last0, 55) else (0, 1)):
                i = G2 + 2*n + ii
                stamp(f'L{L}s{i}')
                if ii == 0:
                    E.wait_vm(f'h{L}_{n}')
                    if L == 0 and kp not in seen_kp: E.wait_vm(f'wd{kp}'); seen_kp.add(kp)
                c = acc2[tt][pd]
                E(f"v_mfma_f32_32x32x16_bf16 v[{c}:{c+15}], {ar(A_WD + 8*kp + 4*pd, 4)}, {hreg(n)}, {'0' if firstb else f'v[{c}:{c+15}]'}")
                emit_fill(i)
        stamp(f'L{L}g2end')
        for i in sorted(F.keys()):
            assert i > lastslot, i
            emit_fill(i)
        for f in red_write_ops(1): f()
        E.wait_ds(f'rw{L}1'); E("s_barrier")
        for f in red_read_ops(1): f()
        own = acc2[1][0]
        E.wait_ds(f'rr{L}1')
        for e in range(0, 8, 2): E(f"v_pk_add_f32 v[{RB+e}:{RB+e+1}], v[{RB+e}:{RB+e+1}], v[{RB+8+e}:{RB+9+e}]")
        for e in range(0, 8, 2): E(f"v_pk_add_f32 v[{own+e}:{own+e+1}], v[{own+e}:{own+e+1}], v[{RB+16+e}:{RB+17+e}]")
        for e in range(0, 8, 2): E(f"v_pk_add_f32 v[{own+e}:{own+e+1}], v[{own+e}:{own+e+1}], v[{RB+e}:{RB+e+1}]")
        for e in range(0, 8, 2): E(f"v_pk_fma_f32 v[{own+e}:{own+e+1}], v[{own+e}:{own+e+1}], s[{S_LN2}:{S_LN2+1}], v[{XU+e}:{XU+e+1}]")
        for e in range(4): E(f"v_cvt_pk_bf16_f32 v{RB+e}, v{own+2*e}, v{own+2*e+1}")
        out_store(1, RB)
        stamp(f'L{L}st')
        if L == 0:
            publish(S_FX2S, 0, 'x21')
            stamp('x2pub')

    stamp('issued')
    if stamps and 'q' in enabled:
        E.wait_vm('q'); stamp('q')
    E.wait_vm('y')
    stamp('qy')
    if stamps and 'pf' in enabled:
        E.wait_vm('pf'); stamp('pf')
    if stamps and 'w1a' in enabled:
        E.wait_vm('w1a'); stamp('w1a')
    for i in range(8): E(f"v_accvgpr_write_b32 a{A_Y+i}, v{Y+i}")
    for p in range(3): dma_now(L1['tau'][p], L1['slot'][p], 'w1b', range(4, 8))
    dma_now(L1['tau'][3], L1['slot'][3], 'w1c')
    R(0)
    mode_decision()
    def rest():
        Rpub(0)
        layer(0)
        poll_issue(VP8, S_FX2L, 0, 'px2')
        poll_check(VP8, S_FX2L, 0, 'px2')
        for r_, c_ in ((S_FXNS, 16*256), (S_FXNL, 16*256), (S_FHS, 16*1024), (S_FHL, 16*1024)): E(f"s_add_u32 s{r_}, s{r_}, {c_}")
        stamp('x2ok')
        sadd(S_T0, S_R, WS_XN); sadd(S_T1, S_R, WS_XN + 4096)
        E.vm(f"buffer_load_dwordx4 v[{X}:{X+3}], v{VR}, {WSRD}, s{S_T0} offen" + LSC, 'x2l')
        E.vm(f"buffer_load_dwordx4 v[{X+4}:{X+7}], v{VR}, {WSRD}, s{S_T1} offen" + LSC, 'x2l')
        for i in range(8): E(f"v_accvgpr_read_b32 v{Y+i}, a{A_Y+i}")
        E.wait_vm('x2l')
        R(1)
        Rpub(1)
        layer(1)
        E.wait_vm_all()
    Efast = E
    Es = Emit(); Es.vmq = list(E.vmq); Es.dsq = list(E.dsq); Es.seen = set(E.seen); Es.nl = 100000
    E = Es; MODE['slow'] = True
    E("L_k1_slow:")
    E(f"s_mov_b32 s{S_EXP}, 2")
    rest()
    E("s_branch L_k1_fin")
    E = Efast; MODE['slow'] = False
    rest()
    E("L_k1_fin:")
    if stamps:
        stamp('end')
        E("s_memrealtime s[2:3]".replace('s[2:3]', 's[24:25]'))
        E(f"""
        s_waitcnt lgkmcnt(0)
        s_cmp_lg_u32 s{S_W}, 0
        s_cbranch_scc1 L_k1_end
        """)
        n = len(names)
        for i in range(1, n): E(f"s_sub_u32 s{SREG[i]}, s{SREG[i]}, s{SREG[0]}")
        E("v_mov_b32 v64, s100")
        for i in range(1, n): E(f"v_mov_b32 v{64+i}, s{SREG[i]}")
        for i in range(n, 30): E(f"v_mov_b32 v{64+i}, 0")
        E(f"v_mov_b32 v94, s{S_EXP}\nv_mov_b32 v95, s24")
        E(f"""
        s_lshl_b32 s25, s2, 7
        s_add_u32 s25, s25, {WS_STAMP + 0x10000}
        """)
        for q in range(8):
            E(f"buffer_store_dwordx4 v[{64+4*q}:{67+4*q}], v{VF0}, {WSRD}, s25 offen offset:{16*q}")
        E("s_waitcnt vmcnt(0)")
        if opt.get('dbg'):
            E(f"""
            s_load_dwordx2 s[26:27], s[0:1], 88
            s_lshl_b32 s25, s2, 6
            s_add_u32 s25, s25, {WS_STAMP}
            buffer_load_dword v70, v{VF0}, {WSRD}, s25 offen
            buffer_load_dword v71, v{VF0}, {WSRD}, s25 offen offset:52
            s_waitcnt vmcnt(0) lgkmcnt(0)
            v_not_b32 v72, v70
            v_not_b32 v73, v71
            v_not_b32 v74, v64
            v_not_b32 v75, v95
            v_mov_b32 v76, 0
            v_cmp_eq_u32 vcc, 0, v0
            s_and_saveexec_b64 s[28:29], vcc
            global_atomic_umax v76, v72, s[26:27]
            global_atomic_umax v76, v70, s[26:27] offset:4
            global_atomic_umax v76, v73, s[26:27] offset:8
            global_atomic_umax v76, v71, s[26:27] offset:12
            global_atomic_umax v76, v74, s[26:27] offset:16
            global_atomic_umax v76, v64, s[26:27] offset:20
            global_atomic_umax v76, v75, s[26:27] offset:24
            global_atomic_umax v76, v95, s[26:27] offset:28
            s_waitcnt vmcnt(0)
            """)
        print('k1 stamps:', ','.join(names))
        open('last_stamps.txt', 'w').write(','.join(names))
    E("L_k1_end:")
    E("s_endpgm")
    main = hazard_pass(E.L[1:], verbose=opt.get('verbose', False))
    tail = list(E.tail) + ['L_k1_codeend:'] + hazard_pass(Es.L) + list(Es.tail)
    txt = E.L[0] + '\n' + '\n'.join(('    ' + l if not l.endswith(':') else l) for l in main) + '\n'
    txt += '\n'.join(('    ' + l if not l.endswith(':') else l) for l in tail) + '\n'
    txt += "    s_endpgm\n"
    return txt + kd(name, 512, 102, accum=256)

if __name__ == '__main__':
    from common import TARGET, KERNARG_COMMENT
    import k0
    st = 'stamps' in sys.argv; slow = 'slow' in sys.argv
    opt = {'verbose': 'v' in sys.argv}
    for a in sys.argv[2:]:
        if '=' in a:
            k_, v_ = a.split('=')
            opt[k_] = v_.split(',') if k_ == 'st' else (v_ if k_.startswith('hsc') else int(v_))
    txt = KERNARG_COMMENT
    txt += f"; @launch kernel=k0_kernel grid=(256,1,1) block=(256,1,1) lds={k0.K0_LDS}\n"
    txt += f"; @launch kernel=k1_kernel grid=(256,1,1) block=(256,1,1) lds={K1_LDS}\n"
    txt += TARGET + k0.gen_k0(stamps=('k0st' in sys.argv), force_slow=slow, pf_lines=opt.get('k0pf', 200)) + gen_k1(stamps=st, force_slow=slow, opt=opt)
    txt += ".text\n.fill 64, 4, 0xbf800000\n"
    open(sys.argv[1], 'w').write(txt)
```

```python
import sys
sys.path.insert(0, 'gen')
from emit import *
from layout import *
from common import head, kd

K1_LDS = 163840
SLOT = 32768
SCR = SLOT
STATS = SLOT + 24576
OOB = 0x80000000
VL16, VA1, VA2, VP8, VP16, VF0, VR = 1, 2, 3, 4, 5, 6, 7
VSTW, VSTR = 11, 12
VRW = [13, 14, 15]; VRR = 16
VPOLL, VONE, VXCC = 17, 18, 19
RING = 32
ACC = [64, 80, 96, 112]
XR = 128
A_WD = 0; A_Y = 224; A_T4 = 232
S_WS = 4; S_Q = 8; S_OUT = 12
S_W, S_ROLE, S_C, S_TH, S_J, S_EXP, S_XCC, S_W1K = 16, 17, 18, 19, 20, 21, 22, 23
S_R, S_XNL, S_HST, S_HLD, S_XML, S_W1, S_FXNS, S_FXNL, S_FHS, S_FHL, S_FX2S, S_FX2L = range(34, 46)
S_T0, S_T1, S_T2, S_T3, S_HI = 46, 47, 48, 49, 31
S_LN2 = 98
S_DA, S_XA = 50, 3
S_HA = [96, 97]; S_HS = [94, 95]
LA = 6
def vr(b, n=1): return f"v{b}" if n == 1 else f"v[{b}:{b+n-1}]"
def ar(b, n=1): return f"a{b}" if n == 1 else f"a[{b}:{b+n-1}]"

LAYERS = [
    dict(tau=[0, 1, 2, 3, 4, 5, 6], slot=[2, 3, 4, 0, 1, 2, 3]),
    dict(tau=[5, 6, 2, 3, 4, 0, 1], slot=[2, 3, 4, 0, 1, 2, 3]),
]
LOG2E = 0x3fb8aa3b; LN2 = 0x3f317218
A_H = 236

def gen_k1(name='k1_kernel', stamps=False, force_slow=False, opt=None):
    opt = opt or {}
    E = Emit()
    LSC = ' sc1' if opt.get('lsc', 1) else ''
    XSC = ' sc1' if opt.get('xmsc') else ''
    SREG = list(range(52, 94, 2)); names = []
    DEF = ['start', 'qy', 'R0s1', 'R0st', 'R0pub', 'L0xnok', 'L0g1', 'L0s96', 'L0s224', 'L0g2end', 'L0st', 'x2ok', 'R1st', 'R1pub', 'L1xnok', 'L1g1', 'L1s96', 'L1s224', 'L1g2end', 'L1st', 'end']
    enabled = set(opt.get('st', DEF)) | {'start', 'end'}
    def stamp(nm):
        if stamps and nm in enabled and not MODE['slow']:
            r = SREG[len(names)]; names.append(nm)
            E(f"s_memtime s[{r}:{r+1}]")
    WSRD = f"s[{S_WS}:{S_WS+3}]"
    MODE = {'slow': False}

    def sadd(dst, base, const):
        if const == 0: E(f"s_mov_b32 s{dst}, s{base}")
        else: E(f"s_add_u32 s{dst}, s{base}, {const}")
    def dma_stream(tau, slot, tag, ilist=range(8)):
        ops = []; cur = None
        for i in ilist:
            if cur != (i >> 2):
                cur = i >> 2
                ops.append((4, False, lambda g=cur: E(f"s_add_u32 m0, s{S_W1K}, {slot*SLOT + g*4096}")))
                ops.append((4, False, lambda g=cur: sadd(S_DA, S_W1, tau*32768 + g*4096)))
            off = (i & 3)*1024
            ops.append((4, True, lambda off=off: E.vm(f"buffer_load_dwordx4 v{VL16}, {WSRD}, s{S_DA} offen" + (f" offset:{off}" if off else "") + " lds", tag)))
        return ops
    def dma_now(tau, slot, tag, ilist=range(8)):
        for (_, _, f) in dma_stream(tau, slot, tag, ilist): f()
    def publish(sbase, const, tag, wait=True):
        o = f" offset:{const}" if const else ""
        if MODE['slow']:
            E.wait_vm_all()
            E("buffer_wbl2 sc1\ns_waitcnt vmcnt(0)")
            E.vm(f"buffer_store_dword v{VONE}, v{VF0}, {WSRD}, s{sbase} offen{o} sc1", None)
            return
        if wait: E.wait_vm(tag)
        E.vm(f"buffer_store_dword v{VONE}, v{VF0}, {WSRD}, s{sbase} offen{o}", None)
    def poll_issue(voff, sbase, const, tag, dst=VPOLL):
        o = f" offset:{const}" if const else ""
        if MODE['slow']: E.seen.add(tag); return
        E.vm(f"buffer_load_dword v{dst}, v{voff}, {WSRD}, s{sbase} offen{o} sc1", tag)
    def poll_check(voff, sbase, const, tag, dst=VPOLL, wait=True):
        o = f" offset:{const}" if const else ""
        ls = E.label('L_polls'); lb = E.label('L_pollb'); ll = E.label('L_polll')
        if MODE['slow']:
            E.wait_vm_all()
            E(f"""
            s_mov_b32 s{S_T3}, 0
            {ll}:
            buffer_inv sc1
            s_waitcnt vmcnt(0)
            buffer_load_dword v{dst}, v{voff}, {WSRD}, s{sbase} offen{o} sc1
            s_add_u32 s{S_T3}, s{S_T3}, 1
            s_waitcnt vmcnt(0)
            v_cmp_ne_u32 vcc, 1, v{dst}
            s_cmp_gt_u32 s{S_T3}, 0x4000
            s_cbranch_scc1 {lb}
            s_cbranch_vccnz {ll}
            {lb}:
            buffer_inv sc1
            s_waitcnt vmcnt(0)""")
            return
        if wait: E.wait_vm(tag)
        E(f"v_cmp_ne_u32 vcc, 1, v{dst}")
        E(f"s_cbranch_vccnz {ls}")
        E(f"{lb}:")
        E.out_of_line(f"""
        {ls}:
        s_mov_b32 s{S_T3}, 0
        {ll}:
        buffer_load_dword v{dst}, v{voff}, {WSRD}, s{sbase} offen{o} sc1
        s_add_u32 s{S_T3}, s{S_T3}, 1
        s_waitcnt vmcnt(0)
        v_cmp_ne_u32 vcc, 1, v{dst}
        s_cbranch_vccz {lb}
        s_cmp_lt_u32 s{S_T3}, 0x4000
        s_cbranch_scc1 {ll}
        s_branch {lb}""")

    E.L.append(head(name).rstrip())
    E(f"""
    s_cmp_ge_u32 s2, 256
    s_cbranch_scc1 L_k1_end
    s_load_dwordx2 s[24:25], s[0:1], 0
    s_load_dwordx2 s[26:27], s[0:1], 80
    s_load_dwordx2 s[28:29], s[0:1], 96
    """)
    if stamps: E("s_memrealtime s[100:101]")
    stamp('start')
    E(f"""
    s_getreg_b32 s{S_XCC}, hwreg(HW_REG_XCC_ID, 0, 4)
    s_getpc_b64 s[32:33]
    L_k1_pc:
    v_lshrrev_b32 v2, 6, v0
    v_and_b32 v8, 63, v0
    s_lshr_b32 s30, s2, 3
    v_readfirstlane_b32 s{S_W}, v2
    s_and_b32 s{S_ROLE}, s30, 15
    s_lshr_b32 s30, s30, 4
    s_lshl_b32 s30, s30, 3
    s_and_b32 s{S_C}, s2, 7
    s_add_u32 s{S_C}, s{S_C}, s30
    s_lshr_b32 s{S_TH}, s{S_ROLE}, 3
    s_and_b32 s{S_J}, s{S_ROLE}, 7
    s_lshl_b32 s{S_W1K}, s{S_W}, 13
    v_lshlrev_b32 v{VL16}, 4, v8
    v_and_b32 v20, 7, v8                     ; tok
    v_bfe_u32 v21, v8, 3, 1                  ; hi
    v_lshrrev_b32 v22, 4, v8                 ; ks
    v_lshlrev_b32 v9, 10, v20
    v_lshl_add_u32 v9, v22, 5, v9
    v_lshl_add_u32 v9, v21, 4, v9
    v_lshlrev_b32 v10, 16, v22
    v_lshl_add_u32 v10, v21, 15, v10
    v_lshl_add_u32 v10, v20, 2, v10
    s_lshl_b32 s30, s{S_C}, 7
    s_lshl_b32 s{S_T0}, s{S_ROLE}, 3
    s_add_u32 s30, s30, s{S_T0}              ; T0
    s_lshl_b32 s{S_T0}, s30, 10
    s_lshl_b32 s{S_T1}, s{S_W}, 8
    s_add_u32 s{S_T0}, s{S_T0}, s{S_T1}      ; q soffset
    s_lshl_b32 s{S_T1}, s30, 2
    s_lshl_b32 s{S_T2}, s{S_W}, 19
    s_add_u32 s{S_T1}, s{S_T1}, s{S_T2}
    s_add_u32 s{S_T1}, s{S_T1}, {WS_Y2}      ; Y soffset
    s_mul_i32 s{S_W1}, s{S_ROLE}, 229376
    s_add_u32 s{S_W1}, s{S_W1}, s{S_W1K}
    s_add_u32 s{S_W1}, s{S_W1}, {WS_W1F}
    v_lshlrev_b32 v23, 6, v0
    v_min_u32 v24, L_k1_codeend-L_k1_pc-64, v23
    v_add_u32 v23, 16384, v23
    v_min_u32 v23, L_k1_codeend-L_k1_pc-64, v23
    s_waitcnt lgkmcnt(0)
    """)
    stamp('karg')
    E(f"""
    s_mov_b32 s{S_Q}, s24
    s_and_b32 s{S_Q+1}, s25, 0xffff
    s_mov_b32 s{S_Q+2}, 2097152
    s_mov_b32 s{S_Q+3}, 0x20000
    s_mov_b32 s{S_WS}, s28
    s_and_b32 s{S_WS+1}, s29, 0xffff
    s_mov_b32 s{S_WS+2}, {WS_SRD_BYTES}
    s_mov_b32 s{S_WS+3}, 0x20000
    """)
    X, Y = 128, 136
    E.vm(f"buffer_load_dwordx4 v[{X}:{X+3}], v9, s[{S_Q}:{S_Q+3}], s{S_T0} offen", 'q')
    E.vm(f"buffer_load_dwordx4 v[{X+4}:{X+7}], v9, s[{S_Q}:{S_Q+3}], s{S_T0} offen offset:128", 'q')
    for c2 in range(2):
        for i in range(4):
            E.vm(f"buffer_load_dword v{Y+4*c2+i}, v10, {WSRD}, s{S_T1} offen", 'y')
            if (c2, i) != (1, 3):
                E(f"s_add_u32 s{S_T1}, s{S_T1}, {8192 if i < 3 else 32*8192 - 3*8192}")
    E.vm("global_load_dword v25, v24, s[32:33]", 'pf')
    E.vm("global_load_dword v26, v23, s[32:33]", 'pf')
    L1 = LAYERS[0]
    for p in range(3): dma_now(L1['tau'][p], L1['slot'][p], 'w1a', range(4))
    E(f"""
    s_mov_b32 s{S_OUT}, s26
    s_and_b32 s{S_OUT+1}, s27, 0xffff
    s_mov_b32 s{S_OUT+2}, 2097152
    s_mov_b32 s{S_OUT+3}, 0x20000
    s_mov_b32 s{S_HI}, 0xffff0000
    s_mov_b32 s{S_LN2}, {LN2:#x}
    s_mov_b32 s{S_LN2+1}, {LN2:#x}
    s_mov_b32 s{S_EXP}, 1
    s_and_b32 s{S_XCC}, s{S_XCC}, 7
    s_or_b32 s{S_XCC}, s{S_XCC}, 0x10
    v_add_u32 v{VA1}, 65536, v{VL16}
    v_add_u32 v{VA2}, 131072, v{VL16}
    v_lshlrev_b32 v{VP8}, 2, v20
    v_and_b32 v{VP16}, 15, v8
    v_lshlrev_b32 v{VP16}, 2, v{VP16}
    v_mov_b32 v{VF0}, {OOB}
    v_cmp_eq_u32 vcc, 0, v8
    v_mov_b32 v{VONE}, 1
    s_lshr_b32 s30, s{S_ROLE}, 2             ; tt_r
    s_and_b32 s24, s{S_ROLE}, 3
    v_cndmask_b32 v{VF0}, v{VF0}, 0, vcc
    """.replace(f"v_cndmask_b32 v{VF0}, v{VF0}, 0, vcc", f"v_mov_b32 v27, 0\nv_cndmask_b32 v{VF0}, v{VF0}, v27, vcc"))
    E(f"""
    s_lshl_b32 s25, s24, 7
    v_lshlrev_b32 v{VR}, 10, v22
    v_lshl_add_u32 v{VR}, v21, 9, v{VR}
    v_lshl_add_u32 v{VR}, v20, 4, v{VR}
    v_add_u32 v{VR}, s25, v{VR}
    ; stats addresses
    v_lshlrev_b32 v{VSTR}, 5, v20
    v_add_u32 v{VSTR}, {STATS}, v{VSTR}
    v_and_b32 v27, 1, v22
    v_lshl_add_u32 v{VSTW}, v27, 2, v{VSTR}
    s_lshl_b32 s25, s{S_W}, 3
    v_add_u32 v{VSTW}, s25, v{VSTW}
    ; bases
    s_lshl_b32 s25, s{S_C}, 17               ; c*131072
    s_lshl_b32 s26, s30, 15
    s_add_u32 s{S_R}, s25, s26
    s_lshl_b32 s26, s{S_W}, 13
    s_add_u32 s{S_R}, s{S_R}, s26            ; c*131072 + tt_r*32768 + w*8192
    s_lshl_b32 s26, s{S_W}, 15
    s_add_u32 s{S_XNL}, s25, s26             ; c*131072 + w*32768
    s_lshl_b32 s26, s{S_C}, 2
    s_add_u32 s27, s26, s{S_W}
    s_mul_i32 s27, s27, 114688
    s_lshr_b32 s28, s{S_ROLE}, 2
    s_mul_i32 s28, s28, 28
    s_and_b32 s29, s{S_ROLE}, 3
    s_add_u32 s28, s28, s29
    s_lshl_b32 s28, s28, 10
    s_add_u32 s{S_HST}, s27, s28
    s_lshl_b32 s27, s{S_TH}, 1
    s_add_u32 s27, s27, s26
    s_mul_i32 s27, s27, 114688
    s_mul_i32 s28, s{S_W}, 28672
    s_add_u32 s{S_HLD}, s27, s28             ; (4c+2th)*114688 + 28w*1024
    s_and_b32 s26, s{S_W}, 1
    s_lshl_b32 s26, s26, 1
    s_lshr_b32 s27, s{S_W}, 1
    s_add_u32 s26, s26, s27
    s_lshl_b32 s27, s{S_J}, 2
    s_add_u32 s26, s26, s27                  ; kappa_o = 4j + 2(w&1) + (w>>1)
    s_lshl_b32 s27, s26, 10
    s_lshl_b32 s28, s{S_TH}, 16
    s_add_u32 s27, s27, s28
    s_add_u32 s{S_XML}, s27, s25
    ; flags
    s_lshl_b32 s25, s{S_C}, 8
    s_lshl_b32 s27, s30, 6
    s_add_u32 s27, s27, s25
    s_lshl_b32 s28, s24, 4
    s_add_u32 s27, s27, s28
    s_lshl_b32 s28, s{S_W}, 2
    s_add_u32 s{S_FXNS}, s27, s28
    s_lshl_b32 s27, s{S_W}, 6
    s_add_u32 s{S_FXNL}, s25, s27            ; c*256 + w*64
    s_lshl_b32 s25, s{S_C}, 10
    s_lshr_b32 s27, s{S_W}, 1
    s_lshl_b32 s27, s27, 7
    s_add_u32 s27, s27, s25
    s_lshl_b32 s29, s{S_ROLE}, 3
    s_add_u32 s27, s27, s29
    s_and_b32 s29, s{S_W}, 1
    s_lshl_b32 s29, s29, 2
    s_add_u32 s{S_FHS}, s27, s29             ; c*1024 + (w>>1)*128 + role*8 + (w&1)*4
    s_lshl_b32 s27, s{S_TH}, 7
    s_add_u32 s27, s27, s25
    s_lshl_b32 s29, s{S_W}, 5
    s_add_u32 s{S_FHL}, s27, s29             ; c*1024 + th*128 + w*32
    s_lshl_b32 s25, s{S_C}, 9
    s_lshl_b32 s27, s{S_TH}, 7
    s_add_u32 s27, s27, s25
    s_lshl_b32 s29, s{S_J}, 4
    s_add_u32 s27, s27, s29
    s_add_u32 s{S_FX2S}, s27, s28            ; c*512 + th*128 + j*16 + w*4
    s_lshr_b32 s27, s30, 1
    s_lshl_b32 s27, s27, 7
    s_add_u32 s27, s27, s25
    s_lshl_b32 s29, s{S_W}, 5
    s_add_u32 s{S_FX2L}, s27, s29            ; c*512 + (tt_r>>1)*128 + w*32
    s_add_u32 s{S_FXNS}, s{S_FXNS}, {FL_XN}
    s_add_u32 s{S_FXNL}, s{S_FXNL}, {FL_XN}
    s_add_u32 s{S_FHS}, s{S_FHS}, {FL_H}
    s_add_u32 s{S_FHL}, s{S_FHL}, {FL_H}
    s_add_u32 s{S_FX2S}, s{S_FX2S}, {FL_X2}
    s_add_u32 s{S_FX2L}, s{S_FX2L}, {FL_X2}
    s_mul_i32 s25, s{S_W}, 6144
    s_add_u32 s25, s25, {SCR}
    v_add_u32 v{VRR}, s25, v{VL16}
    """)
    for m in (1, 2, 3):
        E(f"""
        s_xor_b32 s25, s{S_W}, {m}
        s_mul_i32 s25, s25, 6144
        s_add_u32 s25, s25, {SCR + (m-1)*2048}
        v_add_u32 v{VRW[m-1]}, s25, v{VL16}
        """)
    E(f"""
    s_lshl_b32 s25, s{S_C}, 7
    s_lshl_b32 s26, s{S_ROLE}, 2
    s_add_u32 s26, s26, s25
    s_add_u32 s26, s26, {FL_XCC}
    v_mov_b32 v27, s{S_XCC}
    """)
    E.vm(f"buffer_store_dword v27, v{VF0}, {WSRD}, s26 offen", 'xccst')
    E(f"s_add_u32 s51, s25, {FL_XCC}")

    XF, YF, T = 144, 160, 176
    def stats(src, rnd, between=None, scale=False):
        P, Q = 192, 194
        E(f"v_pk_add_f32 v[{P}:{P+1}], v[{src}:{src+1}], v[{src+2}:{src+3}]")
        E(f"v_pk_mul_f32 v[{Q}:{Q+1}], v[{src}:{src+1}], v[{src}:{src+1}]")
        for i in range(1, 8):
            E(f"v_pk_fma_f32 v[{Q}:{Q+1}], v[{src+2*i}:{src+2*i+1}], v[{src+2*i}:{src+2*i+1}], v[{Q}:{Q+1}]")
            if i >= 2: E(f"v_pk_add_f32 v[{P}:{P+1}], v[{P}:{P+1}], v[{src+2*i}:{src+2*i+1}]")
        E(f"""
        v_add_f32 v{P}, v{P}, v{P+1}
        v_add_f32 v{Q}, v{Q}, v{Q+1}
        v_permlane16_swap_b32 v{P}, v{Q}
        v_add_f32 v{P}, v{P}, v{Q}
        v_add_f32_dpp v{P}, v{P}, v{P} row_ror:8 row_mask:0xf bank_mask:0xf
        v_mov_b32 v{P+1}, v{P}
        v_permlane32_swap_b32 v{P}, v{P+1}
        v_add_f32 v{P}, v{P}, v{P+1}
        s_mov_b64 exec, 0x00ff00ff
        """)
        E.ds(f"ds_write_b32 v{VSTW}, v{P} offset:{rnd*256}", 'stw')
        E("s_mov_b64 exec, -1")
        E.wait_ds('stw')
        E("s_barrier")
        E.ds(f"ds_read_b128 v[196:199], v{VSTR} offset:{rnd*256}", 'str')
        E.ds(f"ds_read_b128 v[200:203], v{VSTR} offset:{rnd*256+16}", 'str')
        if between: between()
        E.wait_ds('str')
        E(f"""
        v_pk_add_f32 v[196:197], v[196:197], v[198:199]
        v_pk_add_f32 v[200:201], v[200:201], v[202:203]
        v_pk_add_f32 v[196:197], v[196:197], v[200:201]
        v_mul_f32 v196, 0x3b000000, v196
        v_mul_f32 v197, 0x3b000000, v197
        v_fma_f32 v197, -v196, v196, v197
        v_max_f32 v197, 0, v197
        v_add_f32 v197, 0x3727c5ac, v197
        v_rsq_f32 v204, v197
        s_nop 0
        """)
        if scale: E(f"v_mul_f32 v204, {LOG2E:#x}, v204")
        E("v_mul_f32_e64 v206, -v196, v204")
    def norm(dst, src):
        for i in range(8):
            E(f"v_pk_fma_f32 v[{dst+2*i}:{dst+2*i+1}], v[{src+2*i}:{src+2*i+1}], v[204:205], v[206:207] op_sel_hi:[1,0,0]")
    def unpack(dst, src, n):
        for i in range(n):
            E(f"v_lshlrev_b32 v{dst+2*i}, 16, v{src+i}")
            E(f"v_and_b32 v{dst+2*i+1}, s{S_HI}, v{src+i}")
    def R(L):
        unpack(XF, X, 8)
        def mid1():
            if L == 0:
                E.vm(f"buffer_load_dword v{VXCC}, v{VP16}, {WSRD}, s51 offen sc1", 'xcc')
            unpack(YF, Y, 8)
        stats(XF, 0, mid1)
        stamp(f'R{L}s1')
        norm(T, XF)
        for i in range(8):
            E(f"v_pk_fma_f32 v[{XF+2*i}:{XF+2*i+1}], v[{T+2*i}:{T+2*i+1}], v[{YF+2*i}:{YF+2*i+1}], v[{XF+2*i}:{XF+2*i+1}]")
        M = 208
        for i in range(8):
            E(f"v_cvt_pk_bf16_f32 v{M+i}, v{XF+2*i}, v{XF+2*i+1}")
        sadd(S_T0, S_R, WS_XM); sadd(S_T1, S_R, WS_XM + 4096)
        E.vm(f"buffer_store_dwordx4 v[{M}:{M+3}], v{VR}, {WSRD}, s{S_T0} offen" + XSC, 'rst')
        E.vm(f"buffer_store_dwordx4 v[{M+4}:{M+7}], v{VR}, {WSRD}, s{S_T1} offen" + XSC, 'rst')
        stats(XF, 1, scale=True)
        norm(T, XF)
        N = 216
        for i in range(8):
            E(f"v_cvt_pk_bf16_f32 v{N+i}, v{T+2*i}, v{T+2*i+1}")
        sadd(S_T0, S_R, WS_XN); sadd(S_T1, S_R, WS_XN + 4096)
        E.vm(f"buffer_store_dwordx4 v[{N}:{N+3}], v{VR}, {WSRD}, s{S_T0} offen", 'rst')
        E.vm(f"buffer_store_dwordx4 v[{N+4}:{N+7}], v{VR}, {WSRD}, s{S_T1} offen", 'rst')
        stamp(f'R{L}st')
    def mode_decision():
        if True:
            E.wait_vm('xcc')
            ls = E.label('L_xccs'); lb = E.label('L_xccb'); ll = E.label('L_xccl')
            E(f"v_cmp_ne_u32 vcc, s{S_XCC}, v{VXCC}")
            if force_slow: E(f"s_branch {ls}")
            else: E(f"s_cbranch_vccnz {ls}")
            E(f"{lb}:")
            E.out_of_line(f"""
            {ls}:
            s_mov_b32 s{S_T3}, 0
            {ll}:
            buffer_load_dword v{VXCC}, v{VP16}, {WSRD}, s51 offen sc1
            s_add_u32 s{S_T3}, s{S_T3}, 1
            s_waitcnt vmcnt(0)
            v_cmp_ne_u32 vcc, s{S_XCC}, v{VXCC}
            {'s_branch ' + ll + 'x' if force_slow else ''}
            s_cbranch_vccz {lb}
            s_cmp_lt_u32 s{S_T3}, 48
            s_cbranch_scc1 {ll}
            {ll}x:
            s_branch L_k1_slow""")
    def Rpub(L):
        publish(S_FXNS, 0, 'rst')
        E("s_barrier")
        stamp(f'R{L}pub')

    def layer(L):
        cfg = LAYERS[L]; tau = cfg['tau']; slot = cfg['slot']
        O = lambda k, d: opt.get(f'{k}{L}', opt.get(k, d))
        G2 = 224; NS = 336; lastslot = NS - 1
        BUD = O('bud', 24); VGAP = O('vgap', 2)
        F = {}; cost = [0]*(NS + 64); vslots = set()
        for i in range(G2):
            if i + LA < G2: cost[i] += 4
            if i % 2 == 0: cost[i] += 4
            if i < 96 and i % 3 == 0 and i > 0: cost[i] += 4
        for i in range(G2, NS, 2): cost[i] += 4
        RANK = {'m': 0, 's': 1, 'v': 2}
        def at(i, f, c=4, k='v'): F.setdefault(i, ([], [], []))[RANK[k]].append(f); cost[i] += c
        last = {'k': 'm', 't': -1}
        def put(t, f, c=4, k='v', vm=False, chain=False):
            if vm: k = 'm'
            if chain:
                t = max(t, last['t'] + (1 if RANK[k] < RANK[last['k']] else 0))
            while cost[t] + c > BUD or (vm and any((t + d) in vslots for d in range(-VGAP + 1, VGAP))): t += 1
            if vm: vslots.add(t)
            at(t, f, c, k); last['k'] = k; last['t'] = t
            return t
        def stream(t, ops):
            first = True
            for (c, vm, f) in ops:
                t = put(t, f, c, 's', vm, chain=not first); first = False
            return t
        def T_(s): return lambda: E(s)
        def barrier(): E("s_barrier")
        poll_issue(VP16, S_FXNL, 0, f'pxn{L}')
        poll_check(VP16, S_FXNL, 0, f'pxn{L}')
        stamp(f'L{L}xnok')
        def xops(k):
            ops = []
            if k % 4 == 0: ops.append((4, False, lambda: sadd(S_XA, S_XNL, WS_XN + (k >> 2)*4096)))
            off = (k & 3)*1024
            ops.append((4, True, lambda: E.vm(f"buffer_load_dwordx4 v[{XR+4*k}:{XR+4*k+3}], v{VL16}, {WSRD}, s{S_XA} offen" + (f" offset:{off}" if off else "") + LSC, f'x{L}_{k}')))
            return ops
        n_up = O('nup', 5)
        for k in range(n_up):
            for (_, _, f) in xops(k): f()
        seq = []
        for k in range(32):
            for p in range(3): seq.append(('g1', p, k))
        for p in range(3, 7):
            for k in range(32): seq.append(('g1', p, k))
        accp = [0, 1, 2, 3, 0, 1, 2]
        def a_addr(p, k):
            s = slot[p]
            base = [VL16, VL16, VA1, VA1, VA2][s]
            off = (s & 1)*SLOT + k*1024 if s < 4 else k*1024
            return base, off
        def rd(i):
            _, p, k = seq[i]
            b, off = a_addr(p, k)
            r = RING + 4*(i % 8)
            E.ds(f"ds_read_b128 v[{r}:{r+3}], v{b} offset:{off}", f'a{L}_{i}')
        stA = [0, 1, 2]; stB = [3, 4, 5]; stC = [6]
        def blocks(tt, ps): return [(tt, rho, p) for p in ps for rho in range(4)]
        b1 = blocks(1, stB); nb1 = O('b1_first', 4)
        order = blocks(0, stA) + blocks(1, stA) + blocks(0, stB) + b1[:nb1] + blocks(0, stC) + b1[nb1:] + blocks(1, stC)
        assert len(order) == 56
        last0 = max(n for n, b in enumerate(order) if b[0] == 0)
        acc2 = {0: [ACC[0], ACC[1]], 1: [ACC[3], ACC[2]]}
        NH = 37
        def hreg(n):
            q = n % NH
            return ar(A_H + 4*q, 4) if q < 5 else vr(XR + 4*(q - 5), 4)
        def epilogue(p, o):
            c = ACC[accp[p]]
            for e in range(8):
                at(o + e, T_(f"v_exp_f32_e64 v{c+e}, -v{c+e}"), 8)
                at(o + e + 1, T_(f"v_add_f32 v{c+e}, 1.0, v{c+e}"))
                at(o + 8 + e, T_(f"v_rcp_f32 v{c+e}, v{c+e}"), 8)
                at(o + 9 + e, T_(f"v_mul_f32 v{c+e}, v{c+e}, v{c+8+e}"))
        def epilogue2(p, o):
            c = ACC[accp[p]]
            t = 0
            for k in range(4):
                t = put(max(t, o + 11 + 2*k), T_(f"v_cvt_pk_bf16_f32 v{c+8+k}, v{c+2*k}, v{c+2*k+1}"))
            stage = 'A' if p < 3 else ('B' if p < 6 else 'C')
            put(o + 10, T_(f"s_add_u32 s{S_HS[p & 1]}, s{S_HST}, {WS_H + tau[p]*4096}"), k='s')
            return put(t + 1, lambda: E.vm(f"buffer_store_dwordx4 v[{c+8}:{c+11}], v{VL16}, {WSRD}, s{S_HS[p & 1]} offen" + (' sc1' if stage in opt.get(f'hsc{L}', '') else ''), f'h{stage}{L}'), vm=True)
        eo = [99, 115, 131, 147, 163, 196, 228]
        for p in range(7): epilogue(p, eo[p])
        est = [epilogue2(p, eo[p]) for p in range(7)]
        assert est[0] < 126 and est[1] < 158 and est[2] < 190 and est[5] < 222 and est[6] < 248, est
        at(121, lambda: (E.wait_vm(f'w4{L}'), barrier()), 8, 's')
        at(96, barrier, 4, 's')
        at(153, lambda: (E.wait_vm(f'w5{L}'), barrier()), 8, 's')
        at(185, lambda: (E.wait_vm(f'w6{L}'), barrier()), 8, 's')
        t = 0
        for k in range(n_up, 32):
            t = stream(max(t + (1 if k % 4 == 0 and k > n_up else 0), O('xsp', 2)*(k - n_up)), xops(k))
        t = stream(t + 1, dma_stream(tau[4], slot[4], f'w4{L}'))
        w4end = t
        t = stream(97, dma_stream(tau[5], slot[5], f'w5{L}'))
        w5end = t
        t = stream(t + 1, dma_stream(tau[6], slot[6], f'w6{L}'))
        w6end = t
        assert w4end < 108 and w5end < 140 and w6end < 172, (w4end, w5end, w6end)
        XM0 = 20; XM1 = 24
        def xm_ops(tt):
            return [(4, False, lambda: sadd(S_XA, S_XML, WS_XM + tt*32768)),
                    (4, True, lambda: E.vm(f"buffer_load_dwordx4 v[{XM0+4*tt}:{XM0+4*tt+3}], v{VL16}, {WSRD}, s{S_XA} offen" + LSC, f'xm{L}'))]
        stream(stream(O('xm_at', 152), xm_ops(0)) + 1, xm_ops(1))
        fh = 0
        pub = {}; chk = {}
        for (st_, k, e) in (('A', 0, est[2]), ('B', 1, est[5]), ('C', 2, est[6])):
            tp = put(O('pub' + st_, e + 12), lambda st_=st_: E.wait_vm(f'h{st_}{L}'), k='s')
            tp = put(tp, lambda st_=st_, k=k: publish(S_FHS, fh + 256*k, f'h{st_}{L}', wait=False), 4, 'm', chain=True)
            tq = put(O('poll' + st_, tp + 8), lambda st_=st_, k=k: poll_issue(VP8, S_FHL, fh + 256*k, f'p{st_}{L}'), 4, 'm')
            tc = put(O('chk' + st_, tq + (12 if st_ == 'A' else 14)), lambda st_=st_: E.wait_vm(f'p{st_}{L}'), k='s')
            tc = put(tc, lambda st_=st_, k=k: poll_check(VP8, S_FHL, fh + 256*k, f'p{st_}{L}', wait=False), 8, 'v', chain=True)
            pub[st_] = tp; chk[st_] = tc
        hslot = {}
        for n0 in range(0, 56, 4):
            tt, _, p = order[n0]
            sreg = S_HA[(n0 >> 2) & 1]
            rdy = chk['A' if p < 3 else 'B' if p < 6 else 'C'] + 1
            prev = max([hslot[m] for m in range(max(0, n0 - 8), max(0, n0 - 4))], default=0)
            ta = put(max(prev, rdy - 3), lambda tt=tt, p=p, sreg=sreg: E(f"s_add_u32 s{sreg}, s{S_HLD}, {WS_H + tt*114688 + tau[p]*4096}"), k='s') + 1
            for n in range(n0, n0 + 4):
                assert order[n][0] == tt and order[n][2] == p and order[n][1] == n - n0
                q = n % NH
                if n < NH: free = 0 if q < 5 else 192 + (q - 5) + 1
                else: free = G2 + 2*(n - NH) + 2
                off = (n - n0)*1024
                hslot[n] = put(max(rdy, free, ta), lambda n=n, sreg=sreg, off=off: E.vm(f"buffer_load_dwordx4 {hreg(n)}, v{VL16}, {WSRD}, s{sreg} offen" + (f" offset:{off}" if off else "") + LSC, f'h{L}_{n}'), vm=True)
                assert hslot[n] < G2 + 2*n - 6, (L, n, hslot[n])
        if opt.get('verbose'): print('L', L, 'est', est, 'w', w4end, w5end, w6end, 'pub', pub, 'chk', chk, 'h', [hslot[n] for n in range(56)])
        kseq = []
        for (tt, rho, p) in order:
            kp = rho*7 + tau[p]
            if kp not in kseq: kseq.append(kp)
        if L == 0:
            def wd_setup():
                E(f"""
                s_lshl_b32 s30, s{S_J}, 2
                s_add_u32 s30, s30, s{S_W}
                s_mul_i32 s30, s30, 57344
                s_add_u32 s30, s30, {WS_WDF}
                s_lshr_b32 s25, s{S_W}, 1
                s_lshl_b32 s25, s25, 8          ; 16*(w>>1)*16
                v_xor_b32 v22, s25, v{VL16}
                s_and_b32 s25, s{S_W}, 1
                s_lshl_b32 s25, s25, 10
                v_add_u32 v28, s25, v22
                s_xor_b32 s25, s25, 1024
                v_add_u32 v29, s25, v22
                """)
            wd_setup()
            t = O('wd_at', 70)
            for kp in kseq:
                at(t - 1, lambda kp=kp: E(f"s_add_u32 s26, s30, {kp*2048}"), 0, 's')
                for pd in range(2):
                    while t in vslots: t += 1
                    at(t, lambda kp=kp, pd=pd: E.vm(f"buffer_load_dwordx4 {ar(A_WD + 8*kp + 4*pd, 4)}, v{28+pd}, {WSRD}, s26 offen", f'wd{kp}'), 0, 'm'); t += O('wd_sp', 2)
            if opt.get('verbose'): print('last Wd load at', t)
        RB = RING
        def red_write_ops(tt):
            ops = []
            for m in (1, 3, 2):
                pd, g = m & 1, m >> 1
                src = acc2[tt][pd] + 8*g
                for hlf in range(2):
                    ops.append(lambda m=m, src=src, hlf=hlf: E.ds(f"ds_write_b128 v{VRW[m-1]}, v[{src+4*hlf}:{src+4*hlf+3}] offset:{1024*hlf}", f'rw{L}{tt}'))
            return ops
        def red_read_ops(tt):
            ops = []
            for m in range(3):
                for hlf in range(2):
                    ops.append(lambda m=m, hlf=hlf: E.ds(f"ds_read_b128 v[{RB+8*m+4*hlf}:{RB+8*m+4*hlf+3}], v{VRR} offset:{2048*m+1024*hlf}", f'rr{L}{tt}'))
            return ops
        def out_store(tt, src):
            if L == 0:
                sadd(S_T0, S_XML, WS_XN + tt*32768)
                E.vm(f"buffer_store_dwordx4 v[{src}:{src+3}], v{VL16}, {WSRD}, s{S_T0} offen", f'x2{tt}')
            else:
                sadd(S_T0, 30, tt*32768)
                E.vm(f"buffer_store_dwordx4 v[{src}:{src+3}], v28, s[{S_OUT}:{S_OUT+3}], s{S_T0} offen" + (' sc1' if opt.get('outsc') else ''), f'o2{tt}')
        if L == 1:
            def out_setup():
                return [T_(x) for x in f"""v_and_b32 v28, 31, v0
                v_lshlrev_b32 v28, 10, v28
                v_bfe_u32 v29, v0, 5, 1
                v_lshl_add_u32 v28, v29, 4, v28
                s_lshl_b32 s30, s{S_C}, 17
                s_lshl_b32 s25, s{S_TH}, 16
                s_add_u32 s30, s30, s25
                s_and_b32 s25, s{S_W}, 1
                s_lshl_b32 s25, s25, 1
                s_lshr_b32 s26, s{S_W}, 1
                s_add_u32 s25, s25, s26
                s_lshl_b32 s26, s{S_J}, 2
                s_add_u32 s25, s25, s26
                s_lshl_b32 s25, s25, 5
                s_add_u32 s30, s30, s25""".split('\n')]
            t = 72
            for f in out_setup(): t = put(t, f, k='v', chain=True)
        XU = RB + 24
        t = put(G2 + 26, lambda: E.wait_vm(f'xm{L}'), k='s')
        for e in range(4):
            t = put(t, T_(f"v_lshlrev_b32 v{XU+2*e}, 16, v{XM1+e}"))
            t = put(t, T_(f"v_and_b32 v{XU+1+2*e}, s{S_HI}, v{XM1+e}"))
        m0_last = G2 + 2*last0 + 1
        t = m0_last + 5
        for f in red_write_ops(0): t = put(t, f, 8, 'm')
        t = put(t + 1, lambda: (E.wait_ds(f'rw{L}0'), barrier()), 8, 's')
        t += 1
        for f in red_read_ops(0): t = put(t, f, 4, 'm')
        own = acc2[0][0]
        t = put(t + 3, lambda: E.wait_ds(f'rr{L}0'), k='s')
        tb = t
        for e in range(8): t = put(t, T_(f"v_add_f32 v{RB+e}, v{RB+e}, v{RB+8+e}"))
        for e in range(8): t = put(t, T_(f"v_add_f32 v{own+e}, v{own+e}, v{RB+16+e}"))
        for e in range(4):
            t = put(t, T_(f"v_lshlrev_b32 v{RB+8+2*e}, 16, v{XM0+e}"))
            t = put(t, T_(f"v_and_b32 v{RB+9+2*e}, s{S_HI}, v{XM0+e}"))
        for e in range(8): t = put(t, T_(f"v_add_f32 v{own+e}, v{own+e}, v{RB+e}"))
        for e in range(8): t = put(t, T_(f"v_fma_f32 v{own+e}, v{own+e}, s{S_LN2}, v{RB+8+e}"))
        for e in range(4): t = put(t, T_(f"v_cvt_pk_bf16_f32 v{RB+e}, v{own+2*e}, v{own+2*e+1}"))
        t = put(t + 1, lambda: out_store(0, RB), 8, 'm')
        if opt.get('verbose'): print('tt0 reduction done at', t)
        put(tb + 1, barrier, k='s')
        E.wait_vm(f'x{L}_0')
        stamp(f'L{L}g1')
        for i in range(LA): rd(i)
        def emit_fill(i, mid=None):
            fm, fs, fv = F.pop(i, ([], [], []))
            if mid: mid()
            for f in fm + fs + fv: f()
        for i in range(224):
            _, p, k = seq[i]
            stamp(f'L{L}s{i}')
            if p < 3 and (i % 3) == 0 and k > 0: E.wait_vm(f'x{L}_{k}')
            if i % 2 == 0: E.wait_ds(f'a{L}_{i+1}')
            r = RING + 4*(i % 8)
            c = ACC[accp[p]]
            E(f"v_mfma_f32_32x32x16_bf16 v[{c}:{c+15}], {vr(r, 4)}, v[{XR+4*k}:{XR+4*k+3}], {'0' if k == 0 else f'v[{c}:{c+15}]'}")
            emit_fill(i, (lambda: rd(i + LA)) if i + LA < 224 else None)
        seen_kp = set()
        for n in range(56):
            tt, rho, p = order[n]
            kp = rho*7 + tau[p]
            firstb = not any(o[0] == tt for o in order[:n])
            for ii, pd in enumerate((1, 0) if n in (last0, 55) else (0, 1)):
                i = G2 + 2*n + ii
                stamp(f'L{L}s{i}')
                if ii == 0:
                    E.wait_vm(f'h{L}_{n}')
                    if L == 0 and kp not in seen_kp: E.wait_vm(f'wd{kp}'); seen_kp.add(kp)
                c = acc2[tt][pd]
                E(f"v_mfma_f32_32x32x16_bf16 v[{c}:{c+15}], {ar(A_WD + 8*kp + 4*pd, 4)}, {hreg(n)}, {'0' if firstb else f'v[{c}:{c+15}]'}")
                emit_fill(i)
        stamp(f'L{L}g2end')
        for i in sorted(F.keys()):
            assert i > lastslot, i
            emit_fill(i)
        for f in red_write_ops(1): f()
        E.wait_ds(f'rw{L}1'); E("s_barrier")
        for f in red_read_ops(1): f()
        own = acc2[1][0]
        E.wait_ds(f'rr{L}1')
        for e in range(0, 8, 2): E(f"v_pk_add_f32 v[{RB+e}:{RB+e+1}], v[{RB+e}:{RB+e+1}], v[{RB+8+e}:{RB+9+e}]")
        for e in range(0, 8, 2): E(f"v_pk_add_f32 v[{own+e}:{own+e+1}], v[{own+e}:{own+e+1}], v[{RB+16+e}:{RB+17+e}]")
        for e in range(0, 8, 2): E(f"v_pk_add_f32 v[{own+e}:{own+e+1}], v[{own+e}:{own+e+1}], v[{RB+e}:{RB+e+1}]")
        for e in range(0, 8, 2): E(f"v_pk_fma_f32 v[{own+e}:{own+e+1}], v[{own+e}:{own+e+1}], s[{S_LN2}:{S_LN2+1}], v[{XU+e}:{XU+e+1}]")
        for e in range(4): E(f"v_cvt_pk_bf16_f32 v{RB+e}, v{own+2*e}, v{own+2*e+1}")
        out_store(1, RB)
        stamp(f'L{L}st')
        if L == 0:
            publish(S_FX2S, 0, 'x21')
            stamp('x2pub')

    stamp('issued')
    if stamps and 'q' in enabled:
        E.wait_vm('q'); stamp('q')
    E.wait_vm('y')
    stamp('qy')
    if stamps and 'pf' in enabled:
        E.wait_vm('pf'); stamp('pf')
    if stamps and 'w1a' in enabled:
        E.wait_vm('w1a'); stamp('w1a')
    for i in range(8): E(f"v_accvgpr_write_b32 a{A_Y+i}, v{Y+i}")
    for p in range(3): dma_now(L1['tau'][p], L1['slot'][p], 'w1b', range(4, 8))
    dma_now(L1['tau'][3], L1['slot'][3], 'w1c')
    R(0)
    mode_decision()
    def rest():
        Rpub(0)
        layer(0)
        poll_issue(VP8, S_FX2L, 0, 'px2')
        poll_check(VP8, S_FX2L, 0, 'px2')
        for r_, c_ in ((S_FXNS, 16*256), (S_FXNL, 16*256), (S_FHS, 16*1024), (S_FHL, 16*1024)): E(f"s_add_u32 s{r_}, s{r_}, {c_}")
        stamp('x2ok')
        sadd(S_T0, S_R, WS_XN); sadd(S_T1, S_R, WS_XN + 4096)
        E.vm(f"buffer_load_dwordx4 v[{X}:{X+3}], v{VR}, {WSRD}, s{S_T0} offen" + LSC, 'x2l')
        E.vm(f"buffer_load_dwordx4 v[{X+4}:{X+7}], v{VR}, {WSRD}, s{S_T1} offen" + LSC, 'x2l')
        for i in range(8): E(f"v_accvgpr_read_b32 v{Y+i}, a{A_Y+i}")
        E.wait_vm('x2l')
        R(1)
        Rpub(1)
        layer(1)
        E.wait_vm_all()
    Efast = E
    Es = Emit(); Es.vmq = list(E.vmq); Es.dsq = list(E.dsq); Es.seen = set(E.seen); Es.nl = 100000
    E = Es; MODE['slow'] = True
    E("L_k1_slow:")
    E(f"s_mov_b32 s{S_EXP}, 2")
    rest()
    E("s_branch L_k1_fin")
    E = Efast; MODE['slow'] = False
    rest()
    E("L_k1_fin:")
    if opt.get('dirt'):
        E(f"s_mul_i32 s25, s2, {opt.get('dirtkb', 16)*1024}\ns_add_u32 s25, s25, 0x1C00000\nv_lshlrev_b32 v20, 4, v0")
        for i in range(opt.get('dirtkb', 16)//4):
            E(f"buffer_store_dwordx4 v[64:67], v20, {WSRD}, s25 offen" + (' sc1' if opt['dirt'] == 2 else '') + f"\ns_add_u32 s25, s25, 4096")
    if stamps:
        stamp('end')
        E("s_memrealtime s[2:3]".replace('s[2:3]', 's[24:25]'))
        E(f"""
        s_waitcnt lgkmcnt(0)
        s_cmp_lg_u32 s{S_W}, 0
        s_cbranch_scc1 L_k1_end
        """)
        n = len(names)
        for i in range(1, n): E(f"s_sub_u32 s{SREG[i]}, s{SREG[i]}, s{SREG[0]}")
        E("v_mov_b32 v64, s100")
        for i in range(1, n): E(f"v_mov_b32 v{64+i}, s{SREG[i]}")
        for i in range(n, 30): E(f"v_mov_b32 v{64+i}, 0")
        E(f"v_mov_b32 v94, s{S_EXP}\nv_mov_b32 v95, s24")
        E(f"""
        s_lshl_b32 s25, s2, 7
        s_add_u32 s25, s25, {WS_STAMP + 0x10000}
        """)
        for q in range(8):
            E(f"buffer_store_dwordx4 v[{64+4*q}:{67+4*q}], v{VF0}, {WSRD}, s25 offen offset:{16*q}")
        E("s_waitcnt vmcnt(0)")
        if opt.get('dbg'):
            E(f"""
            s_load_dwordx2 s[26:27], s[0:1], 88
            s_lshl_b32 s25, s2, 6
            s_add_u32 s25, s25, {WS_STAMP}
            buffer_load_dword v70, v{VF0}, {WSRD}, s25 offen
            buffer_load_dword v71, v{VF0}, {WSRD}, s25 offen offset:52
            s_waitcnt vmcnt(0) lgkmcnt(0)
            v_not_b32 v72, v70
            v_not_b32 v73, v71
            v_not_b32 v74, v64
            v_not_b32 v75, v95
            v_mov_b32 v76, 0
            v_cmp_eq_u32 vcc, 0, v0
            s_and_saveexec_b64 s[28:29], vcc
            global_atomic_umax v76, v72, s[26:27]
            global_atomic_umax v76, v70, s[26:27] offset:4
            global_atomic_umax v76, v73, s[26:27] offset:8
            global_atomic_umax v76, v71, s[26:27] offset:12
            global_atomic_umax v76, v74, s[26:27] offset:16
            global_atomic_umax v76, v64, s[26:27] offset:20
            global_atomic_umax v76, v75, s[26:27] offset:24
            global_atomic_umax v76, v95, s[26:27] offset:28
            s_waitcnt vmcnt(0)
            """)
        print('k1 stamps:', ','.join(names))
        open('last_stamps.txt', 'w').write(','.join(names))
    E("L_k1_end:")
    E("s_endpgm")
    main = hazard_pass(E.L[1:], verbose=opt.get('verbose', False))
    tail = list(E.tail) + ['L_k1_codeend:'] + hazard_pass(Es.L) + list(Es.tail)
    txt = E.L[0] + '\n' + '\n'.join(('    ' + l if not l.endswith(':') else l) for l in main) + '\n'
    txt += '\n'.join(('    ' + l if not l.endswith(':') else l) for l in tail) + '\n'
    txt += "    s_endpgm\n"
    return txt + kd(name, 512, 102, accum=256)

if __name__ == '__main__':
    from common import TARGET, KERNARG_COMMENT
    import k0
    st = 'stamps' in sys.argv; slow = 'slow' in sys.argv
    opt = {'verbose': 'v' in sys.argv}
    for a in sys.argv[2:]:
        if '=' in a:
            k_, v_ = a.split('=')
            opt[k_] = v_.split(',') if k_ == 'st' else (v_ if k_.startswith('hsc') else int(v_))
    txt = KERNARG_COMMENT
    txt += f"; @launch kernel=k0_kernel grid=(256,1,1) block=(256,1,1) lds={k0.K0_LDS}\n"
    txt += f"; @launch kernel=k1_kernel grid=(256,1,1) block=(256,1,1) lds={K1_LDS}\n"
    txt += TARGET + k0.gen_k0(stamps=('k0st' in sys.argv), force_slow=slow, pf_lines=opt.get('k0pf', 200)) + gen_k1(stamps=st, force_slow=slow, opt=opt)
    txt += ".text\n.fill 64, 4, 0xbf800000\n"
    open(sys.argv[1], 'w').write(txt)
```

```python
FL_EPOCH = 0x0000
FL_S0   = 0x2000
FL_S0B  = 0x4000
FL_S1   = 0x14000
FL_XN   = 0x8000
FL_H    = 0xA000
FL_X2   = 0x12000
WS_KVT  = 0x0100000
WS_XN   = WS_KVT
WS_XM   = WS_KVT + 262144
WS_Y    = 0x0500000
WS_W1F  = 0x0700000
WS_WDF  = 0x0B00000
WS_H    = 0x0D00000
WS_STAMP = 0x1500000
WS_SRD_BYTES = 0x1600000
```

```python
import sys
sys.path.insert(0, 'gen')
from emit import *
from layout3 import *
from common import head, kd, TARGET, KERNARG_COMMENT, NAME

K1_LDS = 163840
SLOT = 32768
SCR = SLOT
STATS = SLOT + 24576
OOB = 0x80000000
VL16, VA1, VA2, VP8, VP16, VF0, VR = 1, 2, 3, 4, 5, 6, 7
VSTW, VSTR = 11, 12
VRW = [13, 14, 15]; VRR = 16
VPOLL, VONE, VSTAMP = 17, 18, 19
RING = 32
ACC = [64, 80, 96, 112]
XR = 128
A_WD = 0; A_Y = 224; A_T4 = 232
S_WS = 4; S_Q = 8; S_OUT = 12
S_W, S_ROLE, S_C, S_TH, S_J, S_EXP, S_XCC, S_W1K = 16, 17, 18, 19, 20, 21, 22, 23
S_R, S_XNL, S_HST, S_HLD, S_XML, S_W1, S_FXNS, S_FXNL, S_FHS, S_FHL, S_FX2S, S_FX2L = range(34, 46)
S_T0, S_T1, S_T2, S_T3, S_HI = 46, 47, 48, 49, 31
S_LN2 = 98
S_DA, S_XA = 50, 3
S_HA = [96, 97]; S_HS = [94, 95]
LA = 6
def vr(b, n=1): return f"v{b}" if n == 1 else f"v[{b}:{b+n-1}]"
def ar(b, n=1): return f"a{b}" if n == 1 else f"a[{b}:{b+n-1}]"

LAYERS = [
    dict(tau=[0, 1, 2, 3, 4, 5, 6], slot=[2, 3, 4, 0, 1, 2, 3]),
    dict(tau=[5, 6, 2, 3, 4, 0, 1], slot=[2, 3, 4, 0, 1, 2, 3]),
]
LOG2E = 0x3fb8aa3b; LN2 = 0x3f317218
A_H = 236

S_N = 51
VWD = 28
S_WDB = 30
A_Q = 232
HC_J = 4160; HC_CH = 4*HC_J
XRB = 2*HC_CH
XR_P = 4640; XR_CH = 9472
KT = 2*SLOT; VT = KT + 9216
S_G, S_M, S_CB, S_CP, S_D, S_E = 88, 89, 84, 85, 62, 63
POISON = 0xffffffff


def gen(name, stamps=False, force_slow=False, opt=None):
    opt = opt or {}
    E = Emit()
    LSC = ' sc1' if opt.get('lsc', 1) else ''
    names = []
    DEF = ['start', 'join', 'b0', 'kvst', 's0', 'xiss', 'prep', 'xok', 'bx', 'rho1', 'rho2', 'rho3', 's1', 'mfend', 'red2', 'yst', 'qst', 'yok', 'R0st', 'R0pub', 'L0xnok', 'L0g1', 'L0s96', 'L0s224', 'L0g2end', 'L0st', 'x2ok', 'R1st', 'R1pub', 'L1xnok', 'L1g1', 'L1s96', 'L1s224', 'L1g2end', 'L1st', 'end']
    enabled = set(opt.get('st', DEF)) | {'start', 'end'}
    MODE = {'slow': False}
    SP = [90, 92]
    def stamp(nm):
        if stamps and nm in enabled and not MODE['slow']:
            n = len(names); names.append(nm)
            if n >= 2: E(f"v_writelane_b32 v{VSTAMP}, s{SP[n & 1]}, {n-2}")
            E(f"s_memtime s[{SP[n & 1]}:{SP[n & 1]+1}]")
    WSRD = f"s[{S_WS}:{S_WS+3}]"
    def FL(kind, L):
        v = opt.get(f'fl{kind}{L}', opt.get(f'fl{kind}', ''))
        return (' ' + v.replace('+', ' ')) if v else ''

    def sadd(dst, base, const):
        if const == 0: E(f"s_mov_b32 s{dst}, s{base}")
        else: E(f"s_add_u32 s{dst}, s{base}, {const}")
    def dma_stream(tau, slot, tag, ilist=range(8)):
        ops = []; cur = None
        for i in ilist:
            if cur != (i >> 2):
                cur = i >> 2
                ops.append((4, False, lambda g=cur: E(f"s_add_u32 m0, s{S_W1K}, {slot*SLOT + g*4096}")))
                ops.append((4, False, lambda g=cur: sadd(S_DA, S_W1, tau*32768 + g*4096)))
            off = (i & 3)*1024
            ops.append((4, True, lambda off=off: E.vm(f"buffer_load_dwordx4 v{VL16}, {WSRD}, s{S_DA} offen" + (f" offset:{off}" if off else "") + " lds", tag)))
        return ops
    def wd_stream(kps):
        ops = []
        for kp in kps:
            f = lambda kp=kp: E(f"s_add_u32 s26, s{S_WDB}, {kp*2048}")
            f.info = ('wd', kp); ops.append((4, False, f))
            for pd in range(2):
                f = lambda kp=kp, pd=pd: E.vm(f"buffer_load_dwordx4 {ar(A_WD + 8*kp + 4*pd, 4)}, v{VWD+pd}, {WSRD}, s26 offen" + LSC, f'wd{kp}')
                f.info = ('wd', kp); ops.append((4, True, f))
        return ops
    class Bulk:
        def __init__(self, ops): self.ops = list(ops)
        def take(self, n):
            out = []
            while n > 0 and self.ops:
                o = self.ops.pop(0); out.append(o)
                if o[1]: n -= 1
            return out
        def emit(self, n):
            for (_, _, f) in self.take(n): f()
            assert not self.ops or not self.ops[0][1] or getattr(self.ops[0][2], 'info', None) is None, 'Wd loads come in pairs'
        def left(self): return sum(1 for o in self.ops if o[1])
    def publish(sbase, const, tag, wait=True):
        o = f" offset:{const}" if const else ""
        if MODE['slow']:
            E.wait_vm_all()
            E("buffer_wbl2 sc1\ns_waitcnt vmcnt(0)")
            E.vm(f"buffer_store_dword v{VONE}, v{VF0}, {WSRD}, s{sbase} offen{o} sc1", None)
            return
        if wait: E.wait_vm(tag)
        E.vm(f"buffer_store_dword v{VONE}, v{VF0}, {WSRD}, s{sbase} offen{o}", None)
    def poll_issue(voff, sbase, const, tag, dst=VPOLL):
        o = f" offset:{const}" if const else ""
        if MODE['slow']: E.seen.add(tag); return
        E.vm(f"buffer_load_dword v{dst}, v{voff}, {WSRD}, s{sbase} offen{o} sc1", tag)
    def poll_check(voff, sbase, const, tag, dst=VPOLL, wait=True):
        o = f" offset:{const}" if const else ""
        ls = E.label('L_polls'); lb = E.label('L_pollb'); ll = E.label('L_polll')
        if MODE['slow']:
            E.wait_vm_all()
            E(f"""
            s_mov_b32 s{S_T3}, 0
            {ll}:
            buffer_inv sc1
            s_waitcnt vmcnt(0)
            buffer_load_dword v{dst}, v{voff}, {WSRD}, s{sbase} offen{o} sc1
            s_add_u32 s{S_T3}, s{S_T3}, 1
            s_waitcnt vmcnt(0)
            v_cmp_ne_u32 vcc, s{S_N}, v{dst}
            s_cmp_gt_u32 s{S_T3}, 0x2000
            s_cbranch_scc1 {lb}
            s_cbranch_vccnz {ll}
            {lb}:
            buffer_inv sc1
            s_waitcnt vmcnt(0)""")
            return
        if wait: E.wait_vm(tag)
        E(f"v_cmp_ne_u32 vcc, s{S_N}, v{dst}")
        E(f"s_cbranch_vccnz {ls}")
        E(f"{lb}:")
        E.out_of_line(f"""
        {ls}:
        s_mov_b32 s{S_T3}, 0
        {ll}:
        buffer_load_dword v{dst}, v{voff}, {WSRD}, s{sbase} offen{o} sc1
        s_add_u32 s{S_T3}, s{S_T3}, 1
        s_waitcnt vmcnt(0)
        v_cmp_ne_u32 vcc, s{S_N}, v{dst}
        s_nop 4
        s_cbranch_vccz {lb}
        s_cmp_lt_u32 s{S_T3}, 0x2000
        s_cbranch_scc1 {ll}
        s_branch {lb}""")
    def all_flags_check(dst, voff, sval, tag, lim=0x2000):
        ls = E.label('L_afs'); lb = E.label('L_afb'); ll = E.label('L_afl')
        def cmp4():
            return "\n".join([f"v_xor_b32 v{dst+i}, s{sval}, v{dst+i}" for i in range(4)] +
                             [f"v_or3_b32 v{dst}, v{dst}, v{dst+1}, v{dst+2}", f"v_or_b32 v{dst}, v{dst}, v{dst+3}", f"v_cmp_ne_u32 vcc, 0, v{dst}"])
        E.wait_vm(tag)
        E(cmp4())
        E(f"s_cbranch_vccnz {ls}\n{lb}:")
        E.out_of_line(f"""
        {ls}:
        s_mov_b32 s{S_T3}, 0
        {ll}:
        buffer_load_dwordx4 v[{dst}:{dst+3}], v{voff}, {WSRD}, 0 offen sc1
        s_add_u32 s{S_T3}, s{S_T3}, 1
        s_waitcnt vmcnt(0)
        {cmp4()}
        s_nop 4
        s_cbranch_vccz {lb}
        s_cmp_lt_u32 s{S_T3}, {lim}
        s_cbranch_scc1 {ll}
        s_branch {lb}""")

    KSRD, VSRD, HSRD, WGSRD, WUSRD, WDSRD = "s[52:55]", "s[64:67]", "s[76:79]", "s[68:71]", "s[80:83]", "s[52:55]"
    E.L.append(head(name).rstrip())
    E(f"""
    s_cmp_ge_u32 s2, 256
    s_cbranch_scc1 L_end
    s_load_dwordx2 s[52:53], s[0:1], 8
    s_load_dwordx2 s[64:65], s[0:1], 16
    s_load_dwordx2 s[4:5], s[0:1], 96
    s_load_dwordx8 s[56:63], s[0:1], 24
    s_load_dwordx8 s[68:75], s[0:1], 56
    s_load_dwordx2 s[8:9], s[0:1], 0
    """)
    if stamps: E("s_memrealtime s[100:101]")
    stamp('start')
    E(f"""
    v_lshrrev_b32 v20, 6, v0
    v_and_b32 v8, 63, v0                     ; lane
    s_and_b32 s{S_G}, s2, 7
    s_lshr_b32 s{S_M}, s2, 3
    v_readfirstlane_b32 s{S_W}, v20
    v_lshlrev_b32 v{VL16}, 4, v8
    v_lshrrev_b32 v21, 3, v8
    v_and_b32 v22, 7, v8
    s_cmp_eq_u32 s{S_W}, 3
    s_cbranch_scc1 L_w3
    ; k / v staging tiles: row = lane >> 3, 16-byte segment = lane & 7
    v_lshlrev_b32 v32, 10, v21
    v_lshl_add_u32 v32, v22, 4, v32
    s_lshl_b32 s24, s{S_M}, 16
    s_lshl_b32 s25, s{S_G}, 7
    s_add_u32 s24, s24, s25
    v_add_u32 v32, s24, v32
    s_cmp_eq_u32 s{S_W}, 2
    s_cbranch_scc1 L_w2
    s_cmp_eq_u32 s{S_W}, 1
    s_cbranch_scc1 L_w1
    """)
    def srd_fix(b, size): return f"s_and_b32 s{b+1}, s{b+1}, 0xffff\ns_mov_b32 s{b+2}, {size}\ns_mov_b32 s{b+3}, 0x20000"
    def tile_path(lst):
        for j, (kind, blk) in enumerate(lst):
            c = (blk*8192 - (4096 if kind == 'k' else 1024)) & 0xffffffff
            E(f"v_add_u32 v{40+j}, {c:#x}, v32")
        E("s_waitcnt lgkmcnt(0)")
        if any(k == 'k' for k, _ in lst): E(srd_fix(52, 2097152))
        if any(k == 'v' for k, _ in lst): E(srd_fix(64, 2097152))
        for j, (kind, blk) in enumerate(lst):
            E(f"s_mov_b32 m0, {(KT if kind == 'k' else VT) + blk*1024}\ns_nop 0")
            E(f"buffer_load_dwordx4 v{40+j}, {KSRD if kind == 'k' else VSRD}, 0 offen lds")
    tile_path([('k', b) for b in range(6)])
    E("s_branch L_join\nL_w1:")
    tile_path([('k', b) for b in (6, 7, 8)] + [('v', b) for b in (0, 1, 2)])
    E("s_branch L_join\nL_w2:")
    tile_path([('v', b) for b in range(3, 9)])
    E("s_branch L_join\nL_w3:")
    E(f"""
    v_lshlrev_b32 v33, 12, v21
    v_lshl_add_u32 v33, v22, 4, v33
    v_lshrrev_b32 v34, 5, v8
    v_and_b32 v35, 31, v8
    v_lshlrev_b32 v34, 17, v34
    v_lshl_add_u32 v34, v35, 4, v34
    v_mov_b32 v36, -1
    v_mov_b32 v37, -1
    v_mov_b32 v38, -1
    v_mov_b32 v39, -1
    s_lshl_b32 s26, s{S_G}, 19
    s_lshl_b32 s27, s{S_M}, 7
    s_sub_u32 s26, s26, s27
    s_add_u32 s26, s26, {WS_KVT + 3968}
    s_lshl_b32 s27, s{S_G}, 5
    s_add_u32 s27, s27, s{S_M}
    s_lshl_b32 s27, s27, 9
    s_add_u32 s27, s27, {WS_Y}
    s_waitcnt lgkmcnt(0)
    {srd_fix(S_WS, WS_SRD_BYTES)}
    """)
    for i in range(16):
        E(f"buffer_store_dword v36, v33, {WSRD}, s26 offen")
        if i < 15: E("s_add_u32 s26, s26, 32768")
    for i in range(8):
        E(f"buffer_store_dwordx4 v[36:39], v34, {WSRD}, s27 offen sc1")
        if i < 7: E("s_add_u32 s27, s27, 262144")
    E("L_join:")
    E.vmq += ['tile']*6; E.seen.add('tile')
    stamp('join')
    HEAD, SK, WR = 60, 56, 224
    E(f"""
    {srd_fix(S_WS, WS_SRD_BYTES)}
    s_load_dword s{S_E}, s[4:5], {FL_EPOCH}
    s_lshl_b32 s{S_CB}, s{S_G}, 6
    s_lshl_b32 s24, s{S_M}, 1
    s_add_u32 s{S_CB}, s{S_CB}, s24
    s_lshr_b32 s{S_CP}, s{S_CB}, 1
    s_lshl_b32 s24, s{S_G}, 9
    v_and_b32 v23, 31, v0                    ; cp
    v_lshlrev_b32 v30, 4, v23
    v_add_u32 v30, s24, v30
    """)
    E.vm(f"global_load_dwordx4 v[{SK}:{SK+3}], v30, s[56:57]", 'sk')
    E(f"""
    s_mov_b32 s76, s58
    s_mov_b32 s77, s59
    {srd_fix(76, 2097152)}
    s_lshl_b32 s24, s{S_CB}, 1
    s_load_dword s{S_D}, s[60:61], s24
    v_lshrrev_b32 v24, 7, v0
    v_bfe_u32 v25, v0, 5, 2
    v_lshl_add_u32 v26, v25, 1, v23
    v_add_u32 v26, -30, v26
    v_add_u32 v27, s{S_CB}, v24
    v_lshlrev_b32 v27, 12, v27
    v_lshl_add_u32 v27, v26, 1, v27
    v_cmp_gt_i32 vcc, 0, v26
    v_mov_b32 v31, -16
    v_mul_u32_u24 v61, {HC_CH}, v24
    v_cndmask_b32 v27, v27, v31, vcc
    """)
    E.vm(f"buffer_load_ushort v{HEAD}, v27, {HSRD}, 0 offen", 'sk')
    E(f"""
    v_mul_u32_u24 v31, {HC_J}, v25
    v_add_u32 v61, v61, v31
    v_lshl_add_u32 v61, v23, 1, v61
    s_mov_b32 s80, s70
    s_mov_b32 s81, s71
    {srd_fix(80, 1835008)}
    {srd_fix(68, 1835008)}
    s_mov_b32 s52, s72
    s_mov_b32 s53, s73
    {srd_fix(52, 1835008)}
    s_mov_b32 s{S_OUT}, s74
    s_mov_b32 s{S_OUT+1}, s75
    s_lshr_b32 s24, s2, 2                    ; kg
    s_and_b32 s25, s2, 3                     ; fq
    s_mul_i32 s26, s24, 28672
    s_mul_i32 s27, s25, 896
    s_add_u32 s26, s26, s27
    v_lshlrev_b32 v248, 2, v0
    v_add_u32 v248, s26, v248
    v_cmp_gt_u32 vcc, 224, v0
    v_mov_b32 v31, 0xf0000000
    v_and_b32 v20, 0xf1, v0
    v_cndmask_b32 v248, v31, v248, vcc
    v_bfe_u32 v21, v0, 3, 1
    v_lshl_or_b32 v20, v21, 1, v20
    v_bfe_u32 v21, v0, 1, 2
    v_lshl_or_b32 v20, v21, 2, v20
    v_lshlrev_b32 v249, 2, v20
    s_lshl_b32 s26, s2, 13
    v_add_u32 v249, s26, v249
    v_add_u32 v250, 4096, v249
    """)
    for i in range(8):
        so = '0' if i == 0 else 's24'
        if i: E(f"s_mov_b32 s24, {3584*i}")
        E.vm(f"buffer_load_dword v{WR+i}, v248, {WGSRD}, {so} offen", 'prep')
        E.vm(f"buffer_load_dword v{WR+8+i}, v248, {WUSRD}, {so} offen", 'prep')
    for i in range(8):
        E.vm(f"buffer_load_dword v{WR+16+i}, v{249 + (i >> 2)}, {WDSRD}, 0 offen" + (f" offset:{1024*(i & 3)}" if i & 3 else ""), 'prep')
    E(f"""
    s_lshl_b32 s24, s{S_CB}, 12
    s_lshl_b32 s25, s{S_W}, 10
    s_add_u32 s24, s24, s25
    """)
    for ch in range(2):
        for j in range(4):
            E(f"s_add_u32 s26, s24, {ch*4096 + 4 + 4*j}\ns_add_u32 m0, s25, {ch*HC_CH + j*HC_J + 64}\ns_nop 0")
            E.vm(f"buffer_load_dwordx4 v{VL16}, {HSRD}, s26 offen lds", 'hdma')
    E(f"""
    s_and_b32 s{S_ROLE}, s{S_M}, 15
    s_lshr_b32 s24, s{S_M}, 4
    s_lshl_b32 s24, s24, 3
    s_add_u32 s{S_C}, s{S_G}, s24
    s_lshr_b32 s{S_TH}, s{S_ROLE}, 3
    s_and_b32 s{S_J}, s{S_ROLE}, 7
    v_and_b32 v20, 7, v8                     ; tok
    v_bfe_u32 v21, v8, 3, 1                  ; hi
    v_lshrrev_b32 v22, 4, v8                 ; ks
    v_lshlrev_b32 v9, 10, v20
    v_lshl_add_u32 v9, v22, 5, v9
    v_lshl_add_u32 v9, v21, 4, v9
    s_lshl_b32 s24, s{S_C}, 7
    s_lshl_b32 s25, s{S_ROLE}, 3
    s_add_u32 s24, s24, s25
    s_lshl_b32 s24, s24, 10
    s_lshl_b32 s25, s{S_W}, 8
    s_add_u32 s24, s24, s25
    {srd_fix(S_Q, 2097152)}
    """)
    E.vm(f"buffer_load_dwordx4 {ar(A_Q, 4)}, v9, s[{S_Q}:{S_Q+3}], s24 offen", 'q')
    E.vm(f"buffer_load_dwordx4 {ar(A_Q+4, 4)}, v9, s[{S_Q}:{S_Q+3}], s24 offen offset:128", 'q')
    NPF = opt.get('npf', 4)
    E("s_getpc_b64 s[32:33]\nL_pc:\nv_lshlrev_b32 v31, 6, v0")
    for i in range(NPF):
        E(f"v_add_u32 v{24+i}, {16384*i}, v31\nv_min_u32 v{24+i}, L_codeend-L_pc-64, v{24+i}")
        E.vm(f"global_load_dword v255, v{24+i}, s[32:33]", 'pf')
    stamp('issued')
    E(f"""
    s_getreg_b32 s{S_XCC}, hwreg(HW_REG_XCC_ID, 0, 4)
    s_lshl_b32 s{S_W1K}, s{S_W}, 13
    s_mul_i32 s{S_W1}, s{S_ROLE}, 229376
    s_add_u32 s{S_W1}, s{S_W1}, s{S_W1K}
    s_add_u32 s{S_W1}, s{S_W1}, {WS_W1F}
    s_and_b32 s{S_OUT+1}, s{S_OUT+1}, 0xffff
    s_mov_b32 s{S_OUT+2}, 2097152
    s_mov_b32 s{S_OUT+3}, 0x20000
    s_mov_b32 s{S_HI}, 0xffff0000
    s_mov_b32 s{S_LN2}, {LN2:#x}
    s_mov_b32 s{S_LN2+1}, {LN2:#x}
    s_mov_b32 s{S_EXP}, 1
    s_and_b32 s{S_XCC}, s{S_XCC}, 7
    v_add_u32 v{VA1}, 65536, v{VL16}
    v_add_u32 v{VA2}, 131072, v{VL16}
    v_lshlrev_b32 v{VP8}, 2, v20
    v_and_b32 v{VP16}, 15, v8
    v_lshlrev_b32 v{VP16}, 2, v{VP16}
    v_mov_b32 v{VF0}, {OOB}
    v_cmp_eq_u32 vcc, 0, v8
    v_mov_b32 v31, 0
    s_lshr_b32 s30, s{S_ROLE}, 2             ; tt_r
    s_and_b32 s24, s{S_ROLE}, 3
    v_cndmask_b32 v{VF0}, v{VF0}, v31, vcc
    s_lshl_b32 s25, s24, 7
    v_lshlrev_b32 v{VR}, 10, v22
    v_lshl_add_u32 v{VR}, v21, 9, v{VR}
    v_lshl_add_u32 v{VR}, v20, 4, v{VR}
    v_add_u32 v{VR}, s25, v{VR}
    ; stats addresses
    v_lshlrev_b32 v{VSTR}, 5, v20
    v_add_u32 v{VSTR}, {STATS}, v{VSTR}
    v_and_b32 v31, 1, v22
    v_lshl_add_u32 v{VSTW}, v31, 2, v{VSTR}
    s_lshl_b32 s25, s{S_W}, 3
    v_add_u32 v{VSTW}, s25, v{VSTW}
    v_lshlrev_b32 v10, 12, v22
    v_lshl_add_u32 v10, v21, 11, v10
    v_lshl_add_u32 v10, v20, 2, v10
    s_lshl_b32 s25, s{S_G}, 19
    s_lshr_b32 s26, s{S_C}, 3
    s_lshl_b32 s26, s26, 17
    s_add_u32 s25, s25, s26
    s_lshl_b32 s26, s30, 15
    s_add_u32 s{S_R}, s25, s26
    s_lshl_b32 s26, s{S_W}, 13
    s_add_u32 s{S_R}, s{S_R}, s26
    s_lshl_b32 s26, s{S_W}, 15
    s_add_u32 s{S_XNL}, s25, s26             ; XB + w*32768
    s_lshl_b32 s26, s{S_C}, 2
    s_add_u32 s27, s26, s{S_W}
    s_mul_i32 s27, s27, 114688
    s_lshr_b32 s28, s{S_ROLE}, 2
    s_mul_i32 s28, s28, 28
    s_and_b32 s29, s{S_ROLE}, 3
    s_add_u32 s28, s28, s29
    s_lshl_b32 s28, s28, 10
    s_add_u32 s{S_HST}, s27, s28
    s_lshl_b32 s27, s{S_TH}, 1
    s_add_u32 s27, s27, s26
    s_mul_i32 s27, s27, 114688
    s_mul_i32 s28, s{S_W}, 28672
    s_add_u32 s{S_HLD}, s27, s28             ; (4c+2th)*114688 + 28w*1024
    s_and_b32 s26, s{S_W}, 1
    s_lshl_b32 s26, s26, 1
    s_lshr_b32 s27, s{S_W}, 1
    s_add_u32 s26, s26, s27
    s_lshl_b32 s27, s{S_J}, 2
    s_add_u32 s26, s26, s27                  ; kappa_o = 4j + 2(w&1) + (w>>1)
    s_lshl_b32 s27, s26, 10
    s_lshl_b32 s28, s{S_TH}, 16
    s_add_u32 s27, s27, s28
    s_add_u32 s{S_XML}, s27, s25
    ; flags
    s_lshl_b32 s25, s{S_C}, 8
    s_lshl_b32 s27, s30, 6
    s_add_u32 s27, s27, s25
    s_lshl_b32 s28, s24, 4
    s_add_u32 s27, s27, s28
    s_lshl_b32 s28, s{S_W}, 2
    s_add_u32 s{S_FXNS}, s27, s28
    s_lshl_b32 s27, s{S_W}, 6
    s_add_u32 s{S_FXNL}, s25, s27            ; c*256 + w*64
    s_lshl_b32 s25, s{S_C}, 10
    s_lshr_b32 s27, s{S_W}, 1
    s_lshl_b32 s27, s27, 7
    s_add_u32 s27, s27, s25
    s_lshl_b32 s29, s{S_ROLE}, 3
    s_add_u32 s27, s27, s29
    s_and_b32 s29, s{S_W}, 1
    s_lshl_b32 s29, s29, 2
    s_add_u32 s{S_FHS}, s27, s29             ; c*1024 + (w>>1)*128 + role*8 + (w&1)*4
    s_lshl_b32 s27, s{S_TH}, 7
    s_add_u32 s27, s27, s25
    s_lshl_b32 s29, s{S_W}, 5
    s_add_u32 s{S_FHL}, s27, s29             ; c*1024 + th*128 + w*32
    s_lshl_b32 s25, s{S_C}, 9
    s_lshl_b32 s27, s{S_TH}, 7
    s_add_u32 s27, s27, s25
    s_lshl_b32 s29, s{S_J}, 4
    s_add_u32 s27, s27, s29
    s_add_u32 s{S_FX2S}, s27, s28            ; c*512 + th*128 + j*16 + w*4
    s_lshr_b32 s27, s30, 1
    s_lshl_b32 s27, s27, 7
    s_add_u32 s27, s27, s25
    s_lshl_b32 s29, s{S_W}, 5
    s_add_u32 s{S_FX2L}, s27, s29            ; c*512 + (tt_r>>1)*128 + w*32
    s_add_u32 s{S_FXNS}, s{S_FXNS}, {FL_XN}
    s_add_u32 s{S_FXNL}, s{S_FXNL}, {FL_XN}
    s_add_u32 s{S_FHS}, s{S_FHS}, {FL_H}
    s_add_u32 s{S_FHL}, s{S_FHL}, {FL_H}
    s_add_u32 s{S_FX2S}, s{S_FX2S}, {FL_X2}
    s_add_u32 s{S_FX2L}, s{S_FX2L}, {FL_X2}
    s_mul_i32 s25, s{S_W}, 6144
    s_add_u32 s25, s25, {SCR}
    v_add_u32 v{VRR}, s25, v{VL16}
    """)
    for m in (1, 2, 3):
        E(f"""
        s_xor_b32 s25, s{S_W}, {m}
        s_mul_i32 s25, s25, 6144
        s_add_u32 s25, s25, {SCR + (m-1)*2048}
        v_add_u32 v{VRW[m-1]}, s25, v{VL16}
        """)
    E(f"""
    s_lshl_b32 s{S_WDB}, s{S_J}, 2
    s_add_u32 s{S_WDB}, s{S_WDB}, s{S_W}
    s_mul_i32 s{S_WDB}, s{S_WDB}, 57344
    s_add_u32 s{S_WDB}, s{S_WDB}, {WS_WDF}
    s_lshr_b32 s25, s{S_W}, 1
    s_lshl_b32 s25, s25, 8
    v_xor_b32 v31, s25, v{VL16}
    s_and_b32 s25, s{S_W}, 1
    s_lshl_b32 s25, s25, 10
    v_add_u32 v{VWD}, s25, v31
    s_xor_b32 s25, s25, 1024
    v_add_u32 v{VWD+1}, s25, v31
    s_waitcnt lgkmcnt(0)
    s_mul_i32 s{S_N}, s{S_E}, 0x9e3779b1
    s_add_u32 s{S_N}, s{S_N}, 0x7f4a7c15
    s_and_b32 s{S_N}, s{S_N}, 0xfffffff0
    s_or_b32 s{S_XCC}, s{S_XCC}, s{S_N}
    v_mov_b32 v{VONE}, s{S_N}
    ; flag slot of this work-group in the [64][4] arrays
    s_and_b32 s86, s2, 63
    s_lshl_b32 s86, s86, 7
    s_lshr_b32 s24, s2, 6
    s_lshl_b32 s24, s24, 2
    s_add_u32 s86, s86, s24
    s_cmp_lg_u32 s{S_W}, 3
    s_cbranch_scc1 L_nos0
    v_mov_b32 v31, s{S_XCC}
    s_add_u32 s24, s86, {FL_S0}
    """)
    n_after = len(E.vmq) - 6
    E(f"s_waitcnt vmcnt({n_after})")
    E(f"buffer_store_dword v31, v{VF0}, {WSRD}, s24 offen sc1")
    E("L_nos0:")
    stamp('setup')
    W1D, WDD = 251, 252
    VA_, VB_ = 62, 63
    E(f"""
    ; W1 image destination: tile (role, tau), row h for the even column, h + 8 for the odd one
    v_mul_u32_u24 v20, 1171, v0
    v_lshrrev_b32 v20, 16, v20               ; t / 56
    v_mul_u32_u24 v21, 56, v20
    v_sub_u32 v21, v0, v21
    s_and_b32 s24, s2, 3
    s_lshl_b32 s24, s24, 2
    v_add_u32 v20, s24, v20                  ; role
    v_mul_u32_u24 v20, 7, v20
    v_lshrrev_b32 v22, 3, v21
    v_add_u32 v20, v20, v22
    v_lshlrev_b32 v20, 15, v20
    v_and_b32 v21, 7, v21
    v_lshl_add_u32 v20, v21, 4, v20
    s_lshr_b32 s24, s2, 2                    ; kg
    s_lshr_b32 s25, s24, 1
    s_lshl_b32 s25, s25, 10
    s_and_b32 s24, s24, 1
    s_lshl_b32 s24, s24, 9
    s_add_u32 s25, s25, s24
    s_add_u32 s25, s25, {WS_W1F}
    v_add_u32 v{W1D}, s25, v20
    v_cmp_gt_u32 vcc, 224, v0
    v_mov_b32 v31, 0xf0000000
    s_lshr_b32 s24, s2, 1                    ; kf
    v_cndmask_b32 v{W1D}, v31, v{W1D}, vcc
    s_mul_i32 s25, s24, 2341
    s_lshr_b32 s25, s25, 16                  ; kf / 28
    s_mul_i32 s26, s25, 28
    s_sub_u32 s26, s24, s26
    s_mul_i32 s25, s25, 57344
    s_lshl_b32 s26, s26, 11
    s_add_u32 s25, s25, s26
    s_and_b32 s26, s2, 1
    s_lshl_b32 s26, s26, 9
    s_add_u32 s25, s25, s26
    s_add_u32 s25, s25, {WS_WDF}
    s_cmp_ge_u32 s2, 224
    s_cselect_b32 s25, 0xf0000000, s25
    ; Wd image destination: j = t>>5, dt = bit 4, row = 2 b0 + 4 b1 + 16 b2 + b3
    v_lshrrev_b32 v20, 5, v0
    v_mul_u32_u24 v20, 229376, v20
    v_bfe_u32 v21, v0, 4, 1
    v_lshl_add_u32 v20, v21, 10, v20
    v_and_b32 v21, 3, v0
    v_lshlrev_b32 v21, 1, v21
    v_bfe_u32 v22, v0, 2, 1
    v_lshl_or_b32 v21, v22, 4, v21
    v_bfe_u32 v22, v0, 3, 1
    v_or_b32 v21, v21, v22
    v_lshl_add_u32 v20, v21, 4, v20
    v_add_u32 v{WDD}, s25, v20
    v_and_b32 v20, 15, v8                    ; r
    v_lshrrev_b32 v21, 4, v8                 ; g
    v_and_b32 v22, 3, v8                     ; j'
    v_bfe_u32 v23, v8, 2, 2                  ; q
    s_lshr_b32 s24, s{S_W}, 1                ; ch
    s_and_b32 s25, s{S_W}, 1
    s_lshl_b32 s25, s25, 8
    s_mul_i32 s26, s24, {HC_CH}
    s_add_u32 s26, s26, s25
    v_mul_u32_u24 v24, {HC_J}, v22
    v_add_u32 v25, v21, v23
    v_lshl_add_u32 v24, v25, 4, v24
    v_add_u32 v{VA_}, s26, v24
    s_mul_i32 s26, s24, {XR_CH}
    s_add_u32 s26, s26, s25
    s_add_u32 s26, s26, {XRB + 16*252 - 3584}
    v_and_b32 v22, 7, v8                     ; n'
    v_bfe_u32 v23, v8, 3, 1                  ; par'
    v_mul_u32_u24 v24, {XR_P}, v23
    v_lshlrev_b32 v25, 6, v22
    v_sub_u32 v24, v24, v25
    v_lshl_add_u32 v24, v21, 4, v24
    v_add_u32 v{VB_}, s26, v24
    v_lshrrev_b32 v20, 6, v0
    v_and_b32 v20, 1, v20
    v_mul_u32_u24 v20, {XR_CH}, v20
    v_bfe_u32 v21, v0, 5, 1
    v_mul_u32_u24 v21, {XR_P}, v21
    v_add_u32 v20, v20, v21
    v_and_b32 v21, 31, v0
    v_lshl_add_u32 v20, v21, 4, v20
    v_add_u32 v20, {XRB + 4096}, v20
    v_mov_b32 v24, 0
    v_mov_b32 v25, 0
    v_mov_b32 v26, 0
    v_mov_b32 v27, 0
    """)
    E.ds("ds_write_b128 v20, v[24:27]", 'pad')
    E(f"""
    ; kv stores: cp*16384 + 4080 - 128 m - 16 tg
    v_and_b32 v20, 31, v0
    v_lshrrev_b32 v21, 5, v0                 ; tg
    v_lshlrev_b32 v53, 14, v20
    v_lshlrev_b32 v22, 4, v21
    v_sub_u32 v53, v53, v22
    s_lshl_b32 s24, s{S_M}, 7
    s_sub_u32 s24, 4080, s24
    v_add_u32 v53, s24, v53
    ; staging tile reads
    v_lshlrev_b32 v54, 10, v21
    v_lshl_add_u32 v54, v20, 2, v54
    v_add_u32 v55, {VT}, v54
    v_add_u32 v54, {KT}, v54
    ; group flag poll: line 8 l + gamma
    v_and_b32 v30, 7, v8
    v_lshlrev_b32 v30, 10, v30
    s_lshl_b32 s24, s{S_G}, 7
    s_add_u32 s24, s24, {FL_S0}
    v_add_u32 v30, s24, v30
    """)
    VXW, VKVW, VYS, VT0, VS1P, VEP = 22, 248, 249, 250, 253, 254
    S_XL = 72
    E(f"""
    v_lshlrev_b32 v{VXW}, 4, v0
    v_add_u32 v{VXW}, {XRB}, v{VXW}
    s_lshl_b32 s24, s{S_CB}, 13
    s_lshl_b32 s25, s{S_W}, 10
    s_add_u32 s24, s24, s25
    s_add_u32 s{S_XL}, s24, {WS_KVT}
    s_add_u32 s{S_XL+1}, s24, {WS_KVT + 4096}
    s_add_u32 s{S_XL+2}, s24, {WS_KVT + 8192}
    s_add_u32 s{S_XL+3}, s24, {WS_KVT + 12288}
    s_mov_b32 s56, 0x05040100
    s_mov_b32 s57, 0x07060302
    v_and_b32 v20, 7, v8                     ; n'
    v_bfe_u32 v21, v8, 3, 1                  ; par'
    v_lshrrev_b32 v23, 4, v8                 ; g
    v_lshlrev_b32 v31, 6, v20
    v_lshl_add_u32 v31, v23, 4, v31          ; 64 n' + 16 g
    v_mul_u32_u24 v{VKVW}, {XR_P}, v21
    v_sub_u32 v{VKVW}, v{VKVW}, v31
    s_lshl_b32 s24, s{S_W}, 10
    s_sub_u32 s24, {XRB + 4080 - 512}, s24
    v_add_u32 v{VKVW}, s24, v{VKVW}
    v_lshrrev_b32 v31, 2, v20
    v_lshlrev_b32 v{VYS}, 17, v31
    v_and_b32 v31, 3, v20
    v_lshl_add_u32 v{VYS}, v31, 7, v{VYS}
    v_lshl_add_u32 v{VYS}, v23, 5, v{VYS}
    v_lshl_add_u32 v{VYS}, v21, 4, v{VYS}    ; (n'>>2)*131072 + (n'&3)*128 + g*32 + par'*16
    s_lshl_b32 s24, s{S_CP}, 9
    s_lshl_b32 s25, s{S_W}, 19
    s_add_u32 s24, s24, s25
    s_add_u32 s58, s24, {WS_Y}               ; + cp*512 + 2w*262144
    s_lshl_b32 s24, s{S_C}, 17
    s_lshl_b32 s25, s{S_ROLE}, 5
    s_add_u32 s24, s24, s25
    s_lshl_b32 s25, s{S_W}, 15
    s_add_u32 s24, s24, s25
    s_add_u32 s59, s24, {WS_Y}               ; + c*131072 + role*32 + 64w*512
    s_lshl_b32 s60, s{S_D}, 16
    s_and_b32 s61, s{S_D}, 0xffff0000
    v_mov_b32 v{VT0}, {OOB}
    v_mov_b32 v31, 0
    v_cmp_eq_u32 vcc, 0, v0
    v_lshlrev_b32 v{VS1P}, 7, v8
    v_add_u32 v{VS1P}, {FL_S1}, v{VS1P}
    v_cndmask_b32 v{VT0}, v{VT0}, v31, vcc
    s_cmp_eq_u32 s2, 0
    s_cselect_b32 s24, {FL_EPOCH}, {OOB}
    v_add_u32 v{VEP}, s24, v{VT0}
    v_or_b32 v{VEP}, v{VEP}, v{VT0}
    s_add_u32 s87, s86, {FL_S1}
    """)
    E.wait_vm('sk')
    E.wait_ds('pad')
    E("s_barrier")
    stamp('b0')
    S0R = 24
    E.vm(f"buffer_load_dwordx4 v[{S0R}:{S0R+3}], v30, {WSRD}, 0 offen sc1", 's0')
    KR, VRW_ = 32, 44
    for x in range(0, 8, 2): E.ds(f"ds_read2_b32 v[{KR+x}:{KR+x+1}], v54 offset0:{32*x} offset1:{32*(x+1)}", 'kv')
    E("v_add_u32 v20, 1024, v54\nv_add_u32 v21, 1024, v55")
    for x in range(8, 12, 2): E.ds(f"ds_read2_b32 v[{KR+x}:{KR+x+1}], v20 offset0:{32*(x-8)} offset1:{32*(x-7)}", 'kv')
    for x in range(0, 8, 2): E.ds(f"ds_read2_b32 v[{VRW_+x}:{VRW_+x+1}], v55 offset0:{32*x} offset1:{32*(x+1)}", 'kv')
    E.ds(f"ds_read_b32 v{VRW_+8}, v21", 'kv')
    E.ds(f"ds_write_b16 v61, v{HEAD}", 'head')
    E(f"""
    v_lshlrev_b32 v136, 16, v{SK}
    v_lshlrev_b32 v137, 16, v{SK+2}
    v_and_b32 v138, s{S_HI}, v{SK}
    v_and_b32 v139, s{S_HI}, v{SK+2}
    v_lshlrev_b32 v140, 16, v{SK+1}
    v_lshlrev_b32 v141, 16, v{SK+3}
    v_and_b32 v142, s{S_HI}, v{SK+1}
    v_and_b32 v143, s{S_HI}, v{SK+3}
    """)
    E.wait_ds('kv')
    for i in range(12): E(f"v_lshlrev_b32 v{96+2*i}, 16, v{KR+i}\nv_and_b32 v{97+2*i}, s{S_HI}, v{KR+i}")
    for i in range(9): E(f"v_lshlrev_b32 v{164+2*i}, 16, v{VRW_+i}\nv_and_b32 v{165+2*i}, s{S_HI}, v{VRW_+i}")
    def K(x): return f"v[{96+2*x}:{97+2*x}]"
    def KV(i): return 144 + 2*i
    for i in range(9): E(f"v_pk_mul_f32 v[{KV(i)}:{KV(i)+1}], v[136:137], {K(i+3)}")
    for tap in (1, 2, 3):
        for i in range(9): E(f"v_pk_fma_f32 v[{KV(i)}:{KV(i)+1}], v[{136+2*tap}:{137+2*tap}], {K(i+3-tap)}, v[{KV(i)}:{KV(i)+1}]")
    for i in range(9): E(f"v_pk_mul_f32 v[{KV(i)}:{KV(i)+1}], v[{KV(i)}:{KV(i)+1}], v[{164+2*i}:{165+2*i}]")
    E(f"""
    s_lshl_b32 s24, s{S_G}, 19
    s_add_u32 s24, s24, {WS_KVT}
    s_add_u32 s25, s24, 4096
    s_add_u32 s26, s24, 8192
    s_add_u32 s27, s24, 12288
    """)
    for c in range(2):
        for par in range(2):
            b = KR + 8*c + 4*par
            for d in range(4): E(f"v_cvt_pk_bf16_f32 v{b+d}, v{KV(8-par-2*d)+c}, v{KV(7-par-2*d)+c}")
            E.vm(f"buffer_store_dwordx4 v[{b}:{b+3}], v53, {WSRD}, s{24 + 2*c + par} offen", 'kvst')
    stamp('kvst')

    X, Y = 128, 136
    XF, YF, T = 144, 160, 176
    def stats(src, rnd, between=None, scale=False):
        P, Q = 192, 194
        E(f"v_pk_add_f32 v[{P}:{P+1}], v[{src}:{src+1}], v[{src+2}:{src+3}]")
        E(f"v_pk_mul_f32 v[{Q}:{Q+1}], v[{src}:{src+1}], v[{src}:{src+1}]")
        for i in range(1, 8):
            E(f"v_pk_fma_f32 v[{Q}:{Q+1}], v[{src+2*i}:{src+2*i+1}], v[{src+2*i}:{src+2*i+1}], v[{Q}:{Q+1}]")
            if i >= 2: E(f"v_pk_add_f32 v[{P}:{P+1}], v[{P}:{P+1}], v[{src+2*i}:{src+2*i+1}]")
        E(f"""
        v_add_f32 v{P}, v{P}, v{P+1}
        v_add_f32 v{Q}, v{Q}, v{Q+1}
        v_permlane16_swap_b32 v{P}, v{Q}
        v_add_f32 v{P}, v{P}, v{Q}
        v_add_f32_dpp v{P}, v{P}, v{P} row_ror:8 row_mask:0xf bank_mask:0xf
        v_mov_b32 v{P+1}, v{P}
        v_permlane32_swap_b32 v{P}, v{P+1}
        v_add_f32 v{P}, v{P}, v{P+1}
        s_mov_b64 exec, 0x00ff00ff
        """)
        E.ds(f"ds_write_b32 v{VSTW}, v{P} offset:{rnd*256}", 'stw')
        E("s_mov_b64 exec, -1")
        E.wait_ds('stw')
        E("s_barrier")
        E.ds(f"ds_read_b128 v[196:199], v{VSTR} offset:{rnd*256}", 'str')
        E.ds(f"ds_read_b128 v[200:203], v{VSTR} offset:{rnd*256+16}", 'str')
        if between: between()
        E.wait_ds('str')
        E(f"""
        v_pk_add_f32 v[196:197], v[196:197], v[198:199]
        v_pk_add_f32 v[200:201], v[200:201], v[202:203]
        v_pk_add_f32 v[196:197], v[196:197], v[200:201]
        v_mul_f32 v196, 0x3b000000, v196
        v_mul_f32 v197, 0x3b000000, v197
        v_fma_f32 v197, -v196, v196, v197
        v_max_f32 v197, 0, v197
        v_add_f32 v197, 0x3727c5ac, v197
        v_rsq_f32 v204, v197
        s_nop 0
        """)
        if scale: E(f"v_mul_f32 v204, {LOG2E:#x}, v204")
        E("v_mul_f32_e64 v206, -v196, v204")
    def norm(dst, src):
        for i in range(8):
            E(f"v_pk_fma_f32 v[{dst+2*i}:{dst+2*i+1}], v[{src+2*i}:{src+2*i+1}], v[204:205], v[206:207] op_sel_hi:[1,0,0]")
    def unpack(dst, src, n):
        for i in range(n):
            E(f"v_lshlrev_b32 v{dst+2*i}, 16, v{src+i}")
            E(f"v_and_b32 v{dst+2*i+1}, s{S_HI}, v{src+i}")
    def R_pre(L, between=None):
        unpack(XF, X, 8)
        stats(XF, 0, between)
        norm(T, XF)
        stamp(f'R{L}s1')
    def R_post(L, early=None, late=None):
        unpack(YF, Y, 8)
        for i in range(8):
            E(f"v_pk_fma_f32 v[{XF+2*i}:{XF+2*i+1}], v[{T+2*i}:{T+2*i+1}], v[{YF+2*i}:{YF+2*i+1}], v[{XF+2*i}:{XF+2*i+1}]")
        M = 208
        for i in range(8): E(f"v_cvt_pk_bf16_f32 v{M+i}, v{XF+2*i}, v{XF+2*i+1}")
        sadd(S_T0, S_R, WS_XM); sadd(S_T1, S_R, WS_XM + 4096)
        E.vm(f"buffer_store_dwordx4 v[{M}:{M+3}], v{VR}, {WSRD}, s{S_T0} offen" + FL('xm', L), 'rst')
        E.vm(f"buffer_store_dwordx4 v[{M+4}:{M+7}], v{VR}, {WSRD}, s{S_T1} offen" + FL('xm', L), 'rst')
        if early: early()
        stats(XF, 1, between=late, scale=True)
        norm(T, XF)
        N = 216
        for i in range(8): E(f"v_cvt_pk_bf16_f32 v{N+i}, v{T+2*i}, v{T+2*i+1}")
        sadd(S_T0, S_R, WS_XN); sadd(S_T1, S_R, WS_XN + 4096)
        E.vm(f"buffer_store_dwordx4 v[{N}:{N+3}], v{VR}, {WSRD}, s{S_T0} offen" + FL('xn', L), 'rst')
        E.vm(f"buffer_store_dwordx4 v[{N+4}:{N+7}], v{VR}, {WSRD}, s{S_T1} offen" + FL('xn', L), 'rst')
        stamp(f'R{L}st')
    def Rpub(L):
        publish(S_FXNS, 0, 'rst')
        E("s_barrier")
        stamp(f'R{L}pub')

    ORDER = {}
    def g2_order():
        stA = [0, 1, 2]; stB = [3, 4, 5]; stC = [6]
        def blocks(tt, ps): return [(tt, rho, p) for p in ps for rho in range(4)]
        b1 = blocks(1, stB); nb1 = opt.get('b1_first', 4)
        return blocks(0, stA) + blocks(1, stA) + blocks(0, stB) + b1[:nb1] + blocks(0, stC) + b1[nb1:] + blocks(1, stC)
    def wd_kseq(L):
        kseq = []
        for (tt, rho, p) in g2_order():
            kp = rho*7 + LAYERS[L]['tau'][p]
            if kp not in kseq: kseq.append(kp)
        return kseq
    def make_bulk():
        c = LAYERS[0]; ops = []
        for p in range(4): ops += dma_stream(c['tau'][p], c['slot'][p], f'w1_{p}')
        ops += wd_stream(wd_kseq(0))
        return Bulk(ops)
    BK = {}

    def layer(L):
        cfg = LAYERS[L]; tau = cfg['tau']; slot = cfg['slot']
        O = lambda k, d: opt.get(f'{k}{L}', opt.get(k, d))
        G2 = 224; NS = 336; lastslot = NS - 1
        BUD = O('bud', 24); VGAP = O('vgap', 2)
        F = {}; cost = [0]*(NS + 64); vslots = set()
        for i in range(G2):
            if i + LA < G2: cost[i] += 4
            if i % 2 == 0: cost[i] += 4
            if i < 96 and i % 3 == 0 and i > 0: cost[i] += 4
        for i in range(G2, NS, 2): cost[i] += 4
        RANK = {'m': 0, 's': 1, 'v': 2}
        def at(i, f, c=4, k='v'): F.setdefault(i, ([], [], []))[RANK[k]].append(f); cost[i] += c
        last = {'k': 'm', 't': -1}
        def put(t, f, c=4, k='v', vm=False, chain=False):
            if vm: k = 'm'
            if chain:
                t = max(t, last['t'] + (1 if RANK[k] < RANK[last['k']] else 0))
            while cost[t] + c > BUD or (vm and any((t + d) in vslots for d in range(-VGAP + 1, VGAP))): t += 1
            if vm: vslots.add(t)
            at(t, f, c, k); last['k'] = k; last['t'] = t
            return t
        def stream(t, ops):
            first = True
            for (c, vm, f) in ops:
                t = put(t, f, c, 's', vm, chain=not first); first = False
            return t
        def T_(s): return lambda: E(s)
        def barrier(): E("s_barrier")
        poll_issue(VP16, S_FXNL, 0, f'pxn{L}')
        if L == 0: BK['b'].emit(opt.get('bk_pub', 0))
        poll_check(VP16, S_FXNL, 0, f'pxn{L}')
        stamp(f'L{L}xnok')
        def xops(k):
            ops = []
            if k % 4 == 0: ops.append((4, False, lambda: sadd(S_XA, S_XNL, WS_XN + (k >> 2)*4096)))
            off = (k & 3)*1024
            ops.append((4, True, lambda: E.vm(f"buffer_load_dwordx4 v[{XR+4*k}:{XR+4*k+3}], v{VL16}, {WSRD}, s{S_XA} offen" + (f" offset:{off}" if off else "") + LSC, f'x{L}_{k}')))
            return ops
        n_up = O('nup', 5)
        for k in range(n_up):
            for (_, _, f) in xops(k): f()
        seq = []
        for k in range(32):
            for p in range(3): seq.append(('g1', p, k))
        for p in range(3, 7):
            for k in range(32): seq.append(('g1', p, k))
        accp = [0, 1, 2, 3, 0, 1, 2]
        def a_addr(p, k):
            s = slot[p]
            base = [VL16, VL16, VA1, VA1, VA2][s]
            off = (s & 1)*SLOT + k*1024 if s < 4 else k*1024
            return base, off
        def rd(i):
            _, p, k = seq[i]
            b, off = a_addr(p, k)
            r = RING + 4*(i % 8)
            E.ds(f"ds_read_b128 v[{r}:{r+3}], v{b} offset:{off}", f'a{L}_{i}')
        order = g2_order()
        assert len(order) == 56
        last0 = max(n for n, b in enumerate(order) if b[0] == 0)
        acc2 = {0: [ACC[0], ACC[1]], 1: [ACC[3], ACC[2]]}
        NH = 37
        def hreg(n):
            q = n % NH
            return ar(A_H + 4*q, 4) if q < 5 else vr(XR + 4*(q - 5), 4)
        def epilogue(p, o):
            c = ACC[accp[p]]
            for e in range(8):
                at(o + e, T_(f"v_exp_f32_e64 v{c+e}, -v{c+e}"), 8)
                at(o + e + 1, T_(f"v_add_f32 v{c+e}, 1.0, v{c+e}"))
                at(o + 8 + e, T_(f"v_rcp_f32 v{c+e}, v{c+e}"), 8)
                at(o + 9 + e, T_(f"v_mul_f32 v{c+e}, v{c+e}, v{c+8+e}"))
        def epilogue2(p, o):
            c = ACC[accp[p]]
            t = 0
            for k in range(4):
                t = put(max(t, o + 11 + 2*k), T_(f"v_cvt_pk_bf16_f32 v{c+8+k}, v{c+2*k}, v{c+2*k+1}"))
            stage = 'A' if p < 3 else ('B' if p < 6 else 'C')
            put(o + 10, T_(f"s_add_u32 s{S_HS[p & 1]}, s{S_HST}, {WS_H + tau[p]*4096}"), k='s')
            return put(t + 1, lambda: E.vm(f"buffer_store_dwordx4 v[{c+8}:{c+11}], v{VL16}, {WSRD}, s{S_HS[p & 1]} offen" + FL('h', L), f'h{stage}{L}'), vm=True)
        eo = [99, 115, 131, 147, 163, 196, 228]
        for p in range(7): epilogue(p, eo[p])
        est = [epilogue2(p, eo[p]) for p in range(7)]
        assert est[0] < 126 and est[1] < 158 and est[2] < 190 and est[5] < 222 and est[6] < 248, est
        at(121, lambda: (E.wait_vm(f'w4{L}'), barrier()), 8, 's')
        at(96, barrier, 4, 's')
        at(153, lambda: (E.wait_vm(f'w5{L}'), barrier()), 8, 's')
        at(185, lambda: (E.wait_vm(f'w6{L}'), barrier()), 8, 's')
        t = 0
        for k in range(n_up, 32):
            t = stream(max(t + (1 if k % 4 == 0 and k > n_up else 0), O('xsp', 2)*(k - n_up)), xops(k))
        t = stream(t + 1, dma_stream(tau[4], slot[4], f'w4{L}'))
        w4end = t
        t = stream(97, dma_stream(tau[5], slot[5], f'w5{L}'))
        w5end = t
        t = stream(t + 1, dma_stream(tau[6], slot[6], f'w6{L}'))
        w6end = t
        assert w4end < 108 and w5end < 140 and w6end < 172, (w4end, w5end, w6end)
        XM0 = 20; XM1 = 24
        def xm_ops(tt):
            return [(4, False, lambda: sadd(S_XA, S_XML, WS_XM + tt*32768)),
                    (4, True, lambda: E.vm(f"buffer_load_dwordx4 v[{XM0+4*tt}:{XM0+4*tt+3}], v{VL16}, {WSRD}, s{S_XA} offen" + LSC, f'xm{L}'))]
        stream(stream(O('xm_at', 152), xm_ops(0)) + 1, xm_ops(1))
        fh = 0
        pub = {}; chk = {}
        for (st_, k, e) in (('A', 0, est[2]), ('B', 1, est[5]), ('C', 2, est[6])):
            tp = put(O('pub' + st_, e + 12), lambda st_=st_: E.wait_vm(f'h{st_}{L}'), k='s')
            tp = put(tp, lambda st_=st_, k=k: publish(S_FHS, fh + 256*k, f'h{st_}{L}', wait=False), 4, 'm', chain=True)
            tq = put(O('poll' + st_, tp + 8), lambda st_=st_, k=k: poll_issue(VP8, S_FHL, fh + 256*k, f'p{st_}{L}'), 4, 'm')
            tc = put(O('chk' + st_, tq + (12 if st_ == 'A' else 14)), lambda st_=st_: E.wait_vm(f'p{st_}{L}'), k='s')
            tc = put(tc, lambda st_=st_, k=k: poll_check(VP8, S_FHL, fh + 256*k, f'p{st_}{L}', wait=False), 8, 'v', chain=True)
            pub[st_] = tp; chk[st_] = tc
        hslot = {}
        for n0 in range(0, 56, 4):
            tt, _, p = order[n0]
            sreg = S_HA[(n0 >> 2) & 1]
            rdy = chk['A' if p < 3 else 'B' if p < 6 else 'C'] + 1
            prev = max([hslot[m] for m in range(max(0, n0 - 8), max(0, n0 - 4))], default=0)
            ta = put(max(prev, rdy - 3), lambda tt=tt, p=p, sreg=sreg: E(f"s_add_u32 s{sreg}, s{S_HLD}, {WS_H + tt*114688 + tau[p]*4096}"), k='s') + 1
            for n in range(n0, n0 + 4):
                assert order[n][0] == tt and order[n][2] == p and order[n][1] == n - n0
                q = n % NH
                if n < NH: free = 0 if q < 5 else 192 + (q - 5) + 1
                else: free = G2 + 2*(n - NH) + 2
                off = (n - n0)*1024
                hslot[n] = put(max(rdy, free, ta), lambda n=n, sreg=sreg, off=off: E.vm(f"buffer_load_dwordx4 {hreg(n)}, v{VL16}, {WSRD}, s{sreg} offen" + (f" offset:{off}" if off else "") + LSC, f'h{L}_{n}'), vm=True)
                assert hslot[n] < G2 + 2*n - 6, (L, n, hslot[n])
        if opt.get('verbose'): print('L', L, 'est', est, 'w', w4end, w5end, w6end, 'pub', pub, 'chk', chk, 'h', [hslot[n] for n in range(56)])
        if L == 0:
            firstuse = {}
            for n, (tt, rho, p) in enumerate(order): firstuse.setdefault(rho*7 + tau[p], G2 + 2*n)
            t = O('wd_at', 70)
            rest_ops = BK['b'].ops; BK['b'].ops = []
            kcur = None
            for (c_, vm_, f_) in rest_ops:
                info = getattr(f_, 'info', None)
                assert info is not None and info[0] == 'wd', 'only Wd loads may be left for G1'
                if not vm_:
                    at(t - 1, f_, 0, 's')
                else:
                    while t in vslots: t += 1
                    assert t < firstuse[info[1]] - 8, ('Wd deadline', info, t)
                    at(t, f_, 0, 'm'); t += O('wd_sp', 2)
            if opt.get('verbose'): print('last Wd load at', t)
        RB = RING
        def red_write_ops(tt):
            ops = []
            for m in (1, 3, 2):
                pd, g = m & 1, m >> 1
                src = acc2[tt][pd] + 8*g
                for hlf in range(2):
                    ops.append(lambda m=m, src=src, hlf=hlf: E.ds(f"ds_write_b128 v{VRW[m-1]}, v[{src+4*hlf}:{src+4*hlf+3}] offset:{1024*hlf}", f'rw{L}{tt}'))
            return ops
        def red_read_ops(tt):
            ops = []
            for m in range(3):
                for hlf in range(2):
                    ops.append(lambda m=m, hlf=hlf: E.ds(f"ds_read_b128 v[{RB+8*m+4*hlf}:{RB+8*m+4*hlf+3}], v{VRR} offset:{2048*m+1024*hlf}", f'rr{L}{tt}'))
            return ops
        def out_store(tt, src):
            if L == 0:
                sadd(S_T0, S_XML, WS_XN + tt*32768)
                E.vm(f"buffer_store_dwordx4 v[{src}:{src+3}], v{VL16}, {WSRD}, s{S_T0} offen", f'x2{tt}')
            else:
                sadd(S_T0, 30, tt*32768)
                E.vm(f"buffer_store_dwordx4 v[{src}:{src+3}], v28, s[{S_OUT}:{S_OUT+3}], s{S_T0} offen" + FL('o', L), f'o2{tt}')
        if L == 1:
            def out_setup():
                return [T_(x) for x in f"""v_and_b32 v28, 31, v0
                v_lshlrev_b32 v28, 10, v28
                v_bfe_u32 v29, v0, 5, 1
                v_lshl_add_u32 v28, v29, 4, v28
                s_lshl_b32 s30, s{S_C}, 17
                s_lshl_b32 s25, s{S_TH}, 16
                s_add_u32 s30, s30, s25
                s_and_b32 s25, s{S_W}, 1
                s_lshl_b32 s25, s25, 1
                s_lshr_b32 s26, s{S_W}, 1
                s_add_u32 s25, s25, s26
                s_lshl_b32 s26, s{S_J}, 2
                s_add_u32 s25, s25, s26
                s_lshl_b32 s25, s25, 5
                s_add_u32 s30, s30, s25""".split('\n')]
            t = 72
            for f in out_setup(): t = put(t, f, k='v', chain=True)
        XU = RB + 24
        t = put(G2 + 26, lambda: E.wait_vm(f'xm{L}'), k='s')
        for e in range(4):
            t = put(t, T_(f"v_lshlrev_b32 v{XU+2*e}, 16, v{XM1+e}"))
            t = put(t, T_(f"v_and_b32 v{XU+1+2*e}, s{S_HI}, v{XM1+e}"))
        m0_last = G2 + 2*last0 + 1
        t = m0_last + 5
        for f in red_write_ops(0): t = put(t, f, 8, 'm')
        t = put(t + 1, lambda: (E.wait_ds(f'rw{L}0'), barrier()), 8, 's')
        t += 1
        for f in red_read_ops(0): t = put(t, f, 4, 'm')
        own = acc2[0][0]
        t = put(t + 3, lambda: E.wait_ds(f'rr{L}0'), k='s')
        tb = t
        for e in range(8): t = put(t, T_(f"v_add_f32 v{RB+e}, v{RB+e}, v{RB+8+e}"))
        for e in range(8): t = put(t, T_(f"v_add_f32 v{own+e}, v{own+e}, v{RB+16+e}"))
        for e in range(4):
            t = put(t, T_(f"v_lshlrev_b32 v{RB+8+2*e}, 16, v{XM0+e}"))
            t = put(t, T_(f"v_and_b32 v{RB+9+2*e}, s{S_HI}, v{XM0+e}"))
        for e in range(8): t = put(t, T_(f"v_add_f32 v{own+e}, v{own+e}, v{RB+e}"))
        for e in range(8): t = put(t, T_(f"v_fma_f32 v{own+e}, v{own+e}, s{S_LN2}, v{RB+8+e}"))
        for e in range(4): t = put(t, T_(f"v_cvt_pk_bf16_f32 v{RB+e}, v{own+2*e}, v{own+2*e+1}"))
        t = put(t + 1, lambda: out_store(0, RB), 8, 'm')
        if opt.get('verbose'): print('tt0 reduction done at', t)
        put(tb + 1, barrier, k='s')
        E.wait_vm(f'x{L}_0')
        stamp(f'L{L}g1')
        for i in range(LA): rd(i)
        def emit_fill(i, mid=None):
            fm, fs, fv = F.pop(i, ([], [], []))
            if mid: mid()
            for f in fm + fs + fv: f()
        for i in range(224):
            _, p, k = seq[i]
            stamp(f'L{L}s{i}')
            if p < 3 and (i % 3) == 0 and k > 0: E.wait_vm(f'x{L}_{k}')
            if i % 2 == 0: E.wait_ds(f'a{L}_{i+1}')
            r = RING + 4*(i % 8)
            c = ACC[accp[p]]
            E(f"v_mfma_f32_32x32x16_bf16 v[{c}:{c+15}], {vr(r, 4)}, v[{XR+4*k}:{XR+4*k+3}], {'0' if k == 0 else f'v[{c}:{c+15}]'}")
            emit_fill(i, (lambda: rd(i + LA)) if i + LA < 224 else None)
        seen_kp = set()
        for n in range(56):
            tt, rho, p = order[n]
            kp = rho*7 + tau[p]
            firstb = not any(o[0] == tt for o in order[:n])
            for ii, pd in enumerate((1, 0) if n in (last0, 55) else (0, 1)):
                i = G2 + 2*n + ii
                stamp(f'L{L}s{i}')
                if ii == 0:
                    E.wait_vm(f'h{L}_{n}')
                    if L == 0 and kp not in seen_kp: E.wait_vm(f'wd{kp}'); seen_kp.add(kp)
                c = acc2[tt][pd]
                E(f"v_mfma_f32_32x32x16_bf16 v[{c}:{c+15}], {ar(A_WD + 8*kp + 4*pd, 4)}, {hreg(n)}, {'0' if firstb else f'v[{c}:{c+15}]'}")
                emit_fill(i)
        stamp(f'L{L}g2end')
        for i in sorted(F.keys()):
            assert i > lastslot, i
            emit_fill(i)
        for f in red_write_ops(1): f()
        E.wait_ds(f'rw{L}1'); E("s_barrier")
        for f in red_read_ops(1): f()
        own = acc2[1][0]
        E.wait_ds(f'rr{L}1')
        for e in range(0, 8, 2): E(f"v_pk_add_f32 v[{RB+e}:{RB+e+1}], v[{RB+e}:{RB+e+1}], v[{RB+8+e}:{RB+9+e}]")
        for e in range(0, 8, 2): E(f"v_pk_add_f32 v[{own+e}:{own+e+1}], v[{own+e}:{own+e+1}], v[{RB+16+e}:{RB+17+e}]")
        for e in range(0, 8, 2): E(f"v_pk_add_f32 v[{own+e}:{own+e+1}], v[{own+e}:{own+e+1}], v[{RB+e}:{RB+e+1}]")
        for e in range(0, 8, 2): E(f"v_pk_fma_f32 v[{own+e}:{own+e+1}], v[{own+e}:{own+e+1}], s[{S_LN2}:{S_LN2+1}], v[{XU+e}:{XU+e+1}]")
        for e in range(4): E(f"v_cvt_pk_bf16_f32 v{RB+e}, v{own+2*e}, v{own+2*e+1}")
        out_store(1, RB)
        stamp(f'L{L}st')
        if L == 0:
            publish(S_FX2S, 0, 'x21')
            stamp('x2pub')

    def marker_check(regs_, reload_, tagname):
        ls = E.label('L_mks'); lb = E.label('L_mkb')
        t = 31
        r = list(regs_)
        E(f"v_max3_u32 v{t}, v{r[0]}, v{r[1]}, v{r[2]}"); k = 3
        while k + 1 < len(r): E(f"v_max3_u32 v{t}, v{t}, v{r[k]}, v{r[k+1]}"); k += 2
        if k < len(r): E(f"v_max_u32 v{t}, v{t}, v{r[k]}")
        E(f"v_cmp_eq_u32 vcc, -1, v{t}\ns_cbranch_vccnz {ls}\n{lb}:")
        txt = f"{ls}:\ns_mov_b32 s{S_T3}, 0\n"
        for i, x in enumerate(r):
            l1 = E.label('L_mkl'); l2 = E.label('L_mkn')
            txt += f"""{l1}:
            v_cmp_eq_u32 vcc, -1, v{x}
            s_cmp_gt_u32 s{S_T3}, 0x2000
            s_cbranch_vccz {l2}
            s_cbranch_scc1 {l2}
            {reload_(i)}
            s_add_u32 s{S_T3}, s{S_T3}, 1
            s_waitcnt vmcnt(0)
            s_branch {l1}
            {l2}:
            """
        txt += f"s_branch {lb}"
        E.out_of_line(txt)

    def conv():
        XG = 64
        def xload(i): return f"buffer_load_dwordx4 v[{XG+4*i}:{XG+4*i+3}], v{VL16}, {WSRD}, s{S_XL+i} offen sc1"
        xrow = [(0, 0), (0, 1), (1, 0), (1, 1)]
        for i in range(4): E.vm(xload(i), 'x')
        stamp('xiss')
        E.wait_vm('prep')
        GE, UE, DF, DT = 32, 40, 224, 232
        def transp(src, dst, perm):
            for d in range(4): E(f"v_perm_b32 v{dst+d}, v{src+perm[2*d+1]}, v{src+perm[2*d]}, s56")
            for d in range(4): E(f"v_perm_b32 v{dst+4+d}, v{src+perm[2*d+1]}, v{src+perm[2*d]}, s57")
        nat = list(range(8))
        transp(WR, GE, nat); transp(WR+8, UE, nat)
        transp(WR+16, DF, [0, 2, 4, 6, 1, 3, 5, 7])
        for d in range(4): E(f"v_mov_b32 v{DT+d}, v{DF+d}")
        for d in range(4): E(f"v_mov_b32_dpp v{DF+d}, v{DF+4+d} row_ror:8 row_mask:0xf bank_mask:0xc")
        for d in range(4): E(f"v_mov_b32_dpp v{DF+4+d}, v{DT+d} row_ror:8 row_mask:0xf bank_mask:0x3")
        prepst = [f"buffer_store_dwordx4 v[{GE}:{GE+3}], v{W1D}, {WSRD}, 0 offen sc1",
                  f"buffer_store_dwordx4 v[{GE+4}:{GE+7}], v{W1D}, {WSRD}, 0 offen offset:128 sc1",
                  f"buffer_store_dwordx4 v[{UE}:{UE+3}], v{W1D}, {WSRD}, 0 offen offset:256 sc1",
                  f"buffer_store_dwordx4 v[{UE+4}:{UE+7}], v{W1D}, {WSRD}, 0 offen offset:384 sc1",
                  f"buffer_store_dwordx4 v[{DF}:{DF+3}], v{WDD}, {WSRD}, 0 offen sc1",
                  f"buffer_store_dwordx4 v[{DF+4}:{DF+7}], v{WDD}, {WSRD}, 0 offen offset:128 sc1"]
        ACCc = 192
        for i in range(32): E(f"v_mov_b32 v{ACCc+i}, 0")
        stamp('prep')
        E.wait_vm('x')
        marker_check([XG + 4*i for i in range(4)], xload, 'x')
        stamp('xok')
        for i, (ch, par) in enumerate(xrow):
            E.ds(f"ds_write_b128 v{VXW}, v[{XG+4*i}:{XG+4*i+3}] offset:{ch*XR_CH + par*XR_P}", 'xw')
        E.wait_ds_all()
        E("s_barrier")
        stamp('bx')
        def AF(st, g): return 64 + 32*st + 4*g
        def BF(st, u): return 128 + 32*st + 4*u
        def rdA(st, g, rho): return f"ds_read_b128 v[{AF(st,g)}:{AF(st,g)+3}], v{VA_} offset:{512*g + 64*rho}"
        def rdB(st, u, rho): return f"ds_read_b128 v[{BF(st,u)}:{BF(st,u)+3}], v{VB_} offset:{512*(7-u) + 64*rho}"
        pairs = [(t, g) for t in range(8) for g in range(t+1)]
        order = []
        for t in range(8): order.append(('B', t)); order.append(('A', t))
        def mf(st, t, g):
            return f"v_mfma_f32_16x16x32_bf16 v[{ACCc+4*t}:{ACCc+4*t+3}], v[{AF(st,g)}:{AF(st,g)+3}], v[{BF(st,t-g)}:{BF(st,t-g)+3}], v[{ACCc+4*t}:{ACCc+4*t+3}]"
        S1PUB = opt.get('s1pub', 2)
        def s1poll(): E.vm(f"buffer_load_dwordx4 v[24:27], v{VS1P}, {WSRD}, 0 offen sc1", 's1')
        for rho in range(4):
            st = rho & 1
            nxt = []
            if rho < 3: nxt = [(rdB(st^1, x, rho+1) if k == 'B' else rdA(st^1, x, rho+1)) for (k, x) in order]
            if rho == 0:
                reads = [(rdB(0, x, 0) if k == 'B' else rdA(0, x, 0)) for (k, x) in order]
                for r_ in reads[:14]: E(r_)
                issued = 14; done = 0
                allq = reads + nxt
                wq = list(prepst)
                for idx, (t, g) in enumerate(pairs):
                    if g == 0:
                        E(f"s_waitcnt lgkmcnt({issued - 2*(t+1)})"); done = 2*(t+1)
                    E(mf(0, t, g))
                    if wq and idx % 5 == opt.get('prep_ph', 2): E.vm(wq.pop(0), 'prepst')
                    if t == 7 and g == 4:
                        done += 6
                        E(f"s_waitcnt lgkmcnt({issued - done})")
                    if issued < len(allq) and issued - done < 14:
                        E(allq[issued]); issued += 1
                assert issued == len(allq) and not wq
            else:
                E("s_waitcnt lgkmcnt(0)")
                k = 0
                for idx, (t, g) in enumerate(pairs):
                    E(mf(st, t, g))
                    if nxt and idx % 2 == 0 and k < 16:
                        E(nxt[k]); k += 1
                    if rho == 3 and idx == opt.get('s1poll', 100): s1poll()
            if rho == S1PUB:
                E.wait_vm('prepst')
                E("s_barrier")
                E.vm(f"buffer_store_dword v{VONE}, v{VT0}, {WSRD}, s87 offen sc1", 's1st')
            if rho < 3: stamp(f'rho{rho+1}')
        stamp('mfend')
        E(f"""
        s_barrier
        v_add_u32 v20, s{S_W1K}, v{VL16}
        s_lshl_b32 s24, s{S_W}, 11
        v_add_u32 v21, s24, v{VL16}
        s_nop 4
        """)
        for t in range(8): E.ds(f"ds_write_b128 v20, v[{ACCc+4*t}:{ACCc+4*t+3}] offset:{1024*t}", 'rdw')
        E.wait_ds('rdw')
        E("s_barrier")
        stamp('red2')
        if opt.get('s1poll', 100) == 100: s1poll()
        for tau in range(2):
            for src in range(4):
                E.ds(f"ds_read_b128 v[{64+32*tau+4*src}:{67+32*tau+4*src}], v21 offset:{8192*src + 1024*tau}", f'rdr{tau}')
            for ch in range(2):
                E.ds(f"ds_read_b128 v[{128+8*tau+4*ch}:{131+8*tau+4*ch}], v{VKVW} offset:{ch*XR_CH + 512*(1-tau)}", f'rdr{tau}')
        for tau in range(2):
            E.wait_ds(f'rdr{tau}')
            base = 64 + 32*tau
            for ch in range(2):
                kvr = 128 + 8*tau + 4*ch
                for r in range(4): E(f"v_add_f32 v{base+8*ch+r}, v{base+8*ch+r}, v{base+8*ch+r+4}")
                for d in range(4): E(f"v_lshlrev_b32 v{kvr+d}, 16, v{kvr+d}")
                for r in range(4): E(f"v_fmac_f32 v{base+8*ch+r}, s{60+ch}, v{kvr+3-r}")
            for r in range(4): E(f"v_cvt_pk_bf16_f32 v{148+r}, v{base+r}, v{base+8+r}")
            o = 152 + 4*tau
            E(f"""
            v_mov_b32 v{o}, v150
            v_mov_b32 v{o+1}, v148
            v_mov_b32 v{o+2}, v151
            v_mov_b32 v{o+3}, v149
            v_mov_b32_dpp v{o}, v148 row_ror:8 row_mask:0xf bank_mask:0x3
            v_mov_b32_dpp v{o+1}, v150 row_ror:8 row_mask:0xf bank_mask:0xc
            v_mov_b32_dpp v{o+2}, v149 row_ror:8 row_mask:0xf bank_mask:0x3
            v_mov_b32_dpp v{o+3}, v151 row_ror:8 row_mask:0xf bank_mask:0xc
            """)
            if tau == 1: E(f"s_add_u32 s58, s58, 262144")
            E.vm(f"buffer_store_dwordx4 v[{o}:{o+3}], v{VYS}, {WSRD}, s58 offen sc1", 'yst')
        stamp('yst')

    def rest():
        conv()
        B = BK['b'] = make_bulk()
        all_flags_check(24, VS1P, S_N, 's1')
        E.vm(f"buffer_store_dword v{VONE}, v{VEP}, {WSRD}, 0 offen sc1", 'ep')
        stamp('s1')
        def yload(i):
            c2, k = i >> 2, i & 3
            return f"buffer_load_dword v{Y+i}, v10, {WSRD}, s{59 if c2 == 0 else 24} offen" + (f" offset:{512*k}" if k else "") + " sc1"
        E("s_add_u32 s24, s59, 16384")
        for i in range(8): E.vm(yload(i), 'y')
        n_y = opt.get('bk_y', 0); assert n_y <= 24
        B.emit(n_y)
        for i in range(8): E(f"v_accvgpr_read_b32 v{X+i}, a{A_Q+i}")
        R_pre(0)
        stamp('qst')
        B.emit(opt.get('bk_q', 0))
        E.wait_vm('y')
        marker_check([Y + i for i in range(8)], yload, 'y')
        stamp('yok')
        B.emit(opt.get('bk_r0', 16))
        for i in range(8): E(f"v_accvgpr_write_b32 a{A_Y+i}, v{Y+i}")
        R_post(0, early=lambda: B.emit(opt.get('bk_r1', 16)), late=None)
        assert all(('w1_%d' % p) in E.seen for p in range(4)) and not any(getattr(o[2], 'info', None) is None for o in B.ops), 'W1 tiles 0..3 must be under way before the XN stores'
        Rpub(0)
        layer(0)
        poll_issue(VP8, S_FX2L, 0, 'px2')
        poll_check(VP8, S_FX2L, 0, 'px2')
        for r_, c_ in ((S_FXNS, 16*256), (S_FXNL, 16*256), (S_FHS, 16*1024), (S_FHL, 16*1024)): E(f"s_add_u32 s{r_}, s{r_}, {c_}")
        stamp('x2ok')
        sadd(S_T0, S_R, WS_XN); sadd(S_T1, S_R, WS_XN + 4096)
        E.vm(f"buffer_load_dwordx4 v[{X}:{X+3}], v{VR}, {WSRD}, s{S_T0} offen" + LSC, 'x2l')
        E.vm(f"buffer_load_dwordx4 v[{X+4}:{X+7}], v{VR}, {WSRD}, s{S_T1} offen" + LSC, 'x2l')
        for i in range(8): E(f"v_accvgpr_read_b32 v{Y+i}, a{A_Y+i}")
        E.wait_vm('x2l')
        R_pre(1)
        R_post(1)
        Rpub(1)
        layer(1)
        E.wait_vm_all()

    def s0cmp(val): return "\n".join([f"v_xor_b32 v{S0R+i}, s{val}, v{S0R+i}" for i in range(4)] +
                                     [f"v_or3_b32 v{S0R}, v{S0R}, v{S0R+1}, v{S0R+2}", f"v_or_b32 v{S0R}, v{S0R}, v{S0R+3}"])
    E.wait_vm('s0')
    E(s0cmp(S_XCC))
    E(f"v_cmp_ne_u32 vcc, 0, v{S0R}")
    E("s_branch L_s0s" if force_slow else "s_cbranch_vccnz L_s0s")
    E("L_s0b:")
    E.out_of_line(f"""
    L_s0s:
    s_mov_b32 s{S_T3}, 0
    L_s0l:
    v_cmp_lt_u32 vcc, 7, v{S0R}
    s_cmp_gt_u32 s{S_T3}, 0x2000
    s_cbranch_vccz L_slow
    s_cbranch_scc1 L_s0b
    buffer_load_dwordx4 v[{S0R}:{S0R+3}], v30, {WSRD}, 0 offen sc1
    s_add_u32 s{S_T3}, s{S_T3}, 1
    s_waitcnt vmcnt(0)
    {s0cmp(S_XCC)}
    v_cmp_ne_u32 vcc, 0, v{S0R}
    {'s_branch L_s0l' if force_slow else 's_cbranch_vccnz L_s0l'}
    s_branch L_s0b""")
    stamp('s0')
    Efast = E
    Es = Emit(); Es.vmq = []; Es.dsq = list(E.dsq); Es.seen = set(E.seen); Es.nl = 100000
    E = Es; MODE['slow'] = True
    E(f"""
    L_slow:
    s_mov_b32 s{S_EXP}, 2
    s_waitcnt vmcnt(0)
    buffer_wbl2 sc1
    s_waitcnt vmcnt(0)
    s_barrier
    s_add_u32 s24, s86, {FL_S0B}
    buffer_store_dword v{VONE}, v{VT0}, {WSRD}, s24 offen sc1
    s_mov_b32 s25, {FL_S0B - FL_S0}
    s_mov_b32 s{S_T3}, 0
    L_s0bl:
    buffer_load_dwordx4 v[{S0R}:{S0R+3}], v30, {WSRD}, s25 offen sc1
    s_add_u32 s{S_T3}, s{S_T3}, 1
    s_waitcnt vmcnt(0)
    {s0cmp(S_N)}
    v_cmp_ne_u32 vcc, 0, v{S0R}
    s_cmp_gt_u32 s{S_T3}, 0x2000
    s_cbranch_scc1 L_s0bx
    s_cbranch_vccnz L_s0bl
    L_s0bx:
    buffer_inv sc1
    s_waitcnt vmcnt(0)
    """)
    rest()
    E("s_branch L_fin")
    E = Efast; MODE['slow'] = False
    rest()
    E("L_fin:")
    if stamps:
        stamp('end')
        n = len(names)
        E("s_memrealtime s[24:25]")
        E("s_waitcnt lgkmcnt(0)")
        for k in (n - 2, n - 1): E(f"v_writelane_b32 v{VSTAMP}, s{SP[k & 1]}, {k}")
        E(f"""
        v_writelane_b32 v{VSTAMP}, s100, 61
        v_writelane_b32 v{VSTAMP}, s24, 62
        v_writelane_b32 v{VSTAMP}, s{S_EXP}, 63
        s_lshl_b32 s25, s2, 10
        s_lshl_b32 s26, s{S_W}, 8
        s_add_u32 s25, s25, s26
        s_add_u32 s25, s25, {WS_STAMP}
        v_lshrrev_b32 v20, 2, v{VL16}
        buffer_store_dword v{VSTAMP}, v20, {WSRD}, s25 offen
        s_waitcnt vmcnt(0)
        """)
        assert n < 60
        print('k3 stamps:', ','.join(names))
        open('last_stamps.txt', 'w').write(','.join(names))
    E("L_end:")
    E("s_endpgm")
    main = hazard_pass(E.L[1:], verbose=opt.get('verbose', False))
    tail = list(E.tail) + ['L_codeend:'] + hazard_pass(Es.L) + list(Es.tail)
    txt = E.L[0] + '\n' + '\n'.join(('    ' + l if not l.endswith(':') else l) for l in main) + '\n'
    txt += '\n'.join(('    ' + l if not l.endswith(':') else l) for l in tail) + '\n'
    txt += "    s_endpgm\n"
    return txt + kd(name, 512, 102, accum=256)

if __name__ == '__main__':
    st = 'stamps' in sys.argv; slow = 'slow' in sys.argv
    opt = {'verbose': 'v' in sys.argv}
    for a in sys.argv[2:]:
        if '=' in a:
            k_, v_ = a.split('=')
            opt[k_] = v_.split(',') if k_ == 'st' else (v_ if k_.startswith('fl') else int(v_))
    kname = NAME + '_kernel'
    txt = KERNARG_COMMENT
    txt += f"; @launch grid=(256,1,1) block=(256,1,1) lds={K1_LDS}\n"
    txt += TARGET + gen(kname, stamps=st, force_slow=slow, opt=opt)
    txt += ".text\n.fill 64, 4, 0xbf800000\n"
    open(sys.argv[1], 'w').write(txt)
```

```python
import sys
sys.path.insert(0, 'gen')
from emit import *
from layout3 import *
from common import head, kd, TARGET, KERNARG_COMMENT, NAME

K1_LDS = 163840
SLOT = 32768
SCR = SLOT
STATS = SLOT + 24576
OOB = 0x80000000
VL16, VA1, VA2, VP8, VP16, VF0, VR = 1, 2, 3, 4, 5, 6, 7
VSTW, VSTR = 11, 12
VRW = [13, 14, 15]; VRR = 16
VPOLL, VONE, VSTAMP = 17, 18, 19
RING = 32
ACC = [64, 80, 96, 112]
XR = 128
A_WD = 0; A_Y = 224; A_T4 = 232
S_WS = 4; S_Q = 8; S_OUT = 12
S_W, S_ROLE, S_C, S_TH, S_J, S_EXP, S_XCC, S_W1K = 16, 17, 18, 19, 20, 21, 22, 23
S_R, S_XNL, S_HST, S_HLD, S_XML, S_W1, S_FXNS, S_FXNL, S_FHS, S_FHL, S_FX2S, S_FX2L = range(34, 46)
S_T0, S_T1, S_T2, S_T3, S_HI = 46, 47, 48, 49, 31
S_LN2 = 98
S_DA, S_XA = 50, 3
S_HA = [96, 97]; S_HS = [94, 95]
LA = 6
def vr(b, n=1): return f"v{b}" if n == 1 else f"v[{b}:{b+n-1}]"
def ar(b, n=1): return f"a{b}" if n == 1 else f"a[{b}:{b+n-1}]"

LAYERS = [
    dict(tau=[0, 1, 2, 3, 4, 5, 6], slot=[2, 3, 4, 0, 1, 2, 3]),
    dict(tau=[5, 6, 2, 3, 4, 0, 1], slot=[2, 3, 4, 0, 1, 2, 3]),
]
LOG2E = 0x3fb8aa3b; LN2 = 0x3f317218
A_H = 236

S_N = 51
VWD = 28
S_WDB = 30
A_Q = 232
HC_J = 4160; HC_CH = 4*HC_J
XRB = 2*HC_CH
XR_P = 4640; XR_CH = 9472
TBS = 1056
KT = 2*SLOT; VT = KT + 9*TBS
PST = 3*SLOT
S_QO, S_PST = 87, 63
S_G, S_M, S_CB, S_CP, S_D, S_E = 88, 89, 84, 85, 62, 63
POISON = 0xffffffff


def gen(name, stamps=False, force_slow=False, opt=None):
    opt = opt or {}
    E = Emit()
    LSC = ' sc1' if opt.get('lsc', 1) else ''
    names = []
    DEF = ['start', 'join', 'b0', 'kvst', 's0', 'xiss', 'prep', 'xok', 'bx', 'rho1', 'rho2', 'rho3', 's1', 'mfend', 'red2', 'yst', 'qst', 'yok', 'R0st', 'R0pub', 'L0xnok', 'L0g1', 'L0s96', 'L0s224', 'L0g2end', 'L0st', 'x2ok', 'R1st', 'R1pub', 'L1xnok', 'L1g1', 'L1s96', 'L1s224', 'L1g2end', 'L1st', 'end']
    enabled = set(opt.get('st', DEF)) | {'start', 'end'}
    MODE = {'slow': False}
    SP = [90, 92]
    def stamp(nm):
        if stamps and nm in enabled and not MODE['slow']:
            n = len(names); names.append(nm)
            if n >= 2: E(f"v_writelane_b32 v{VSTAMP}, s{SP[n & 1]}, {n-2}")
            E(f"s_memtime s[{SP[n & 1]}:{SP[n & 1]+1}]")
    def stamp_dup(nm):
        if stamps and nm in names and not MODE['slow']:
            n = names.index(nm)
            if n >= 2: E(f"v_writelane_b32 v{VSTAMP}, s{SP[n & 1]}, {n-2}")
            E(f"s_memtime s[{SP[n & 1]}:{SP[n & 1]+1}]")
    WSRD = f"s[{S_WS}:{S_WS+3}]"
    def FL(kind, L):
        v = opt.get(f'fl{kind}{L}', opt.get(f'fl{kind}', ''))
        return (' ' + v.replace('+', ' ')) if v else ''

    def sadd(dst, base, const):
        if const == 0: E(f"s_mov_b32 s{dst}, s{base}")
        else: E(f"s_add_u32 s{dst}, s{base}, {const}")
    def dma_stream(tau, slot, tag, ilist=range(8)):
        ops = []; cur = None
        for i in ilist:
            if cur != (i >> 2):
                cur = i >> 2
                ops.append((4, False, lambda g=cur: E(f"s_add_u32 m0, s{S_W1K}, {slot*SLOT + g*4096}")))
                ops.append((4, False, lambda g=cur: sadd(S_DA, S_W1, tau*32768 + g*4096)))
            off = (i & 3)*1024
            ops.append((4, True, lambda off=off: E.vm(f"buffer_load_dwordx4 v{VL16}, {WSRD}, s{S_DA} offen" + (f" offset:{off}" if off else "") + " lds", tag)))
        return ops
    def wd_stream(kps):
        ops = []
        for kp in kps:
            f = lambda kp=kp: E(f"s_add_u32 s26, s{S_WDB}, {kp*2048}")
            f.info = ('wd', kp); ops.append((4, False, f))
            for pd in range(2):
                f = lambda kp=kp, pd=pd: E.vm(f"buffer_load_dwordx4 {ar(A_WD + 8*kp + 4*pd, 4)}, v{VWD+pd}, {WSRD}, s26 offen" + LSC, f'wd{kp}')
                f.info = ('wd', kp); ops.append((4, True, f))
        return ops
    class Bulk:
        def __init__(self, ops): self.ops = list(ops)
        def take(self, n):
            out = []
            while n > 0 and self.ops:
                o = self.ops.pop(0); out.append(o)
                if o[1]: n -= 1
            return out
        def emit(self, n):
            for (_, _, f) in self.take(n): f()
            assert not self.ops or not self.ops[0][1] or getattr(self.ops[0][2], 'info', None) is None, 'Wd loads come in pairs'
        def left(self): return sum(1 for o in self.ops if o[1])
    def publish(sbase, const, tag, wait=True):
        o = f" offset:{const}" if const else ""
        if MODE['slow']:
            E.wait_vm_all()
            E("buffer_wbl2 sc1\ns_waitcnt vmcnt(0)")
            E.vm(f"buffer_store_dword v{VONE}, v{VF0}, {WSRD}, s{sbase} offen{o} sc1", None)
            return
        if wait: E.wait_vm(tag)
        E.vm(f"buffer_store_dword v{VONE}, v{VF0}, {WSRD}, s{sbase} offen{o}", None)
    def poll_issue(voff, sbase, const, tag, dst=VPOLL):
        o = f" offset:{const}" if const else ""
        if MODE['slow']: E.seen.add(tag); return
        E.vm(f"buffer_load_dword v{dst}, v{voff}, {WSRD}, s{sbase} offen{o} sc1", tag)
    def poll_check(voff, sbase, const, tag, dst=VPOLL, wait=True):
        o = f" offset:{const}" if const else ""
        ls = E.label('L_polls'); lb = E.label('L_pollb'); ll = E.label('L_polll')
        if MODE['slow']:
            E.wait_vm_all()
            E(f"""
            s_mov_b32 s{S_T3}, 0
            {ll}:
            buffer_inv sc1
            s_waitcnt vmcnt(0)
            buffer_load_dword v{dst}, v{voff}, {WSRD}, s{sbase} offen{o} sc1
            s_add_u32 s{S_T3}, s{S_T3}, 1
            s_waitcnt vmcnt(0)
            v_cmp_ne_u32 vcc, s{S_N}, v{dst}
            s_cmp_gt_u32 s{S_T3}, 0x2000
            s_cbranch_scc1 {lb}
            s_cbranch_vccnz {ll}
            {lb}:
            buffer_inv sc1
            s_waitcnt vmcnt(0)""")
            return
        if wait: E.wait_vm(tag)
        E(f"v_cmp_ne_u32 vcc, s{S_N}, v{dst}")
        E(f"s_cbranch_vccnz {ls}")
        E(f"{lb}:")
        E.out_of_line(f"""
        {ls}:
        s_mov_b32 s{S_T3}, 0
        {ll}:
        buffer_load_dword v{dst}, v{voff}, {WSRD}, s{sbase} offen{o} sc1
        s_add_u32 s{S_T3}, s{S_T3}, 1
        s_waitcnt vmcnt(0)
        v_cmp_ne_u32 vcc, s{S_N}, v{dst}
        s_nop 4
        s_cbranch_vccz {lb}
        s_cmp_lt_u32 s{S_T3}, 0x2000
        s_cbranch_scc1 {ll}
        s_branch {lb}""")
    def all_flags_check(dst, voff, sval, tag, lim=0x2000):
        ls = E.label('L_afs'); lb = E.label('L_afb'); ll = E.label('L_afl')
        def cmp4():
            return "\n".join([f"v_xor_b32 v{dst+i}, s{sval}, v{dst+i}" for i in range(4)] +
                             [f"v_or3_b32 v{dst}, v{dst}, v{dst+1}, v{dst+2}", f"v_or_b32 v{dst}, v{dst}, v{dst+3}", f"v_cmp_ne_u32 vcc, 0, v{dst}"])
        E.wait_vm(tag)
        E(cmp4())
        E(f"s_cbranch_vccnz {ls}\n{lb}:")
        E.out_of_line(f"""
        {ls}:
        s_mov_b32 s{S_T3}, 0
        {ll}:
        buffer_load_dwordx4 v[{dst}:{dst+3}], v{voff}, {WSRD}, 0 offen sc1
        s_add_u32 s{S_T3}, s{S_T3}, 1
        s_waitcnt vmcnt(0)
        {cmp4()}
        s_nop 4
        s_cbranch_vccz {lb}
        s_cmp_lt_u32 s{S_T3}, {lim}
        s_cbranch_scc1 {ll}
        s_branch {lb}""")

    KSRD, VSRD, HSRD, PSRD, WDSRD = "s[52:55]", "s[64:67]", "s[76:79]", "s[68:71]", "s[52:55]"
    E.L.append(head(name).rstrip())
    E(f"""
    s_cmp_ge_u32 s2, 256
    s_cbranch_scc1 L_end
    s_load_dwordx2 s[52:53], s[0:1], 8
    s_load_dwordx2 s[64:65], s[0:1], 16
    s_load_dwordx2 s[4:5], s[0:1], 96
    s_load_dwordx8 s[56:63], s[0:1], 24
    s_load_dwordx8 s[68:75], s[0:1], 56
    s_load_dwordx2 s[8:9], s[0:1], 0
    """)
    if stamps: E("s_memrealtime s[100:101]")
    stamp('start')
    E(f"""
    v_lshrrev_b32 v20, 6, v0
    v_and_b32 v8, 63, v0                     ; lane
    s_and_b32 s{S_G}, s2, 7
    s_lshr_b32 s{S_M}, s2, 3
    v_readfirstlane_b32 s{S_W}, v20
    v_lshlrev_b32 v{VL16}, 4, v8
    v_lshrrev_b32 v21, 3, v8
    v_and_b32 v22, 7, v8
    s_cmp_eq_u32 s{S_W}, 3
    s_cbranch_scc1 L_w3
    ; k / v staging tiles: row = lane >> 3, 16-byte segment = lane & 7
    v_lshlrev_b32 v32, 10, v21
    v_lshl_add_u32 v32, v22, 4, v32
    s_lshl_b32 s24, s{S_M}, 16
    s_lshl_b32 s25, s{S_G}, 7
    s_add_u32 s24, s24, s25
    v_add_u32 v32, s24, v32
    s_cmp_eq_u32 s{S_W}, 2
    s_cbranch_scc1 L_w2
    s_cmp_eq_u32 s{S_W}, 1
    s_cbranch_scc1 L_w1
    """)
    def srd_fix(b, size): return f"s_and_b32 s{b+1}, s{b+1}, 0xffff\ns_mov_b32 s{b+2}, {size}\ns_mov_b32 s{b+3}, 0x20000"
    def tile_path(lst):
        for j, (kind, blk) in enumerate(lst):
            c = (blk*8192 - (4096 if kind == 'k' else 1024)) & 0xffffffff
            E(f"v_add_u32 v{40+j}, {c:#x}, v32")
        E("s_waitcnt lgkmcnt(0)")
        if any(k == 'k' for k, _ in lst): E(srd_fix(52, 2097152))
        if any(k == 'v' for k, _ in lst): E(srd_fix(64, 2097152))
        for j, (kind, blk) in enumerate(lst):
            E(f"s_mov_b32 m0, {(KT if kind == 'k' else VT) + blk*TBS}\ns_nop 0")
            E(f"buffer_load_dwordx4 v{40+j}, {KSRD if kind == 'k' else VSRD}, 0 offen lds")
    tile_path([('k', b) for b in range(6)])
    E("s_branch L_join\nL_w1:")
    tile_path([('k', b) for b in (6, 7, 8)] + [('v', b) for b in (0, 1, 2)])
    E("s_branch L_join\nL_w2:")
    tile_path([('v', b) for b in range(3, 9)])
    E("s_branch L_join\nL_w3:")
    MK4 = opt.get('mk4', 1)
    E(f"""
    v_lshlrev_b32 v33, 12, v21
    v_lshl_add_u32 v33, v22, 4, v33
    v_mov_b32 v36, -1
    v_mov_b32 v37, -1
    v_mov_b32 v38, -1
    v_mov_b32 v39, -1
    s_lshl_b32 s26, s{S_G}, 19
    s_lshl_b32 s27, s{S_M}, 7
    s_sub_u32 s26, s26, s27
    s_add_u32 s26, s26, {WS_KVT + 3968}
    s_waitcnt lgkmcnt(0)
    {srd_fix(S_WS, WS_SRD_BYTES)}
    """)
    for i in range(16):
        E(f"buffer_store_dwordx4 v[36:39], v33, {WSRD}, s26 offen" if MK4 else f"buffer_store_dword v36, v33, {WSRD}, s26 offen")
        if i < 15: E("s_add_u32 s26, s26, 32768")
    E("L_join:")
    stamp('join')
    HEAD, SK = 60, 56
    E(f"""
    {srd_fix(S_WS, WS_SRD_BYTES)}
    s_load_dword s{S_E}, s[4:5], {FL_EPOCH}
    s_lshl_b32 s{S_CB}, s{S_G}, 6
    s_lshl_b32 s24, s{S_M}, 1
    s_add_u32 s{S_CB}, s{S_CB}, s24
    s_lshr_b32 s{S_CP}, s{S_CB}, 1
    s_lshl_b32 s24, s{S_G}, 9
    s_lshl_b32 s25, s{S_W}, 7
    s_add_u32 s24, s24, s25
    v_lshlrev_b32 v30, 4, v21
    v_add_u32 v30, s24, v30
    global_load_dwordx4 v[{SK}:{SK+3}], v30, s[56:57]
    s_mov_b32 s76, s58
    s_mov_b32 s77, s59
    {srd_fix(76, 2097152)}
    s_lshl_b32 s24, s{S_CB}, 1
    s_load_dword s{S_D}, s[60:61], s24
    v_and_b32 v23, 31, v0
    v_lshrrev_b32 v24, 7, v0
    v_bfe_u32 v25, v0, 5, 2
    v_lshl_add_u32 v26, v25, 1, v23
    v_add_u32 v26, -30, v26
    v_add_u32 v27, s{S_CB}, v24
    v_lshlrev_b32 v27, 12, v27
    v_lshl_add_u32 v27, v26, 1, v27
    v_cmp_gt_i32 vcc, 0, v26
    v_mov_b32 v31, -16
    v_mul_u32_u24 v61, {HC_CH}, v24
    v_cndmask_b32 v27, v27, v31, vcc
    buffer_load_ushort v{HEAD}, v27, {HSRD}, 0 offen
    v_mul_u32_u24 v31, {HC_J}, v25
    v_add_u32 v61, v61, v31
    v_lshl_add_u32 v61, v23, 1, v61
    s_getpc_b64 s[32:33]
    L_pc:
    s_lshl_b32 s24, s{S_M}, 2
    s_add_u32 s24, s24, s{S_W}
    s_and_b32 s24, s24, 31
    s_lshl_b32 s24, s24, 11
    v_and_b32 v31, 15, v8
    v_lshlrev_b32 v31, 7, v31
    v_add_u32 v31, s24, v31
    v_min_u32 v31, L_codeend-L_pc-64, v31
    global_load_dword v255, v31, s[32:33]
    """)
    stamp('i_a')
    E(f"""
    s_mov_b32 s{S_OUT}, s74
    s_mov_b32 s{S_OUT+1}, s75
    ; block-stage ids ; q fragment offsets: token = 128 c + 8 role + tok, channels 128 w + 64 c2 + 16 ks + 8 hi ..
    s_and_b32 s{S_ROLE}, s{S_M}, 15
    s_lshr_b32 s24, s{S_M}, 4
    s_lshl_b32 s24, s24, 3
    s_add_u32 s{S_C}, s{S_G}, s24
    s_lshr_b32 s{S_TH}, s{S_ROLE}, 3
    s_and_b32 s{S_J}, s{S_ROLE}, 7
    v_and_b32 v20, 7, v8                     ; tok
    v_bfe_u32 v21, v8, 3, 1                  ; hi
    v_lshrrev_b32 v22, 4, v8                 ; ks
    v_lshlrev_b32 v9, 10, v20
    v_lshl_add_u32 v9, v22, 5, v9
    v_lshl_add_u32 v9, v21, 4, v9
    s_lshl_b32 s24, s{S_C}, 7
    s_lshl_b32 s25, s{S_ROLE}, 3
    s_add_u32 s24, s24, s25
    s_lshl_b32 s24, s24, 10
    s_lshl_b32 s25, s{S_W}, 8
    s_add_u32 s{S_QO}, s24, s25
    {srd_fix(S_Q, 2097152)}
    """)
    E(f"""
    s_getreg_b32 s{S_XCC}, hwreg(HW_REG_XCC_ID, 0, 4)
    s_lshl_b32 s{S_W1K}, s{S_W}, 13
    s_mul_i32 s{S_W1}, s{S_ROLE}, 229376
    s_add_u32 s{S_W1}, s{S_W1}, s{S_W1K}
    s_add_u32 s{S_W1}, s{S_W1}, {WS_W1F}
    s_and_b32 s{S_OUT+1}, s{S_OUT+1}, 0xffff
    s_mov_b32 s{S_OUT+2}, 2097152
    s_mov_b32 s{S_OUT+3}, 0x20000
    s_mov_b32 s{S_HI}, 0xffff0000
    s_mov_b32 s{S_LN2}, {LN2:#x}
    s_mov_b32 s{S_LN2+1}, {LN2:#x}
    s_mov_b32 s{S_EXP}, 1
    s_and_b32 s{S_XCC}, s{S_XCC}, 7
    v_add_u32 v{VA1}, 65536, v{VL16}
    v_add_u32 v{VA2}, 131072, v{VL16}
    v_lshlrev_b32 v{VP8}, 2, v20
    v_and_b32 v{VP16}, 15, v8
    v_lshlrev_b32 v{VP16}, 2, v{VP16}
    v_mov_b32 v{VF0}, {OOB}
    v_cmp_eq_u32 vcc, 0, v8
    v_mov_b32 v31, 0
    s_lshr_b32 s30, s{S_ROLE}, 2             ; tt_r
    s_and_b32 s24, s{S_ROLE}, 3
    v_cndmask_b32 v{VF0}, v{VF0}, v31, vcc
    s_lshl_b32 s25, s24, 7
    v_lshlrev_b32 v{VR}, 10, v22
    v_lshl_add_u32 v{VR}, v21, 9, v{VR}
    v_lshl_add_u32 v{VR}, v20, 4, v{VR}
    v_add_u32 v{VR}, s25, v{VR}
    ; stats addresses
    v_lshlrev_b32 v{VSTR}, 5, v20
    v_add_u32 v{VSTR}, {STATS}, v{VSTR}
    v_and_b32 v31, 1, v22
    v_lshl_add_u32 v{VSTW}, v31, 2, v{VSTR}
    s_lshl_b32 s25, s{S_W}, 3
    v_add_u32 v{VSTW}, s25, v{VSTW}
    v_lshlrev_b32 v10, 12, v22
    v_lshl_add_u32 v10, v21, 11, v10
    v_lshl_add_u32 v10, v20, 2, v10
    s_lshl_b32 s25, s{S_G}, 19
    s_lshr_b32 s26, s{S_C}, 3
    s_lshl_b32 s26, s26, 17
    s_add_u32 s25, s25, s26
    s_lshl_b32 s26, s30, 15
    s_add_u32 s{S_R}, s25, s26
    s_lshl_b32 s26, s{S_W}, 13
    s_add_u32 s{S_R}, s{S_R}, s26
    s_lshl_b32 s26, s{S_W}, 15
    s_add_u32 s{S_XNL}, s25, s26             ; XB + w*32768
    s_lshl_b32 s26, s{S_C}, 2
    s_add_u32 s27, s26, s{S_W}
    s_mul_i32 s27, s27, 114688
    s_lshr_b32 s28, s{S_ROLE}, 2
    s_mul_i32 s28, s28, 28
    s_and_b32 s29, s{S_ROLE}, 3
    s_add_u32 s28, s28, s29
    s_lshl_b32 s28, s28, 10
    s_add_u32 s{S_HST}, s27, s28
    s_lshl_b32 s27, s{S_TH}, 1
    s_add_u32 s27, s27, s26
    s_mul_i32 s27, s27, 114688
    s_mul_i32 s28, s{S_W}, 28672
    s_add_u32 s{S_HLD}, s27, s28             ; (4c+2th)*114688 + 28w*1024
    s_and_b32 s26, s{S_W}, 1
    s_lshl_b32 s26, s26, 1
    s_lshr_b32 s27, s{S_W}, 1
    s_add_u32 s26, s26, s27
    s_lshl_b32 s27, s{S_J}, 2
    s_add_u32 s26, s26, s27                  ; kappa_o = 4j + 2(w&1) + (w>>1)
    s_lshl_b32 s27, s26, 10
    s_lshl_b32 s28, s{S_TH}, 16
    s_add_u32 s27, s27, s28
    s_add_u32 s{S_XML}, s27, s25
    ; flags
    s_lshl_b32 s25, s{S_C}, 8
    s_lshl_b32 s27, s30, 6
    s_add_u32 s27, s27, s25
    s_lshl_b32 s28, s24, 4
    s_add_u32 s27, s27, s28
    s_lshl_b32 s28, s{S_W}, 2
    s_add_u32 s{S_FXNS}, s27, s28
    s_lshl_b32 s27, s{S_W}, 6
    s_add_u32 s{S_FXNL}, s25, s27            ; c*256 + w*64
    s_lshl_b32 s25, s{S_C}, 10
    s_lshr_b32 s27, s{S_W}, 1
    s_lshl_b32 s27, s27, 7
    s_add_u32 s27, s27, s25
    s_lshl_b32 s29, s{S_ROLE}, 3
    s_add_u32 s27, s27, s29
    s_and_b32 s29, s{S_W}, 1
    s_lshl_b32 s29, s29, 2
    s_add_u32 s{S_FHS}, s27, s29             ; c*1024 + (w>>1)*128 + role*8 + (w&1)*4
    s_lshl_b32 s27, s{S_TH}, 7
    s_add_u32 s27, s27, s25
    s_lshl_b32 s29, s{S_W}, 5
    s_add_u32 s{S_FHL}, s27, s29             ; c*1024 + th*128 + w*32
    s_lshl_b32 s25, s{S_C}, 9
    s_lshl_b32 s27, s{S_TH}, 7
    s_add_u32 s27, s27, s25
    s_lshl_b32 s29, s{S_J}, 4
    s_add_u32 s27, s27, s29
    s_add_u32 s{S_FX2S}, s27, s28            ; c*512 + th*128 + j*16 + w*4
    s_lshr_b32 s27, s30, 1
    s_lshl_b32 s27, s27, 7
    s_add_u32 s27, s27, s25
    s_lshl_b32 s29, s{S_W}, 5
    s_add_u32 s{S_FX2L}, s27, s29            ; c*512 + (tt_r>>1)*128 + w*32
    s_add_u32 s{S_FXNS}, s{S_FXNS}, {FL_XN}
    s_add_u32 s{S_FXNL}, s{S_FXNL}, {FL_XN}
    s_add_u32 s{S_FHS}, s{S_FHS}, {FL_H}
    s_add_u32 s{S_FHL}, s{S_FHL}, {FL_H}
    s_add_u32 s{S_FX2S}, s{S_FX2S}, {FL_X2}
    s_add_u32 s{S_FX2L}, s{S_FX2L}, {FL_X2}
    s_mul_i32 s25, s{S_W}, 6144
    s_add_u32 s25, s25, {SCR}
    v_add_u32 v{VRR}, s25, v{VL16}
    """)
    for m in (1, 2, 3):
        E(f"""
        s_xor_b32 s25, s{S_W}, {m}
        s_mul_i32 s25, s25, 6144
        s_add_u32 s25, s25, {SCR + (m-1)*2048}
        v_add_u32 v{VRW[m-1]}, s25, v{VL16}
        """)
    E(f"""
    s_lshl_b32 s{S_WDB}, s{S_J}, 2
    s_add_u32 s{S_WDB}, s{S_WDB}, s{S_W}
    s_mul_i32 s{S_WDB}, s{S_WDB}, 57344
    s_add_u32 s{S_WDB}, s{S_WDB}, {WS_WDF}
    s_lshr_b32 s25, s{S_W}, 1
    s_lshl_b32 s25, s25, 8
    v_xor_b32 v31, s25, v{VL16}
    s_and_b32 s25, s{S_W}, 1
    s_lshl_b32 s25, s25, 10
    v_add_u32 v{VWD}, s25, v31
    s_xor_b32 s25, s25, 1024
    v_add_u32 v{VWD+1}, s25, v31
    s_waitcnt lgkmcnt(0)
    s_mul_i32 s{S_N}, s{S_E}, 0x9e3779b1
    s_add_u32 s{S_N}, s{S_N}, 0x7f4a7c15
    s_and_b32 s{S_N}, s{S_N}, 0xfffffff0
    s_or_b32 s{S_XCC}, s{S_XCC}, s{S_N}
    v_mov_b32 v{VONE}, s{S_N}
    ; flag slot of this work-group in the [64][4] arrays
    s_and_b32 s86, s2, 63
    s_lshl_b32 s86, s86, 7
    s_lshr_b32 s24, s2, 6
    s_lshl_b32 s24, s24, 2
    s_add_u32 s86, s86, s24
    """)
    stamp('setup')

    VA_, VB_ = 62, 63
    VXW, VKVW, VYS, VT0, VS1P, VEP = 22, 248, 249, 250, 253, 254
    VPS, VPW, VTR, W1D, WDD, VYP, VS1F = 224, 225, 226, 227, 228, 229, 230
    S_XL = 72
    S_W1DST, S_WDDST, S_YP, S_S1F = 64, 65, 66, 67
    E(f"""
    ; weight images (waves 2 and 3): raw 8-row blocks go to LDS, come back transposed and are stored as MFMA fragments
    s_cmp_eq_u32 s{S_W}, 3
    s_cselect_b32 s68, s70, s68
    s_cselect_b32 s69, s71, s69
    s_cselect_b32 s28, 256, 0
    s_cselect_b32 s29, 4, 0                  ; first Wd block of this wave
    {srd_fix(68, 1835008)}
    s_mov_b32 s52, s72
    s_mov_b32 s53, s73
    {srd_fix(52, 1835008)}
    s_lshr_b32 s24, s2, 2                    ; kg
    s_and_b32 s25, s2, 3                     ; fq
    s_mul_i32 s26, s24, 28672
    s_mul_i32 s27, s25, 896
    s_add_u32 s26, s26, s27
    v_lshrrev_b32 v20, 3, v8
    v_and_b32 v21, 7, v8
    v_mul_u32_u24 v{VPS}, 3584, v20
    v_lshl_add_u32 v{VPS}, v21, 4, v{VPS}
    v_add_u32 v{VPS}, s26, v{VPS}
    v_lshlrev_b32 v{VPW}, 10, v20
    v_lshl_add_u32 v{VPW}, v21, 4, v{VPW}
    s_lshl_b32 s26, s2, 13
    s_lshl_b32 s27, s29, 7
    s_add_u32 s26, s26, s27
    v_add_u32 v{VPW}, s26, v{VPW}
    v_bfe_u32 v20, v8, 2, 2
    v_lshlrev_b32 v{VTR}, 7, v20
    v_lshrrev_b32 v21, 4, v8                 ; g
    v_lshl_add_u32 v{VTR}, v21, 5, v{VTR}
    v_and_b32 v20, 3, v8
    v_lshl_add_u32 v{VTR}, v20, 3, v{VTR}
    s_and_b32 s26, s{S_W}, 1
    s_mul_i32 s26, s26, {11*1024}
    s_add_u32 s{S_PST}, s26, {PST}
    v_add_u32 v{VTR}, s{S_PST}, v{VTR}
    v_and_b32 v20, 3, v8
    v_bfe_u32 v23, v8, 2, 1
    v_lshl_or_b32 v20, v23, 3, v20
    v_bfe_u32 v23, v8, 3, 1
    v_lshl_or_b32 v20, v23, 2, v20
    v_lshlrev_b32 v20, 4, v20                ; row * 16
    v_lshl_add_u32 v{W1D}, v21, 15, v20      ; + g * 32768
    s_mul_i32 s26, s25, {28*32768}
    s_lshr_b32 s27, s24, 1
    s_lshl_b32 s27, s27, 10
    s_add_u32 s26, s26, s27
    s_and_b32 s27, s24, 1
    s_lshl_b32 s27, s27, 9
    s_add_u32 s26, s26, s27
    s_add_u32 s26, s26, s28
    s_add_u32 s{S_W1DST}, s26, {WS_W1F}
    v_lshrrev_b32 v23, 1, v21
    v_lshl_add_u32 v{WDD}, v23, 10, v20      ; + dt * 1024
    v_and_b32 v23, 1, v21
    v_lshl_add_u32 v{WDD}, v23, 8, v{WDD}    ; + 16 rows
    s_lshr_b32 s24, s2, 1                    ; kf
    s_mul_i32 s25, s24, 2341
    s_lshr_b32 s25, s25, 16                  ; kf / 28
    s_mul_i32 s26, s25, 28
    s_sub_u32 s26, s24, s26
    s_mul_i32 s25, s25, 57344
    s_lshl_b32 s26, s26, 11
    s_add_u32 s25, s25, s26
    s_and_b32 s26, s2, 1
    s_lshl_b32 s26, s26, 9
    s_add_u32 s25, s25, s26
    s_mul_i32 s26, s29, 229376
    s_add_u32 s25, s25, s26
    s_add_u32 s25, s25, {WS_WDF}
    s_cmp_ge_u32 s2, 224
    s_cselect_b32 s{S_WDDST}, 0xf0000000, s25
    ; markers of the Y rows: waves 2 and 3 take eight clusters each
    v_lshrrev_b32 v{VYP}, 5, v8
    v_and_b32 v20, 31, v8
    v_lshlrev_b32 v{VYP}, 17, v{VYP}
    v_lshl_add_u32 v{VYP}, v20, 4, v{VYP}
    s_lshl_b32 s24, s{S_CP}, 9
    s_lshl_b32 s25, s29, 18
    s_add_u32 s24, s24, s25
    s_add_u32 s{S_YP}, s24, {WS_Y}
    ; images-complete flag: index 2 b + (w & 1) -> line index & 127, dword index >> 7
    s_lshl_b32 s24, s2, 1
    s_and_b32 s25, s{S_W}, 1
    s_add_u32 s24, s24, s25
    s_and_b32 s25, s24, 127
    s_lshl_b32 s25, s25, 7
    s_lshr_b32 s24, s24, 7
    s_lshl_b32 s24, s24, 2
    s_add_u32 s24, s24, s25
    s_add_u32 s{S_S1F}, s24, {FL_S1}
    s_cmp_ge_u32 s{S_W}, 2
    s_cselect_b32 s24, 0, {OOB}
    v_or_b32 v{VS1F}, s24, v{VF0}
    s_lshl_b32 s24, s{S_W}, 12
    s_add_u32 s24, s24, {FL_S1}
    v_and_b32 v20, 31, v8
    v_lshlrev_b32 v{VS1P}, 7, v20
    v_add_u32 v{VS1P}, s24, v{VS1P}
    v_and_b32 v20, 15, v8                    ; r
    v_lshrrev_b32 v21, 4, v8                 ; g
    v_and_b32 v22, 3, v8                     ; j'
    v_bfe_u32 v23, v8, 2, 2                  ; q
    s_lshr_b32 s24, s{S_W}, 1                ; ch
    s_and_b32 s25, s{S_W}, 1
    s_lshl_b32 s25, s25, 8
    s_mul_i32 s26, s24, {HC_CH}
    s_add_u32 s26, s26, s25
    v_mul_u32_u24 v24, {HC_J}, v22
    v_add_u32 v25, v21, v23
    v_lshl_add_u32 v24, v25, 4, v24
    v_add_u32 v{VA_}, s26, v24
    s_mul_i32 s26, s24, {XR_CH}
    s_add_u32 s26, s26, s25
    s_add_u32 s26, s26, {XRB + 16*252 - 3584}
    v_and_b32 v22, 7, v8                     ; n'
    v_bfe_u32 v23, v8, 3, 1                  ; par'
    v_mul_u32_u24 v24, {XR_P}, v23
    v_lshlrev_b32 v25, 6, v22
    v_sub_u32 v24, v24, v25
    v_lshl_add_u32 v24, v21, 4, v24
    v_add_u32 v{VB_}, s26, v24
    v_lshrrev_b32 v20, 6, v0
    v_and_b32 v20, 1, v20
    v_mul_u32_u24 v20, {XR_CH}, v20
    v_bfe_u32 v21, v0, 5, 1
    v_mul_u32_u24 v21, {XR_P}, v21
    v_add_u32 v20, v20, v21
    v_and_b32 v21, 31, v0
    v_lshl_add_u32 v20, v21, 4, v20
    v_add_u32 v20, {XRB + 4096}, v20
    v_mov_b32 v24, 0
    v_mov_b32 v25, 0
    v_mov_b32 v26, 0
    v_mov_b32 v27, 0
    """)
    E.ds("ds_write_b128 v20, v[24:27]", 'pad')
    E(f"""
    ; kv stage: thread = (channel pair cp = 8 w + (lane >> 3), token group tg = lane & 7) ; stores at cp*16384 + 4080 - 128 m - 16 tg
    v_lshrrev_b32 v20, 3, v0                 ; cp
    v_and_b32 v21, 7, v8                     ; tg
    v_lshlrev_b32 v53, 14, v20
    v_lshlrev_b32 v23, 4, v21
    v_sub_u32 v53, v53, v23
    s_lshl_b32 s24, s{S_M}, 7
    s_sub_u32 s24, 4080, s24
    v_add_u32 v53, s24, v53
    ; staging tile reads
    v_mul_u32_u24 v54, {TBS}, v21
    v_lshl_add_u32 v54, v20, 2, v54
    v_add_u32 v55, {VT}, v54
    v_add_u32 v54, {KT}, v54
    ; group flag poll: line 8 l + gamma
    v_and_b32 v30, 7, v8
    v_lshlrev_b32 v30, 10, v30
    s_lshl_b32 s24, s{S_G}, 7
    s_add_u32 s24, s24, {FL_S0}
    v_add_u32 v30, s24, v30
    s_and_b32 s25, s{S_W}, 1
    s_mul_i32 s24, s25, {XR_CH}
    s_add_u32 s24, s24, {XRB}
    v_add_u32 v{VXW}, s24, v{VL16}
    s_add_u32 s24, s{S_CB}, s25
    s_lshl_b32 s24, s24, 13
    s_add_u32 s{S_XL}, s24, {WS_KVT}
    s_add_u32 s{S_XL+1}, s24, {WS_KVT + 4096}
    v_and_b32 v20, 7, v8                     ; n'
    v_bfe_u32 v21, v8, 3, 1                  ; par'
    v_lshrrev_b32 v23, 4, v8                 ; g
    v_lshlrev_b32 v31, 6, v20
    v_lshl_add_u32 v31, v23, 4, v31          ; 64 n' + 16 g
    v_mul_u32_u24 v{VKVW}, {XR_P}, v21
    v_sub_u32 v{VKVW}, v{VKVW}, v31
    s_lshl_b32 s24, s{S_W}, 10
    s_sub_u32 s24, {XRB + 4080 - 512}, s24
    v_add_u32 v{VKVW}, s24, v{VKVW}
    v_lshrrev_b32 v31, 2, v20
    v_lshlrev_b32 v{VYS}, 17, v31
    v_and_b32 v31, 3, v20
    v_lshl_add_u32 v{VYS}, v31, 7, v{VYS}
    v_lshl_add_u32 v{VYS}, v23, 5, v{VYS}
    v_lshl_add_u32 v{VYS}, v21, 4, v{VYS}    ; (n'>>2)*131072 + (n'&3)*128 + g*32 + par'*16
    s_lshl_b32 s24, s{S_CP}, 9
    s_lshl_b32 s25, s{S_W}, 19
    s_add_u32 s24, s24, s25
    s_add_u32 s58, s24, {WS_Y}               ; + cp*512 + 2w*262144
    s_lshl_b32 s24, s{S_C}, 17
    s_lshl_b32 s25, s{S_ROLE}, 5
    s_add_u32 s24, s24, s25
    s_lshl_b32 s25, s{S_W}, 15
    s_add_u32 s24, s24, s25
    s_add_u32 s59, s24, {WS_Y}               ; + c*131072 + role*32 + 64w*512
    s_lshl_b32 s60, s{S_D}, 16
    s_and_b32 s61, s{S_D}, 0xffff0000
    v_mov_b32 v{VT0}, {OOB}
    v_mov_b32 v31, 0
    v_cmp_eq_u32 vcc, 0, v0
    s_lshl_b32 s24, s{S_G}, 19
    s_add_u32 s80, s24, {WS_KVT}
    v_cndmask_b32 v{VT0}, v{VT0}, v31, vcc
    s_cmp_eq_u32 s2, 0
    s_cselect_b32 s24, {FL_EPOCH}, {OOB}
    v_add_u32 v{VEP}, s24, v{VT0}
    v_or_b32 v{VEP}, v{VEP}, v{VT0}
    s_add_u32 s81, s80, 4096
    s_add_u32 s82, s80, 8192
    s_add_u32 s83, s80, 12288
    """)
    stamp('setup2')
    def prep_dma():
        for i in range(7):
            E(f"s_add_u32 m0, s{S_PST}, {1024*i - 128*i}")
            E(f"s_nop 0\nbuffer_load_dwordx4 v{VPS}, {PSRD}, 0 offen" + (f" offset:{128*i}" if i else "") + " lds")
        for i in range(4):
            E(f"s_add_u32 m0, s{S_PST}, {1024*(7+i) - 128*i}")
            E(f"s_nop 0\nbuffer_load_dwordx4 v{VPW}, {WDSRD}, 0 offen" + (f" offset:{128*i}" if i else "") + " lds")
    E(f"""
    s_cmp_ge_u32 s{S_W}, 2
    s_cbranch_scc1 L_g2b
    s_add_u32 s24, s{S_CB}, s{S_W}
    s_lshl_b32 s24, s24, 12                  ; channel * 4096
    s_mul_i32 s25, s{S_W}, {HC_CH}
    """)
    for j in range(4):
        E(f"s_add_u32 s26, s24, {4 + 4*j}\ns_add_u32 m0, s25, {j*HC_J + 64}\ns_nop 0")
        for q_ in range(4):
            E(f"buffer_load_dwordx4 v{VL16}, {HSRD}, s26 offen" + (f" offset:{1024*q_}" if q_ else "") + " lds")
    E("s_waitcnt vmcnt(16)\ns_branch L_g2x\nL_g2b:")
    E(f"s_cmp_eq_u32 s{S_W}, 3\ns_cbranch_scc1 L_g2c")
    prep_dma()
    E("s_waitcnt vmcnt(11)\ns_branch L_g2x\nL_g2c:")
    E(f"""
    v_mov_b32 v31, s{S_XCC}
    s_add_u32 s24, s86, {FL_S0}
    s_waitcnt vmcnt(0)
    buffer_store_dword v31, v{VF0}, {WSRD}, s24 offen sc1
    """)
    prep_dma()
    E("L_g2x:")
    stamp('i_b')
    E.vmq = []
    E.wait_ds('pad')
    E("s_barrier")
    stamp('b0')
    S0R = 24
    def s0poll(): E.vm(f"buffer_load_dwordx4 v[{S0R}:{S0R+3}], v30, {WSRD}, 0 offen sc1", 's0')
    S0AT = opt.get('s0at', 1)
    if S0AT == 0: s0poll()
    KR, VRW_ = 32, 44
    for x in range(0, 8, 2): E.ds(f"ds_read2_b32 v[{KR+x}:{KR+x+1}], v54 offset0:{32*x} offset1:{32*(x+1)}", 'kv')
    E(f"v_add_u32 v20, {TBS}, v54\nv_add_u32 v21, {TBS}, v55")
    for x in range(8, 12, 2): E.ds(f"ds_read2_b32 v[{KR+x}:{KR+x+1}], v20 offset0:{32*(x-8)} offset1:{32*(x-7)}", 'kv')
    for x in range(0, 8, 2): E.ds(f"ds_read2_b32 v[{VRW_+x}:{VRW_+x+1}], v55 offset0:{32*x} offset1:{32*(x+1)}", 'kv')
    E.ds(f"ds_read_b32 v{VRW_+8}, v21", 'kv')
    E.ds(f"ds_write_b16 v61, v{HEAD}", 'head')
    E(f"""
    v_lshlrev_b32 v136, 16, v{SK}
    v_lshlrev_b32 v137, 16, v{SK+2}
    v_and_b32 v138, s{S_HI}, v{SK}
    v_and_b32 v139, s{S_HI}, v{SK+2}
    v_lshlrev_b32 v140, 16, v{SK+1}
    v_lshlrev_b32 v141, 16, v{SK+3}
    v_and_b32 v142, s{S_HI}, v{SK+1}
    v_and_b32 v143, s{S_HI}, v{SK+3}
    """)
    E.wait_ds('kv')
    for i in range(12): E(f"v_lshlrev_b32 v{96+2*i}, 16, v{KR+i}\nv_and_b32 v{97+2*i}, s{S_HI}, v{KR+i}")
    if S0AT == 1: s0poll()
    for i in range(9): E(f"v_lshlrev_b32 v{164+2*i}, 16, v{VRW_+i}\nv_and_b32 v{165+2*i}, s{S_HI}, v{VRW_+i}")
    def K(x): return f"v[{96+2*x}:{97+2*x}]"
    def KV(i): return 144 + 2*i
    for i in range(9): E(f"v_pk_mul_f32 v[{KV(i)}:{KV(i)+1}], v[136:137], {K(i+3)}")
    if S0AT == 2: s0poll()
    for tap in (1, 2, 3):
        for i in range(9): E(f"v_pk_fma_f32 v[{KV(i)}:{KV(i)+1}], v[{136+2*tap}:{137+2*tap}], {K(i+3-tap)}, v[{KV(i)}:{KV(i)+1}]")
    if S0AT == 3: s0poll()
    for i in range(9): E(f"v_pk_mul_f32 v[{KV(i)}:{KV(i)+1}], v[{KV(i)}:{KV(i)+1}], v[{164+2*i}:{165+2*i}]")
    for c in range(2):
        for par in range(2):
            b = KR + 8*c + 4*par
            for d in range(4): E(f"v_cvt_pk_bf16_f32 v{b+d}, v{KV(8-par-2*d)+c}, v{KV(7-par-2*d)+c}")
            E.vm(f"buffer_store_dwordx4 v[{b}:{b+3}], v53, {WSRD}, s{80 + 2*c + par} offen", 'kvst')
    stamp('kvst')

    X, Y = 128, 136
    XF, YF, T = 144, 160, 176
    def stats(src, rnd, between=None, scale=False):
        P, Q = 192, 194
        E(f"v_pk_add_f32 v[{P}:{P+1}], v[{src}:{src+1}], v[{src+2}:{src+3}]")
        E(f"v_pk_mul_f32 v[{Q}:{Q+1}], v[{src}:{src+1}], v[{src}:{src+1}]")
        for i in range(1, 8):
            E(f"v_pk_fma_f32 v[{Q}:{Q+1}], v[{src+2*i}:{src+2*i+1}], v[{src+2*i}:{src+2*i+1}], v[{Q}:{Q+1}]")
            if i >= 2: E(f"v_pk_add_f32 v[{P}:{P+1}], v[{P}:{P+1}], v[{src+2*i}:{src+2*i+1}]")
        E(f"""
        v_add_f32 v{P}, v{P}, v{P+1}
        v_add_f32 v{Q}, v{Q}, v{Q+1}
        v_permlane16_swap_b32 v{P}, v{Q}
        v_add_f32 v{P}, v{P}, v{Q}
        v_add_f32_dpp v{P}, v{P}, v{P} row_ror:8 row_mask:0xf bank_mask:0xf
        v_mov_b32 v{P+1}, v{P}
        v_permlane32_swap_b32 v{P}, v{P+1}
        v_add_f32 v{P}, v{P}, v{P+1}
        s_mov_b64 exec, 0x00ff00ff
        """)
        E.ds(f"ds_write_b32 v{VSTW}, v{P} offset:{rnd*256}", 'stw')
        E("s_mov_b64 exec, -1")
        E.wait_ds('stw')
        E("s_barrier")
        E.ds(f"ds_read_b128 v[196:199], v{VSTR} offset:{rnd*256}", 'str')
        E.ds(f"ds_read_b128 v[200:203], v{VSTR} offset:{rnd*256+16}", 'str')
        if between: between()
        E.wait_ds('str')
        E(f"""
        v_pk_add_f32 v[196:197], v[196:197], v[198:199]
        v_pk_add_f32 v[200:201], v[200:201], v[202:203]
        v_pk_add_f32 v[196:197], v[196:197], v[200:201]
        v_mul_f32 v196, 0x3b000000, v196
        v_mul_f32 v197, 0x3b000000, v197
        v_fma_f32 v197, -v196, v196, v197
        v_max_f32 v197, 0, v197
        v_add_f32 v197, 0x3727c5ac, v197
        v_rsq_f32 v204, v197
        s_nop 0
        """)
        if scale: E(f"v_mul_f32 v204, {LOG2E:#x}, v204")
        E("v_mul_f32_e64 v206, -v196, v204")
    def norm(dst, src):
        for i in range(8):
            E(f"v_pk_fma_f32 v[{dst+2*i}:{dst+2*i+1}], v[{src+2*i}:{src+2*i+1}], v[204:205], v[206:207] op_sel_hi:[1,0,0]")
    def unpack(dst, src, n):
        for i in range(n):
            E(f"v_lshlrev_b32 v{dst+2*i}, 16, v{src+i}")
            E(f"v_and_b32 v{dst+2*i+1}, s{S_HI}, v{src+i}")
    def R_pre(L, between=None):
        unpack(XF, X, 8)
        stats(XF, 0, between)
        norm(T, XF)
        stamp(f'R{L}s1')
    def R_post(L, early=None, late=None):
        unpack(YF, Y, 8)
        for i in range(8):
            E(f"v_pk_fma_f32 v[{XF+2*i}:{XF+2*i+1}], v[{T+2*i}:{T+2*i+1}], v[{YF+2*i}:{YF+2*i+1}], v[{XF+2*i}:{XF+2*i+1}]")
        M = 208
        for i in range(8): E(f"v_cvt_pk_bf16_f32 v{M+i}, v{XF+2*i}, v{XF+2*i+1}")
        sadd(S_T0, S_R, WS_XM); sadd(S_T1, S_R, WS_XM + 4096)
        E.vm(f"buffer_store_dwordx4 v[{M}:{M+3}], v{VR}, {WSRD}, s{S_T0} offen" + FL('xm', L), 'rst')
        E.vm(f"buffer_store_dwordx4 v[{M+4}:{M+7}], v{VR}, {WSRD}, s{S_T1} offen" + FL('xm', L), 'rst')
        if early: early()
        stats(XF, 1, between=late, scale=True)
        norm(T, XF)
        N = 216
        for i in range(8): E(f"v_cvt_pk_bf16_f32 v{N+i}, v{T+2*i}, v{T+2*i+1}")
        sadd(S_T0, S_R, WS_XN); sadd(S_T1, S_R, WS_XN + 4096)
        E.vm(f"buffer_store_dwordx4 v[{N}:{N+3}], v{VR}, {WSRD}, s{S_T0} offen" + FL('xn', L), 'rst')
        E.vm(f"buffer_store_dwordx4 v[{N+4}:{N+7}], v{VR}, {WSRD}, s{S_T1} offen" + FL('xn', L), 'rst')
        stamp(f'R{L}st')
    def Rpub(L):
        publish(S_FXNS, 0, 'rst')
        E("s_barrier")
        stamp(f'R{L}pub')

    ORDER = {}
    def g2_order():
        stA = [0, 1, 2]; stB = [3, 4, 5]; stC = [6]
        def blocks(tt, ps): return [(tt, rho, p) for p in ps for rho in range(4)]
        b1 = blocks(1, stB); nb1 = opt.get('b1_first', 4)
        return blocks(0, stA) + blocks(1, stA) + blocks(0, stB) + b1[:nb1] + blocks(0, stC) + b1[nb1:] + blocks(1, stC)
    def wd_kseq(L):
        kseq = []
        for (tt, rho, p) in g2_order():
            kp = rho*7 + LAYERS[L]['tau'][p]
            if kp not in kseq: kseq.append(kp)
        return kseq
    def make_bulk():
        c = LAYERS[0]; ops = []
        for p in range(4): ops += dma_stream(c['tau'][p], c['slot'][p], f'w1_{p}')
        ops += wd_stream(wd_kseq(0))
        return Bulk(ops)
    BK = {}

    def layer(L):
        cfg = LAYERS[L]; tau = cfg['tau']; slot = cfg['slot']
        O = lambda k, d: opt.get(f'{k}{L}', opt.get(k, d))
        G2 = 224; NS = 336; lastslot = NS - 1
        BUD = O('bud', 24); VGAP = O('vgap', 2)
        F = {}; cost = [0]*(NS + 64); vslots = set()
        for i in range(G2):
            if i + LA < G2: cost[i] += 4
            if i % 2 == 0: cost[i] += 4
            if i < 96 and i % 3 == 0 and i > 0: cost[i] += 4
        for i in range(G2, NS, 2): cost[i] += 4
        RANK = {'m': 0, 's': 1, 'v': 2}
        def at(i, f, c=4, k='v'): F.setdefault(i, ([], [], []))[RANK[k]].append(f); cost[i] += c
        last = {'k': 'm', 't': -1}
        def put(t, f, c=4, k='v', vm=False, chain=False):
            if vm: k = 'm'
            if chain:
                t = max(t, last['t'] + (1 if RANK[k] < RANK[last['k']] else 0))
            while cost[t] + c > BUD or (vm and any((t + d) in vslots for d in range(-VGAP + 1, VGAP))): t += 1
            if vm: vslots.add(t)
            at(t, f, c, k); last['k'] = k; last['t'] = t
            return t
        def stream(t, ops):
            first = True
            for (c, vm, f) in ops:
                t = put(t, f, c, 's', vm, chain=not first); first = False
            return t
        def T_(s): return lambda: E(s)
        def barrier(): E("s_barrier")
        poll_issue(VP16, S_FXNL, 0, f'pxn{L}')
        if L == 0: BK['b'].emit(opt.get('bk_pub', 0))
        poll_check(VP16, S_FXNL, 0, f'pxn{L}')
        stamp(f'L{L}xnok')
        def xops(k):
            ops = []
            if k % 4 == 0: ops.append((4, False, lambda: sadd(S_XA, S_XNL, WS_XN + (k >> 2)*4096)))
            off = (k & 3)*1024
            ops.append((4, True, lambda: E.vm(f"buffer_load_dwordx4 v[{XR+4*k}:{XR+4*k+3}], v{VL16}, {WSRD}, s{S_XA} offen" + (f" offset:{off}" if off else "") + LSC, f'x{L}_{k}')))
            return ops
        n_up = O('nup', 5)
        for k in range(n_up):
            for (_, _, f) in xops(k): f()
        seq = []
        for k in range(32):
            for p in range(3): seq.append(('g1', p, k))
        for p in range(3, 7):
            for k in range(32): seq.append(('g1', p, k))
        accp = [0, 1, 2, 3, 0, 1, 2]
        def a_addr(p, k):
            s = slot[p]
            base = [VL16, VL16, VA1, VA1, VA2][s]
            off = (s & 1)*SLOT + k*1024 if s < 4 else k*1024
            return base, off
        def rd(i):
            _, p, k = seq[i]
            b, off = a_addr(p, k)
            r = RING + 4*(i % 8)
            E.ds(f"ds_read_b128 v[{r}:{r+3}], v{b} offset:{off}", f'a{L}_{i}')
        order = g2_order()
        assert len(order) == 56
        last0 = max(n for n, b in enumerate(order) if b[0] == 0)
        acc2 = {0: [ACC[0], ACC[1]], 1: [ACC[3], ACC[2]]}
        NH = 37
        def hreg(n):
            q = n % NH
            return ar(A_H + 4*q, 4) if q < 5 else vr(XR + 4*(q - 5), 4)
        def epilogue(p, o):
            c = ACC[accp[p]]
            for e in range(8):
                at(o + e, T_(f"v_exp_f32_e64 v{c+e}, -v{c+e}"), 8)
                at(o + e + 1, T_(f"v_add_f32 v{c+e}, 1.0, v{c+e}"))
                at(o + 8 + e, T_(f"v_rcp_f32 v{c+e}, v{c+e}"), 8)
                at(o + 9 + e, T_(f"v_mul_f32 v{c+e}, v{c+e}, v{c+8+e}"))
        def epilogue2(p, o):
            c = ACC[accp[p]]
            t = 0
            for k in range(4):
                t = put(max(t, o + 11 + 2*k), T_(f"v_cvt_pk_bf16_f32 v{c+8+k}, v{c+2*k}, v{c+2*k+1}"))
            stage = 'A' if p < 3 else ('B' if p < 6 else 'C')
            put(o + 10, T_(f"s_add_u32 s{S_HS[p & 1]}, s{S_HST}, {WS_H + tau[p]*4096}"), k='s')
            return put(t + 1, lambda: E.vm(f"buffer_store_dwordx4 v[{c+8}:{c+11}], v{VL16}, {WSRD}, s{S_HS[p & 1]} offen" + FL('h', L), f'h{stage}{L}'), vm=True)
        eo = [99, 115, 131, 147, 163, 196, 228]
        for p in range(7): epilogue(p, eo[p])
        est = [epilogue2(p, eo[p]) for p in range(7)]
        assert est[0] < 126 and est[1] < 158 and est[2] < 190 and est[5] < 222 and est[6] < 248, est
        at(121, lambda: (E.wait_vm(f'w4{L}'), barrier()), 8, 's')
        at(96, barrier, 4, 's')
        at(153, lambda: (E.wait_vm(f'w5{L}'), barrier()), 8, 's')
        at(185, lambda: (E.wait_vm(f'w6{L}'), barrier()), 8, 's')
        t = 0
        for k in range(n_up, 32):
            t = stream(max(t + (1 if k % 4 == 0 and k > n_up else 0), O('xsp', 2)*(k - n_up)), xops(k))
        t = stream(t + 1, dma_stream(tau[4], slot[4], f'w4{L}'))
        w4end = t
        t = stream(97, dma_stream(tau[5], slot[5], f'w5{L}'))
        w5end = t
        t = stream(t + 1, dma_stream(tau[6], slot[6], f'w6{L}'))
        w6end = t
        assert w4end < 108 and w5end < 140 and w6end < 172, (w4end, w5end, w6end)
        XM0 = 20; XM1 = 24
        def xm_ops(tt):
            return [(4, False, lambda: sadd(S_XA, S_XML, WS_XM + tt*32768)),
                    (4, True, lambda: E.vm(f"buffer_load_dwordx4 v[{XM0+4*tt}:{XM0+4*tt+3}], v{VL16}, {WSRD}, s{S_XA} offen" + LSC, f'xm{L}'))]
        stream(stream(O('xm_at', 152), xm_ops(0)) + 1, xm_ops(1))
        fh = 0
        pub = {}; chk = {}
        for (st_, k, e) in (('A', 0, est[2]), ('B', 1, est[5]), ('C', 2, est[6])):
            tp = put(O('pub' + st_, e + 12), lambda st_=st_: E.wait_vm(f'h{st_}{L}'), k='s')
            tp = put(tp, lambda st_=st_, k=k: publish(S_FHS, fh + 256*k, f'h{st_}{L}', wait=False), 4, 'm', chain=True)
            tq = put(O('poll' + st_, tp + 8), lambda st_=st_, k=k: poll_issue(VP8, S_FHL, fh + 256*k, f'p{st_}{L}'), 4, 'm')
            tc = put(O('chk' + st_, tq + (12 if st_ == 'A' else 14)), lambda st_=st_: E.wait_vm(f'p{st_}{L}'), k='s')
            tc = put(tc, lambda st_=st_, k=k: poll_check(VP8, S_FHL, fh + 256*k, f'p{st_}{L}', wait=False), 8, 'v', chain=True)
            pub[st_] = tp; chk[st_] = tc
        hslot = {}
        for n0 in range(0, 56, 4):
            tt, _, p = order[n0]
            sreg = S_HA[(n0 >> 2) & 1]
            rdy = chk['A' if p < 3 else 'B' if p < 6 else 'C'] + 1
            prev = max([hslot[m] for m in range(max(0, n0 - 8), max(0, n0 - 4))], default=0)
            ta = put(max(prev, rdy - 3), lambda tt=tt, p=p, sreg=sreg: E(f"s_add_u32 s{sreg}, s{S_HLD}, {WS_H + tt*114688 + tau[p]*4096}"), k='s') + 1
            for n in range(n0, n0 + 4):
                assert order[n][0] == tt and order[n][2] == p and order[n][1] == n - n0
                q = n % NH
                if n < NH: free = 0 if q < 5 else 192 + (q - 5) + 1
                else: free = G2 + 2*(n - NH) + 2
                off = (n - n0)*1024
                hslot[n] = put(max(rdy, free, ta), lambda n=n, sreg=sreg, off=off: E.vm(f"buffer_load_dwordx4 {hreg(n)}, v{VL16}, {WSRD}, s{sreg} offen" + (f" offset:{off}" if off else "") + LSC, f'h{L}_{n}'), vm=True)
                assert hslot[n] < G2 + 2*n - 6, (L, n, hslot[n])
        if opt.get('verbose'): print('L', L, 'est', est, 'w', w4end, w5end, w6end, 'pub', pub, 'chk', chk, 'h', [hslot[n] for n in range(56)])
        if L == 0:
            firstuse = {}
            for n, (tt, rho, p) in enumerate(order): firstuse.setdefault(rho*7 + tau[p], G2 + 2*n)
            t = O('wd_at', 70)
            rest_ops = BK['b'].ops; BK['b'].ops = []
            kcur = None
            for (c_, vm_, f_) in rest_ops:
                info = getattr(f_, 'info', None)
                assert info is not None and info[0] == 'wd', 'only Wd loads may be left for G1'
                if not vm_:
                    at(t - 1, f_, 0, 's')
                else:
                    while t in vslots: t += 1
                    assert t < firstuse[info[1]] - 8, ('Wd deadline', info, t)
                    at(t, f_, 0, 'm'); t += O('wd_sp', 2)
            if opt.get('verbose'): print('last Wd load at', t)
        RB = RING
        def red_write_ops(tt):
            ops = []
            for m in (1, 3, 2):
                pd, g = m & 1, m >> 1
                src = acc2[tt][pd] + 8*g
                for hlf in range(2):
                    ops.append(lambda m=m, src=src, hlf=hlf: E.ds(f"ds_write_b128 v{VRW[m-1]}, v[{src+4*hlf}:{src+4*hlf+3}] offset:{1024*hlf}", f'rw{L}{tt}'))
            return ops
        def red_read_ops(tt):
            ops = []
            for m in range(3):
                for hlf in range(2):
                    ops.append(lambda m=m, hlf=hlf: E.ds(f"ds_read_b128 v[{RB+8*m+4*hlf}:{RB+8*m+4*hlf+3}], v{VRR} offset:{2048*m+1024*hlf}", f'rr{L}{tt}'))
            return ops
        def out_store(tt, src):
            if L == 0:
                sadd(S_T0, S_XML, WS_XN + tt*32768)
                E.vm(f"buffer_store_dwordx4 v[{src}:{src+3}], v{VL16}, {WSRD}, s{S_T0} offen", f'x2{tt}')
            else:
                sadd(S_T0, 30, tt*32768)
                E.vm(f"buffer_store_dwordx4 v[{src}:{src+3}], v28, s[{S_OUT}:{S_OUT+3}], s{S_T0} offen" + FL('o', L), f'o2{tt}')
        if L == 1:
            def out_setup():
                return [T_(x) for x in f"""v_and_b32 v28, 31, v0
                v_lshlrev_b32 v28, 10, v28
                v_bfe_u32 v29, v0, 5, 1
                v_lshl_add_u32 v28, v29, 4, v28
                s_lshl_b32 s30, s{S_C}, 17
                s_lshl_b32 s25, s{S_TH}, 16
                s_add_u32 s30, s30, s25
                s_and_b32 s25, s{S_W}, 1
                s_lshl_b32 s25, s25, 1
                s_lshr_b32 s26, s{S_W}, 1
                s_add_u32 s25, s25, s26
                s_lshl_b32 s26, s{S_J}, 2
                s_add_u32 s25, s25, s26
                s_lshl_b32 s25, s25, 5
                s_add_u32 s30, s30, s25""".split('\n')]
            t = 72
            for f in out_setup(): t = put(t, f, k='v', chain=True)
        XU = RB + 24
        t = put(G2 + 26, lambda: E.wait_vm(f'xm{L}'), k='s')
        for e in range(4):
            t = put(t, T_(f"v_lshlrev_b32 v{XU+2*e}, 16, v{XM1+e}"))
            t = put(t, T_(f"v_and_b32 v{XU+1+2*e}, s{S_HI}, v{XM1+e}"))
        m0_last = G2 + 2*last0 + 1
        t = m0_last + 5
        for f in red_write_ops(0): t = put(t, f, 8, 'm')
        t = put(t + 1, lambda: (E.wait_ds(f'rw{L}0'), barrier()), 8, 's')
        t += 1
        for f in red_read_ops(0): t = put(t, f, 4, 'm')
        own = acc2[0][0]
        t = put(t + 3, lambda: E.wait_ds(f'rr{L}0'), k='s')
        tb = t
        for e in range(8): t = put(t, T_(f"v_add_f32 v{RB+e}, v{RB+e}, v{RB+8+e}"))
        for e in range(8): t = put(t, T_(f"v_add_f32 v{own+e}, v{own+e}, v{RB+16+e}"))
        for e in range(4):
            t = put(t, T_(f"v_lshlrev_b32 v{RB+8+2*e}, 16, v{XM0+e}"))
            t = put(t, T_(f"v_and_b32 v{RB+9+2*e}, s{S_HI}, v{XM0+e}"))
        for e in range(8): t = put(t, T_(f"v_add_f32 v{own+e}, v{own+e}, v{RB+e}"))
        for e in range(8): t = put(t, T_(f"v_fma_f32 v{own+e}, v{own+e}, s{S_LN2}, v{RB+8+e}"))
        for e in range(4): t = put(t, T_(f"v_cvt_pk_bf16_f32 v{RB+e}, v{own+2*e}, v{own+2*e+1}"))
        t = put(t + 1, lambda: out_store(0, RB), 8, 'm')
        if opt.get('verbose'): print('tt0 reduction done at', t)
        put(tb + 1, barrier, k='s')
        E.wait_vm(f'x{L}_0')
        stamp(f'L{L}g1')
        for i in range(LA): rd(i)
        def emit_fill(i, mid=None):
            fm, fs, fv = F.pop(i, ([], [], []))
            if mid: mid()
            for f in fm + fs + fv: f()
        for i in range(224):
            _, p, k = seq[i]
            stamp(f'L{L}s{i}')
            if p < 3 and (i % 3) == 0 and k > 0: E.wait_vm(f'x{L}_{k}')
            if i % 2 == 0: E.wait_ds(f'a{L}_{i+1}')
            r = RING + 4*(i % 8)
            c = ACC[accp[p]]
            E(f"v_mfma_f32_32x32x16_bf16 v[{c}:{c+15}], {vr(r, 4)}, v[{XR+4*k}:{XR+4*k+3}], {'0' if k == 0 else f'v[{c}:{c+15}]'}")
            emit_fill(i, (lambda: rd(i + LA)) if i + LA < 224 else None)
        seen_kp = set()
        for n in range(56):
            tt, rho, p = order[n]
            kp = rho*7 + tau[p]
            firstb = not any(o[0] == tt for o in order[:n])
            for ii, pd in enumerate((1, 0) if n in (last0, 55) else (0, 1)):
                i = G2 + 2*n + ii
                stamp(f'L{L}s{i}')
                if ii == 0:
                    E.wait_vm(f'h{L}_{n}')
                    if L == 0 and kp not in seen_kp: E.wait_vm(f'wd{kp}'); seen_kp.add(kp)
                c = acc2[tt][pd]
                E(f"v_mfma_f32_32x32x16_bf16 v[{c}:{c+15}], {ar(A_WD + 8*kp + 4*pd, 4)}, {hreg(n)}, {'0' if firstb else f'v[{c}:{c+15}]'}")
                emit_fill(i)
        stamp(f'L{L}g2end')
        for i in sorted(F.keys()):
            assert i > lastslot, i
            emit_fill(i)
        for f in red_write_ops(1): f()
        E.wait_ds(f'rw{L}1'); E("s_barrier")
        for f in red_read_ops(1): f()
        own = acc2[1][0]
        E.wait_ds(f'rr{L}1')
        for e in range(0, 8, 2): E(f"v_pk_add_f32 v[{RB+e}:{RB+e+1}], v[{RB+e}:{RB+e+1}], v[{RB+8+e}:{RB+9+e}]")
        for e in range(0, 8, 2): E(f"v_pk_add_f32 v[{own+e}:{own+e+1}], v[{own+e}:{own+e+1}], v[{RB+16+e}:{RB+17+e}]")
        for e in range(0, 8, 2): E(f"v_pk_add_f32 v[{own+e}:{own+e+1}], v[{own+e}:{own+e+1}], v[{RB+e}:{RB+e+1}]")
        for e in range(0, 8, 2): E(f"v_pk_fma_f32 v[{own+e}:{own+e+1}], v[{own+e}:{own+e+1}], s[{S_LN2}:{S_LN2+1}], v[{XU+e}:{XU+e+1}]")
        for e in range(4): E(f"v_cvt_pk_bf16_f32 v{RB+e}, v{own+2*e}, v{own+2*e+1}")
        out_store(1, RB)
        stamp(f'L{L}st')
        if L == 0:
            publish(S_FX2S, 0, 'x21')
            stamp('x2pub')

    def marker_check(regs_, reload_, tagname):
        ls = E.label('L_mks'); lb = E.label('L_mkb')
        t = 31
        r = list(regs_)
        E(f"v_max3_u32 v{t}, v{r[0]}, v{r[1]}, v{r[2]}"); k = 3
        while k + 1 < len(r): E(f"v_max3_u32 v{t}, v{t}, v{r[k]}, v{r[k+1]}"); k += 2
        if k < len(r): E(f"v_max_u32 v{t}, v{t}, v{r[k]}")
        E(f"v_cmp_eq_u32 vcc, -1, v{t}\ns_cbranch_vccnz {ls}\n{lb}:")
        ll = E.label('L_mkl')
        txt = f"{ls}:\ns_mov_b32 s{S_T3}, 0\n{ll}:\n"
        for i, x in enumerate(r):
            l2 = E.label('L_mkn')
            txt += f"""v_cmp_eq_u32 vcc, -1, v{x}
            s_cbranch_vccz {l2}
            {reload_(i)}
            {l2}:
            """
        txt += f"s_add_u32 s{S_T3}, s{S_T3}, 1\ns_waitcnt vmcnt(0)\n"
        txt += f"v_max3_u32 v{t}, v{r[0]}, v{r[1]}, v{r[2]}\n"; k = 3
        while k + 1 < len(r): txt += f"v_max3_u32 v{t}, v{t}, v{r[k]}, v{r[k+1]}\n"; k += 2
        if k < len(r): txt += f"v_max_u32 v{t}, v{t}, v{r[k]}\n"
        txt += f"""v_cmp_eq_u32 vcc, -1, v{t}
        s_cmp_gt_u32 s{S_T3}, 0x2000
        s_cbranch_vccz {lb}
        s_cbranch_scc0 {ll}
        s_branch {lb}
        """
        E.out_of_line(txt)

    def conv():
        lx = E.label('L_xp'); lbx = E.label('L_bx')
        E(f"s_cmp_ge_u32 s{S_W}, 2\ns_cbranch_scc1 {lx}")
        XG = 64
        def xload(i): return f"buffer_load_dwordx4 v[{XG+4*i}:{XG+4*i+3}], v{VL16}, {WSRD}, s{S_XL + (i >> 2)} offen" + (f" offset:{1024*(i & 3)}" if i & 3 else "") + " sc1"
        for i in range(8): E(xload(i))
        stamp('xiss')
        ACCc = 192
        for i in range(32): E(f"v_mov_b32 v{ACCc+i}, 0")
        E("s_waitcnt vmcnt(0)")
        marker_check([XG + 4*i for i in range(8)], xload, 'x')
        stamp('xok')
        for i in range(8): E(f"ds_write_b128 v{VXW}, v[{XG+4*i}:{XG+4*i+3}] offset:{(i >> 2)*XR_P + (i & 3)*1024}")
        E(f"s_branch {lbx}\n{lx}:")
        PB = 64
        for i in range(4): E(f"v_mov_b32 v{108+i}, -1")
        def trd(n):
            E(f"ds_read_b64_tr_b16 v[{PB+4*n}:{PB+4*n+1}], v{VTR} offset:{1024*n}")
            E(f"ds_read_b64_tr_b16 v[{PB+4*n+2}:{PB+4*n+3}], v{VTR} offset:{1024*n + 512}")
        def pst(n):
            if n < 7:
                if n: E(f"s_add_u32 s{S_W1DST}, s{S_W1DST}, 131072")
                E(f"buffer_store_dwordx4 v[{PB+4*n}:{PB+4*n+3}], v{W1D}, {WSRD}, s{S_W1DST} offen sc1")
            else:
                if n > 7: E(f"s_add_u32 s{S_WDDST}, s{S_WDDST}, 229376")
                E(f"buffer_store_dwordx4 v[{PB+4*n}:{PB+4*n+3}], v{WDD}, {WSRD}, s{S_WDDST} offen sc1")
        stamp_dup('xiss')
        for n in range(4): trd(n)
        for n in range(11):
            if n + 4 < 11: trd(n + 4)
            E(f"s_waitcnt lgkmcnt({2*min(4, 10 - n)})")
            pst(n)
        for i in range(4):
            if i: E(f"s_add_u32 s{S_YP}, s{S_YP}, 262144")
            E(f"buffer_store_dwordx4 v[108:111], v{VYP}, {WSRD}, s{S_YP} offen sc1")
        stamp_dup('xok')
        for i in range(32): E(f"v_mov_b32 v{ACCc+i}, 0")
        E(f"{lbx}:")
        E("s_waitcnt lgkmcnt(0)")
        E.vmq = []; E.dsq = []
        E("s_barrier")
        stamp('bx')
        def AF(st, g): return 64 + 32*st + 4*g
        def BF(st, u): return 128 + 32*st + 4*u
        def rdA(st, g, rho): return f"ds_read_b128 v[{AF(st,g)}:{AF(st,g)+3}], v{VA_} offset:{512*g + 64*rho}"
        def rdB(st, u, rho): return f"ds_read_b128 v[{BF(st,u)}:{BF(st,u)+3}], v{VB_} offset:{512*(7-u) + 64*rho}"
        pairs = [(t, g) for t in range(8) for g in range(t+1)]
        order = []
        for t in range(8): order.append(('B', t)); order.append(('A', t))
        def mf(st, t, g):
            return f"v_mfma_f32_16x16x32_bf16 v[{ACCc+4*t}:{ACCc+4*t+3}], v[{AF(st,g)}:{AF(st,g)+3}], v[{BF(st,t-g)}:{BF(st,t-g)+3}], v[{ACCc+4*t}:{ACCc+4*t+3}]"
        S1AT = opt.get('s1at', 24); S1POLL = opt.get('s1poll', 96); S1CHK = opt.get('s1chk', 118)
        acts = {}
        def act(i, f): acts.setdefault(i, []).append(f)
        def s1publish():
            E("s_waitcnt vmcnt(0)"); E.vmq = []
            E.vm(f"buffer_store_dword v{VONE}, v{VS1F}, {WSRD}, s{S_S1F} offen sc1", 's1st')
        def s1poll(): E.vm(f"buffer_load_dwordx4 v[24:27], v{VS1P}, {WSRD}, 0 offen sc1", 's1')
        def s1check():
            all_flags_check(24, VS1P, S_N, 's1')
            E("s_barrier")
            E.vm(f"buffer_store_dword v{VONE}, v{VEP}, {WSRD}, 0 offen sc1", 'ep')
            stamp('s1')
        def qload():
            E.vm(f"buffer_load_dwordx4 {ar(A_Q, 4)}, v9, s[{S_Q}:{S_Q+3}], s{S_QO} offen", 'q')
            E.vm(f"buffer_load_dwordx4 {ar(A_Q+4, 4)}, v9, s[{S_Q}:{S_Q+3}], s{S_QO} offen offset:128", 'q')
        act(S1AT, s1publish); act(opt.get('qat', 40), qload); act(S1POLL, s1poll); act(S1CHK, s1check)
        B = BK['b'] = make_bulk()
        nm = opt.get('bk_m', 5)
        for k in range(nm): act(S1CHK + 2 + k*opt.get('bk_msp', 4), lambda: B.emit(1))
        assert S1CHK + 2 + nm*opt.get('bk_msp', 4) <= 148
        def do(i):
            for f in acts.pop(i, []): f()
        for rho in range(4):
            st = rho & 1
            nxt = []
            if rho < 3: nxt = [(rdB(st^1, x, rho+1) if k == 'B' else rdA(st^1, x, rho+1)) for (k, x) in order]
            if rho == 0:
                reads = [(rdB(0, x, 0) if k == 'B' else rdA(0, x, 0)) for (k, x) in order]
                for r_ in reads[:14]: E(r_)
                issued = 14; done = 0
                allq = reads + nxt
                for idx, (t, g) in enumerate(pairs):
                    if g == 0:
                        E(f"s_waitcnt lgkmcnt({issued - 2*(t+1)})"); done = 2*(t+1)
                    E(mf(0, t, g))
                    do(idx)
                    if t == 7 and g == 4:
                        done += 6
                        E(f"s_waitcnt lgkmcnt({issued - done})")
                    if issued < len(allq) and issued - done < 14:
                        E(allq[issued]); issued += 1
                assert issued == len(allq)
            else:
                E("s_waitcnt lgkmcnt(0)")
                k = 0
                for idx, (t, g) in enumerate(pairs):
                    E(mf(st, t, g))
                    do(36*rho + idx)
                    if nxt and idx % 2 == 0 and k < 16:
                        E(nxt[k]); k += 1
            if rho < 3: stamp(f'rho{rho+1}')
        for i in sorted(acts): do(i)
        stamp('mfend')
        E(f"""
        s_barrier
        v_add_u32 v20, s{S_W1K}, v{VL16}
        s_lshl_b32 s24, s{S_W}, 11
        v_add_u32 v21, s24, v{VL16}
        s_nop 4
        """)
        for t in range(8): E.ds(f"ds_write_b128 v20, v[{ACCc+4*t}:{ACCc+4*t+3}] offset:{1024*t}", 'rdw')
        E.wait_ds('rdw')
        E("s_barrier")
        stamp('red2')
        B.emit(opt.get('bk_red', 0))
        for tau in range(2):
            for src in range(4):
                E.ds(f"ds_read_b128 v[{64+32*tau+4*src}:{67+32*tau+4*src}], v21 offset:{8192*src + 1024*tau}", f'rdr{tau}')
            for ch in range(2):
                E.ds(f"ds_read_b128 v[{128+8*tau+4*ch}:{131+8*tau+4*ch}], v{VKVW} offset:{ch*XR_CH + 512*(1-tau)}", f'rdr{tau}')
        for tau in range(2):
            E.wait_ds(f'rdr{tau}')
            base = 64 + 32*tau
            for ch in range(2):
                kvr = 128 + 8*tau + 4*ch
                for r in range(4): E(f"v_add_f32 v{base+8*ch+r}, v{base+8*ch+r}, v{base+8*ch+r+4}")
                for d in range(4): E(f"v_lshlrev_b32 v{kvr+d}, 16, v{kvr+d}")
                for r in range(4): E(f"v_fmac_f32 v{base+8*ch+r}, s{60+ch}, v{kvr+3-r}")
            for r in range(4): E(f"v_cvt_pk_bf16_f32 v{148+r}, v{base+r}, v{base+8+r}")
            o = 152 + 4*tau
            E(f"""
            v_mov_b32 v{o}, v150
            v_mov_b32 v{o+1}, v148
            v_mov_b32 v{o+2}, v151
            v_mov_b32 v{o+3}, v149
            v_mov_b32_dpp v{o}, v148 row_ror:8 row_mask:0xf bank_mask:0x3
            v_mov_b32_dpp v{o+1}, v150 row_ror:8 row_mask:0xf bank_mask:0xc
            v_mov_b32_dpp v{o+2}, v149 row_ror:8 row_mask:0xf bank_mask:0x3
            v_mov_b32_dpp v{o+3}, v151 row_ror:8 row_mask:0xf bank_mask:0xc
            """)
            if tau == 1: E(f"s_add_u32 s58, s58, 262144")
            E.vm(f"buffer_store_dwordx4 v[{o}:{o+3}], v{VYS}, {WSRD}, s58 offen sc1", 'yst')
        stamp('yst')

    def rest():
        conv()
        B = BK['b']
        def yload(i):
            c2, k = i >> 2, i & 3
            return f"buffer_load_dword v{Y+i}, v10, {WSRD}, s{59 if c2 == 0 else 24} offen" + (f" offset:{512*k}" if k else "") + " sc1"
        E("s_add_u32 s24, s59, 16384")
        for i in range(8): E.vm(yload(i), 'y')
        n_y = opt.get('bk_y', 0)
        B.emit(n_y)
        assert 'w1_3' not in E.seen, 'slot 0 is still in use'
        for i in range(8): E(f"v_accvgpr_read_b32 v{X+i}, a{A_Q+i}")
        R_pre(0)
        stamp('qst')
        B.emit(opt.get('bk_q', 0))
        E.wait_vm('y')
        marker_check([Y + i for i in range(8)], yload, 'y')
        stamp('yok')
        B.emit(opt.get('bk_r0', 16))
        for i in range(8): E(f"v_accvgpr_write_b32 a{A_Y+i}, v{Y+i}")
        R_post(0, early=lambda: B.emit(opt.get('bk_r1', max(0, B.left() - 56))), late=None)
        assert all(('w1_%d' % p) in E.seen for p in range(4)) and not any(getattr(o[2], 'info', None) is None for o in B.ops), 'W1 tiles 0..3 must be under way before the XN stores'
        Rpub(0)
        layer(0)
        poll_issue(VP8, S_FX2L, 0, 'px2')
        poll_check(VP8, S_FX2L, 0, 'px2')
        for r_, c_ in ((S_FXNS, 16*256), (S_FXNL, 16*256), (S_FHS, 16*1024), (S_FHL, 16*1024)): E(f"s_add_u32 s{r_}, s{r_}, {c_}")
        stamp('x2ok')
        sadd(S_T0, S_R, WS_XN); sadd(S_T1, S_R, WS_XN + 4096)
        E.vm(f"buffer_load_dwordx4 v[{X}:{X+3}], v{VR}, {WSRD}, s{S_T0} offen" + LSC, 'x2l')
        E.vm(f"buffer_load_dwordx4 v[{X+4}:{X+7}], v{VR}, {WSRD}, s{S_T1} offen" + LSC, 'x2l')
        for i in range(8): E(f"v_accvgpr_read_b32 v{Y+i}, a{A_Y+i}")
        E.wait_vm('x2l')
        R_pre(1)
        R_post(1)
        Rpub(1)
        layer(1)
        E.wait_vm_all()

    def s0cmp(val): return "\n".join([f"v_xor_b32 v{S0R+i}, s{val}, v{S0R+i}" for i in range(4)] +
                                     [f"v_or3_b32 v{S0R}, v{S0R}, v{S0R+1}, v{S0R+2}", f"v_or_b32 v{S0R}, v{S0R}, v{S0R+3}"])
    E.wait_vm('s0')
    E(s0cmp(S_XCC))
    E(f"v_cmp_ne_u32 vcc, 0, v{S0R}")
    E("s_branch L_s0s" if force_slow else "s_cbranch_vccnz L_s0s")
    E("L_s0b:")
    E.out_of_line(f"""
    L_s0s:
    s_mov_b32 s{S_T3}, 0
    L_s0l:
    v_cmp_lt_u32 vcc, 7, v{S0R}
    s_cmp_gt_u32 s{S_T3}, 0x2000
    s_cbranch_vccz L_slow
    s_cbranch_scc1 L_s0b
    buffer_load_dwordx4 v[{S0R}:{S0R+3}], v30, {WSRD}, 0 offen sc1
    s_add_u32 s{S_T3}, s{S_T3}, 1
    s_waitcnt vmcnt(0)
    {s0cmp(S_XCC)}
    v_cmp_ne_u32 vcc, 0, v{S0R}
    {'s_branch L_s0l' if force_slow else 's_cbranch_vccnz L_s0l'}
    s_branch L_s0b""")
    stamp('s0')
    Efast = E
    Es = Emit(); Es.vmq = []; Es.dsq = list(E.dsq); Es.seen = set(E.seen); Es.nl = 100000
    E = Es; MODE['slow'] = True
    E(f"""
    L_slow:
    s_mov_b32 s{S_EXP}, 2
    s_waitcnt vmcnt(0)
    buffer_wbl2 sc1
    s_waitcnt vmcnt(0)
    s_barrier
    s_add_u32 s24, s86, {FL_S0B}
    buffer_store_dword v{VONE}, v{VT0}, {WSRD}, s24 offen sc1
    s_mov_b32 s25, {FL_S0B - FL_S0}
    s_mov_b32 s{S_T3}, 0
    L_s0bl:
    buffer_load_dwordx4 v[{S0R}:{S0R+3}], v30, {WSRD}, s25 offen sc1
    s_add_u32 s{S_T3}, s{S_T3}, 1
    s_waitcnt vmcnt(0)
    {s0cmp(S_N)}
    v_cmp_ne_u32 vcc, 0, v{S0R}
    s_cmp_gt_u32 s{S_T3}, 0x2000
    s_cbranch_scc1 L_s0bx
    s_cbranch_vccnz L_s0bl
    L_s0bx:
    buffer_inv sc1
    s_waitcnt vmcnt(0)
    """)
    rest()
    E("s_branch L_fin")
    E = Efast; MODE['slow'] = False
    rest()
    E("L_fin:")
    if stamps:
        stamp('end')
        n = len(names)
        E("s_memrealtime s[24:25]")
        E("s_waitcnt lgkmcnt(0)")
        for k in (n - 2, n - 1): E(f"v_writelane_b32 v{VSTAMP}, s{SP[k & 1]}, {k}")
        E(f"""
        v_writelane_b32 v{VSTAMP}, s100, 61
        v_writelane_b32 v{VSTAMP}, s24, 62
        v_writelane_b32 v{VSTAMP}, s{S_EXP}, 63
        s_lshl_b32 s25, s2, 10
        s_lshl_b32 s26, s{S_W}, 8
        s_add_u32 s25, s25, s26
        s_add_u32 s25, s25, {WS_STAMP}
        v_lshrrev_b32 v20, 2, v{VL16}
        buffer_store_dword v{VSTAMP}, v20, {WSRD}, s25 offen
        s_waitcnt vmcnt(0)
        """)
        assert n < 60
        print('k3 stamps:', ','.join(names))
        open('last_stamps.txt', 'w').write(','.join(names))
    E("L_end:")
    E("s_endpgm")
    main = hazard_pass(E.L[1:], verbose=opt.get('verbose', False))
    tail = list(E.tail) + ['L_codeend:'] + hazard_pass(Es.L) + list(Es.tail)
    txt = E.L[0] + '\n' + '\n'.join(('    ' + l if not l.endswith(':') else l) for l in main) + '\n'
    txt += '\n'.join(('    ' + l if not l.endswith(':') else l) for l in tail) + '\n'
    txt += "    s_endpgm\n"
    return txt + kd(name, 512, 102, accum=256)

if __name__ == '__main__':
    st = 'stamps' in sys.argv; slow = 'slow' in sys.argv
    opt = {'verbose': 'v' in sys.argv}
    for a in sys.argv[2:]:
        if '=' in a:
            k_, v_ = a.split('=')
            opt[k_] = v_.split(',') if k_ == 'st' else (v_ if k_.startswith('fl') else int(v_))
    kname = NAME + '_kernel'
    txt = KERNARG_COMMENT
    txt += f"; @launch grid=(256,1,1) block=(256,1,1) lds={K1_LDS}\n"
    txt += TARGET + gen(kname, stamps=st, force_slow=slow, opt=opt)
    txt += ".text\n.fill 64, 4, 0xbf800000\n"
    open(sys.argv[1], 'w').write(txt)
```

```python
import sys
sys.path.insert(0, 'gen')
from emit import *
from layout3 import *
from common import head, kd, TARGET, KERNARG_COMMENT, NAME

K1_LDS = 163840
SLOT = 32768
SCR = SLOT
STATS = SLOT + 24576
OOB = 0x80000000
VL16, VA1, VA2, VP8, VP16, VF0, VR = 1, 2, 3, 4, 5, 6, 7
VSTW, VSTR = 11, 12
VRW = [13, 14, 15]; VRR = 16
VPOLL, VONE, VSTAMP = 17, 18, 19
RING = 32
ACC = [64, 80, 96, 112]
XR = 128
A_WD = 0; A_Y = 224; A_T4 = 232
S_WS = 4; S_Q = 8; S_OUT = 12
S_W, S_ROLE, S_C, S_TH, S_J, S_EXP, S_XCC, S_W1K = 16, 17, 18, 19, 20, 21, 22, 23
S_R, S_XNL, S_HST, S_HLD, S_XML, S_W1, S_FXNS, S_FXNL, S_FHS, S_FHL, S_FX2S, S_FX2L = range(34, 46)
S_T0, S_T1, S_T2, S_T3, S_HI = 46, 47, 48, 49, 31
S_LN2 = 98
S_DA, S_XA = 50, 3
S_HA = [96, 97]; S_HS = [94, 95]
LA = 6
def vr(b, n=1): return f"v{b}" if n == 1 else f"v[{b}:{b+n-1}]"
def ar(b, n=1): return f"a{b}" if n == 1 else f"a[{b}:{b+n-1}]"

LAYERS = [
    dict(tau=[0, 1, 2, 3, 4, 5, 6], slot=[2, 3, 4, 0, 1, 2, 3]),
    dict(tau=[5, 6, 2, 3, 4, 0, 1], slot=[2, 3, 4, 0, 1, 2, 3]),
]
LOG2E = 0x3fb8aa3b; LN2 = 0x3f317218
A_H = 236

S_N = 51
VWD = 28
S_WDB = 30
A_Q = 232
HC_J = 4160; HC_CH = 4*HC_J
XRB = 2*HC_CH
XR_P = 4640; XR_CH = 9472
TBS = 1056
KT = 2*SLOT; VT = KT + 9*TBS
PST = 3*SLOT
S_QO, S_PST = 87, 94
S_G, S_M, S_CB, S_CP, S_D, S_E = 88, 89, 84, 85, 62, 63
POISON = 0xffffffff


def gen(name, stamps=False, force_slow=False, opt=None):
    opt = opt or {}
    E = Emit()
    LSC = ' sc1' if opt.get('lsc', 1) else ''
    names = []
    DEF = ['start', 'join', 'b0', 'kvst', 's0', 'xiss', 'prep', 'xok', 'bx', 'rho1', 'rho2', 'rho3', 's1', 'mfend', 'red2', 'yst', 'qst', 'yok', 'R0st', 'R0pub', 'L0xnok', 'L0g1', 'L0s96', 'L0s224', 'L0g2end', 'L0st', 'x2ok', 'R1st', 'R1pub', 'L1xnok', 'L1g1', 'L1s96', 'L1s224', 'L1g2end', 'L1st', 'end']
    enabled = set(opt.get('st', DEF)) | {'start', 'end'}
    MODE = {'slow': False}
    SP = [90, 92]
    def stamp(nm):
        if stamps and nm in enabled and not MODE['slow']:
            n = len(names); names.append(nm)
            if n >= 2: E(f"v_writelane_b32 v{VSTAMP}, s{SP[n & 1]}, {n-2}")
            E(f"s_memtime s[{SP[n & 1]}:{SP[n & 1]+1}]")
    def stamp_dup(nm):
        if stamps and nm in names and not MODE['slow']:
            n = names.index(nm)
            if n >= 2: E(f"v_writelane_b32 v{VSTAMP}, s{SP[n & 1]}, {n-2}")
            E(f"s_memtime s[{SP[n & 1]}:{SP[n & 1]+1}]")
    WSRD = f"s[{S_WS}:{S_WS+3}]"
    def FL(kind, L):
        v = opt.get(f'fl{kind}{L}', opt.get(f'fl{kind}', ''))
        return (' ' + v.replace('+', ' ')) if v else ''

    def sadd(dst, base, const):
        if const == 0: E(f"s_mov_b32 s{dst}, s{base}")
        else: E(f"s_add_u32 s{dst}, s{base}, {const}")
    def dma_stream(tau, slot, tag, ilist=range(8)):
        ops = []; cur = None
        for i in ilist:
            if cur != (i >> 2):
                cur = i >> 2
                ops.append((4, False, lambda g=cur: E(f"s_add_u32 m0, s{S_W1K}, {slot*SLOT + g*4096}")))
                ops.append((4, False, lambda g=cur: sadd(S_DA, S_W1, tau*32768 + g*4096)))
            off = (i & 3)*1024
            ops.append((4, True, lambda off=off: E.vm(f"buffer_load_dwordx4 v{VL16}, {WSRD}, s{S_DA} offen" + (f" offset:{off}" if off else "") + " lds", tag)))
        return ops
    def wd_stream(kps):
        ops = []
        for kp in kps:
            f = lambda kp=kp: E(f"s_add_u32 s26, s{S_WDB}, {kp*2048}")
            f.info = ('wd', kp); ops.append((4, False, f))
            for pd in range(2):
                f = lambda kp=kp, pd=pd: E.vm(f"buffer_load_dwordx4 {ar(A_WD + 8*kp + 4*pd, 4)}, v{VWD+pd}, {WSRD}, s26 offen" + LSC, f'wd{kp}')
                f.info = ('wd', kp); ops.append((4, True, f))
        return ops
    class Bulk:
        def __init__(self, ops): self.ops = list(ops)
        def take(self, n):
            out = []
            while n > 0 and self.ops:
                o = self.ops.pop(0); out.append(o)
                if o[1]: n -= 1
            return out
        def emit(self, n):
            for (_, _, f) in self.take(n): f()
            assert not self.ops or not self.ops[0][1] or getattr(self.ops[0][2], 'info', None) is None, 'Wd loads come in pairs'
        def left(self): return sum(1 for o in self.ops if o[1])
    def publish(sbase, const, tag, wait=True):
        o = f" offset:{const}" if const else ""
        if MODE['slow']:
            E.wait_vm_all()
            E("buffer_wbl2 sc1\ns_waitcnt vmcnt(0)")
            E.vm(f"buffer_store_dword v{VONE}, v{VF0}, {WSRD}, s{sbase} offen{o} sc1", None)
            return
        if wait: E.wait_vm(tag)
        E.vm(f"buffer_store_dword v{VONE}, v{VF0}, {WSRD}, s{sbase} offen{o}", None)
    def poll_issue(voff, sbase, const, tag, dst=VPOLL):
        o = f" offset:{const}" if const else ""
        if MODE['slow']: E.seen.add(tag); return
        E.vm(f"buffer_load_dword v{dst}, v{voff}, {WSRD}, s{sbase} offen{o} sc1", tag)
    def poll_check(voff, sbase, const, tag, dst=VPOLL, wait=True):
        o = f" offset:{const}" if const else ""
        ls = E.label('L_polls'); lb = E.label('L_pollb'); ll = E.label('L_polll')
        if MODE['slow']:
            E.wait_vm_all()
            E(f"""
            s_mov_b32 s{S_T3}, 0
            {ll}:
            buffer_inv sc1
            s_waitcnt vmcnt(0)
            buffer_load_dword v{dst}, v{voff}, {WSRD}, s{sbase} offen{o} sc1
            s_add_u32 s{S_T3}, s{S_T3}, 1
            s_waitcnt vmcnt(0)
            v_cmp_ne_u32 vcc, s{S_N}, v{dst}
            s_cmp_gt_u32 s{S_T3}, 0x2000
            s_cbranch_scc1 {lb}
            s_cbranch_vccnz {ll}
            {lb}:
            buffer_inv sc1
            s_waitcnt vmcnt(0)""")
            return
        if wait: E.wait_vm(tag)
        E(f"v_cmp_ne_u32 vcc, s{S_N}, v{dst}")
        E(f"s_cbranch_vccnz {ls}")
        E(f"{lb}:")
        E.out_of_line(f"""
        {ls}:
        s_mov_b32 s{S_T3}, 0
        {ll}:
        buffer_load_dword v{dst}, v{voff}, {WSRD}, s{sbase} offen{o} sc1
        s_add_u32 s{S_T3}, s{S_T3}, 1
        s_waitcnt vmcnt(0)
        v_cmp_ne_u32 vcc, s{S_N}, v{dst}
        s_nop 4
        s_cbranch_vccz {lb}
        s_cmp_lt_u32 s{S_T3}, 0x2000
        s_cbranch_scc1 {ll}
        s_branch {lb}""")
    def all_flags_check(dst, voff, sval, tag, lim=0x2000):
        ls = E.label('L_afs'); lb = E.label('L_afb'); ll = E.label('L_afl')
        def cmp4():
            return "\n".join([f"v_xor_b32 v{dst+i}, s{sval}, v{dst+i}" for i in range(4)] +
                             [f"v_or3_b32 v{dst}, v{dst}, v{dst+1}, v{dst+2}", f"v_or_b32 v{dst}, v{dst}, v{dst+3}", f"v_cmp_ne_u32 vcc, 0, v{dst}"])
        E.wait_vm(tag)
        E(cmp4())
        E(f"s_cbranch_vccnz {ls}\n{lb}:")
        E.out_of_line(f"""
        {ls}:
        s_mov_b32 s{S_T3}, 0
        {ll}:
        buffer_load_dwordx4 v[{dst}:{dst+3}], v{voff}, {WSRD}, 0 offen sc1
        s_add_u32 s{S_T3}, s{S_T3}, 1
        s_waitcnt vmcnt(0)
        {cmp4()}
        s_nop 4
        s_cbranch_vccz {lb}
        s_cmp_lt_u32 s{S_T3}, {lim}
        s_cbranch_scc1 {ll}
        s_branch {lb}""")

    KSRD, VSRD, HSRD, PSRD, WDSRD = "s[52:55]", "s[64:67]", "s[76:79]", "s[68:71]", "s[52:55]"
    VPS, VPW = 224, 225
    E.L.append(head(name).rstrip())
    E(f"""
    s_cmp_ge_u32 s2, 256
    s_cbranch_scc1 L_end
    s_load_dwordx2 s[52:53], s[0:1], 8
    s_load_dwordx2 s[64:65], s[0:1], 16
    s_load_dwordx2 s[4:5], s[0:1], 96
    s_load_dwordx8 s[56:63], s[0:1], 24
    s_load_dwordx8 s[68:75], s[0:1], 56
    s_load_dwordx2 s[8:9], s[0:1], 0
    """)
    if stamps: E("s_memrealtime s[100:101]")
    stamp('start')
    E(f"""
    v_lshrrev_b32 v20, 6, v0
    v_and_b32 v8, 63, v0                     ; lane
    s_and_b32 s{S_G}, s2, 7
    s_lshr_b32 s{S_M}, s2, 3
    v_readfirstlane_b32 s{S_W}, v20
    v_lshlrev_b32 v{VL16}, 4, v8
    v_lshrrev_b32 v21, 3, v8
    v_and_b32 v22, 7, v8
    s_lshl_b32 s{S_CB}, s{S_G}, 6
    s_lshl_b32 s24, s{S_M}, 1
    s_add_u32 s{S_CB}, s{S_CB}, s24
    s_lshl_b32 s24, s{S_G}, 9
    s_lshl_b32 s25, s{S_W}, 7
    s_add_u32 s24, s24, s25
    v_lshlrev_b32 v30, 4, v21
    v_add_u32 v30, s24, v30
    s_lshr_b32 s24, s2, 2                    ; kg
    s_and_b32 s25, s2, 3                     ; fq
    s_mul_i32 s26, s24, 28672
    s_mul_i32 s27, s25, 896
    s_add_u32 s26, s26, s27
    v_mul_u32_u24 v{VPS}, 3584, v21
    v_lshl_add_u32 v{VPS}, v22, 4, v{VPS}
    v_add_u32 v{VPS}, s26, v{VPS}
    v_lshlrev_b32 v{VPW}, 10, v21
    v_lshl_add_u32 v{VPW}, v22, 4, v{VPW}
    s_and_b32 s25, s{S_W}, 1
    s_lshl_b32 s26, s2, 13
    s_lshl_b32 s27, s25, 9
    s_add_u32 s26, s26, s27
    v_add_u32 v{VPW}, s26, v{VPW}
    s_mul_i32 s26, s25, {11*1024}
    s_add_u32 s{S_PST}, s26, {PST}
    s_cmp_eq_u32 s{S_W}, 3
    s_cbranch_scc1 L_w3
    ; k / v staging tiles: row = lane >> 3, 16-byte segment = lane & 7
    v_lshlrev_b32 v32, 10, v21
    v_lshl_add_u32 v32, v22, 4, v32
    s_lshl_b32 s24, s{S_M}, 16
    s_lshl_b32 s25, s{S_G}, 7
    s_add_u32 s24, s24, s25
    v_add_u32 v32, s24, v32
    s_cmp_eq_u32 s{S_W}, 2
    s_cbranch_scc1 L_w2
    s_cmp_eq_u32 s{S_W}, 1
    s_cbranch_scc1 L_w1
    """)
    def srd_fix(b, size): return f"s_and_b32 s{b+1}, s{b+1}, 0xffff\ns_mov_b32 s{b+2}, {size}\ns_mov_b32 s{b+3}, 0x20000"
    SK = 56
    def skload(): E(f"global_load_dwordx4 v[{SK}:{SK+3}], v30, s[56:57]")
    def h_dma(js, sch, slds):
        for j in js:
            E(f"s_add_u32 s26, s{sch}, {4 + 4*j}\ns_add_u32 m0, s{slds}, {j*HC_J + 64}\ns_nop 0")
            for q_ in range(4):
                E(f"buffer_load_dwordx4 v{VL16}, {HSRD}, s26 offen" + (f" offset:{1024*q_}" if q_ else "") + " lds")
    def prep_dma():
        for i in range(7):
            E(f"s_add_u32 m0, s{S_PST}, {1024*i - 128*i}")
            E(f"s_nop 0\nbuffer_load_dwordx4 v{VPS}, {PSRD}, 0 offen" + (f" offset:{128*i}" if i else "") + " lds")
        for i in range(4):
            E(f"s_add_u32 m0, s{S_PST}, {1024*(7+i) - 128*i}")
            E(f"s_nop 0\nbuffer_load_dwordx4 v{VPW}, {WDSRD}, 0 offen" + (f" offset:{128*i}" if i else "") + " lds")
    HEARLY = [0, 1, 2, 3] if opt.get('hpos', 0) == 0 else [0]
    HLATE = [j for j in range(4) if j not in HEARLY]
    def tile_path(lst):
        for j, (kind, blk) in enumerate(lst):
            c = (blk*8192 - (4096 if kind == 'k' else 1024)) & 0xffffffff
            E(f"v_add_u32 v{40+j}, {c:#x}, v32")
        E("s_waitcnt lgkmcnt(0)")
        E(f"s_load_dword s{S_E}, s[4:5], {FL_EPOCH}")
        if any(k == 'k' for k, _ in lst): E(srd_fix(52, 2097152))
        if any(k == 'v' for k, _ in lst): E(srd_fix(64, 2097152))
        for j, (kind, blk) in enumerate(lst):
            E(f"s_mov_b32 m0, {(KT if kind == 'k' else VT) + blk*TBS}\ns_nop 0")
            E(f"buffer_load_dwordx4 v{40+j}, {KSRD if kind == 'k' else VSRD}, 0 offen lds")
    tile_path([('k', b) for b in range(6)])
    E("s_branch L_w01\nL_w1:")
    tile_path([('k', b) for b in (6, 7, 8)] + [('v', b) for b in (0, 1, 2)])
    E("L_w01:")
    stamp('e1'); stamp('e2')
    skload()
    E(f"""
    s_mov_b32 s76, s58
    s_mov_b32 s77, s59
    {srd_fix(76, 2097152)}
    s_add_u32 s24, s{S_CB}, s{S_W}
    s_lshl_b32 s24, s24, 12                  ; channel * 4096
    s_mul_i32 s25, s{S_W}, {HC_CH}
    """)
    h_dma(HEARLY, 24, 25)
    E("s_branch L_join\nL_w2:")
    tile_path([('v', b) for b in range(3, 9)])
    stamp_dup('e1'); stamp_dup('e2')
    skload()
    E("s_branch L_w23\nL_w3:")
    MK4 = opt.get('mk4', 1)
    E(f"""
    v_lshlrev_b32 v33, 12, v21
    v_lshl_add_u32 v33, v22, 4, v33
    v_mov_b32 v36, -1
    v_mov_b32 v37, -1
    v_mov_b32 v38, -1
    v_mov_b32 v39, -1
    s_lshl_b32 s26, s{S_G}, 19
    s_lshl_b32 s27, s{S_M}, 7
    s_sub_u32 s26, s26, s27
    s_add_u32 s26, s26, {WS_KVT + 3968}
    s_waitcnt lgkmcnt(0)
    {srd_fix(S_WS, WS_SRD_BYTES)}
    s_load_dword s{S_E}, s[4:5], {FL_EPOCH}
    """)
    for i in range(16):
        E(f"buffer_store_dwordx4 v[36:39], v33, {WSRD}, s26 offen" if MK4 else f"buffer_store_dword v36, v33, {WSRD}, s26 offen")
        if i < 15: E("s_add_u32 s26, s26, 32768")
    stamp_dup('e1')
    E(f"""
    s_getreg_b32 s24, hwreg(HW_REG_XCC_ID, 0, 4)
    s_and_b32 s25, s2, 63
    s_lshl_b32 s25, s25, 7
    s_lshr_b32 s26, s2, 6
    s_lshl_b32 s26, s26, 2
    s_add_u32 s25, s25, s26
    s_add_u32 s25, s25, {FL_S0}
    s_and_b32 s24, s24, 7
    v_mov_b32 v{VF0}, {OOB}
    v_cmp_eq_u32 vcc, 0, v8
    v_mov_b32 v31, 0
    s_mov_b32 s68, s70
    s_mov_b32 s69, s71
    v_cndmask_b32 v{VF0}, v{VF0}, v31, vcc
    s_waitcnt lgkmcnt(0)
    s_mul_i32 s26, s{S_E}, 0x9e3779b1
    s_add_u32 s26, s26, 0x7f4a7c15
    s_and_b32 s26, s26, 0xfffffff0
    s_or_b32 s24, s24, s26
    v_mov_b32 v31, s24
    s_waitcnt vmcnt(0)
    buffer_store_dword v31, v{VF0}, {WSRD}, s25 offen sc1
    """)
    stamp_dup('e2')
    skload()
    E(f"""
    L_w23:
    {srd_fix(68, 1835008)}
    s_mov_b32 s52, s72
    s_mov_b32 s53, s73
    {srd_fix(52, 1835008)}
    """)
    RAWPOS = opt.get('rawpos', 0)
    if RAWPOS == 0: prep_dma()
    E("L_join:")
    stamp('join')
    HEAD = 60
    PFL = opt.get('pfl', 15)
    E(f"""
    {srd_fix(S_WS, WS_SRD_BYTES)}
    s_lshr_b32 s{S_CP}, s{S_CB}, 1
    s_mov_b32 s76, s58
    s_mov_b32 s77, s59
    {srd_fix(76, 2097152)}
    s_lshl_b32 s24, s{S_CB}, 1
    s_load_dword s{S_D}, s[60:61], s24
    v_and_b32 v23, 31, v0
    v_lshrrev_b32 v24, 7, v0
    v_bfe_u32 v25, v0, 5, 2
    v_lshl_add_u32 v26, v25, 1, v23
    v_add_u32 v26, -30, v26
    v_add_u32 v27, s{S_CB}, v24
    v_lshlrev_b32 v27, 12, v27
    v_lshl_add_u32 v27, v26, 1, v27
    v_cmp_gt_i32 vcc, 0, v26
    v_mov_b32 v31, -16
    v_mul_u32_u24 v61, {HC_CH}, v24
    v_cndmask_b32 v27, v27, v31, vcc
    buffer_load_ushort v{HEAD}, v27, {HSRD}, 0 offen
    v_mul_u32_u24 v31, {HC_J}, v25
    v_add_u32 v61, v61, v31
    v_lshl_add_u32 v61, v23, 1, v61
    s_getpc_b64 s[32:33]
    L_pc:
    s_lshl_b32 s24, s{S_M}, 2
    s_add_u32 s24, s24, s{S_W}
    {'s_and_b32 s24, s24, 31' if PFL == 15 else 's_nop 0'}
    s_lshl_b32 s24, s24, {11 if PFL == 15 else 9}
    v_and_b32 v31, {PFL}, v8
    v_lshlrev_b32 v31, 7, v31
    v_add_u32 v31, s24, v31
    v_min_u32 v31, L_codeend-L_pc-64, v31
    global_load_dword v255, v31, s[32:33]
    """)
    stamp('i_a')
    E(f"""
    s_mov_b32 s{S_OUT}, s74
    s_mov_b32 s{S_OUT+1}, s75
    ; block-stage ids ; q fragment offsets: token = 128 c + 8 role + tok, channels 128 w + 64 c2 + 16 ks + 8 hi ..
    s_and_b32 s{S_ROLE}, s{S_M}, 15
    s_lshr_b32 s24, s{S_M}, 4
    s_lshl_b32 s24, s24, 3
    s_add_u32 s{S_C}, s{S_G}, s24
    s_lshr_b32 s{S_TH}, s{S_ROLE}, 3
    s_and_b32 s{S_J}, s{S_ROLE}, 7
    v_and_b32 v20, 7, v8                     ; tok
    v_bfe_u32 v21, v8, 3, 1                  ; hi
    v_lshrrev_b32 v22, 4, v8                 ; ks
    v_lshlrev_b32 v9, 10, v20
    v_lshl_add_u32 v9, v22, 5, v9
    v_lshl_add_u32 v9, v21, 4, v9
    s_lshl_b32 s24, s{S_C}, 7
    s_lshl_b32 s25, s{S_ROLE}, 3
    s_add_u32 s24, s24, s25
    s_lshl_b32 s24, s24, 10
    s_lshl_b32 s25, s{S_W}, 8
    s_add_u32 s{S_QO}, s24, s25
    {srd_fix(S_Q, 2097152)}
    """)
    E(f"""
    s_getreg_b32 s{S_XCC}, hwreg(HW_REG_XCC_ID, 0, 4)
    s_lshl_b32 s{S_W1K}, s{S_W}, 13
    s_mul_i32 s{S_W1}, s{S_ROLE}, 229376
    s_add_u32 s{S_W1}, s{S_W1}, s{S_W1K}
    s_add_u32 s{S_W1}, s{S_W1}, {WS_W1F}
    s_and_b32 s{S_OUT+1}, s{S_OUT+1}, 0xffff
    s_mov_b32 s{S_OUT+2}, 2097152
    s_mov_b32 s{S_OUT+3}, 0x20000
    s_mov_b32 s{S_HI}, 0xffff0000
    s_mov_b32 s{S_LN2}, {LN2:#x}
    s_mov_b32 s{S_LN2+1}, {LN2:#x}
    s_mov_b32 s{S_EXP}, 1
    s_and_b32 s{S_XCC}, s{S_XCC}, 7
    v_add_u32 v{VA1}, 65536, v{VL16}
    v_add_u32 v{VA2}, 131072, v{VL16}
    v_lshlrev_b32 v{VP8}, 2, v20
    v_and_b32 v{VP16}, 15, v8
    v_lshlrev_b32 v{VP16}, 2, v{VP16}
    v_mov_b32 v{VF0}, {OOB}
    v_cmp_eq_u32 vcc, 0, v8
    v_mov_b32 v31, 0
    s_lshr_b32 s30, s{S_ROLE}, 2             ; tt_r
    s_and_b32 s24, s{S_ROLE}, 3
    v_cndmask_b32 v{VF0}, v{VF0}, v31, vcc
    s_lshl_b32 s25, s24, 7
    v_lshlrev_b32 v{VR}, 10, v22
    v_lshl_add_u32 v{VR}, v21, 9, v{VR}
    v_lshl_add_u32 v{VR}, v20, 4, v{VR}
    v_add_u32 v{VR}, s25, v{VR}
    ; stats addresses
    v_lshlrev_b32 v{VSTR}, 5, v20
    v_add_u32 v{VSTR}, {STATS}, v{VSTR}
    v_and_b32 v31, 1, v22
    v_lshl_add_u32 v{VSTW}, v31, 2, v{VSTR}
    s_lshl_b32 s25, s{S_W}, 3
    v_add_u32 v{VSTW}, s25, v{VSTW}
    v_lshlrev_b32 v10, 12, v22
    v_lshl_add_u32 v10, v21, 11, v10
    v_lshl_add_u32 v10, v20, 2, v10
    s_lshl_b32 s25, s{S_G}, 19
    s_lshr_b32 s26, s{S_C}, 3
    s_lshl_b32 s26, s26, 17
    s_add_u32 s25, s25, s26
    s_lshl_b32 s26, s30, 15
    s_add_u32 s{S_R}, s25, s26
    s_lshl_b32 s26, s{S_W}, 13
    s_add_u32 s{S_R}, s{S_R}, s26
    s_lshl_b32 s26, s{S_W}, 15
    s_add_u32 s{S_XNL}, s25, s26             ; XB + w*32768
    s_lshl_b32 s26, s{S_C}, 2
    s_add_u32 s27, s26, s{S_W}
    s_mul_i32 s27, s27, 114688
    s_lshr_b32 s28, s{S_ROLE}, 2
    s_mul_i32 s28, s28, 28
    s_and_b32 s29, s{S_ROLE}, 3
    s_add_u32 s28, s28, s29
    s_lshl_b32 s28, s28, 10
    s_add_u32 s{S_HST}, s27, s28
    s_lshl_b32 s27, s{S_TH}, 1
    s_add_u32 s27, s27, s26
    s_mul_i32 s27, s27, 114688
    s_mul_i32 s28, s{S_W}, 28672
    s_add_u32 s{S_HLD}, s27, s28             ; (4c+2th)*114688 + 28w*1024
    s_and_b32 s26, s{S_W}, 1
    s_lshl_b32 s26, s26, 1
    s_lshr_b32 s27, s{S_W}, 1
    s_add_u32 s26, s26, s27
    s_lshl_b32 s27, s{S_J}, 2
    s_add_u32 s26, s26, s27                  ; kappa_o = 4j + 2(w&1) + (w>>1)
    s_lshl_b32 s27, s26, 10
    s_lshl_b32 s28, s{S_TH}, 16
    s_add_u32 s27, s27, s28
    s_add_u32 s{S_XML}, s27, s25
    ; flags
    s_lshl_b32 s25, s{S_C}, 8
    s_lshl_b32 s27, s30, 6
    s_add_u32 s27, s27, s25
    s_lshl_b32 s28, s24, 4
    s_add_u32 s27, s27, s28
    s_lshl_b32 s28, s{S_W}, 2
    s_add_u32 s{S_FXNS}, s27, s28
    s_lshl_b32 s27, s{S_W}, 6
    s_add_u32 s{S_FXNL}, s25, s27            ; c*256 + w*64
    s_lshl_b32 s25, s{S_C}, 10
    s_lshr_b32 s27, s{S_W}, 1
    s_lshl_b32 s27, s27, 7
    s_add_u32 s27, s27, s25
    s_lshl_b32 s29, s{S_ROLE}, 3
    s_add_u32 s27, s27, s29
    s_and_b32 s29, s{S_W}, 1
    s_lshl_b32 s29, s29, 2
    s_add_u32 s{S_FHS}, s27, s29             ; c*1024 + (w>>1)*128 + role*8 + (w&1)*4
    s_lshl_b32 s27, s{S_TH}, 7
    s_add_u32 s27, s27, s25
    s_lshl_b32 s29, s{S_W}, 5
    s_add_u32 s{S_FHL}, s27, s29             ; c*1024 + th*128 + w*32
    s_lshl_b32 s25, s{S_C}, 9
    s_lshl_b32 s27, s{S_TH}, 7
    s_add_u32 s27, s27, s25
    s_lshl_b32 s29, s{S_J}, 4
    s_add_u32 s27, s27, s29
    s_add_u32 s{S_FX2S}, s27, s28            ; c*512 + th*128 + j*16 + w*4
    s_lshr_b32 s27, s30, 1
    s_lshl_b32 s27, s27, 7
    s_add_u32 s27, s27, s25
    s_lshl_b32 s29, s{S_W}, 5
    s_add_u32 s{S_FX2L}, s27, s29            ; c*512 + (tt_r>>1)*128 + w*32
    s_add_u32 s{S_FXNS}, s{S_FXNS}, {FL_XN}
    s_add_u32 s{S_FXNL}, s{S_FXNL}, {FL_XN}
    s_add_u32 s{S_FHS}, s{S_FHS}, {FL_H}
    s_add_u32 s{S_FHL}, s{S_FHL}, {FL_H}
    s_add_u32 s{S_FX2S}, s{S_FX2S}, {FL_X2}
    s_add_u32 s{S_FX2L}, s{S_FX2L}, {FL_X2}
    s_mul_i32 s25, s{S_W}, 6144
    s_add_u32 s25, s25, {SCR}
    v_add_u32 v{VRR}, s25, v{VL16}
    """)
    for m in (1, 2, 3):
        E(f"""
        s_xor_b32 s25, s{S_W}, {m}
        s_mul_i32 s25, s25, 6144
        s_add_u32 s25, s25, {SCR + (m-1)*2048}
        v_add_u32 v{VRW[m-1]}, s25, v{VL16}
        """)
    E(f"""
    s_lshl_b32 s{S_WDB}, s{S_J}, 2
    s_add_u32 s{S_WDB}, s{S_WDB}, s{S_W}
    s_mul_i32 s{S_WDB}, s{S_WDB}, 57344
    s_add_u32 s{S_WDB}, s{S_WDB}, {WS_WDF}
    s_lshr_b32 s25, s{S_W}, 1
    s_lshl_b32 s25, s25, 8
    v_xor_b32 v31, s25, v{VL16}
    s_and_b32 s25, s{S_W}, 1
    s_lshl_b32 s25, s25, 10
    v_add_u32 v{VWD}, s25, v31
    s_xor_b32 s25, s25, 1024
    v_add_u32 v{VWD+1}, s25, v31
    s_waitcnt lgkmcnt(0)
    s_mul_i32 s{S_N}, s{S_E}, 0x9e3779b1
    s_add_u32 s{S_N}, s{S_N}, 0x7f4a7c15
    s_and_b32 s{S_N}, s{S_N}, 0xfffffff0
    s_or_b32 s{S_XCC}, s{S_XCC}, s{S_N}
    v_mov_b32 v{VONE}, s{S_N}
    ; flag slot of this work-group in the [64][4] arrays
    s_and_b32 s86, s2, 63
    s_lshl_b32 s86, s86, 7
    s_lshr_b32 s24, s2, 6
    s_lshl_b32 s24, s24, 2
    s_add_u32 s86, s86, s24
    """)
    stamp('setup')

    VA_, VB_ = 62, 63
    VXW, VKVW, VYS, VT0, VS1P, VEP = 22, 248, 249, 250, 253, 254
    VTR, W1D, WDD, VYP, VS1F = 226, 227, 228, 229, 230
    S_XL = 72
    S_W1DST, S_WDDST, S_YP, S_S1F = 64, 65, 66, 67
    E(f"""
    ; weight images (waves 2 and 3): raw 8-row blocks go to LDS, come back transposed and are stored as MFMA fragments
    s_cmp_eq_u32 s{S_W}, 3
    s_cselect_b32 s28, 256, 0
    s_cselect_b32 s29, 4, 0                  ; first Wd block of this wave
    s_lshr_b32 s24, s2, 2                    ; kg
    s_and_b32 s25, s2, 3                     ; fq
    v_bfe_u32 v20, v8, 2, 2
    v_lshlrev_b32 v{VTR}, 7, v20
    v_lshrrev_b32 v21, 4, v8                 ; g
    v_lshl_add_u32 v{VTR}, v21, 5, v{VTR}
    v_and_b32 v20, 3, v8
    v_lshl_add_u32 v{VTR}, v20, 3, v{VTR}
    v_add_u32 v{VTR}, s{S_PST}, v{VTR}
    v_and_b32 v20, 3, v8
    v_bfe_u32 v23, v8, 2, 1
    v_lshl_or_b32 v20, v23, 3, v20
    v_bfe_u32 v23, v8, 3, 1
    v_lshl_or_b32 v20, v23, 2, v20
    v_lshlrev_b32 v20, 4, v20                ; row * 16
    v_lshl_add_u32 v{W1D}, v21, 15, v20      ; + g * 32768
    s_mul_i32 s26, s25, {28*32768}
    s_lshr_b32 s27, s24, 1
    s_lshl_b32 s27, s27, 10
    s_add_u32 s26, s26, s27
    s_and_b32 s27, s24, 1
    s_lshl_b32 s27, s27, 9
    s_add_u32 s26, s26, s27
    s_add_u32 s26, s26, s28
    s_add_u32 s{S_W1DST}, s26, {WS_W1F}
    v_lshrrev_b32 v23, 1, v21
    v_lshl_add_u32 v{WDD}, v23, 10, v20      ; + dt * 1024
    v_and_b32 v23, 1, v21
    v_lshl_add_u32 v{WDD}, v23, 8, v{WDD}    ; + 16 rows
    s_lshr_b32 s24, s2, 1                    ; kf
    s_mul_i32 s25, s24, 2341
    s_lshr_b32 s25, s25, 16                  ; kf / 28
    s_mul_i32 s26, s25, 28
    s_sub_u32 s26, s24, s26
    s_mul_i32 s25, s25, 57344
    s_lshl_b32 s26, s26, 11
    s_add_u32 s25, s25, s26
    s_and_b32 s26, s2, 1
    s_lshl_b32 s26, s26, 9
    s_add_u32 s25, s25, s26
    s_mul_i32 s26, s29, 229376
    s_add_u32 s25, s25, s26
    s_add_u32 s25, s25, {WS_WDF}
    s_cmp_ge_u32 s2, 224
    s_cselect_b32 s{S_WDDST}, 0xf0000000, s25
    ; markers of the Y rows: waves 2 and 3 take eight clusters each
    v_lshrrev_b32 v{VYP}, 5, v8
    v_and_b32 v20, 31, v8
    v_lshlrev_b32 v{VYP}, 17, v{VYP}
    v_lshl_add_u32 v{VYP}, v20, 4, v{VYP}
    s_lshl_b32 s24, s{S_CP}, 9
    s_lshl_b32 s25, s29, 18
    s_add_u32 s24, s24, s25
    s_add_u32 s{S_YP}, s24, {WS_Y}
    ; images-complete flag: index 2 b + (w & 1) -> line index & 127, dword index >> 7
    s_lshl_b32 s24, s2, 1
    s_and_b32 s25, s{S_W}, 1
    s_add_u32 s24, s24, s25
    s_and_b32 s25, s24, 127
    s_lshl_b32 s25, s25, 7
    s_lshr_b32 s24, s24, 7
    s_lshl_b32 s24, s24, 2
    s_add_u32 s24, s24, s25
    s_add_u32 s{S_S1F}, s24, {FL_S1}
    s_cmp_ge_u32 s{S_W}, 2
    s_cselect_b32 s24, 0, {OOB}
    v_or_b32 v{VS1F}, s24, v{VF0}
    s_lshl_b32 s24, s{S_W}, 12
    s_add_u32 s24, s24, {FL_S1}
    v_and_b32 v20, 31, v8
    v_lshlrev_b32 v{VS1P}, 7, v20
    v_add_u32 v{VS1P}, s24, v{VS1P}
    v_and_b32 v20, 15, v8                    ; r
    v_lshrrev_b32 v21, 4, v8                 ; g
    v_and_b32 v22, 3, v8                     ; j'
    v_bfe_u32 v23, v8, 2, 2                  ; q
    s_lshr_b32 s24, s{S_W}, 1                ; ch
    s_and_b32 s25, s{S_W}, 1
    s_lshl_b32 s25, s25, 8
    s_mul_i32 s26, s24, {HC_CH}
    s_add_u32 s26, s26, s25
    v_mul_u32_u24 v24, {HC_J}, v22
    v_add_u32 v25, v21, v23
    v_lshl_add_u32 v24, v25, 4, v24
    v_add_u32 v{VA_}, s26, v24
    s_mul_i32 s26, s24, {XR_CH}
    s_add_u32 s26, s26, s25
    s_add_u32 s26, s26, {XRB + 16*252 - 3584}
    v_and_b32 v22, 7, v8                     ; n'
    v_bfe_u32 v23, v8, 3, 1                  ; par'
    v_mul_u32_u24 v24, {XR_P}, v23
    v_lshlrev_b32 v25, 6, v22
    v_sub_u32 v24, v24, v25
    v_lshl_add_u32 v24, v21, 4, v24
    v_add_u32 v{VB_}, s26, v24
    v_lshrrev_b32 v20, 6, v0
    v_and_b32 v20, 1, v20
    v_mul_u32_u24 v20, {XR_CH}, v20
    v_bfe_u32 v21, v0, 5, 1
    v_mul_u32_u24 v21, {XR_P}, v21
    v_add_u32 v20, v20, v21
    v_and_b32 v21, 31, v0
    v_lshl_add_u32 v20, v21, 4, v20
    v_add_u32 v20, {XRB + 4096}, v20
    v_mov_b32 v24, 0
    v_mov_b32 v25, 0
    v_mov_b32 v26, 0
    v_mov_b32 v27, 0
    """)
    E.ds("ds_write_b128 v20, v[24:27]", 'pad')
    E(f"""
    ; kv stage: thread = (channel pair cp = 8 w + (lane >> 3), token group tg = lane & 7) ; stores at cp*16384 + 4080 - 128 m - 16 tg
    v_lshrrev_b32 v20, 3, v0                 ; cp
    v_and_b32 v21, 7, v8                     ; tg
    v_lshlrev_b32 v53, 14, v20
    v_lshlrev_b32 v23, 4, v21
    v_sub_u32 v53, v53, v23
    s_lshl_b32 s24, s{S_M}, 7
    s_sub_u32 s24, 4080, s24
    v_add_u32 v53, s24, v53
    ; staging tile reads
    v_mul_u32_u24 v54, {TBS}, v21
    v_lshl_add_u32 v54, v20, 2, v54
    v_add_u32 v55, {VT}, v54
    v_add_u32 v54, {KT}, v54
    ; group flag poll: line 8 l + gamma
    v_and_b32 v30, 7, v8
    v_lshlrev_b32 v30, 10, v30
    s_lshl_b32 s24, s{S_G}, 7
    s_add_u32 s24, s24, {FL_S0}
    v_add_u32 v30, s24, v30
    s_and_b32 s25, s{S_W}, 1
    s_mul_i32 s24, s25, {XR_CH}
    s_add_u32 s24, s24, {XRB}
    v_add_u32 v{VXW}, s24, v{VL16}
    s_add_u32 s24, s{S_CB}, s25
    s_lshl_b32 s24, s24, 13
    s_add_u32 s{S_XL}, s24, {WS_KVT}
    s_add_u32 s{S_XL+1}, s24, {WS_KVT + 4096}
    v_and_b32 v20, 7, v8                     ; n'
    v_bfe_u32 v21, v8, 3, 1                  ; par'
    v_lshrrev_b32 v23, 4, v8                 ; g
    v_lshlrev_b32 v31, 6, v20
    v_lshl_add_u32 v31, v23, 4, v31          ; 64 n' + 16 g
    v_mul_u32_u24 v{VKVW}, {XR_P}, v21
    v_sub_u32 v{VKVW}, v{VKVW}, v31
    s_lshl_b32 s24, s{S_W}, 10
    s_sub_u32 s24, {XRB + 4080 - 512}, s24
    v_add_u32 v{VKVW}, s24, v{VKVW}
    v_lshrrev_b32 v31, 2, v20
    v_lshlrev_b32 v{VYS}, 17, v31
    v_and_b32 v31, 3, v20
    v_lshl_add_u32 v{VYS}, v31, 7, v{VYS}
    v_lshl_add_u32 v{VYS}, v23, 5, v{VYS}
    v_lshl_add_u32 v{VYS}, v21, 4, v{VYS}    ; (n'>>2)*131072 + (n'&3)*128 + g*32 + par'*16
    s_lshl_b32 s24, s{S_CP}, 9
    s_lshl_b32 s25, s{S_W}, 19
    s_add_u32 s24, s24, s25
    s_add_u32 s58, s24, {WS_Y}               ; + cp*512 + 2w*262144
    s_lshl_b32 s24, s{S_C}, 17
    s_lshl_b32 s25, s{S_ROLE}, 5
    s_add_u32 s24, s24, s25
    s_lshl_b32 s25, s{S_W}, 15
    s_add_u32 s24, s24, s25
    s_add_u32 s59, s24, {WS_Y}               ; + c*131072 + role*32 + 64w*512
    s_lshl_b32 s60, s{S_D}, 16
    s_and_b32 s61, s{S_D}, 0xffff0000
    v_mov_b32 v{VT0}, {OOB}
    v_mov_b32 v31, 0
    v_cmp_eq_u32 vcc, 0, v0
    s_lshl_b32 s24, s{S_G}, 19
    s_add_u32 s80, s24, {WS_KVT}
    v_cndmask_b32 v{VT0}, v{VT0}, v31, vcc
    s_cmp_eq_u32 s2, 0
    s_cselect_b32 s24, {FL_EPOCH}, {OOB}
    v_add_u32 v{VEP}, s24, v{VT0}
    v_or_b32 v{VEP}, v{VEP}, v{VT0}
    s_add_u32 s81, s80, 4096
    s_add_u32 s82, s80, 8192
    s_add_u32 s83, s80, 12288
    """)
    stamp('setup2')
    E(f"""
    s_cmp_ge_u32 s{S_W}, 2
    s_cbranch_scc1 L_g2b
    s_waitcnt vmcnt({4*len(HEARLY) + 2})
    s_branch L_g2x
    L_g2b:
    """)
    if RAWPOS == 1:
        E(srd_fix(68, 1835008))
        prep_dma()
    E(f"""
    s_waitcnt vmcnt({13 if RAWPOS == 0 else 11})
    L_g2x:
    """)
    stamp('i_b')
    E.vmq = []
    E.wait_ds('pad')
    E("s_barrier")
    stamp('b0')
    S0R = 24
    def s0poll(): E.vm(f"buffer_load_dwordx4 v[{S0R}:{S0R+3}], v30, {WSRD}, 0 offen sc1", 's0')
    S0AT = opt.get('s0at', 1)
    if S0AT == 0: s0poll()
    KR, VRW_ = 32, 44
    for x in range(0, 8, 2): E.ds(f"ds_read2_b32 v[{KR+x}:{KR+x+1}], v54 offset0:{32*x} offset1:{32*(x+1)}", 'kv')
    E(f"v_add_u32 v20, {TBS}, v54\nv_add_u32 v21, {TBS}, v55")
    for x in range(8, 12, 2): E.ds(f"ds_read2_b32 v[{KR+x}:{KR+x+1}], v20 offset0:{32*(x-8)} offset1:{32*(x-7)}", 'kv')
    for x in range(0, 8, 2): E.ds(f"ds_read2_b32 v[{VRW_+x}:{VRW_+x+1}], v55 offset0:{32*x} offset1:{32*(x+1)}", 'kv')
    E.ds(f"ds_read_b32 v{VRW_+8}, v21", 'kv')
    E(f"""
    v_lshlrev_b32 v136, 16, v{SK}
    v_lshlrev_b32 v137, 16, v{SK+2}
    v_and_b32 v138, s{S_HI}, v{SK}
    v_and_b32 v139, s{S_HI}, v{SK+2}
    v_lshlrev_b32 v140, 16, v{SK+1}
    v_lshlrev_b32 v141, 16, v{SK+3}
    v_and_b32 v142, s{S_HI}, v{SK+1}
    v_and_b32 v143, s{S_HI}, v{SK+3}
    """)
    E.wait_ds('kv')
    for i in range(12): E(f"v_lshlrev_b32 v{96+2*i}, 16, v{KR+i}\nv_and_b32 v{97+2*i}, s{S_HI}, v{KR+i}")
    if S0AT == 1: s0poll()
    for i in range(9): E(f"v_lshlrev_b32 v{164+2*i}, 16, v{VRW_+i}\nv_and_b32 v{165+2*i}, s{S_HI}, v{VRW_+i}")
    def K(x): return f"v[{96+2*x}:{97+2*x}]"
    def KV(i): return 144 + 2*i
    for i in range(9): E(f"v_pk_mul_f32 v[{KV(i)}:{KV(i)+1}], v[136:137], {K(i+3)}")
    if S0AT == 2: s0poll()
    for tap in (1, 2, 3):
        for i in range(9): E(f"v_pk_fma_f32 v[{KV(i)}:{KV(i)+1}], v[{136+2*tap}:{137+2*tap}], {K(i+3-tap)}, v[{KV(i)}:{KV(i)+1}]")
    if S0AT == 3: s0poll()
    for i in range(9): E(f"v_pk_mul_f32 v[{KV(i)}:{KV(i)+1}], v[{KV(i)}:{KV(i)+1}], v[{164+2*i}:{165+2*i}]")
    for c in range(2):
        for par in range(2):
            b = KR + 8*c + 4*par
            for d in range(4): E(f"v_cvt_pk_bf16_f32 v{b+d}, v{KV(8-par-2*d)+c}, v{KV(7-par-2*d)+c}")
            E.vm(f"buffer_store_dwordx4 v[{b}:{b+3}], v53, {WSRD}, s{80 + 2*c + par} offen", 'kvst')
    stamp('kvst')

    X, Y = 128, 136
    XF, YF, T = 144, 160, 176
    def stats(src, rnd, between=None, scale=False):
        P, Q = 192, 194
        E(f"v_pk_add_f32 v[{P}:{P+1}], v[{src}:{src+1}], v[{src+2}:{src+3}]")
        E(f"v_pk_mul_f32 v[{Q}:{Q+1}], v[{src}:{src+1}], v[{src}:{src+1}]")
        for i in range(1, 8):
            E(f"v_pk_fma_f32 v[{Q}:{Q+1}], v[{src+2*i}:{src+2*i+1}], v[{src+2*i}:{src+2*i+1}], v[{Q}:{Q+1}]")
            if i >= 2: E(f"v_pk_add_f32 v[{P}:{P+1}], v[{P}:{P+1}], v[{src+2*i}:{src+2*i+1}]")
        E(f"""
        v_add_f32 v{P}, v{P}, v{P+1}
        v_add_f32 v{Q}, v{Q}, v{Q+1}
        v_permlane16_swap_b32 v{P}, v{Q}
        v_add_f32 v{P}, v{P}, v{Q}
        v_add_f32_dpp v{P}, v{P}, v{P} row_ror:8 row_mask:0xf bank_mask:0xf
        v_mov_b32 v{P+1}, v{P}
        v_permlane32_swap_b32 v{P}, v{P+1}
        v_add_f32 v{P}, v{P}, v{P+1}
        s_mov_b64 exec, 0x00ff00ff
        """)
        E.ds(f"ds_write_b32 v{VSTW}, v{P} offset:{rnd*256}", 'stw')
        E("s_mov_b64 exec, -1")
        E.wait_ds('stw')
        E("s_barrier")
        E.ds(f"ds_read_b128 v[196:199], v{VSTR} offset:{rnd*256}", 'str')
        E.ds(f"ds_read_b128 v[200:203], v{VSTR} offset:{rnd*256+16}", 'str')
        if between: between()
        E.wait_ds('str')
        E(f"""
        v_pk_add_f32 v[196:197], v[196:197], v[198:199]
        v_pk_add_f32 v[200:201], v[200:201], v[202:203]
        v_pk_add_f32 v[196:197], v[196:197], v[200:201]
        v_mul_f32 v196, 0x3b000000, v196
        v_mul_f32 v197, 0x3b000000, v197
        v_fma_f32 v197, -v196, v196, v197
        v_max_f32 v197, 0, v197
        v_add_f32 v197, 0x3727c5ac, v197
        v_rsq_f32 v204, v197
        s_nop 0
        """)
        if scale: E(f"v_mul_f32 v204, {LOG2E:#x}, v204")
        E("v_mul_f32_e64 v206, -v196, v204")
    def norm(dst, src):
        for i in range(8):
            E(f"v_pk_fma_f32 v[{dst+2*i}:{dst+2*i+1}], v[{src+2*i}:{src+2*i+1}], v[204:205], v[206:207] op_sel_hi:[1,0,0]")
    def unpack(dst, src, n):
        for i in range(n):
            E(f"v_lshlrev_b32 v{dst+2*i}, 16, v{src+i}")
            E(f"v_and_b32 v{dst+2*i+1}, s{S_HI}, v{src+i}")
    def R_pre(L, between=None):
        unpack(XF, X, 8)
        stats(XF, 0, between)
        norm(T, XF)
        stamp(f'R{L}s1')
    def R_post(L, early=None, late=None):
        unpack(YF, Y, 8)
        for i in range(8):
            E(f"v_pk_fma_f32 v[{XF+2*i}:{XF+2*i+1}], v[{T+2*i}:{T+2*i+1}], v[{YF+2*i}:{YF+2*i+1}], v[{XF+2*i}:{XF+2*i+1}]")
        M = 208
        for i in range(8): E(f"v_cvt_pk_bf16_f32 v{M+i}, v{XF+2*i}, v{XF+2*i+1}")
        def xmst():
            sadd(S_T0, S_R, WS_XM); sadd(S_T1, S_R, WS_XM + 4096)
            E.vm(f"buffer_store_dwordx4 v[{M}:{M+3}], v{VR}, {WSRD}, s{S_T0} offen" + FL('xm', L), 'rst')
            E.vm(f"buffer_store_dwordx4 v[{M+4}:{M+7}], v{VR}, {WSRD}, s{S_T1} offen" + FL('xm', L), 'rst')
        def behind():
            xmst()
            E.vm(f"buffer_store_dword v{VONE}, v{VEP}, {WSRD}, 0 offen sc1", 'ep')
            if late: late()
        if L == 1: xmst()
        if early: early()
        stats(XF, 1, between=behind if L == 0 else late, scale=True)
        norm(T, XF)
        N = 216
        for i in range(8): E(f"v_cvt_pk_bf16_f32 v{N+i}, v{T+2*i}, v{T+2*i+1}")
        sadd(S_T0, S_R, WS_XN); sadd(S_T1, S_R, WS_XN + 4096)
        E.vm(f"buffer_store_dwordx4 v[{N}:{N+3}], v{VR}, {WSRD}, s{S_T0} offen" + FL('xn', L), 'rst')
        E.vm(f"buffer_store_dwordx4 v[{N+4}:{N+7}], v{VR}, {WSRD}, s{S_T1} offen" + FL('xn', L), 'rst')
        stamp(f'R{L}st')
    def Rpub(L):
        publish(S_FXNS, 0, 'rst')
        E("s_barrier")
        stamp(f'R{L}pub')

    ORDER = {}
    def g2_order():
        stA = [0, 1, 2]; stB = [3, 4, 5]; stC = [6]
        def blocks(tt, ps): return [(tt, rho, p) for p in ps for rho in range(4)]
        b1 = blocks(1, stB); nb1 = opt.get('b1_first', 4)
        return blocks(0, stA) + blocks(1, stA) + blocks(0, stB) + b1[:nb1] + blocks(0, stC) + b1[nb1:] + blocks(1, stC)
    def wd_kseq(L):
        kseq = []
        for (tt, rho, p) in g2_order():
            kp = rho*7 + LAYERS[L]['tau'][p]
            if kp not in kseq: kseq.append(kp)
        return kseq
    def make_bulk():
        c = LAYERS[0]; ops = []
        ks = wd_kseq(0); npre = opt.get('wd_pre', 0)
        for p in range(3): ops += dma_stream(c['tau'][p], c['slot'][p], f'w1_{p}')
        ops += wd_stream(ks[:npre])
        ops += dma_stream(c['tau'][3], c['slot'][3], 'w1_3')
        ops += wd_stream(ks[npre:])
        return Bulk(ops)
    BK = {}

    def layer(L):
        cfg = LAYERS[L]; tau = cfg['tau']; slot = cfg['slot']
        O = lambda k, d: opt.get(f'{k}{L}', opt.get(k, d))
        G2 = 224; NS = 336; lastslot = NS - 1
        BUD = O('bud', 24); VGAP = O('vgap', 2)
        F = {}; cost = [0]*(NS + 64); vslots = set()
        for i in range(G2):
            if i + LA < G2: cost[i] += 4
            if i % 2 == 0: cost[i] += 4
            if i < 96 and i % 3 == 0 and i > 0: cost[i] += 4
        for i in range(G2, NS, 2): cost[i] += 4
        RANK = {'m': 0, 's': 1, 'v': 2}
        def at(i, f, c=4, k='v'): F.setdefault(i, ([], [], []))[RANK[k]].append(f); cost[i] += c
        last = {'k': 'm', 't': -1}
        def put(t, f, c=4, k='v', vm=False, chain=False):
            if vm: k = 'm'
            if chain:
                t = max(t, last['t'] + (1 if RANK[k] < RANK[last['k']] else 0))
            while cost[t] + c > BUD or (vm and any((t + d) in vslots for d in range(-VGAP + 1, VGAP))): t += 1
            if vm: vslots.add(t)
            at(t, f, c, k); last['k'] = k; last['t'] = t
            return t
        def stream(t, ops):
            first = True
            for (c, vm, f) in ops:
                t = put(t, f, c, 's', vm, chain=not first); first = False
            return t
        def T_(s): return lambda: E(s)
        def barrier(): E("s_barrier")
        poll_issue(VP16, S_FXNL, 0, f'pxn{L}')
        if L == 0: BK['b'].emit(opt.get('bk_pub', 0))
        poll_check(VP16, S_FXNL, 0, f'pxn{L}')
        stamp(f'L{L}xnok')
        def xops(k):
            ops = []
            if k % 4 == 0: ops.append((4, False, lambda: sadd(S_XA, S_XNL, WS_XN + (k >> 2)*4096)))
            off = (k & 3)*1024
            ops.append((4, True, lambda: E.vm(f"buffer_load_dwordx4 v[{XR+4*k}:{XR+4*k+3}], v{VL16}, {WSRD}, s{S_XA} offen" + (f" offset:{off}" if off else "") + LSC, f'x{L}_{k}')))
            return ops
        n_up = O('nup', 5)
        for k in range(n_up):
            for (_, _, f) in xops(k): f()
        seq = []
        for k in range(32):
            for p in range(3): seq.append(('g1', p, k))
        for p in range(3, 7):
            for k in range(32): seq.append(('g1', p, k))
        accp = [0, 1, 2, 3, 0, 1, 2]
        def a_addr(p, k):
            s = slot[p]
            base = [VL16, VL16, VA1, VA1, VA2][s]
            off = (s & 1)*SLOT + k*1024 if s < 4 else k*1024
            return base, off
        def rd(i):
            _, p, k = seq[i]
            b, off = a_addr(p, k)
            r = RING + 4*(i % 8)
            E.ds(f"ds_read_b128 v[{r}:{r+3}], v{b} offset:{off}", f'a{L}_{i}')
        order = g2_order()
        assert len(order) == 56
        last0 = max(n for n, b in enumerate(order) if b[0] == 0)
        acc2 = {0: [ACC[0], ACC[1]], 1: [ACC[3], ACC[2]]}
        NH = 37
        def hreg(n):
            q = n % NH
            return ar(A_H + 4*q, 4) if q < 5 else vr(XR + 4*(q - 5), 4)
        def epilogue(p, o):
            c = ACC[accp[p]]
            for e in range(8):
                at(o + e, T_(f"v_exp_f32_e64 v{c+e}, -v{c+e}"), 8)
                at(o + e + 1, T_(f"v_add_f32 v{c+e}, 1.0, v{c+e}"))
                at(o + 8 + e, T_(f"v_rcp_f32 v{c+e}, v{c+e}"), 8)
                at(o + 9 + e, T_(f"v_mul_f32 v{c+e}, v{c+e}, v{c+8+e}"))
        def epilogue2(p, o):
            c = ACC[accp[p]]
            t = 0
            for k in range(4):
                t = put(max(t, o + 11 + 2*k), T_(f"v_cvt_pk_bf16_f32 v{c+8+k}, v{c+2*k}, v{c+2*k+1}"))
            stage = 'A' if p < 3 else ('B' if p < 6 else 'C')
            put(o + 10, T_(f"s_add_u32 s{S_HS[p & 1]}, s{S_HST}, {WS_H + tau[p]*4096}"), k='s')
            return put(t + 1, lambda: E.vm(f"buffer_store_dwordx4 v[{c+8}:{c+11}], v{VL16}, {WSRD}, s{S_HS[p & 1]} offen" + FL('h', L), f'h{stage}{L}'), vm=True)
        eo = [99, 115, 131, 147, 163, 196, 228]
        for p in range(7): epilogue(p, eo[p])
        est = [epilogue2(p, eo[p]) for p in range(7)]
        assert est[0] < 126 and est[1] < 158 and est[2] < 190 and est[5] < 222 and est[6] < 248, est
        at(121, lambda: (E.wait_vm(f'w4{L}'), barrier()), 8, 's')
        at(96, barrier, 4, 's')
        at(153, lambda: (E.wait_vm(f'w5{L}'), barrier()), 8, 's')
        at(185, lambda: (E.wait_vm(f'w6{L}'), barrier()), 8, 's')
        t = 0
        for k in range(n_up, 32):
            t = stream(max(t + (1 if k % 4 == 0 and k > n_up else 0), O('xsp', 2)*(k - n_up)), xops(k))
        t = stream(t + 1, dma_stream(tau[4], slot[4], f'w4{L}'))
        w4end = t
        t = stream(97, dma_stream(tau[5], slot[5], f'w5{L}'))
        w5end = t
        t = stream(t + 1, dma_stream(tau[6], slot[6], f'w6{L}'))
        w6end = t
        assert w4end < 108 and w5end < 140 and w6end < 172, (w4end, w5end, w6end)
        XM0 = 20; XM1 = 24
        def xm_ops(tt):
            return [(4, False, lambda: sadd(S_XA, S_XML, WS_XM + tt*32768)),
                    (4, True, lambda: E.vm(f"buffer_load_dwordx4 v[{XM0+4*tt}:{XM0+4*tt+3}], v{VL16}, {WSRD}, s{S_XA} offen" + LSC, f'xm{L}'))]
        stream(stream(O('xm_at', 152), xm_ops(0)) + 1, xm_ops(1))
        fh = 0
        pub = {}; chk = {}
        for (st_, k, e) in (('A', 0, est[2]), ('B', 1, est[5]), ('C', 2, est[6])):
            tp = put(O('pub' + st_, e + 12), lambda st_=st_: E.wait_vm(f'h{st_}{L}'), k='s')
            tp = put(tp, lambda st_=st_, k=k: publish(S_FHS, fh + 256*k, f'h{st_}{L}', wait=False), 4, 'm', chain=True)
            tq = put(O('poll' + st_, tp + 8), lambda st_=st_, k=k: poll_issue(VP8, S_FHL, fh + 256*k, f'p{st_}{L}'), 4, 'm')
            tc = put(O('chk' + st_, tq + (12 if st_ == 'A' else 14)), lambda st_=st_: E.wait_vm(f'p{st_}{L}'), k='s')
            tc = put(tc, lambda st_=st_, k=k: poll_check(VP8, S_FHL, fh + 256*k, f'p{st_}{L}', wait=False), 8, 'v', chain=True)
            pub[st_] = tp; chk[st_] = tc
        hslot = {}
        for n0 in range(0, 56, 4):
            tt, _, p = order[n0]
            sreg = S_HA[(n0 >> 2) & 1]
            rdy = chk['A' if p < 3 else 'B' if p < 6 else 'C'] + 1
            prev = max([hslot[m] for m in range(max(0, n0 - 8), max(0, n0 - 4))], default=0)
            ta = put(max(prev, rdy - 3), lambda tt=tt, p=p, sreg=sreg: E(f"s_add_u32 s{sreg}, s{S_HLD}, {WS_H + tt*114688 + tau[p]*4096}"), k='s') + 1
            for n in range(n0, n0 + 4):
                assert order[n][0] == tt and order[n][2] == p and order[n][1] == n - n0
                q = n % NH
                if n < NH: free = 0 if q < 5 else 192 + (q - 5) + 1
                else: free = G2 + 2*(n - NH) + 2
                off = (n - n0)*1024
                hslot[n] = put(max(rdy, free, ta), lambda n=n, sreg=sreg, off=off: E.vm(f"buffer_load_dwordx4 {hreg(n)}, v{VL16}, {WSRD}, s{sreg} offen" + (f" offset:{off}" if off else "") + LSC, f'h{L}_{n}'), vm=True)
                assert hslot[n] < G2 + 2*n - 6, (L, n, hslot[n])
        if opt.get('verbose'): print('L', L, 'est', est, 'w', w4end, w5end, w6end, 'pub', pub, 'chk', chk, 'h', [hslot[n] for n in range(56)])
        if L == 0:
            firstuse = {}
            for n, (tt, rho, p) in enumerate(order): firstuse.setdefault(rho*7 + tau[p], G2 + 2*n)
            t = O('wd_at', 70)
            rest_ops = BK['b'].ops; BK['b'].ops = []
            kcur = None
            for (c_, vm_, f_) in rest_ops:
                info = getattr(f_, 'info', None)
                assert info is not None and info[0] == 'wd', 'only Wd loads may be left for G1'
                if not vm_:
                    at(t - 1, f_, 0, 's')
                else:
                    while t in vslots: t += 1
                    assert t < firstuse[info[1]] - 8, ('Wd deadline', info, t)
                    at(t, f_, 0, 'm'); t += O('wd_sp', 2)
            if opt.get('verbose'): print('last Wd load at', t)
        RB = RING
        def red_write_ops(tt):
            ops = []
            for m in (1, 3, 2):
                pd, g = m & 1, m >> 1
                src = acc2[tt][pd] + 8*g
                for hlf in range(2):
                    ops.append(lambda m=m, src=src, hlf=hlf: E.ds(f"ds_write_b128 v{VRW[m-1]}, v[{src+4*hlf}:{src+4*hlf+3}] offset:{1024*hlf}", f'rw{L}{tt}'))
            return ops
        def red_read_ops(tt):
            ops = []
            for m in range(3):
                for hlf in range(2):
                    ops.append(lambda m=m, hlf=hlf: E.ds(f"ds_read_b128 v[{RB+8*m+4*hlf}:{RB+8*m+4*hlf+3}], v{VRR} offset:{2048*m+1024*hlf}", f'rr{L}{tt}'))
            return ops
        def out_store(tt, src):
            if L == 0:
                sadd(S_T0, S_XML, WS_XN + tt*32768)
                E.vm(f"buffer_store_dwordx4 v[{src}:{src+3}], v{VL16}, {WSRD}, s{S_T0} offen", f'x2{tt}')
            else:
                sadd(S_T0, 30, tt*32768)
                E.vm(f"buffer_store_dwordx4 v[{src}:{src+3}], v28, s[{S_OUT}:{S_OUT+3}], s{S_T0} offen" + FL('o', L), f'o2{tt}')
        if L == 1:
            def out_setup():
                return [T_(x) for x in f"""v_and_b32 v28, 31, v0
                v_lshlrev_b32 v28, 10, v28
                v_bfe_u32 v29, v0, 5, 1
                v_lshl_add_u32 v28, v29, 4, v28
                s_lshl_b32 s30, s{S_C}, 17
                s_lshl_b32 s25, s{S_TH}, 16
                s_add_u32 s30, s30, s25
                s_and_b32 s25, s{S_W}, 1
                s_lshl_b32 s25, s25, 1
                s_lshr_b32 s26, s{S_W}, 1
                s_add_u32 s25, s25, s26
                s_lshl_b32 s26, s{S_J}, 2
                s_add_u32 s25, s25, s26
                s_lshl_b32 s25, s25, 5
                s_add_u32 s30, s30, s25""".split('\n')]
            t = 72
            for f in out_setup(): t = put(t, f, k='v', chain=True)
        XU = RB + 24
        t = put(G2 + 26, lambda: E.wait_vm(f'xm{L}'), k='s')
        for e in range(4):
            t = put(t, T_(f"v_lshlrev_b32 v{XU+2*e}, 16, v{XM1+e}"))
            t = put(t, T_(f"v_and_b32 v{XU+1+2*e}, s{S_HI}, v{XM1+e}"))
        m0_last = G2 + 2*last0 + 1
        t = m0_last + 5
        for f in red_write_ops(0): t = put(t, f, 8, 'm')
        t = put(t + 1, lambda: (E.wait_ds(f'rw{L}0'), barrier()), 8, 's')
        t += 1
        for f in red_read_ops(0): t = put(t, f, 4, 'm')
        own = acc2[0][0]
        t = put(t + 3, lambda: E.wait_ds(f'rr{L}0'), k='s')
        tb = t
        for e in range(8): t = put(t, T_(f"v_add_f32 v{RB+e}, v{RB+e}, v{RB+8+e}"))
        for e in range(8): t = put(t, T_(f"v_add_f32 v{own+e}, v{own+e}, v{RB+16+e}"))
        for e in range(4):
            t = put(t, T_(f"v_lshlrev_b32 v{RB+8+2*e}, 16, v{XM0+e}"))
            t = put(t, T_(f"v_and_b32 v{RB+9+2*e}, s{S_HI}, v{XM0+e}"))
        for e in range(8): t = put(t, T_(f"v_add_f32 v{own+e}, v{own+e}, v{RB+e}"))
        for e in range(8): t = put(t, T_(f"v_fma_f32 v{own+e}, v{own+e}, s{S_LN2}, v{RB+8+e}"))
        for e in range(4): t = put(t, T_(f"v_cvt_pk_bf16_f32 v{RB+e}, v{own+2*e}, v{own+2*e+1}"))
        t = put(t + 1, lambda: out_store(0, RB), 8, 'm')
        if opt.get('verbose'): print('tt0 reduction done at', t)
        put(tb + 1, barrier, k='s')
        E.wait_vm(f'x{L}_0')
        stamp(f'L{L}g1')
        for i in range(LA): rd(i)
        def emit_fill(i, mid=None):
            fm, fs, fv = F.pop(i, ([], [], []))
            if mid: mid()
            for f in fm + fs + fv: f()
        for i in range(224):
            _, p, k = seq[i]
            stamp(f'L{L}s{i}')
            if p < 3 and (i % 3) == 0 and k > 0: E.wait_vm(f'x{L}_{k}')
            if i % 2 == 0: E.wait_ds(f'a{L}_{i+1}')
            r = RING + 4*(i % 8)
            c = ACC[accp[p]]
            E(f"v_mfma_f32_32x32x16_bf16 v[{c}:{c+15}], {vr(r, 4)}, v[{XR+4*k}:{XR+4*k+3}], {'0' if k == 0 else f'v[{c}:{c+15}]'}")
            emit_fill(i, (lambda: rd(i + LA)) if i + LA < 224 else None)
        seen_kp = set()
        for n in range(56):
            tt, rho, p = order[n]
            kp = rho*7 + tau[p]
            firstb = not any(o[0] == tt for o in order[:n])
            for ii, pd in enumerate((1, 0) if n in (last0, 55) else (0, 1)):
                i = G2 + 2*n + ii
                stamp(f'L{L}s{i}')
                if ii == 0:
                    E.wait_vm(f'h{L}_{n}')
                    if L == 0 and kp not in seen_kp: E.wait_vm(f'wd{kp}'); seen_kp.add(kp)
                c = acc2[tt][pd]
                E(f"v_mfma_f32_32x32x16_bf16 v[{c}:{c+15}], {ar(A_WD + 8*kp + 4*pd, 4)}, {hreg(n)}, {'0' if firstb else f'v[{c}:{c+15}]'}")
                emit_fill(i)
        stamp(f'L{L}g2end')
        for i in sorted(F.keys()):
            assert i > lastslot, i
            emit_fill(i)
        for f in red_write_ops(1): f()
        E.wait_ds(f'rw{L}1'); E("s_barrier")
        for f in red_read_ops(1): f()
        own = acc2[1][0]
        E.wait_ds(f'rr{L}1')
        for e in range(0, 8, 2): E(f"v_pk_add_f32 v[{RB+e}:{RB+e+1}], v[{RB+e}:{RB+e+1}], v[{RB+8+e}:{RB+9+e}]")
        for e in range(0, 8, 2): E(f"v_pk_add_f32 v[{own+e}:{own+e+1}], v[{own+e}:{own+e+1}], v[{RB+16+e}:{RB+17+e}]")
        for e in range(0, 8, 2): E(f"v_pk_add_f32 v[{own+e}:{own+e+1}], v[{own+e}:{own+e+1}], v[{RB+e}:{RB+e+1}]")
        for e in range(0, 8, 2): E(f"v_pk_fma_f32 v[{own+e}:{own+e+1}], v[{own+e}:{own+e+1}], s[{S_LN2}:{S_LN2+1}], v[{XU+e}:{XU+e+1}]")
        for e in range(4): E(f"v_cvt_pk_bf16_f32 v{RB+e}, v{own+2*e}, v{own+2*e+1}")
        out_store(1, RB)
        stamp(f'L{L}st')
        if L == 0:
            publish(S_FX2S, 0, 'x21')
            stamp('x2pub')

    def marker_check(regs_, reload_, tagname):
        ls = E.label('L_mks'); lb = E.label('L_mkb')
        t = 31
        r = list(regs_)
        E(f"v_max3_u32 v{t}, v{r[0]}, v{r[1]}, v{r[2]}"); k = 3
        while k + 1 < len(r): E(f"v_max3_u32 v{t}, v{t}, v{r[k]}, v{r[k+1]}"); k += 2
        if k < len(r): E(f"v_max_u32 v{t}, v{t}, v{r[k]}")
        E(f"v_cmp_eq_u32 vcc, -1, v{t}\ns_cbranch_vccnz {ls}\n{lb}:")
        ll = E.label('L_mkl')
        txt = f"{ls}:\ns_mov_b32 s{S_T3}, 0\n{ll}:\n"
        for i, x in enumerate(r):
            l2 = E.label('L_mkn')
            txt += f"""v_cmp_eq_u32 vcc, -1, v{x}
            s_cbranch_vccz {l2}
            {reload_(i)}
            {l2}:
            """
        txt += f"s_add_u32 s{S_T3}, s{S_T3}, 1\ns_waitcnt vmcnt(0)\n"
        txt += f"v_max3_u32 v{t}, v{r[0]}, v{r[1]}, v{r[2]}\n"; k = 3
        while k + 1 < len(r): txt += f"v_max3_u32 v{t}, v{t}, v{r[k]}, v{r[k+1]}\n"; k += 2
        if k < len(r): txt += f"v_max_u32 v{t}, v{t}, v{r[k]}\n"
        txt += f"""v_cmp_eq_u32 vcc, -1, v{t}
        s_cmp_gt_u32 s{S_T3}, 0x2000
        s_cbranch_vccz {lb}
        s_cbranch_scc0 {ll}
        s_branch {lb}
        """
        E.out_of_line(txt)

    def conv():
        lx = E.label('L_xp'); lbx = E.label('L_bx')
        E(f"ds_write_b16 v61, v{HEAD}")
        E(f"s_cmp_ge_u32 s{S_W}, 2\ns_cbranch_scc1 {lx}")
        XG = 64
        def xload(i): return f"buffer_load_dwordx4 v[{XG+4*i}:{XG+4*i+3}], v{VL16}, {WSRD}, s{S_XL + (i >> 2)} offen" + (f" offset:{1024*(i & 3)}" if i & 3 else "") + " sc1"
        for i in range(8): E(xload(i))
        stamp('xiss')
        ACCc = 192
        for i in range(32): E(f"v_mov_b32 v{ACCc+i}, 0")
        E("s_waitcnt vmcnt(0)")
        marker_check([XG + 4*i for i in range(8)], xload, 'x')
        stamp('xok')
        for i in range(8): E(f"ds_write_b128 v{VXW}, v[{XG+4*i}:{XG+4*i+3}] offset:{(i >> 2)*XR_P + (i & 3)*1024}")
        E(f"s_branch {lbx}\n{lx}:")
        PB = 64
        for i in range(4): E(f"v_mov_b32 v{108+i}, -1")
        def trd(n):
            E(f"ds_read_b64_tr_b16 v[{PB+4*n}:{PB+4*n+1}], v{VTR} offset:{1024*n}")
            E(f"ds_read_b64_tr_b16 v[{PB+4*n+2}:{PB+4*n+3}], v{VTR} offset:{1024*n + 512}")
        def pst(n):
            if n < 7:
                if n: E(f"s_add_u32 s{S_W1DST}, s{S_W1DST}, 131072")
                E(f"buffer_store_dwordx4 v[{PB+4*n}:{PB+4*n+3}], v{W1D}, {WSRD}, s{S_W1DST} offen sc1")
            else:
                if n > 7: E(f"s_add_u32 s{S_WDDST}, s{S_WDDST}, 229376")
                E(f"buffer_store_dwordx4 v[{PB+4*n}:{PB+4*n+3}], v{WDD}, {WSRD}, s{S_WDDST} offen sc1")
        stamp_dup('xiss')
        if HLATE:
            E(f"""
            s_and_b32 s25, s{S_W}, 1
            s_add_u32 s24, s{S_CB}, s25
            s_lshl_b32 s24, s24, 12
            s_mul_i32 s25, s25, {HC_CH}
            """)
            h_dma(HLATE, 24, 25)
        for n in range(4): trd(n)
        for n in range(11):
            if n + 4 < 11: trd(n + 4)
            E(f"s_waitcnt lgkmcnt({2*min(4, 10 - n)})")
            pst(n)
        for i in range(4):
            if i: E(f"s_add_u32 s{S_YP}, s{S_YP}, 262144")
            E(f"buffer_store_dwordx4 v[108:111], v{VYP}, {WSRD}, s{S_YP} offen sc1")
        stamp_dup('xok')
        for i in range(32): E(f"v_mov_b32 v{ACCc+i}, 0")
        if HLATE: E("s_waitcnt vmcnt(15)")
        E(f"{lbx}:")
        E("s_waitcnt lgkmcnt(0)")
        E.vmq = []; E.dsq = []
        E("s_barrier")
        stamp('bx')
        def AF(st, g): return 64 + 32*st + 4*g
        def BF(st, u): return 128 + 32*st + 4*u
        def rdA(st, g, rho): return f"ds_read_b128 v[{AF(st,g)}:{AF(st,g)+3}], v{VA_} offset:{512*g + 64*rho}"
        def rdB(st, u, rho): return f"ds_read_b128 v[{BF(st,u)}:{BF(st,u)+3}], v{VB_} offset:{512*(7-u) + 64*rho}"
        pairs = [(t, g) for t in range(8) for g in range(t+1)]
        order = []
        for t in range(8): order.append(('B', t)); order.append(('A', t))
        def mf(st, t, g):
            return f"v_mfma_f32_16x16x32_bf16 v[{ACCc+4*t}:{ACCc+4*t+3}], v[{AF(st,g)}:{AF(st,g)+3}], v[{BF(st,t-g)}:{BF(st,t-g)+3}], v[{ACCc+4*t}:{ACCc+4*t+3}]"
        S1AT = opt.get('s1at', 24); S1POLL = opt.get('s1poll', 96); S1CHK = opt.get('s1chk', 118)
        acts = {}
        def act(i, f): acts.setdefault(i, []).append(f)
        def s1publish():
            E("s_waitcnt vmcnt(0)"); E.vmq = []
            E.vm(f"buffer_store_dword v{VONE}, v{VS1F}, {WSRD}, s{S_S1F} offen sc1", 's1st')
        def s1poll(): E.vm(f"buffer_load_dwordx4 v[24:27], v{VS1P}, {WSRD}, 0 offen sc1", 's1')
        def s1check():
            all_flags_check(24, VS1P, S_N, 's1')
            E("s_barrier")
            stamp('s1')
        def qload():
            E.vm(f"buffer_load_dwordx4 {ar(A_Q, 4)}, v9, s[{S_Q}:{S_Q+3}], s{S_QO} offen", 'q')
            E.vm(f"buffer_load_dwordx4 {ar(A_Q+4, 4)}, v9, s[{S_Q}:{S_Q+3}], s{S_QO} offen offset:128", 'q')
        act(S1AT, s1publish); act(opt.get('qat', 40), qload)
        POST = S1CHK >= 1000
        if S1POLL < 1000: act(S1POLL, s1poll)
        B = BK['b'] = make_bulk()
        if not POST:
            act(S1CHK, s1check)
            nm = opt.get('bk_m', 5)
            for k in range(nm): act(S1CHK + 2 + k*opt.get('bk_msp', 4), lambda: B.emit(1))
            assert S1CHK + 2 + nm*opt.get('bk_msp', 4) <= 148
        def do(i):
            for f in acts.pop(i, []): f()
        for rho in range(4):
            st = rho & 1
            nxt = []
            if rho < 3: nxt = [(rdB(st^1, x, rho+1) if k == 'B' else rdA(st^1, x, rho+1)) for (k, x) in order]
            if rho == 0:
                reads = [(rdB(0, x, 0) if k == 'B' else rdA(0, x, 0)) for (k, x) in order]
                for r_ in reads[:14]: E(r_)
                issued = 14; done = 0
                allq = reads + nxt
                for idx, (t, g) in enumerate(pairs):
                    if g == 0:
                        E(f"s_waitcnt lgkmcnt({issued - 2*(t+1)})"); done = 2*(t+1)
                    E(mf(0, t, g))
                    do(idx)
                    if t == 7 and g == 4:
                        done += 6
                        E(f"s_waitcnt lgkmcnt({issued - done})")
                    if issued < len(allq) and issued - done < 14:
                        E(allq[issued]); issued += 1
                assert issued == len(allq)
            else:
                E("s_waitcnt lgkmcnt(0)")
                k = 0
                for idx, (t, g) in enumerate(pairs):
                    E(mf(st, t, g))
                    do(36*rho + idx)
                    if nxt and idx % 2 == 0 and k < 16:
                        E(nxt[k]); k += 1
            if rho < 3: stamp(f'rho{rho+1}')
        for i in sorted(acts): do(i)
        stamp('mfend')
        E(f"""
        s_barrier
        v_add_u32 v20, s{S_W1K}, v{VL16}
        s_lshl_b32 s24, s{S_W}, 11
        v_add_u32 v21, s24, v{VL16}
        s_nop 4
        """)
        for t in range(8): E.ds(f"ds_write_b128 v20, v[{ACCc+4*t}:{ACCc+4*t+3}] offset:{1024*t}", 'rdw')
        E.wait_ds('rdw')
        E("s_barrier")
        stamp('red2')
        if S1POLL == 1000: s1poll()
        if not POST: B.emit(opt.get('bk_red', 0))
        for tau in range(2):
            for src in range(4):
                E.ds(f"ds_read_b128 v[{64+32*tau+4*src}:{67+32*tau+4*src}], v21 offset:{8192*src + 1024*tau}", f'rdr{tau}')
            for ch in range(2):
                E.ds(f"ds_read_b128 v[{128+8*tau+4*ch}:{131+8*tau+4*ch}], v{VKVW} offset:{ch*XR_CH + 512*(1-tau)}", f'rdr{tau}')
        for tau in range(2):
            E.wait_ds(f'rdr{tau}')
            base = 64 + 32*tau
            for ch in range(2):
                kvr = 128 + 8*tau + 4*ch
                for r in range(4): E(f"v_add_f32 v{base+8*ch+r}, v{base+8*ch+r}, v{base+8*ch+r+4}")
                for d in range(4): E(f"v_lshlrev_b32 v{kvr+d}, 16, v{kvr+d}")
                for r in range(4): E(f"v_fmac_f32 v{base+8*ch+r}, s{60+ch}, v{kvr+3-r}")
            for r in range(4): E(f"v_cvt_pk_bf16_f32 v{148+r}, v{base+r}, v{base+8+r}")
            o = 152 + 4*tau
            E(f"""
            v_mov_b32 v{o}, v150
            v_mov_b32 v{o+1}, v148
            v_mov_b32 v{o+2}, v151
            v_mov_b32 v{o+3}, v149
            v_mov_b32_dpp v{o}, v148 row_ror:8 row_mask:0xf bank_mask:0x3
            v_mov_b32_dpp v{o+1}, v150 row_ror:8 row_mask:0xf bank_mask:0xc
            v_mov_b32_dpp v{o+2}, v149 row_ror:8 row_mask:0xf bank_mask:0x3
            v_mov_b32_dpp v{o+3}, v151 row_ror:8 row_mask:0xf bank_mask:0xc
            """)
            if tau == 1: E(f"s_add_u32 s58, s58, 262144")
            E.vm(f"buffer_store_dwordx4 v[{o}:{o+3}], v{VYS}, {WSRD}, s58 offen sc1", 'yst')
        stamp('yst')
        if S1POLL == 1001: s1poll()
        if POST: s1check()

    def rest():
        conv()
        B = BK['b']
        def yload(i):
            c2, k = i >> 2, i & 3
            return f"buffer_load_dword v{Y+i}, v10, {WSRD}, s{59 if c2 == 0 else 24} offen" + (f" offset:{512*k}" if k else "") + " sc1"
        E("s_add_u32 s24, s59, 16384")
        B.emit(opt.get('bk_a', 0))
        for i in range(8): E.vm(yload(i), 'y')
        n_y = opt.get('bk_y', 0)
        B.emit(n_y)
        assert 'w1_3' not in E.seen, 'slot 0 is still in use'
        for i in range(8): E(f"v_accvgpr_read_b32 v{X+i}, a{A_Q+i}")
        R_pre(0)
        stamp('qst')
        B.emit(opt.get('bk_q', 0))
        E.wait_vm('y')
        marker_check([Y + i for i in range(8)], yload, 'y')
        stamp('yok')
        B.emit(opt.get('bk_r0', 16))
        for i in range(8): E(f"v_accvgpr_write_b32 a{A_Y+i}, v{Y+i}")
        def w1left():
            n = 0; k = 0
            for o in B.ops:
                if o[1]:
                    k += 1
                    if getattr(o[2], 'info', None) is None: n = k
            return n
        R_post(0, early=lambda: B.emit(max(opt.get('bk_r1', 0), w1left())), late=None)
        assert all(('w1_%d' % p) in E.seen for p in range(4)) and not any(getattr(o[2], 'info', None) is None for o in B.ops), 'W1 tiles 0..3 must be under way before the XN stores'
        Rpub(0)
        layer(0)
        poll_issue(VP8, S_FX2L, 0, 'px2')
        poll_check(VP8, S_FX2L, 0, 'px2')
        for r_, c_ in ((S_FXNS, 16*256), (S_FXNL, 16*256), (S_FHS, 16*1024), (S_FHL, 16*1024)): E(f"s_add_u32 s{r_}, s{r_}, {c_}")
        stamp('x2ok')
        sadd(S_T0, S_R, WS_XN); sadd(S_T1, S_R, WS_XN + 4096)
        E.vm(f"buffer_load_dwordx4 v[{X}:{X+3}], v{VR}, {WSRD}, s{S_T0} offen" + LSC, 'x2l')
        E.vm(f"buffer_load_dwordx4 v[{X+4}:{X+7}], v{VR}, {WSRD}, s{S_T1} offen" + LSC, 'x2l')
        for i in range(8): E(f"v_accvgpr_read_b32 v{Y+i}, a{A_Y+i}")
        E.wait_vm('x2l')
        R_pre(1)
        R_post(1)
        Rpub(1)
        layer(1)
        E.wait_vm_all()

    def s0cmp(val): return "\n".join([f"v_xor_b32 v{S0R+i}, s{val}, v{S0R+i}" for i in range(4)] +
                                     [f"v_or3_b32 v{S0R}, v{S0R}, v{S0R+1}, v{S0R+2}", f"v_or_b32 v{S0R}, v{S0R}, v{S0R+3}"])
    E.wait_vm('s0')
    E(s0cmp(S_XCC))
    E(f"v_cmp_ne_u32 vcc, 0, v{S0R}")
    E("s_branch L_s0s" if force_slow else "s_cbranch_vccnz L_s0s")
    E("L_s0b:")
    E.out_of_line(f"""
    L_s0s:
    s_mov_b32 s{S_T3}, 0
    L_s0l:
    v_cmp_lt_u32 vcc, 7, v{S0R}
    s_cmp_gt_u32 s{S_T3}, 0x2000
    s_cbranch_vccz L_slow
    s_cbranch_scc1 L_s0b
    buffer_load_dwordx4 v[{S0R}:{S0R+3}], v30, {WSRD}, 0 offen sc1
    s_add_u32 s{S_T3}, s{S_T3}, 1
    s_waitcnt vmcnt(0)
    {s0cmp(S_XCC)}
    v_cmp_ne_u32 vcc, 0, v{S0R}
    {'s_branch L_s0l' if force_slow else 's_cbranch_vccnz L_s0l'}
    s_branch L_s0b""")
    stamp('s0')
    Efast = E
    Es = Emit(); Es.vmq = []; Es.dsq = list(E.dsq); Es.seen = set(E.seen); Es.nl = 100000
    E = Es; MODE['slow'] = True
    E(f"""
    L_slow:
    s_mov_b32 s{S_EXP}, 2
    s_waitcnt vmcnt(0)
    buffer_wbl2 sc1
    s_waitcnt vmcnt(0)
    s_barrier
    s_add_u32 s24, s86, {FL_S0B}
    buffer_store_dword v{VONE}, v{VT0}, {WSRD}, s24 offen sc1
    s_mov_b32 s25, {FL_S0B - FL_S0}
    s_mov_b32 s{S_T3}, 0
    L_s0bl:
    buffer_load_dwordx4 v[{S0R}:{S0R+3}], v30, {WSRD}, s25 offen sc1
    s_add_u32 s{S_T3}, s{S_T3}, 1
    s_waitcnt vmcnt(0)
    {s0cmp(S_N)}
    v_cmp_ne_u32 vcc, 0, v{S0R}
    s_cmp_gt_u32 s{S_T3}, 0x2000
    s_cbranch_scc1 L_s0bx
    s_cbranch_vccnz L_s0bl
    L_s0bx:
    buffer_inv sc1
    s_waitcnt vmcnt(0)
    """)
    rest()
    E("s_branch L_fin")
    E = Efast; MODE['slow'] = False
    rest()
    E("L_fin:")
    if stamps:
        stamp('end')
        n = len(names)
        E("s_memrealtime s[24:25]")
        E("s_waitcnt lgkmcnt(0)")
        for k in (n - 2, n - 1): E(f"v_writelane_b32 v{VSTAMP}, s{SP[k & 1]}, {k}")
        E(f"""
        v_writelane_b32 v{VSTAMP}, s100, 61
        v_writelane_b32 v{VSTAMP}, s24, 62
        v_writelane_b32 v{VSTAMP}, s{S_EXP}, 63
        s_lshl_b32 s25, s2, 10
        s_lshl_b32 s26, s{S_W}, 8
        s_add_u32 s25, s25, s26
        s_add_u32 s25, s25, {WS_STAMP}
        v_lshrrev_b32 v20, 2, v{VL16}
        buffer_store_dword v{VSTAMP}, v20, {WSRD}, s25 offen
        s_waitcnt vmcnt(0)
        """)
        assert n < 60
        print('k3 stamps:', ','.join(names))
        open('last_stamps.txt', 'w').write(','.join(names))
    E("L_end:")
    E("s_endpgm")
    main = hazard_pass(E.L[1:], verbose=opt.get('verbose', False))
    tail = list(E.tail) + ['L_codeend:'] + hazard_pass(Es.L) + list(Es.tail)
    txt = E.L[0] + '\n' + '\n'.join(('    ' + l if not l.endswith(':') else l) for l in main) + '\n'
    txt += '\n'.join(('    ' + l if not l.endswith(':') else l) for l in tail) + '\n'
    txt += "    s_endpgm\n"
    return txt + kd(name, 512, 102, accum=256)

if __name__ == '__main__':
    st = 'stamps' in sys.argv; slow = 'slow' in sys.argv
    opt = {'verbose': 'v' in sys.argv}
    for a in sys.argv[2:]:
        if '=' in a:
            k_, v_ = a.split('=')
            opt[k_] = v_.split(',') if k_ == 'st' else (v_ if k_.startswith('fl') else int(v_))
    kname = NAME + '_kernel'
    txt = KERNARG_COMMENT
    txt += f"; @launch grid=(256,1,1) block=(256,1,1) lds={K1_LDS}\n"
    txt += TARGET + gen(kname, stamps=st, force_slow=slow, opt=opt)
    txt += ".text\n.fill 64, 4, 0xbf800000\n"
    open(sys.argv[1], 'w').write(txt)
```

```python
import sys
sys.path.insert(0, 'gen')
from emit import *
from layout3 import *
from common import head, kd, TARGET, KERNARG_COMMENT, NAME

K1_LDS = 163840
SLOT = 32768
SCR = SLOT
STATS = SLOT + 24576
OOB = 0x80000000
VL16, VA1, VA2, VP8, VP16, VF0, VR = 1, 2, 3, 4, 5, 6, 7
VSTW, VSTR = 11, 12
VRW = [13, 14, 15]; VRR = 16
VPOLL, VONE, VSTAMP = 17, 18, 19
RING = 32
ACC = [64, 80, 96, 112]
XR = 128
A_WD = 0; A_Y = 224; A_T4 = 232
S_WS = 4; S_Q = 8; S_OUT = 12
S_W, S_ROLE, S_C, S_TH, S_J, S_EXP, S_XCC, S_W1K = 16, 17, 18, 19, 20, 21, 22, 23
S_R, S_XNL, S_HST, S_HLD, S_XML, S_W1, S_FXNS, S_FXNL, S_FHS, S_FHL, S_FX2S, S_FX2L = range(34, 46)
S_T0, S_T1, S_T2, S_T3, S_HI = 46, 47, 48, 49, 31
S_LN2 = 98
S_DA, S_XA = 50, 3
S_HA = [96, 97]; S_HS = [94, 95]
LA = 6
def vr(b, n=1): return f"v{b}" if n == 1 else f"v[{b}:{b+n-1}]"
def ar(b, n=1): return f"a{b}" if n == 1 else f"a[{b}:{b+n-1}]"

LAYERS = [
    dict(tau=[0, 1, 2, 3, 4, 5, 6], slot=[2, 3, 4, 0, 1, 2, 3]),
    dict(tau=[5, 6, 2, 3, 4, 0, 1], slot=[2, 3, 4, 0, 1, 2, 3]),
]
LOG2E = 0x3fb8aa3b; LN2 = 0x3f317218
A_H = 236

S_N = 51
VWD = 28
S_WDB = 30
S_WDR = 64
A_Q = 232
HC_J = 4160; HC_CH = 4*HC_J
XRB = 2*HC_CH
XR_P = 4640; XR_CH = 9472
TBS = 1056
KT = 2*SLOT; VT = KT + 9*TBS
PST = 3*SLOT
S_QO, S_PST = 87, 94
S_G, S_M, S_CB, S_CP, S_D, S_E = 88, 89, 84, 85, 62, 63
POISON = 0xffffffff


def gen(name, stamps=False, force_slow=False, opt=None):
    opt = opt or {}
    E = Emit()
    LSC = ' sc1' if opt.get('lsc', 1) else ''
    names = []
    DEF = ['start', 'join', 'b0', 'kvst', 's0', 'xiss', 'prep', 'xok', 'bx', 'rho1', 'rho2', 'rho3', 's1', 'mfend', 'red2', 'yst', 'qst', 'yok', 'R0st', 'R0pub', 'L0xnok', 'L0g1', 'L0s96', 'L0s224', 'L0g2end', 'L0st', 'x2ok', 'R1st', 'R1pub', 'L1xnok', 'L1g1', 'L1s96', 'L1s224', 'L1g2end', 'L1st', 'end']
    enabled = set(opt.get('st', DEF)) | {'start', 'end'}
    MODE = {'slow': False}
    SP = [90, 92]
    def stamp(nm):
        if stamps and nm in enabled and not MODE['slow']:
            n = len(names); names.append(nm)
            if n >= 2: E(f"v_writelane_b32 v{VSTAMP}, s{SP[n & 1]}, {n-2}")
            E(f"s_memtime s[{SP[n & 1]}:{SP[n & 1]+1}]")
    def stamp_dup(nm):
        if stamps and nm in names and not MODE['slow']:
            n = names.index(nm)
            if n >= 2: E(f"v_writelane_b32 v{VSTAMP}, s{SP[n & 1]}, {n-2}")
            E(f"s_memtime s[{SP[n & 1]}:{SP[n & 1]+1}]")
    WSRD = f"s[{S_WS}:{S_WS+3}]"
    def NT(k): return ' nt' if (opt.get('nt', 0) >> 'trhq'.index(k)) & 1 else ''
    def FL(kind, L):
        v = opt.get(f'fl{kind}{L}', opt.get(f'fl{kind}', ''))
        return (' ' + v.replace('+', ' ')) if v else ''

    def sadd(dst, base, const):
        if const == 0: E(f"s_mov_b32 s{dst}, s{base}")
        else: E(f"s_add_u32 s{dst}, s{base}, {const}")
    def dma_stream(tau, slot, tag, ilist=range(8)):
        ops = []; cur = None
        for i in ilist:
            if cur != (i >> 2):
                cur = i >> 2
                ops.append((4, False, lambda g=cur: E(f"s_add_u32 m0, s{S_W1K}, {slot*SLOT + g*4096}")))
                ops.append((4, False, lambda g=cur: sadd(S_DA, S_W1, tau*32768 + g*4096)))
            off = (i & 3)*1024
            ops.append((4, True, lambda off=off: E.vm(f"buffer_load_dwordx4 v{VL16}, {WSRD}, s{S_DA} offen" + (f" offset:{off}" if off else "") + " lds", tag)))
        return ops
    def wd_stream(kps):
        ops = []
        for kp in kps:
            if opt.get('rot', 0): f = lambda kp=kp: E(f"s_add_u32 s26, s{S_WDR + kp//7}, {(kp % 7)*2048}")
            else: f = lambda kp=kp: E(f"s_add_u32 s26, s{S_WDB}, {kp*2048}")
            f.info = ('wd', kp); ops.append((4, False, f))
            for pd in range(2):
                f = lambda kp=kp, pd=pd: E.vm(f"buffer_load_dwordx4 {ar(A_WD + 8*kp + 4*pd, 4)}, v{VWD+pd}, {WSRD}, s26 offen" + (LSC if opt.get('wdsc', 1) else ''), f'wd{kp}')
                f.info = ('wd', kp); ops.append((4, True, f))
        return ops
    class Bulk:
        def __init__(self, ops): self.ops = list(ops)
        def take(self, n):
            out = []
            while n > 0 and self.ops:
                o = self.ops.pop(0); out.append(o)
                if o[1]: n -= 1
            return out
        def emit(self, n):
            for (_, _, f) in self.take(n): f()
            assert not self.ops or not self.ops[0][1] or getattr(self.ops[0][2], 'info', None) is None, 'Wd loads come in pairs'
        def left(self): return sum(1 for o in self.ops if o[1])
    def publish(sbase, const, tag, wait=True):
        o = f" offset:{const}" if const else ""
        if MODE['slow']:
            E.wait_vm_all()
            E("buffer_wbl2 sc1\ns_waitcnt vmcnt(0)")
            E.vm(f"buffer_store_dword v{VONE}, v{VF0}, {WSRD}, s{sbase} offen{o} sc1", None)
            return
        if wait: E.wait_vm(tag)
        E.vm(f"buffer_store_dword v{VONE}, v{VF0}, {WSRD}, s{sbase} offen{o}", None)
    def poll_issue(voff, sbase, const, tag, dst=VPOLL):
        o = f" offset:{const}" if const else ""
        if MODE['slow']: E.seen.add(tag); return
        E.vm(f"buffer_load_dword v{dst}, v{voff}, {WSRD}, s{sbase} offen{o} sc1", tag)
    def poll_check(voff, sbase, const, tag, dst=VPOLL, wait=True):
        o = f" offset:{const}" if const else ""
        ls = E.label('L_polls'); lb = E.label('L_pollb'); ll = E.label('L_polll')
        if MODE['slow']:
            E.wait_vm_all()
            E(f"""
            s_mov_b32 s{S_T3}, 0
            {ll}:
            buffer_inv sc1
            s_waitcnt vmcnt(0)
            buffer_load_dword v{dst}, v{voff}, {WSRD}, s{sbase} offen{o} sc1
            s_add_u32 s{S_T3}, s{S_T3}, 1
            s_waitcnt vmcnt(0)
            v_cmp_ne_u32 vcc, s{S_N}, v{dst}
            s_cmp_gt_u32 s{S_T3}, 0x2000
            s_cbranch_scc1 {lb}
            s_cbranch_vccnz {ll}
            {lb}:
            buffer_inv sc1
            s_waitcnt vmcnt(0)""")
            return
        if wait: E.wait_vm(tag)
        E(f"v_cmp_ne_u32 vcc, s{S_N}, v{dst}")
        E(f"s_cbranch_vccnz {ls}")
        E(f"{lb}:")
        E.out_of_line(f"""
        {ls}:
        s_mov_b32 s{S_T3}, 0
        {ll}:
        buffer_load_dword v{dst}, v{voff}, {WSRD}, s{sbase} offen{o} sc1
        s_add_u32 s{S_T3}, s{S_T3}, 1
        s_waitcnt vmcnt(0)
        v_cmp_ne_u32 vcc, s{S_N}, v{dst}
        s_nop 4
        s_cbranch_vccz {lb}
        s_cmp_lt_u32 s{S_T3}, 0x2000
        s_cbranch_scc1 {ll}
        s_branch {lb}""")
    def all_flags_check(dst, voff, sval, tag, lim=0x2000):
        ls = E.label('L_afs'); lb = E.label('L_afb'); ll = E.label('L_afl')
        def cmp4():
            return "\n".join([f"v_xor_b32 v{dst+i}, s{sval}, v{dst+i}" for i in range(4)] +
                             [f"v_or3_b32 v{dst}, v{dst}, v{dst+1}, v{dst+2}", f"v_or_b32 v{dst}, v{dst}, v{dst+3}", f"v_cmp_ne_u32 vcc, 0, v{dst}"])
        E.wait_vm(tag)
        E(cmp4())
        E(f"s_cbranch_vccnz {ls}\n{lb}:")
        E.out_of_line(f"""
        {ls}:
        s_mov_b32 s{S_T3}, 0
        {ll}:
        buffer_load_dwordx4 v[{dst}:{dst+3}], v{voff}, {WSRD}, 0 offen sc1
        s_add_u32 s{S_T3}, s{S_T3}, 1
        s_waitcnt vmcnt(0)
        {cmp4()}
        s_nop 4
        s_cbranch_vccz {lb}
        s_cmp_lt_u32 s{S_T3}, {lim}
        s_cbranch_scc1 {ll}
        s_branch {lb}""")

    KSRD, VSRD, HSRD, PSRD, WDSRD = "s[52:55]", "s[64:67]", "s[76:79]", "s[68:71]", "s[52:55]"
    VPS, VPW = 224, 225
    VFT = 231
    MKALL = opt.get('mkall', 0)
    MKF = '' if MKALL == 2 else ' sc1'
    MKPRE = "" if not MKALL else f"""v_lshlrev_b32 v33, 12, v21
    v_lshl_add_u32 v33, v22, 4, v33
    v_mov_b32 v36, -1
    v_mov_b32 v37, -1
    v_mov_b32 v38, -1
    v_mov_b32 v39, -1
    s_lshl_b32 s95, s{S_G}, 19
    s_lshl_b32 s27, s{S_M}, 7
    s_sub_u32 s95, s95, s27
    s_lshl_b32 s27, s{S_W}, 17
    s_add_u32 s95, s95, s27
    s_add_u32 s95, s95, {WS_KVT + 3968}"""
    def markers4():
        E(srd_fix(S_WS, WS_SRD_BYTES))
        for i in range(4):
            E(f"buffer_store_dwordx4 v[36:39], v33, {WSRD}, s95 offen{MKF}")
            if i < 3: E("s_add_u32 s95, s95, 32768")
    def srd_fix(b, size): return f"s_and_b32 s{b+1}, s{b+1}, 0xffff\ns_mov_b32 s{b+2}, {size}\ns_mov_b32 s{b+3}, 0x20000"
    E.L.append(head(name).rstrip())
    E(f"""
    s_cmp_ge_u32 s2, 256
    s_cbranch_scc1 L_end
    s_load_dwordx2 s[52:53], s[0:1], 8
    s_load_dwordx2 s[64:65], s[0:1], 16
    s_load_dwordx2 s[4:5], s[0:1], 96
    s_load_dwordx8 s[56:63], s[0:1], 24
    s_load_dwordx8 s[68:75], s[0:1], 56
    s_load_dwordx2 s[8:9], s[0:1], 0
    """)
    if stamps: E("s_memrealtime s[100:101]")
    stamp('start')
    E(f"""
    v_lshrrev_b32 v20, 6, v0
    v_and_b32 v8, 63, v0                     ; lane
    s_and_b32 s{S_G}, s2, 7
    s_lshr_b32 s{S_M}, s2, 3
    v_readfirstlane_b32 s{S_W}, v20
    v_lshlrev_b32 v{VL16}, 4, v8
    v_lshrrev_b32 v21, 3, v8
    v_and_b32 v22, 7, v8
    s_lshl_b32 s{S_CB}, s{S_G}, 6
    s_lshl_b32 s24, s{S_M}, 1
    s_add_u32 s{S_CB}, s{S_CB}, s24
    s_lshl_b32 s24, s{S_G}, 9
    s_lshl_b32 s25, s{S_W}, 7
    s_add_u32 s24, s24, s25
    v_lshlrev_b32 v30, 4, v21
    v_add_u32 v30, s24, v30
    ; raw weight blocks (waves 2 and 3): 8 rows x 128 bytes each
    s_lshr_b32 s24, s2, 2                    ; kg
    s_and_b32 s25, s2, 3                     ; fq
    s_mul_i32 s26, s24, 28672
    s_mul_i32 s27, s25, 896
    s_add_u32 s26, s26, s27
    v_mul_u32_u24 v{VPS}, 3584, v21
    v_lshl_add_u32 v{VPS}, v22, 4, v{VPS}
    v_add_u32 v{VPS}, s26, v{VPS}
    v_lshlrev_b32 v{VPW}, 10, v21
    v_lshl_add_u32 v{VPW}, v22, 4, v{VPW}
    s_and_b32 s25, s{S_W}, 1
    s_lshl_b32 s26, s2, 13
    s_lshl_b32 s27, s25, 9
    s_add_u32 s26, s26, s27
    v_add_u32 v{VPW}, s26, v{VPW}
    s_mul_i32 s26, s25, {11*1024}
    s_add_u32 s{S_PST}, s26, {PST}
    {MKPRE}
    s_cmp_eq_u32 s{S_W}, 3
    s_cbranch_scc1 L_w3
    ; k / v staging tiles: row = lane >> 3, 16-byte segment = lane & 7
    v_lshlrev_b32 v32, 10, v21
    v_lshl_add_u32 v32, v22, 4, v32
    s_lshl_b32 s24, s{S_M}, 16
    s_lshl_b32 s25, s{S_G}, 7
    s_add_u32 s24, s24, s25
    v_add_u32 v32, s24, v32
    s_cmp_eq_u32 s{S_W}, 2
    s_cbranch_scc1 L_w2
    s_cmp_eq_u32 s{S_W}, 1
    s_cbranch_scc1 L_w1
    """)
    SK = 56
    def skload(): E(f"global_load_dwordx4 v[{SK}:{SK+3}], v30, s[56:57]")
    def h_dma(js, sch, slds):
        for j in js:
            E(f"s_add_u32 s26, s{sch}, {4 + 4*j}\ns_add_u32 m0, s{slds}, {j*HC_J + 64}\ns_nop 0")
            for q_ in range(4):
                E(f"buffer_load_dwordx4 v{VL16}, {HSRD}, s26 offen" + (f" offset:{1024*q_}" if q_ else "") + NT('h') + " lds")
    def prep_dma():
        for i in range(7):
            E(f"s_add_u32 m0, s{S_PST}, {1024*i - 128*i}")
            E(f"s_nop 0\nbuffer_load_dwordx4 v{VPS}, {PSRD}, 0 offen" + (f" offset:{128*i}" if i else "") + NT('r') + " lds")
        for i in range(4):
            E(f"s_add_u32 m0, s{S_PST}, {1024*(7+i) - 128*i}")
            E(f"s_nop 0\nbuffer_load_dwordx4 v{VPW}, {WDSRD}, 0 offen" + (f" offset:{128*i}" if i else "") + NT('r') + " lds")
    HEARLY = [0, 1, 2, 3] if opt.get('hpos', 0) == 0 else [0]
    HLATE = [j for j in range(4) if j not in HEARLY]
    def tile_path(lst):
        for j, (kind, blk) in enumerate(lst):
            c = (blk*8192 - (4096 if kind == 'k' else 1024)) & 0xffffffff
            E(f"v_add_u32 v{40+j}, {c:#x}, v32")
        E("s_waitcnt lgkmcnt(0)")
        E(f"s_load_dword s{S_E}, s[4:5], {FL_EPOCH}")
        if MKALL: markers4()
        if any(k == 'k' for k, _ in lst): E(srd_fix(52, 2097152))
        if any(k == 'v' for k, _ in lst): E(srd_fix(64, 2097152))
        for j, (kind, blk) in enumerate(lst):
            E(f"s_mov_b32 m0, {(KT if kind == 'k' else VT) + blk*TBS}\ns_nop 0")
            E(f"buffer_load_dwordx4 v{40+j}, {KSRD if kind == 'k' else VSRD}, 0 offen{NT('t')} lds")
    tile_path([('k', b) for b in range(6)])
    E("s_branch L_w01\nL_w1:")
    tile_path([('k', b) for b in (6, 7, 8)] + [('v', b) for b in (0, 1, 2)])
    E("L_w01:")
    stamp('e1'); stamp('e2')
    skload()
    E(f"""
    s_mov_b32 s76, s58
    s_mov_b32 s77, s59
    {srd_fix(76, 2097152)}
    s_add_u32 s24, s{S_CB}, s{S_W}
    s_lshl_b32 s24, s24, 12                  ; channel * 4096
    s_mul_i32 s25, s{S_W}, {HC_CH}
    """)
    h_dma(HEARLY, 24, 25)
    E("s_branch L_join\nL_w2:")
    tile_path([('v', b) for b in range(3, 9)])
    stamp_dup('e1'); stamp_dup('e2')
    skload()
    E("s_branch L_w23\nL_w3:")
    if MKALL:
        MK2 = 0
        E(f"""
        s_waitcnt lgkmcnt(0)
        s_mov_b32 s68, s70
        s_mov_b32 s69, s71
        s_load_dword s{S_E}, s[4:5], {FL_EPOCH}
        """)
        markers4()
        stamp_dup('e1')
    else:
        MK4 = opt.get('mk4', 1)
        E(f"""
        v_lshlrev_b32 v33, 12, v21
        v_lshl_add_u32 v33, v22, 4, v33
        v_mov_b32 v36, -1
        v_mov_b32 v37, -1
        v_mov_b32 v38, -1
        v_mov_b32 v39, -1
        s_lshl_b32 s26, s{S_G}, 19
        s_lshl_b32 s27, s{S_M}, 7
        s_sub_u32 s26, s26, s27
        s_add_u32 s26, s26, {WS_KVT + 3968}
        s_waitcnt lgkmcnt(0)
        {srd_fix(S_WS, WS_SRD_BYTES)}
        s_load_dword s{S_E}, s[4:5], {FL_EPOCH}
        """)
        for i in range(16):
            E((f"buffer_store_dwordx4 v[36:39], v33, {WSRD}, s26 offen" if MK4 else f"buffer_store_dword v36, v33, {WSRD}, s26 offen") + (' sc1' if opt.get('mksc', 0) else ''))
            if i < 15: E("s_add_u32 s26, s26, 32768")
        stamp_dup('e1')
        E(f"""
        s_getreg_b32 s24, hwreg(HW_REG_XCC_ID, 0, 4)
        s_and_b32 s25, s2, 63
        s_lshl_b32 s25, s25, 7
        s_lshr_b32 s26, s2, 6
        s_lshl_b32 s26, s26, 2
        s_add_u32 s25, s25, s26
        s_add_u32 s25, s25, {FL_S0}
        s_and_b32 s24, s24, 7
        v_mov_b32 v{VF0}, {OOB}
        v_cmp_eq_u32 vcc, 0, v8
        v_mov_b32 v31, 0
        s_mov_b32 s68, s70
        s_mov_b32 s69, s71
        v_cndmask_b32 v{VF0}, v{VF0}, v31, vcc
        s_waitcnt lgkmcnt(0)
        s_mul_i32 s26, s{S_E}, 0x9e3779b1
        s_add_u32 s26, s26, 0x7f4a7c15
        s_and_b32 s26, s26, 0xfffffff0
        s_or_b32 s24, s24, s26
        v_mov_b32 v31, s24
        s_waitcnt vmcnt(0)
        buffer_store_dword v31, v{VF0}, {WSRD}, s25 offen sc1
        """)
        MK2 = opt.get('mk2', 0)
        if MK2 == 3: skload()
        if MK2:
            E(f"""
            s_lshl_b32 s26, s{S_G}, 19
            s_lshl_b32 s27, s{S_M}, 7
            s_sub_u32 s26, s26, s27
            s_add_u32 s26, s26, {WS_KVT + 3968}
            """)
            for i in range(16):
                E(f"buffer_store_dwordx4 v[36:39], v33, {WSRD}, s26 offen sc1")
                if i < 15: E("s_add_u32 s26, s26, 32768")
    stamp_dup('e2')
    if MK2 != 3: skload()
    E(f"""
    L_w23:
    {srd_fix(68, 1835008)}
    s_mov_b32 s52, s72
    s_mov_b32 s53, s73
    {srd_fix(52, 1835008)}
    """)
    RAWPOS = opt.get('rawpos', 0)
    if RAWPOS == 0: prep_dma()
    E("L_join:")
    stamp('join')
    if opt.get('tw'):
        E(f"s_waitcnt vmcnt({opt['tw']})")
        stamp('tw')
    HEAD = 60
    PFL = opt.get('pfl', 15)
    E(f"""
    {srd_fix(S_WS, WS_SRD_BYTES)}
    s_lshr_b32 s{S_CP}, s{S_CB}, 1
    s_mov_b32 s76, s58
    s_mov_b32 s77, s59
    {srd_fix(76, 2097152)}
    s_lshl_b32 s24, s{S_CB}, 1
    s_load_dword s{S_D}, s[60:61], s24
    v_and_b32 v23, 31, v0
    v_lshrrev_b32 v24, 7, v0
    v_bfe_u32 v25, v0, 5, 2
    v_lshl_add_u32 v26, v25, 1, v23
    v_add_u32 v26, -30, v26
    v_add_u32 v27, s{S_CB}, v24
    v_lshlrev_b32 v27, 12, v27
    v_lshl_add_u32 v27, v26, 1, v27
    v_cmp_gt_i32 vcc, 0, v26
    v_mov_b32 v31, -16
    v_mul_u32_u24 v61, {HC_CH}, v24
    v_cndmask_b32 v27, v27, v31, vcc
    buffer_load_ushort v{HEAD}, v27, {HSRD}, 0 offen
    v_mul_u32_u24 v31, {HC_J}, v25
    v_add_u32 v61, v61, v31
    v_lshl_add_u32 v61, v23, 1, v61
    s_getpc_b64 s[32:33]
    L_pc:
    s_lshl_b32 s24, s{S_M}, 2
    s_add_u32 s24, s24, s{S_W}
    {'s_and_b32 s24, s24, 31' if PFL == 15 else 's_nop 0'}
    s_lshl_b32 s24, s24, {11 if PFL == 15 else 9}
    v_and_b32 v31, {PFL}, v8
    v_lshlrev_b32 v31, 7, v31
    v_add_u32 v31, s24, v31
    v_min_u32 v31, L_codeend-L_pc-64, v31
    global_load_dword v255, v31, s[32:33]
    """)
    stamp('i_a')
    E(f"""
    s_mov_b32 s{S_OUT}, s74
    s_mov_b32 s{S_OUT+1}, s75
    ; block-stage ids ; q fragment offsets: token = 128 c + 8 role + tok, channels 128 w + 64 c2 + 16 ks + 8 hi ..
    s_and_b32 s{S_ROLE}, s{S_M}, 15
    s_lshr_b32 s24, s{S_M}, 4
    s_lshl_b32 s24, s24, 3
    s_add_u32 s{S_C}, s{S_G}, s24
    s_lshr_b32 s{S_TH}, s{S_ROLE}, 3
    s_and_b32 s{S_J}, s{S_ROLE}, 7
    v_and_b32 v20, 7, v8                     ; tok
    v_bfe_u32 v21, v8, 3, 1                  ; hi
    v_lshrrev_b32 v22, 4, v8                 ; ks
    v_lshlrev_b32 v9, 10, v20
    v_lshl_add_u32 v9, v22, 5, v9
    v_lshl_add_u32 v9, v21, 4, v9
    s_lshl_b32 s24, s{S_C}, 7
    s_lshl_b32 s25, s{S_ROLE}, 3
    s_add_u32 s24, s24, s25
    s_lshl_b32 s24, s24, 10
    s_lshl_b32 s25, s{S_W}, 8
    s_add_u32 s{S_QO}, s24, s25
    {srd_fix(S_Q, 2097152)}
    """)
    ROTP = "" if not opt.get('rot', 0) else f"""s_lshr_b32 s96, s{S_C}, 3
    s_lshl_b32 s96, s96, 1
    s_lshr_b32 s97, s{S_W}, 1
    s_add_u32 s96, s96, s97
    s_sub_u32 s29, s29, s96
    s_and_b32 s29, s29, 3"""
    E(f"""
    s_getreg_b32 s{S_XCC}, hwreg(HW_REG_XCC_ID, 0, 4)
    s_lshl_b32 s{S_W1K}, s{S_W}, 13
    s_mul_i32 s{S_W1}, s{S_ROLE}, 229376
    s_add_u32 s{S_W1}, s{S_W1}, s{S_W1K}
    s_add_u32 s{S_W1}, s{S_W1}, {WS_W1F}
    s_and_b32 s{S_OUT+1}, s{S_OUT+1}, 0xffff
    s_mov_b32 s{S_OUT+2}, 2097152
    s_mov_b32 s{S_OUT+3}, 0x20000
    s_mov_b32 s{S_HI}, 0xffff0000
    s_mov_b32 s{S_LN2}, {LN2:#x}
    s_mov_b32 s{S_LN2+1}, {LN2:#x}
    s_mov_b32 s{S_EXP}, 1
    s_and_b32 s{S_XCC}, s{S_XCC}, 7
    v_add_u32 v{VA1}, 65536, v{VL16}
    v_add_u32 v{VA2}, 131072, v{VL16}
    v_lshlrev_b32 v{VP8}, 2, v20
    v_and_b32 v{VP16}, 15, v8
    v_lshlrev_b32 v{VP16}, 2, v{VP16}
    v_mov_b32 v{VF0}, {OOB}
    v_cmp_eq_u32 vcc, 0, v8
    v_mov_b32 v31, 0
    s_lshr_b32 s30, s{S_ROLE}, 2             ; tt_r
    s_and_b32 s24, s{S_ROLE}, 3
    v_cndmask_b32 v{VF0}, v{VF0}, v31, vcc
    s_lshl_b32 s25, s24, 7
    v_lshlrev_b32 v{VR}, 10, v22
    v_lshl_add_u32 v{VR}, v21, 9, v{VR}
    v_lshl_add_u32 v{VR}, v20, 4, v{VR}
    v_add_u32 v{VR}, s25, v{VR}
    ; stats addresses
    v_lshlrev_b32 v{VSTR}, 5, v20
    v_add_u32 v{VSTR}, {STATS}, v{VSTR}
    v_and_b32 v31, 1, v22
    v_lshl_add_u32 v{VSTW}, v31, 2, v{VSTR}
    s_lshl_b32 s25, s{S_W}, 3
    v_add_u32 v{VSTW}, s25, v{VSTW}
    v_lshlrev_b32 v10, 12, v22
    v_lshl_add_u32 v10, v21, 11, v10
    v_lshl_add_u32 v10, v20, 2, v10
    s_lshl_b32 s25, s{S_G}, 19
    s_lshr_b32 s26, s{S_C}, 3
    s_lshl_b32 s26, s26, 17
    s_add_u32 s25, s25, s26
    s_lshl_b32 s26, s30, 15
    s_add_u32 s{S_R}, s25, s26
    s_lshl_b32 s26, s{S_W}, 13
    s_add_u32 s{S_R}, s{S_R}, s26
    s_lshl_b32 s26, s{S_W}, 15
    s_add_u32 s{S_XNL}, s25, s26             ; XB + w*32768
    s_lshl_b32 s26, s{S_C}, 2
    s_add_u32 s27, s26, s{S_W}
    s_mul_i32 s27, s27, 114688
    s_lshr_b32 s28, s{S_ROLE}, 2
    s_mul_i32 s28, s28, 28
    s_and_b32 s29, s{S_ROLE}, 3
    {ROTP}
    s_add_u32 s28, s28, s29
    s_lshl_b32 s28, s28, 10
    s_add_u32 s{S_HST}, s27, s28
    s_lshl_b32 s27, s{S_TH}, 1
    s_add_u32 s27, s27, s26
    s_mul_i32 s27, s27, 114688
    s_mul_i32 s28, s{S_W}, 28672
    s_add_u32 s{S_HLD}, s27, s28             ; (4c+2th)*114688 + 28w*1024
    s_and_b32 s26, s{S_W}, 1
    s_lshl_b32 s26, s26, 1
    s_lshr_b32 s27, s{S_W}, 1
    s_add_u32 s26, s26, s27
    s_lshl_b32 s27, s{S_J}, 2
    s_add_u32 s26, s26, s27                  ; kappa_o = 4j + 2(w&1) + (w>>1)
    s_lshl_b32 s27, s26, 10
    s_lshl_b32 s28, s{S_TH}, 16
    s_add_u32 s27, s27, s28
    s_add_u32 s{S_XML}, s27, s25
    ; flags
    s_lshl_b32 s25, s{S_C}, 8
    s_lshl_b32 s27, s30, 6
    s_add_u32 s27, s27, s25
    s_lshl_b32 s28, s24, 4
    s_add_u32 s27, s27, s28
    s_lshl_b32 s28, s{S_W}, 2
    s_add_u32 s{S_FXNS}, s27, s28
    s_lshl_b32 s27, s{S_W}, 6
    s_add_u32 s{S_FXNL}, s25, s27            ; c*256 + w*64
    s_lshl_b32 s25, s{S_C}, 10
    s_lshr_b32 s27, s{S_W}, 1
    s_lshl_b32 s27, s27, 7
    s_add_u32 s27, s27, s25
    s_lshl_b32 s29, s{S_ROLE}, 3
    s_add_u32 s27, s27, s29
    s_and_b32 s29, s{S_W}, 1
    s_lshl_b32 s29, s29, 2
    s_add_u32 s{S_FHS}, s27, s29             ; c*1024 + (w>>1)*128 + role*8 + (w&1)*4
    s_lshl_b32 s27, s{S_TH}, 7
    s_add_u32 s27, s27, s25
    s_lshl_b32 s29, s{S_W}, 5
    s_add_u32 s{S_FHL}, s27, s29             ; c*1024 + th*128 + w*32
    s_lshl_b32 s25, s{S_C}, 9
    s_lshl_b32 s27, s{S_TH}, 7
    s_add_u32 s27, s27, s25
    s_lshl_b32 s29, s{S_J}, 4
    s_add_u32 s27, s27, s29
    s_add_u32 s{S_FX2S}, s27, s28            ; c*512 + th*128 + j*16 + w*4
    s_lshr_b32 s27, s30, 1
    s_lshl_b32 s27, s27, 7
    s_add_u32 s27, s27, s25
    s_lshl_b32 s29, s{S_W}, 5
    s_add_u32 s{S_FX2L}, s27, s29            ; c*512 + (tt_r>>1)*128 + w*32
    s_add_u32 s{S_FXNS}, s{S_FXNS}, {FL_XN}
    s_add_u32 s{S_FXNL}, s{S_FXNL}, {FL_XN}
    s_add_u32 s{S_FHS}, s{S_FHS}, {FL_H}
    s_add_u32 s{S_FHL}, s{S_FHL}, {FL_H}
    s_add_u32 s{S_FX2S}, s{S_FX2S}, {FL_X2}
    s_add_u32 s{S_FX2L}, s{S_FX2L}, {FL_X2}
    s_mul_i32 s25, s{S_W}, 6144
    s_add_u32 s25, s25, {SCR}
    v_add_u32 v{VRR}, s25, v{VL16}
    """)
    for m in (1, 2, 3):
        E(f"""
        s_xor_b32 s25, s{S_W}, {m}
        s_mul_i32 s25, s25, 6144
        s_add_u32 s25, s25, {SCR + (m-1)*2048}
        v_add_u32 v{VRW[m-1]}, s25, v{VL16}
        """)
    E(f"""
    s_lshl_b32 s{S_WDB}, s{S_J}, 2
    s_add_u32 s{S_WDB}, s{S_WDB}, s{S_W}
    s_mul_i32 s{S_WDB}, s{S_WDB}, 57344
    s_add_u32 s{S_WDB}, s{S_WDB}, {WS_WDF}
    s_lshr_b32 s25, s{S_W}, 1
    s_lshl_b32 s25, s25, 8
    v_xor_b32 v31, s25, v{VL16}
    s_and_b32 s25, s{S_W}, 1
    s_lshl_b32 s25, s25, 10
    v_add_u32 v{VWD}, s25, v31
    s_xor_b32 s25, s25, 1024
    v_add_u32 v{VWD+1}, s25, v31
    """)
    stamp('pre')
    E(f"""
    s_waitcnt lgkmcnt(0)
    s_mul_i32 s{S_N}, s{S_E}, 0x9e3779b1
    s_add_u32 s{S_N}, s{S_N}, 0x7f4a7c15
    s_and_b32 s{S_N}, s{S_N}, 0xfffffff0
    s_or_b32 s{S_XCC}, s{S_XCC}, s{S_N}
    v_mov_b32 v{VONE}, s{S_N}
    ; flag slot of this work-group in the [64][4] arrays
    s_and_b32 s86, s2, 63
    s_lshl_b32 s86, s86, 7
    s_lshr_b32 s24, s2, 6
    s_lshl_b32 s24, s24, 2
    s_add_u32 s86, s86, s24
    """)
    if opt.get('ftouch', 0):
        E(f"""
        s_lshl_b32 s24, s{S_ROLE}, 1
        v_add_u32 v20, s24, v8
        v_min_u32 v20, 23, v20
        v_lshrrev_b32 v21, 1, v20
        v_and_b32 v22, 1, v20
        v_lshlrev_b32 v21, 12, v21
        v_lshl_add_u32 v21, v22, 7, v21
        s_lshl_b32 s24, s{S_C}, 8
        s_add_u32 s24, s24, {FL_XN}
        v_add_u32 v21, s24, v21
        v_subrev_u32 v22, 4, v20
        v_lshrrev_b32 v23, 3, v22
        v_and_b32 v22, 7, v22
        v_lshlrev_b32 v23, 14, v23
        v_lshl_add_u32 v23, v22, 7, v23
        s_lshl_b32 s24, s{S_C}, 10
        s_add_u32 s24, s24, {FL_H}
        v_add_u32 v23, s24, v23
        v_cmp_lt_u32 vcc, 3, v20
        v_cndmask_b32 v21, v21, v23, vcc
        v_subrev_u32 v22, 20, v20
        v_lshlrev_b32 v22, 7, v22
        s_lshl_b32 s24, s{S_C}, 9
        s_add_u32 s24, s24, {FL_X2}
        v_add_u32 v22, s24, v22                  ; X2 + c*512 + line*128
        v_cmp_lt_u32 vcc, 19, v20
        v_cndmask_b32 v21, v21, v22, vcc
        v_cmp_lt_u32 vcc, 1, v8
        v_mov_b32 v22, {OOB}
        v_cndmask_b32 v{VFT}, v21, v22, vcc
        """)
    stamp('setup')

    VA_, VB_ = 62, 63
    VXW, VKVW, VYS, VT0, VS1P, VEP = 22, 248, 249, 250, 253, 254
    VTR, W1D, WDD, VYP, VS1F = 226, 227, 228, 229, 230
    S_XL = 72
    S_W1DST, S_WDDST, S_YP, S_S1F = 64, 65, 66, 67
    E(f"""
    ; weight images (waves 2 and 3): raw 8-row blocks go to LDS, come back transposed and are stored as MFMA fragments
    s_cmp_eq_u32 s{S_W}, 3
    s_cselect_b32 s28, 256, 0
    s_cselect_b32 s29, 4, 0                  ; first Wd block of this wave
    s_lshr_b32 s24, s2, 2                    ; kg
    s_and_b32 s25, s2, 3                     ; fq
    v_bfe_u32 v20, v8, 2, 2
    v_lshlrev_b32 v{VTR}, 7, v20
    v_lshrrev_b32 v21, 4, v8                 ; g
    v_lshl_add_u32 v{VTR}, v21, 5, v{VTR}
    v_and_b32 v20, 3, v8
    v_lshl_add_u32 v{VTR}, v20, 3, v{VTR}
    v_add_u32 v{VTR}, s{S_PST}, v{VTR}
    v_and_b32 v20, 3, v8
    v_bfe_u32 v23, v8, 2, 1
    v_lshl_or_b32 v20, v23, 3, v20
    v_bfe_u32 v23, v8, 3, 1
    v_lshl_or_b32 v20, v23, 2, v20
    v_lshlrev_b32 v20, 4, v20                ; row * 16
    v_lshl_add_u32 v{W1D}, v21, 15, v20      ; + g * 32768
    s_mul_i32 s26, s25, {28*32768}
    s_lshr_b32 s27, s24, 1
    s_lshl_b32 s27, s27, 10
    s_add_u32 s26, s26, s27
    s_and_b32 s27, s24, 1
    s_lshl_b32 s27, s27, 9
    s_add_u32 s26, s26, s27
    s_add_u32 s26, s26, s28
    s_add_u32 s{S_W1DST}, s26, {WS_W1F}
    v_lshrrev_b32 v23, 1, v21
    v_lshl_add_u32 v{WDD}, v23, 10, v20      ; + dt * 1024
    v_and_b32 v23, 1, v21
    v_lshl_add_u32 v{WDD}, v23, 8, v{WDD}    ; + 16 rows
    s_lshr_b32 s24, s2, 1                    ; kf
    s_mul_i32 s25, s24, 2341
    s_lshr_b32 s25, s25, 16                  ; kf / 28
    s_mul_i32 s26, s25, 28
    s_sub_u32 s26, s24, s26
    s_mul_i32 s25, s25, 57344
    s_lshl_b32 s26, s26, 11
    s_add_u32 s25, s25, s26
    s_and_b32 s26, s2, 1
    s_lshl_b32 s26, s26, 9
    s_add_u32 s25, s25, s26
    s_mul_i32 s26, s29, 229376
    s_add_u32 s25, s25, s26
    s_add_u32 s25, s25, {WS_WDF}
    s_cmp_ge_u32 s2, 224
    s_cselect_b32 s{S_WDDST}, 0xf0000000, s25
    ; markers of the Y rows: waves 2 and 3 take eight clusters each
    v_lshrrev_b32 v{VYP}, 5, v8
    v_and_b32 v20, 31, v8
    v_lshlrev_b32 v{VYP}, 17, v{VYP}
    v_lshl_add_u32 v{VYP}, v20, 4, v{VYP}
    s_lshl_b32 s24, s{S_CP}, 9
    s_lshl_b32 s25, s29, 18
    s_add_u32 s24, s24, s25
    s_add_u32 s{S_YP}, s24, {WS_Y}
    ; images-complete flag: index 2 b + (w & 1) -> line index & 127, dword index >> 7
    s_lshl_b32 s24, s2, 1
    s_and_b32 s25, s{S_W}, 1
    s_add_u32 s24, s24, s25
    s_and_b32 s25, s24, 127
    s_lshl_b32 s25, s25, 7
    s_lshr_b32 s24, s24, 7
    s_lshl_b32 s24, s24, 2
    s_add_u32 s24, s24, s25
    s_add_u32 s{S_S1F}, s24, {FL_S1}
    s_cmp_ge_u32 s{S_W}, 2
    s_cselect_b32 s24, 0, {OOB}
    v_or_b32 v{VS1F}, s24, v{VF0}
    s_lshl_b32 s24, s{S_W}, 12
    s_add_u32 s24, s24, {FL_S1}
    v_and_b32 v20, 31, v8
    v_lshlrev_b32 v{VS1P}, 7, v20
    v_add_u32 v{VS1P}, s24, v{VS1P}
    v_and_b32 v20, 15, v8                    ; r
    v_lshrrev_b32 v21, 4, v8                 ; g
    v_and_b32 v22, 3, v8                     ; j'
    v_bfe_u32 v23, v8, 2, 2                  ; q
    s_lshr_b32 s24, s{S_W}, 1                ; ch
    s_and_b32 s25, s{S_W}, 1
    s_lshl_b32 s25, s25, 8
    s_mul_i32 s26, s24, {HC_CH}
    s_add_u32 s26, s26, s25
    v_mul_u32_u24 v24, {HC_J}, v22
    v_add_u32 v25, v21, v23
    v_lshl_add_u32 v24, v25, 4, v24
    v_add_u32 v{VA_}, s26, v24
    s_mul_i32 s26, s24, {XR_CH}
    s_add_u32 s26, s26, s25
    s_add_u32 s26, s26, {XRB + 16*252 - 3584}
    v_and_b32 v22, 7, v8                     ; n'
    v_bfe_u32 v23, v8, 3, 1                  ; par'
    v_mul_u32_u24 v24, {XR_P}, v23
    v_lshlrev_b32 v25, 6, v22
    v_sub_u32 v24, v24, v25
    v_lshl_add_u32 v24, v21, 4, v24
    v_add_u32 v{VB_}, s26, v24
    v_lshrrev_b32 v20, 6, v0
    v_and_b32 v20, 1, v20
    v_mul_u32_u24 v20, {XR_CH}, v20
    v_bfe_u32 v21, v0, 5, 1
    v_mul_u32_u24 v21, {XR_P}, v21
    v_add_u32 v20, v20, v21
    v_and_b32 v21, 31, v0
    v_lshl_add_u32 v20, v21, 4, v20
    v_add_u32 v20, {XRB + 4096}, v20
    v_mov_b32 v24, 0
    v_mov_b32 v25, 0
    v_mov_b32 v26, 0
    v_mov_b32 v27, 0
    """)
    E.ds("ds_write_b128 v20, v[24:27]", 'pad')
    E(f"""
    ; kv stage: thread = (channel pair cp = 8 w + (lane >> 3), token group tg = lane & 7) ; stores at cp*16384 + 4080 - 128 m - 16 tg
    v_lshrrev_b32 v20, 3, v0                 ; cp
    v_and_b32 v21, 7, v8                     ; tg
    v_lshlrev_b32 v53, 14, v20
    v_lshlrev_b32 v23, 4, v21
    v_sub_u32 v53, v53, v23
    s_lshl_b32 s24, s{S_M}, 7
    s_sub_u32 s24, 4080, s24
    v_add_u32 v53, s24, v53
    ; staging tile reads
    v_mul_u32_u24 v54, {TBS}, v21
    v_lshl_add_u32 v54, v20, 2, v54
    v_add_u32 v55, {VT}, v54
    v_add_u32 v54, {KT}, v54
    ; group flag poll: line 8 l + gamma
    v_and_b32 v30, 7, v8
    v_lshlrev_b32 v30, 10, v30
    s_lshl_b32 s24, s{S_G}, 7
    s_add_u32 s24, s24, {FL_S0}
    v_add_u32 v30, s24, v30
    s_and_b32 s25, s{S_W}, 1
    s_mul_i32 s24, s25, {XR_CH}
    s_add_u32 s24, s24, {XRB}
    v_add_u32 v{VXW}, s24, v{VL16}
    s_add_u32 s24, s{S_CB}, s25
    s_lshl_b32 s24, s24, 13
    s_add_u32 s{S_XL}, s24, {WS_KVT}
    s_add_u32 s{S_XL+1}, s24, {WS_KVT + 4096}
    v_and_b32 v20, 7, v8                     ; n'
    v_bfe_u32 v21, v8, 3, 1                  ; par'
    v_lshrrev_b32 v23, 4, v8                 ; g
    v_lshlrev_b32 v31, 6, v20
    v_lshl_add_u32 v31, v23, 4, v31          ; 64 n' + 16 g
    v_mul_u32_u24 v{VKVW}, {XR_P}, v21
    v_sub_u32 v{VKVW}, v{VKVW}, v31
    s_lshl_b32 s24, s{S_W}, 10
    s_sub_u32 s24, {XRB + 4080 - 512}, s24
    v_add_u32 v{VKVW}, s24, v{VKVW}
    v_lshrrev_b32 v31, 2, v20
    v_lshlrev_b32 v{VYS}, 17, v31
    v_and_b32 v31, 3, v20
    v_lshl_add_u32 v{VYS}, v31, 7, v{VYS}
    v_lshl_add_u32 v{VYS}, v23, 5, v{VYS}
    v_lshl_add_u32 v{VYS}, v21, 4, v{VYS}    ; (n'>>2)*131072 + (n'&3)*128 + g*32 + par'*16
    s_lshl_b32 s24, s{S_CP}, 9
    s_lshl_b32 s25, s{S_W}, 19
    s_add_u32 s24, s24, s25
    s_add_u32 s58, s24, {WS_Y}               ; + cp*512 + 2w*262144
    s_lshl_b32 s24, s{S_C}, 17
    s_lshl_b32 s25, s{S_ROLE}, 5
    s_add_u32 s24, s24, s25
    s_lshl_b32 s25, s{S_W}, 15
    s_add_u32 s24, s24, s25
    s_add_u32 s59, s24, {WS_Y}               ; + c*131072 + role*32 + 64w*512
    s_lshl_b32 s60, s{S_D}, 16
    s_and_b32 s61, s{S_D}, 0xffff0000
    v_mov_b32 v{VT0}, {OOB}
    v_mov_b32 v31, 0
    v_cmp_eq_u32 vcc, 0, v0
    s_lshl_b32 s24, s{S_G}, 19
    s_add_u32 s80, s24, {WS_KVT}
    v_cndmask_b32 v{VT0}, v{VT0}, v31, vcc
    s_cmp_eq_u32 s2, 0
    s_cselect_b32 s24, {FL_EPOCH}, {OOB}
    v_add_u32 v{VEP}, s24, v{VT0}
    v_or_b32 v{VEP}, v{VEP}, v{VT0}
    s_add_u32 s81, s80, 4096
    s_add_u32 s82, s80, 8192
    s_add_u32 s83, s80, 12288
    """)
    stamp('setup2')
    if MKALL:
        NYA = 6 + 1 + 4*len(HEARLY) + 2 + (1 if opt.get('ftouch', 0) == 1 else 0)
        E(f"""
        s_cmp_ge_u32 s{S_W}, 2
        s_cbranch_scc1 L_bm2
        s_waitcnt vmcnt({6 + 1 + 4*len(HEARLY) + 2})
        s_branch L_bmx
        L_bm2:
        s_cmp_eq_u32 s{S_W}, 3
        s_cbranch_scc1 L_bm3
        s_waitcnt vmcnt({9 + (11 if RAWPOS == 0 else 0)})
        s_branch L_bmx
        L_bm3:
        s_waitcnt vmcnt({3 + (11 if RAWPOS == 0 else 0)})
        L_bmx:
        s_barrier
        s_cmp_lg_u32 s{S_W}, 0
        s_cbranch_scc1 L_bmy
        v_mov_b32 v31, s{S_XCC}
        s_add_u32 s25, s86, {FL_S0}
        buffer_store_dword v31, v{VF0}, {WSRD}, s25 offen sc1
        L_bmy:
        """)
        stamp('bm')
    if opt.get('ftouch', 0) == 1:
        l_ = E.label('L_ft')
        E(f"s_cmp_lg_u32 s{S_W}, 0\ns_cbranch_scc1 {l_}\nbuffer_load_dword v{VFT}, v{VFT}, {WSRD}, 0 offen\n{l_}:")
    FTW = FTW2 = ""
    if opt.get('ftouch', 0) == 1:
        pass
    NX0 = (1 if opt.get('ftouch', 0) == 1 else 0) + (1 if MKALL else 0)
    if NX0:
        FTW = f"s_cmp_eq_u32 s{S_W}, 0\ns_cbranch_scc1 L_g2c"
        FTW2 = f"L_g2c:\ns_waitcnt vmcnt({4*len(HEARLY) + 2 + NX0})\ns_branch L_g2x"
    E(f"""
    s_cmp_ge_u32 s{S_W}, 2
    s_cbranch_scc1 L_g2b
    {FTW}
    s_waitcnt vmcnt({4*len(HEARLY) + 2})
    s_branch L_g2x
    {FTW2}
    L_g2b:
    """)
    def kvtouch():
        E(f"""
        v_lshlrev_b32 v{VFT+1}, 12, v8
        s_lshl_b32 s26, s{S_G}, 19
        s_lshl_b32 s27, s{S_M}, 7
        s_sub_u32 s26, s26, s27
        s_add_u32 s26, s26, {WS_KVT + 3968}
        s_add_u32 s27, s26, 262144
        buffer_load_dword v{VFT+2}, v{VFT+1}, {WSRD}, s26 offen
        buffer_load_dword v{VFT+3}, v{VFT+1}, {WSRD}, s27 offen
        """)
    MKT = opt.get('mkt', 0)
    if RAWPOS == 1:
        E(srd_fix(68, 1835008))
        if MKT == 2:
            E(f"s_cmp_lg_u32 s{S_W}, 3\ns_cbranch_scc1 L_g2e")
            kvtouch()
            E("L_g2e:")
        prep_dma()
        if MKT == 1:
            E(f"s_cmp_lg_u32 s{S_W}, 3\ns_cbranch_scc1 L_g2d")
            kvtouch()
            E("s_waitcnt vmcnt(13)\ns_branch L_g2x\nL_g2d:")
        if MKT == 2:
            E(f"s_cmp_lg_u32 s{S_W}, 3\ns_cbranch_scc1 L_g2d")
            E("s_waitcnt vmcnt(13)\ns_branch L_g2x\nL_g2d:")
    E(f"""
    s_waitcnt vmcnt({13 if RAWPOS == 0 else 11})
    L_g2x:
    """)
    stamp('i_b')
    E.vmq = []
    E.wait_ds('pad')
    E("s_barrier")
    stamp('b0')
    S0R = 24
    def s0poll(): E.vm(f"buffer_load_dwordx4 v[{S0R}:{S0R+3}], v30, {WSRD}, 0 offen sc1", 's0')
    S0AT = opt.get('s0at', 1)
    if S0AT == 0: s0poll()
    KR, VRW_ = 32, 44
    for x in range(0, 8, 2): E.ds(f"ds_read2_b32 v[{KR+x}:{KR+x+1}], v54 offset0:{32*x} offset1:{32*(x+1)}", 'kv')
    E(f"v_add_u32 v20, {TBS}, v54\nv_add_u32 v21, {TBS}, v55")
    for x in range(8, 12, 2): E.ds(f"ds_read2_b32 v[{KR+x}:{KR+x+1}], v20 offset0:{32*(x-8)} offset1:{32*(x-7)}", 'kv')
    for x in range(0, 8, 2): E.ds(f"ds_read2_b32 v[{VRW_+x}:{VRW_+x+1}], v55 offset0:{32*x} offset1:{32*(x+1)}", 'kv')
    E.ds(f"ds_read_b32 v{VRW_+8}, v21", 'kv')
    E(f"""
    v_lshlrev_b32 v136, 16, v{SK}
    v_lshlrev_b32 v137, 16, v{SK+2}
    v_and_b32 v138, s{S_HI}, v{SK}
    v_and_b32 v139, s{S_HI}, v{SK+2}
    v_lshlrev_b32 v140, 16, v{SK+1}
    v_lshlrev_b32 v141, 16, v{SK+3}
    v_and_b32 v142, s{S_HI}, v{SK+1}
    v_and_b32 v143, s{S_HI}, v{SK+3}
    """)
    E.wait_ds('kv')
    for i in range(12): E(f"v_lshlrev_b32 v{96+2*i}, 16, v{KR+i}\nv_and_b32 v{97+2*i}, s{S_HI}, v{KR+i}")
    if S0AT == 1: s0poll()
    for i in range(9): E(f"v_lshlrev_b32 v{164+2*i}, 16, v{VRW_+i}\nv_and_b32 v{165+2*i}, s{S_HI}, v{VRW_+i}")
    def K(x): return f"v[{96+2*x}:{97+2*x}]"
    def KV(i): return 144 + 2*i
    for i in range(9): E(f"v_pk_mul_f32 v[{KV(i)}:{KV(i)+1}], v[136:137], {K(i+3)}")
    if S0AT == 2: s0poll()
    for tap in (1, 2, 3):
        for i in range(9): E(f"v_pk_fma_f32 v[{KV(i)}:{KV(i)+1}], v[{136+2*tap}:{137+2*tap}], {K(i+3-tap)}, v[{KV(i)}:{KV(i)+1}]")
    if S0AT == 3: s0poll()
    for i in range(9): E(f"v_pk_mul_f32 v[{KV(i)}:{KV(i)+1}], v[{KV(i)}:{KV(i)+1}], v[{164+2*i}:{165+2*i}]")
    for c in range(2):
        for par in range(2):
            b = KR + 8*c + 4*par
            for d in range(4): E(f"v_cvt_pk_bf16_f32 v{b+d}, v{KV(8-par-2*d)+c}, v{KV(7-par-2*d)+c}")
            E.vm(f"buffer_store_dwordx4 v[{b}:{b+3}], v53, {WSRD}, s{80 + 2*c + par} offen" + FL('kv', 0), 'kvst')
    stamp('kvst')

    X, Y = 128, 136
    XF, YF, T = 144, 160, 176
    def stats(src, rnd, between=None, scale=False):
        P, Q = 192, 194
        E(f"v_pk_add_f32 v[{P}:{P+1}], v[{src}:{src+1}], v[{src+2}:{src+3}]")
        E(f"v_pk_mul_f32 v[{Q}:{Q+1}], v[{src}:{src+1}], v[{src}:{src+1}]")
        for i in range(1, 8):
            E(f"v_pk_fma_f32 v[{Q}:{Q+1}], v[{src+2*i}:{src+2*i+1}], v[{src+2*i}:{src+2*i+1}], v[{Q}:{Q+1}]")
            if i >= 2: E(f"v_pk_add_f32 v[{P}:{P+1}], v[{P}:{P+1}], v[{src+2*i}:{src+2*i+1}]")
        E(f"""
        v_add_f32 v{P}, v{P}, v{P+1}
        v_add_f32 v{Q}, v{Q}, v{Q+1}
        v_permlane16_swap_b32 v{P}, v{Q}
        v_add_f32 v{P}, v{P}, v{Q}
        v_add_f32_dpp v{P}, v{P}, v{P} row_ror:8 row_mask:0xf bank_mask:0xf
        v_mov_b32 v{P+1}, v{P}
        v_permlane32_swap_b32 v{P}, v{P+1}
        v_add_f32 v{P}, v{P}, v{P+1}
        s_mov_b64 exec, 0x00ff00ff
        """)
        E.ds(f"ds_write_b32 v{VSTW}, v{P} offset:{rnd*256}", 'stw')
        E("s_mov_b64 exec, -1")
        E.wait_ds('stw')
        E("s_barrier")
        E.ds(f"ds_read_b128 v[196:199], v{VSTR} offset:{rnd*256}", 'str')
        E.ds(f"ds_read_b128 v[200:203], v{VSTR} offset:{rnd*256+16}", 'str')
        if between: between()
        E.wait_ds('str')
        E(f"""
        v_pk_add_f32 v[196:197], v[196:197], v[198:199]
        v_pk_add_f32 v[200:201], v[200:201], v[202:203]
        v_pk_add_f32 v[196:197], v[196:197], v[200:201]
        v_mul_f32 v196, 0x3b000000, v196
        v_mul_f32 v197, 0x3b000000, v197
        v_fma_f32 v197, -v196, v196, v197
        v_max_f32 v197, 0, v197
        v_add_f32 v197, 0x3727c5ac, v197
        v_rsq_f32 v204, v197
        s_nop 0
        """)
        if scale: E(f"v_mul_f32 v204, {LOG2E:#x}, v204")
        E("v_mul_f32_e64 v206, -v196, v204")
    def norm(dst, src):
        for i in range(8):
            E(f"v_pk_fma_f32 v[{dst+2*i}:{dst+2*i+1}], v[{src+2*i}:{src+2*i+1}], v[204:205], v[206:207] op_sel_hi:[1,0,0]")
    def unpack(dst, src, n):
        for i in range(n):
            E(f"v_lshlrev_b32 v{dst+2*i}, 16, v{src+i}")
            E(f"v_and_b32 v{dst+2*i+1}, s{S_HI}, v{src+i}")
    def R_pre(L, between=None):
        unpack(XF, X, 8)
        stats(XF, 0, between)
        norm(T, XF)
        stamp(f'R{L}s1')
    def R_post(L, early=None, late=None):
        unpack(YF, Y, 8)
        for i in range(8):
            E(f"v_pk_fma_f32 v[{XF+2*i}:{XF+2*i+1}], v[{T+2*i}:{T+2*i+1}], v[{YF+2*i}:{YF+2*i+1}], v[{XF+2*i}:{XF+2*i+1}]")
        M = 208
        for i in range(8): E(f"v_cvt_pk_bf16_f32 v{M+i}, v{XF+2*i}, v{XF+2*i+1}")
        def xmst():
            sadd(S_T0, S_R, WS_XM); sadd(S_T1, S_R, WS_XM + 4096)
            E.vm(f"buffer_store_dwordx4 v[{M}:{M+3}], v{VR}, {WSRD}, s{S_T0} offen" + FL('xm', L), 'rst')
            E.vm(f"buffer_store_dwordx4 v[{M+4}:{M+7}], v{VR}, {WSRD}, s{S_T1} offen" + FL('xm', L), 'rst')
        def behind():
            xmst()
            E.vm(f"buffer_store_dword v{VONE}, v{VEP}, {WSRD}, 0 offen sc1", 'ep')
            if late: late()
        if L == 1: xmst()
        if early: early()
        stats(XF, 1, between=behind if L == 0 else late, scale=True)
        norm(T, XF)
        N = 216
        for i in range(8): E(f"v_cvt_pk_bf16_f32 v{N+i}, v{T+2*i}, v{T+2*i+1}")
        sadd(S_T0, S_R, WS_XN); sadd(S_T1, S_R, WS_XN + 4096)
        E.vm(f"buffer_store_dwordx4 v[{N}:{N+3}], v{VR}, {WSRD}, s{S_T0} offen" + FL('xn', L), 'rst')
        E.vm(f"buffer_store_dwordx4 v[{N+4}:{N+7}], v{VR}, {WSRD}, s{S_T1} offen" + FL('xn', L), 'rst')
        stamp(f'R{L}st')
    def Rpub(L):
        publish(S_FXNS, 0, 'rst')
        E("s_barrier")
        stamp(f'R{L}pub')

    ORDER = {}
    def g2_order():
        stA = [0, 1, 2]; stB = [3, 4, 5]; stC = [6]
        def blocks(tt, ps): return [(tt, rho, p) for p in ps for rho in range(4)]
        b1 = blocks(1, stB); nb1 = opt.get('b1_first', 4)
        return blocks(0, stA) + blocks(1, stA) + blocks(0, stB) + b1[:nb1] + blocks(0, stC) + b1[nb1:] + blocks(1, stC)
    def wd_kseq(L):
        kseq = []
        for (tt, rho, p) in g2_order():
            kp = rho*7 + LAYERS[L]['tau'][p]
            if kp not in kseq: kseq.append(kp)
        if opt.get('rot', 0): kseq.sort(key=lambda kp: kp // 7)
        return kseq
    def make_bulk():
        c = LAYERS[0]; ops = []
        ks = wd_kseq(0); npre = opt.get('wd_pre', 0)
        for p in range(3): ops += dma_stream(c['tau'][p], c['slot'][p], f'w1_{p}')
        ops += wd_stream(ks[:npre])
        ops += dma_stream(c['tau'][3], c['slot'][3], 'w1_3')
        if not opt.get('nowd', 0): ops += wd_stream(ks[npre:])
        return Bulk(ops)
    BK = {}

    def layer(L):
        cfg = LAYERS[L]; tau = cfg['tau']; slot = cfg['slot']
        O = lambda k, d: opt.get(f'{k}{L}', opt.get(k, d))
        G2 = 224; NS = 336; lastslot = NS - 1
        BUD = O('bud', 24); VGAP = O('vgap', 2)
        F = {}; cost = [0]*(NS + 64); vslots = set()
        for i in range(G2):
            if i + LA < G2: cost[i] += 4
            if i % 2 == 0: cost[i] += 4
            if i < 96 and i % 3 == 0 and i > 0: cost[i] += 4
        for i in range(G2, NS, 2): cost[i] += 4
        RANK = {'m': 0, 's': 1, 'v': 2}
        def at(i, f, c=4, k='v'): F.setdefault(i, ([], [], []))[RANK[k]].append(f); cost[i] += c
        last = {'k': 'm', 't': -1}
        def put(t, f, c=4, k='v', vm=False, chain=False):
            if vm: k = 'm'
            if chain:
                t = max(t, last['t'] + (1 if RANK[k] < RANK[last['k']] else 0))
            while cost[t] + c > BUD or (vm and any((t + d) in vslots for d in range(-VGAP + 1, VGAP))): t += 1
            if vm: vslots.add(t)
            at(t, f, c, k); last['k'] = k; last['t'] = t
            return t
        def stream(t, ops):
            first = True
            for (c, vm, f) in ops:
                t = put(t, f, c, 's', vm, chain=not first); first = False
            return t
        def T_(s): return lambda: E(s)
        def barrier(): E("s_barrier")
        poll_issue(VP16, S_FXNL, 0, f'pxn{L}')
        if L == 0: BK['b'].emit(opt.get('bk_pub', 0))
        poll_check(VP16, S_FXNL, 0, f'pxn{L}')
        stamp(f'L{L}xnok')
        def xops(k):
            ops = []
            if k % 4 == 0: ops.append((4, False, lambda: sadd(S_XA, S_XNL, WS_XN + (k >> 2)*4096)))
            off = (k & 3)*1024
            ops.append((4, True, lambda: E.vm(f"buffer_load_dwordx4 v[{XR+4*k}:{XR+4*k+3}], v{VL16}, {WSRD}, s{S_XA} offen" + (f" offset:{off}" if off else "") + LSC, f'x{L}_{k}')))
            return ops
        n_up = O('nup', 5)
        for k in range(n_up):
            for (_, _, f) in xops(k): f()
        seq = []
        for k in range(32):
            for p in range(3): seq.append(('g1', p, k))
        for p in range(3, 7):
            for k in range(32): seq.append(('g1', p, k))
        accp = [0, 1, 2, 3, 0, 1, 2]
        def a_addr(p, k):
            s = slot[p]
            base = [VL16, VL16, VA1, VA1, VA2][s]
            off = (s & 1)*SLOT + k*1024 if s < 4 else k*1024
            return base, off
        def rd(i):
            _, p, k = seq[i]
            b, off = a_addr(p, k)
            r = RING + 4*(i % 8)
            E.ds(f"ds_read_b128 v[{r}:{r+3}], v{b} offset:{off}", f'a{L}_{i}')
        order = g2_order()
        assert len(order) == 56
        last0 = max(n for n, b in enumerate(order) if b[0] == 0)
        acc2 = {0: [ACC[0], ACC[1]], 1: [ACC[3], ACC[2]]}
        NH = 37
        def hreg(n):
            q = n % NH
            return ar(A_H + 4*q, 4) if q < 5 else vr(XR + 4*(q - 5), 4)
        def epilogue(p, o):
            c = ACC[accp[p]]
            for e in range(8):
                at(o + e, T_(f"v_exp_f32_e64 v{c+e}, -v{c+e}"), 8)
                at(o + e + 1, T_(f"v_add_f32 v{c+e}, 1.0, v{c+e}"))
                at(o + 8 + e, T_(f"v_rcp_f32 v{c+e}, v{c+e}"), 8)
                at(o + 9 + e, T_(f"v_mul_f32 v{c+e}, v{c+e}, v{c+8+e}"))
        def epilogue2(p, o):
            c = ACC[accp[p]]
            t = 0
            for k in range(4):
                t = put(max(t, o + 11 + 2*k), T_(f"v_cvt_pk_bf16_f32 v{c+8+k}, v{c+2*k}, v{c+2*k+1}"))
            stage = 'A' if p < 3 else ('B' if p < 6 else 'C')
            put(o + 10, T_(f"s_add_u32 s{S_HS[p & 1]}, s{S_HST}, {WS_H + tau[p]*4096}"), k='s')
            return put(t + 1, lambda: E.vm(f"buffer_store_dwordx4 v[{c+8}:{c+11}], v{VL16}, {WSRD}, s{S_HS[p & 1]} offen" + FL('h', L), f'h{stage}{L}'), vm=True)
        eo = [99, 115, 131, 147, 163, 196, 228]
        for p in range(7): epilogue(p, eo[p])
        est = [epilogue2(p, eo[p]) for p in range(7)]
        assert est[0] < 126 and est[1] < 158 and est[2] < 190 and est[5] < 222 and est[6] < 248, est
        at(121, lambda: (E.wait_vm(f'w4{L}'), barrier()), 8, 's')
        at(96, barrier, 4, 's')
        at(153, lambda: (E.wait_vm(f'w5{L}'), barrier()), 8, 's')
        at(185, lambda: (E.wait_vm(f'w6{L}'), barrier()), 8, 's')
        t = 0
        for k in range(n_up, 32):
            t = stream(max(t + (1 if k % 4 == 0 and k > n_up else 0), O('xsp', 2)*(k - n_up)), xops(k))
        t = stream(t + 1, dma_stream(tau[4], slot[4], f'w4{L}'))
        w4end = t
        t = stream(97, dma_stream(tau[5], slot[5], f'w5{L}'))
        w5end = t
        t = stream(t + 1, dma_stream(tau[6], slot[6], f'w6{L}'))
        w6end = t
        assert w4end < 108 and w5end < 140 and w6end < 172, (w4end, w5end, w6end)
        if L == 0 and opt.get('htg'):
            def ht_ops(p0, np_):
                ops = [(4, False, lambda x=x: E(x)) for x in (f"v_lshrrev_b32 v30, 3, v8", f"v_min_u32 v30, {np_-1}, v30", f"v_lshlrev_b32 v30, 12, v30", f"v_and_b32 v31, 7, v8", f"v_lshl_add_u32 v30, v31, 7, v30")]
                return ops + [(4, False, lambda: E(f"s_add_u32 s{S_T2}, s{S_HST}, {WS_H + tau[p0]*4096}")),
                        (4, True, lambda: E.vm(f"buffer_load_dword v31, v30, {WSRD}, s{S_T2} offen", 'ht'))]
            assert tau == list(range(7))
            m = opt['htg']
            if m == 1:
                stream(w4end - 6, ht_ops(0, 3)); stream(w5end - 6, ht_ops(3, 4))
            elif m == 2:
                stream(w4end - 6, ht_ops(0, 7))
            elif m == 3:
                stream(2, ht_ops(0, 7))
        XM0 = 20; XM1 = 24
        def xm_ops(tt):
            return [(4, False, lambda: sadd(S_XA, S_XML, WS_XM + tt*32768)),
                    (4, True, lambda: E.vm(f"buffer_load_dwordx4 v[{XM0+4*tt}:{XM0+4*tt+3}], v{VL16}, {WSRD}, s{S_XA} offen" + LSC, f'xm{L}'))]
        stream(stream(O('xm_at', 152), xm_ops(0)) + 1, xm_ops(1))
        fh = 0
        pub = {}; chk = {}
        for (st_, k, e) in (('A', 0, est[2]), ('B', 1, est[5]), ('C', 2, est[6])):
            tp = put(O('pub' + st_, e + 12), lambda st_=st_: E.wait_vm(f'h{st_}{L}'), k='s')
            tp = put(tp, lambda st_=st_, k=k: publish(S_FHS, fh + 256*k, f'h{st_}{L}', wait=False), 4, 'm', chain=True)
            tq = put(O('poll' + st_, tp + 8), lambda st_=st_, k=k: poll_issue(VP8, S_FHL, fh + 256*k, f'p{st_}{L}'), 4, 'm')
            tc = put(O('chk' + st_, tq + (12 if st_ == 'A' else 14)), lambda st_=st_: E.wait_vm(f'p{st_}{L}'), k='s')
            tc = put(tc, lambda st_=st_, k=k: poll_check(VP8, S_FHL, fh + 256*k, f'p{st_}{L}', wait=False), 8, 'v', chain=True)
            pub[st_] = tp; chk[st_] = tc
        hslot = {}
        for n0 in range(0, 56, 4):
            tt, _, p = order[n0]
            sreg = S_HA[(n0 >> 2) & 1]
            rdy = chk['A' if p < 3 else 'B' if p < 6 else 'C'] + 1
            prev = max([hslot[m] for m in range(max(0, n0 - 8), max(0, n0 - 4))], default=0)
            ta = put(max(prev, rdy - 3), lambda tt=tt, p=p, sreg=sreg: E(f"s_add_u32 s{sreg}, s{S_HLD}, {WS_H + tt*114688 + tau[p]*4096}"), k='s') + 1
            for n in range(n0, n0 + 4):
                assert order[n][0] == tt and order[n][2] == p and order[n][1] == n - n0
                q = n % NH
                if n < NH: free = 0 if q < 5 else 192 + (q - 5) + 1
                else: free = G2 + 2*(n - NH) + 2
                off = (n - n0)*1024
                hslot[n] = put(max(rdy, free, ta), lambda n=n, sreg=sreg, off=off: E.vm(f"buffer_load_dwordx4 {hreg(n)}, v{VL16}, {WSRD}, s{sreg} offen" + (f" offset:{off}" if off else "") + LSC, f'h{L}_{n}'), vm=True)
                assert hslot[n] < G2 + 2*n - 6, (L, n, hslot[n])
        if opt.get('verbose'): print('L', L, 'est', est, 'w', w4end, w5end, w6end, 'pub', pub, 'chk', chk, 'h', [hslot[n] for n in range(56)])
        if L == 0:
            firstuse = {}
            for n, (tt, rho, p) in enumerate(order): firstuse.setdefault(rho*7 + tau[p], G2 + 2*n)
            t = O('wd_at', 70)
            rest_ops = BK['b'].ops; BK['b'].ops = []
            kcur = None
            for (c_, vm_, f_) in rest_ops:
                info = getattr(f_, 'info', None)
                assert info is not None and info[0] == 'wd', 'only Wd loads may be left for G1'
                if not vm_:
                    at(t - 1, f_, 0, 's')
                else:
                    while t in vslots: t += 1
                    assert t < firstuse[info[1]] - 8, ('Wd deadline', info, t)
                    at(t, f_, 0, 'm'); t += O('wd_sp', 2)
            if opt.get('verbose'): print('last Wd load at', t)
        RB = RING
        def red_write_ops(tt):
            ops = []
            for m in (1, 3, 2):
                pd, g = m & 1, m >> 1
                src = acc2[tt][pd] + 8*g
                for hlf in range(2):
                    ops.append(lambda m=m, src=src, hlf=hlf: E.ds(f"ds_write_b128 v{VRW[m-1]}, v[{src+4*hlf}:{src+4*hlf+3}] offset:{1024*hlf}", f'rw{L}{tt}'))
            return ops
        def red_read_ops(tt):
            ops = []
            for m in range(3):
                for hlf in range(2):
                    ops.append(lambda m=m, hlf=hlf: E.ds(f"ds_read_b128 v[{RB+8*m+4*hlf}:{RB+8*m+4*hlf+3}], v{VRR} offset:{2048*m+1024*hlf}", f'rr{L}{tt}'))
            return ops
        def out_store(tt, src):
            if L == 0:
                sadd(S_T0, S_XML, WS_XN + tt*32768)
                E.vm(f"buffer_store_dwordx4 v[{src}:{src+3}], v{VL16}, {WSRD}, s{S_T0} offen", f'x2{tt}')
            else:
                sadd(S_T0, 30, tt*32768)
                E.vm(f"buffer_store_dwordx4 v[{src}:{src+3}], v28, s[{S_OUT}:{S_OUT+3}], s{S_T0} offen" + FL('o', L), f'o2{tt}')
        if L == 1:
            def out_setup():
                return [T_(x) for x in f"""v_and_b32 v28, 31, v0
                v_lshlrev_b32 v28, 10, v28
                v_bfe_u32 v29, v0, 5, 1
                v_lshl_add_u32 v28, v29, 4, v28
                s_lshl_b32 s30, s{S_C}, 17
                s_lshl_b32 s25, s{S_TH}, 16
                s_add_u32 s30, s30, s25
                s_and_b32 s25, s{S_W}, 1
                s_lshl_b32 s25, s25, 1
                s_lshr_b32 s26, s{S_W}, 1
                s_add_u32 s25, s25, s26
                s_lshl_b32 s26, s{S_J}, 2
                s_add_u32 s25, s25, s26
                s_lshl_b32 s25, s25, 5
                s_add_u32 s30, s30, s25""".split('\n')]
            t = 72
            for f in out_setup(): t = put(t, f, k='v', chain=True)
        XU = RB + 24
        t = put(G2 + 26, lambda: E.wait_vm(f'xm{L}'), k='s')
        for e in range(4):
            t = put(t, T_(f"v_lshlrev_b32 v{XU+2*e}, 16, v{XM1+e}"))
            t = put(t, T_(f"v_and_b32 v{XU+1+2*e}, s{S_HI}, v{XM1+e}"))
        m0_last = G2 + 2*last0 + 1
        t = m0_last + 5
        for f in red_write_ops(0): t = put(t, f, 8, 'm')
        t = put(t + 1, lambda: (E.wait_ds(f'rw{L}0'), barrier()), 8, 's')
        t += 1
        for f in red_read_ops(0): t = put(t, f, 4, 'm')
        own = acc2[0][0]
        t = put(t + 3, lambda: E.wait_ds(f'rr{L}0'), k='s')
        tb = t
        for e in range(8): t = put(t, T_(f"v_add_f32 v{RB+e}, v{RB+e}, v{RB+8+e}"))
        for e in range(8): t = put(t, T_(f"v_add_f32 v{own+e}, v{own+e}, v{RB+16+e}"))
        for e in range(4):
            t = put(t, T_(f"v_lshlrev_b32 v{RB+8+2*e}, 16, v{XM0+e}"))
            t = put(t, T_(f"v_and_b32 v{RB+9+2*e}, s{S_HI}, v{XM0+e}"))
        for e in range(8): t = put(t, T_(f"v_add_f32 v{own+e}, v{own+e}, v{RB+e}"))
        for e in range(8): t = put(t, T_(f"v_fma_f32 v{own+e}, v{own+e}, s{S_LN2}, v{RB+8+e}"))
        for e in range(4): t = put(t, T_(f"v_cvt_pk_bf16_f32 v{RB+e}, v{own+2*e}, v{own+2*e+1}"))
        t = put(t + 1, lambda: out_store(0, RB), 8, 'm')
        if opt.get('verbose'): print('tt0 reduction done at', t)
        put(tb + 1, barrier, k='s')
        E.wait_vm(f'x{L}_0')
        stamp(f'L{L}g1')
        for i in range(LA): rd(i)
        def emit_fill(i, mid=None):
            fm, fs, fv = F.pop(i, ([], [], []))
            if mid: mid()
            for f in fm + fs + fv: f()
        for i in range(224):
            _, p, k = seq[i]
            stamp(f'L{L}s{i}')
            if p < 3 and (i % 3) == 0 and k > 0: E.wait_vm(f'x{L}_{k}')
            if i % 2 == 0: E.wait_ds(f'a{L}_{i+1}')
            r = RING + 4*(i % 8)
            c = ACC[accp[p]]
            E(f"v_mfma_f32_32x32x16_bf16 v[{c}:{c+15}], {vr(r, 4)}, v[{XR+4*k}:{XR+4*k+3}], {'0' if k == 0 else f'v[{c}:{c+15}]'}")
            emit_fill(i, (lambda: rd(i + LA)) if i + LA < 224 else None)
        seen_kp = set()
        for n in range(56):
            tt, rho, p = order[n]
            kp = rho*7 + tau[p]
            firstb = not any(o[0] == tt for o in order[:n])
            for ii, pd in enumerate((1, 0) if n in (last0, 55) else (0, 1)):
                i = G2 + 2*n + ii
                stamp(f'L{L}s{i}')
                if ii == 0:
                    E.wait_vm(f'h{L}_{n}')
                    if L == 0 and kp not in seen_kp and not opt.get('nowd', 0): E.wait_vm(f'wd{kp}'); seen_kp.add(kp)
                c = acc2[tt][pd]
                E(f"v_mfma_f32_32x32x16_bf16 v[{c}:{c+15}], {ar(A_WD + 8*kp + 4*pd, 4)}, {hreg(n)}, {'0' if firstb else f'v[{c}:{c+15}]'}")
                emit_fill(i)
        stamp(f'L{L}g2end')
        for i in sorted(F.keys()):
            assert i > lastslot, i
            emit_fill(i)
        for f in red_write_ops(1): f()
        E.wait_ds(f'rw{L}1'); E("s_barrier")
        for f in red_read_ops(1): f()
        own = acc2[1][0]
        E.wait_ds(f'rr{L}1')
        for e in range(0, 8, 2): E(f"v_pk_add_f32 v[{RB+e}:{RB+e+1}], v[{RB+e}:{RB+e+1}], v[{RB+8+e}:{RB+9+e}]")
        for e in range(0, 8, 2): E(f"v_pk_add_f32 v[{own+e}:{own+e+1}], v[{own+e}:{own+e+1}], v[{RB+16+e}:{RB+17+e}]")
        for e in range(0, 8, 2): E(f"v_pk_add_f32 v[{own+e}:{own+e+1}], v[{own+e}:{own+e+1}], v[{RB+e}:{RB+e+1}]")
        for e in range(0, 8, 2): E(f"v_pk_fma_f32 v[{own+e}:{own+e+1}], v[{own+e}:{own+e+1}], s[{S_LN2}:{S_LN2+1}], v[{XU+e}:{XU+e+1}]")
        for e in range(4): E(f"v_cvt_pk_bf16_f32 v{RB+e}, v{own+2*e}, v{own+2*e+1}")
        out_store(1, RB)
        stamp(f'L{L}st')
        if L == 0:
            publish(S_FX2S, 0, 'x21')
            stamp('x2pub')

    def marker_check(regs_, reload_, tagname):
        ls = E.label('L_mks'); lb = E.label('L_mkb')
        t = 31
        r = list(regs_)
        E(f"v_max3_u32 v{t}, v{r[0]}, v{r[1]}, v{r[2]}"); k = 3
        while k + 1 < len(r): E(f"v_max3_u32 v{t}, v{t}, v{r[k]}, v{r[k+1]}"); k += 2
        if k < len(r): E(f"v_max_u32 v{t}, v{t}, v{r[k]}")
        E(f"v_cmp_eq_u32 vcc, -1, v{t}\ns_cbranch_vccnz {ls}\n{lb}:")
        ll = E.label('L_mkl')
        txt = f"{ls}:\ns_mov_b32 s{S_T3}, 0\n{ll}:\n"
        for i, x in enumerate(r):
            l2 = E.label('L_mkn')
            txt += f"""v_cmp_eq_u32 vcc, -1, v{x}
            s_cbranch_vccz {l2}
            {reload_(i)}
            {l2}:
            """
        txt += f"s_add_u32 s{S_T3}, s{S_T3}, 1\ns_waitcnt vmcnt(0)\n"
        txt += f"v_max3_u32 v{t}, v{r[0]}, v{r[1]}, v{r[2]}\n"; k = 3
        while k + 1 < len(r): txt += f"v_max3_u32 v{t}, v{t}, v{r[k]}, v{r[k+1]}\n"; k += 2
        if k < len(r): txt += f"v_max_u32 v{t}, v{t}, v{r[k]}\n"
        txt += f"""v_cmp_eq_u32 vcc, -1, v{t}
        s_cmp_gt_u32 s{S_T3}, 0x2000
        s_cbranch_vccz {lb}
        s_cbranch_scc0 {ll}
        s_branch {lb}
        """
        E.out_of_line(txt)

    PREPE = opt.get('prepe', 0)
    def prep_part(rawwait=None):
        PB = 64
        for i in range(4): E(f"v_mov_b32 v{108+i}, -1")
        def trd(n):
            E(f"ds_read_b64_tr_b16 v[{PB+4*n}:{PB+4*n+1}], v{VTR} offset:{1024*n}")
            E(f"ds_read_b64_tr_b16 v[{PB+4*n+2}:{PB+4*n+3}], v{VTR} offset:{1024*n + 512}")
        def pst(n):
            if n < 7:
                if n: E(f"s_add_u32 s{S_W1DST}, s{S_W1DST}, 131072")
                E(f"buffer_store_dwordx4 v[{PB+4*n}:{PB+4*n+3}], v{W1D}, {WSRD}, s{S_W1DST} offen sc1")
            else:
                if n > 7: E(f"s_add_u32 s{S_WDDST}, s{S_WDDST}, 229376")
                E(f"buffer_store_dwordx4 v[{PB+4*n}:{PB+4*n+3}], v{WDD}, {WSRD}, s{S_WDDST} offen sc1")
        stamp_dup('xiss')
        if HLATE:
            E(f"""
            s_and_b32 s25, s{S_W}, 1
            s_add_u32 s24, s{S_CB}, s25
            s_lshl_b32 s24, s24, 12
            s_mul_i32 s25, s25, {HC_CH}
            """)
            h_dma(HLATE, 24, 25)
        if rawwait is not None: E(f"s_waitcnt vmcnt({rawwait + 4*len(HLATE)})")
        for n in range(4): trd(n)
        for n in range(11):
            if n + 4 < 11: trd(n + 4)
            E(f"s_waitcnt lgkmcnt({2*min(4, 10 - n)})")
            pst(n)
        for i in range(4):
            if i: E(f"s_add_u32 s{S_YP}, s{S_YP}, 262144")
            E(f"buffer_store_dwordx4 v[108:111], v{VYP}, {WSRD}, s{S_YP} offen sc1")
    def conv():
        lx = E.label('L_xp'); lbx = E.label('L_bx')
        E(f"ds_write_b16 v61, v{HEAD}")
        E(f"s_cmp_ge_u32 s{S_W}, 2\ns_cbranch_scc1 {lx}")
        XG = 64
        def xload(i): return f"buffer_load_dwordx4 v[{XG+4*i}:{XG+4*i+3}], v{VL16}, {WSRD}, s{S_XL + (i >> 2)} offen" + (f" offset:{1024*(i & 3)}" if i & 3 else "") + " sc1"
        for i in range(8): E(xload(i))
        stamp('xiss')
        ACCc = 192
        for i in range(32): E(f"v_mov_b32 v{ACCc+i}, 0")
        E("s_waitcnt vmcnt(0)")
        marker_check([XG + 4*i for i in range(8)], xload, 'x')
        stamp('xok')
        for i in range(8): E(f"ds_write_b128 v{VXW}, v[{XG+4*i}:{XG+4*i+3}] offset:{(i >> 2)*XR_P + (i & 3)*1024}")
        E(f"s_branch {lbx}\n{lx}:")
        if not PREPE: prep_part()
        else: stamp_dup('xiss')
        stamp_dup('xok')
        for i in range(32): E(f"v_mov_b32 v{ACCc+i}, 0")
        if HLATE: E("s_waitcnt vmcnt(15)")
        E(f"{lbx}:")
        E("s_waitcnt lgkmcnt(0)")
        E.vmq = []; E.dsq = []
        E("s_barrier")
        stamp('bx')
        def AF(st, g): return 64 + 32*st + 4*g
        def BF(st, u): return 128 + 32*st + 4*u
        def rdA(st, g, rho): return f"ds_read_b128 v[{AF(st,g)}:{AF(st,g)+3}], v{VA_} offset:{512*g + 64*rho}"
        def rdB(st, u, rho): return f"ds_read_b128 v[{BF(st,u)}:{BF(st,u)+3}], v{VB_} offset:{512*(7-u) + 64*rho}"
        pairs = [(t, g) for t in range(8) for g in range(t+1)]
        order = []
        for t in range(8): order.append(('B', t)); order.append(('A', t))
        def mf(st, t, g):
            return f"v_mfma_f32_16x16x32_bf16 v[{ACCc+4*t}:{ACCc+4*t+3}], v[{AF(st,g)}:{AF(st,g)+3}], v[{BF(st,t-g)}:{BF(st,t-g)+3}], v[{ACCc+4*t}:{ACCc+4*t+3}]"
        S1AT = opt.get('s1at', 24); S1POLL = opt.get('s1poll', 96); S1CHK = opt.get('s1chk', 118)
        acts = {}
        def act(i, f): acts.setdefault(i, []).append(f)
        def s1publish():
            E("s_waitcnt vmcnt(0)"); E.vmq = []
            E.vm(f"buffer_store_dword v{VONE}, v{VS1F}, {WSRD}, s{S_S1F} offen sc1", 's1st')
        def s1poll(): E.vm(f"buffer_load_dwordx4 v[24:27], v{VS1P}, {WSRD}, 0 offen sc1", 's1')
        def s1check():
            all_flags_check(24, VS1P, S_N, 's1')
            E("s_barrier")
            stamp('s1')
        def qload():
            E.vm(f"buffer_load_dwordx4 {ar(A_Q, 4)}, v9, s[{S_Q}:{S_Q+3}], s{S_QO} offen" + NT('q'), 'q')
            E.vm(f"buffer_load_dwordx4 {ar(A_Q+4, 4)}, v9, s[{S_Q}:{S_Q+3}], s{S_QO} offen offset:128" + NT('q'), 'q')
        act(S1AT, s1publish); act(opt.get('qat', 40), qload)
        def htouch():
            m = opt['ht']
            E(f"v_lshrrev_b32 v246, 3, v8\nv_lshlrev_b32 v246, 12, v246\nv_and_b32 v247, {m}, v8\nv_lshl_add_u32 v246, v247, 7, v246")
            E(f"s_add_u32 s24, s{S_HST}, {WS_H}")
            E(f"s_mov_b32 exec_hi, 0x00ffffff")
            E.vm(f"buffer_load_dword v247, v246, {WSRD}, s24 offen", 'ht')
            E(f"s_mov_b64 exec, -1")
        if 'ht' in opt: act(opt.get('htat', 20), htouch)
        POST = S1CHK >= 1000
        if S1POLL < 1000: act(S1POLL, s1poll)
        B = BK['b'] = make_bulk()
        if not POST:
            act(S1CHK, s1check)
            nm = opt.get('bk_m', 5)
            for k in range(nm): act(S1CHK + 2 + k*opt.get('bk_msp', 4), lambda: B.emit(1))
            assert S1CHK + 2 + nm*opt.get('bk_msp', 4) <= 148
        def do(i):
            for f in acts.pop(i, []): f()
        for rho in range(4):
            st = rho & 1
            nxt = []
            if rho < 3: nxt = [(rdB(st^1, x, rho+1) if k == 'B' else rdA(st^1, x, rho+1)) for (k, x) in order]
            if rho == 0:
                reads = [(rdB(0, x, 0) if k == 'B' else rdA(0, x, 0)) for (k, x) in order]
                for r_ in reads[:14]: E(r_)
                issued = 14; done = 0
                allq = reads + nxt
                for idx, (t, g) in enumerate(pairs):
                    if g == 0:
                        E(f"s_waitcnt lgkmcnt({issued - 2*(t+1)})"); done = 2*(t+1)
                    E(mf(0, t, g))
                    do(idx)
                    if t == 7 and g == 4:
                        done += 6
                        E(f"s_waitcnt lgkmcnt({issued - done})")
                    if issued < len(allq) and issued - done < 14:
                        E(allq[issued]); issued += 1
                assert issued == len(allq)
            else:
                E("s_waitcnt lgkmcnt(0)")
                k = 0
                for idx, (t, g) in enumerate(pairs):
                    E(mf(st, t, g))
                    do(36*rho + idx)
                    if nxt and idx % 2 == 0 and k < 16:
                        E(nxt[k]); k += 1
            if rho < 3: stamp(f'rho{rho+1}')
        for i in sorted(acts): do(i)
        stamp('mfend')
        if opt.get('rot', 0):
            E(f"s_lshr_b32 s25, s{S_C}, 3\ns_lshl_b32 s25, s25, 1\ns_add_u32 s25, s25, s{S_TH}")
            for r_ in range(4):
                E(f"""s_add_u32 s24, s25, {r_}
                s_and_b32 s24, s24, 3
                s_mul_i32 s24, s24, {7*2048}
                s_add_u32 s{S_WDR + r_}, s{S_WDB}, s24""")
        E(f"""
        s_barrier
        v_add_u32 v20, s{S_W1K}, v{VL16}
        s_lshl_b32 s24, s{S_W}, 11
        v_add_u32 v21, s24, v{VL16}
        s_nop 4
        """)
        for t in range(8): E.ds(f"ds_write_b128 v20, v[{ACCc+4*t}:{ACCc+4*t+3}] offset:{1024*t}", 'rdw')
        E.wait_ds('rdw')
        E("s_barrier")
        stamp('red2')
        if S1POLL == 1000: s1poll()
        if not POST: B.emit(opt.get('bk_red', 0))
        for tau in range(2):
            for src in range(4):
                E.ds(f"ds_read_b128 v[{64+32*tau+4*src}:{67+32*tau+4*src}], v21 offset:{8192*src + 1024*tau}", f'rdr{tau}')
            for ch in range(2):
                E.ds(f"ds_read_b128 v[{128+8*tau+4*ch}:{131+8*tau+4*ch}], v{VKVW} offset:{ch*XR_CH + 512*(1-tau)}", f'rdr{tau}')
        for tau in range(2):
            E.wait_ds(f'rdr{tau}')
            base = 64 + 32*tau
            for ch in range(2):
                kvr = 128 + 8*tau + 4*ch
                for r in range(4): E(f"v_add_f32 v{base+8*ch+r}, v{base+8*ch+r}, v{base+8*ch+r+4}")
                for d in range(4): E(f"v_lshlrev_b32 v{kvr+d}, 16, v{kvr+d}")
                for r in range(4): E(f"v_fmac_f32 v{base+8*ch+r}, s{60+ch}, v{kvr+3-r}")
            for r in range(4): E(f"v_cvt_pk_bf16_f32 v{148+r}, v{base+r}, v{base+8+r}")
            o = 152 + 4*tau
            E(f"""
            v_mov_b32 v{o}, v150
            v_mov_b32 v{o+1}, v148
            v_mov_b32 v{o+2}, v151
            v_mov_b32 v{o+3}, v149
            v_mov_b32_dpp v{o}, v148 row_ror:8 row_mask:0xf bank_mask:0x3
            v_mov_b32_dpp v{o+1}, v150 row_ror:8 row_mask:0xf bank_mask:0xc
            v_mov_b32_dpp v{o+2}, v149 row_ror:8 row_mask:0xf bank_mask:0x3
            v_mov_b32_dpp v{o+3}, v151 row_ror:8 row_mask:0xf bank_mask:0xc
            """)
            if tau == 1: E(f"s_add_u32 s58, s58, 262144")
            E.vm(f"buffer_store_dwordx4 v[{o}:{o+3}], v{VYS}, {WSRD}, s58 offen sc1", 'yst')
        stamp('yst')
        if S1POLL == 1001: s1poll()
        if POST: s1check()

    def rest():
        conv()
        B = BK['b']
        def yload(i):
            c2, k = i >> 2, i & 3
            return f"buffer_load_dword v{Y+i}, v10, {WSRD}, s{59 if c2 == 0 else 24} offen" + (f" offset:{512*k}" if k else "") + " sc1"
        E("s_add_u32 s24, s59, 16384")
        B.emit(opt.get('bk_a', 0))
        for i in range(8): E.vm(yload(i), 'y')
        n_y = opt.get('bk_y', 0)
        B.emit(n_y)
        assert 'w1_3' not in E.seen, 'slot 0 is still in use'
        for i in range(8): E(f"v_accvgpr_read_b32 v{X+i}, a{A_Q+i}")
        R_pre(0)
        stamp('qst')
        B.emit(opt.get('bk_q', 0))
        E.wait_vm('y')
        marker_check([Y + i for i in range(8)], yload, 'y')
        stamp('yok')
        B.emit(opt.get('bk_r0', 16))
        for i in range(8): E(f"v_accvgpr_write_b32 a{A_Y+i}, v{Y+i}")
        def w1left():
            n = 0; k = 0
            for o in B.ops:
                if o[1]:
                    k += 1
                    if getattr(o[2], 'info', None) is None: n = k
            return n
        R_post(0, early=lambda: B.emit(max(opt.get('bk_r1', 0), w1left())), late=None)
        assert all(('w1_%d' % p) in E.seen for p in range(4)) and not any(getattr(o[2], 'info', None) is None for o in B.ops), 'W1 tiles 0..3 must be under way before the XN stores'
        Rpub(0)
        layer(0)
        poll_issue(VP8, S_FX2L, 0, 'px2')
        poll_check(VP8, S_FX2L, 0, 'px2')
        for r_, c_ in ((S_FXNS, 16*256), (S_FXNL, 16*256), (S_FHS, 16*1024), (S_FHL, 16*1024)): E(f"s_add_u32 s{r_}, s{r_}, {c_}")
        stamp('x2ok')
        sadd(S_T0, S_R, WS_XN); sadd(S_T1, S_R, WS_XN + 4096)
        E.vm(f"buffer_load_dwordx4 v[{X}:{X+3}], v{VR}, {WSRD}, s{S_T0} offen" + LSC, 'x2l')
        E.vm(f"buffer_load_dwordx4 v[{X+4}:{X+7}], v{VR}, {WSRD}, s{S_T1} offen" + LSC, 'x2l')
        for i in range(8): E(f"v_accvgpr_read_b32 v{Y+i}, a{A_Y+i}")
        E.wait_vm('x2l')
        R_pre(1)
        R_post(1)
        Rpub(1)
        layer(1)
        E.wait_vm_all()

    def s0cmp(val): return "\n".join([f"v_xor_b32 v{S0R+i}, s{val}, v{S0R+i}" for i in range(4)] +
                                     [f"v_or3_b32 v{S0R}, v{S0R}, v{S0R+1}, v{S0R+2}", f"v_or_b32 v{S0R}, v{S0R}, v{S0R+3}"])
    if PREPE:
        assert RAWPOS == 1 and E.vm_after('s0') == 4
        E(f"s_cmp_lt_u32 s{S_W}, 2\ns_cbranch_scc1 L_pe0")
        prep_part(rawwait=5)
        E(f"s_waitcnt vmcnt({4 + 4*len(HLATE) + 15})\ns_branch L_pe1\nL_pe0:\ns_waitcnt vmcnt(4)\nL_pe1:")
        E.vmq = []
    else: E.wait_vm('s0')
    E(s0cmp(S_XCC))
    E(f"v_cmp_ne_u32 vcc, 0, v{S0R}")
    E("s_branch L_s0s" if force_slow else "s_cbranch_vccnz L_s0s")
    E("L_s0b:")
    E.out_of_line(f"""
    L_s0s:
    s_mov_b32 s{S_T3}, 0
    L_s0l:
    v_cmp_lt_u32 vcc, 7, v{S0R}
    s_cmp_gt_u32 s{S_T3}, 0x2000
    s_cbranch_vccz L_slow
    s_cbranch_scc1 L_s0b
    buffer_load_dwordx4 v[{S0R}:{S0R+3}], v30, {WSRD}, 0 offen sc1
    s_add_u32 s{S_T3}, s{S_T3}, 1
    s_waitcnt vmcnt(0)
    {s0cmp(S_XCC)}
    v_cmp_ne_u32 vcc, 0, v{S0R}
    {'s_branch L_s0l' if force_slow else 's_cbranch_vccnz L_s0l'}
    s_branch L_s0b""")
    stamp('s0')
    Efast = E
    Es = Emit(); Es.vmq = []; Es.dsq = list(E.dsq); Es.seen = set(E.seen); Es.nl = 100000
    E = Es; MODE['slow'] = True
    E(f"""
    L_slow:
    s_mov_b32 s{S_EXP}, 2
    s_waitcnt vmcnt(0)
    buffer_wbl2 sc1
    s_waitcnt vmcnt(0)
    s_barrier
    s_add_u32 s24, s86, {FL_S0B}
    buffer_store_dword v{VONE}, v{VT0}, {WSRD}, s24 offen sc1
    s_mov_b32 s25, {FL_S0B - FL_S0}
    s_mov_b32 s{S_T3}, 0
    L_s0bl:
    buffer_load_dwordx4 v[{S0R}:{S0R+3}], v30, {WSRD}, s25 offen sc1
    s_add_u32 s{S_T3}, s{S_T3}, 1
    s_waitcnt vmcnt(0)
    {s0cmp(S_N)}
    v_cmp_ne_u32 vcc, 0, v{S0R}
    s_cmp_gt_u32 s{S_T3}, 0x2000
    s_cbranch_scc1 L_s0bx
    s_cbranch_vccnz L_s0bl
    L_s0bx:
    buffer_inv sc1
    s_waitcnt vmcnt(0)
    """)
    rest()
    E("s_branch L_fin")
    E = Efast; MODE['slow'] = False
    rest()
    E("L_fin:")
    if stamps:
        stamp('end')
        n = len(names)
        E("s_memrealtime s[24:25]")
        E("s_waitcnt lgkmcnt(0)")
        for k in (n - 2, n - 1): E(f"v_writelane_b32 v{VSTAMP}, s{SP[k & 1]}, {k}")
        E(f"""
        v_writelane_b32 v{VSTAMP}, s100, 61
        v_writelane_b32 v{VSTAMP}, s24, 62
        v_writelane_b32 v{VSTAMP}, s{S_EXP}, 63
        s_lshl_b32 s25, s2, 10
        s_lshl_b32 s26, s{S_W}, 8
        s_add_u32 s25, s25, s26
        s_add_u32 s25, s25, {WS_STAMP}
        v_lshrrev_b32 v20, 2, v{VL16}
        buffer_store_dword v{VSTAMP}, v20, {WSRD}, s25 offen
        s_waitcnt vmcnt(0)
        """)
        assert n < 60
        print('k3 stamps:', ','.join(names))
        open('last_stamps.txt', 'w').write(','.join(names))
    E("L_end:")
    E("s_endpgm")
    main = hazard_pass(E.L[1:], verbose=opt.get('verbose', False))
    tail = list(E.tail) + ['L_codeend:'] + hazard_pass(Es.L) + list(Es.tail)
    txt = E.L[0] + '\n' + '\n'.join(('    ' + l if not l.endswith(':') else l) for l in main) + '\n'
    txt += '\n'.join(('    ' + l if not l.endswith(':') else l) for l in tail) + '\n'
    txt += "    s_endpgm\n"
    return txt + kd(name, 512, 102, accum=256)

if __name__ == '__main__':
    st = 'stamps' in sys.argv; slow = 'slow' in sys.argv
    opt = {'verbose': 'v' in sys.argv}
    for a in sys.argv[2:]:
        if '=' in a:
            k_, v_ = a.split('=')
            opt[k_] = v_.split(',') if k_ == 'st' else (v_ if k_.startswith('fl') else int(v_))
    kname = NAME + '_kernel'
    txt = KERNARG_COMMENT
    txt += f"; @launch grid=(256,1,1) block=(256,1,1) lds={K1_LDS}\n"
    txt += TARGET + gen(kname, stamps=st, force_slow=slow, opt=opt)
    txt += ".text\n.fill 64, 4, 0xbf800000\n"
    open(sys.argv[1], 'w').write(txt)
```

```python
import sys
sys.path.insert(0, 'gen')
from emit import *
from layout3 import *
from common import head, kd, TARGET, KERNARG_COMMENT, NAME

K1_LDS = 163840
SLOT = 32768
SCR = SLOT
STATS = SLOT + 24576
OOB = 0x80000000
VL16, VA1, VA2, VP8, VP16, VF0, VR = 1, 2, 3, 4, 5, 6, 7
VSTW, VSTR = 11, 12
VRW = [13, 14, 15]; VRR = 16
VPOLL, VONE, VSTAMP = 17, 18, 19
RING = 32
ACC = [64, 80, 96, 112]
XR = 128
A_WD = 0; A_Y = 224; A_T4 = 232
S_WS = 4; S_Q = 8; S_OUT = 12
S_W, S_ROLE, S_C, S_TH, S_J, S_EXP, S_XCC, S_W1K = 16, 17, 18, 19, 20, 21, 22, 23
S_R, S_XNL, S_HST, S_HLD, S_XML, S_W1, S_FXNS, S_FXNL, S_FHS, S_FHL, S_FX2S, S_FX2L = range(34, 46)
S_T0, S_T1, S_T2, S_T3, S_HI = 46, 47, 48, 49, 31
S_LN2 = 98
S_DA, S_XA = 50, 3
S_HA = [96, 97]; S_HS = [94, 95]
LA = 6
def vr(b, n=1): return f"v{b}" if n == 1 else f"v[{b}:{b+n-1}]"
def ar(b, n=1): return f"a{b}" if n == 1 else f"a[{b}:{b+n-1}]"

LAYERS = [
    dict(tau=[0, 1, 2, 3, 4, 5, 6], slot=[2, 3, 4, 0, 1, 2, 3]),
    dict(tau=[5, 6, 2, 3, 4, 0, 1], slot=[2, 3, 4, 0, 1, 2, 3]),
]
LOG2E = 0x3fb8aa3b; LN2 = 0x3f317218
A_H = 236

S_N = 51
VWD = 28
S_WDB = 30
S_WDR = 64
A_Q = 232
HC_J = 4160; HC_CH = 4*HC_J
XRB = 2*HC_CH
XR_P = 4640; XR_CH = 9472
TBS = 1056
KT = 2*SLOT; VT = KT + 9*TBS
PST = 3*SLOT
S_QO, S_PST = 87, 94
S_G, S_M, S_CB, S_CP, S_D, S_E = 88, 89, 84, 85, 62, 63
POISON = 0xffffffff


def gen(name, stamps=False, force_slow=False, opt=None):
    opt = opt or {}
    E = Emit()
    LSC = ' sc1' if opt.get('lsc', 1) else ''
    names = []
    DEF = ['start', 'join', 'b0', 'kvst', 's0', 'xiss', 'prep', 'xok', 'bx', 'rho1', 'rho2', 'rho3', 's1', 'mfend', 'red2', 'yst', 'qst', 'yok', 'R0st', 'R0pub', 'L0xnok', 'L0g1', 'L0s96', 'L0s224', 'L0g2end', 'L0st', 'x2ok', 'R1st', 'R1pub', 'L1xnok', 'L1g1', 'L1s96', 'L1s224', 'L1g2end', 'L1st', 'end']
    enabled = set(opt.get('st', DEF)) | {'start', 'end'}
    MODE = {'slow': False}
    SP = [90, 92]
    def stamp(nm):
        if stamps and nm in enabled and not MODE['slow']:
            n = len(names); names.append(nm)
            if n >= 2: E(f"v_writelane_b32 v{VSTAMP}, s{SP[n & 1]}, {n-2}")
            E(f"s_memtime s[{SP[n & 1]}:{SP[n & 1]+1}]")
    def stamp_dup(nm):
        if stamps and nm in names and not MODE['slow']:
            n = names.index(nm)
            if n >= 2: E(f"v_writelane_b32 v{VSTAMP}, s{SP[n & 1]}, {n-2}")
            E(f"s_memtime s[{SP[n & 1]}:{SP[n & 1]+1}]")
    WSRD = f"s[{S_WS}:{S_WS+3}]"
    def NT(k): return ' nt' if (opt.get('nt', 0) >> 'trhq'.index(k)) & 1 else ''
    def FL(kind, L):
        v = opt.get(f'fl{kind}{L}', opt.get(f'fl{kind}', ''))
        return (' ' + v.replace('+', ' ')) if v else ''

    def sadd(dst, base, const):
        if const == 0: E(f"s_mov_b32 s{dst}, s{base}")
        else: E(f"s_add_u32 s{dst}, s{base}, {const}")
    def dma_stream(tau, slot, tag, ilist=range(8)):
        ops = []; cur = None
        for i in ilist:
            if cur != (i >> 2):
                cur = i >> 2
                ops.append((4, False, lambda g=cur: E(f"s_add_u32 m0, s{S_W1K}, {slot*SLOT + g*4096}")))
                ops.append((4, False, lambda g=cur: sadd(S_DA, S_W1, tau*32768 + g*4096)))
            off = (i & 3)*1024
            ops.append((4, True, lambda off=off: E.vm(f"buffer_load_dwordx4 v{VL16}, {WSRD}, s{S_DA} offen" + (f" offset:{off}" if off else "") + " lds", tag)))
        return ops
    def wd_stream(kps):
        ops = []
        for kp in kps:
            if opt.get('rot', 0): f = lambda kp=kp: E(f"s_add_u32 s26, s{S_WDR + kp//7}, {(kp % 7)*2048}")
            else: f = lambda kp=kp: E(f"s_add_u32 s26, s{S_WDB}, {kp*2048}")
            f.info = ('wd', kp); ops.append((4, False, f))
            for pd in range(2):
                f = lambda kp=kp, pd=pd: E.vm(f"buffer_load_dwordx4 {ar(A_WD + 8*kp + 4*pd, 4)}, v{VWD+pd}, {WSRD}, s26 offen" + (LSC if opt.get('wdsc', 1) else ''), f'wd{kp}')
                f.info = ('wd', kp); ops.append((4, True, f))
        return ops
    class Bulk:
        def __init__(self, ops): self.ops = list(ops)
        def take(self, n):
            out = []
            while n > 0 and self.ops:
                o = self.ops.pop(0); out.append(o)
                if o[1]: n -= 1
            return out
        def emit(self, n):
            for (_, _, f) in self.take(n): f()
            assert not self.ops or not self.ops[0][1] or getattr(self.ops[0][2], 'info', None) is None, 'Wd loads come in pairs'
        def left(self): return sum(1 for o in self.ops if o[1])
    def publish(sbase, const, tag, wait=True):
        o = f" offset:{const}" if const else ""
        if MODE['slow']:
            E.wait_vm_all()
            E("buffer_wbl2 sc1\ns_waitcnt vmcnt(0)")
            E.vm(f"buffer_store_dword v{VONE}, v{VF0}, {WSRD}, s{sbase} offen{o} sc1", None)
            return
        if wait: E.wait_vm(tag)
        E.vm(f"buffer_store_dword v{VONE}, v{VF0}, {WSRD}, s{sbase} offen{o}", None)
    def poll_issue(voff, sbase, const, tag, dst=VPOLL):
        o = f" offset:{const}" if const else ""
        if MODE['slow']: E.seen.add(tag); return
        E.vm(f"buffer_load_dword v{dst}, v{voff}, {WSRD}, s{sbase} offen{o} sc1", tag)
    def poll_check(voff, sbase, const, tag, dst=VPOLL, wait=True):
        o = f" offset:{const}" if const else ""
        ls = E.label('L_polls'); lb = E.label('L_pollb'); ll = E.label('L_polll')
        if MODE['slow']:
            E.wait_vm_all()
            E(f"""
            s_mov_b32 s{S_T3}, 0
            {ll}:
            buffer_inv sc1
            s_waitcnt vmcnt(0)
            buffer_load_dword v{dst}, v{voff}, {WSRD}, s{sbase} offen{o} sc1
            s_add_u32 s{S_T3}, s{S_T3}, 1
            s_waitcnt vmcnt(0)
            v_cmp_ne_u32 vcc, s{S_N}, v{dst}
            s_cmp_gt_u32 s{S_T3}, 0x2000
            s_cbranch_scc1 {lb}
            s_cbranch_vccnz {ll}
            {lb}:
            buffer_inv sc1
            s_waitcnt vmcnt(0)""")
            return
        if wait: E.wait_vm(tag)
        E(f"v_cmp_ne_u32 vcc, s{S_N}, v{dst}")
        E(f"s_cbranch_vccnz {ls}")
        E(f"{lb}:")
        E.out_of_line(f"""
        {ls}:
        s_mov_b32 s{S_T3}, 0
        {ll}:
        buffer_load_dword v{dst}, v{voff}, {WSRD}, s{sbase} offen{o} sc1
        s_add_u32 s{S_T3}, s{S_T3}, 1
        s_waitcnt vmcnt(0)
        v_cmp_ne_u32 vcc, s{S_N}, v{dst}
        s_nop 4
        s_cbranch_vccz {lb}
        s_cmp_lt_u32 s{S_T3}, 0x2000
        s_cbranch_scc1 {ll}
        s_branch {lb}""")
    def all_flags_check(dst, voff, sval, tag, lim=0x2000):
        ls = E.label('L_afs'); lb = E.label('L_afb'); ll = E.label('L_afl')
        def cmp4():
            return "\n".join([f"v_xor_b32 v{dst+i}, s{sval}, v{dst+i}" for i in range(4)] +
                             [f"v_or3_b32 v{dst}, v{dst}, v{dst+1}, v{dst+2}", f"v_or_b32 v{dst}, v{dst}, v{dst+3}", f"v_cmp_ne_u32 vcc, 0, v{dst}"])
        E.wait_vm(tag)
        E(cmp4())
        E(f"s_cbranch_vccnz {ls}\n{lb}:")
        E.out_of_line(f"""
        {ls}:
        s_mov_b32 s{S_T3}, 0
        {ll}:
        buffer_load_dwordx4 v[{dst}:{dst+3}], v{voff}, {WSRD}, 0 offen sc1
        s_add_u32 s{S_T3}, s{S_T3}, 1
        s_waitcnt vmcnt(0)
        {cmp4()}
        s_nop 4
        s_cbranch_vccz {lb}
        s_cmp_lt_u32 s{S_T3}, {lim}
        s_cbranch_scc1 {ll}
        s_branch {lb}""")

    KSRD, VSRD, HSRD, PSRD, WDSRD = "s[52:55]", "s[64:67]", "s[76:79]", "s[68:71]", "s[52:55]"
    VPS, VPW = 224, 225
    VFT = 231
    P1 = opt.get('p1', 0)
    GSH = 18 if P1 else 19
    NKV = 2 if P1 else 4
    MKALL = opt.get('mkall', 0)
    assert MKALL or not P1
    MKPOS = opt.get('mkpos', 0)
    MKW = opt.get('mkw', 0)
    MKF = '' if MKALL == 2 else ' sc1'
    MKPRE = "" if not MKALL else f"""v_lshlrev_b32 v33, 12, v21
    v_lshl_add_u32 v33, v22, 4, v33
    v_mov_b32 v36, -1
    v_mov_b32 v37, -1
    v_mov_b32 v38, -1
    v_mov_b32 v39, -1
    s_lshl_b32 s95, s{S_G}, {GSH}
    s_lshl_b32 s27, s{S_M}, 7
    s_sub_u32 s95, s95, s27
    s_lshl_b32 s27, s{S_W}, {(18 if MKW else 17) - P1}
    s_add_u32 s95, s95, s27
    s_add_u32 s95, s95, {WS_KVT + 3968}"""
    def markers4(fix=True):
        if fix: E(srd_fix(S_WS, WS_SRD_BYTES))
        n = (8 if MKW else 4) >> P1
        if MKW: E(f"s_cmp_ge_u32 s{S_W}, 2\ns_cbranch_scc1 L_mkw")
        for i in range(n if not opt.get('nomk') else 0):
            E(f"buffer_store_dwordx4 v[36:39], v33, {WSRD}, s95 offen{MKF}")
            if i < n - 1: E("s_add_u32 s95, s95, 32768")
        if MKW: E("L_mkw:")
    def srd_fix(b, size): return f"s_and_b32 s{b+1}, s{b+1}, 0xffff\ns_mov_b32 s{b+2}, {size}\ns_mov_b32 s{b+3}, 0x20000"
    E.L.append(head(name).rstrip())
    E(f"""
    s_cmp_ge_u32 s2, 256
    s_cbranch_scc1 L_end
    s_load_dwordx2 s[52:53], s[0:1], 8
    s_load_dwordx2 s[64:65], s[0:1], 16
    s_load_dwordx2 s[4:5], s[0:1], 96
    s_load_dwordx8 s[56:63], s[0:1], 24
    s_load_dwordx8 s[68:75], s[0:1], 56
    s_load_dwordx2 s[8:9], s[0:1], 0
    """)
    if stamps: E("s_memrealtime s[100:101]")
    stamp('start')
    E(f"""
    v_lshrrev_b32 v20, 6, v0
    v_and_b32 v8, 63, v0                     ; lane
    s_and_b32 s{S_G}, s2, 7
    s_lshr_b32 s{S_M}, s2, 3
    v_readfirstlane_b32 s{S_W}, v20
    v_lshlrev_b32 v{VL16}, 4, v8
    v_lshrrev_b32 v21, 3, v8
    v_and_b32 v22, 7, v8
    s_lshl_b32 s{S_CB}, s{S_G}, 6
    s_lshl_b32 s24, s{S_M}, 1
    s_add_u32 s{S_CB}, s{S_CB}, s24
    s_lshl_b32 s24, s{S_G}, 9
    s_lshl_b32 s25, s{S_W}, 7
    s_add_u32 s24, s24, s25
    v_lshlrev_b32 v30, 4, v21
    v_add_u32 v30, s24, v30
    ; raw weight blocks (waves 2 and 3): 8 rows x 128 bytes each
    s_lshr_b32 s24, s2, 2                    ; kg
    s_and_b32 s25, s2, 3                     ; fq
    s_mul_i32 s26, s24, 28672
    s_mul_i32 s27, s25, 896
    s_add_u32 s26, s26, s27
    v_mul_u32_u24 v{VPS}, 3584, v21
    v_lshl_add_u32 v{VPS}, v22, 4, v{VPS}
    v_add_u32 v{VPS}, s26, v{VPS}
    v_lshlrev_b32 v{VPW}, 10, v21
    v_lshl_add_u32 v{VPW}, v22, 4, v{VPW}
    s_and_b32 s25, s{S_W}, 1
    s_lshl_b32 s26, s2, 13
    s_lshl_b32 s27, s25, 9
    s_add_u32 s26, s26, s27
    v_add_u32 v{VPW}, s26, v{VPW}
    s_mul_i32 s26, s25, {11*1024}
    s_add_u32 s{S_PST}, s26, {PST}
    {MKPRE}
    s_cmp_eq_u32 s{S_W}, 3
    s_cbranch_scc1 L_w3
    ; k / v staging tiles: row = lane >> 3, 16-byte segment = lane & 7
    v_lshlrev_b32 v32, 10, v21
    v_lshl_add_u32 v32, v22, 4, v32
    s_lshl_b32 s24, s{S_M}, 16
    s_lshl_b32 s25, s{S_G}, 7
    s_add_u32 s24, s24, s25
    v_add_u32 v32, s24, v32
    s_cmp_eq_u32 s{S_W}, 2
    s_cbranch_scc1 L_w2
    s_cmp_eq_u32 s{S_W}, 1
    s_cbranch_scc1 L_w1
    """)
    SK = 56
    def skload(): E(f"global_load_dwordx4 v[{SK}:{SK+3}], v30, s[56:57]")
    def h_dma(js, sch, slds):
        for j in js:
            E(f"s_add_u32 s26, s{sch}, {4 + 4*j}\ns_add_u32 m0, s{slds}, {j*HC_J + 64}\ns_nop 0")
            for q_ in range(4):
                E(f"buffer_load_dwordx4 v{VL16}, {HSRD}, s26 offen" + (f" offset:{1024*q_}" if q_ else "") + NT('h') + " lds")
    def prep_dma():
        for i in range(7):
            E(f"s_add_u32 m0, s{S_PST}, {1024*i - 128*i}")
            E(f"s_nop 0\nbuffer_load_dwordx4 v{VPS}, {PSRD}, 0 offen" + (f" offset:{128*i}" if i else "") + NT('r') + " lds")
        for i in range(4):
            E(f"s_add_u32 m0, s{S_PST}, {1024*(7+i) - 128*i}")
            E(f"s_nop 0\nbuffer_load_dwordx4 v{VPW}, {WDSRD}, 0 offen" + (f" offset:{128*i}" if i else "") + NT('r') + " lds")
    HEARLY = [0, 1, 2, 3] if opt.get('hpos', 0) == 0 else [0]
    HLATE = [j for j in range(4) if j not in HEARLY]
    def tile_path(lst):
        for j, (kind, blk) in enumerate(lst):
            c = (blk*8192 - (4096 if kind == 'k' else 1024)) & 0xffffffff
            E(f"v_add_u32 v{40+j}, {c:#x}, v32")
        E("s_waitcnt lgkmcnt(0)")
        E(f"s_load_dword s{S_E}, s[4:5], {FL_EPOCH}")
        if MKALL and MKPOS == 0: markers4()
        if any(k == 'k' for k, _ in lst): E(srd_fix(52, 2097152))
        if any(k == 'v' for k, _ in lst): E(srd_fix(64, 2097152))
        for j, (kind, blk) in enumerate(lst):
            E(f"s_mov_b32 m0, {(KT if kind == 'k' else VT) + blk*TBS}\ns_nop 0")
            E(f"buffer_load_dwordx4 v{40+j}, {KSRD if kind == 'k' else VSRD}, 0 offen{NT('t')} lds")
    tile_path([('k', b) for b in range(6)])
    E("s_branch L_w01\nL_w1:")
    tile_path([('k', b) for b in (6, 7, 8)] + [('v', b) for b in (0, 1, 2)])
    E("L_w01:")
    stamp('e1'); stamp('e2')
    skload()
    E(f"""
    s_mov_b32 s76, s58
    s_mov_b32 s77, s59
    {srd_fix(76, 2097152)}
    s_add_u32 s24, s{S_CB}, s{S_W}
    s_lshl_b32 s24, s24, 12                  ; channel * 4096
    s_mul_i32 s25, s{S_W}, {HC_CH}
    """)
    h_dma(HEARLY, 24, 25)
    E("s_branch L_join\nL_w2:")
    tile_path([('v', b) for b in range(3, 9)])
    stamp_dup('e1'); stamp_dup('e2')
    skload()
    E("s_branch L_w23\nL_w3:")
    if MKALL:
        MK2 = 0
        E(f"""
        s_waitcnt lgkmcnt(0)
        s_mov_b32 s68, s70
        s_mov_b32 s69, s71
        s_load_dword s{S_E}, s[4:5], {FL_EPOCH}
        """)
        if MKPOS == 0: markers4()
        stamp_dup('e1')
    else:
        MK4 = opt.get('mk4', 1)
        E(f"""
        v_lshlrev_b32 v33, 12, v21
        v_lshl_add_u32 v33, v22, 4, v33
        v_mov_b32 v36, -1
        v_mov_b32 v37, -1
        v_mov_b32 v38, -1
        v_mov_b32 v39, -1
        s_lshl_b32 s26, s{S_G}, 19
        s_lshl_b32 s27, s{S_M}, 7
        s_sub_u32 s26, s26, s27
        s_add_u32 s26, s26, {WS_KVT + 3968}
        s_waitcnt lgkmcnt(0)
        {srd_fix(S_WS, WS_SRD_BYTES)}
        s_load_dword s{S_E}, s[4:5], {FL_EPOCH}
        """)
        for i in range(16):
            E((f"buffer_store_dwordx4 v[36:39], v33, {WSRD}, s26 offen" if MK4 else f"buffer_store_dword v36, v33, {WSRD}, s26 offen") + (' sc1' if opt.get('mksc', 0) else ''))
            if i < 15: E("s_add_u32 s26, s26, 32768")
        stamp_dup('e1')
        E(f"""
        s_getreg_b32 s24, hwreg(HW_REG_XCC_ID, 0, 4)
        s_and_b32 s25, s2, 63
        s_lshl_b32 s25, s25, 7
        s_lshr_b32 s26, s2, 6
        s_lshl_b32 s26, s26, 2
        s_add_u32 s25, s25, s26
        s_add_u32 s25, s25, {FL_S0}
        s_and_b32 s24, s24, 7
        v_mov_b32 v{VF0}, {OOB}
        v_cmp_eq_u32 vcc, 0, v8
        v_mov_b32 v31, 0
        s_mov_b32 s68, s70
        s_mov_b32 s69, s71
        v_cndmask_b32 v{VF0}, v{VF0}, v31, vcc
        s_waitcnt lgkmcnt(0)
        s_mul_i32 s26, s{S_E}, 0x9e3779b1
        s_add_u32 s26, s26, 0x7f4a7c15
        s_and_b32 s26, s26, 0xfffffff0
        s_or_b32 s24, s24, s26
        v_mov_b32 v31, s24
        s_waitcnt vmcnt(0)
        buffer_store_dword v31, v{VF0}, {WSRD}, s25 offen sc1
        """)
        MK2 = opt.get('mk2', 0)
        if MK2 == 3: skload()
        if MK2:
            E(f"""
            s_lshl_b32 s26, s{S_G}, 19
            s_lshl_b32 s27, s{S_M}, 7
            s_sub_u32 s26, s26, s27
            s_add_u32 s26, s26, {WS_KVT + 3968}
            """)
            for i in range(16):
                E(f"buffer_store_dwordx4 v[36:39], v33, {WSRD}, s26 offen sc1")
                if i < 15: E("s_add_u32 s26, s26, 32768")
    stamp_dup('e2')
    if MK2 != 3: skload()
    E(f"""
    L_w23:
    {srd_fix(68, 1835008)}
    s_mov_b32 s52, s72
    s_mov_b32 s53, s73
    {srd_fix(52, 1835008)}
    """)
    RAWPOS = opt.get('rawpos', 0)
    if RAWPOS == 0: prep_dma()
    E("L_join:")
    stamp('join')
    if opt.get('tw'):
        E(f"s_waitcnt vmcnt({opt['tw']})")
        stamp('tw')
    HEAD = 60
    PFL = opt.get('pfl', 15)
    E(f"""
    {srd_fix(S_WS, WS_SRD_BYTES)}
    s_lshr_b32 s{S_CP}, s{S_CB}, 1
    s_mov_b32 s76, s58
    s_mov_b32 s77, s59
    {srd_fix(76, 2097152)}
    s_lshl_b32 s24, s{S_CB}, 1
    s_load_dword s{S_D}, s[60:61], s24
    v_and_b32 v23, 31, v0
    v_lshrrev_b32 v24, 7, v0
    v_bfe_u32 v25, v0, 5, 2
    v_lshl_add_u32 v26, v25, 1, v23
    v_add_u32 v26, -30, v26
    v_add_u32 v27, s{S_CB}, v24
    v_lshlrev_b32 v27, 12, v27
    v_lshl_add_u32 v27, v26, 1, v27
    v_cmp_gt_i32 vcc, 0, v26
    v_mov_b32 v31, -16
    v_mul_u32_u24 v61, {HC_CH}, v24
    v_cndmask_b32 v27, v27, v31, vcc
    buffer_load_ushort v{HEAD}, v27, {HSRD}, 0 offen
    v_mul_u32_u24 v31, {HC_J}, v25
    v_add_u32 v61, v61, v31
    v_lshl_add_u32 v61, v23, 1, v61
    s_getpc_b64 s[32:33]
    L_pc:
    s_lshl_b32 s24, s{S_M}, 2
    s_add_u32 s24, s24, s{S_W}
    {'s_and_b32 s24, s24, 31' if PFL == 15 else 's_nop 0'}
    s_lshl_b32 s24, s24, {11 if PFL == 15 else 9}
    v_and_b32 v31, {PFL}, v8
    v_lshlrev_b32 v31, 7, v31
    v_add_u32 v31, s24, v31
    v_min_u32 v31, L_codeend-L_pc-64, v31
    global_load_dword v255, v31, s[32:33]
    """)
    stamp('i_a')
    E(f"""
    s_mov_b32 s{S_OUT}, s74
    s_mov_b32 s{S_OUT+1}, s75
    ; block-stage ids ; q fragment offsets: token = 128 c + 8 role + tok, channels 128 w + 64 c2 + 16 ks + 8 hi ..
    s_and_b32 s{S_ROLE}, s{S_M}, 15
    s_lshr_b32 s24, s{S_M}, 4
    s_lshl_b32 s24, s24, 3
    s_add_u32 s{S_C}, s{S_G}, s24
    s_lshr_b32 s{S_TH}, s{S_ROLE}, 3
    s_and_b32 s{S_J}, s{S_ROLE}, 7
    v_and_b32 v20, 7, v8                     ; tok
    v_bfe_u32 v21, v8, 3, 1                  ; hi
    v_lshrrev_b32 v22, 4, v8                 ; ks
    v_lshlrev_b32 v9, 10, v20
    v_lshl_add_u32 v9, v22, 5, v9
    v_lshl_add_u32 v9, v21, 4, v9
    s_lshl_b32 s24, s{S_C}, 7
    s_lshl_b32 s25, s{S_ROLE}, 3
    s_add_u32 s24, s24, s25
    s_lshl_b32 s24, s24, 10
    s_lshl_b32 s25, s{S_W}, 8
    s_add_u32 s{S_QO}, s24, s25
    {srd_fix(S_Q, 2097152)}
    """)
    ROTP = "" if not opt.get('rot', 0) else f"""s_lshr_b32 s96, s{S_C}, 3
    s_lshl_b32 s96, s96, 1
    s_lshr_b32 s97, s{S_W}, 1
    s_add_u32 s96, s96, s97
    s_sub_u32 s29, s29, s96
    s_and_b32 s29, s29, 3"""
    E(f"""
    s_getreg_b32 s{S_XCC}, hwreg(HW_REG_XCC_ID, 0, 4)
    s_lshl_b32 s{S_W1K}, s{S_W}, 13
    s_mul_i32 s{S_W1}, s{S_ROLE}, 229376
    s_add_u32 s{S_W1}, s{S_W1}, s{S_W1K}
    s_add_u32 s{S_W1}, s{S_W1}, {WS_W1F}
    s_and_b32 s{S_OUT+1}, s{S_OUT+1}, 0xffff
    s_mov_b32 s{S_OUT+2}, 2097152
    s_mov_b32 s{S_OUT+3}, 0x20000
    s_mov_b32 s{S_HI}, 0xffff0000
    s_mov_b32 s{S_LN2}, {LN2:#x}
    s_mov_b32 s{S_LN2+1}, {LN2:#x}
    s_mov_b32 s{S_EXP}, 1
    s_and_b32 s{S_XCC}, s{S_XCC}, 7
    v_add_u32 v{VA1}, 65536, v{VL16}
    v_add_u32 v{VA2}, 131072, v{VL16}
    v_lshlrev_b32 v{VP8}, 2, v20
    v_and_b32 v{VP16}, 15, v8
    v_lshlrev_b32 v{VP16}, 2, v{VP16}
    v_mov_b32 v{VF0}, {OOB}
    v_cmp_eq_u32 vcc, 0, v8
    v_mov_b32 v31, 0
    s_lshr_b32 s30, s{S_ROLE}, 2             ; tt_r
    s_and_b32 s24, s{S_ROLE}, 3
    v_cndmask_b32 v{VF0}, v{VF0}, v31, vcc
    s_lshl_b32 s25, s24, 7
    v_lshlrev_b32 v{VR}, 10, v22
    v_lshl_add_u32 v{VR}, v21, 9, v{VR}
    v_lshl_add_u32 v{VR}, v20, 4, v{VR}
    v_add_u32 v{VR}, s25, v{VR}
    ; stats addresses
    v_lshlrev_b32 v{VSTR}, 5, v20
    v_add_u32 v{VSTR}, {STATS}, v{VSTR}
    v_and_b32 v31, 1, v22
    v_lshl_add_u32 v{VSTW}, v31, 2, v{VSTR}
    s_lshl_b32 s25, s{S_W}, 3
    v_add_u32 v{VSTW}, s25, v{VSTW}
    v_lshlrev_b32 v10, 12, v22
    v_lshl_add_u32 v10, v21, 11, v10
    v_lshl_add_u32 v10, v20, 2, v10
    s_lshl_b32 s25, s{S_G}, {GSH}
    s_lshr_b32 s26, s{S_C}, 3
    s_lshl_b32 s26, s26, 17
    s_add_u32 s25, s25, s26
    s_lshl_b32 s26, s30, 15
    s_add_u32 s{S_R}, s25, s26
    s_lshl_b32 s26, s{S_W}, 13
    s_add_u32 s{S_R}, s{S_R}, s26
    s_lshl_b32 s26, s{S_W}, 15
    s_add_u32 s{S_XNL}, s25, s26             ; XB + w*32768
    s_lshl_b32 s26, s{S_C}, 2
    s_add_u32 s27, s26, s{S_W}
    s_mul_i32 s27, s27, 114688
    s_lshr_b32 s28, s{S_ROLE}, 2
    s_mul_i32 s28, s28, 28
    s_and_b32 s29, s{S_ROLE}, 3
    {ROTP}
    s_add_u32 s28, s28, s29
    s_lshl_b32 s28, s28, 10
    s_add_u32 s{S_HST}, s27, s28
    s_lshl_b32 s27, s{S_TH}, 1
    s_add_u32 s27, s27, s26
    s_mul_i32 s27, s27, 114688
    s_mul_i32 s28, s{S_W}, 28672
    s_add_u32 s{S_HLD}, s27, s28             ; (4c+2th)*114688 + 28w*1024
    s_and_b32 s26, s{S_W}, 1
    s_lshl_b32 s26, s26, 1
    s_lshr_b32 s27, s{S_W}, 1
    s_add_u32 s26, s26, s27
    s_lshl_b32 s27, s{S_J}, 2
    s_add_u32 s26, s26, s27                  ; kappa_o = 4j + 2(w&1) + (w>>1)
    s_lshl_b32 s27, s26, 10
    s_lshl_b32 s28, s{S_TH}, 16
    s_add_u32 s27, s27, s28
    s_add_u32 s{S_XML}, s27, s25
    ; flags
    s_lshl_b32 s25, s{S_C}, 8
    s_lshl_b32 s27, s30, 6
    s_add_u32 s27, s27, s25
    s_lshl_b32 s28, s24, 4
    s_add_u32 s27, s27, s28
    s_lshl_b32 s28, s{S_W}, 2
    s_add_u32 s{S_FXNS}, s27, s28
    s_lshl_b32 s27, s{S_W}, 6
    s_add_u32 s{S_FXNL}, s25, s27            ; c*256 + w*64
    s_lshl_b32 s25, s{S_C}, 10
    s_lshr_b32 s27, s{S_W}, 1
    s_lshl_b32 s27, s27, 7
    s_add_u32 s27, s27, s25
    s_lshl_b32 s29, s{S_ROLE}, 3
    s_add_u32 s27, s27, s29
    s_and_b32 s29, s{S_W}, 1
    s_lshl_b32 s29, s29, 2
    s_add_u32 s{S_FHS}, s27, s29             ; c*1024 + (w>>1)*128 + role*8 + (w&1)*4
    s_lshl_b32 s27, s{S_TH}, 7
    s_add_u32 s27, s27, s25
    s_lshl_b32 s29, s{S_W}, 5
    s_add_u32 s{S_FHL}, s27, s29             ; c*1024 + th*128 + w*32
    s_lshl_b32 s25, s{S_C}, 9
    s_lshl_b32 s27, s{S_TH}, 7
    s_add_u32 s27, s27, s25
    s_lshl_b32 s29, s{S_J}, 4
    s_add_u32 s27, s27, s29
    s_add_u32 s{S_FX2S}, s27, s28            ; c*512 + th*128 + j*16 + w*4
    s_lshr_b32 s27, s30, 1
    s_lshl_b32 s27, s27, 7
    s_add_u32 s27, s27, s25
    s_lshl_b32 s29, s{S_W}, 5
    s_add_u32 s{S_FX2L}, s27, s29            ; c*512 + (tt_r>>1)*128 + w*32
    s_add_u32 s{S_FXNS}, s{S_FXNS}, {FL_XN}
    s_add_u32 s{S_FXNL}, s{S_FXNL}, {FL_XN}
    s_add_u32 s{S_FHS}, s{S_FHS}, {FL_H}
    s_add_u32 s{S_FHL}, s{S_FHL}, {FL_H}
    s_add_u32 s{S_FX2S}, s{S_FX2S}, {FL_X2}
    s_add_u32 s{S_FX2L}, s{S_FX2L}, {FL_X2}
    s_mul_i32 s25, s{S_W}, 6144
    s_add_u32 s25, s25, {SCR}
    v_add_u32 v{VRR}, s25, v{VL16}
    """)
    for m in (1, 2, 3):
        E(f"""
        s_xor_b32 s25, s{S_W}, {m}
        s_mul_i32 s25, s25, 6144
        s_add_u32 s25, s25, {SCR + (m-1)*2048}
        v_add_u32 v{VRW[m-1]}, s25, v{VL16}
        """)
    E(f"""
    s_lshl_b32 s{S_WDB}, s{S_J}, 2
    s_add_u32 s{S_WDB}, s{S_WDB}, s{S_W}
    s_mul_i32 s{S_WDB}, s{S_WDB}, 57344
    s_add_u32 s{S_WDB}, s{S_WDB}, {WS_WDF}
    s_lshr_b32 s25, s{S_W}, 1
    s_lshl_b32 s25, s25, 8
    v_xor_b32 v31, s25, v{VL16}
    s_and_b32 s25, s{S_W}, 1
    s_lshl_b32 s25, s25, 10
    v_add_u32 v{VWD}, s25, v31
    s_xor_b32 s25, s25, 1024
    v_add_u32 v{VWD+1}, s25, v31
    """)
    stamp('pre')
    E(f"""
    s_waitcnt lgkmcnt(0)
    s_mul_i32 s{S_N}, s{S_E}, 0x9e3779b1
    s_add_u32 s{S_N}, s{S_N}, 0x7f4a7c15
    s_and_b32 s{S_N}, s{S_N}, 0xfffffff0
    s_or_b32 s{S_XCC}, s{S_XCC}, s{S_N}
    v_mov_b32 v{VONE}, s{S_N}
    ; flag slot of this work-group in the [64][4] arrays
    s_and_b32 s86, s2, 63
    s_lshl_b32 s86, s86, 7
    s_lshr_b32 s24, s2, 6
    s_lshl_b32 s24, s24, 2
    s_add_u32 s86, s86, s24
    """)
    if opt.get('ftouch', 0):
        E(f"""
        s_lshl_b32 s24, s{S_ROLE}, 1
        v_add_u32 v20, s24, v8
        v_min_u32 v20, 23, v20
        v_lshrrev_b32 v21, 1, v20
        v_and_b32 v22, 1, v20
        v_lshlrev_b32 v21, 12, v21
        v_lshl_add_u32 v21, v22, 7, v21
        s_lshl_b32 s24, s{S_C}, 8
        s_add_u32 s24, s24, {FL_XN}
        v_add_u32 v21, s24, v21
        v_subrev_u32 v22, 4, v20
        v_lshrrev_b32 v23, 3, v22
        v_and_b32 v22, 7, v22
        v_lshlrev_b32 v23, 14, v23
        v_lshl_add_u32 v23, v22, 7, v23
        s_lshl_b32 s24, s{S_C}, 10
        s_add_u32 s24, s24, {FL_H}
        v_add_u32 v23, s24, v23
        v_cmp_lt_u32 vcc, 3, v20
        v_cndmask_b32 v21, v21, v23, vcc
        v_subrev_u32 v22, 20, v20
        v_lshlrev_b32 v22, 7, v22
        s_lshl_b32 s24, s{S_C}, 9
        s_add_u32 s24, s24, {FL_X2}
        v_add_u32 v22, s24, v22                  ; X2 + c*512 + line*128
        v_cmp_lt_u32 vcc, 19, v20
        v_cndmask_b32 v21, v21, v22, vcc
        v_cmp_lt_u32 vcc, 1, v8
        v_mov_b32 v22, {OOB}
        v_cndmask_b32 v{VFT}, v21, v22, vcc
        """)
    stamp('setup')

    VA_, VB_ = 62, 63
    VXW, VKVW, VYS, VT0, VS1P, VEP = 22, 248, 249, 250, 253, 254
    VTR, W1D, WDD, VYP, VS1F = 226, 227, 228, 229, 230
    S_XL = 72
    S_W1DST, S_WDDST, S_YP, S_S1F = 64, 65, 66, 67
    E(f"""
    ; weight images (waves 2 and 3): raw 8-row blocks go to LDS, come back transposed and are stored as MFMA fragments
    s_cmp_eq_u32 s{S_W}, 3
    s_cselect_b32 s28, 256, 0
    s_cselect_b32 s29, 4, 0                  ; first Wd block of this wave
    s_lshr_b32 s24, s2, 2                    ; kg
    s_and_b32 s25, s2, 3                     ; fq
    v_bfe_u32 v20, v8, 2, 2
    v_lshlrev_b32 v{VTR}, 7, v20
    v_lshrrev_b32 v21, 4, v8                 ; g
    v_lshl_add_u32 v{VTR}, v21, 5, v{VTR}
    v_and_b32 v20, 3, v8
    v_lshl_add_u32 v{VTR}, v20, 3, v{VTR}
    v_add_u32 v{VTR}, s{S_PST}, v{VTR}
    v_and_b32 v20, 3, v8
    v_bfe_u32 v23, v8, 2, 1
    v_lshl_or_b32 v20, v23, 3, v20
    v_bfe_u32 v23, v8, 3, 1
    v_lshl_or_b32 v20, v23, 2, v20
    v_lshlrev_b32 v20, 4, v20                ; row * 16
    v_lshl_add_u32 v{W1D}, v21, 15, v20      ; + g * 32768
    s_mul_i32 s26, s25, {28*32768}
    s_lshr_b32 s27, s24, 1
    s_lshl_b32 s27, s27, 10
    s_add_u32 s26, s26, s27
    s_and_b32 s27, s24, 1
    s_lshl_b32 s27, s27, 9
    s_add_u32 s26, s26, s27
    s_add_u32 s26, s26, s28
    s_add_u32 s{S_W1DST}, s26, {WS_W1F}
    v_lshrrev_b32 v23, 1, v21
    v_lshl_add_u32 v{WDD}, v23, 10, v20      ; + dt * 1024
    v_and_b32 v23, 1, v21
    v_lshl_add_u32 v{WDD}, v23, 8, v{WDD}    ; + 16 rows
    s_lshr_b32 s24, s2, 1                    ; kf
    s_mul_i32 s25, s24, 2341
    s_lshr_b32 s25, s25, 16                  ; kf / 28
    s_mul_i32 s26, s25, 28
    s_sub_u32 s26, s24, s26
    s_mul_i32 s25, s25, 57344
    s_lshl_b32 s26, s26, 11
    s_add_u32 s25, s25, s26
    s_and_b32 s26, s2, 1
    s_lshl_b32 s26, s26, 9
    s_add_u32 s25, s25, s26
    s_mul_i32 s26, s29, 229376
    s_add_u32 s25, s25, s26
    s_add_u32 s25, s25, {WS_WDF}
    s_cmp_ge_u32 s2, 224
    s_cselect_b32 s{S_WDDST}, 0xf0000000, s25
    ; markers of the Y rows: waves 2 and 3 take eight clusters each
    v_lshrrev_b32 v{VYP}, 5, v8
    v_and_b32 v20, 31, v8
    v_lshlrev_b32 v{VYP}, 17, v{VYP}
    v_lshl_add_u32 v{VYP}, v20, 4, v{VYP}
    s_lshl_b32 s24, s{S_CP}, 9
    s_lshl_b32 s25, s29, 18
    s_add_u32 s24, s24, s25
    s_add_u32 s{S_YP}, s24, {WS_Y}
    ; images-complete flag: index 2 b + (w & 1) -> line index & 127, dword index >> 7
    s_lshl_b32 s24, s2, 1
    s_and_b32 s25, s{S_W}, 1
    s_add_u32 s24, s24, s25
    s_and_b32 s25, s24, 127
    s_lshl_b32 s25, s25, 7
    s_lshr_b32 s24, s24, 7
    s_lshl_b32 s24, s24, 2
    s_add_u32 s24, s24, s25
    s_add_u32 s{S_S1F}, s24, {FL_S1}
    s_cmp_ge_u32 s{S_W}, 2
    s_cselect_b32 s24, 0, {OOB}
    v_or_b32 v{VS1F}, s24, v{VF0}
    s_lshl_b32 s24, s{S_W}, 12
    s_add_u32 s24, s24, {FL_S1}
    v_and_b32 v20, 31, v8
    v_lshlrev_b32 v{VS1P}, 7, v20
    v_add_u32 v{VS1P}, s24, v{VS1P}
    v_and_b32 v20, 15, v8                    ; r
    v_lshrrev_b32 v21, 4, v8                 ; g
    v_and_b32 v22, 3, v8                     ; j'
    v_bfe_u32 v23, v8, 2, 2                  ; q
    s_lshr_b32 s24, s{S_W}, 1                ; ch
    s_and_b32 s25, s{S_W}, 1
    s_lshl_b32 s25, s25, 8
    s_mul_i32 s26, s24, {HC_CH}
    s_add_u32 s26, s26, s25
    v_mul_u32_u24 v24, {HC_J}, v22
    v_add_u32 v25, v21, v23
    v_lshl_add_u32 v24, v25, 4, v24
    v_add_u32 v{VA_}, s26, v24
    s_mul_i32 s26, s24, {XR_CH}
    s_add_u32 s26, s26, s25
    s_add_u32 s26, s26, {XRB + 16*252 - 3584}
    v_and_b32 v22, 7, v8                     ; n'
    v_bfe_u32 v23, v8, 3, 1                  ; par'
    v_mul_u32_u24 v24, {XR_P}, v23
    v_lshlrev_b32 v25, 6, v22
    v_sub_u32 v24, v24, v25
    v_lshl_add_u32 v24, v21, 4, v24
    v_add_u32 v{VB_}, s26, v24
    v_lshrrev_b32 v20, 6, v0
    v_and_b32 v20, 1, v20
    v_mul_u32_u24 v20, {XR_CH}, v20
    v_bfe_u32 v21, v0, 5, 1
    v_mul_u32_u24 v21, {XR_P}, v21
    v_add_u32 v20, v20, v21
    v_and_b32 v21, 31, v0
    v_lshl_add_u32 v20, v21, 4, v20
    v_add_u32 v20, {XRB + 4096}, v20
    v_mov_b32 v24, 0
    v_mov_b32 v25, 0
    v_mov_b32 v26, 0
    v_mov_b32 v27, 0
    """)
    E.ds("ds_write_b128 v20, v[24:27]", 'pad')
    E(f"""
    ; kv stage: thread = (channel pair cp = 8 w + (lane >> 3), token group tg = lane & 7) ; stores at cp*16384 + 4080 - 128 m - 16 tg
    v_lshrrev_b32 v20, 3, v0                 ; cp
    v_and_b32 v21, 7, v8                     ; tg
    v_lshlrev_b32 v53, {14 - P1}, v20
    v_lshlrev_b32 v23, 4, v21
    v_sub_u32 v53, v53, v23
    s_lshl_b32 s24, s{S_M}, 7
    s_sub_u32 s24, 4080, s24
    v_add_u32 v53, s24, v53
    ; staging tile reads
    v_mul_u32_u24 v54, {TBS}, v21
    v_lshl_add_u32 v54, v20, 2, v54
    v_add_u32 v55, {VT}, v54
    v_add_u32 v54, {KT}, v54
    ; group flag poll: line 8 l + gamma
    v_and_b32 v30, 7, v8
    v_lshlrev_b32 v30, 10, v30
    s_lshl_b32 s24, s{S_G}, 7
    s_add_u32 s24, s24, {FL_S0}
    v_add_u32 v30, s24, v30
    s_and_b32 s25, s{S_W}, 1
    s_mul_i32 s24, s25, {XR_CH}
    s_add_u32 s24, s24, {XRB}
    v_add_u32 v{VXW}, s24, v{VL16}
    s_add_u32 s24, s{S_CB}, s25
    s_lshl_b32 s24, s24, {13 - P1}
    s_add_u32 s{S_XL}, s24, {WS_KVT}
    s_add_u32 s{S_XL+1}, s24, {WS_KVT + 4096}
    v_and_b32 v20, 7, v8                     ; n'
    v_bfe_u32 v21, v8, 3, 1                  ; par'
    v_lshrrev_b32 v23, 4, v8                 ; g
    v_lshlrev_b32 v31, 6, v20
    v_lshl_add_u32 v31, v23, 4, v31          ; 64 n' + 16 g
    v_mul_u32_u24 v{VKVW}, {XR_P}, v21
    v_sub_u32 v{VKVW}, v{VKVW}, v31
    s_lshl_b32 s24, s{S_W}, 10
    s_sub_u32 s24, {XRB + 4080 - 512}, s24
    v_add_u32 v{VKVW}, s24, v{VKVW}
    v_lshrrev_b32 v31, 2, v20
    v_lshlrev_b32 v{VYS}, 17, v31
    v_and_b32 v31, 3, v20
    v_lshl_add_u32 v{VYS}, v31, 7, v{VYS}
    v_lshl_add_u32 v{VYS}, v23, 5, v{VYS}
    v_lshl_add_u32 v{VYS}, v21, 4, v{VYS}    ; (n'>>2)*131072 + (n'&3)*128 + g*32 + par'*16
    s_lshl_b32 s24, s{S_CP}, 9
    s_lshl_b32 s25, s{S_W}, 19
    s_add_u32 s24, s24, s25
    s_add_u32 s58, s24, {WS_Y}               ; + cp*512 + 2w*262144
    s_lshl_b32 s24, s{S_C}, 17
    s_lshl_b32 s25, s{S_ROLE}, 5
    s_add_u32 s24, s24, s25
    s_lshl_b32 s25, s{S_W}, 15
    s_add_u32 s24, s24, s25
    s_add_u32 s59, s24, {WS_Y}               ; + c*131072 + role*32 + 64w*512
    s_lshl_b32 s60, s{S_D}, 16
    s_and_b32 s61, s{S_D}, 0xffff0000
    v_mov_b32 v{VT0}, {OOB}
    v_mov_b32 v31, 0
    v_cmp_eq_u32 vcc, 0, v0
    s_lshl_b32 s24, s{S_G}, {GSH}
    s_add_u32 s80, s24, {WS_KVT}
    v_cndmask_b32 v{VT0}, v{VT0}, v31, vcc
    s_cmp_eq_u32 s2, 0
    s_cselect_b32 s24, {FL_EPOCH}, {OOB}
    v_add_u32 v{VEP}, s24, v{VT0}
    v_or_b32 v{VEP}, v{VEP}, v{VT0}
    s_add_u32 s81, s80, 4096
    s_add_u32 s82, s80, 8192
    s_add_u32 s83, s80, 12288
    """)
    stamp('setup2')
    def s0publish(lbl):
        E(f"""
        s_cmp_lg_u32 s{S_W}, 0
        s_cbranch_scc1 {lbl}
        v_mov_b32 v31, s{S_XCC}
        s_add_u32 s25, s86, {FL_S0}
        buffer_store_dword v31, v{VF0}, {WSRD}, s25 offen sc1
        {lbl}:
        """)
    if MKALL and MKPOS == 0:
        E(f"""
        s_cmp_ge_u32 s{S_W}, 2
        s_cbranch_scc1 L_bm2
        s_waitcnt vmcnt({6 + 1 + 4*len(HEARLY) + 2})
        s_branch L_bmx
        L_bm2:
        s_cmp_eq_u32 s{S_W}, 3
        s_cbranch_scc1 L_bm3
        s_waitcnt vmcnt({9 + (11 if RAWPOS == 0 else 0)})
        s_branch L_bmx
        L_bm3:
        s_waitcnt vmcnt({3 + (11 if RAWPOS == 0 else 0)})
        L_bmx:
        s_barrier
        """)
        s0publish('L_bmy')
        stamp('bm')
    if MKPOS == 1:
        markers4(fix=False)
        stamp('bm')
    if opt.get('ftouch', 0) == 1:
        l_ = E.label('L_ft')
        E(f"s_cmp_lg_u32 s{S_W}, 0\ns_cbranch_scc1 {l_}\nbuffer_load_dword v{VFT}, v{VFT}, {WSRD}, 0 offen\n{l_}:")
    FTW = FTW2 = ""
    NX0 = (1 if opt.get('ftouch', 0) == 1 else 0) + (1 if MKALL and MKPOS == 0 else 0)
    NY01 = (4*len(HEARLY) + 2) if MKPOS != 1 else 0
    if NX0:
        FTW = f"s_cmp_eq_u32 s{S_W}, 0\ns_cbranch_scc1 L_g2c"
        FTW2 = f"L_g2c:\ns_waitcnt vmcnt({NY01 + NX0})\ns_branch L_g2x"
    E(f"""
    s_cmp_ge_u32 s{S_W}, 2
    s_cbranch_scc1 L_g2b
    {FTW}
    s_waitcnt vmcnt({NY01})
    s_branch L_g2x
    {FTW2}
    L_g2b:
    """)
    def kvtouch():
        E(f"""
        v_lshlrev_b32 v{VFT+1}, 12, v8
        s_lshl_b32 s26, s{S_G}, 19
        s_lshl_b32 s27, s{S_M}, 7
        s_sub_u32 s26, s26, s27
        s_add_u32 s26, s26, {WS_KVT + 3968}
        s_add_u32 s27, s26, 262144
        buffer_load_dword v{VFT+2}, v{VFT+1}, {WSRD}, s26 offen
        buffer_load_dword v{VFT+3}, v{VFT+1}, {WSRD}, s27 offen
        """)
    MKT = opt.get('mkt', 0)
    if RAWPOS == 1:
        E(srd_fix(68, 1835008))
        if MKT == 2:
            E(f"s_cmp_lg_u32 s{S_W}, 3\ns_cbranch_scc1 L_g2e")
            kvtouch()
            E("L_g2e:")
        prep_dma()
        if MKT == 1:
            E(f"s_cmp_lg_u32 s{S_W}, 3\ns_cbranch_scc1 L_g2d")
            kvtouch()
            E("s_waitcnt vmcnt(13)\ns_branch L_g2x\nL_g2d:")
        if MKT == 2:
            E(f"s_cmp_lg_u32 s{S_W}, 3\ns_cbranch_scc1 L_g2d")
            E("s_waitcnt vmcnt(13)\ns_branch L_g2x\nL_g2d:")
    E(f"""
    s_waitcnt vmcnt({13 if RAWPOS == 0 else 11 if RAWPOS == 1 else 2 if MKPOS != 1 else 0})
    L_g2x:
    """)
    stamp('i_b')
    if MKPOS == 2: markers4(fix=False)
    E.vmq = []
    E.wait_ds('pad')
    E("s_barrier")
    if MKPOS == 1: s0publish('L_bmy')
    stamp('b0')
    S0R = 24
    def s0poll(): E.vm(f"buffer_load_dwordx4 v[{S0R}:{S0R+3}], v30, {WSRD}, 0 offen sc1", 's0')
    S0AT = opt.get('s0at', 1)
    if S0AT == 0: s0poll()
    KR, VRW_ = 32, 44
    for x in range(0, 8, 2): E.ds(f"ds_read2_b32 v[{KR+x}:{KR+x+1}], v54 offset0:{32*x} offset1:{32*(x+1)}", 'kv')
    E(f"v_add_u32 v20, {TBS}, v54\nv_add_u32 v21, {TBS}, v55")
    for x in range(8, 12, 2): E.ds(f"ds_read2_b32 v[{KR+x}:{KR+x+1}], v20 offset0:{32*(x-8)} offset1:{32*(x-7)}", 'kv')
    for x in range(0, 8, 2): E.ds(f"ds_read2_b32 v[{VRW_+x}:{VRW_+x+1}], v55 offset0:{32*x} offset1:{32*(x+1)}", 'kv')
    E.ds(f"ds_read_b32 v{VRW_+8}, v21", 'kv')
    if RAWPOS == 2:
        E(f"s_cmp_lt_u32 s{S_W}, 2\ns_cbranch_scc1 L_rw2")
        E(srd_fix(68, 1835008))
        prep_dma()
        E("L_rw2:")
    E(f"""
    v_lshlrev_b32 v136, 16, v{SK}
    v_lshlrev_b32 v137, 16, v{SK+2}
    v_and_b32 v138, s{S_HI}, v{SK}
    v_and_b32 v139, s{S_HI}, v{SK+2}
    v_lshlrev_b32 v140, 16, v{SK+1}
    v_lshlrev_b32 v141, 16, v{SK+3}
    v_and_b32 v142, s{S_HI}, v{SK+1}
    v_and_b32 v143, s{S_HI}, v{SK+3}
    """)
    E.wait_ds('kv')
    for i in range(12): E(f"v_lshlrev_b32 v{96+2*i}, 16, v{KR+i}\nv_and_b32 v{97+2*i}, s{S_HI}, v{KR+i}")
    if S0AT == 1: s0poll()
    for i in range(9): E(f"v_lshlrev_b32 v{164+2*i}, 16, v{VRW_+i}\nv_and_b32 v{165+2*i}, s{S_HI}, v{VRW_+i}")
    def K(x): return f"v[{96+2*x}:{97+2*x}]"
    def KV(i): return 144 + 2*i
    KVI = range(1, 9) if P1 else range(9)
    for i in KVI: E(f"v_pk_mul_f32 v[{KV(i)}:{KV(i)+1}], v[136:137], {K(i+3)}")
    if S0AT == 2: s0poll()
    for tap in (1, 2, 3):
        for i in KVI: E(f"v_pk_fma_f32 v[{KV(i)}:{KV(i)+1}], v[{136+2*tap}:{137+2*tap}], {K(i+3-tap)}, v[{KV(i)}:{KV(i)+1}]")
    if S0AT == 3: s0poll()
    for i in KVI: E(f"v_pk_mul_f32 v[{KV(i)}:{KV(i)+1}], v[{KV(i)}:{KV(i)+1}], v[{164+2*i}:{165+2*i}]")
    if MKPOS == 2:
        assert S0AT == 4
        if RAWPOS == 2 and not MKW:
            E(f"s_cmp_ge_u32 s{S_W}, 2\ns_cbranch_scc1 L_mq2\ns_waitcnt vmcnt(0)\ns_branch L_mq3\nL_mq2:\ns_waitcnt vmcnt(11)\nL_mq3:")
        elif MKW:
            E(f"s_cmp_ge_u32 s{S_W}, 2\ns_cbranch_scc1 L_mq2\ns_waitcnt vmcnt(0)\nL_mq2:")
        else: E("s_waitcnt vmcnt(0)")
        stamp('mq')
        E("s_barrier")
        s0publish('L_bmy')
        stamp('bm')
    if S0AT == 4: s0poll()
    for c in range(2):
        for par in range(1 if P1 else 2):
            b = KR + 8*c + 4*par
            for d in range(4): E(f"v_cvt_pk_bf16_f32 v{b+d}, v{KV(8-par-2*d)+c}, v{KV(7-par-2*d)+c}")
            E.vm(f"buffer_store_dwordx4 v[{b}:{b+3}], v53, {WSRD}, s{80 + (c if P1 else 2*c + par)} offen" + FL('kv', 0), 'kvst')
    stamp('kvst')

    X, Y = 128, 136
    XF, YF, T = 144, 160, 176
    def stats(src, rnd, between=None, scale=False):
        P, Q = 192, 194
        E(f"v_pk_add_f32 v[{P}:{P+1}], v[{src}:{src+1}], v[{src+2}:{src+3}]")
        E(f"v_pk_mul_f32 v[{Q}:{Q+1}], v[{src}:{src+1}], v[{src}:{src+1}]")
        for i in range(1, 8):
            E(f"v_pk_fma_f32 v[{Q}:{Q+1}], v[{src+2*i}:{src+2*i+1}], v[{src+2*i}:{src+2*i+1}], v[{Q}:{Q+1}]")
            if i >= 2: E(f"v_pk_add_f32 v[{P}:{P+1}], v[{P}:{P+1}], v[{src+2*i}:{src+2*i+1}]")
        E(f"""
        v_add_f32 v{P}, v{P}, v{P+1}
        v_add_f32 v{Q}, v{Q}, v{Q+1}
        v_permlane16_swap_b32 v{P}, v{Q}
        v_add_f32 v{P}, v{P}, v{Q}
        v_add_f32_dpp v{P}, v{P}, v{P} row_ror:8 row_mask:0xf bank_mask:0xf
        v_mov_b32 v{P+1}, v{P}
        v_permlane32_swap_b32 v{P}, v{P+1}
        v_add_f32 v{P}, v{P}, v{P+1}
        s_mov_b64 exec, 0x00ff00ff
        """)
        E.ds(f"ds_write_b32 v{VSTW}, v{P} offset:{rnd*256}", 'stw')
        E("s_mov_b64 exec, -1")
        E.wait_ds('stw')
        E("s_barrier")
        E.ds(f"ds_read_b128 v[196:199], v{VSTR} offset:{rnd*256}", 'str')
        E.ds(f"ds_read_b128 v[200:203], v{VSTR} offset:{rnd*256+16}", 'str')
        if between: between()
        E.wait_ds('str')
        E(f"""
        v_pk_add_f32 v[196:197], v[196:197], v[198:199]
        v_pk_add_f32 v[200:201], v[200:201], v[202:203]
        v_pk_add_f32 v[196:197], v[196:197], v[200:201]
        v_mul_f32 v196, 0x3b000000, v196
        v_mul_f32 v197, 0x3b000000, v197
        v_fma_f32 v197, -v196, v196, v197
        v_max_f32 v197, 0, v197
        v_add_f32 v197, 0x3727c5ac, v197
        v_rsq_f32 v204, v197
        s_nop 0
        """)
        if scale: E(f"v_mul_f32 v204, {LOG2E:#x}, v204")
        E("v_mul_f32_e64 v206, -v196, v204")
    def norm(dst, src):
        for i in range(8):
            E(f"v_pk_fma_f32 v[{dst+2*i}:{dst+2*i+1}], v[{src+2*i}:{src+2*i+1}], v[204:205], v[206:207] op_sel_hi:[1,0,0]")
    def unpack(dst, src, n):
        for i in range(n):
            E(f"v_lshlrev_b32 v{dst+2*i}, 16, v{src+i}")
            E(f"v_and_b32 v{dst+2*i+1}, s{S_HI}, v{src+i}")
    S_XMD = 64
    def R_pre(L, between=None):
        unpack(XF, X, 8)
        if P1 and L == 1:
            for i in range(8): E(f"v_pk_add_f32 v[{XF+2*i}:{XF+2*i+1}], v[{XF+2*i}:{XF+2*i+1}], v[{T+2*i}:{T+2*i+1}]")
        stats(XF, 0, between)
        norm(T, XF)
        stamp(f'R{L}s1')
    def R_post(L, early=None, late=None):
        unpack(YF, Y, 8)
        for i in range(8):
            E(f"v_pk_fma_f32 v[{XF+2*i}:{XF+2*i+1}], v[{T+2*i}:{T+2*i+1}], v[{YF+2*i}:{YF+2*i+1}], v[{XF+2*i}:{XF+2*i+1}]")
        M = 20 if (P1 and L == 0) else 208
        for i in range(8): E(f"v_cvt_pk_bf16_f32 v{M+i}, v{XF+2*i}, v{XF+2*i+1}")
        def xmst():
            if P1 and L == 0: return
            if P1: E(f"s_add_u32 s{S_T0}, s{S_R}, s{S_XMD}\ns_add_u32 s{S_T1}, s{S_T0}, 4096")
            else: sadd(S_T0, S_R, WS_XM); sadd(S_T1, S_R, WS_XM + 4096)
            E.vm(f"buffer_store_dwordx4 v[{M}:{M+3}], v{VR}, {WSRD}, s{S_T0} offen" + FL('xm', L), 'rst')
            E.vm(f"buffer_store_dwordx4 v[{M+4}:{M+7}], v{VR}, {WSRD}, s{S_T1} offen" + FL('xm', L), 'rst')
        def behind():
            xmst()
            E.vm(f"buffer_store_dword v{VONE}, v{VEP}, {WSRD}, 0 offen sc1", 'ep')
            if late: late()
        if L == 1: xmst()
        if early: early()
        stats(XF, 1, between=behind if L == 0 else late, scale=True)
        norm(T, XF)
        N = 216
        for i in range(8): E(f"v_cvt_pk_bf16_f32 v{N+i}, v{T+2*i}, v{T+2*i+1}")
        sadd(S_T0, S_R, WS_XN); sadd(S_T1, S_R, WS_XN + 4096)
        E.vm(f"buffer_store_dwordx4 v[{N}:{N+3}], v{VR}, {WSRD}, s{S_T0} offen" + FL('xn', L), 'rst')
        E.vm(f"buffer_store_dwordx4 v[{N+4}:{N+7}], v{VR}, {WSRD}, s{S_T1} offen" + FL('xn', L), 'rst')
        stamp(f'R{L}st')
    def Rpub(L):
        publish(S_FXNS, 0, 'rst')
        E("s_barrier")
        stamp(f'R{L}pub')

    ORDER = {}
    def g2_order():
        stA = [0, 1, 2]; stB = [3, 4, 5]; stC = [6]
        def blocks(tt, ps): return [(tt, rho, p) for p in ps for rho in range(4)]
        b1 = blocks(1, stB); nb1 = opt.get('b1_first', 4)
        return blocks(0, stA) + blocks(1, stA) + blocks(0, stB) + b1[:nb1] + blocks(0, stC) + b1[nb1:] + blocks(1, stC)
    def wd_kseq(L):
        kseq = []
        for (tt, rho, p) in g2_order():
            kp = rho*7 + LAYERS[L]['tau'][p]
            if kp not in kseq: kseq.append(kp)
        if opt.get('rot', 0): kseq.sort(key=lambda kp: kp // 7)
        return kseq
    def make_bulk():
        c = LAYERS[0]; ops = []
        ks = wd_kseq(0); npre = opt.get('wd_pre', 0)
        for p in range(3): ops += dma_stream(c['tau'][p], c['slot'][p], f'w1_{p}')
        ops += wd_stream(ks[:npre])
        ops += dma_stream(c['tau'][3], c['slot'][3], 'w1_3')
        if not opt.get('nowd', 0): ops += wd_stream(ks[npre:])
        return Bulk(ops)
    BK = {}

    def layer(L):
        cfg = LAYERS[L]; tau = cfg['tau']; slot = cfg['slot']
        O = lambda k, d: opt.get(f'{k}{L}', opt.get(k, d))
        G2 = 224; NS = 336; lastslot = NS - 1
        BUD = O('bud', 24); VGAP = O('vgap', 2)
        F = {}; cost = [0]*(NS + 64); vslots = set()
        for i in range(G2):
            if i + LA < G2: cost[i] += 4
            if i % 2 == 0: cost[i] += 4
            if i < 96 and i % 3 == 0 and i > 0: cost[i] += 4
        for i in range(G2, NS, 2): cost[i] += 4
        RANK = {'m': 0, 's': 1, 'v': 2}
        def at(i, f, c=4, k='v'): F.setdefault(i, ([], [], []))[RANK[k]].append(f); cost[i] += c
        last = {'k': 'm', 't': -1}
        def put(t, f, c=4, k='v', vm=False, chain=False):
            if vm: k = 'm'
            if chain:
                t = max(t, last['t'] + (1 if RANK[k] < RANK[last['k']] else 0))
            while cost[t] + c > BUD or (vm and any((t + d) in vslots for d in range(-VGAP + 1, VGAP))): t += 1
            if vm: vslots.add(t)
            at(t, f, c, k); last['k'] = k; last['t'] = t
            return t
        def stream(t, ops):
            first = True
            for (c, vm, f) in ops:
                t = put(t, f, c, 's', vm, chain=not first); first = False
            return t
        def T_(s): return lambda: E(s)
        def barrier(): E("s_barrier")
        poll_issue(VP16, S_FXNL, 0, f'pxn{L}')
        if L == 0: BK['b'].emit(opt.get('bk_pub', 0))
        poll_check(VP16, S_FXNL, 0, f'pxn{L}')
        stamp(f'L{L}xnok')
        def xops(k):
            ops = []
            if k % 4 == 0: ops.append((4, False, lambda: sadd(S_XA, S_XNL, WS_XN + (k >> 2)*4096)))
            off = (k & 3)*1024
            ops.append((4, True, lambda: E.vm(f"buffer_load_dwordx4 v[{XR+4*k}:{XR+4*k+3}], v{VL16}, {WSRD}, s{S_XA} offen" + (f" offset:{off}" if off else "") + LSC, f'x{L}_{k}')))
            return ops
        n_up = O('nup', 5)
        for k in range(n_up):
            for (_, _, f) in xops(k): f()
        seq = []
        for k in range(32):
            for p in range(3): seq.append(('g1', p, k))
        for p in range(3, 7):
            for k in range(32): seq.append(('g1', p, k))
        accp = [0, 1, 2, 3, 0, 1, 2]
        def a_addr(p, k):
            s = slot[p]
            base = [VL16, VL16, VA1, VA1, VA2][s]
            off = (s & 1)*SLOT + k*1024 if s < 4 else k*1024
            return base, off
        def rd(i):
            _, p, k = seq[i]
            b, off = a_addr(p, k)
            r = RING + 4*(i % 8)
            E.ds(f"ds_read_b128 v[{r}:{r+3}], v{b} offset:{off}", f'a{L}_{i}')
        order = g2_order()
        assert len(order) == 56
        last0 = max(n for n, b in enumerate(order) if b[0] == 0)
        acc2 = {0: [ACC[0], ACC[1]], 1: [ACC[3], ACC[2]]}
        NH = 37
        def hreg(n):
            q = n % NH
            return ar(A_H + 4*q, 4) if q < 5 else vr(XR + 4*(q - 5), 4)
        def epilogue(p, o):
            c = ACC[accp[p]]
            for e in range(8):
                at(o + e, T_(f"v_exp_f32_e64 v{c+e}, -v{c+e}"), 8)
                at(o + e + 1, T_(f"v_add_f32 v{c+e}, 1.0, v{c+e}"))
                at(o + 8 + e, T_(f"v_rcp_f32 v{c+e}, v{c+e}"), 8)
                at(o + 9 + e, T_(f"v_mul_f32 v{c+e}, v{c+e}, v{c+8+e}"))
        def epilogue2(p, o):
            c = ACC[accp[p]]
            t = 0
            for k in range(4):
                t = put(max(t, o + 11 + 2*k), T_(f"v_cvt_pk_bf16_f32 v{c+8+k}, v{c+2*k}, v{c+2*k+1}"))
            stage = 'A' if p < 3 else ('B' if p < 6 else 'C')
            put(o + 10, T_(f"s_add_u32 s{S_HS[p & 1]}, s{S_HST}, {WS_H + tau[p]*4096}"), k='s')
            return put(t + 1, lambda: E.vm(f"buffer_store_dwordx4 v[{c+8}:{c+11}], v{VL16}, {WSRD}, s{S_HS[p & 1]} offen" + FL('h', L), f'h{stage}{L}'), vm=True)
        eo = [99, 115, 131, 147, 163, 196, 228]
        for p in range(7): epilogue(p, eo[p])
        est = [epilogue2(p, eo[p]) for p in range(7)]
        assert est[0] < 126 and est[1] < 158 and est[2] < 190 and est[5] < 222 and est[6] < 248, est
        at(121, lambda: (E.wait_vm(f'w4{L}'), barrier()), 8, 's')
        at(96, barrier, 4, 's')
        at(153, lambda: (E.wait_vm(f'w5{L}'), barrier()), 8, 's')
        at(185, lambda: (E.wait_vm(f'w6{L}'), barrier()), 8, 's')
        t = 0
        for k in range(n_up, 32):
            t = stream(max(t + (1 if k % 4 == 0 and k > n_up else 0), O('xsp', 2)*(k - n_up)), xops(k))
        t = stream(t + 1, dma_stream(tau[4], slot[4], f'w4{L}'))
        w4end = t
        t = stream(97, dma_stream(tau[5], slot[5], f'w5{L}'))
        w5end = t
        t = stream(t + 1, dma_stream(tau[6], slot[6], f'w6{L}'))
        w6end = t
        assert w4end < 108 and w5end < 140 and w6end < 172, (w4end, w5end, w6end)
        if L == 0 and opt.get('htg'):
            def ht_ops(p0, np_):
                ops = [(4, False, lambda x=x: E(x)) for x in (f"v_lshrrev_b32 v30, 3, v8", f"v_min_u32 v30, {np_-1}, v30", f"v_lshlrev_b32 v30, 12, v30", f"v_and_b32 v31, 7, v8", f"v_lshl_add_u32 v30, v31, 7, v30")]
                return ops + [(4, False, lambda: E(f"s_add_u32 s{S_T2}, s{S_HST}, {WS_H + tau[p0]*4096}")),
                        (4, True, lambda: E.vm(f"buffer_load_dword v31, v30, {WSRD}, s{S_T2} offen", 'ht'))]
            assert tau == list(range(7))
            m = opt['htg']
            if m == 1:
                stream(w4end - 6, ht_ops(0, 3)); stream(w5end - 6, ht_ops(3, 4))
            elif m == 2:
                stream(w4end - 6, ht_ops(0, 7))
            elif m == 3:
                stream(2, ht_ops(0, 7))
        XM0 = 20; XM1 = 24
        def xm_ops(tt):
            return [(4, False, (lambda: sadd(S_XA, S_XML, WS_XM + tt*32768)) if not P1 else (lambda: E(f"s_add_u32 s{S_XA}, s{S_XML if tt == 0 else S_XA}, {f's{S_XMD}' if tt == 0 else 32768}"))),
                    (4, True, lambda: E.vm(f"buffer_load_dwordx4 v[{XM0+4*tt}:{XM0+4*tt+3}], v{VL16}, {WSRD}, s{S_XA} offen" + LSC, f'xm{L}'))]
        NOXM = P1 and L == 0
        if not NOXM: stream(stream(O('xm_at', 152), xm_ops(0)) + 1, xm_ops(1))
        fh = 0
        pub = {}; chk = {}
        for (st_, k, e) in (('A', 0, est[2]), ('B', 1, est[5]), ('C', 2, est[6])):
            tp = put(O('pub' + st_, e + 12), lambda st_=st_: E.wait_vm(f'h{st_}{L}'), k='s')
            tp = put(tp, lambda st_=st_, k=k: publish(S_FHS, fh + 256*k, f'h{st_}{L}', wait=False), 4, 'm', chain=True)
            tq = put(O('poll' + st_, tp + 8), lambda st_=st_, k=k: poll_issue(VP8, S_FHL, fh + 256*k, f'p{st_}{L}'), 4, 'm')
            tc = put(O('chk' + st_, tq + (12 if st_ == 'A' else 14)), lambda st_=st_: E.wait_vm(f'p{st_}{L}'), k='s')
            tc = put(tc, lambda st_=st_, k=k: poll_check(VP8, S_FHL, fh + 256*k, f'p{st_}{L}', wait=False), 8, 'v', chain=True)
            pub[st_] = tp; chk[st_] = tc
        hslot = {}
        for n0 in range(0, 56, 4):
            tt, _, p = order[n0]
            sreg = S_HA[(n0 >> 2) & 1]
            rdy = chk['A' if p < 3 else 'B' if p < 6 else 'C'] + 1
            prev = max([hslot[m] for m in range(max(0, n0 - 8), max(0, n0 - 4))], default=0)
            ta = put(max(prev, rdy - 3), lambda tt=tt, p=p, sreg=sreg: E(f"s_add_u32 s{sreg}, s{S_HLD}, {WS_H + tt*114688 + tau[p]*4096}"), k='s') + 1
            for n in range(n0, n0 + 4):
                assert order[n][0] == tt and order[n][2] == p and order[n][1] == n - n0
                q = n % NH
                if n < NH: free = 0 if q < 5 else 192 + (q - 5) + 1
                else: free = G2 + 2*(n - NH) + 2
                off = (n - n0)*1024
                hslot[n] = put(max(rdy, free, ta), lambda n=n, sreg=sreg, off=off: E.vm(f"buffer_load_dwordx4 {hreg(n)}, v{VL16}, {WSRD}, s{sreg} offen" + (f" offset:{off}" if off else "") + LSC, f'h{L}_{n}'), vm=True)
                assert hslot[n] < G2 + 2*n - 6, (L, n, hslot[n])
        if opt.get('verbose'): print('L', L, 'est', est, 'w', w4end, w5end, w6end, 'pub', pub, 'chk', chk, 'h', [hslot[n] for n in range(56)])
        if L == 0:
            firstuse = {}
            for n, (tt, rho, p) in enumerate(order): firstuse.setdefault(rho*7 + tau[p], G2 + 2*n)
            t = O('wd_at', 70)
            rest_ops = BK['b'].ops; BK['b'].ops = []
            kcur = None
            for (c_, vm_, f_) in rest_ops:
                info = getattr(f_, 'info', None)
                assert info is not None and info[0] == 'wd', 'only Wd loads may be left for G1'
                if not vm_:
                    at(t - 1, f_, 0, 's')
                else:
                    while t in vslots: t += 1
                    assert t < firstuse[info[1]] - 8, ('Wd deadline', info, t)
                    at(t, f_, 0, 'm'); t += O('wd_sp', 2)
            if opt.get('verbose'): print('last Wd load at', t)
        RB = RING
        def red_write_ops(tt):
            ops = []
            for m in (1, 3, 2):
                pd, g = m & 1, m >> 1
                src = acc2[tt][pd] + 8*g
                for hlf in range(2):
                    ops.append(lambda m=m, src=src, hlf=hlf: E.ds(f"ds_write_b128 v{VRW[m-1]}, v[{src+4*hlf}:{src+4*hlf+3}] offset:{1024*hlf}", f'rw{L}{tt}'))
            return ops
        def red_read_ops(tt):
            ops = []
            for m in range(3):
                for hlf in range(2):
                    ops.append(lambda m=m, hlf=hlf: E.ds(f"ds_read_b128 v[{RB+8*m+4*hlf}:{RB+8*m+4*hlf+3}], v{VRR} offset:{2048*m+1024*hlf}", f'rr{L}{tt}'))
            return ops
        def out_store(tt, src):
            if L == 0:
                sadd(S_T0, S_XML, WS_XN + tt*32768)
                E.vm(f"buffer_store_dwordx4 v[{src}:{src+3}], v{VL16}, {WSRD}, s{S_T0} offen", f'x2{tt}')
            else:
                sadd(S_T0, 30, tt*32768)
                E.vm(f"buffer_store_dwordx4 v[{src}:{src+3}], v28, s[{S_OUT}:{S_OUT+3}], s{S_T0} offen" + FL('o', L), f'o2{tt}')
        if L == 1:
            def out_setup():
                return [T_(x) for x in f"""v_and_b32 v28, 31, v0
                v_lshlrev_b32 v28, 10, v28
                v_bfe_u32 v29, v0, 5, 1
                v_lshl_add_u32 v28, v29, 4, v28
                s_lshl_b32 s30, s{S_C}, 17
                s_lshl_b32 s25, s{S_TH}, 16
                s_add_u32 s30, s30, s25
                s_and_b32 s25, s{S_W}, 1
                s_lshl_b32 s25, s25, 1
                s_lshr_b32 s26, s{S_W}, 1
                s_add_u32 s25, s25, s26
                s_lshl_b32 s26, s{S_J}, 2
                s_add_u32 s25, s25, s26
                s_lshl_b32 s25, s25, 5
                s_add_u32 s30, s30, s25""".split('\n')]
            t = 72
            for f in out_setup(): t = put(t, f, k='v', chain=True)
        XU = RB + 24
        if not NOXM:
            t = put(G2 + 26, lambda: E.wait_vm(f'xm{L}'), k='s')
            for e in range(4):
                t = put(t, T_(f"v_lshlrev_b32 v{XU+2*e}, 16, v{XM1+e}"))
                t = put(t, T_(f"v_and_b32 v{XU+1+2*e}, s{S_HI}, v{XM1+e}"))
        m0_last = G2 + 2*last0 + 1
        t = m0_last + 5
        for f in red_write_ops(0): t = put(t, f, 8, 'm')
        t = put(t + 1, lambda: (E.wait_ds(f'rw{L}0'), barrier()), 8, 's')
        t += 1
        for f in red_read_ops(0): t = put(t, f, 4, 'm')
        own = acc2[0][0]
        t = put(t + 3, lambda: E.wait_ds(f'rr{L}0'), k='s')
        tb = t
        for e in range(8): t = put(t, T_(f"v_add_f32 v{RB+e}, v{RB+e}, v{RB+8+e}"))
        for e in range(8): t = put(t, T_(f"v_add_f32 v{own+e}, v{own+e}, v{RB+16+e}"))
        for e in range(4 if not NOXM else 0):
            t = put(t, T_(f"v_lshlrev_b32 v{RB+8+2*e}, 16, v{XM0+e}"))
            t = put(t, T_(f"v_and_b32 v{RB+9+2*e}, s{S_HI}, v{XM0+e}"))
        for e in range(8): t = put(t, T_(f"v_add_f32 v{own+e}, v{own+e}, v{RB+e}"))
        for e in range(8): t = put(t, T_(f"v_fma_f32 v{own+e}, v{own+e}, s{S_LN2}, v{RB+8+e}" if not NOXM else f"v_mul_f32 v{own+e}, s{S_LN2}, v{own+e}"))
        for e in range(4): t = put(t, T_(f"v_cvt_pk_bf16_f32 v{RB+e}, v{own+2*e}, v{own+2*e+1}"))
        t = put(t + 1, lambda: out_store(0, RB), 8, 'm')
        if opt.get('verbose'): print('tt0 reduction done at', t)
        put(tb + 1, barrier, k='s')
        E.wait_vm(f'x{L}_0')
        stamp(f'L{L}g1')
        for i in range(LA): rd(i)
        def emit_fill(i, mid=None):
            fm, fs, fv = F.pop(i, ([], [], []))
            if mid: mid()
            for f in fm + fs + fv: f()
        for i in range(224):
            _, p, k = seq[i]
            stamp(f'L{L}s{i}')
            if p < 3 and (i % 3) == 0 and k > 0: E.wait_vm(f'x{L}_{k}')
            if i % 2 == 0: E.wait_ds(f'a{L}_{i+1}')
            r = RING + 4*(i % 8)
            c = ACC[accp[p]]
            E(f"v_mfma_f32_32x32x16_bf16 v[{c}:{c+15}], {vr(r, 4)}, v[{XR+4*k}:{XR+4*k+3}], {'0' if k == 0 else f'v[{c}:{c+15}]'}")
            emit_fill(i, (lambda: rd(i + LA)) if i + LA < 224 else None)
        seen_kp = set()
        for n in range(56):
            tt, rho, p = order[n]
            kp = rho*7 + tau[p]
            firstb = not any(o[0] == tt for o in order[:n])
            for ii, pd in enumerate((1, 0) if n in (last0, 55) else (0, 1)):
                i = G2 + 2*n + ii
                stamp(f'L{L}s{i}')
                if ii == 0:
                    E.wait_vm(f'h{L}_{n}')
                    if L == 0 and kp not in seen_kp and not opt.get('nowd', 0): E.wait_vm(f'wd{kp}'); seen_kp.add(kp)
                c = acc2[tt][pd]
                E(f"v_mfma_f32_32x32x16_bf16 v[{c}:{c+15}], {ar(A_WD + 8*kp + 4*pd, 4)}, {hreg(n)}, {'0' if firstb else f'v[{c}:{c+15}]'}")
                emit_fill(i)
        stamp(f'L{L}g2end')
        for i in sorted(F.keys()):
            assert i > lastslot, i
            emit_fill(i)
        for f in red_write_ops(1): f()
        E.wait_ds(f'rw{L}1'); E("s_barrier")
        for f in red_read_ops(1): f()
        own = acc2[1][0]
        E.wait_ds(f'rr{L}1')
        for e in range(0, 8, 2): E(f"v_pk_add_f32 v[{RB+e}:{RB+e+1}], v[{RB+e}:{RB+e+1}], v[{RB+8+e}:{RB+9+e}]")
        for e in range(0, 8, 2): E(f"v_pk_add_f32 v[{own+e}:{own+e+1}], v[{own+e}:{own+e+1}], v[{RB+16+e}:{RB+17+e}]")
        for e in range(0, 8, 2): E(f"v_pk_add_f32 v[{own+e}:{own+e+1}], v[{own+e}:{own+e+1}], v[{RB+e}:{RB+e+1}]")
        for e in range(0, 8, 2):
            if NOXM: E(f"v_pk_mul_f32 v[{own+e}:{own+e+1}], v[{own+e}:{own+e+1}], s[{S_LN2}:{S_LN2+1}]")
            else: E(f"v_pk_fma_f32 v[{own+e}:{own+e+1}], v[{own+e}:{own+e+1}], s[{S_LN2}:{S_LN2+1}], v[{XU+e}:{XU+e+1}]")
        for e in range(4): E(f"v_cvt_pk_bf16_f32 v{RB+e}, v{own+2*e}, v{own+2*e+1}")
        out_store(1, RB)
        stamp(f'L{L}st')
        if L == 0:
            publish(S_FX2S, 0, 'x21')
            stamp('x2pub')

    def marker_check(regs_, reload_, tagname):
        ls = E.label('L_mks'); lb = E.label('L_mkb')
        t = 31
        r = list(regs_)
        E(f"v_max3_u32 v{t}, v{r[0]}, v{r[1]}, v{r[2]}"); k = 3
        while k + 1 < len(r): E(f"v_max3_u32 v{t}, v{t}, v{r[k]}, v{r[k+1]}"); k += 2
        if k < len(r): E(f"v_max_u32 v{t}, v{t}, v{r[k]}")
        E(f"v_cmp_eq_u32 vcc, -1, v{t}\ns_cbranch_vccnz {ls}\n{lb}:")
        ll = E.label('L_mkl')
        txt = f"{ls}:\ns_mov_b32 s{S_T3}, 0\n{ll}:\n"
        for i, x in enumerate(r):
            l2 = E.label('L_mkn')
            txt += f"""v_cmp_eq_u32 vcc, -1, v{x}
            s_cbranch_vccz {l2}
            {reload_(i)}
            {l2}:
            """
        txt += f"s_add_u32 s{S_T3}, s{S_T3}, 1\ns_waitcnt vmcnt(0)\n"
        txt += f"v_max3_u32 v{t}, v{r[0]}, v{r[1]}, v{r[2]}\n"; k = 3
        while k + 1 < len(r): txt += f"v_max3_u32 v{t}, v{t}, v{r[k]}, v{r[k+1]}\n"; k += 2
        if k < len(r): txt += f"v_max_u32 v{t}, v{t}, v{r[k]}\n"
        txt += f"""v_cmp_eq_u32 vcc, -1, v{t}
        s_cmp_gt_u32 s{S_T3}, 0x2000
        s_cbranch_vccz {lb}
        s_cbranch_scc0 {ll}
        s_branch {lb}
        """
        E.out_of_line(txt)

    PREPE = opt.get('prepe', 0)
    def prep_part(rawwait=None):
        PB = 64
        for i in range(4): E(f"v_mov_b32 v{108+i}, -1")
        def trd(n):
            E(f"ds_read_b64_tr_b16 v[{PB+4*n}:{PB+4*n+1}], v{VTR} offset:{1024*n}")
            E(f"ds_read_b64_tr_b16 v[{PB+4*n+2}:{PB+4*n+3}], v{VTR} offset:{1024*n + 512}")
        def pst(n):
            if n < 7:
                if n: E(f"s_add_u32 s{S_W1DST}, s{S_W1DST}, 131072")
                E(f"buffer_store_dwordx4 v[{PB+4*n}:{PB+4*n+3}], v{W1D}, {WSRD}, s{S_W1DST} offen sc1")
            else:
                if n > 7: E(f"s_add_u32 s{S_WDDST}, s{S_WDDST}, 229376")
                E(f"buffer_store_dwordx4 v[{PB+4*n}:{PB+4*n+3}], v{WDD}, {WSRD}, s{S_WDDST} offen sc1")
        stamp_dup('xiss')
        if HLATE:
            E(f"""
            s_and_b32 s25, s{S_W}, 1
            s_add_u32 s24, s{S_CB}, s25
            s_lshl_b32 s24, s24, 12
            s_mul_i32 s25, s25, {HC_CH}
            """)
            h_dma(HLATE, 24, 25)
        if rawwait is not None: E(f"s_waitcnt vmcnt({rawwait + 4*len(HLATE)})")
        for n in range(4): trd(n)
        for n in range(11):
            if n + 4 < 11: trd(n + 4)
            E(f"s_waitcnt lgkmcnt({2*min(4, 10 - n)})")
            pst(n)
        for i in range(4):
            if i: E(f"s_add_u32 s{S_YP}, s{S_YP}, 262144")
            E(f"buffer_store_dwordx4 v[108:111], v{VYP}, {WSRD}, s{S_YP} offen sc1")
    def conv():
        lx = E.label('L_xp'); lbx = E.label('L_bx')
        E(f"ds_write_b16 v61, v{HEAD}")
        E(f"s_cmp_ge_u32 s{S_W}, 2\ns_cbranch_scc1 {lx}")
        XG = 64
        def xload(i): return f"buffer_load_dwordx4 v[{XG+4*i}:{XG+4*i+3}], v{VL16}, {WSRD}, s{S_XL + (i >> 2)} offen" + (f" offset:{1024*(i & 3)}" if i & 3 else "") + " sc1"
        NX = 4 if P1 else 8
        for i in range(NX): E(xload(i))
        stamp('xiss')
        ACCc = 192
        for i in range(32): E(f"v_mov_b32 v{ACCc+i}, 0")
        E("s_waitcnt vmcnt(0)")
        marker_check([XG + 4*i for i in range(NX)], xload, 'x')
        stamp('xok')
        if P1:
            for i in range(4): E(f"ds_write_b128 v{VXW}, v[{XG+4*i}:{XG+4*i+3}] offset:{i*1024}")
            for i in range(4):
                if i < 3: E(f"v_mov_b32_dpp v{96+i}, v{XG+4*(i+1)} wave_rol:1 row_mask:0xf bank_mask:0xf")
                else: E(f"v_mov_b32 v{96+i}, 0")
            for i in range(4):
                for d in range(3): E(f"v_alignbit_b32 v{XG+16+4*i+d}, v{XG+4*i+d+1}, v{XG+4*i+d}, 16")
            for i in range(4): E(f"v_mov_b32_dpp v{96+i}, v{XG+4*i} wave_shl:1 row_mask:0xf bank_mask:0xf")
            for i in range(4):
                E(f"v_alignbit_b32 v{XG+16+4*i+3}, v{96+i}, v{XG+4*i+3}, 16")
            for i in range(4): E(f"ds_write_b128 v{VXW}, v[{XG+16+4*i}:{XG+16+4*i+3}] offset:{XR_P + i*1024}")
        else:
            for i in range(8): E(f"ds_write_b128 v{VXW}, v[{XG+4*i}:{XG+4*i+3}] offset:{(i >> 2)*XR_P + (i & 3)*1024}")
        E(f"s_branch {lbx}\n{lx}:")
        if not PREPE: prep_part()
        else: stamp_dup('xiss')
        stamp_dup('xok')
        for i in range(32): E(f"v_mov_b32 v{ACCc+i}, 0")
        if HLATE: E("s_waitcnt vmcnt(15)")
        E(f"{lbx}:")
        E("s_waitcnt lgkmcnt(0)")
        E.vmq = []; E.dsq = []
        E("s_barrier")
        stamp('bx')
        def AF(st, g): return 64 + 32*st + 4*g
        def BF(st, u): return 128 + 32*st + 4*u
        def rdA(st, g, rho): return f"ds_read_b128 v[{AF(st,g)}:{AF(st,g)+3}], v{VA_} offset:{512*g + 64*rho}"
        def rdB(st, u, rho): return f"ds_read_b128 v[{BF(st,u)}:{BF(st,u)+3}], v{VB_} offset:{512*(7-u) + 64*rho}"
        pairs = [(t, g) for t in range(8) for g in range(t+1)]
        order = []
        for t in range(8): order.append(('B', t)); order.append(('A', t))
        def mf(st, t, g):
            return f"v_mfma_f32_16x16x32_bf16 v[{ACCc+4*t}:{ACCc+4*t+3}], v[{AF(st,g)}:{AF(st,g)+3}], v[{BF(st,t-g)}:{BF(st,t-g)+3}], v[{ACCc+4*t}:{ACCc+4*t+3}]"
        S1AT = opt.get('s1at', 24); S1POLL = opt.get('s1poll', 96); S1CHK = opt.get('s1chk', 118)
        acts = {}
        def act(i, f): acts.setdefault(i, []).append(f)
        def s1publish():
            E("s_waitcnt vmcnt(0)"); E.vmq = []
            E.vm(f"buffer_store_dword v{VONE}, v{VS1F}, {WSRD}, s{S_S1F} offen sc1", 's1st')
        def s1poll(): E.vm(f"buffer_load_dwordx4 v[24:27], v{VS1P}, {WSRD}, 0 offen sc1", 's1')
        def s1check():
            all_flags_check(24, VS1P, S_N, 's1')
            E("s_barrier")
            stamp('s1')
        def qload():
            E.vm(f"buffer_load_dwordx4 {ar(A_Q, 4)}, v9, s[{S_Q}:{S_Q+3}], s{S_QO} offen" + NT('q'), 'q')
            E.vm(f"buffer_load_dwordx4 {ar(A_Q+4, 4)}, v9, s[{S_Q}:{S_Q+3}], s{S_QO} offen offset:128" + NT('q'), 'q')
        act(S1AT, s1publish); act(opt.get('qat', 40), qload)
        def htouch():
            m = opt['ht']
            E(f"v_lshrrev_b32 v246, 3, v8\nv_lshlrev_b32 v246, 12, v246\nv_and_b32 v247, {m}, v8\nv_lshl_add_u32 v246, v247, 7, v246")
            E(f"s_add_u32 s24, s{S_HST}, {WS_H}")
            E(f"s_mov_b32 exec_hi, 0x00ffffff")
            E.vm(f"buffer_load_dword v247, v246, {WSRD}, s24 offen", 'ht')
            E(f"s_mov_b64 exec, -1")
        if 'ht' in opt: act(opt.get('htat', 20), htouch)
        POST = S1CHK >= 1000
        if S1POLL < 1000: act(S1POLL, s1poll)
        B = BK['b'] = make_bulk()
        if not POST:
            act(S1CHK, s1check)
            nm = opt.get('bk_m', 5)
            for k in range(nm): act(S1CHK + 2 + k*opt.get('bk_msp', 4), lambda: B.emit(1))
            assert S1CHK + 2 + nm*opt.get('bk_msp', 4) <= 148
        def do(i):
            for f in acts.pop(i, []): f()
        for rho in range(4):
            st = rho & 1
            nxt = []
            if rho < 3: nxt = [(rdB(st^1, x, rho+1) if k == 'B' else rdA(st^1, x, rho+1)) for (k, x) in order]
            if rho == 0:
                reads = [(rdB(0, x, 0) if k == 'B' else rdA(0, x, 0)) for (k, x) in order]
                for r_ in reads[:14]: E(r_)
                issued = 14; done = 0
                allq = reads + nxt
                for idx, (t, g) in enumerate(pairs):
                    if g == 0:
                        E(f"s_waitcnt lgkmcnt({issued - 2*(t+1)})"); done = 2*(t+1)
                    E(mf(0, t, g))
                    do(idx)
                    if t == 7 and g == 4:
                        done += 6
                        E(f"s_waitcnt lgkmcnt({issued - done})")
                    if issued < len(allq) and issued - done < 14:
                        E(allq[issued]); issued += 1
                assert issued == len(allq)
            else:
                E("s_waitcnt lgkmcnt(0)")
                k = 0
                for idx, (t, g) in enumerate(pairs):
                    E(mf(st, t, g))
                    do(36*rho + idx)
                    if nxt and idx % 2 == 0 and k < 16:
                        E(nxt[k]); k += 1
            if rho < 3: stamp(f'rho{rho+1}')
        for i in sorted(acts): do(i)
        stamp('mfend')
        if opt.get('rot', 0):
            E(f"s_lshr_b32 s25, s{S_C}, 3\ns_lshl_b32 s25, s25, 1\ns_add_u32 s25, s25, s{S_TH}")
            for r_ in range(4):
                E(f"""s_add_u32 s24, s25, {r_}
                s_and_b32 s24, s24, 3
                s_mul_i32 s24, s24, {7*2048}
                s_add_u32 s{S_WDR + r_}, s{S_WDB}, s24""")
        E(f"""
        s_barrier
        v_add_u32 v20, s{S_W1K}, v{VL16}
        s_lshl_b32 s24, s{S_W}, 11
        v_add_u32 v21, s24, v{VL16}
        s_nop 4
        """)
        for t in range(8): E.ds(f"ds_write_b128 v20, v[{ACCc+4*t}:{ACCc+4*t+3}] offset:{1024*t}", 'rdw')
        E.wait_ds('rdw')
        E("s_barrier")
        stamp('red2')
        if S1POLL == 1000: s1poll()
        if not POST: B.emit(opt.get('bk_red', 0))
        for tau in range(2):
            for src in range(4):
                E.ds(f"ds_read_b128 v[{64+32*tau+4*src}:{67+32*tau+4*src}], v21 offset:{8192*src + 1024*tau}", f'rdr{tau}')
            for ch in range(2):
                E.ds(f"ds_read_b128 v[{128+8*tau+4*ch}:{131+8*tau+4*ch}], v{VKVW} offset:{ch*XR_CH + 512*(1-tau)}", f'rdr{tau}')
        for tau in range(2):
            E.wait_ds(f'rdr{tau}')
            base = 64 + 32*tau
            for ch in range(2):
                kvr = 128 + 8*tau + 4*ch
                for r in range(4): E(f"v_add_f32 v{base+8*ch+r}, v{base+8*ch+r}, v{base+8*ch+r+4}")
                for d in range(4): E(f"v_lshlrev_b32 v{kvr+d}, 16, v{kvr+d}")
                for r in range(4): E(f"v_fmac_f32 v{base+8*ch+r}, s{60+ch}, v{kvr+3-r}")
            for r in range(4): E(f"v_cvt_pk_bf16_f32 v{148+r}, v{base+r}, v{base+8+r}")
            o = 152 + 4*tau
            E(f"""
            v_mov_b32 v{o}, v150
            v_mov_b32 v{o+1}, v148
            v_mov_b32 v{o+2}, v151
            v_mov_b32 v{o+3}, v149
            v_mov_b32_dpp v{o}, v148 row_ror:8 row_mask:0xf bank_mask:0x3
            v_mov_b32_dpp v{o+1}, v150 row_ror:8 row_mask:0xf bank_mask:0xc
            v_mov_b32_dpp v{o+2}, v149 row_ror:8 row_mask:0xf bank_mask:0x3
            v_mov_b32_dpp v{o+3}, v151 row_ror:8 row_mask:0xf bank_mask:0xc
            """)
            if tau == 1: E(f"s_add_u32 s58, s58, 262144")
            E.vm(f"buffer_store_dwordx4 v[{o}:{o+3}], v{VYS}, {WSRD}, s58 offen sc1", 'yst')
        stamp('yst')
        if S1POLL == 1001: s1poll()
        if POST: s1check()

    def rest():
        conv()
        B = BK['b']
        def yload(i):
            c2, k = i >> 2, i & 3
            return f"buffer_load_dword v{Y+i}, v10, {WSRD}, s{59 if c2 == 0 else 24} offen" + (f" offset:{512*k}" if k else "") + " sc1"
        E("s_add_u32 s24, s59, 16384")
        B.emit(opt.get('bk_a', 0))
        for i in range(8): E.vm(yload(i), 'y')
        n_y = opt.get('bk_y', 0)
        B.emit(n_y)
        assert 'w1_3' not in E.seen, 'slot 0 is still in use'
        for i in range(8): E(f"v_accvgpr_read_b32 v{X+i}, a{A_Q+i}")
        R_pre(0)
        stamp('qst')
        B.emit(opt.get('bk_q', 0))
        E.wait_vm('y')
        marker_check([Y + i for i in range(8)], yload, 'y')
        stamp('yok')
        B.emit(opt.get('bk_r0', 16))
        for i in range(8): E(f"v_accvgpr_write_b32 a{A_Y+i}, v{Y+i}")
        def w1left():
            n = 0; k = 0
            for o in B.ops:
                if o[1]:
                    k += 1
                    if getattr(o[2], 'info', None) is None: n = k
            return n
        R_post(0, early=lambda: B.emit(max(opt.get('bk_r1', 0), w1left())), late=None)
        assert all(('w1_%d' % p) in E.seen for p in range(4)) and not any(getattr(o[2], 'info', None) is None for o in B.ops), 'W1 tiles 0..3 must be under way before the XN stores'
        Rpub(0)
        layer(0)
        poll_issue(VP8, S_FX2L, 0, 'px2')
        if P1:
            unpack(T, 20, 8)
            E(f"""s_lshr_b32 s24, s{S_C}, 3
            s_mul_i32 s24, s24, {7*131072}
            s_and_b32 s25, s{S_C}, 7
            s_lshl_b32 s25, s25, 17
            s_sub_u32 s24, s24, s25
            s_add_u32 s{S_XMD}, s24, {WS_Y}""")
        poll_check(VP8, S_FX2L, 0, 'px2')
        for r_, c_ in ((S_FXNS, 16*256), (S_FXNL, 16*256), (S_FHS, 16*1024), (S_FHL, 16*1024)): E(f"s_add_u32 s{r_}, s{r_}, {c_}")
        stamp('x2ok')
        sadd(S_T0, S_R, WS_XN); sadd(S_T1, S_R, WS_XN + 4096)
        E.vm(f"buffer_load_dwordx4 v[{X}:{X+3}], v{VR}, {WSRD}, s{S_T0} offen" + LSC, 'x2l')
        E.vm(f"buffer_load_dwordx4 v[{X+4}:{X+7}], v{VR}, {WSRD}, s{S_T1} offen" + LSC, 'x2l')
        for i in range(8): E(f"v_accvgpr_read_b32 v{Y+i}, a{A_Y+i}")
        E.wait_vm('x2l')
        R_pre(1)
        R_post(1)
        Rpub(1)
        layer(1)
        E.wait_vm_all()

    def s0cmp(val): return "\n".join([f"v_xor_b32 v{S0R+i}, s{val}, v{S0R+i}" for i in range(4)] +
                                     [f"v_or3_b32 v{S0R}, v{S0R}, v{S0R+1}, v{S0R+2}", f"v_or_b32 v{S0R}, v{S0R}, v{S0R+3}"])
    if PREPE:
        assert RAWPOS >= 1 and E.vm_after('s0') == NKV
        E(f"s_cmp_lt_u32 s{S_W}, 2\ns_cbranch_scc1 L_pe0")
        prep_part(rawwait=1 + NKV)
        E(f"s_waitcnt vmcnt({NKV + 4*len(HLATE) + 15})\ns_branch L_pe1\nL_pe0:\ns_waitcnt vmcnt({NKV})\nL_pe1:")
        E.vmq = []
    else: E.wait_vm('s0')
    E(s0cmp(S_XCC))
    E(f"v_cmp_ne_u32 vcc, 0, v{S0R}")
    E("s_branch L_s0s" if force_slow else "s_cbranch_vccnz L_s0s")
    E("L_s0b:")
    E.out_of_line(f"""
    L_s0s:
    s_mov_b32 s{S_T3}, 0
    L_s0l:
    v_cmp_lt_u32 vcc, 7, v{S0R}
    s_cmp_gt_u32 s{S_T3}, 0x2000
    s_cbranch_vccz L_slow
    s_cbranch_scc1 L_s0b
    buffer_load_dwordx4 v[{S0R}:{S0R+3}], v30, {WSRD}, 0 offen sc1
    s_add_u32 s{S_T3}, s{S_T3}, 1
    s_waitcnt vmcnt(0)
    {s0cmp(S_XCC)}
    v_cmp_ne_u32 vcc, 0, v{S0R}
    {'s_branch L_s0l' if force_slow else 's_cbranch_vccnz L_s0l'}
    s_branch L_s0b""")
    stamp('s0')
    Efast = E
    Es = Emit(); Es.vmq = []; Es.dsq = list(E.dsq); Es.seen = set(E.seen); Es.nl = 100000
    E = Es; MODE['slow'] = True
    E(f"""
    L_slow:
    s_mov_b32 s{S_EXP}, 2
    s_waitcnt vmcnt(0)
    buffer_wbl2 sc1
    s_waitcnt vmcnt(0)
    s_barrier
    s_add_u32 s24, s86, {FL_S0B}
    buffer_store_dword v{VONE}, v{VT0}, {WSRD}, s24 offen sc1
    s_mov_b32 s25, {FL_S0B - FL_S0}
    s_mov_b32 s{S_T3}, 0
    L_s0bl:
    buffer_load_dwordx4 v[{S0R}:{S0R+3}], v30, {WSRD}, s25 offen sc1
    s_add_u32 s{S_T3}, s{S_T3}, 1
    s_waitcnt vmcnt(0)
    {s0cmp(S_N)}
    v_cmp_ne_u32 vcc, 0, v{S0R}
    s_cmp_gt_u32 s{S_T3}, 0x2000
    s_cbranch_scc1 L_s0bx
    s_cbranch_vccnz L_s0bl
    L_s0bx:
    buffer_inv sc1
    s_waitcnt vmcnt(0)
    """)
    rest()
    E("s_branch L_fin")
    E = Efast; MODE['slow'] = False
    rest()
    E("L_fin:")
    if stamps:
        stamp('end')
        n = len(names)
        E("s_memrealtime s[24:25]")
        E("s_waitcnt lgkmcnt(0)")
        for k in (n - 2, n - 1): E(f"v_writelane_b32 v{VSTAMP}, s{SP[k & 1]}, {k}")
        E(f"""
        v_writelane_b32 v{VSTAMP}, s100, 61
        v_writelane_b32 v{VSTAMP}, s24, 62
        v_writelane_b32 v{VSTAMP}, s{S_EXP}, 63
        s_lshl_b32 s25, s2, 10
        s_lshl_b32 s26, s{S_W}, 8
        s_add_u32 s25, s25, s26
        s_add_u32 s25, s25, {WS_STAMP}
        v_lshrrev_b32 v20, 2, v{VL16}
        buffer_store_dword v{VSTAMP}, v20, {WSRD}, s25 offen
        s_waitcnt vmcnt(0)
        """)
        assert n < 60
        print('k3 stamps:', ','.join(names))
        open('last_stamps.txt', 'w').write(','.join(names))
    E("L_end:")
    E("s_endpgm")
    main = hazard_pass(E.L[1:], verbose=opt.get('verbose', False))
    tail = list(E.tail) + ['L_codeend:'] + hazard_pass(Es.L) + list(Es.tail)
    txt = E.L[0] + '\n' + '\n'.join(('    ' + l if not l.endswith(':') else l) for l in main) + '\n'
    txt += '\n'.join(('    ' + l if not l.endswith(':') else l) for l in tail) + '\n'
    txt += "    s_endpgm\n"
    return txt + kd(name, 512, 102, accum=256)

if __name__ == '__main__':
    st = 'stamps' in sys.argv; slow = 'slow' in sys.argv
    opt = {'verbose': 'v' in sys.argv}
    for a in sys.argv[2:]:
        if '=' in a:
            k_, v_ = a.split('=')
            opt[k_] = v_.split(',') if k_ == 'st' else (v_ if k_.startswith('fl') else int(v_))
    kname = NAME + '_kernel'
    txt = KERNARG_COMMENT
    txt += f"; @launch grid=(256,1,1) block=(256,1,1) lds={K1_LDS}\n"
    txt += TARGET + gen(kname, stamps=st, force_slow=slow, opt=opt)
    txt += ".text\n.fill 64, 4, 0xbf800000\n"
    open(sys.argv[1], 'w').write(txt)
```

```python
import sys
sys.path.insert(0, 'gen')
from emit import *
from layout3 import *
from common import head, kd, TARGET, KERNARG_COMMENT, NAME

K1_LDS = 163840
SLOT = 32768
SCR = SLOT
STATS = SLOT + 24576
OOB = 0x80000000
VL16, VA1, VA2, VP8, VP16, VF0, VR = 1, 2, 3, 4, 5, 6, 7
VSTW, VSTR = 11, 12
VRW = [13, 14, 15]; VRR = 16
VPOLL, VONE, VSTAMP = 17, 18, 19
RING = 32
ACC = [64, 80, 96, 112]
XR = 128
A_WD = 0; A_Y = 224; A_T4 = 232
S_WS = 4; S_Q = 8; S_OUT = 12
S_W, S_ROLE, S_C, S_TH, S_J, S_EXP, S_XCC, S_W1K = 16, 17, 18, 19, 20, 21, 22, 23
S_R, S_XNL, S_HST, S_HLD, S_XML, S_W1, S_FXNS, S_FXNL, S_FHS, S_FHL, S_FX2S, S_FX2L = range(34, 46)
S_T0, S_T1, S_T2, S_T3, S_HI = 46, 47, 48, 49, 31
S_LN2 = 98
S_DA, S_XA = 50, 3
S_HA = [96, 97]; S_HS = [94, 95]
LA = 6
def vr(b, n=1): return f"v{b}" if n == 1 else f"v[{b}:{b+n-1}]"
def ar(b, n=1): return f"a{b}" if n == 1 else f"a[{b}:{b+n-1}]"

LAYERS = [
    dict(tau=[0, 1, 2, 3, 4, 5, 6], slot=[2, 3, 4, 0, 1, 2, 3]),
    dict(tau=[5, 6, 2, 3, 4, 0, 1], slot=[2, 3, 4, 0, 1, 2, 3]),
]
LOG2E = 0x3fb8aa3b; LN2 = 0x3f317218
A_H = 236

S_N = 51
VWD = 28
S_WDB = 30
S_WDR = 64
A_Q = 232
HC_J = 4160; HC_CH = 4*HC_J
XRB = 2*HC_CH
XR_P = 4640; XR_CH = 9472
TBS = 1056
KT = 2*SLOT; VT = KT + 9*TBS
PST = 3*SLOT
S_QO, S_PST = 87, 94
S_G, S_M, S_CB, S_CP, S_D, S_E = 88, 89, 84, 85, 62, 63
POISON = 0xffffffff


def gen(name, stamps=False, force_slow=False, opt=None):
    opt = opt or {}
    E = Emit()
    LSC = ' sc1' if opt.get('lsc', 1) else ''
    names = []
    DEF = ['start', 'join', 'b0', 'kvst', 's0', 'xiss', 'prep', 'xok', 'bx', 'rho1', 'rho2', 'rho3', 's1', 'mfend', 'red2', 'yst', 'qst', 'yok', 'R0st', 'R0pub', 'L0xnok', 'L0g1', 'L0s96', 'L0s224', 'L0g2end', 'L0st', 'x2ok', 'R1st', 'R1pub', 'L1xnok', 'L1g1', 'L1s96', 'L1s224', 'L1g2end', 'L1st', 'end']
    enabled = set(opt.get('st', DEF)) | {'start', 'end'}
    MODE = {'slow': False}
    SP = [90, 92]
    def stamp(nm):
        if stamps and nm in enabled and not MODE['slow']:
            n = len(names); names.append(nm)
            if n >= 2: E(f"v_writelane_b32 v{VSTAMP}, s{SP[n & 1]}, {n-2}")
            E(f"s_memtime s[{SP[n & 1]}:{SP[n & 1]+1}]")
    def stamp_dup(nm):
        if stamps and nm in names and not MODE['slow']:
            n = names.index(nm)
            if n >= 2: E(f"v_writelane_b32 v{VSTAMP}, s{SP[n & 1]}, {n-2}")
            E(f"s_memtime s[{SP[n & 1]}:{SP[n & 1]+1}]")
    WSRD = f"s[{S_WS}:{S_WS+3}]"
    def NT(k): return ' nt' if (opt.get('nt', 0) >> 'trhq'.index(k)) & 1 else ''
    def FL(kind, L):
        v = opt.get(f'fl{kind}{L}', opt.get(f'fl{kind}', ''))
        return (' ' + v.replace('+', ' ')) if v else ''

    def sadd(dst, base, const):
        if const == 0: E(f"s_mov_b32 s{dst}, s{base}")
        else: E(f"s_add_u32 s{dst}, s{base}, {const}")
    def dma_stream(tau, slot, tag, ilist=range(8)):
        ops = []; cur = None
        for i in ilist:
            if cur != (i >> 2):
                cur = i >> 2
                ops.append((4, False, lambda g=cur: E(f"s_add_u32 m0, s{S_W1K}, {slot*SLOT + g*4096}")))
                ops.append((4, False, lambda g=cur: sadd(S_DA, S_W1, tau*32768 + g*4096)))
            off = (i & 3)*1024
            ops.append((4, True, lambda off=off: E.vm(f"buffer_load_dwordx4 v{VL16}, {WSRD}, s{S_DA} offen" + (f" offset:{off}" if off else "") + " lds", tag)))
        return ops
    def wd_stream(kps):
        ops = []
        for kp in kps:
            if opt.get('rot', 0): f = lambda kp=kp: E(f"s_add_u32 s26, s{S_WDR + kp//7}, {(kp % 7)*2048}")
            else: f = lambda kp=kp: E(f"s_add_u32 s26, s{S_WDB}, {kp*2048}")
            f.info = ('wd', kp); ops.append((4, False, f))
            for pd in range(2):
                f = lambda kp=kp, pd=pd: E.vm(f"buffer_load_dwordx4 {ar(A_WD + 8*kp + 4*pd, 4)}, v{VWD+pd}, {WSRD}, s26 offen" + (LSC if opt.get('wdsc', 1) else ''), f'wd{kp}')
                f.info = ('wd', kp); ops.append((4, True, f))
        return ops
    class Bulk:
        def __init__(self, ops): self.ops = list(ops)
        def take(self, n):
            out = []
            while n > 0 and self.ops:
                o = self.ops.pop(0); out.append(o)
                if o[1]: n -= 1
            return out
        def emit(self, n):
            for (_, _, f) in self.take(n): f()
            assert not self.ops or not self.ops[0][1] or getattr(self.ops[0][2], 'info', None) is None, 'Wd loads come in pairs'
        def left(self): return sum(1 for o in self.ops if o[1])
    def publish(sbase, const, tag, wait=True):
        o = f" offset:{const}" if const else ""
        if MODE['slow']:
            E.wait_vm_all()
            E("buffer_wbl2 sc1\ns_waitcnt vmcnt(0)")
            E.vm(f"buffer_store_dword v{VONE}, v{VF0}, {WSRD}, s{sbase} offen{o} sc1", None)
            return
        if wait: E.wait_vm(tag)
        E.vm(f"buffer_store_dword v{VONE}, v{VF0}, {WSRD}, s{sbase} offen{o}", None)
    def poll_issue(voff, sbase, const, tag, dst=VPOLL):
        o = f" offset:{const}" if const else ""
        if MODE['slow']: E.seen.add(tag); return
        E.vm(f"buffer_load_dword v{dst}, v{voff}, {WSRD}, s{sbase} offen{o} sc1", tag)
    def poll_check(voff, sbase, const, tag, dst=VPOLL, wait=True):
        o = f" offset:{const}" if const else ""
        ls = E.label('L_polls'); lb = E.label('L_pollb'); ll = E.label('L_polll')
        if MODE['slow']:
            E.wait_vm_all()
            E(f"""
            s_mov_b32 s{S_T3}, 0
            {ll}:
            buffer_inv sc1
            s_waitcnt vmcnt(0)
            buffer_load_dword v{dst}, v{voff}, {WSRD}, s{sbase} offen{o} sc1
            s_add_u32 s{S_T3}, s{S_T3}, 1
            s_waitcnt vmcnt(0)
            v_cmp_ne_u32 vcc, s{S_N}, v{dst}
            s_cmp_gt_u32 s{S_T3}, 0x2000
            s_cbranch_scc1 {lb}
            s_cbranch_vccnz {ll}
            {lb}:
            buffer_inv sc1
            s_waitcnt vmcnt(0)""")
            return
        if wait: E.wait_vm(tag)
        E(f"v_cmp_ne_u32 vcc, s{S_N}, v{dst}")
        E(f"s_cbranch_vccnz {ls}")
        E(f"{lb}:")
        E.out_of_line(f"""
        {ls}:
        s_mov_b32 s{S_T3}, 0
        {ll}:
        buffer_load_dword v{dst}, v{voff}, {WSRD}, s{sbase} offen{o} sc1
        s_add_u32 s{S_T3}, s{S_T3}, 1
        s_waitcnt vmcnt(0)
        v_cmp_ne_u32 vcc, s{S_N}, v{dst}
        s_nop 4
        s_cbranch_vccz {lb}
        s_cmp_lt_u32 s{S_T3}, 0x2000
        s_cbranch_scc1 {ll}
        s_branch {lb}""")
    def all_flags_check(dst, voff, sval, tag, lim=0x2000):
        ls = E.label('L_afs'); lb = E.label('L_afb'); ll = E.label('L_afl')
        def cmp4():
            return "\n".join([f"v_xor_b32 v{dst+i}, s{sval}, v{dst+i}" for i in range(4)] +
                             [f"v_or3_b32 v{dst}, v{dst}, v{dst+1}, v{dst+2}", f"v_or_b32 v{dst}, v{dst}, v{dst+3}", f"v_cmp_ne_u32 vcc, 0, v{dst}"])
        E.wait_vm(tag)
        E(cmp4())
        E(f"s_cbranch_vccnz {ls}\n{lb}:")
        E.out_of_line(f"""
        {ls}:
        s_mov_b32 s{S_T3}, 0
        {ll}:
        buffer_load_dwordx4 v[{dst}:{dst+3}], v{voff}, {WSRD}, 0 offen sc1
        s_add_u32 s{S_T3}, s{S_T3}, 1
        s_waitcnt vmcnt(0)
        {cmp4()}
        s_nop 4
        s_cbranch_vccz {lb}
        s_cmp_lt_u32 s{S_T3}, {lim}
        s_cbranch_scc1 {ll}
        s_branch {lb}""")

    KSRD, VSRD, HSRD, PSRD, WDSRD = "s[52:55]", "s[64:67]", "s[76:79]", "s[68:71]", "s[52:55]"
    VPS, VPW = 224, 225
    VFT = 231
    P1 = opt.get('p1', 0)
    GSH = 18 if P1 else 19
    NKV = 2 if P1 else 4
    MKALL = opt.get('mkall', 0)
    assert MKALL or not P1
    MKPOS = opt.get('mkpos', 0)
    MKW = opt.get('mkw', 0)
    MKF = '' if MKALL == 2 else ' sc1'
    MKPRE = "" if not MKALL else f"""v_lshlrev_b32 v33, 12, v21
    v_lshl_add_u32 v33, v22, 4, v33
    v_mov_b32 v36, -1
    v_mov_b32 v37, -1
    v_mov_b32 v38, -1
    v_mov_b32 v39, -1
    s_lshl_b32 s95, s{S_G}, {GSH}
    s_lshl_b32 s27, s{S_M}, 7
    s_sub_u32 s95, s95, s27
    s_lshl_b32 s27, s{S_W}, {(18 if MKW else 17) - P1}
    s_add_u32 s95, s95, s27
    s_add_u32 s95, s95, {WS_KVT + 3968}"""
    def markers4(fix=True):
        if fix: E(srd_fix(S_WS, WS_SRD_BYTES))
        n = (8 if MKW else 4) >> P1
        if MKW: E(f"s_cmp_ge_u32 s{S_W}, 2\ns_cbranch_scc1 L_mkw")
        for i in range(n if not opt.get('nomk') else 0):
            E(f"buffer_store_dwordx4 v[36:39], v33, {WSRD}, s95 offen{MKF}")
            if i < n - 1: E("s_add_u32 s95, s95, 32768")
        if MKW: E("L_mkw:")
    def srd_fix(b, size): return f"s_and_b32 s{b+1}, s{b+1}, 0xffff\ns_mov_b32 s{b+2}, {size}\ns_mov_b32 s{b+3}, 0x20000"
    E.L.append(head(name).rstrip())
    E(f"""
    s_cmp_ge_u32 s2, 256
    s_cbranch_scc1 L_end
    s_load_dwordx2 s[52:53], s[0:1], 8
    s_load_dwordx2 s[64:65], s[0:1], 16
    s_load_dwordx2 s[4:5], s[0:1], 96
    s_load_dwordx8 s[56:63], s[0:1], 24
    s_load_dwordx8 s[68:75], s[0:1], 56
    s_load_dwordx2 s[8:9], s[0:1], 0
    """)
    if stamps: E("s_memrealtime s[100:101]")
    stamp('start')
    E(f"""
    v_lshrrev_b32 v20, 6, v0
    v_and_b32 v8, 63, v0                     ; lane
    s_and_b32 s{S_G}, s2, 7
    s_lshr_b32 s{S_M}, s2, 3
    v_readfirstlane_b32 s{S_W}, v20
    v_lshlrev_b32 v{VL16}, 4, v8
    v_lshrrev_b32 v21, 3, v8
    v_and_b32 v22, 7, v8
    s_lshl_b32 s{S_CB}, s{S_G}, 6
    s_lshl_b32 s24, s{S_M}, 1
    s_add_u32 s{S_CB}, s{S_CB}, s24
    s_lshl_b32 s24, s{S_G}, 9
    s_lshl_b32 s25, s{S_W}, 7
    s_add_u32 s24, s24, s25
    v_lshlrev_b32 v30, 4, v21
    v_add_u32 v30, s24, v30
    ; raw weight blocks (waves 2 and 3): 8 rows x 128 bytes each
    s_lshr_b32 s24, s2, 2                    ; kg
    s_and_b32 s25, s2, 3                     ; fq
    s_mul_i32 s26, s24, 28672
    s_mul_i32 s27, s25, 896
    s_add_u32 s26, s26, s27
    v_mul_u32_u24 v{VPS}, 3584, v21
    v_lshl_add_u32 v{VPS}, v22, 4, v{VPS}
    v_add_u32 v{VPS}, s26, v{VPS}
    v_lshlrev_b32 v{VPW}, 10, v21
    v_lshl_add_u32 v{VPW}, v22, 4, v{VPW}
    s_and_b32 s25, s{S_W}, 1
    s_lshl_b32 s26, s2, 13
    s_lshl_b32 s27, s25, 9
    s_add_u32 s26, s26, s27
    v_add_u32 v{VPW}, s26, v{VPW}
    s_mul_i32 s26, s25, {11*1024}
    s_add_u32 s{S_PST}, s26, {PST}
    {MKPRE}
    s_cmp_eq_u32 s{S_W}, 3
    s_cbranch_scc1 L_w3
    ; k / v staging tiles: row = lane >> 3, 16-byte segment = lane & 7
    v_lshlrev_b32 v32, 10, v21
    v_lshl_add_u32 v32, v22, 4, v32
    s_lshl_b32 s24, s{S_M}, 16
    s_lshl_b32 s25, s{S_G}, 7
    s_add_u32 s24, s24, s25
    v_add_u32 v32, s24, v32
    s_cmp_eq_u32 s{S_W}, 2
    s_cbranch_scc1 L_w2
    s_cmp_eq_u32 s{S_W}, 1
    s_cbranch_scc1 L_w1
    """)
    SK = 56
    def skload(): E(f"global_load_dwordx4 v[{SK}:{SK+3}], v30, s[56:57]")
    def h_dma(js, sch, slds):
        for j in js:
            E(f"s_add_u32 s26, s{sch}, {4 + 4*j}\ns_add_u32 m0, s{slds}, {j*HC_J + 64}\ns_nop 0")
            for q_ in range(4):
                E(f"buffer_load_dwordx4 v{VL16}, {HSRD}, s26 offen" + (f" offset:{1024*q_}" if q_ else "") + NT('h') + " lds")
    def prep_dma():
        for i in range(7):
            E(f"s_add_u32 m0, s{S_PST}, {1024*i - 128*i}")
            E(f"s_nop 0\nbuffer_load_dwordx4 v{VPS}, {PSRD}, 0 offen" + (f" offset:{128*i}" if i else "") + NT('r') + " lds")
        for i in range(4):
            E(f"s_add_u32 m0, s{S_PST}, {1024*(7+i) - 128*i}")
            E(f"s_nop 0\nbuffer_load_dwordx4 v{VPW}, {WDSRD}, 0 offen" + (f" offset:{128*i}" if i else "") + NT('r') + " lds")
    HEARLY = [0, 1, 2, 3] if opt.get('hpos', 0) == 0 else [0]
    HLATE = [j for j in range(4) if j not in HEARLY]
    def tile_path(lst):
        for j, (kind, blk) in enumerate(lst):
            c = (blk*8192 - (4096 if kind == 'k' else 1024)) & 0xffffffff
            E(f"v_add_u32 v{40+j}, {c:#x}, v32")
        E("s_waitcnt lgkmcnt(0)")
        E(f"s_load_dword s{S_E}, s[4:5], {FL_EPOCH}")
        if MKALL and MKPOS == 0: markers4()
        if any(k == 'k' for k, _ in lst): E(srd_fix(52, 2097152))
        if any(k == 'v' for k, _ in lst): E(srd_fix(64, 2097152))
        for j, (kind, blk) in enumerate(lst):
            E(f"s_mov_b32 m0, {(KT if kind == 'k' else VT) + blk*TBS}\ns_nop 0")
            E(f"buffer_load_dwordx4 v{40+j}, {KSRD if kind == 'k' else VSRD}, 0 offen{NT('t')} lds")
    tile_path([('k', b) for b in range(6)])
    E("s_branch L_w01\nL_w1:")
    tile_path([('k', b) for b in (6, 7, 8)] + [('v', b) for b in (0, 1, 2)])
    E("L_w01:")
    stamp('e1'); stamp('e2')
    skload()
    E(f"""
    s_mov_b32 s76, s58
    s_mov_b32 s77, s59
    {srd_fix(76, 2097152)}
    s_add_u32 s24, s{S_CB}, s{S_W}
    s_lshl_b32 s24, s24, 12                  ; channel * 4096
    s_mul_i32 s25, s{S_W}, {HC_CH}
    """)
    h_dma(HEARLY, 24, 25)
    RT = opt.get('rtouch', 0)
    def rtouch():
        E(f"buffer_load_dword v233, v233, {PSRD}, 0 offen")
        E(f"buffer_load_dword v234, v234, {WDSRD}, 0 offen")
    if RT:
        E(f"""
        s_cmp_eq_u32 s{S_W}, 1
        s_cselect_b32 s68, s70, s68
        s_cselect_b32 s69, s71, s69
        {srd_fix(68, 1835008)}
        s_mov_b32 s52, s72
        s_mov_b32 s53, s73
        {srd_fix(52, 1835008)}
        s_lshr_b32 s24, s2, 2
        s_add_u32 s24, s24, 32
        s_mul_i32 s24, s24, 28672
        s_and_b32 s25, s2, 3
        s_mul_i32 s25, s25, 896
        s_add_u32 s24, s24, s25
        s_add_u32 s25, s2, 128
        s_lshl_b32 s25, s25, 13
        s_lshl_b32 s26, s{S_W}, 9
        s_add_u32 s25, s25, s26
        s_cmp_ge_u32 s2, 128
        s_cselect_b32 s24, {OOB}, s24
        s_cselect_b32 s25, {OOB}, s25
        v_min_u32 v233, 6, v21
        v_lshlrev_b32 v233, 7, v233
        v_mul_u32_u24 v234, 3584, v22
        v_add_u32 v233, v233, v234
        v_add_u32 v233, s24, v233
        v_and_b32 v234, 3, v21
        v_lshlrev_b32 v234, 7, v234
        v_lshl_add_u32 v234, v22, 10, v234
        v_add_u32 v234, s25, v234
        """)
        if RT == 1: rtouch()
    E("s_branch L_join\nL_w2:")
    tile_path([('v', b) for b in range(3, 9)])
    stamp_dup('e1'); stamp_dup('e2')
    skload()
    E("s_branch L_w23\nL_w3:")
    if MKALL:
        MK2 = 0
        E(f"""
        s_waitcnt lgkmcnt(0)
        s_mov_b32 s68, s70
        s_mov_b32 s69, s71
        s_load_dword s{S_E}, s[4:5], {FL_EPOCH}
        """)
        if MKPOS == 0: markers4()
        stamp_dup('e1')
    else:
        MK4 = opt.get('mk4', 1)
        E(f"""
        v_lshlrev_b32 v33, 12, v21
        v_lshl_add_u32 v33, v22, 4, v33
        v_mov_b32 v36, -1
        v_mov_b32 v37, -1
        v_mov_b32 v38, -1
        v_mov_b32 v39, -1
        s_lshl_b32 s26, s{S_G}, 19
        s_lshl_b32 s27, s{S_M}, 7
        s_sub_u32 s26, s26, s27
        s_add_u32 s26, s26, {WS_KVT + 3968}
        s_waitcnt lgkmcnt(0)
        {srd_fix(S_WS, WS_SRD_BYTES)}
        s_load_dword s{S_E}, s[4:5], {FL_EPOCH}
        """)
        for i in range(16):
            E((f"buffer_store_dwordx4 v[36:39], v33, {WSRD}, s26 offen" if MK4 else f"buffer_store_dword v36, v33, {WSRD}, s26 offen") + (' sc1' if opt.get('mksc', 0) else ''))
            if i < 15: E("s_add_u32 s26, s26, 32768")
        stamp_dup('e1')
        E(f"""
        s_getreg_b32 s24, hwreg(HW_REG_XCC_ID, 0, 4)
        s_and_b32 s25, s2, 63
        s_lshl_b32 s25, s25, 7
        s_lshr_b32 s26, s2, 6
        s_lshl_b32 s26, s26, 2
        s_add_u32 s25, s25, s26
        s_add_u32 s25, s25, {FL_S0}
        s_and_b32 s24, s24, 7
        v_mov_b32 v{VF0}, {OOB}
        v_cmp_eq_u32 vcc, 0, v8
        v_mov_b32 v31, 0
        s_mov_b32 s68, s70
        s_mov_b32 s69, s71
        v_cndmask_b32 v{VF0}, v{VF0}, v31, vcc
        s_waitcnt lgkmcnt(0)
        s_mul_i32 s26, s{S_E}, 0x9e3779b1
        s_add_u32 s26, s26, 0x7f4a7c15
        s_and_b32 s26, s26, 0xfffffff0
        s_or_b32 s24, s24, s26
        v_mov_b32 v31, s24
        s_waitcnt vmcnt(0)
        buffer_store_dword v31, v{VF0}, {WSRD}, s25 offen sc1
        """)
        MK2 = opt.get('mk2', 0)
        if MK2 == 3: skload()
        if MK2:
            E(f"""
            s_lshl_b32 s26, s{S_G}, 19
            s_lshl_b32 s27, s{S_M}, 7
            s_sub_u32 s26, s26, s27
            s_add_u32 s26, s26, {WS_KVT + 3968}
            """)
            for i in range(16):
                E(f"buffer_store_dwordx4 v[36:39], v33, {WSRD}, s26 offen sc1")
                if i < 15: E("s_add_u32 s26, s26, 32768")
    stamp_dup('e2')
    if MK2 != 3: skload()
    E(f"""
    L_w23:
    {srd_fix(68, 1835008)}
    s_mov_b32 s52, s72
    s_mov_b32 s53, s73
    {srd_fix(52, 1835008)}
    """)
    RAWPOS = opt.get('rawpos', 0)
    RAWTHR = opt.get('rawthr', 0)
    if RAWPOS == 0: prep_dma()
    if RAWTHR:
        assert RAWPOS == 1 and MKPOS == 0
        E(f"s_cmp_lt_u32 s2, {RAWTHR}\ns_cbranch_scc1 L_join")
        prep_dma()
    E("L_join:")
    stamp('join')
    if opt.get('tw'):
        E(f"s_waitcnt vmcnt({opt['tw']})")
        stamp('tw')
    HEAD = 60
    PFL = opt.get('pfl', 15)
    E(f"""
    {srd_fix(S_WS, WS_SRD_BYTES)}
    s_lshr_b32 s{S_CP}, s{S_CB}, 1
    s_mov_b32 s76, s58
    s_mov_b32 s77, s59
    {srd_fix(76, 2097152)}
    s_lshl_b32 s24, s{S_CB}, 1
    s_load_dword s{S_D}, s[60:61], s24
    v_and_b32 v23, 31, v0
    v_lshrrev_b32 v24, 7, v0
    v_bfe_u32 v25, v0, 5, 2
    v_lshl_add_u32 v26, v25, 1, v23
    v_add_u32 v26, -30, v26
    v_add_u32 v27, s{S_CB}, v24
    v_lshlrev_b32 v27, 12, v27
    v_lshl_add_u32 v27, v26, 1, v27
    v_cmp_gt_i32 vcc, 0, v26
    v_mov_b32 v31, -16
    v_mul_u32_u24 v61, {HC_CH}, v24
    v_cndmask_b32 v27, v27, v31, vcc
    buffer_load_ushort v{HEAD}, v27, {HSRD}, 0 offen
    v_mul_u32_u24 v31, {HC_J}, v25
    v_add_u32 v61, v61, v31
    v_lshl_add_u32 v61, v23, 1, v61
    s_getpc_b64 s[32:33]
    L_pc:
    s_lshl_b32 s24, s{S_M}, 2
    s_add_u32 s24, s24, s{S_W}
    {'s_and_b32 s24, s24, 31' if PFL == 15 else 's_nop 0'}
    s_lshl_b32 s24, s24, {11 if PFL == 15 else 9}
    v_and_b32 v31, {PFL}, v8
    v_lshlrev_b32 v31, 7, v31
    v_add_u32 v31, s24, v31
    v_min_u32 v31, L_codeend-L_pc-64, v31
    global_load_dword v255, v31, s[32:33]
    """)
    stamp('i_a')
    E(f"""
    s_mov_b32 s{S_OUT}, s74
    s_mov_b32 s{S_OUT+1}, s75
    ; block-stage ids ; q fragment offsets: token = 128 c + 8 role + tok, channels 128 w + 64 c2 + 16 ks + 8 hi ..
    s_and_b32 s{S_ROLE}, s{S_M}, 15
    s_lshr_b32 s24, s{S_M}, 4
    s_lshl_b32 s24, s24, 3
    s_add_u32 s{S_C}, s{S_G}, s24
    s_lshr_b32 s{S_TH}, s{S_ROLE}, 3
    s_and_b32 s{S_J}, s{S_ROLE}, 7
    v_and_b32 v20, 7, v8                     ; tok
    v_bfe_u32 v21, v8, 3, 1                  ; hi
    v_lshrrev_b32 v22, 4, v8                 ; ks
    v_lshlrev_b32 v9, 10, v20
    v_lshl_add_u32 v9, v22, 5, v9
    v_lshl_add_u32 v9, v21, 4, v9
    s_lshl_b32 s24, s{S_C}, 7
    s_lshl_b32 s25, s{S_ROLE}, 3
    s_add_u32 s24, s24, s25
    s_lshl_b32 s24, s24, 10
    s_lshl_b32 s25, s{S_W}, 8
    s_add_u32 s{S_QO}, s24, s25
    {srd_fix(S_Q, 2097152)}
    """)
    ROTP = "" if not opt.get('rot', 0) else f"""s_lshr_b32 s96, s{S_C}, 3
    s_lshl_b32 s96, s96, 1
    s_lshr_b32 s97, s{S_W}, 1
    s_add_u32 s96, s96, s97
    s_sub_u32 s29, s29, s96
    s_and_b32 s29, s29, 3"""
    E(f"""
    s_getreg_b32 s{S_XCC}, hwreg(HW_REG_XCC_ID, 0, 4)
    s_lshl_b32 s{S_W1K}, s{S_W}, 13
    s_mul_i32 s{S_W1}, s{S_ROLE}, 229376
    s_add_u32 s{S_W1}, s{S_W1}, s{S_W1K}
    s_add_u32 s{S_W1}, s{S_W1}, {WS_W1F}
    s_and_b32 s{S_OUT+1}, s{S_OUT+1}, 0xffff
    s_mov_b32 s{S_OUT+2}, 2097152
    s_mov_b32 s{S_OUT+3}, 0x20000
    s_mov_b32 s{S_HI}, 0xffff0000
    s_mov_b32 s{S_LN2}, {LN2:#x}
    s_mov_b32 s{S_LN2+1}, {LN2:#x}
    s_mov_b32 s{S_EXP}, 1
    s_and_b32 s{S_XCC}, s{S_XCC}, 7
    v_add_u32 v{VA1}, 65536, v{VL16}
    v_add_u32 v{VA2}, 131072, v{VL16}
    v_lshlrev_b32 v{VP8}, 2, v20
    v_and_b32 v{VP16}, 15, v8
    v_lshlrev_b32 v{VP16}, 2, v{VP16}
    v_mov_b32 v{VF0}, {OOB}
    v_cmp_eq_u32 vcc, 0, v8
    v_mov_b32 v31, 0
    s_lshr_b32 s30, s{S_ROLE}, 2             ; tt_r
    s_and_b32 s24, s{S_ROLE}, 3
    v_cndmask_b32 v{VF0}, v{VF0}, v31, vcc
    s_lshl_b32 s25, s24, 7
    v_lshlrev_b32 v{VR}, 10, v22
    v_lshl_add_u32 v{VR}, v21, 9, v{VR}
    v_lshl_add_u32 v{VR}, v20, 4, v{VR}
    v_add_u32 v{VR}, s25, v{VR}
    ; stats addresses
    v_lshlrev_b32 v{VSTR}, 5, v20
    v_add_u32 v{VSTR}, {STATS}, v{VSTR}
    v_and_b32 v31, 1, v22
    v_lshl_add_u32 v{VSTW}, v31, 2, v{VSTR}
    s_lshl_b32 s25, s{S_W}, 3
    v_add_u32 v{VSTW}, s25, v{VSTW}
    v_lshlrev_b32 v10, 12, v22
    v_lshl_add_u32 v10, v21, 11, v10
    v_lshl_add_u32 v10, v20, 2, v10
    s_lshl_b32 s25, s{S_G}, {GSH}
    s_lshr_b32 s26, s{S_C}, 3
    s_lshl_b32 s26, s26, 17
    s_add_u32 s25, s25, s26
    s_lshl_b32 s26, s30, 15
    s_add_u32 s{S_R}, s25, s26
    s_lshl_b32 s26, s{S_W}, 13
    s_add_u32 s{S_R}, s{S_R}, s26
    s_lshl_b32 s26, s{S_W}, 15
    s_add_u32 s{S_XNL}, s25, s26             ; XB + w*32768
    s_lshl_b32 s26, s{S_C}, 2
    s_add_u32 s27, s26, s{S_W}
    s_mul_i32 s27, s27, 114688
    s_lshr_b32 s28, s{S_ROLE}, 2
    s_mul_i32 s28, s28, 28
    s_and_b32 s29, s{S_ROLE}, 3
    {ROTP}
    s_add_u32 s28, s28, s29
    s_lshl_b32 s28, s28, 10
    s_add_u32 s{S_HST}, s27, s28
    s_lshl_b32 s27, s{S_TH}, 1
    s_add_u32 s27, s27, s26
    s_mul_i32 s27, s27, 114688
    s_mul_i32 s28, s{S_W}, 28672
    s_add_u32 s{S_HLD}, s27, s28             ; (4c+2th)*114688 + 28w*1024
    s_and_b32 s26, s{S_W}, 1
    s_lshl_b32 s26, s26, 1
    s_lshr_b32 s27, s{S_W}, 1
    s_add_u32 s26, s26, s27
    s_lshl_b32 s27, s{S_J}, 2
    s_add_u32 s26, s26, s27                  ; kappa_o = 4j + 2(w&1) + (w>>1)
    s_lshl_b32 s27, s26, 10
    s_lshl_b32 s28, s{S_TH}, 16
    s_add_u32 s27, s27, s28
    s_add_u32 s{S_XML}, s27, s25
    ; flags
    s_lshl_b32 s25, s{S_C}, 8
    s_lshl_b32 s27, s30, 6
    s_add_u32 s27, s27, s25
    s_lshl_b32 s28, s24, 4
    s_add_u32 s27, s27, s28
    s_lshl_b32 s28, s{S_W}, 2
    s_add_u32 s{S_FXNS}, s27, s28
    s_lshl_b32 s27, s{S_W}, 6
    s_add_u32 s{S_FXNL}, s25, s27            ; c*256 + w*64
    s_lshl_b32 s25, s{S_C}, 10
    s_lshr_b32 s27, s{S_W}, 1
    s_lshl_b32 s27, s27, 7
    s_add_u32 s27, s27, s25
    s_lshl_b32 s29, s{S_ROLE}, 3
    s_add_u32 s27, s27, s29
    s_and_b32 s29, s{S_W}, 1
    s_lshl_b32 s29, s29, 2
    s_add_u32 s{S_FHS}, s27, s29             ; c*1024 + (w>>1)*128 + role*8 + (w&1)*4
    s_lshl_b32 s27, s{S_TH}, 7
    s_add_u32 s27, s27, s25
    s_lshl_b32 s29, s{S_W}, 5
    s_add_u32 s{S_FHL}, s27, s29             ; c*1024 + th*128 + w*32
    s_lshl_b32 s25, s{S_C}, 9
    s_lshl_b32 s27, s{S_TH}, 7
    s_add_u32 s27, s27, s25
    s_lshl_b32 s29, s{S_J}, 4
    s_add_u32 s27, s27, s29
    s_add_u32 s{S_FX2S}, s27, s28            ; c*512 + th*128 + j*16 + w*4
    s_lshr_b32 s27, s30, 1
    s_lshl_b32 s27, s27, 7
    s_add_u32 s27, s27, s25
    s_lshl_b32 s29, s{S_W}, 5
    s_add_u32 s{S_FX2L}, s27, s29            ; c*512 + (tt_r>>1)*128 + w*32
    s_add_u32 s{S_FXNS}, s{S_FXNS}, {FL_XN}
    s_add_u32 s{S_FXNL}, s{S_FXNL}, {FL_XN}
    s_add_u32 s{S_FHS}, s{S_FHS}, {FL_H}
    s_add_u32 s{S_FHL}, s{S_FHL}, {FL_H}
    s_add_u32 s{S_FX2S}, s{S_FX2S}, {FL_X2}
    s_add_u32 s{S_FX2L}, s{S_FX2L}, {FL_X2}
    s_mul_i32 s25, s{S_W}, 6144
    s_add_u32 s25, s25, {SCR}
    v_add_u32 v{VRR}, s25, v{VL16}
    """)
    for m in (1, 2, 3):
        E(f"""
        s_xor_b32 s25, s{S_W}, {m}
        s_mul_i32 s25, s25, 6144
        s_add_u32 s25, s25, {SCR + (m-1)*2048}
        v_add_u32 v{VRW[m-1]}, s25, v{VL16}
        """)
    E(f"""
    s_lshl_b32 s{S_WDB}, s{S_J}, 2
    s_add_u32 s{S_WDB}, s{S_WDB}, s{S_W}
    s_mul_i32 s{S_WDB}, s{S_WDB}, 57344
    s_add_u32 s{S_WDB}, s{S_WDB}, {WS_WDF}
    s_lshr_b32 s25, s{S_W}, 1
    s_lshl_b32 s25, s25, 8
    v_xor_b32 v31, s25, v{VL16}
    s_and_b32 s25, s{S_W}, 1
    s_lshl_b32 s25, s25, 10
    v_add_u32 v{VWD}, s25, v31
    s_xor_b32 s25, s25, 1024
    v_add_u32 v{VWD+1}, s25, v31
    """)
    stamp('pre')
    E(f"""
    s_waitcnt lgkmcnt(0)
    s_mul_i32 s{S_N}, s{S_E}, 0x9e3779b1
    s_add_u32 s{S_N}, s{S_N}, 0x7f4a7c15
    s_and_b32 s{S_N}, s{S_N}, 0xfffffff0
    s_or_b32 s{S_XCC}, s{S_XCC}, s{S_N}
    v_mov_b32 v{VONE}, s{S_N}
    ; flag slot of this work-group in the [64][4] arrays
    s_and_b32 s86, s2, 63
    s_lshl_b32 s86, s86, 7
    s_lshr_b32 s24, s2, 6
    s_lshl_b32 s24, s24, 2
    s_add_u32 s86, s86, s24
    """)
    if opt.get('ftouch', 0):
        E(f"""
        s_lshl_b32 s24, s{S_ROLE}, 1
        v_add_u32 v20, s24, v8
        v_min_u32 v20, 23, v20
        v_lshrrev_b32 v21, 1, v20
        v_and_b32 v22, 1, v20
        v_lshlrev_b32 v21, 12, v21
        v_lshl_add_u32 v21, v22, 7, v21
        s_lshl_b32 s24, s{S_C}, 8
        s_add_u32 s24, s24, {FL_XN}
        v_add_u32 v21, s24, v21
        v_subrev_u32 v22, 4, v20
        v_lshrrev_b32 v23, 3, v22
        v_and_b32 v22, 7, v22
        v_lshlrev_b32 v23, 14, v23
        v_lshl_add_u32 v23, v22, 7, v23
        s_lshl_b32 s24, s{S_C}, 10
        s_add_u32 s24, s24, {FL_H}
        v_add_u32 v23, s24, v23
        v_cmp_lt_u32 vcc, 3, v20
        v_cndmask_b32 v21, v21, v23, vcc
        v_subrev_u32 v22, 20, v20
        v_lshlrev_b32 v22, 7, v22
        s_lshl_b32 s24, s{S_C}, 9
        s_add_u32 s24, s24, {FL_X2}
        v_add_u32 v22, s24, v22                  ; X2 + c*512 + line*128
        v_cmp_lt_u32 vcc, 19, v20
        v_cndmask_b32 v21, v21, v22, vcc
        v_cmp_lt_u32 vcc, 1, v8
        v_mov_b32 v22, {OOB}
        v_cndmask_b32 v{VFT}, v21, v22, vcc
        """)
    stamp('setup')

    VA_, VB_ = 62, 63
    VXW, VKVW, VYS, VT0, VS1P, VEP = 22, 248, 249, 250, 253, 254
    VTR, W1D, WDD, VYP, VS1F = 226, 227, 228, 229, 230
    S_XL = 72
    S_W1DST, S_WDDST, S_YP, S_S1F = 64, 65, 66, 67
    E(f"""
    ; weight images (waves 2 and 3): raw 8-row blocks go to LDS, come back transposed and are stored as MFMA fragments
    s_cmp_eq_u32 s{S_W}, 3
    s_cselect_b32 s28, 256, 0
    s_cselect_b32 s29, 4, 0                  ; first Wd block of this wave
    s_lshr_b32 s24, s2, 2                    ; kg
    s_and_b32 s25, s2, 3                     ; fq
    v_bfe_u32 v20, v8, 2, 2
    v_lshlrev_b32 v{VTR}, 7, v20
    v_lshrrev_b32 v21, 4, v8                 ; g
    v_lshl_add_u32 v{VTR}, v21, 5, v{VTR}
    v_and_b32 v20, 3, v8
    v_lshl_add_u32 v{VTR}, v20, 3, v{VTR}
    v_add_u32 v{VTR}, s{S_PST}, v{VTR}
    v_and_b32 v20, 3, v8
    v_bfe_u32 v23, v8, 2, 1
    v_lshl_or_b32 v20, v23, 3, v20
    v_bfe_u32 v23, v8, 3, 1
    v_lshl_or_b32 v20, v23, 2, v20
    v_lshlrev_b32 v20, 4, v20                ; row * 16
    v_lshl_add_u32 v{W1D}, v21, 15, v20      ; + g * 32768
    s_mul_i32 s26, s25, {28*32768}
    s_lshr_b32 s27, s24, 1
    s_lshl_b32 s27, s27, 10
    s_add_u32 s26, s26, s27
    s_and_b32 s27, s24, 1
    s_lshl_b32 s27, s27, 9
    s_add_u32 s26, s26, s27
    s_add_u32 s26, s26, s28
    s_add_u32 s{S_W1DST}, s26, {WS_W1F}
    v_lshrrev_b32 v23, 1, v21
    v_lshl_add_u32 v{WDD}, v23, 10, v20      ; + dt * 1024
    v_and_b32 v23, 1, v21
    v_lshl_add_u32 v{WDD}, v23, 8, v{WDD}    ; + 16 rows
    s_lshr_b32 s24, s2, 1                    ; kf
    s_mul_i32 s25, s24, 2341
    s_lshr_b32 s25, s25, 16                  ; kf / 28
    s_mul_i32 s26, s25, 28
    s_sub_u32 s26, s24, s26
    s_mul_i32 s25, s25, 57344
    s_lshl_b32 s26, s26, 11
    s_add_u32 s25, s25, s26
    s_and_b32 s26, s2, 1
    s_lshl_b32 s26, s26, 9
    s_add_u32 s25, s25, s26
    s_mul_i32 s26, s29, 229376
    s_add_u32 s25, s25, s26
    s_add_u32 s25, s25, {WS_WDF}
    s_cmp_ge_u32 s2, 224
    s_cselect_b32 s{S_WDDST}, 0xf0000000, s25
    ; markers of the Y rows: waves 2 and 3 take eight clusters each
    v_lshrrev_b32 v{VYP}, 5, v8
    v_and_b32 v20, 31, v8
    v_lshlrev_b32 v{VYP}, 17, v{VYP}
    v_lshl_add_u32 v{VYP}, v20, 4, v{VYP}
    s_lshl_b32 s24, s{S_CP}, 9
    s_lshl_b32 s25, s29, 18
    s_add_u32 s24, s24, s25
    s_add_u32 s{S_YP}, s24, {WS_Y}
    ; images-complete flag: index 2 b + (w & 1) -> line index & 127, dword index >> 7
    s_lshl_b32 s24, s2, 1
    s_and_b32 s25, s{S_W}, 1
    s_add_u32 s24, s24, s25
    s_and_b32 s25, s24, 127
    s_lshl_b32 s25, s25, 7
    s_lshr_b32 s24, s24, 7
    s_lshl_b32 s24, s24, 2
    s_add_u32 s24, s24, s25
    s_add_u32 s{S_S1F}, s24, {FL_S1}
    s_cmp_ge_u32 s{S_W}, 2
    s_cselect_b32 s24, 0, {OOB}
    v_or_b32 v{VS1F}, s24, v{VF0}
    s_lshl_b32 s24, s{S_W}, 12
    s_add_u32 s24, s24, {FL_S1}
    v_and_b32 v20, 31, v8
    v_lshlrev_b32 v{VS1P}, 7, v20
    v_add_u32 v{VS1P}, s24, v{VS1P}
    v_and_b32 v20, 15, v8                    ; r
    v_lshrrev_b32 v21, 4, v8                 ; g
    v_and_b32 v22, 3, v8                     ; j'
    v_bfe_u32 v23, v8, 2, 2                  ; q
    s_lshr_b32 s24, s{S_W}, 1                ; ch
    s_and_b32 s25, s{S_W}, 1
    s_lshl_b32 s25, s25, 8
    s_mul_i32 s26, s24, {HC_CH}
    s_add_u32 s26, s26, s25
    v_mul_u32_u24 v24, {HC_J}, v22
    v_add_u32 v25, v21, v23
    v_lshl_add_u32 v24, v25, 4, v24
    v_add_u32 v{VA_}, s26, v24
    s_mul_i32 s26, s24, {XR_CH}
    s_add_u32 s26, s26, s25
    s_add_u32 s26, s26, {XRB + 16*252 - 3584}
    v_and_b32 v22, 7, v8                     ; n'
    v_bfe_u32 v23, v8, 3, 1                  ; par'
    v_mul_u32_u24 v24, {XR_P}, v23
    v_lshlrev_b32 v25, 6, v22
    v_sub_u32 v24, v24, v25
    v_lshl_add_u32 v24, v21, 4, v24
    v_add_u32 v{VB_}, s26, v24
    v_lshrrev_b32 v20, 6, v0
    v_and_b32 v20, 1, v20
    v_mul_u32_u24 v20, {XR_CH}, v20
    v_bfe_u32 v21, v0, 5, 1
    v_mul_u32_u24 v21, {XR_P}, v21
    v_add_u32 v20, v20, v21
    v_and_b32 v21, 31, v0
    v_lshl_add_u32 v20, v21, 4, v20
    v_add_u32 v20, {XRB + 4096}, v20
    v_mov_b32 v24, 0
    v_mov_b32 v25, 0
    v_mov_b32 v26, 0
    v_mov_b32 v27, 0
    """)
    E.ds("ds_write_b128 v20, v[24:27]", 'pad')
    E(f"""
    ; kv stage: thread = (channel pair cp = 8 w + (lane >> 3), token group tg = lane & 7) ; stores at cp*16384 + 4080 - 128 m - 16 tg
    v_lshrrev_b32 v20, 3, v0                 ; cp
    v_and_b32 v21, 7, v8                     ; tg
    v_lshlrev_b32 v53, {14 - P1}, v20
    v_lshlrev_b32 v23, 4, v21
    v_sub_u32 v53, v53, v23
    s_lshl_b32 s24, s{S_M}, 7
    s_sub_u32 s24, 4080, s24
    v_add_u32 v53, s24, v53
    ; staging tile reads
    v_mul_u32_u24 v54, {TBS}, v21
    v_lshl_add_u32 v54, v20, 2, v54
    v_add_u32 v55, {VT}, v54
    v_add_u32 v54, {KT}, v54
    ; group flag poll: line 8 l + gamma
    v_and_b32 v30, 7, v8
    v_lshlrev_b32 v30, 10, v30
    s_lshl_b32 s24, s{S_G}, 7
    s_add_u32 s24, s24, {FL_S0}
    v_add_u32 v30, s24, v30
    s_and_b32 s25, s{S_W}, 1
    s_mul_i32 s24, s25, {XR_CH}
    s_add_u32 s24, s24, {XRB}
    v_add_u32 v{VXW}, s24, v{VL16}
    s_add_u32 s24, s{S_CB}, s25
    s_lshl_b32 s24, s24, {13 - P1}
    s_add_u32 s{S_XL}, s24, {WS_KVT}
    s_add_u32 s{S_XL+1}, s24, {WS_KVT + 4096}
    v_and_b32 v20, 7, v8                     ; n'
    v_bfe_u32 v21, v8, 3, 1                  ; par'
    v_lshrrev_b32 v23, 4, v8                 ; g
    v_lshlrev_b32 v31, 6, v20
    v_lshl_add_u32 v31, v23, 4, v31          ; 64 n' + 16 g
    v_mul_u32_u24 v{VKVW}, {XR_P}, v21
    v_sub_u32 v{VKVW}, v{VKVW}, v31
    s_lshl_b32 s24, s{S_W}, 10
    s_sub_u32 s24, {XRB + 4080 - 512}, s24
    v_add_u32 v{VKVW}, s24, v{VKVW}
    v_lshrrev_b32 v31, 2, v20
    v_lshlrev_b32 v{VYS}, 17, v31
    v_and_b32 v31, 3, v20
    v_lshl_add_u32 v{VYS}, v31, 7, v{VYS}
    v_lshl_add_u32 v{VYS}, v23, 5, v{VYS}
    v_lshl_add_u32 v{VYS}, v21, 4, v{VYS}    ; (n'>>2)*131072 + (n'&3)*128 + g*32 + par'*16
    s_lshl_b32 s24, s{S_CP}, 9
    s_lshl_b32 s25, s{S_W}, 19
    s_add_u32 s24, s24, s25
    s_add_u32 s58, s24, {WS_Y}               ; + cp*512 + 2w*262144
    s_lshl_b32 s24, s{S_C}, 17
    s_lshl_b32 s25, s{S_ROLE}, 5
    s_add_u32 s24, s24, s25
    s_lshl_b32 s25, s{S_W}, 15
    s_add_u32 s24, s24, s25
    s_add_u32 s59, s24, {WS_Y}               ; + c*131072 + role*32 + 64w*512
    s_lshl_b32 s60, s{S_D}, 16
    s_and_b32 s61, s{S_D}, 0xffff0000
    v_mov_b32 v{VT0}, {OOB}
    v_mov_b32 v31, 0
    v_cmp_eq_u32 vcc, 0, v0
    s_lshl_b32 s24, s{S_G}, {GSH}
    s_add_u32 s80, s24, {WS_KVT}
    v_cndmask_b32 v{VT0}, v{VT0}, v31, vcc
    s_cmp_eq_u32 s2, 0
    s_cselect_b32 s24, {FL_EPOCH}, {OOB}
    v_add_u32 v{VEP}, s24, v{VT0}
    v_or_b32 v{VEP}, v{VEP}, v{VT0}
    s_add_u32 s81, s80, 4096
    s_add_u32 s82, s80, 8192
    s_add_u32 s83, s80, 12288
    """)
    stamp('setup2')
    def s0publish(lbl):
        E(f"""
        s_cmp_lg_u32 s{S_W}, 0
        s_cbranch_scc1 {lbl}
        v_mov_b32 v31, s{S_XCC}
        s_add_u32 s25, s86, {FL_S0}
        buffer_store_dword v31, v{VF0}, {WSRD}, s25 offen sc1
        {lbl}:
        """)
    if MKALL and MKPOS == 0:
        E(f"""
        s_cmp_ge_u32 s{S_W}, 2
        s_cbranch_scc1 L_bm2
        s_waitcnt vmcnt({6 + 1 + 4*len(HEARLY) + 2 + (2 if RT == 1 else 0)})
        s_branch L_bmx
        L_bm2:
        {f's_cmp_ge_u32 s2, {RAWTHR}' if RAWTHR else ''}
        {'s_cbranch_scc1 L_bm4' if RAWTHR else ''}
        s_cmp_eq_u32 s{S_W}, 3
        s_cbranch_scc1 L_bm3
        s_waitcnt vmcnt({9 + (11 if RAWPOS == 0 else 0)})
        s_branch L_bmx
        L_bm3:
        s_waitcnt vmcnt({3 + (11 if RAWPOS == 0 else 0)})
        """)
        if RAWTHR:
            E(f"""
            s_branch L_bmx
            L_bm4:
            s_cmp_eq_u32 s{S_W}, 3
            s_cbranch_scc1 L_bm5
            s_waitcnt vmcnt(20)
            s_branch L_bmx
            L_bm5:
            s_waitcnt vmcnt(14)
            """)
        E("""
        L_bmx:
        s_barrier
        """)
        s0publish('L_bmy')
        stamp('bm')
    if MKPOS == 1:
        markers4(fix=False)
        stamp('bm')
    if opt.get('ftouch', 0) == 1:
        l_ = E.label('L_ft')
        E(f"s_cmp_lg_u32 s{S_W}, 0\ns_cbranch_scc1 {l_}\nbuffer_load_dword v{VFT}, v{VFT}, {WSRD}, 0 offen\n{l_}:")
    FTW = FTW2 = ""
    NX0 = (1 if opt.get('ftouch', 0) == 1 else 0) + (1 if MKALL and MKPOS == 0 else 0)
    NY01 = (4*len(HEARLY) + 2 + (2 if RT else 0)) if MKPOS != 1 else 0
    if RT == 2:
        E(f"s_cmp_ge_u32 s{S_W}, 2\ns_cbranch_scc1 L_rt2")
        rtouch()
        E("L_rt2:")
    if NX0:
        FTW = f"s_cmp_eq_u32 s{S_W}, 0\ns_cbranch_scc1 L_g2c"
        FTW2 = f"L_g2c:\ns_waitcnt vmcnt({NY01 + NX0})\ns_branch L_g2x"
    E(f"""
    s_cmp_ge_u32 s{S_W}, 2
    s_cbranch_scc1 L_g2b
    {FTW}
    s_waitcnt vmcnt({NY01})
    s_branch L_g2x
    {FTW2}
    L_g2b:
    """)
    def kvtouch():
        E(f"""
        v_lshlrev_b32 v{VFT+1}, 12, v8
        s_lshl_b32 s26, s{S_G}, 19
        s_lshl_b32 s27, s{S_M}, 7
        s_sub_u32 s26, s26, s27
        s_add_u32 s26, s26, {WS_KVT + 3968}
        s_add_u32 s27, s26, 262144
        buffer_load_dword v{VFT+2}, v{VFT+1}, {WSRD}, s26 offen
        buffer_load_dword v{VFT+3}, v{VFT+1}, {WSRD}, s27 offen
        """)
    MKT = opt.get('mkt', 0)
    if RAWTHR:
        E(f"s_cmp_lt_u32 s2, {RAWTHR}\ns_cbranch_scc1 L_g2f\ns_waitcnt vmcnt(13)\ns_branch L_g2x\nL_g2f:")
    if RAWPOS == 1:
        E(srd_fix(68, 1835008))
        if MKT == 2:
            E(f"s_cmp_lg_u32 s{S_W}, 3\ns_cbranch_scc1 L_g2e")
            kvtouch()
            E("L_g2e:")
        prep_dma()
        if MKT == 1:
            E(f"s_cmp_lg_u32 s{S_W}, 3\ns_cbranch_scc1 L_g2d")
            kvtouch()
            E("s_waitcnt vmcnt(13)\ns_branch L_g2x\nL_g2d:")
        if MKT == 2:
            E(f"s_cmp_lg_u32 s{S_W}, 3\ns_cbranch_scc1 L_g2d")
            E("s_waitcnt vmcnt(13)\ns_branch L_g2x\nL_g2d:")
    E(f"""
    s_waitcnt vmcnt({13 if RAWPOS == 0 else 11 if RAWPOS == 1 else 2 if MKPOS != 1 else 0})
    L_g2x:
    """)
    stamp('i_b')
    if MKPOS == 2: markers4(fix=False)
    E.vmq = []
    E.wait_ds('pad')
    E("s_barrier")
    if MKPOS == 1: s0publish('L_bmy')
    stamp('b0')
    S0R = 24
    def s0poll(): E.vm(f"buffer_load_dwordx4 v[{S0R}:{S0R+3}], v30, {WSRD}, 0 offen sc1", 's0')
    S0AT = opt.get('s0at', 1)
    if S0AT == 0: s0poll()
    KR, VRW_ = 32, 44
    for x in range(0, 8, 2): E.ds(f"ds_read2_b32 v[{KR+x}:{KR+x+1}], v54 offset0:{32*x} offset1:{32*(x+1)}", 'kv')
    E(f"v_add_u32 v20, {TBS}, v54\nv_add_u32 v21, {TBS}, v55")
    for x in range(8, 12, 2): E.ds(f"ds_read2_b32 v[{KR+x}:{KR+x+1}], v20 offset0:{32*(x-8)} offset1:{32*(x-7)}", 'kv')
    for x in range(0, 8, 2): E.ds(f"ds_read2_b32 v[{VRW_+x}:{VRW_+x+1}], v55 offset0:{32*x} offset1:{32*(x+1)}", 'kv')
    E.ds(f"ds_read_b32 v{VRW_+8}, v21", 'kv')
    if RAWPOS == 2:
        E(f"s_cmp_lt_u32 s{S_W}, 2\ns_cbranch_scc1 L_rw2")
        E(srd_fix(68, 1835008))
        prep_dma()
        E("L_rw2:")
    E(f"""
    v_lshlrev_b32 v136, 16, v{SK}
    v_lshlrev_b32 v137, 16, v{SK+2}
    v_and_b32 v138, s{S_HI}, v{SK}
    v_and_b32 v139, s{S_HI}, v{SK+2}
    v_lshlrev_b32 v140, 16, v{SK+1}
    v_lshlrev_b32 v141, 16, v{SK+3}
    v_and_b32 v142, s{S_HI}, v{SK+1}
    v_and_b32 v143, s{S_HI}, v{SK+3}
    """)
    E.wait_ds('kv')
    for i in range(12): E(f"v_lshlrev_b32 v{96+2*i}, 16, v{KR+i}\nv_and_b32 v{97+2*i}, s{S_HI}, v{KR+i}")
    if S0AT == 1: s0poll()
    for i in range(9): E(f"v_lshlrev_b32 v{164+2*i}, 16, v{VRW_+i}\nv_and_b32 v{165+2*i}, s{S_HI}, v{VRW_+i}")
    def K(x): return f"v[{96+2*x}:{97+2*x}]"
    def KV(i): return 144 + 2*i
    KVI = range(1, 9) if P1 else range(9)
    for i in KVI: E(f"v_pk_mul_f32 v[{KV(i)}:{KV(i)+1}], v[136:137], {K(i+3)}")
    if S0AT == 2: s0poll()
    for tap in (1, 2, 3):
        for i in KVI: E(f"v_pk_fma_f32 v[{KV(i)}:{KV(i)+1}], v[{136+2*tap}:{137+2*tap}], {K(i+3-tap)}, v[{KV(i)}:{KV(i)+1}]")
    if S0AT == 3: s0poll()
    for i in KVI: E(f"v_pk_mul_f32 v[{KV(i)}:{KV(i)+1}], v[{KV(i)}:{KV(i)+1}], v[{164+2*i}:{165+2*i}]")
    if MKPOS == 2:
        assert S0AT == 4
        if RAWPOS == 2 and not MKW:
            E(f"s_cmp_ge_u32 s{S_W}, 2\ns_cbranch_scc1 L_mq2\ns_waitcnt vmcnt(0)\ns_branch L_mq3\nL_mq2:\ns_waitcnt vmcnt(11)\nL_mq3:")
        elif MKW:
            E(f"s_cmp_ge_u32 s{S_W}, 2\ns_cbranch_scc1 L_mq2\ns_waitcnt vmcnt(0)\nL_mq2:")
        else: E("s_waitcnt vmcnt(0)")
        stamp('mq')
        E("s_barrier")
        s0publish('L_bmy')
        stamp('bm')
    if S0AT == 4: s0poll()
    for c in range(2):
        for par in range(1 if P1 else 2):
            b = KR + 8*c + 4*par
            for d in range(4): E(f"v_cvt_pk_bf16_f32 v{b+d}, v{KV(8-par-2*d)+c}, v{KV(7-par-2*d)+c}")
            E.vm(f"buffer_store_dwordx4 v[{b}:{b+3}], v53, {WSRD}, s{80 + (c if P1 else 2*c + par)} offen" + FL('kv', 0), 'kvst')
    stamp('kvst')

    X, Y = 128, 136
    XF, YF, T = 144, 160, 176
    def stats(src, rnd, between=None, scale=False):
        P, Q = 192, 194
        E(f"v_pk_add_f32 v[{P}:{P+1}], v[{src}:{src+1}], v[{src+2}:{src+3}]")
        E(f"v_pk_mul_f32 v[{Q}:{Q+1}], v[{src}:{src+1}], v[{src}:{src+1}]")
        for i in range(1, 8):
            E(f"v_pk_fma_f32 v[{Q}:{Q+1}], v[{src+2*i}:{src+2*i+1}], v[{src+2*i}:{src+2*i+1}], v[{Q}:{Q+1}]")
            if i >= 2: E(f"v_pk_add_f32 v[{P}:{P+1}], v[{P}:{P+1}], v[{src+2*i}:{src+2*i+1}]")
        E(f"""
        v_add_f32 v{P}, v{P}, v{P+1}
        v_add_f32 v{Q}, v{Q}, v{Q+1}
        v_permlane16_swap_b32 v{P}, v{Q}
        v_add_f32 v{P}, v{P}, v{Q}
        v_add_f32_dpp v{P}, v{P}, v{P} row_ror:8 row_mask:0xf bank_mask:0xf
        v_mov_b32 v{P+1}, v{P}
        v_permlane32_swap_b32 v{P}, v{P+1}
        v_add_f32 v{P}, v{P}, v{P+1}
        s_mov_b64 exec, 0x00ff00ff
        """)
        E.ds(f"ds_write_b32 v{VSTW}, v{P} offset:{rnd*256}", 'stw')
        E("s_mov_b64 exec, -1")
        E.wait_ds('stw')
        E("s_barrier")
        E.ds(f"ds_read_b128 v[196:199], v{VSTR} offset:{rnd*256}", 'str')
        E.ds(f"ds_read_b128 v[200:203], v{VSTR} offset:{rnd*256+16}", 'str')
        if between: between()
        E.wait_ds('str')
        E(f"""
        v_pk_add_f32 v[196:197], v[196:197], v[198:199]
        v_pk_add_f32 v[200:201], v[200:201], v[202:203]
        v_pk_add_f32 v[196:197], v[196:197], v[200:201]
        v_mul_f32 v196, 0x3b000000, v196
        v_mul_f32 v197, 0x3b000000, v197
        v_fma_f32 v197, -v196, v196, v197
        v_max_f32 v197, 0, v197
        v_add_f32 v197, 0x3727c5ac, v197
        v_rsq_f32 v204, v197
        s_nop 0
        """)
        if scale: E(f"v_mul_f32 v204, {LOG2E:#x}, v204")
        E("v_mul_f32_e64 v206, -v196, v204")
    def norm(dst, src):
        for i in range(8):
            E(f"v_pk_fma_f32 v[{dst+2*i}:{dst+2*i+1}], v[{src+2*i}:{src+2*i+1}], v[204:205], v[206:207] op_sel_hi:[1,0,0]")
    def unpack(dst, src, n):
        for i in range(n):
            E(f"v_lshlrev_b32 v{dst+2*i}, 16, v{src+i}")
            E(f"v_and_b32 v{dst+2*i+1}, s{S_HI}, v{src+i}")
    S_XMD = 64
    def R_pre(L, between=None):
        unpack(XF, X, 8)
        if P1 and L == 1:
            for i in range(8): E(f"v_pk_add_f32 v[{XF+2*i}:{XF+2*i+1}], v[{XF+2*i}:{XF+2*i+1}], v[{T+2*i}:{T+2*i+1}]")
            if opt.get('x2r', 0):
                for i in range(8): E(f"v_cvt_pk_bf16_f32 v{X+i}, v{XF+2*i}, v{XF+2*i+1}")
                unpack(XF, X, 8)
        stats(XF, 0, between)
        norm(T, XF)
        stamp(f'R{L}s1')
    def R_post(L, early=None, late=None):
        unpack(YF, Y, 8)
        for i in range(8):
            E(f"v_pk_fma_f32 v[{XF+2*i}:{XF+2*i+1}], v[{T+2*i}:{T+2*i+1}], v[{YF+2*i}:{YF+2*i+1}], v[{XF+2*i}:{XF+2*i+1}]")
        M = 20 if (P1 and L == 0) else 208
        for i in range(8): E(f"v_cvt_pk_bf16_f32 v{M+i}, v{XF+2*i}, v{XF+2*i+1}")
        def xmst():
            if P1 and L == 0: return
            if P1: E(f"s_add_u32 s{S_T0}, s{S_R}, s{S_XMD}\ns_add_u32 s{S_T1}, s{S_T0}, 4096")
            else: sadd(S_T0, S_R, WS_XM); sadd(S_T1, S_R, WS_XM + 4096)
            E.vm(f"buffer_store_dwordx4 v[{M}:{M+3}], v{VR}, {WSRD}, s{S_T0} offen" + FL('xm', L), 'rst')
            E.vm(f"buffer_store_dwordx4 v[{M+4}:{M+7}], v{VR}, {WSRD}, s{S_T1} offen" + FL('xm', L), 'rst')
        def behind():
            xmst()
            E.vm(f"buffer_store_dword v{VONE}, v{VEP}, {WSRD}, 0 offen sc1", 'ep')
            if late: late()
        if L == 1: xmst()
        if early: early()
        stats(XF, 1, between=behind if L == 0 else late, scale=True)
        norm(T, XF)
        N = 216
        for i in range(8): E(f"v_cvt_pk_bf16_f32 v{N+i}, v{T+2*i}, v{T+2*i+1}")
        sadd(S_T0, S_R, WS_XN); sadd(S_T1, S_R, WS_XN + 4096)
        E.vm(f"buffer_store_dwordx4 v[{N}:{N+3}], v{VR}, {WSRD}, s{S_T0} offen" + FL('xn', L), 'rst')
        E.vm(f"buffer_store_dwordx4 v[{N+4}:{N+7}], v{VR}, {WSRD}, s{S_T1} offen" + FL('xn', L), 'rst')
        stamp(f'R{L}st')
    def Rpub(L):
        publish(S_FXNS, 0, 'rst')
        E("s_barrier")
        stamp(f'R{L}pub')

    ORDER = {}
    def g2_order():
        stA = [0, 1, 2]; stB = [3, 4, 5]; stC = [6]
        def blocks(tt, ps): return [(tt, rho, p) for p in ps for rho in range(4)]
        b1 = blocks(1, stB); nb1 = opt.get('b1_first', 4)
        return blocks(0, stA) + blocks(1, stA) + blocks(0, stB) + b1[:nb1] + blocks(0, stC) + b1[nb1:] + blocks(1, stC)
    def wd_kseq(L):
        kseq = []
        for (tt, rho, p) in g2_order():
            kp = rho*7 + LAYERS[L]['tau'][p]
            if kp not in kseq: kseq.append(kp)
        if opt.get('rot', 0): kseq.sort(key=lambda kp: kp // 7)
        return kseq
    def make_bulk():
        c = LAYERS[0]; ops = []
        ks = wd_kseq(0); npre = opt.get('wd_pre', 0)
        for p in range(3): ops += dma_stream(c['tau'][p], c['slot'][p], f'w1_{p}')
        ops += wd_stream(ks[:npre])
        ops += dma_stream(c['tau'][3], c['slot'][3], 'w1_3')
        if not opt.get('nowd', 0): ops += wd_stream(ks[npre:])
        return Bulk(ops)
    BK = {}

    def layer(L):
        cfg = LAYERS[L]; tau = cfg['tau']; slot = cfg['slot']
        O = lambda k, d: opt.get(f'{k}{L}', opt.get(k, d))
        G2 = 224; NS = 336; lastslot = NS - 1
        BUD = O('bud', 24); VGAP = O('vgap', 2)
        F = {}; cost = [0]*(NS + 64); vslots = set()
        for i in range(G2):
            if i + LA < G2: cost[i] += 4
            if i % 2 == 0: cost[i] += 4
            if i < 96 and i % 3 == 0 and i > 0: cost[i] += 4
        for i in range(G2, NS, 2): cost[i] += 4
        RANK = {'m': 0, 's': 1, 'v': 2}
        def at(i, f, c=4, k='v'): F.setdefault(i, ([], [], []))[RANK[k]].append(f); cost[i] += c
        last = {'k': 'm', 't': -1}
        def put(t, f, c=4, k='v', vm=False, chain=False):
            if vm: k = 'm'
            if chain:
                t = max(t, last['t'] + (1 if RANK[k] < RANK[last['k']] else 0))
            while cost[t] + c > BUD or (vm and any((t + d) in vslots for d in range(-VGAP + 1, VGAP))): t += 1
            if vm: vslots.add(t)
            at(t, f, c, k); last['k'] = k; last['t'] = t
            return t
        def stream(t, ops):
            first = True
            for (c, vm, f) in ops:
                t = put(t, f, c, 's', vm, chain=not first); first = False
            return t
        def T_(s): return lambda: E(s)
        def barrier(): E("s_barrier")
        poll_issue(VP16, S_FXNL, 0, f'pxn{L}')
        if L == 0: BK['b'].emit(opt.get('bk_pub', 0))
        poll_check(VP16, S_FXNL, 0, f'pxn{L}')
        stamp(f'L{L}xnok')
        def xops(k):
            ops = []
            if k % 4 == 0: ops.append((4, False, lambda: sadd(S_XA, S_XNL, WS_XN + (k >> 2)*4096)))
            off = (k & 3)*1024
            ops.append((4, True, lambda: E.vm(f"buffer_load_dwordx4 v[{XR+4*k}:{XR+4*k+3}], v{VL16}, {WSRD}, s{S_XA} offen" + (f" offset:{off}" if off else "") + LSC, f'x{L}_{k}')))
            return ops
        n_up = O('nup', 5)
        for k in range(n_up):
            for (_, _, f) in xops(k): f()
        seq = []
        for k in range(32):
            for p in range(3): seq.append(('g1', p, k))
        for p in range(3, 7):
            for k in range(32): seq.append(('g1', p, k))
        accp = [0, 1, 2, 3, 0, 1, 2]
        def a_addr(p, k):
            s = slot[p]
            base = [VL16, VL16, VA1, VA1, VA2][s]
            off = (s & 1)*SLOT + k*1024 if s < 4 else k*1024
            return base, off
        def rd(i):
            _, p, k = seq[i]
            b, off = a_addr(p, k)
            r = RING + 4*(i % 8)
            E.ds(f"ds_read_b128 v[{r}:{r+3}], v{b} offset:{off}", f'a{L}_{i}')
        order = g2_order()
        assert len(order) == 56
        last0 = max(n for n, b in enumerate(order) if b[0] == 0)
        acc2 = {0: [ACC[0], ACC[1]], 1: [ACC[3], ACC[2]]}
        NH = 37
        def hreg(n):
            q = n % NH
            return ar(A_H + 4*q, 4) if q < 5 else vr(XR + 4*(q - 5), 4)
        def epilogue(p, o):
            c = ACC[accp[p]]
            for e in range(8):
                at(o + e, T_(f"v_exp_f32_e64 v{c+e}, -v{c+e}"), 8)
                at(o + e + 1, T_(f"v_add_f32 v{c+e}, 1.0, v{c+e}"))
                at(o + 8 + e, T_(f"v_rcp_f32 v{c+e}, v{c+e}"), 8)
                at(o + 9 + e, T_(f"v_mul_f32 v{c+e}, v{c+e}, v{c+8+e}"))
        def epilogue2(p, o):
            c = ACC[accp[p]]
            t = 0
            for k in range(4):
                t = put(max(t, o + 11 + 2*k), T_(f"v_cvt_pk_bf16_f32 v{c+8+k}, v{c+2*k}, v{c+2*k+1}"))
            stage = 'A' if p < 3 else ('B' if p < 6 else 'C')
            put(o + 10, T_(f"s_add_u32 s{S_HS[p & 1]}, s{S_HST}, {WS_H + tau[p]*4096}"), k='s')
            return put(t + 1, lambda: E.vm(f"buffer_store_dwordx4 v[{c+8}:{c+11}], v{VL16}, {WSRD}, s{S_HS[p & 1]} offen" + FL('h', L), f'h{stage}{L}'), vm=True)
        eo = [99, 115, 131, 147, 163, 196, 228]
        for p in range(7): epilogue(p, eo[p])
        est = [epilogue2(p, eo[p]) for p in range(7)]
        assert est[0] < 126 and est[1] < 158 and est[2] < 190 and est[5] < 222 and est[6] < 248, est
        at(121, lambda: (E.wait_vm(f'w4{L}'), barrier()), 8, 's')
        at(96, barrier, 4, 's')
        at(153, lambda: (E.wait_vm(f'w5{L}'), barrier()), 8, 's')
        at(185, lambda: (E.wait_vm(f'w6{L}'), barrier()), 8, 's')
        t = 0
        for k in range(n_up, 32):
            t = stream(max(t + (1 if k % 4 == 0 and k > n_up else 0), O('xsp', 2)*(k - n_up)), xops(k))
        t = stream(t + 1, dma_stream(tau[4], slot[4], f'w4{L}'))
        w4end = t
        t = stream(97, dma_stream(tau[5], slot[5], f'w5{L}'))
        w5end = t
        t = stream(t + 1, dma_stream(tau[6], slot[6], f'w6{L}'))
        w6end = t
        assert w4end < 108 and w5end < 140 and w6end < 172, (w4end, w5end, w6end)
        if L == 0 and opt.get('htg'):
            def ht_ops(p0, np_):
                ops = [(4, False, lambda x=x: E(x)) for x in (f"v_lshrrev_b32 v30, 3, v8", f"v_min_u32 v30, {np_-1}, v30", f"v_lshlrev_b32 v30, 12, v30", f"v_and_b32 v31, 7, v8", f"v_lshl_add_u32 v30, v31, 7, v30")]
                return ops + [(4, False, lambda: E(f"s_add_u32 s{S_T2}, s{S_HST}, {WS_H + tau[p0]*4096}")),
                        (4, True, lambda: E.vm(f"buffer_load_dword v31, v30, {WSRD}, s{S_T2} offen", 'ht'))]
            assert tau == list(range(7))
            m = opt['htg']
            if m == 1:
                stream(w4end - 6, ht_ops(0, 3)); stream(w5end - 6, ht_ops(3, 4))
            elif m == 2:
                stream(w4end - 6, ht_ops(0, 7))
            elif m == 3:
                stream(2, ht_ops(0, 7))
        XM0 = 20; XM1 = 24
        def xm_ops(tt):
            return [(4, False, (lambda: sadd(S_XA, S_XML, WS_XM + tt*32768)) if not P1 else (lambda: E(f"s_add_u32 s{S_XA}, s{S_XML if tt == 0 else S_XA}, {f's{S_XMD}' if tt == 0 else 32768}"))),
                    (4, True, lambda: E.vm(f"buffer_load_dwordx4 v[{XM0+4*tt}:{XM0+4*tt+3}], v{VL16}, {WSRD}, s{S_XA} offen" + LSC, f'xm{L}'))]
        NOXM = P1 and L == 0
        if not NOXM: stream(stream(O('xm_at', 152), xm_ops(0)) + 1, xm_ops(1))
        fh = 0
        pub = {}; chk = {}
        for (st_, k, e) in (('A', 0, est[2]), ('B', 1, est[5]), ('C', 2, est[6])):
            tp = put(O('pub' + st_, e + 12), lambda st_=st_: E.wait_vm(f'h{st_}{L}'), k='s')
            tp = put(tp, lambda st_=st_, k=k: publish(S_FHS, fh + 256*k, f'h{st_}{L}', wait=False), 4, 'm', chain=True)
            tq = put(O('poll' + st_, tp + 8), lambda st_=st_, k=k: poll_issue(VP8, S_FHL, fh + 256*k, f'p{st_}{L}'), 4, 'm')
            tc = put(O('chk' + st_, tq + (12 if st_ == 'A' else 14)), lambda st_=st_: E.wait_vm(f'p{st_}{L}'), k='s')
            tc = put(tc, lambda st_=st_, k=k: poll_check(VP8, S_FHL, fh + 256*k, f'p{st_}{L}', wait=False), 8, 'v', chain=True)
            pub[st_] = tp; chk[st_] = tc
        hslot = {}
        for n0 in range(0, 56, 4):
            tt, _, p = order[n0]
            sreg = S_HA[(n0 >> 2) & 1]
            rdy = chk['A' if p < 3 else 'B' if p < 6 else 'C'] + 1
            prev = max([hslot[m] for m in range(max(0, n0 - 8), max(0, n0 - 4))], default=0)
            ta = put(max(prev, rdy - 3), lambda tt=tt, p=p, sreg=sreg: E(f"s_add_u32 s{sreg}, s{S_HLD}, {WS_H + tt*114688 + tau[p]*4096}"), k='s') + 1
            for n in range(n0, n0 + 4):
                assert order[n][0] == tt and order[n][2] == p and order[n][1] == n - n0
                q = n % NH
                if n < NH: free = 0 if q < 5 else 192 + (q - 5) + 1
                else: free = G2 + 2*(n - NH) + 2
                off = (n - n0)*1024
                hslot[n] = put(max(rdy, free, ta), lambda n=n, sreg=sreg, off=off: E.vm(f"buffer_load_dwordx4 {hreg(n)}, v{VL16}, {WSRD}, s{sreg} offen" + (f" offset:{off}" if off else "") + LSC, f'h{L}_{n}'), vm=True)
                assert hslot[n] < G2 + 2*n - 6, (L, n, hslot[n])
        if opt.get('verbose'): print('L', L, 'est', est, 'w', w4end, w5end, w6end, 'pub', pub, 'chk', chk, 'h', [hslot[n] for n in range(56)])
        if L == 0:
            firstuse = {}
            for n, (tt, rho, p) in enumerate(order): firstuse.setdefault(rho*7 + tau[p], G2 + 2*n)
            t = O('wd_at', 70)
            rest_ops = BK['b'].ops; BK['b'].ops = []
            kcur = None
            for (c_, vm_, f_) in rest_ops:
                info = getattr(f_, 'info', None)
                assert info is not None and info[0] == 'wd', 'only Wd loads may be left for G1'
                if not vm_:
                    at(t - 1, f_, 0, 's')
                else:
                    while t in vslots: t += 1
                    assert t < firstuse[info[1]] - 8, ('Wd deadline', info, t)
                    at(t, f_, 0, 'm'); t += O('wd_sp', 2)
            if opt.get('verbose'): print('last Wd load at', t)
        RB = RING
        def red_write_ops(tt):
            ops = []
            for m in (1, 3, 2):
                pd, g = m & 1, m >> 1
                src = acc2[tt][pd] + 8*g
                for hlf in range(2):
                    ops.append(lambda m=m, src=src, hlf=hlf: E.ds(f"ds_write_b128 v{VRW[m-1]}, v[{src+4*hlf}:{src+4*hlf+3}] offset:{1024*hlf}", f'rw{L}{tt}'))
            return ops
        def red_read_ops(tt):
            ops = []
            for m in range(3):
                for hlf in range(2):
                    ops.append(lambda m=m, hlf=hlf: E.ds(f"ds_read_b128 v[{RB+8*m+4*hlf}:{RB+8*m+4*hlf+3}], v{VRR} offset:{2048*m+1024*hlf}", f'rr{L}{tt}'))
            return ops
        def out_store(tt, src):
            if L == 0:
                sadd(S_T0, S_XML, WS_XN + tt*32768)
                E.vm(f"buffer_store_dwordx4 v[{src}:{src+3}], v{VL16}, {WSRD}, s{S_T0} offen", f'x2{tt}')
            else:
                sadd(S_T0, 30, tt*32768)
                E.vm(f"buffer_store_dwordx4 v[{src}:{src+3}], v28, s[{S_OUT}:{S_OUT+3}], s{S_T0} offen" + FL('o', L), f'o2{tt}')
        if L == 1:
            def out_setup():
                return [T_(x) for x in f"""v_and_b32 v28, 31, v0
                v_lshlrev_b32 v28, 10, v28
                v_bfe_u32 v29, v0, 5, 1
                v_lshl_add_u32 v28, v29, 4, v28
                s_lshl_b32 s30, s{S_C}, 17
                s_lshl_b32 s25, s{S_TH}, 16
                s_add_u32 s30, s30, s25
                s_and_b32 s25, s{S_W}, 1
                s_lshl_b32 s25, s25, 1
                s_lshr_b32 s26, s{S_W}, 1
                s_add_u32 s25, s25, s26
                s_lshl_b32 s26, s{S_J}, 2
                s_add_u32 s25, s25, s26
                s_lshl_b32 s25, s25, 5
                s_add_u32 s30, s30, s25""".split('\n')]
            t = 72
            for f in out_setup(): t = put(t, f, k='v', chain=True)
        XU = RB + 24
        if not NOXM:
            t = put(G2 + 26, lambda: E.wait_vm(f'xm{L}'), k='s')
            for e in range(4):
                t = put(t, T_(f"v_lshlrev_b32 v{XU+2*e}, 16, v{XM1+e}"))
                t = put(t, T_(f"v_and_b32 v{XU+1+2*e}, s{S_HI}, v{XM1+e}"))
        m0_last = G2 + 2*last0 + 1
        t = m0_last + 5
        for f in red_write_ops(0): t = put(t, f, 8, 'm')
        t = put(t + 1, lambda: (E.wait_ds(f'rw{L}0'), barrier()), 8, 's')
        t += 1
        for f in red_read_ops(0): t = put(t, f, 4, 'm')
        own = acc2[0][0]
        t = put(t + 3, lambda: E.wait_ds(f'rr{L}0'), k='s')
        tb = t
        for e in range(8): t = put(t, T_(f"v_add_f32 v{RB+e}, v{RB+e}, v{RB+8+e}"))
        for e in range(8): t = put(t, T_(f"v_add_f32 v{own+e}, v{own+e}, v{RB+16+e}"))
        for e in range(4 if not NOXM else 0):
            t = put(t, T_(f"v_lshlrev_b32 v{RB+8+2*e}, 16, v{XM0+e}"))
            t = put(t, T_(f"v_and_b32 v{RB+9+2*e}, s{S_HI}, v{XM0+e}"))
        for e in range(8): t = put(t, T_(f"v_add_f32 v{own+e}, v{own+e}, v{RB+e}"))
        for e in range(8): t = put(t, T_(f"v_fma_f32 v{own+e}, v{own+e}, s{S_LN2}, v{RB+8+e}" if not NOXM else f"v_mul_f32 v{own+e}, s{S_LN2}, v{own+e}"))
        for e in range(4): t = put(t, T_(f"v_cvt_pk_bf16_f32 v{RB+e}, v{own+2*e}, v{own+2*e+1}"))
        t = put(t + 1, lambda: out_store(0, RB), 8, 'm')
        if opt.get('verbose'): print('tt0 reduction done at', t)
        put(tb + 1, barrier, k='s')
        E.wait_vm(f'x{L}_0')
        stamp(f'L{L}g1')
        for i in range(LA): rd(i)
        def emit_fill(i, mid=None):
            fm, fs, fv = F.pop(i, ([], [], []))
            if mid: mid()
            for f in fm + fs + fv: f()
        for i in range(224):
            _, p, k = seq[i]
            stamp(f'L{L}s{i}')
            if p < 3 and (i % 3) == 0 and k > 0: E.wait_vm(f'x{L}_{k}')
            if i % 2 == 0: E.wait_ds(f'a{L}_{i+1}')
            r = RING + 4*(i % 8)
            c = ACC[accp[p]]
            E(f"v_mfma_f32_32x32x16_bf16 v[{c}:{c+15}], {vr(r, 4)}, v[{XR+4*k}:{XR+4*k+3}], {'0' if k == 0 else f'v[{c}:{c+15}]'}")
            emit_fill(i, (lambda: rd(i + LA)) if i + LA < 224 else None)
        seen_kp = set()
        for n in range(56):
            tt, rho, p = order[n]
            kp = rho*7 + tau[p]
            firstb = not any(o[0] == tt for o in order[:n])
            for ii, pd in enumerate((1, 0) if n in (last0, 55) else (0, 1)):
                i = G2 + 2*n + ii
                stamp(f'L{L}s{i}')
                if ii == 0:
                    E.wait_vm(f'h{L}_{n}')
                    if L == 0 and kp not in seen_kp and not opt.get('nowd', 0): E.wait_vm(f'wd{kp}'); seen_kp.add(kp)
                c = acc2[tt][pd]
                E(f"v_mfma_f32_32x32x16_bf16 v[{c}:{c+15}], {ar(A_WD + 8*kp + 4*pd, 4)}, {hreg(n)}, {'0' if firstb else f'v[{c}:{c+15}]'}")
                emit_fill(i)
        stamp(f'L{L}g2end')
        for i in sorted(F.keys()):
            assert i > lastslot, i
            emit_fill(i)
        for f in red_write_ops(1): f()
        E.wait_ds(f'rw{L}1'); E("s_barrier")
        for f in red_read_ops(1): f()
        own = acc2[1][0]
        E.wait_ds(f'rr{L}1')
        for e in range(0, 8, 2): E(f"v_pk_add_f32 v[{RB+e}:{RB+e+1}], v[{RB+e}:{RB+e+1}], v[{RB+8+e}:{RB+9+e}]")
        for e in range(0, 8, 2): E(f"v_pk_add_f32 v[{own+e}:{own+e+1}], v[{own+e}:{own+e+1}], v[{RB+16+e}:{RB+17+e}]")
        for e in range(0, 8, 2): E(f"v_pk_add_f32 v[{own+e}:{own+e+1}], v[{own+e}:{own+e+1}], v[{RB+e}:{RB+e+1}]")
        for e in range(0, 8, 2):
            if NOXM: E(f"v_pk_mul_f32 v[{own+e}:{own+e+1}], v[{own+e}:{own+e+1}], s[{S_LN2}:{S_LN2+1}]")
            else: E(f"v_pk_fma_f32 v[{own+e}:{own+e+1}], v[{own+e}:{own+e+1}], s[{S_LN2}:{S_LN2+1}], v[{XU+e}:{XU+e+1}]")
        for e in range(4): E(f"v_cvt_pk_bf16_f32 v{RB+e}, v{own+2*e}, v{own+2*e+1}")
        out_store(1, RB)
        stamp(f'L{L}st')
        if L == 0:
            publish(S_FX2S, 0, 'x21')
            stamp('x2pub')

    def marker_check(regs_, reload_, tagname):
        ls = E.label('L_mks'); lb = E.label('L_mkb')
        t = 31
        r = list(regs_)
        E(f"v_max3_u32 v{t}, v{r[0]}, v{r[1]}, v{r[2]}"); k = 3
        while k + 1 < len(r): E(f"v_max3_u32 v{t}, v{t}, v{r[k]}, v{r[k+1]}"); k += 2
        if k < len(r): E(f"v_max_u32 v{t}, v{t}, v{r[k]}")
        E(f"v_cmp_eq_u32 vcc, -1, v{t}\ns_cbranch_vccnz {ls}\n{lb}:")
        ll = E.label('L_mkl')
        txt = f"{ls}:\ns_mov_b32 s{S_T3}, 0\n{ll}:\n"
        for i, x in enumerate(r):
            l2 = E.label('L_mkn')
            txt += f"""v_cmp_eq_u32 vcc, -1, v{x}
            s_cbranch_vccz {l2}
            {reload_(i)}
            {l2}:
            """
        txt += f"s_add_u32 s{S_T3}, s{S_T3}, 1\ns_waitcnt vmcnt(0)\n"
        txt += f"v_max3_u32 v{t}, v{r[0]}, v{r[1]}, v{r[2]}\n"; k = 3
        while k + 1 < len(r): txt += f"v_max3_u32 v{t}, v{t}, v{r[k]}, v{r[k+1]}\n"; k += 2
        if k < len(r): txt += f"v_max_u32 v{t}, v{t}, v{r[k]}\n"
        txt += f"""v_cmp_eq_u32 vcc, -1, v{t}
        s_cmp_gt_u32 s{S_T3}, 0x2000
        s_cbranch_vccz {lb}
        s_cbranch_scc0 {ll}
        s_branch {lb}
        """
        E.out_of_line(txt)

    PREPE = opt.get('prepe', 0)
    def prep_part(rawwait=None):
        PB = 64
        for i in range(4): E(f"v_mov_b32 v{108+i}, -1")
        def trd(n):
            E(f"ds_read_b64_tr_b16 v[{PB+4*n}:{PB+4*n+1}], v{VTR} offset:{1024*n}")
            E(f"ds_read_b64_tr_b16 v[{PB+4*n+2}:{PB+4*n+3}], v{VTR} offset:{1024*n + 512}")
        def pst(n):
            if n < 7:
                if n: E(f"s_add_u32 s{S_W1DST}, s{S_W1DST}, 131072")
                E(f"buffer_store_dwordx4 v[{PB+4*n}:{PB+4*n+3}], v{W1D}, {WSRD}, s{S_W1DST} offen sc1")
            else:
                if n > 7: E(f"s_add_u32 s{S_WDDST}, s{S_WDDST}, 229376")
                E(f"buffer_store_dwordx4 v[{PB+4*n}:{PB+4*n+3}], v{WDD}, {WSRD}, s{S_WDDST} offen sc1")
        stamp_dup('xiss')
        if HLATE:
            E(f"""
            s_and_b32 s25, s{S_W}, 1
            s_add_u32 s24, s{S_CB}, s25
            s_lshl_b32 s24, s24, 12
            s_mul_i32 s25, s25, {HC_CH}
            """)
            h_dma(HLATE, 24, 25)
        if rawwait is not None: E(f"s_waitcnt vmcnt({rawwait + 4*len(HLATE)})")
        for n in range(4): trd(n)
        for n in range(11):
            if n + 4 < 11: trd(n + 4)
            E(f"s_waitcnt lgkmcnt({2*min(4, 10 - n)})")
            pst(n)
        for i in range(4):
            if i: E(f"s_add_u32 s{S_YP}, s{S_YP}, 262144")
            E(f"buffer_store_dwordx4 v[108:111], v{VYP}, {WSRD}, s{S_YP} offen sc1")
    def conv():
        lx = E.label('L_xp'); lbx = E.label('L_bx')
        E(f"ds_write_b16 v61, v{HEAD}")
        E(f"s_cmp_ge_u32 s{S_W}, 2\ns_cbranch_scc1 {lx}")
        XG = 64
        def xload(i): return f"buffer_load_dwordx4 v[{XG+4*i}:{XG+4*i+3}], v{VL16}, {WSRD}, s{S_XL + (i >> 2)} offen" + (f" offset:{1024*(i & 3)}" if i & 3 else "") + " sc1"
        NX = 4 if P1 else 8
        for i in range(NX): E(xload(i))
        stamp('xiss')
        ACCc = 192
        for i in range(32): E(f"v_mov_b32 v{ACCc+i}, 0")
        E("s_waitcnt vmcnt(0)")
        marker_check([XG + 4*i for i in range(NX)], xload, 'x')
        stamp('xok')
        if P1:
            for i in range(4): E(f"ds_write_b128 v{VXW}, v[{XG+4*i}:{XG+4*i+3}] offset:{i*1024}")
            for i in range(4):
                if i < 3: E(f"v_mov_b32_dpp v{96+i}, v{XG+4*(i+1)} wave_rol:1 row_mask:0xf bank_mask:0xf")
                else: E(f"v_mov_b32 v{96+i}, 0")
            for i in range(4):
                for d in range(3): E(f"v_alignbit_b32 v{XG+16+4*i+d}, v{XG+4*i+d+1}, v{XG+4*i+d}, 16")
            for i in range(4): E(f"v_mov_b32_dpp v{96+i}, v{XG+4*i} wave_shl:1 row_mask:0xf bank_mask:0xf")
            for i in range(4):
                E(f"v_alignbit_b32 v{XG+16+4*i+3}, v{96+i}, v{XG+4*i+3}, 16")
            for i in range(4): E(f"ds_write_b128 v{VXW}, v[{XG+16+4*i}:{XG+16+4*i+3}] offset:{XR_P + i*1024}")
        else:
            for i in range(8): E(f"ds_write_b128 v{VXW}, v[{XG+4*i}:{XG+4*i+3}] offset:{(i >> 2)*XR_P + (i & 3)*1024}")
        E(f"s_branch {lbx}\n{lx}:")
        if not PREPE: prep_part()
        else: stamp_dup('xiss')
        stamp_dup('xok')
        for i in range(32): E(f"v_mov_b32 v{ACCc+i}, 0")
        if HLATE: E("s_waitcnt vmcnt(15)")
        E(f"{lbx}:")
        E("s_waitcnt lgkmcnt(0)")
        E.vmq = []; E.dsq = []
        E("s_barrier")
        stamp('bx')
        def AF(st, g): return 64 + 32*st + 4*g
        def BF(st, u): return 128 + 32*st + 4*u
        def rdA(st, g, rho): return f"ds_read_b128 v[{AF(st,g)}:{AF(st,g)+3}], v{VA_} offset:{512*g + 64*rho}"
        def rdB(st, u, rho): return f"ds_read_b128 v[{BF(st,u)}:{BF(st,u)+3}], v{VB_} offset:{512*(7-u) + 64*rho}"
        pairs = [(t, g) for t in range(8) for g in range(t+1)]
        order = []
        for t in range(8): order.append(('B', t)); order.append(('A', t))
        def mf(st, t, g):
            return f"v_mfma_f32_16x16x32_bf16 v[{ACCc+4*t}:{ACCc+4*t+3}], v[{AF(st,g)}:{AF(st,g)+3}], v[{BF(st,t-g)}:{BF(st,t-g)+3}], v[{ACCc+4*t}:{ACCc+4*t+3}]"
        S1AT = opt.get('s1at', 24); S1POLL = opt.get('s1poll', 96); S1CHK = opt.get('s1chk', 118)
        acts = {}
        def act(i, f): acts.setdefault(i, []).append(f)
        def s1publish():
            E("s_waitcnt vmcnt(0)"); E.vmq = []
            E.vm(f"buffer_store_dword v{VONE}, v{VS1F}, {WSRD}, s{S_S1F} offen sc1", 's1st')
        def s1poll(): E.vm(f"buffer_load_dwordx4 v[24:27], v{VS1P}, {WSRD}, 0 offen sc1", 's1')
        def s1check():
            all_flags_check(24, VS1P, S_N, 's1')
            E("s_barrier")
            stamp('s1')
        def qload():
            E.vm(f"buffer_load_dwordx4 {ar(A_Q, 4)}, v9, s[{S_Q}:{S_Q+3}], s{S_QO} offen" + NT('q'), 'q')
            E.vm(f"buffer_load_dwordx4 {ar(A_Q+4, 4)}, v9, s[{S_Q}:{S_Q+3}], s{S_QO} offen offset:128" + NT('q'), 'q')
        act(S1AT, s1publish); act(opt.get('qat', 40), qload)
        def htouch():
            m = opt['ht']
            E(f"v_lshrrev_b32 v246, 3, v8\nv_lshlrev_b32 v246, 12, v246\nv_and_b32 v247, {m}, v8\nv_lshl_add_u32 v246, v247, 7, v246")
            E(f"s_add_u32 s24, s{S_HST}, {WS_H}")
            E(f"s_mov_b32 exec_hi, 0x00ffffff")
            E.vm(f"buffer_load_dword v247, v246, {WSRD}, s24 offen", 'ht')
            E(f"s_mov_b64 exec, -1")
        if 'ht' in opt: act(opt.get('htat', 20), htouch)
        POST = S1CHK >= 1000
        if S1POLL < 1000: act(S1POLL, s1poll)
        B = BK['b'] = make_bulk()
        if not POST:
            act(S1CHK, s1check)
            nm = opt.get('bk_m', 5)
            for k in range(nm): act(S1CHK + 2 + k*opt.get('bk_msp', 4), lambda: B.emit(1))
            assert S1CHK + 2 + nm*opt.get('bk_msp', 4) <= 148
        def do(i):
            for f in acts.pop(i, []): f()
        for rho in range(4):
            st = rho & 1
            nxt = []
            if rho < 3: nxt = [(rdB(st^1, x, rho+1) if k == 'B' else rdA(st^1, x, rho+1)) for (k, x) in order]
            if rho == 0:
                reads = [(rdB(0, x, 0) if k == 'B' else rdA(0, x, 0)) for (k, x) in order]
                for r_ in reads[:14]: E(r_)
                issued = 14; done = 0
                allq = reads + nxt
                for idx, (t, g) in enumerate(pairs):
                    if g == 0:
                        E(f"s_waitcnt lgkmcnt({issued - 2*(t+1)})"); done = 2*(t+1)
                    E(mf(0, t, g))
                    do(idx)
                    if t == 7 and g == 4:
                        done += 6
                        E(f"s_waitcnt lgkmcnt({issued - done})")
                    if issued < len(allq) and issued - done < 14:
                        E(allq[issued]); issued += 1
                assert issued == len(allq)
            else:
                E("s_waitcnt lgkmcnt(0)")
                k = 0
                for idx, (t, g) in enumerate(pairs):
                    E(mf(st, t, g))
                    do(36*rho + idx)
                    if nxt and idx % 2 == 0 and k < 16:
                        E(nxt[k]); k += 1
            if rho < 3: stamp(f'rho{rho+1}')
        for i in sorted(acts): do(i)
        stamp('mfend')
        if opt.get('rot', 0):
            E(f"s_lshr_b32 s25, s{S_C}, 3\ns_lshl_b32 s25, s25, 1\ns_add_u32 s25, s25, s{S_TH}")
            for r_ in range(4):
                E(f"""s_add_u32 s24, s25, {r_}
                s_and_b32 s24, s24, 3
                s_mul_i32 s24, s24, {7*2048}
                s_add_u32 s{S_WDR + r_}, s{S_WDB}, s24""")
        E(f"""
        s_barrier
        v_add_u32 v20, s{S_W1K}, v{VL16}
        s_lshl_b32 s24, s{S_W}, 11
        v_add_u32 v21, s24, v{VL16}
        s_nop 4
        """)
        for t in range(8): E.ds(f"ds_write_b128 v20, v[{ACCc+4*t}:{ACCc+4*t+3}] offset:{1024*t}", 'rdw')
        E.wait_ds('rdw')
        E("s_barrier")
        stamp('red2')
        if S1POLL == 1000: s1poll()
        if not POST: B.emit(opt.get('bk_red', 0))
        for tau in range(2):
            for src in range(4):
                E.ds(f"ds_read_b128 v[{64+32*tau+4*src}:{67+32*tau+4*src}], v21 offset:{8192*src + 1024*tau}", f'rdr{tau}')
            for ch in range(2):
                E.ds(f"ds_read_b128 v[{128+8*tau+4*ch}:{131+8*tau+4*ch}], v{VKVW} offset:{ch*XR_CH + 512*(1-tau)}", f'rdr{tau}')
        for tau in range(2):
            E.wait_ds(f'rdr{tau}')
            base = 64 + 32*tau
            for ch in range(2):
                kvr = 128 + 8*tau + 4*ch
                for r in range(4): E(f"v_add_f32 v{base+8*ch+r}, v{base+8*ch+r}, v{base+8*ch+r+4}")
                for d in range(4): E(f"v_lshlrev_b32 v{kvr+d}, 16, v{kvr+d}")
                for r in range(4): E(f"v_fmac_f32 v{base+8*ch+r}, s{60+ch}, v{kvr+3-r}")
            for r in range(4): E(f"v_cvt_pk_bf16_f32 v{148+r}, v{base+r}, v{base+8+r}")
            o = 152 + 4*tau
            E(f"""
            v_mov_b32 v{o}, v150
            v_mov_b32 v{o+1}, v148
            v_mov_b32 v{o+2}, v151
            v_mov_b32 v{o+3}, v149
            v_mov_b32_dpp v{o}, v148 row_ror:8 row_mask:0xf bank_mask:0x3
            v_mov_b32_dpp v{o+1}, v150 row_ror:8 row_mask:0xf bank_mask:0xc
            v_mov_b32_dpp v{o+2}, v149 row_ror:8 row_mask:0xf bank_mask:0x3
            v_mov_b32_dpp v{o+3}, v151 row_ror:8 row_mask:0xf bank_mask:0xc
            """)
            if tau == 1: E(f"s_add_u32 s58, s58, 262144")
            E.vm(f"buffer_store_dwordx4 v[{o}:{o+3}], v{VYS}, {WSRD}, s58 offen sc1", 'yst')
        stamp('yst')
        if S1POLL == 1001: s1poll()
        if POST: s1check()

    def rest():
        conv()
        B = BK['b']
        def yload(i):
            c2, k = i >> 2, i & 3
            return f"buffer_load_dword v{Y+i}, v10, {WSRD}, s{59 if c2 == 0 else 24} offen" + (f" offset:{512*k}" if k else "") + " sc1"
        E("s_add_u32 s24, s59, 16384")
        B.emit(opt.get('bk_a', 0))
        for i in range(8): E.vm(yload(i), 'y')
        n_y = opt.get('bk_y', 0)
        B.emit(n_y)
        assert 'w1_3' not in E.seen, 'slot 0 is still in use'
        for i in range(8): E(f"v_accvgpr_read_b32 v{X+i}, a{A_Q+i}")
        R_pre(0)
        stamp('qst')
        B.emit(opt.get('bk_q', 0))
        E.wait_vm('y')
        marker_check([Y + i for i in range(8)], yload, 'y')
        stamp('yok')
        B.emit(opt.get('bk_r0', 16))
        for i in range(8): E(f"v_accvgpr_write_b32 a{A_Y+i}, v{Y+i}")
        def w1left():
            n = 0; k = 0
            for o in B.ops:
                if o[1]:
                    k += 1
                    if getattr(o[2], 'info', None) is None: n = k
            return n
        R_post(0, early=lambda: B.emit(max(opt.get('bk_r1', 0), w1left())), late=None)
        assert all(('w1_%d' % p) in E.seen for p in range(4)) and not any(getattr(o[2], 'info', None) is None for o in B.ops), 'W1 tiles 0..3 must be under way before the XN stores'
        Rpub(0)
        layer(0)
        poll_issue(VP8, S_FX2L, 0, 'px2')
        if P1:
            unpack(T, 20, 8)
            E(f"""s_lshr_b32 s24, s{S_C}, 3
            s_mul_i32 s24, s24, {7*131072}
            s_and_b32 s25, s{S_C}, 7
            s_lshl_b32 s25, s25, 17
            s_sub_u32 s24, s24, s25
            s_add_u32 s{S_XMD}, s24, {WS_Y}""")
        poll_check(VP8, S_FX2L, 0, 'px2')
        for r_, c_ in ((S_FXNS, 16*256), (S_FXNL, 16*256), (S_FHS, 16*1024), (S_FHL, 16*1024)): E(f"s_add_u32 s{r_}, s{r_}, {c_}")
        stamp('x2ok')
        sadd(S_T0, S_R, WS_XN); sadd(S_T1, S_R, WS_XN + 4096)
        E.vm(f"buffer_load_dwordx4 v[{X}:{X+3}], v{VR}, {WSRD}, s{S_T0} offen" + LSC, 'x2l')
        E.vm(f"buffer_load_dwordx4 v[{X+4}:{X+7}], v{VR}, {WSRD}, s{S_T1} offen" + LSC, 'x2l')
        for i in range(8): E(f"v_accvgpr_read_b32 v{Y+i}, a{A_Y+i}")
        E.wait_vm('x2l')
        R_pre(1)
        R_post(1)
        Rpub(1)
        layer(1)
        E.wait_vm_all()

    def s0cmp(val): return "\n".join([f"v_xor_b32 v{S0R+i}, s{val}, v{S0R+i}" for i in range(4)] +
                                     [f"v_or3_b32 v{S0R}, v{S0R}, v{S0R+1}, v{S0R+2}", f"v_or_b32 v{S0R}, v{S0R}, v{S0R+3}"])
    if PREPE:
        assert RAWPOS >= 1 and E.vm_after('s0') == NKV
        E(f"s_cmp_lt_u32 s{S_W}, 2\ns_cbranch_scc1 L_pe0")
        prep_part(rawwait=1 + NKV)
        E(f"s_waitcnt vmcnt({NKV + 4*len(HLATE) + 15})\ns_branch L_pe1\nL_pe0:\ns_waitcnt vmcnt({NKV})\nL_pe1:")
        E.vmq = []
    else: E.wait_vm('s0')
    E(s0cmp(S_XCC))
    E(f"v_cmp_ne_u32 vcc, 0, v{S0R}")
    E("s_branch L_s0s" if force_slow else "s_cbranch_vccnz L_s0s")
    E("L_s0b:")
    E.out_of_line(f"""
    L_s0s:
    s_mov_b32 s{S_T3}, 0
    L_s0l:
    v_cmp_lt_u32 vcc, 7, v{S0R}
    s_cmp_gt_u32 s{S_T3}, 0x2000
    s_cbranch_vccz L_slow
    s_cbranch_scc1 L_s0b
    buffer_load_dwordx4 v[{S0R}:{S0R+3}], v30, {WSRD}, 0 offen sc1
    s_add_u32 s{S_T3}, s{S_T3}, 1
    s_waitcnt vmcnt(0)
    {s0cmp(S_XCC)}
    v_cmp_ne_u32 vcc, 0, v{S0R}
    {'s_branch L_s0l' if force_slow else 's_cbranch_vccnz L_s0l'}
    s_branch L_s0b""")
    stamp('s0')
    Efast = E
    Es = Emit(); Es.vmq = []; Es.dsq = list(E.dsq); Es.seen = set(E.seen); Es.nl = 100000
    E = Es; MODE['slow'] = True
    E(f"""
    L_slow:
    s_mov_b32 s{S_EXP}, 2
    s_waitcnt vmcnt(0)
    buffer_wbl2 sc1
    s_waitcnt vmcnt(0)
    s_barrier
    s_add_u32 s24, s86, {FL_S0B}
    buffer_store_dword v{VONE}, v{VT0}, {WSRD}, s24 offen sc1
    s_mov_b32 s25, {FL_S0B - FL_S0}
    s_mov_b32 s{S_T3}, 0
    L_s0bl:
    buffer_load_dwordx4 v[{S0R}:{S0R+3}], v30, {WSRD}, s25 offen sc1
    s_add_u32 s{S_T3}, s{S_T3}, 1
    s_waitcnt vmcnt(0)
    {s0cmp(S_N)}
    v_cmp_ne_u32 vcc, 0, v{S0R}
    s_cmp_gt_u32 s{S_T3}, 0x2000
    s_cbranch_scc1 L_s0bx
    s_cbranch_vccnz L_s0bl
    L_s0bx:
    buffer_inv sc1
    s_waitcnt vmcnt(0)
    """)
    rest()
    E("s_branch L_fin")
    E = Efast; MODE['slow'] = False
    rest()
    E("L_fin:")
    if stamps:
        stamp('end')
        n = len(names)
        E("s_memrealtime s[24:25]")
        E("s_waitcnt lgkmcnt(0)")
        for k in (n - 2, n - 1): E(f"v_writelane_b32 v{VSTAMP}, s{SP[k & 1]}, {k}")
        E(f"""
        v_writelane_b32 v{VSTAMP}, s100, 61
        v_writelane_b32 v{VSTAMP}, s24, 62
        v_writelane_b32 v{VSTAMP}, s{S_EXP}, 63
        s_lshl_b32 s25, s2, 10
        s_lshl_b32 s26, s{S_W}, 8
        s_add_u32 s25, s25, s26
        s_add_u32 s25, s25, {WS_STAMP}
        v_lshrrev_b32 v20, 2, v{VL16}
        buffer_store_dword v{VSTAMP}, v20, {WSRD}, s25 offen
        s_waitcnt vmcnt(0)
        """)
        assert n < 60
        print('k3 stamps:', ','.join(names))
        open('last_stamps.txt', 'w').write(','.join(names))
    E("L_end:")
    E("s_endpgm")
    main = hazard_pass(E.L[1:], verbose=opt.get('verbose', False))
    tail = list(E.tail) + ['L_codeend:'] + hazard_pass(Es.L) + list(Es.tail)
    txt = E.L[0] + '\n' + '\n'.join(('    ' + l if not l.endswith(':') else l) for l in main) + '\n'
    txt += '\n'.join(('    ' + l if not l.endswith(':') else l) for l in tail) + '\n'
    txt += "    s_endpgm\n"
    return txt + kd(name, 512, 102, accum=256)

if __name__ == '__main__':
    st = 'stamps' in sys.argv; slow = 'slow' in sys.argv
    opt = {'verbose': 'v' in sys.argv}
    for a in sys.argv[2:]:
        if '=' in a:
            k_, v_ = a.split('=')
            opt[k_] = v_.split(',') if k_ == 'st' else (v_ if k_.startswith('fl') else int(v_))
    kname = NAME + '_kernel'
    txt = KERNARG_COMMENT
    txt += f"; @launch grid=(256,1,1) block=(256,1,1) lds={K1_LDS}\n"
    txt += TARGET + gen(kname, stamps=st, force_slow=slow, opt=opt)
    txt += ".text\n.fill 64, 4, 0xbf800000\n"
    open(sys.argv[1], 'w').write(txt)
```

```python
import sys
sys.path.insert(0, 'gen')
from emit import *
from layout3 import *
from common import head, kd, TARGET, KERNARG_COMMENT, NAME

K1_LDS = 163840
SLOT = 32768
SCR = SLOT
STATS = SLOT + 24576
OOB = 0x80000000
VL16, VA1, VA2, VP8, VP16, VF0, VR = 1, 2, 3, 4, 5, 6, 7
VSTW, VSTR = 11, 12
VRW = [13, 14, 15]; VRR = 16
VPOLL, VONE, VSTAMP = 17, 18, 19
RING = 32
ACC = [64, 80, 96, 112]
XR = 128
A_WD = 0; A_Y = 224; A_T4 = 232
S_WS = 4; S_Q = 8; S_OUT = 12
S_W, S_ROLE, S_C, S_TH, S_J, S_EXP, S_XCC, S_W1K = 16, 17, 18, 19, 20, 21, 22, 23
S_R, S_XNL, S_HST, S_HLD, S_XML, S_W1, S_FXNS, S_FXNL, S_FHS, S_FHL, S_FX2S, S_FX2L = range(34, 46)
S_T0, S_T1, S_T2, S_T3, S_HI = 46, 47, 48, 49, 31
S_LN2 = 98
S_DA, S_XA = 50, 3
S_HA = [96, 97]; S_HS = [94, 95]
LA = 6
def vr(b, n=1): return f"v{b}" if n == 1 else f"v[{b}:{b+n-1}]"
def ar(b, n=1): return f"a{b}" if n == 1 else f"a[{b}:{b+n-1}]"

LAYERS = [
    dict(tau=[0, 1, 2, 3, 4, 5, 6], slot=[2, 3, 4, 0, 1, 2, 3]),
    dict(tau=[5, 6, 2, 3, 4, 0, 1], slot=[2, 3, 4, 0, 1, 2, 3]),
]
LOG2E = 0x3fb8aa3b; LN2 = 0x3f317218
A_H = 236

S_N = 51
VWD = 28
S_WDB = 30
S_WDR = 64
A_Q = 232
HC_J = 4160; HC_CH = 4*HC_J
XRB = 2*HC_CH
XR_P = 4640; XR_CH = 9472
TBS = 1056
KT = 2*SLOT; VT = KT + 9*TBS
PST = 3*SLOT
S_QO, S_PST = 87, 94
S_G, S_M, S_CB, S_CP, S_D, S_E = 88, 89, 84, 85, 62, 63
POISON = 0xffffffff


def gen(name, stamps=False, force_slow=False, opt=None):
    opt = opt or {}
    E = Emit()
    LSC = ' sc1' if opt.get('lsc', 1) else ''
    names = []
    DEF = ['start', 'join', 'b0', 'kvst', 's0', 'xiss', 'prep', 'xok', 'bx', 'rho1', 'rho2', 'rho3', 's1', 'mfend', 'red2', 'yst', 'qst', 'yok', 'R0st', 'R0pub', 'L0xnok', 'L0g1', 'L0s96', 'L0s224', 'L0g2end', 'L0st', 'x2ok', 'R1st', 'R1pub', 'L1xnok', 'L1g1', 'L1s96', 'L1s224', 'L1g2end', 'L1st', 'end']
    enabled = set(opt.get('st', DEF)) | {'start', 'end'}
    MODE = {'slow': False}
    SP = [90, 92]
    def stamp(nm):
        if stamps and nm in enabled and not MODE['slow']:
            n = len(names); names.append(nm)
            if n >= 2: E(f"v_writelane_b32 v{VSTAMP}, s{SP[n & 1]}, {n-2}")
            E(f"s_memtime s[{SP[n & 1]}:{SP[n & 1]+1}]")
    def stamp_dup(nm):
        if stamps and nm in names and not MODE['slow']:
            n = names.index(nm)
            if n >= 2: E(f"v_writelane_b32 v{VSTAMP}, s{SP[n & 1]}, {n-2}")
            E(f"s_memtime s[{SP[n & 1]}:{SP[n & 1]+1}]")
    WSRD = f"s[{S_WS}:{S_WS+3}]"
    def NT(k): return ' nt' if (opt.get('nt', 0) >> 'trhq'.index(k)) & 1 else ''
    def FL(kind, L):
        v = opt.get(f'fl{kind}{L}', opt.get(f'fl{kind}', ''))
        return (' ' + v.replace('+', ' ')) if v else ''

    def sadd(dst, base, const):
        if const == 0: E(f"s_mov_b32 s{dst}, s{base}")
        else: E(f"s_add_u32 s{dst}, s{base}, {const}")
    def dma_stream(tau, slot, tag, ilist=range(8)):
        ops = []; cur = None
        for i in ilist:
            if cur != (i >> 2):
                cur = i >> 2
                ops.append((4, False, lambda g=cur: E(f"s_add_u32 m0, s{S_W1K}, {slot*SLOT + g*4096}")))
                ops.append((4, False, lambda g=cur: sadd(S_DA, S_W1, tau*32768 + g*4096)))
            off = (i & 3)*1024
            ops.append((4, True, lambda off=off: E.vm(f"buffer_load_dwordx4 v{VL16}, {WSRD}, s{S_DA} offen" + (f" offset:{off}" if off else "") + " lds", tag)))
        return ops
    def wd_stream(kps):
        ops = []
        for kp in kps:
            if opt.get('rot', 0): f = lambda kp=kp: E(f"s_add_u32 s26, s{S_WDR + kp//7}, {(kp % 7)*2048}")
            else: f = lambda kp=kp: E(f"s_add_u32 s26, s{S_WDB}, {kp*2048}")
            f.info = ('wd', kp); ops.append((4, False, f))
            for pd in range(2):
                f = lambda kp=kp, pd=pd: E.vm(f"buffer_load_dwordx4 {ar(A_WD + 8*kp + 4*pd, 4)}, v{VWD+pd}, {WSRD}, s26 offen" + (LSC if opt.get('wdsc', 1) else ''), f'wd{kp}')
                f.info = ('wd', kp); ops.append((4, True, f))
        return ops
    class Bulk:
        def __init__(self, ops): self.ops = list(ops)
        def take(self, n):
            out = []
            while n > 0 and self.ops:
                o = self.ops.pop(0); out.append(o)
                if o[1]: n -= 1
            return out
        def emit(self, n):
            for (_, _, f) in self.take(n): f()
            assert not self.ops or not self.ops[0][1] or getattr(self.ops[0][2], 'info', None) is None, 'Wd loads come in pairs'
        def left(self): return sum(1 for o in self.ops if o[1])
    def publish(sbase, const, tag, wait=True):
        o = f" offset:{const}" if const else ""
        if MODE['slow']:
            E.wait_vm_all()
            E("buffer_wbl2 sc1\ns_waitcnt vmcnt(0)")
            E.vm(f"buffer_store_dword v{VONE}, v{VF0}, {WSRD}, s{sbase} offen{o} sc1", None)
            return
        if wait: E.wait_vm(tag)
        E.vm(f"buffer_store_dword v{VONE}, v{VF0}, {WSRD}, s{sbase} offen{o}", None)
    def poll_issue(voff, sbase, const, tag, dst=VPOLL):
        o = f" offset:{const}" if const else ""
        if MODE['slow']: E.seen.add(tag); return
        E.vm(f"buffer_load_dword v{dst}, v{voff}, {WSRD}, s{sbase} offen{o} sc1", tag)
    def poll_check(voff, sbase, const, tag, dst=VPOLL, wait=True):
        o = f" offset:{const}" if const else ""
        ls = E.label('L_polls'); lb = E.label('L_pollb'); ll = E.label('L_polll')
        if MODE['slow']:
            E.wait_vm_all()
            E(f"""
            s_mov_b32 s{S_T3}, 0
            {ll}:
            buffer_inv sc1
            s_waitcnt vmcnt(0)
            buffer_load_dword v{dst}, v{voff}, {WSRD}, s{sbase} offen{o} sc1
            s_add_u32 s{S_T3}, s{S_T3}, 1
            s_waitcnt vmcnt(0)
            v_cmp_ne_u32 vcc, s{S_N}, v{dst}
            s_cmp_gt_u32 s{S_T3}, 0x2000
            s_cbranch_scc1 {lb}
            s_cbranch_vccnz {ll}
            {lb}:
            buffer_inv sc1
            s_waitcnt vmcnt(0)""")
            return
        if wait: E.wait_vm(tag)
        E(f"v_cmp_ne_u32 vcc, s{S_N}, v{dst}")
        E(f"s_cbranch_vccnz {ls}")
        E(f"{lb}:")
        E.out_of_line(f"""
        {ls}:
        s_mov_b32 s{S_T3}, 0
        {ll}:
        buffer_load_dword v{dst}, v{voff}, {WSRD}, s{sbase} offen{o} sc1
        s_add_u32 s{S_T3}, s{S_T3}, 1
        s_waitcnt vmcnt(0)
        v_cmp_ne_u32 vcc, s{S_N}, v{dst}
        s_nop 4
        s_cbranch_vccz {lb}
        s_cmp_lt_u32 s{S_T3}, 0x2000
        s_cbranch_scc1 {ll}
        s_branch {lb}""")
    def all_flags_check(dst, voff, sval, tag, lim=0x2000):
        ls = E.label('L_afs'); lb = E.label('L_afb'); ll = E.label('L_afl')
        def cmp4():
            return "\n".join([f"v_xor_b32 v{dst+i}, s{sval}, v{dst+i}" for i in range(4)] +
                             [f"v_or3_b32 v{dst}, v{dst}, v{dst+1}, v{dst+2}", f"v_or_b32 v{dst}, v{dst}, v{dst+3}", f"v_cmp_ne_u32 vcc, 0, v{dst}"])
        E.wait_vm(tag)
        E(cmp4())
        E(f"s_cbranch_vccnz {ls}\n{lb}:")
        E.out_of_line(f"""
        {ls}:
        s_mov_b32 s{S_T3}, 0
        {ll}:
        buffer_load_dwordx4 v[{dst}:{dst+3}], v{voff}, {WSRD}, 0 offen sc1
        s_add_u32 s{S_T3}, s{S_T3}, 1
        s_waitcnt vmcnt(0)
        {cmp4()}
        s_nop 4
        s_cbranch_vccz {lb}
        s_cmp_lt_u32 s{S_T3}, {lim}
        s_cbranch_scc1 {ll}
        s_branch {lb}""")

    KSRD, VSRD, HSRD, PSRD, WDSRD = "s[52:55]", "s[64:67]", "s[76:79]", "s[68:71]", "s[52:55]"
    VPS, VPW = 224, 225
    VFT = 231
    P1 = opt.get('p1', 0)
    GSH = 18 if P1 else 19
    NKV = 2 if P1 else 4
    MKALL = opt.get('mkall', 0)
    assert MKALL or not P1
    MKPOS = opt.get('mkpos', 0)
    MKW = opt.get('mkw', 0)
    MKF = '' if MKALL == 2 else ' sc1'
    MKPRE = "" if not MKALL else f"""v_lshlrev_b32 v33, 12, v21
    v_lshl_add_u32 v33, v22, 4, v33
    v_mov_b32 v36, -1
    v_mov_b32 v37, -1
    v_mov_b32 v38, -1
    v_mov_b32 v39, -1
    s_lshl_b32 s95, s{S_G}, {GSH}
    s_lshl_b32 s27, s{S_M}, 7
    s_sub_u32 s95, s95, s27
    s_lshl_b32 s27, s{S_W}, {(18 if MKW else 17) - P1}
    s_add_u32 s95, s95, s27
    s_add_u32 s95, s95, {WS_KVT + 3968}"""
    def markers4(fix=True):
        if fix: E(srd_fix(S_WS, WS_SRD_BYTES))
        n = (8 if MKW else 4) >> P1
        if MKW: E(f"s_cmp_ge_u32 s{S_W}, 2\ns_cbranch_scc1 L_mkw")
        for i in range(n if not opt.get('nomk') else 0):
            E(f"buffer_store_dwordx4 v[36:39], v33, {WSRD}, s95 offen{MKF}")
            if i < n - 1: E("s_add_u32 s95, s95, 32768")
        if MKW: E("L_mkw:")
    def srd_fix(b, size): return f"s_and_b32 s{b+1}, s{b+1}, 0xffff\ns_mov_b32 s{b+2}, {size}\ns_mov_b32 s{b+3}, 0x20000"
    E.L.append(head(name).rstrip())
    E(f"""
    s_cmp_ge_u32 s2, 256
    s_cbranch_scc1 L_end
    s_load_dwordx2 s[52:53], s[0:1], 8
    s_load_dwordx2 s[64:65], s[0:1], 16
    s_load_dwordx2 s[4:5], s[0:1], 96
    s_load_dwordx8 s[56:63], s[0:1], 24
    s_load_dwordx8 s[68:75], s[0:1], 56
    s_load_dwordx2 s[8:9], s[0:1], 0
    """)
    if stamps: E("s_memrealtime s[100:101]")
    stamp('start')
    E(f"""
    v_lshrrev_b32 v20, 6, v0
    v_and_b32 v8, 63, v0                     ; lane
    s_and_b32 s{S_G}, s2, 7
    s_lshr_b32 s{S_M}, s2, 3
    v_readfirstlane_b32 s{S_W}, v20
    v_lshlrev_b32 v{VL16}, 4, v8
    v_lshrrev_b32 v21, 3, v8
    v_and_b32 v22, 7, v8
    s_lshl_b32 s{S_CB}, s{S_G}, 6
    s_lshl_b32 s24, s{S_M}, 1
    s_add_u32 s{S_CB}, s{S_CB}, s24
    s_lshl_b32 s24, s{S_G}, 9
    s_lshl_b32 s25, s{S_W}, 7
    s_add_u32 s24, s24, s25
    v_lshlrev_b32 v30, 4, v21
    v_add_u32 v30, s24, v30
    ; raw weight blocks (waves 2 and 3): 8 rows x 128 bytes each
    s_lshr_b32 s24, s2, 2                    ; kg
    s_and_b32 s25, s2, 3                     ; fq
    s_mul_i32 s26, s24, 28672
    s_mul_i32 s27, s25, 896
    s_add_u32 s26, s26, s27
    v_mul_u32_u24 v{VPS}, 3584, v21
    v_lshl_add_u32 v{VPS}, v22, 4, v{VPS}
    v_add_u32 v{VPS}, s26, v{VPS}
    v_lshlrev_b32 v{VPW}, 10, v21
    v_lshl_add_u32 v{VPW}, v22, 4, v{VPW}
    s_and_b32 s25, s{S_W}, 1
    s_lshl_b32 s26, s2, 13
    s_lshl_b32 s27, s25, 9
    s_add_u32 s26, s26, s27
    v_add_u32 v{VPW}, s26, v{VPW}
    s_mul_i32 s26, s25, {11*1024}
    s_add_u32 s{S_PST}, s26, {PST}
    {MKPRE}
    s_cmp_eq_u32 s{S_W}, 3
    s_cbranch_scc1 L_w3
    ; k / v staging tiles: row = lane >> 3, 16-byte segment = lane & 7
    v_lshlrev_b32 v32, 10, v21
    v_lshl_add_u32 v32, v22, 4, v32
    s_lshl_b32 s24, s{S_M}, 16
    s_lshl_b32 s25, s{S_G}, 7
    s_add_u32 s24, s24, s25
    v_add_u32 v32, s24, v32
    s_cmp_eq_u32 s{S_W}, 2
    s_cbranch_scc1 L_w2
    s_cmp_eq_u32 s{S_W}, 1
    s_cbranch_scc1 L_w1
    """)
    SK = 56
    def skload(): E(f"global_load_dwordx4 v[{SK}:{SK+3}], v30, s[56:57]")
    def h_dma(js, sch, slds):
        for j in js:
            E(f"s_add_u32 s26, s{sch}, {4 + 4*j}\ns_add_u32 m0, s{slds}, {j*HC_J + 64}\ns_nop 0")
            for q_ in range(4):
                E(f"buffer_load_dwordx4 v{VL16}, {HSRD}, s26 offen" + (f" offset:{1024*q_}" if q_ else "") + NT('h') + " lds")
    def prep_dma():
        for i in range(7):
            E(f"s_add_u32 m0, s{S_PST}, {1024*i - 128*i}")
            E(f"s_nop 0\nbuffer_load_dwordx4 v{VPS}, {PSRD}, 0 offen" + (f" offset:{128*i}" if i else "") + NT('r') + " lds")
        for i in range(4):
            E(f"s_add_u32 m0, s{S_PST}, {1024*(7+i) - 128*i}")
            E(f"s_nop 0\nbuffer_load_dwordx4 v{VPW}, {WDSRD}, 0 offen" + (f" offset:{128*i}" if i else "") + NT('r') + " lds")
    HEARLY = [0, 1, 2, 3] if opt.get('hpos', 0) == 0 else [0]
    HLATE = [j for j in range(4) if j not in HEARLY]
    def tile_path(lst):
        for j, (kind, blk) in enumerate(lst):
            c = (blk*8192 - (4096 if kind == 'k' else 1024)) & 0xffffffff
            E(f"v_add_u32 v{40+j}, {c:#x}, v32")
        E("s_waitcnt lgkmcnt(0)")
        E(f"s_load_dword s{S_E}, s[4:5], {FL_EPOCH}")
        if MKALL and MKPOS == 0: markers4()
        if any(k == 'k' for k, _ in lst): E(srd_fix(52, 2097152))
        if any(k == 'v' for k, _ in lst): E(srd_fix(64, 2097152))
        for j, (kind, blk) in enumerate(lst):
            E(f"s_mov_b32 m0, {(KT if kind == 'k' else VT) + blk*TBS}\ns_nop 0")
            E(f"buffer_load_dwordx4 v{40+j}, {KSRD if kind == 'k' else VSRD}, 0 offen{NT('t')} lds")
    tile_path([('k', b) for b in range(6)])
    E("s_branch L_w01\nL_w1:")
    tile_path([('k', b) for b in (6, 7, 8)] + [('v', b) for b in (0, 1, 2)])
    E("L_w01:")
    stamp('e1'); stamp('e2')
    skload()
    E(f"""
    s_mov_b32 s76, s58
    s_mov_b32 s77, s59
    {srd_fix(76, 2097152)}
    s_add_u32 s24, s{S_CB}, s{S_W}
    s_lshl_b32 s24, s24, 12                  ; channel * 4096
    s_mul_i32 s25, s{S_W}, {HC_CH}
    """)
    h_dma(HEARLY, 24, 25)
    RT = opt.get('rtouch', 0)
    def rtouch():
        E(f"buffer_load_dword v233, v233, {PSRD}, 0 offen")
        E(f"buffer_load_dword v234, v234, {WDSRD}, 0 offen")
    if RT:
        E(f"""
        s_cmp_eq_u32 s{S_W}, 1
        s_cselect_b32 s68, s70, s68
        s_cselect_b32 s69, s71, s69
        {srd_fix(68, 1835008)}
        s_mov_b32 s52, s72
        s_mov_b32 s53, s73
        {srd_fix(52, 1835008)}
        s_lshr_b32 s24, s2, 2
        s_add_u32 s24, s24, 32
        s_mul_i32 s24, s24, 28672
        s_and_b32 s25, s2, 3
        s_mul_i32 s25, s25, 896
        s_add_u32 s24, s24, s25
        s_add_u32 s25, s2, 128
        s_lshl_b32 s25, s25, 13
        s_lshl_b32 s26, s{S_W}, 9
        s_add_u32 s25, s25, s26
        s_cmp_ge_u32 s2, 128
        s_cselect_b32 s24, {OOB}, s24
        s_cselect_b32 s25, {OOB}, s25
        v_min_u32 v233, 6, v21
        v_lshlrev_b32 v233, 7, v233
        v_mul_u32_u24 v234, 3584, v22
        v_add_u32 v233, v233, v234
        v_add_u32 v233, s24, v233
        v_and_b32 v234, 3, v21
        v_lshlrev_b32 v234, 7, v234
        v_lshl_add_u32 v234, v22, 10, v234
        v_add_u32 v234, s25, v234
        """)
        if RT == 1: rtouch()
    E("s_branch L_join\nL_w2:")
    tile_path([('v', b) for b in range(3, 9)])
    stamp_dup('e1'); stamp_dup('e2')
    skload()
    E("s_branch L_w23\nL_w3:")
    if MKALL:
        MK2 = 0
        E(f"""
        s_waitcnt lgkmcnt(0)
        s_mov_b32 s68, s70
        s_mov_b32 s69, s71
        s_load_dword s{S_E}, s[4:5], {FL_EPOCH}
        """)
        if MKPOS == 0: markers4()
        stamp_dup('e1')
    else:
        MK4 = opt.get('mk4', 1)
        E(f"""
        v_lshlrev_b32 v33, 12, v21
        v_lshl_add_u32 v33, v22, 4, v33
        v_mov_b32 v36, -1
        v_mov_b32 v37, -1
        v_mov_b32 v38, -1
        v_mov_b32 v39, -1
        s_lshl_b32 s26, s{S_G}, 19
        s_lshl_b32 s27, s{S_M}, 7
        s_sub_u32 s26, s26, s27
        s_add_u32 s26, s26, {WS_KVT + 3968}
        s_waitcnt lgkmcnt(0)
        {srd_fix(S_WS, WS_SRD_BYTES)}
        s_load_dword s{S_E}, s[4:5], {FL_EPOCH}
        """)
        for i in range(16):
            E((f"buffer_store_dwordx4 v[36:39], v33, {WSRD}, s26 offen" if MK4 else f"buffer_store_dword v36, v33, {WSRD}, s26 offen") + (' sc1' if opt.get('mksc', 0) else ''))
            if i < 15: E("s_add_u32 s26, s26, 32768")
        stamp_dup('e1')
        E(f"""
        s_getreg_b32 s24, hwreg(HW_REG_XCC_ID, 0, 4)
        s_and_b32 s25, s2, 63
        s_lshl_b32 s25, s25, 7
        s_lshr_b32 s26, s2, 6
        s_lshl_b32 s26, s26, 2
        s_add_u32 s25, s25, s26
        s_add_u32 s25, s25, {FL_S0}
        s_and_b32 s24, s24, 7
        v_mov_b32 v{VF0}, {OOB}
        v_cmp_eq_u32 vcc, 0, v8
        v_mov_b32 v31, 0
        s_mov_b32 s68, s70
        s_mov_b32 s69, s71
        v_cndmask_b32 v{VF0}, v{VF0}, v31, vcc
        s_waitcnt lgkmcnt(0)
        s_mul_i32 s26, s{S_E}, 0x9e3779b1
        s_add_u32 s26, s26, 0x7f4a7c15
        s_and_b32 s26, s26, 0xfffffff0
        s_or_b32 s24, s24, s26
        v_mov_b32 v31, s24
        s_waitcnt vmcnt(0)
        buffer_store_dword v31, v{VF0}, {WSRD}, s25 offen sc1
        """)
        MK2 = opt.get('mk2', 0)
        if MK2 == 3: skload()
        if MK2:
            E(f"""
            s_lshl_b32 s26, s{S_G}, 19
            s_lshl_b32 s27, s{S_M}, 7
            s_sub_u32 s26, s26, s27
            s_add_u32 s26, s26, {WS_KVT + 3968}
            """)
            for i in range(16):
                E(f"buffer_store_dwordx4 v[36:39], v33, {WSRD}, s26 offen sc1")
                if i < 15: E("s_add_u32 s26, s26, 32768")
    stamp_dup('e2')
    if MK2 != 3: skload()
    E(f"""
    L_w23:
    {srd_fix(68, 1835008)}
    s_mov_b32 s52, s72
    s_mov_b32 s53, s73
    {srd_fix(52, 1835008)}
    """)
    RAWPOS = opt.get('rawpos', 0)
    RAWTHR = opt.get('rawthr', 0)
    if RAWPOS == 0: prep_dma()
    if RAWTHR:
        assert RAWPOS == 1 and MKPOS == 0
        E(f"s_cmp_lt_u32 s2, {RAWTHR}\ns_cbranch_scc1 L_join")
        prep_dma()
    E("L_join:")
    stamp('join')
    if opt.get('tw'):
        E(f"s_waitcnt vmcnt({opt['tw']})")
        stamp('tw')
    HEAD = 60
    PFL = opt.get('pfl', 15)
    E(f"""
    {srd_fix(S_WS, WS_SRD_BYTES)}
    s_lshr_b32 s{S_CP}, s{S_CB}, 1
    s_mov_b32 s76, s58
    s_mov_b32 s77, s59
    {srd_fix(76, 2097152)}
    s_lshl_b32 s24, s{S_CB}, 1
    s_load_dword s{S_D}, s[60:61], s24
    v_and_b32 v23, 31, v0
    v_lshrrev_b32 v24, 7, v0
    v_bfe_u32 v25, v0, 5, 2
    v_lshl_add_u32 v26, v25, 1, v23
    v_add_u32 v26, -30, v26
    v_add_u32 v27, s{S_CB}, v24
    v_lshlrev_b32 v27, 12, v27
    v_lshl_add_u32 v27, v26, 1, v27
    v_cmp_gt_i32 vcc, 0, v26
    v_mov_b32 v31, -16
    v_mul_u32_u24 v61, {HC_CH}, v24
    v_cndmask_b32 v27, v27, v31, vcc
    buffer_load_ushort v{HEAD}, v27, {HSRD}, 0 offen
    v_mul_u32_u24 v31, {HC_J}, v25
    v_add_u32 v61, v61, v31
    v_lshl_add_u32 v61, v23, 1, v61
    s_getpc_b64 s[32:33]
    L_pc:
    s_lshl_b32 s24, s{S_M}, 2
    s_add_u32 s24, s24, s{S_W}
    {'s_and_b32 s24, s24, 31' if PFL == 15 else 's_nop 0'}
    s_lshl_b32 s24, s24, {11 if PFL == 15 else 9}
    v_and_b32 v31, {PFL}, v8
    v_lshlrev_b32 v31, 7, v31
    v_add_u32 v31, s24, v31
    v_min_u32 v31, L_codeend-L_pc-64, v31
    global_load_dword v255, v31, s[32:33]
    """)
    stamp('i_a')
    E(f"""
    s_mov_b32 s{S_OUT}, s74
    s_mov_b32 s{S_OUT+1}, s75
    ; block-stage ids ; q fragment offsets: token = 128 c + 8 role + tok, channels 128 w + 64 c2 + 16 ks + 8 hi ..
    s_and_b32 s{S_ROLE}, s{S_M}, 15
    s_lshr_b32 s24, s{S_M}, 4
    s_lshl_b32 s24, s24, 3
    s_add_u32 s{S_C}, s{S_G}, s24
    s_lshr_b32 s{S_TH}, s{S_ROLE}, 3
    s_and_b32 s{S_J}, s{S_ROLE}, 7
    v_and_b32 v20, 7, v8                     ; tok
    v_bfe_u32 v21, v8, 3, 1                  ; hi
    v_lshrrev_b32 v22, 4, v8                 ; ks
    v_lshlrev_b32 v9, 10, v20
    v_lshl_add_u32 v9, v22, 5, v9
    v_lshl_add_u32 v9, v21, 4, v9
    s_lshl_b32 s24, s{S_C}, 7
    s_lshl_b32 s25, s{S_ROLE}, 3
    s_add_u32 s24, s24, s25
    s_lshl_b32 s24, s24, 10
    s_lshl_b32 s25, s{S_W}, 8
    s_add_u32 s{S_QO}, s24, s25
    {srd_fix(S_Q, 2097152)}
    """)
    ROTP = "" if not opt.get('rot', 0) else f"""s_lshr_b32 s96, s{S_C}, 3
    s_lshl_b32 s96, s96, 1
    s_lshr_b32 s97, s{S_W}, 1
    s_add_u32 s96, s96, s97
    s_sub_u32 s29, s29, s96
    s_and_b32 s29, s29, 3"""
    E(f"""
    s_getreg_b32 s{S_XCC}, hwreg(HW_REG_XCC_ID, 0, 4)
    s_lshl_b32 s{S_W1K}, s{S_W}, 13
    s_mul_i32 s{S_W1}, s{S_ROLE}, 229376
    s_add_u32 s{S_W1}, s{S_W1}, s{S_W1K}
    s_add_u32 s{S_W1}, s{S_W1}, {WS_W1F}
    s_and_b32 s{S_OUT+1}, s{S_OUT+1}, 0xffff
    s_mov_b32 s{S_OUT+2}, 2097152
    s_mov_b32 s{S_OUT+3}, 0x20000
    s_mov_b32 s{S_HI}, 0xffff0000
    s_mov_b32 s{S_LN2}, {LN2:#x}
    s_mov_b32 s{S_LN2+1}, {LN2:#x}
    s_mov_b32 s{S_EXP}, 1
    s_and_b32 s{S_XCC}, s{S_XCC}, 7
    v_add_u32 v{VA1}, 65536, v{VL16}
    v_add_u32 v{VA2}, 131072, v{VL16}
    v_lshlrev_b32 v{VP8}, 2, v20
    v_and_b32 v{VP16}, 15, v8
    v_lshlrev_b32 v{VP16}, 2, v{VP16}
    v_mov_b32 v{VF0}, {OOB}
    v_cmp_eq_u32 vcc, 0, v8
    v_mov_b32 v31, 0
    s_lshr_b32 s30, s{S_ROLE}, 2             ; tt_r
    s_and_b32 s24, s{S_ROLE}, 3
    v_cndmask_b32 v{VF0}, v{VF0}, v31, vcc
    s_lshl_b32 s25, s24, 7
    v_lshlrev_b32 v{VR}, 10, v22
    v_lshl_add_u32 v{VR}, v21, 9, v{VR}
    v_lshl_add_u32 v{VR}, v20, 4, v{VR}
    v_add_u32 v{VR}, s25, v{VR}
    ; stats addresses
    v_lshlrev_b32 v{VSTR}, 5, v20
    v_add_u32 v{VSTR}, {STATS}, v{VSTR}
    v_and_b32 v31, 1, v22
    v_lshl_add_u32 v{VSTW}, v31, 2, v{VSTR}
    s_lshl_b32 s25, s{S_W}, 3
    v_add_u32 v{VSTW}, s25, v{VSTW}
    v_lshlrev_b32 v10, 12, v22
    v_lshl_add_u32 v10, v21, 11, v10
    v_lshl_add_u32 v10, v20, 2, v10
    s_lshl_b32 s25, s{S_G}, {GSH}
    s_lshr_b32 s26, s{S_C}, 3
    s_lshl_b32 s26, s26, 17
    s_add_u32 s25, s25, s26
    s_lshl_b32 s26, s30, 15
    s_add_u32 s{S_R}, s25, s26
    s_lshl_b32 s26, s{S_W}, 13
    s_add_u32 s{S_R}, s{S_R}, s26
    s_lshl_b32 s26, s{S_W}, 15
    s_add_u32 s{S_XNL}, s25, s26             ; XB + w*32768
    s_lshl_b32 s26, s{S_C}, 2
    s_add_u32 s27, s26, s{S_W}
    s_mul_i32 s27, s27, 114688
    s_lshr_b32 s28, s{S_ROLE}, 2
    s_mul_i32 s28, s28, 28
    s_and_b32 s29, s{S_ROLE}, 3
    {ROTP}
    s_add_u32 s28, s28, s29
    s_lshl_b32 s28, s28, 10
    s_add_u32 s{S_HST}, s27, s28
    s_lshl_b32 s27, s{S_TH}, 1
    s_add_u32 s27, s27, s26
    s_mul_i32 s27, s27, 114688
    s_mul_i32 s28, s{S_W}, 28672
    s_add_u32 s{S_HLD}, s27, s28             ; (4c+2th)*114688 + 28w*1024
    s_and_b32 s26, s{S_W}, 1
    s_lshl_b32 s26, s26, 1
    s_lshr_b32 s27, s{S_W}, 1
    s_add_u32 s26, s26, s27
    s_lshl_b32 s27, s{S_J}, 2
    s_add_u32 s26, s26, s27                  ; kappa_o = 4j + 2(w&1) + (w>>1)
    s_lshl_b32 s27, s26, 10
    s_lshl_b32 s28, s{S_TH}, 16
    s_add_u32 s27, s27, s28
    s_add_u32 s{S_XML}, s27, s25
    ; flags
    s_lshl_b32 s25, s{S_C}, 8
    s_lshl_b32 s27, s30, 6
    s_add_u32 s27, s27, s25
    s_lshl_b32 s28, s24, 4
    s_add_u32 s27, s27, s28
    s_lshl_b32 s28, s{S_W}, 2
    s_add_u32 s{S_FXNS}, s27, s28
    s_lshl_b32 s27, s{S_W}, 6
    s_add_u32 s{S_FXNL}, s25, s27            ; c*256 + w*64
    s_lshl_b32 s25, s{S_C}, 10
    s_lshr_b32 s27, s{S_W}, 1
    s_lshl_b32 s27, s27, 7
    s_add_u32 s27, s27, s25
    s_lshl_b32 s29, s{S_ROLE}, 3
    s_add_u32 s27, s27, s29
    s_and_b32 s29, s{S_W}, 1
    s_lshl_b32 s29, s29, 2
    s_add_u32 s{S_FHS}, s27, s29             ; c*1024 + (w>>1)*128 + role*8 + (w&1)*4
    s_lshl_b32 s27, s{S_TH}, 7
    s_add_u32 s27, s27, s25
    s_lshl_b32 s29, s{S_W}, 5
    s_add_u32 s{S_FHL}, s27, s29             ; c*1024 + th*128 + w*32
    s_lshl_b32 s25, s{S_C}, 9
    s_lshl_b32 s27, s{S_TH}, 7
    s_add_u32 s27, s27, s25
    s_lshl_b32 s29, s{S_J}, 4
    s_add_u32 s27, s27, s29
    s_add_u32 s{S_FX2S}, s27, s28            ; c*512 + th*128 + j*16 + w*4
    s_lshr_b32 s27, s30, 1
    s_lshl_b32 s27, s27, 7
    s_add_u32 s27, s27, s25
    s_lshl_b32 s29, s{S_W}, 5
    s_add_u32 s{S_FX2L}, s27, s29            ; c*512 + (tt_r>>1)*128 + w*32
    s_add_u32 s{S_FXNS}, s{S_FXNS}, {FL_XN}
    s_add_u32 s{S_FXNL}, s{S_FXNL}, {FL_XN}
    s_add_u32 s{S_FHS}, s{S_FHS}, {FL_H}
    s_add_u32 s{S_FHL}, s{S_FHL}, {FL_H}
    s_add_u32 s{S_FX2S}, s{S_FX2S}, {FL_X2}
    s_add_u32 s{S_FX2L}, s{S_FX2L}, {FL_X2}
    s_mul_i32 s25, s{S_W}, 6144
    s_add_u32 s25, s25, {SCR}
    v_add_u32 v{VRR}, s25, v{VL16}
    """)
    for m in (1, 2, 3):
        E(f"""
        s_xor_b32 s25, s{S_W}, {m}
        s_mul_i32 s25, s25, 6144
        s_add_u32 s25, s25, {SCR + (m-1)*2048}
        v_add_u32 v{VRW[m-1]}, s25, v{VL16}
        """)
    E(f"""
    s_lshl_b32 s{S_WDB}, s{S_J}, 2
    s_add_u32 s{S_WDB}, s{S_WDB}, s{S_W}
    s_mul_i32 s{S_WDB}, s{S_WDB}, 57344
    s_add_u32 s{S_WDB}, s{S_WDB}, {WS_WDF}
    s_lshr_b32 s25, s{S_W}, 1
    s_lshl_b32 s25, s25, 8
    v_xor_b32 v31, s25, v{VL16}
    s_and_b32 s25, s{S_W}, 1
    s_lshl_b32 s25, s25, 10
    v_add_u32 v{VWD}, s25, v31
    s_xor_b32 s25, s25, 1024
    v_add_u32 v{VWD+1}, s25, v31
    """)
    stamp('pre')
    E(f"""
    s_waitcnt lgkmcnt(0)
    s_mul_i32 s{S_N}, s{S_E}, 0x9e3779b1
    s_add_u32 s{S_N}, s{S_N}, 0x7f4a7c15
    s_and_b32 s{S_N}, s{S_N}, 0xfffffff0
    s_or_b32 s{S_XCC}, s{S_XCC}, s{S_N}
    v_mov_b32 v{VONE}, s{S_N}
    ; flag slot of this work-group in the [64][4] arrays
    s_and_b32 s86, s2, 63
    s_lshl_b32 s86, s86, 7
    s_lshr_b32 s24, s2, 6
    s_lshl_b32 s24, s24, 2
    s_add_u32 s86, s86, s24
    """)
    if opt.get('ftouch', 0):
        E(f"""
        s_lshl_b32 s24, s{S_ROLE}, 1
        v_add_u32 v20, s24, v8
        v_min_u32 v20, 23, v20
        v_lshrrev_b32 v21, 1, v20
        v_and_b32 v22, 1, v20
        v_lshlrev_b32 v21, 12, v21
        v_lshl_add_u32 v21, v22, 7, v21
        s_lshl_b32 s24, s{S_C}, 8
        s_add_u32 s24, s24, {FL_XN}
        v_add_u32 v21, s24, v21
        v_subrev_u32 v22, 4, v20
        v_lshrrev_b32 v23, 3, v22
        v_and_b32 v22, 7, v22
        v_lshlrev_b32 v23, 14, v23
        v_lshl_add_u32 v23, v22, 7, v23
        s_lshl_b32 s24, s{S_C}, 10
        s_add_u32 s24, s24, {FL_H}
        v_add_u32 v23, s24, v23
        v_cmp_lt_u32 vcc, 3, v20
        v_cndmask_b32 v21, v21, v23, vcc
        v_subrev_u32 v22, 20, v20
        v_lshlrev_b32 v22, 7, v22
        s_lshl_b32 s24, s{S_C}, 9
        s_add_u32 s24, s24, {FL_X2}
        v_add_u32 v22, s24, v22                  ; X2 + c*512 + line*128
        v_cmp_lt_u32 vcc, 19, v20
        v_cndmask_b32 v21, v21, v22, vcc
        v_cmp_lt_u32 vcc, 1, v8
        v_mov_b32 v22, {OOB}
        v_cndmask_b32 v{VFT}, v21, v22, vcc
        """)
    stamp('setup')

    VA_, VB_ = 62, 63
    VXW, VKVW, VYS, VT0, VS1P, VEP = 22, 248, 249, 250, 253, 254
    VTR, W1D, WDD, VYP, VS1F = 226, 227, 228, 229, 230
    S_XL = 72
    S_W1DST, S_WDDST, S_YP, S_S1F = 64, 65, 66, 67
    E(f"""
    ; weight images (waves 2 and 3): raw 8-row blocks go to LDS, come back transposed and are stored as MFMA fragments
    s_cmp_eq_u32 s{S_W}, 3
    s_cselect_b32 s28, 256, 0
    s_cselect_b32 s29, 4, 0                  ; first Wd block of this wave
    s_lshr_b32 s24, s2, 2                    ; kg
    s_and_b32 s25, s2, 3                     ; fq
    v_bfe_u32 v20, v8, 2, 2
    v_lshlrev_b32 v{VTR}, 7, v20
    v_lshrrev_b32 v21, 4, v8                 ; g
    v_lshl_add_u32 v{VTR}, v21, 5, v{VTR}
    v_and_b32 v20, 3, v8
    v_lshl_add_u32 v{VTR}, v20, 3, v{VTR}
    v_add_u32 v{VTR}, s{S_PST}, v{VTR}
    v_and_b32 v20, 3, v8
    v_bfe_u32 v23, v8, 2, 1
    v_lshl_or_b32 v20, v23, 3, v20
    v_bfe_u32 v23, v8, 3, 1
    v_lshl_or_b32 v20, v23, 2, v20
    v_lshlrev_b32 v20, 4, v20                ; row * 16
    v_lshl_add_u32 v{W1D}, v21, 15, v20      ; + g * 32768
    s_mul_i32 s26, s25, {28*32768}
    s_lshr_b32 s27, s24, 1
    s_lshl_b32 s27, s27, 10
    s_add_u32 s26, s26, s27
    s_and_b32 s27, s24, 1
    s_lshl_b32 s27, s27, 9
    s_add_u32 s26, s26, s27
    s_add_u32 s26, s26, s28
    s_add_u32 s{S_W1DST}, s26, {WS_W1F}
    v_lshrrev_b32 v23, 1, v21
    v_lshl_add_u32 v{WDD}, v23, 10, v20      ; + dt * 1024
    v_and_b32 v23, 1, v21
    v_lshl_add_u32 v{WDD}, v23, 8, v{WDD}    ; + 16 rows
    s_lshr_b32 s24, s2, 1                    ; kf
    s_mul_i32 s25, s24, 2341
    s_lshr_b32 s25, s25, 16                  ; kf / 28
    s_mul_i32 s26, s25, 28
    s_sub_u32 s26, s24, s26
    s_mul_i32 s25, s25, 57344
    s_lshl_b32 s26, s26, 11
    s_add_u32 s25, s25, s26
    s_and_b32 s26, s2, 1
    s_lshl_b32 s26, s26, 9
    s_add_u32 s25, s25, s26
    s_mul_i32 s26, s29, 229376
    s_add_u32 s25, s25, s26
    s_add_u32 s25, s25, {WS_WDF}
    s_cmp_ge_u32 s2, 224
    s_cselect_b32 s{S_WDDST}, 0xf0000000, s25
    ; markers of the Y rows: waves 2 and 3 take eight clusters each
    v_lshrrev_b32 v{VYP}, 5, v8
    v_and_b32 v20, 31, v8
    v_lshlrev_b32 v{VYP}, 17, v{VYP}
    v_lshl_add_u32 v{VYP}, v20, 4, v{VYP}
    s_lshl_b32 s24, s{S_CP}, 9
    s_lshl_b32 s25, s29, 18
    s_add_u32 s24, s24, s25
    s_add_u32 s{S_YP}, s24, {WS_Y}
    ; images-complete flag: index 2 b + (w & 1) -> line index & 127, dword index >> 7
    s_lshl_b32 s24, s2, 1
    s_and_b32 s25, s{S_W}, 1
    s_add_u32 s24, s24, s25
    s_and_b32 s25, s24, 127
    s_lshl_b32 s25, s25, 7
    s_lshr_b32 s24, s24, 7
    s_lshl_b32 s24, s24, 2
    s_add_u32 s24, s24, s25
    s_add_u32 s{S_S1F}, s24, {FL_S1}
    s_cmp_ge_u32 s{S_W}, 2
    s_cselect_b32 s24, 0, {OOB}
    v_or_b32 v{VS1F}, s24, v{VF0}
    s_lshl_b32 s24, s{S_W}, 12
    s_add_u32 s24, s24, {FL_S1}
    v_and_b32 v20, 31, v8
    v_lshlrev_b32 v{VS1P}, 7, v20
    v_add_u32 v{VS1P}, s24, v{VS1P}
    v_and_b32 v20, 15, v8                    ; r
    v_lshrrev_b32 v21, 4, v8                 ; g
    v_and_b32 v22, 3, v8                     ; j'
    v_bfe_u32 v23, v8, 2, 2                  ; q
    s_lshr_b32 s24, s{S_W}, 1                ; ch
    s_and_b32 s25, s{S_W}, 1
    s_lshl_b32 s25, s25, 8
    s_mul_i32 s26, s24, {HC_CH}
    s_add_u32 s26, s26, s25
    v_mul_u32_u24 v24, {HC_J}, v22
    v_add_u32 v25, v21, v23
    v_lshl_add_u32 v24, v25, 4, v24
    v_add_u32 v{VA_}, s26, v24
    s_mul_i32 s26, s24, {XR_CH}
    s_add_u32 s26, s26, s25
    s_add_u32 s26, s26, {XRB + 16*252 - 3584}
    v_and_b32 v22, 7, v8                     ; n'
    v_bfe_u32 v23, v8, 3, 1                  ; par'
    v_mul_u32_u24 v24, {XR_P}, v23
    v_lshlrev_b32 v25, 6, v22
    v_sub_u32 v24, v24, v25
    v_lshl_add_u32 v24, v21, 4, v24
    v_add_u32 v{VB_}, s26, v24
    v_lshrrev_b32 v20, 6, v0
    v_and_b32 v20, 1, v20
    v_mul_u32_u24 v20, {XR_CH}, v20
    v_bfe_u32 v21, v0, 5, 1
    v_mul_u32_u24 v21, {XR_P}, v21
    v_add_u32 v20, v20, v21
    v_and_b32 v21, 31, v0
    v_lshl_add_u32 v20, v21, 4, v20
    v_add_u32 v20, {XRB + 4096}, v20
    v_mov_b32 v24, 0
    v_mov_b32 v25, 0
    v_mov_b32 v26, 0
    v_mov_b32 v27, 0
    """)
    E.ds("ds_write_b128 v20, v[24:27]", 'pad')
    E(f"""
    ; kv stage: thread = (channel pair cp = 8 w + (lane >> 3), token group tg = lane & 7) ; stores at cp*16384 + 4080 - 128 m - 16 tg
    v_lshrrev_b32 v20, 3, v0                 ; cp
    v_and_b32 v21, 7, v8                     ; tg
    v_lshlrev_b32 v53, {14 - P1}, v20
    v_lshlrev_b32 v23, 4, v21
    v_sub_u32 v53, v53, v23
    s_lshl_b32 s24, s{S_M}, 7
    s_sub_u32 s24, 4080, s24
    v_add_u32 v53, s24, v53
    ; staging tile reads
    v_mul_u32_u24 v54, {TBS}, v21
    v_lshl_add_u32 v54, v20, 2, v54
    v_add_u32 v55, {VT}, v54
    v_add_u32 v54, {KT}, v54
    ; group flag poll: line 8 l + gamma
    v_and_b32 v30, 7, v8
    v_lshlrev_b32 v30, 10, v30
    s_lshl_b32 s24, s{S_G}, 7
    s_add_u32 s24, s24, {FL_S0}
    v_add_u32 v30, s24, v30
    s_and_b32 s25, s{S_W}, 1
    s_mul_i32 s24, s25, {XR_CH}
    s_add_u32 s24, s24, {XRB}
    v_add_u32 v{VXW}, s24, v{VL16}
    s_add_u32 s24, s{S_CB}, s25
    s_lshl_b32 s24, s24, {13 - P1}
    s_add_u32 s{S_XL}, s24, {WS_KVT}
    s_add_u32 s{S_XL+1}, s24, {WS_KVT + 4096}
    v_and_b32 v20, 7, v8                     ; n'
    v_bfe_u32 v21, v8, 3, 1                  ; par'
    v_lshrrev_b32 v23, 4, v8                 ; g
    v_lshlrev_b32 v31, 6, v20
    v_lshl_add_u32 v31, v23, 4, v31          ; 64 n' + 16 g
    v_mul_u32_u24 v{VKVW}, {XR_P}, v21
    v_sub_u32 v{VKVW}, v{VKVW}, v31
    s_lshl_b32 s24, s{S_W}, 10
    s_sub_u32 s24, {XRB + 4080 - 512}, s24
    v_add_u32 v{VKVW}, s24, v{VKVW}
    v_lshrrev_b32 v31, 2, v20
    v_lshlrev_b32 v{VYS}, 17, v31
    v_and_b32 v31, 3, v20
    v_lshl_add_u32 v{VYS}, v31, 7, v{VYS}
    v_lshl_add_u32 v{VYS}, v23, 5, v{VYS}
    v_lshl_add_u32 v{VYS}, v21, 4, v{VYS}    ; (n'>>2)*131072 + (n'&3)*128 + g*32 + par'*16
    s_lshl_b32 s24, s{S_CP}, 9
    s_lshl_b32 s25, s{S_W}, 19
    s_add_u32 s24, s24, s25
    s_add_u32 s58, s24, {WS_Y}               ; + cp*512 + 2w*262144
    s_lshl_b32 s24, s{S_C}, 17
    s_lshl_b32 s25, s{S_ROLE}, 5
    s_add_u32 s24, s24, s25
    s_lshl_b32 s25, s{S_W}, 15
    s_add_u32 s24, s24, s25
    s_add_u32 s59, s24, {WS_Y}               ; + c*131072 + role*32 + 64w*512
    s_lshl_b32 s60, s{S_D}, 16
    s_and_b32 s61, s{S_D}, 0xffff0000
    v_mov_b32 v{VT0}, {OOB}
    v_mov_b32 v31, 0
    v_cmp_eq_u32 vcc, 0, v0
    s_lshl_b32 s24, s{S_G}, {GSH}
    s_add_u32 s80, s24, {WS_KVT}
    v_cndmask_b32 v{VT0}, v{VT0}, v31, vcc
    s_cmp_eq_u32 s2, 0
    s_cselect_b32 s24, {FL_EPOCH}, {OOB}
    v_add_u32 v{VEP}, s24, v{VT0}
    v_or_b32 v{VEP}, v{VEP}, v{VT0}
    s_add_u32 s81, s80, 4096
    s_add_u32 s82, s80, 8192
    s_add_u32 s83, s80, 12288
    """)
    stamp('setup2')
    def s0publish(lbl):
        E(f"""
        s_cmp_lg_u32 s{S_W}, 0
        s_cbranch_scc1 {lbl}
        v_mov_b32 v31, s{S_XCC}
        s_add_u32 s25, s86, {FL_S0}
        buffer_store_dword v31, v{VF0}, {WSRD}, s25 offen sc1
        {lbl}:
        """)
    if MKALL and MKPOS == 0:
        E(f"""
        s_cmp_ge_u32 s{S_W}, 2
        s_cbranch_scc1 L_bm2
        s_waitcnt vmcnt({6 + 1 + 4*len(HEARLY) + 2 + (2 if RT == 1 else 0)})
        s_branch L_bmx
        L_bm2:
        {f's_cmp_ge_u32 s2, {RAWTHR}' if RAWTHR else ''}
        {'s_cbranch_scc1 L_bm4' if RAWTHR else ''}
        s_cmp_eq_u32 s{S_W}, 3
        s_cbranch_scc1 L_bm3
        s_waitcnt vmcnt({9 + (11 if RAWPOS == 0 else 0)})
        s_branch L_bmx
        L_bm3:
        s_waitcnt vmcnt({3 + (11 if RAWPOS == 0 else 0)})
        """)
        if RAWTHR:
            E(f"""
            s_branch L_bmx
            L_bm4:
            s_cmp_eq_u32 s{S_W}, 3
            s_cbranch_scc1 L_bm5
            s_waitcnt vmcnt(20)
            s_branch L_bmx
            L_bm5:
            s_waitcnt vmcnt(14)
            """)
        E("""
        L_bmx:
        s_barrier
        """)
        s0publish('L_bmy')
        stamp('bm')
    if MKPOS == 1:
        markers4(fix=False)
        stamp('bm')
    if opt.get('ftouch', 0) == 1:
        l_ = E.label('L_ft')
        E(f"s_cmp_lg_u32 s{S_W}, 0\ns_cbranch_scc1 {l_}\nbuffer_load_dword v{VFT}, v{VFT}, {WSRD}, 0 offen\n{l_}:")
    FTW = FTW2 = ""
    NX0 = (1 if opt.get('ftouch', 0) == 1 else 0) + (1 if MKALL and MKPOS == 0 else 0)
    NY01 = (4*len(HEARLY) + 2 + (2 if RT else 0)) if MKPOS != 1 else 0
    if RT == 2:
        E(f"s_cmp_ge_u32 s{S_W}, 2\ns_cbranch_scc1 L_rt2")
        rtouch()
        E("L_rt2:")
    if NX0:
        FTW = f"s_cmp_eq_u32 s{S_W}, 0\ns_cbranch_scc1 L_g2c"
        FTW2 = f"L_g2c:\ns_waitcnt vmcnt({NY01 + NX0})\ns_branch L_g2x"
    E(f"""
    s_cmp_ge_u32 s{S_W}, 2
    s_cbranch_scc1 L_g2b
    {FTW}
    s_waitcnt vmcnt({NY01})
    s_branch L_g2x
    {FTW2}
    L_g2b:
    """)
    def kvtouch():
        E(f"""
        v_lshlrev_b32 v{VFT+1}, 12, v8
        s_lshl_b32 s26, s{S_G}, 19
        s_lshl_b32 s27, s{S_M}, 7
        s_sub_u32 s26, s26, s27
        s_add_u32 s26, s26, {WS_KVT + 3968}
        s_add_u32 s27, s26, 262144
        buffer_load_dword v{VFT+2}, v{VFT+1}, {WSRD}, s26 offen
        buffer_load_dword v{VFT+3}, v{VFT+1}, {WSRD}, s27 offen
        """)
    MKT = opt.get('mkt', 0)
    if RAWTHR:
        E(f"s_cmp_lt_u32 s2, {RAWTHR}\ns_cbranch_scc1 L_g2f\ns_waitcnt vmcnt(13)\ns_branch L_g2x\nL_g2f:")
    if RAWPOS == 1:
        E(srd_fix(68, 1835008))
        if MKT == 2:
            E(f"s_cmp_lg_u32 s{S_W}, 3\ns_cbranch_scc1 L_g2e")
            kvtouch()
            E("L_g2e:")
        prep_dma()
        if MKT == 1:
            E(f"s_cmp_lg_u32 s{S_W}, 3\ns_cbranch_scc1 L_g2d")
            kvtouch()
            E("s_waitcnt vmcnt(13)\ns_branch L_g2x\nL_g2d:")
        if MKT == 2:
            E(f"s_cmp_lg_u32 s{S_W}, 3\ns_cbranch_scc1 L_g2d")
            E("s_waitcnt vmcnt(13)\ns_branch L_g2x\nL_g2d:")
    E(f"""
    s_waitcnt vmcnt({13 if RAWPOS == 0 else 11 if RAWPOS == 1 else 2 if MKPOS != 1 else 0})
    L_g2x:
    """)
    stamp('i_b')
    if MKPOS == 2: markers4(fix=False)
    E.vmq = []
    E.wait_ds('pad')
    E("s_barrier")
    if MKPOS == 1: s0publish('L_bmy')
    stamp('b0')
    S0R = 24
    def s0poll(): E.vm(f"buffer_load_dwordx4 v[{S0R}:{S0R+3}], v30, {WSRD}, 0 offen sc1", 's0')
    S0AT = opt.get('s0at', 1)
    if S0AT == 0: s0poll()
    KR, VRW_ = 32, 44
    for x in range(0, 8, 2): E.ds(f"ds_read2_b32 v[{KR+x}:{KR+x+1}], v54 offset0:{32*x} offset1:{32*(x+1)}", 'kv')
    E(f"v_add_u32 v20, {TBS}, v54\nv_add_u32 v21, {TBS}, v55")
    for x in range(8, 12, 2): E.ds(f"ds_read2_b32 v[{KR+x}:{KR+x+1}], v20 offset0:{32*(x-8)} offset1:{32*(x-7)}", 'kv')
    for x in range(0, 8, 2): E.ds(f"ds_read2_b32 v[{VRW_+x}:{VRW_+x+1}], v55 offset0:{32*x} offset1:{32*(x+1)}", 'kv')
    E.ds(f"ds_read_b32 v{VRW_+8}, v21", 'kv')
    if RAWPOS == 2:
        E(f"s_cmp_lt_u32 s{S_W}, 2\ns_cbranch_scc1 L_rw2")
        E(srd_fix(68, 1835008))
        prep_dma()
        E("L_rw2:")
    E(f"""
    v_lshlrev_b32 v136, 16, v{SK}
    v_lshlrev_b32 v137, 16, v{SK+2}
    v_and_b32 v138, s{S_HI}, v{SK}
    v_and_b32 v139, s{S_HI}, v{SK+2}
    v_lshlrev_b32 v140, 16, v{SK+1}
    v_lshlrev_b32 v141, 16, v{SK+3}
    v_and_b32 v142, s{S_HI}, v{SK+1}
    v_and_b32 v143, s{S_HI}, v{SK+3}
    """)
    E.wait_ds('kv')
    for i in range(12): E(f"v_lshlrev_b32 v{96+2*i}, 16, v{KR+i}\nv_and_b32 v{97+2*i}, s{S_HI}, v{KR+i}")
    if S0AT == 1: s0poll()
    for i in range(9): E(f"v_lshlrev_b32 v{164+2*i}, 16, v{VRW_+i}\nv_and_b32 v{165+2*i}, s{S_HI}, v{VRW_+i}")
    def K(x): return f"v[{96+2*x}:{97+2*x}]"
    def KV(i): return 144 + 2*i
    KVI = range(1, 9) if P1 else range(9)
    for i in KVI: E(f"v_pk_mul_f32 v[{KV(i)}:{KV(i)+1}], v[136:137], {K(i+3)}")
    if S0AT == 2: s0poll()
    for tap in (1, 2, 3):
        for i in KVI: E(f"v_pk_fma_f32 v[{KV(i)}:{KV(i)+1}], v[{136+2*tap}:{137+2*tap}], {K(i+3-tap)}, v[{KV(i)}:{KV(i)+1}]")
    if S0AT == 3: s0poll()
    for i in KVI: E(f"v_pk_mul_f32 v[{KV(i)}:{KV(i)+1}], v[{KV(i)}:{KV(i)+1}], v[{164+2*i}:{165+2*i}]")
    if MKPOS == 2:
        assert S0AT == 4
        if RAWPOS == 2 and not MKW:
            E(f"s_cmp_ge_u32 s{S_W}, 2\ns_cbranch_scc1 L_mq2\ns_waitcnt vmcnt(0)\ns_branch L_mq3\nL_mq2:\ns_waitcnt vmcnt(11)\nL_mq3:")
        elif MKW:
            E(f"s_cmp_ge_u32 s{S_W}, 2\ns_cbranch_scc1 L_mq2\ns_waitcnt vmcnt(0)\nL_mq2:")
        else: E("s_waitcnt vmcnt(0)")
        stamp('mq')
        E("s_barrier")
        s0publish('L_bmy')
        stamp('bm')
    if S0AT == 4: s0poll()
    for c in range(2):
        for par in range(1 if P1 else 2):
            b = KR + 8*c + 4*par
            for d in range(4): E(f"v_cvt_pk_bf16_f32 v{b+d}, v{KV(8-par-2*d)+c}, v{KV(7-par-2*d)+c}")
            E.vm(f"buffer_store_dwordx4 v[{b}:{b+3}], v53, {WSRD}, s{80 + (c if P1 else 2*c + par)} offen" + FL('kv', 0), 'kvst')
    stamp('kvst')

    X, Y = 128, 136
    XF, YF, T = 144, 160, 176
    def stats(src, rnd, between=None, scale=False):
        P, Q = 192, 194
        E(f"v_pk_add_f32 v[{P}:{P+1}], v[{src}:{src+1}], v[{src+2}:{src+3}]")
        E(f"v_pk_mul_f32 v[{Q}:{Q+1}], v[{src}:{src+1}], v[{src}:{src+1}]")
        for i in range(1, 8):
            E(f"v_pk_fma_f32 v[{Q}:{Q+1}], v[{src+2*i}:{src+2*i+1}], v[{src+2*i}:{src+2*i+1}], v[{Q}:{Q+1}]")
            if i >= 2: E(f"v_pk_add_f32 v[{P}:{P+1}], v[{P}:{P+1}], v[{src+2*i}:{src+2*i+1}]")
        E(f"""
        v_add_f32 v{P}, v{P}, v{P+1}
        v_add_f32 v{Q}, v{Q}, v{Q+1}
        v_permlane16_swap_b32 v{P}, v{Q}
        v_add_f32 v{P}, v{P}, v{Q}
        v_add_f32_dpp v{P}, v{P}, v{P} row_ror:8 row_mask:0xf bank_mask:0xf
        v_mov_b32 v{P+1}, v{P}
        v_permlane32_swap_b32 v{P}, v{P+1}
        v_add_f32 v{P}, v{P}, v{P+1}
        s_mov_b64 exec, 0x00ff00ff
        """)
        E.ds(f"ds_write_b32 v{VSTW}, v{P} offset:{rnd*256}", 'stw')
        E("s_mov_b64 exec, -1")
        E.wait_ds('stw')
        E("s_barrier")
        E.ds(f"ds_read_b128 v[196:199], v{VSTR} offset:{rnd*256}", 'str')
        E.ds(f"ds_read_b128 v[200:203], v{VSTR} offset:{rnd*256+16}", 'str')
        if between: between()
        E.wait_ds('str')
        E(f"""
        v_pk_add_f32 v[196:197], v[196:197], v[198:199]
        v_pk_add_f32 v[200:201], v[200:201], v[202:203]
        v_pk_add_f32 v[196:197], v[196:197], v[200:201]
        v_mul_f32 v196, 0x3b000000, v196
        v_mul_f32 v197, 0x3b000000, v197
        v_fma_f32 v197, -v196, v196, v197
        v_max_f32 v197, 0, v197
        v_add_f32 v197, 0x3727c5ac, v197
        v_rsq_f32 v204, v197
        s_nop 0
        """)
        if scale: E(f"v_mul_f32 v204, {LOG2E:#x}, v204")
        E("v_mul_f32_e64 v206, -v196, v204")
    def norm(dst, src):
        for i in range(8):
            E(f"v_pk_fma_f32 v[{dst+2*i}:{dst+2*i+1}], v[{src+2*i}:{src+2*i+1}], v[204:205], v[206:207] op_sel_hi:[1,0,0]")
    def unpack(dst, src, n):
        for i in range(n):
            E(f"v_lshlrev_b32 v{dst+2*i}, 16, v{src+i}")
            E(f"v_and_b32 v{dst+2*i+1}, s{S_HI}, v{src+i}")
    S_XMD = 64
    def R_pre(L, between=None):
        unpack(XF, X, 8)
        if P1 and L == 1:
            for i in range(8): E(f"v_pk_add_f32 v[{XF+2*i}:{XF+2*i+1}], v[{XF+2*i}:{XF+2*i+1}], v[{T+2*i}:{T+2*i+1}]")
            if opt.get('x2r', 0):
                for i in range(8): E(f"v_cvt_pk_bf16_f32 v{X+i}, v{XF+2*i}, v{XF+2*i+1}")
                unpack(XF, X, 8)
        stats(XF, 0, between)
        norm(T, XF)
        stamp(f'R{L}s1')
    def R_post(L, early=None, late=None):
        unpack(YF, Y, 8)
        for i in range(8):
            E(f"v_pk_fma_f32 v[{XF+2*i}:{XF+2*i+1}], v[{T+2*i}:{T+2*i+1}], v[{YF+2*i}:{YF+2*i+1}], v[{XF+2*i}:{XF+2*i+1}]")
        M = 20 if (P1 and L == 0) else 208
        for i in range(8): E(f"v_cvt_pk_bf16_f32 v{M+i}, v{XF+2*i}, v{XF+2*i+1}")
        def xmst():
            if P1 and L == 0: return
            if P1: E(f"s_add_u32 s{S_T0}, s{S_R}, s{S_XMD}\ns_add_u32 s{S_T1}, s{S_T0}, 4096")
            else: sadd(S_T0, S_R, WS_XM); sadd(S_T1, S_R, WS_XM + 4096)
            E.vm(f"buffer_store_dwordx4 v[{M}:{M+3}], v{VR}, {WSRD}, s{S_T0} offen" + FL('xm', L), 'rst')
            E.vm(f"buffer_store_dwordx4 v[{M+4}:{M+7}], v{VR}, {WSRD}, s{S_T1} offen" + FL('xm', L), 'rst')
        def behind():
            xmst()
            E.vm(f"buffer_store_dword v{VONE}, v{VEP}, {WSRD}, 0 offen sc1", 'ep')
            if late: late()
        XML = P1 and L == 1 and opt.get('xmlate', 0)
        if L == 1 and not XML: xmst()
        if early: early()
        stats(XF, 1, between=behind if L == 0 else late, scale=True)
        norm(T, XF)
        N = 216
        for i in range(8): E(f"v_cvt_pk_bf16_f32 v{N+i}, v{T+2*i}, v{T+2*i+1}")
        sadd(S_T0, S_R, WS_XN); sadd(S_T1, S_R, WS_XN + 4096)
        E.vm(f"buffer_store_dwordx4 v[{N}:{N+3}], v{VR}, {WSRD}, s{S_T0} offen" + FL('xn', L), 'rst')
        E.vm(f"buffer_store_dwordx4 v[{N+4}:{N+7}], v{VR}, {WSRD}, s{S_T1} offen" + FL('xn', L), 'rst')
        if XML:
            for i in range(8): E(f"v_accvgpr_write_b32 a{A_Y+i}, v{M+i}")
        stamp(f'R{L}st')
    def Rpub(L):
        publish(S_FXNS, 0, 'rst')
        E("s_barrier")
        stamp(f'R{L}pub')

    ORDER = {}
    def g2_order():
        stA = [0, 1, 2]; stB = [3, 4, 5]; stC = [6]
        def blocks(tt, ps): return [(tt, rho, p) for p in ps for rho in range(4)]
        b1 = blocks(1, stB); nb1 = opt.get('b1_first', 4)
        return blocks(0, stA) + blocks(1, stA) + blocks(0, stB) + b1[:nb1] + blocks(0, stC) + b1[nb1:] + blocks(1, stC)
    def wd_kseq(L):
        kseq = []
        for (tt, rho, p) in g2_order():
            kp = rho*7 + LAYERS[L]['tau'][p]
            if kp not in kseq: kseq.append(kp)
        if opt.get('rot', 0): kseq.sort(key=lambda kp: kp // 7)
        return kseq
    def make_bulk():
        c = LAYERS[0]; ops = []
        ks = wd_kseq(0); npre = opt.get('wd_pre', 0)
        for p in range(3): ops += dma_stream(c['tau'][p], c['slot'][p], f'w1_{p}')
        ops += wd_stream(ks[:npre])
        ops += dma_stream(c['tau'][3], c['slot'][3], 'w1_3')
        if not opt.get('nowd', 0): ops += wd_stream(ks[npre:])
        return Bulk(ops)
    BK = {}

    def layer(L):
        cfg = LAYERS[L]; tau = cfg['tau']; slot = cfg['slot']
        O = lambda k, d: opt.get(f'{k}{L}', opt.get(k, d))
        G2 = 224; NS = 336; lastslot = NS - 1
        BUD = O('bud', 24); VGAP = O('vgap', 2)
        F = {}; cost = [0]*(NS + 64); vslots = set()
        for i in range(G2):
            if i + LA < G2: cost[i] += 4
            if i % 2 == 0: cost[i] += 4
            if i < 96 and i % 3 == 0 and i > 0: cost[i] += 4
        for i in range(G2, NS, 2): cost[i] += 4
        RANK = {'m': 0, 's': 1, 'v': 2}
        def at(i, f, c=4, k='v'): F.setdefault(i, ([], [], []))[RANK[k]].append(f); cost[i] += c
        last = {'k': 'm', 't': -1}
        def put(t, f, c=4, k='v', vm=False, chain=False):
            if vm: k = 'm'
            if chain:
                t = max(t, last['t'] + (1 if RANK[k] < RANK[last['k']] else 0))
            while cost[t] + c > BUD or (vm and any((t + d) in vslots for d in range(-VGAP + 1, VGAP))): t += 1
            if vm: vslots.add(t)
            at(t, f, c, k); last['k'] = k; last['t'] = t
            return t
        def stream(t, ops):
            first = True
            for (c, vm, f) in ops:
                t = put(t, f, c, 's', vm, chain=not first); first = False
            return t
        def T_(s): return lambda: E(s)
        def barrier(): E("s_barrier")
        poll_issue(VP16, S_FXNL, 0, f'pxn{L}')
        if L == 0: BK['b'].emit(opt.get('bk_pub', 0))
        poll_check(VP16, S_FXNL, 0, f'pxn{L}')
        stamp(f'L{L}xnok')
        def xops(k):
            ops = []
            if k % 4 == 0: ops.append((4, False, lambda: sadd(S_XA, S_XNL, WS_XN + (k >> 2)*4096)))
            off = (k & 3)*1024
            ops.append((4, True, lambda: E.vm(f"buffer_load_dwordx4 v[{XR+4*k}:{XR+4*k+3}], v{VL16}, {WSRD}, s{S_XA} offen" + (f" offset:{off}" if off else "") + LSC, f'x{L}_{k}')))
            return ops
        n_up = O('nup', 5)
        for k in range(n_up):
            for (_, _, f) in xops(k): f()
        seq = []
        for k in range(32):
            for p in range(3): seq.append(('g1', p, k))
        for p in range(3, 7):
            for k in range(32): seq.append(('g1', p, k))
        accp = [0, 1, 2, 3, 0, 1, 2]
        def a_addr(p, k):
            s = slot[p]
            base = [VL16, VL16, VA1, VA1, VA2][s]
            off = (s & 1)*SLOT + k*1024 if s < 4 else k*1024
            return base, off
        def rd(i):
            _, p, k = seq[i]
            b, off = a_addr(p, k)
            r = RING + 4*(i % 8)
            E.ds(f"ds_read_b128 v[{r}:{r+3}], v{b} offset:{off}", f'a{L}_{i}')
        order = g2_order()
        assert len(order) == 56
        last0 = max(n for n, b in enumerate(order) if b[0] == 0)
        acc2 = {0: [ACC[0], ACC[1]], 1: [ACC[3], ACC[2]]}
        NH = 37
        def hreg(n):
            q = n % NH
            return ar(A_H + 4*q, 4) if q < 5 else vr(XR + 4*(q - 5), 4)
        def epilogue(p, o):
            c = ACC[accp[p]]
            for e in range(8):
                at(o + e, T_(f"v_exp_f32_e64 v{c+e}, -v{c+e}"), 8)
                at(o + e + 1, T_(f"v_add_f32 v{c+e}, 1.0, v{c+e}"))
                at(o + 8 + e, T_(f"v_rcp_f32 v{c+e}, v{c+e}"), 8)
                at(o + 9 + e, T_(f"v_mul_f32 v{c+e}, v{c+e}, v{c+8+e}"))
        def epilogue2(p, o):
            c = ACC[accp[p]]
            t = 0
            for k in range(4):
                t = put(max(t, o + 11 + 2*k), T_(f"v_cvt_pk_bf16_f32 v{c+8+k}, v{c+2*k}, v{c+2*k+1}"))
            stage = 'A' if p < 3 else ('B' if p < 6 else 'C')
            put(o + 10, T_(f"s_add_u32 s{S_HS[p & 1]}, s{S_HST}, {WS_H + tau[p]*4096}"), k='s')
            return put(t + 1, lambda: E.vm(f"buffer_store_dwordx4 v[{c+8}:{c+11}], v{VL16}, {WSRD}, s{S_HS[p & 1]} offen" + FL('h', L), f'h{stage}{L}'), vm=True)
        eo = [99, 115, 131, 147, 163, 196, 228]
        for p in range(7): epilogue(p, eo[p])
        est = [epilogue2(p, eo[p]) for p in range(7)]
        assert est[0] < 126 and est[1] < 158 and est[2] < 190 and est[5] < 222 and est[6] < 248, est
        at(121, lambda: (E.wait_vm(f'w4{L}'), barrier()), 8, 's')
        at(96, barrier, 4, 's')
        at(153, lambda: (E.wait_vm(f'w5{L}'), barrier()), 8, 's')
        at(185, lambda: (E.wait_vm(f'w6{L}'), barrier()), 8, 's')
        t = 0
        for k in range(n_up, 32):
            t = stream(max(t + (1 if k % 4 == 0 and k > n_up else 0), O('xsp', 2)*(k - n_up)), xops(k))
        XML = P1 and L == 1 and opt.get('xmlate', 0)
        if XML:
            t = stream(t + 1, [(4, False, lambda: E(f"s_add_u32 s{S_XA}, s{S_R}, s{S_XMD}")),
                               (4, True, lambda: E.vm(f"buffer_store_dwordx4 {ar(A_Y, 4)}, v{VR}, {WSRD}, s{S_XA} offen sc1", 'xms')),
                               (4, False, lambda: E(f"s_add_u32 s{S_XA}, s{S_XA}, 4096")),
                               (4, True, lambda: E.vm(f"buffer_store_dwordx4 {ar(A_Y+4, 4)}, v{VR}, {WSRD}, s{S_XA} offen sc1", 'xms'))])
        t = stream(t + 1, dma_stream(tau[4], slot[4], f'w4{L}'))
        w4end = t
        t = stream(97, dma_stream(tau[5], slot[5], f'w5{L}'))
        w5end = t
        t = stream(t + 1, dma_stream(tau[6], slot[6], f'w6{L}'))
        w6end = t
        assert w4end < 108 and w5end < 140 and w6end < 172, (w4end, w5end, w6end)
        if L == 0 and opt.get('htg'):
            def ht_ops(p0, np_):
                ops = [(4, False, lambda x=x: E(x)) for x in (f"v_lshrrev_b32 v30, 3, v8", f"v_min_u32 v30, {np_-1}, v30", f"v_lshlrev_b32 v30, 12, v30", f"v_and_b32 v31, 7, v8", f"v_lshl_add_u32 v30, v31, 7, v30")]
                return ops + [(4, False, lambda: E(f"s_add_u32 s{S_T2}, s{S_HST}, {WS_H + tau[p0]*4096}")),
                        (4, True, lambda: E.vm(f"buffer_load_dword v31, v30, {WSRD}, s{S_T2} offen", 'ht'))]
            assert tau == list(range(7))
            m = opt['htg']
            if m == 1:
                stream(w4end - 6, ht_ops(0, 3)); stream(w5end - 6, ht_ops(3, 4))
            elif m == 2:
                stream(w4end - 6, ht_ops(0, 7))
            elif m == 3:
                stream(2, ht_ops(0, 7))
        XM0 = 20; XM1 = 24
        def xm_ops(tt):
            return [(4, False, (lambda: sadd(S_XA, S_XML, WS_XM + tt*32768)) if not P1 else (lambda: E(f"s_add_u32 s{S_XA}, s{S_XML if tt == 0 else S_XA}, {f's{S_XMD}' if tt == 0 else 32768}"))),
                    (4, True, lambda: E.vm(f"buffer_load_dwordx4 v[{XM0+4*tt}:{XM0+4*tt+3}], v{VL16}, {WSRD}, s{S_XA} offen" + LSC, f'xm{L}'))]
        NOXM = P1 and L == 0
        if not NOXM: stream(stream(O('xm_at', 152) if not XML else 186, xm_ops(0)) + 1, xm_ops(1))
        fh = 0
        pub = {}; chk = {}
        for (st_, k, e) in (('A', 0, est[2]), ('B', 1, est[5]), ('C', 2, est[6])):
            tp = put(O('pub' + st_, e + 12), lambda st_=st_: E.wait_vm(f'h{st_}{L}'), k='s')
            tp = put(tp, lambda st_=st_, k=k: publish(S_FHS, fh + 256*k, f'h{st_}{L}', wait=False), 4, 'm', chain=True)
            tq = put(O('poll' + st_, tp + 8), lambda st_=st_, k=k: poll_issue(VP8, S_FHL, fh + 256*k, f'p{st_}{L}'), 4, 'm')
            tc = put(O('chk' + st_, tq + (12 if st_ == 'A' else 14)), lambda st_=st_: E.wait_vm(f'p{st_}{L}'), k='s')
            tc = put(tc, lambda st_=st_, k=k: poll_check(VP8, S_FHL, fh + 256*k, f'p{st_}{L}', wait=False), 8, 'v', chain=True)
            pub[st_] = tp; chk[st_] = tc
        if XML: assert pub['A'] > 121 and chk['A'] < 185
        hslot = {}
        for n0 in range(0, 56, 4):
            tt, _, p = order[n0]
            sreg = S_HA[(n0 >> 2) & 1]
            rdy = chk['A' if p < 3 else 'B' if p < 6 else 'C'] + 1
            prev = max([hslot[m] for m in range(max(0, n0 - 8), max(0, n0 - 4))], default=0)
            ta = put(max(prev, rdy - 3), lambda tt=tt, p=p, sreg=sreg: E(f"s_add_u32 s{sreg}, s{S_HLD}, {WS_H + tt*114688 + tau[p]*4096}"), k='s') + 1
            for n in range(n0, n0 + 4):
                assert order[n][0] == tt and order[n][2] == p and order[n][1] == n - n0
                q = n % NH
                if n < NH: free = 0 if q < 5 else 192 + (q - 5) + 1
                else: free = G2 + 2*(n - NH) + 2
                off = (n - n0)*1024
                hslot[n] = put(max(rdy, free, ta), lambda n=n, sreg=sreg, off=off: E.vm(f"buffer_load_dwordx4 {hreg(n)}, v{VL16}, {WSRD}, s{sreg} offen" + (f" offset:{off}" if off else "") + LSC, f'h{L}_{n}'), vm=True)
                assert hslot[n] < G2 + 2*n - 6, (L, n, hslot[n])
        if opt.get('verbose'): print('L', L, 'est', est, 'w', w4end, w5end, w6end, 'pub', pub, 'chk', chk, 'h', [hslot[n] for n in range(56)])
        if L == 0:
            firstuse = {}
            for n, (tt, rho, p) in enumerate(order): firstuse.setdefault(rho*7 + tau[p], G2 + 2*n)
            t = O('wd_at', 70)
            rest_ops = BK['b'].ops; BK['b'].ops = []
            kcur = None
            for (c_, vm_, f_) in rest_ops:
                info = getattr(f_, 'info', None)
                assert info is not None and info[0] == 'wd', 'only Wd loads may be left for G1'
                if not vm_:
                    at(t - 1, f_, 0, 's')
                else:
                    while t in vslots: t += 1
                    assert t < firstuse[info[1]] - 8, ('Wd deadline', info, t)
                    at(t, f_, 0, 'm'); t += O('wd_sp', 2)
            if opt.get('verbose'): print('last Wd load at', t)
        RB = RING
        def red_write_ops(tt):
            ops = []
            for m in (1, 3, 2):
                pd, g = m & 1, m >> 1
                src = acc2[tt][pd] + 8*g
                for hlf in range(2):
                    ops.append(lambda m=m, src=src, hlf=hlf: E.ds(f"ds_write_b128 v{VRW[m-1]}, v[{src+4*hlf}:{src+4*hlf+3}] offset:{1024*hlf}", f'rw{L}{tt}'))
            return ops
        def red_read_ops(tt):
            ops = []
            for m in range(3):
                for hlf in range(2):
                    ops.append(lambda m=m, hlf=hlf: E.ds(f"ds_read_b128 v[{RB+8*m+4*hlf}:{RB+8*m+4*hlf+3}], v{VRR} offset:{2048*m+1024*hlf}", f'rr{L}{tt}'))
            return ops
        def out_store(tt, src):
            if L == 0:
                sadd(S_T0, S_XML, WS_XN + tt*32768)
                E.vm(f"buffer_store_dwordx4 v[{src}:{src+3}], v{VL16}, {WSRD}, s{S_T0} offen", f'x2{tt}')
            else:
                sadd(S_T0, 30, tt*32768)
                E.vm(f"buffer_store_dwordx4 v[{src}:{src+3}], v28, s[{S_OUT}:{S_OUT+3}], s{S_T0} offen" + (FL('o', L) or FL(f'ot{tt}', '')), f'o2{tt}')
        if L == 1:
            def out_setup():
                return [T_(x) for x in f"""v_and_b32 v28, 31, v0
                v_lshlrev_b32 v28, 10, v28
                v_bfe_u32 v29, v0, 5, 1
                v_lshl_add_u32 v28, v29, 4, v28
                s_lshl_b32 s30, s{S_C}, 17
                s_lshl_b32 s25, s{S_TH}, 16
                s_add_u32 s30, s30, s25
                s_and_b32 s25, s{S_W}, 1
                s_lshl_b32 s25, s25, 1
                s_lshr_b32 s26, s{S_W}, 1
                s_add_u32 s25, s25, s26
                s_lshl_b32 s26, s{S_J}, 2
                s_add_u32 s25, s25, s26
                s_lshl_b32 s25, s25, 5
                s_add_u32 s30, s30, s25""".split('\n')]
            t = 72
            for f in out_setup(): t = put(t, f, k='v', chain=True)
        XU = RB + 24
        if not NOXM:
            t = put(G2 + (26 if not XML else O('xmw', 40)), lambda: E.wait_vm(f'xm{L}'), k='s')
            for e in range(4):
                t = put(t, T_(f"v_lshlrev_b32 v{XU+2*e}, 16, v{XM1+e}"))
                t = put(t, T_(f"v_and_b32 v{XU+1+2*e}, s{S_HI}, v{XM1+e}"))
        m0_last = G2 + 2*last0 + 1
        t = m0_last + 5
        for f in red_write_ops(0): t = put(t, f, 8, 'm')
        t = put(t + 1, lambda: (E.wait_ds(f'rw{L}0'), barrier()), 8, 's')
        t += 1
        for f in red_read_ops(0): t = put(t, f, 4, 'm')
        own = acc2[0][0]
        t = put(t + 3, lambda: E.wait_ds(f'rr{L}0'), k='s')
        tb = t
        for e in range(8): t = put(t, T_(f"v_add_f32 v{RB+e}, v{RB+e}, v{RB+8+e}"))
        for e in range(8): t = put(t, T_(f"v_add_f32 v{own+e}, v{own+e}, v{RB+16+e}"))
        for e in range(4 if not NOXM else 0):
            t = put(t, T_(f"v_lshlrev_b32 v{RB+8+2*e}, 16, v{XM0+e}"))
            t = put(t, T_(f"v_and_b32 v{RB+9+2*e}, s{S_HI}, v{XM0+e}"))
        for e in range(8): t = put(t, T_(f"v_add_f32 v{own+e}, v{own+e}, v{RB+e}"))
        for e in range(8): t = put(t, T_(f"v_fma_f32 v{own+e}, v{own+e}, s{S_LN2}, v{RB+8+e}" if not NOXM else f"v_mul_f32 v{own+e}, s{S_LN2}, v{own+e}"))
        for e in range(4): t = put(t, T_(f"v_cvt_pk_bf16_f32 v{RB+e}, v{own+2*e}, v{own+2*e+1}"))
        t = put(t + 1, lambda: out_store(0, RB), 8, 'm')
        if opt.get('verbose'): print('tt0 reduction done at', t)
        put(tb + 1, barrier, k='s')
        E.wait_vm(f'x{L}_0')
        stamp(f'L{L}g1')
        for i in range(LA): rd(i)
        def emit_fill(i, mid=None):
            fm, fs, fv = F.pop(i, ([], [], []))
            if mid: mid()
            for f in fm + fs + fv: f()
        for i in range(224):
            _, p, k = seq[i]
            stamp(f'L{L}s{i}')
            if p < 3 and (i % 3) == 0 and k > 0: E.wait_vm(f'x{L}_{k}')
            if i % 2 == 0: E.wait_ds(f'a{L}_{i+1}')
            r = RING + 4*(i % 8)
            c = ACC[accp[p]]
            E(f"v_mfma_f32_32x32x16_bf16 v[{c}:{c+15}], {vr(r, 4)}, v[{XR+4*k}:{XR+4*k+3}], {'0' if k == 0 else f'v[{c}:{c+15}]'}")
            emit_fill(i, (lambda: rd(i + LA)) if i + LA < 224 else None)
        seen_kp = set()
        for n in range(56):
            tt, rho, p = order[n]
            kp = rho*7 + tau[p]
            firstb = not any(o[0] == tt for o in order[:n])
            for ii, pd in enumerate((1, 0) if n in (last0, 55) else (0, 1)):
                i = G2 + 2*n + ii
                stamp(f'L{L}s{i}')
                if ii == 0:
                    E.wait_vm(f'h{L}_{n}')
                    if L == 0 and kp not in seen_kp and not opt.get('nowd', 0): E.wait_vm(f'wd{kp}'); seen_kp.add(kp)
                c = acc2[tt][pd]
                E(f"v_mfma_f32_32x32x16_bf16 v[{c}:{c+15}], {ar(A_WD + 8*kp + 4*pd, 4)}, {hreg(n)}, {'0' if firstb else f'v[{c}:{c+15}]'}")
                emit_fill(i)
        stamp(f'L{L}g2end')
        for i in sorted(F.keys()):
            assert i > lastslot, i
            emit_fill(i)
        for f in red_write_ops(1): f()
        E.wait_ds(f'rw{L}1'); E("s_barrier")
        for f in red_read_ops(1): f()
        own = acc2[1][0]
        E.wait_ds(f'rr{L}1')
        for e in range(0, 8, 2): E(f"v_pk_add_f32 v[{RB+e}:{RB+e+1}], v[{RB+e}:{RB+e+1}], v[{RB+8+e}:{RB+9+e}]")
        for e in range(0, 8, 2): E(f"v_pk_add_f32 v[{own+e}:{own+e+1}], v[{own+e}:{own+e+1}], v[{RB+16+e}:{RB+17+e}]")
        for e in range(0, 8, 2): E(f"v_pk_add_f32 v[{own+e}:{own+e+1}], v[{own+e}:{own+e+1}], v[{RB+e}:{RB+e+1}]")
        for e in range(0, 8, 2):
            if NOXM: E(f"v_pk_mul_f32 v[{own+e}:{own+e+1}], v[{own+e}:{own+e+1}], s[{S_LN2}:{S_LN2+1}]")
            else: E(f"v_pk_fma_f32 v[{own+e}:{own+e+1}], v[{own+e}:{own+e+1}], s[{S_LN2}:{S_LN2+1}], v[{XU+e}:{XU+e+1}]")
        for e in range(4): E(f"v_cvt_pk_bf16_f32 v{RB+e}, v{own+2*e}, v{own+2*e+1}")
        out_store(1, RB)
        stamp(f'L{L}st')
        if L == 0:
            publish(S_FX2S, 0, 'x21')
            stamp('x2pub')

    def marker_check(regs_, reload_, tagname):
        ls = E.label('L_mks'); lb = E.label('L_mkb')
        t = 31
        r = list(regs_)
        E(f"v_max3_u32 v{t}, v{r[0]}, v{r[1]}, v{r[2]}"); k = 3
        while k + 1 < len(r): E(f"v_max3_u32 v{t}, v{t}, v{r[k]}, v{r[k+1]}"); k += 2
        if k < len(r): E(f"v_max_u32 v{t}, v{t}, v{r[k]}")
        E(f"v_cmp_eq_u32 vcc, -1, v{t}\ns_cbranch_vccnz {ls}\n{lb}:")
        ll = E.label('L_mkl')
        txt = f"{ls}:\ns_mov_b32 s{S_T3}, 0\n{ll}:\n"
        for i, x in enumerate(r):
            l2 = E.label('L_mkn')
            txt += f"""v_cmp_eq_u32 vcc, -1, v{x}
            s_cbranch_vccz {l2}
            {reload_(i)}
            {l2}:
            """
        txt += f"s_add_u32 s{S_T3}, s{S_T3}, 1\ns_waitcnt vmcnt(0)\n"
        txt += f"v_max3_u32 v{t}, v{r[0]}, v{r[1]}, v{r[2]}\n"; k = 3
        while k + 1 < len(r): txt += f"v_max3_u32 v{t}, v{t}, v{r[k]}, v{r[k+1]}\n"; k += 2
        if k < len(r): txt += f"v_max_u32 v{t}, v{t}, v{r[k]}\n"
        txt += f"""v_cmp_eq_u32 vcc, -1, v{t}
        s_cmp_gt_u32 s{S_T3}, 0x2000
        s_cbranch_vccz {lb}
        s_cbranch_scc0 {ll}
        s_branch {lb}
        """
        E.out_of_line(txt)

    PREPE = opt.get('prepe', 0)
    def prep_part(rawwait=None):
        PB = 64
        for i in range(4): E(f"v_mov_b32 v{108+i}, -1")
        def trd(n):
            E(f"ds_read_b64_tr_b16 v[{PB+4*n}:{PB+4*n+1}], v{VTR} offset:{1024*n}")
            E(f"ds_read_b64_tr_b16 v[{PB+4*n+2}:{PB+4*n+3}], v{VTR} offset:{1024*n + 512}")
        def pst(n):
            if n < 7:
                if n: E(f"s_add_u32 s{S_W1DST}, s{S_W1DST}, 131072")
                E(f"buffer_store_dwordx4 v[{PB+4*n}:{PB+4*n+3}], v{W1D}, {WSRD}, s{S_W1DST} offen sc1")
            else:
                if n > 7: E(f"s_add_u32 s{S_WDDST}, s{S_WDDST}, 229376")
                E(f"buffer_store_dwordx4 v[{PB+4*n}:{PB+4*n+3}], v{WDD}, {WSRD}, s{S_WDDST} offen sc1")
        stamp_dup('xiss')
        if HLATE:
            E(f"""
            s_and_b32 s25, s{S_W}, 1
            s_add_u32 s24, s{S_CB}, s25
            s_lshl_b32 s24, s24, 12
            s_mul_i32 s25, s25, {HC_CH}
            """)
            h_dma(HLATE, 24, 25)
        if rawwait is not None: E(f"s_waitcnt vmcnt({rawwait + 4*len(HLATE)})")
        for n in range(4): trd(n)
        for n in range(11):
            if n + 4 < 11: trd(n + 4)
            E(f"s_waitcnt lgkmcnt({2*min(4, 10 - n)})")
            pst(n)
        for i in range(4):
            if i: E(f"s_add_u32 s{S_YP}, s{S_YP}, 262144")
            E(f"buffer_store_dwordx4 v[108:111], v{VYP}, {WSRD}, s{S_YP} offen sc1")
    def conv():
        lx = E.label('L_xp'); lbx = E.label('L_bx')
        E(f"ds_write_b16 v61, v{HEAD}")
        E(f"s_cmp_ge_u32 s{S_W}, 2\ns_cbranch_scc1 {lx}")
        XG = 64
        def xload(i): return f"buffer_load_dwordx4 v[{XG+4*i}:{XG+4*i+3}], v{VL16}, {WSRD}, s{S_XL + (i >> 2)} offen" + (f" offset:{1024*(i & 3)}" if i & 3 else "") + " sc1"
        NX = 4 if P1 else 8
        for i in range(NX): E(xload(i))
        stamp('xiss')
        ACCc = 192
        for i in range(32): E(f"v_mov_b32 v{ACCc+i}, 0")
        E("s_waitcnt vmcnt(0)")
        marker_check([XG + 4*i for i in range(NX)], xload, 'x')
        stamp('xok')
        if P1:
            for i in range(4): E(f"ds_write_b128 v{VXW}, v[{XG+4*i}:{XG+4*i+3}] offset:{i*1024}")
            for i in range(4):
                if i < 3: E(f"v_mov_b32_dpp v{96+i}, v{XG+4*(i+1)} wave_rol:1 row_mask:0xf bank_mask:0xf")
                else: E(f"v_mov_b32 v{96+i}, 0")
            for i in range(4):
                for d in range(3): E(f"v_alignbit_b32 v{XG+16+4*i+d}, v{XG+4*i+d+1}, v{XG+4*i+d}, 16")
            for i in range(4): E(f"v_mov_b32_dpp v{96+i}, v{XG+4*i} wave_shl:1 row_mask:0xf bank_mask:0xf")
            for i in range(4):
                E(f"v_alignbit_b32 v{XG+16+4*i+3}, v{96+i}, v{XG+4*i+3}, 16")
            for i in range(4): E(f"ds_write_b128 v{VXW}, v[{XG+16+4*i}:{XG+16+4*i+3}] offset:{XR_P + i*1024}")
        else:
            for i in range(8): E(f"ds_write_b128 v{VXW}, v[{XG+4*i}:{XG+4*i+3}] offset:{(i >> 2)*XR_P + (i & 3)*1024}")
        E(f"s_branch {lbx}\n{lx}:")
        if not PREPE: prep_part()
        else: stamp_dup('xiss')
        stamp_dup('xok')
        for i in range(32): E(f"v_mov_b32 v{ACCc+i}, 0")
        if HLATE: E("s_waitcnt vmcnt(15)")
        E(f"{lbx}:")
        E("s_waitcnt lgkmcnt(0)")
        E.vmq = []; E.dsq = []
        E("s_barrier")
        stamp('bx')
        def AF(st, g): return 64 + 32*st + 4*g
        def BF(st, u): return 128 + 32*st + 4*u
        def rdA(st, g, rho): return f"ds_read_b128 v[{AF(st,g)}:{AF(st,g)+3}], v{VA_} offset:{512*g + 64*rho}"
        def rdB(st, u, rho): return f"ds_read_b128 v[{BF(st,u)}:{BF(st,u)+3}], v{VB_} offset:{512*(7-u) + 64*rho}"
        pairs = [(t, g) for t in range(8) for g in range(t+1)]
        order = []
        for t in range(8): order.append(('B', t)); order.append(('A', t))
        def mf(st, t, g):
            return f"v_mfma_f32_16x16x32_bf16 v[{ACCc+4*t}:{ACCc+4*t+3}], v[{AF(st,g)}:{AF(st,g)+3}], v[{BF(st,t-g)}:{BF(st,t-g)+3}], v[{ACCc+4*t}:{ACCc+4*t+3}]"
        S1AT = opt.get('s1at', 24); S1POLL = opt.get('s1poll', 96); S1CHK = opt.get('s1chk', 118)
        acts = {}
        def act(i, f): acts.setdefault(i, []).append(f)
        def s1publish():
            E("s_waitcnt vmcnt(0)"); E.vmq = []
            E.vm(f"buffer_store_dword v{VONE}, v{VS1F}, {WSRD}, s{S_S1F} offen sc1", 's1st')
        def s1poll(): E.vm(f"buffer_load_dwordx4 v[24:27], v{VS1P}, {WSRD}, 0 offen sc1", 's1')
        def s1check():
            all_flags_check(24, VS1P, S_N, 's1')
            E("s_barrier")
            stamp('s1')
        def qload():
            E.vm(f"buffer_load_dwordx4 {ar(A_Q, 4)}, v9, s[{S_Q}:{S_Q+3}], s{S_QO} offen" + NT('q'), 'q')
            E.vm(f"buffer_load_dwordx4 {ar(A_Q+4, 4)}, v9, s[{S_Q}:{S_Q+3}], s{S_QO} offen offset:128" + NT('q'), 'q')
        act(S1AT, s1publish); act(opt.get('qat', 40), qload)
        def htouch():
            m = opt['ht']
            E(f"v_lshrrev_b32 v246, 3, v8\nv_lshlrev_b32 v246, 12, v246\nv_and_b32 v247, {m}, v8\nv_lshl_add_u32 v246, v247, 7, v246")
            E(f"s_add_u32 s24, s{S_HST}, {WS_H}")
            E(f"s_mov_b32 exec_hi, 0x00ffffff")
            E.vm(f"buffer_load_dword v247, v246, {WSRD}, s24 offen", 'ht')
            E(f"s_mov_b64 exec, -1")
        if 'ht' in opt: act(opt.get('htat', 20), htouch)
        POST = S1CHK >= 1000
        if S1POLL < 1000: act(S1POLL, s1poll)
        B = BK['b'] = make_bulk()
        if not POST:
            act(S1CHK, s1check)
            nm = opt.get('bk_m', 5)
            for k in range(nm): act(S1CHK + 2 + k*opt.get('bk_msp', 4), lambda: B.emit(1))
            assert S1CHK + 2 + nm*opt.get('bk_msp', 4) <= 148
        def do(i):
            for f in acts.pop(i, []): f()
        for rho in range(4):
            st = rho & 1
            nxt = []
            if rho < 3: nxt = [(rdB(st^1, x, rho+1) if k == 'B' else rdA(st^1, x, rho+1)) for (k, x) in order]
            if rho == 0:
                reads = [(rdB(0, x, 0) if k == 'B' else rdA(0, x, 0)) for (k, x) in order]
                for r_ in reads[:14]: E(r_)
                issued = 14; done = 0
                allq = reads + nxt
                for idx, (t, g) in enumerate(pairs):
                    if g == 0:
                        E(f"s_waitcnt lgkmcnt({issued - 2*(t+1)})"); done = 2*(t+1)
                    E(mf(0, t, g))
                    do(idx)
                    if t == 7 and g == 4:
                        done += 6
                        E(f"s_waitcnt lgkmcnt({issued - done})")
                    if issued < len(allq) and issued - done < 14:
                        E(allq[issued]); issued += 1
                assert issued == len(allq)
            else:
                E("s_waitcnt lgkmcnt(0)")
                k = 0
                for idx, (t, g) in enumerate(pairs):
                    E(mf(st, t, g))
                    do(36*rho + idx)
                    if nxt and idx % 2 == 0 and k < 16:
                        E(nxt[k]); k += 1
            if rho < 3: stamp(f'rho{rho+1}')
        for i in sorted(acts): do(i)
        stamp('mfend')
        if opt.get('rot', 0):
            E(f"s_lshr_b32 s25, s{S_C}, 3\ns_lshl_b32 s25, s25, 1\ns_add_u32 s25, s25, s{S_TH}")
            for r_ in range(4):
                E(f"""s_add_u32 s24, s25, {r_}
                s_and_b32 s24, s24, 3
                s_mul_i32 s24, s24, {7*2048}
                s_add_u32 s{S_WDR + r_}, s{S_WDB}, s24""")
        E(f"""
        s_barrier
        v_add_u32 v20, s{S_W1K}, v{VL16}
        s_lshl_b32 s24, s{S_W}, 11
        v_add_u32 v21, s24, v{VL16}
        s_nop 4
        """)
        for t in range(8): E.ds(f"ds_write_b128 v20, v[{ACCc+4*t}:{ACCc+4*t+3}] offset:{1024*t}", 'rdw')
        E.wait_ds('rdw')
        E("s_barrier")
        stamp('red2')
        if S1POLL == 1000: s1poll()
        if not POST: B.emit(opt.get('bk_red', 0))
        for tau in range(2):
            for src in range(4):
                E.ds(f"ds_read_b128 v[{64+32*tau+4*src}:{67+32*tau+4*src}], v21 offset:{8192*src + 1024*tau}", f'rdr{tau}')
            for ch in range(2):
                E.ds(f"ds_read_b128 v[{128+8*tau+4*ch}:{131+8*tau+4*ch}], v{VKVW} offset:{ch*XR_CH + 512*(1-tau)}", f'rdr{tau}')
        for tau in range(2):
            E.wait_ds(f'rdr{tau}')
            base = 64 + 32*tau
            for ch in range(2):
                kvr = 128 + 8*tau + 4*ch
                for r in range(4): E(f"v_add_f32 v{base+8*ch+r}, v{base+8*ch+r}, v{base+8*ch+r+4}")
                for d in range(4): E(f"v_lshlrev_b32 v{kvr+d}, 16, v{kvr+d}")
                for r in range(4): E(f"v_fmac_f32 v{base+8*ch+r}, s{60+ch}, v{kvr+3-r}")
            for r in range(4): E(f"v_cvt_pk_bf16_f32 v{148+r}, v{base+r}, v{base+8+r}")
            o = 152 + 4*tau
            E(f"""
            v_mov_b32 v{o}, v150
            v_mov_b32 v{o+1}, v148
            v_mov_b32 v{o+2}, v151
            v_mov_b32 v{o+3}, v149
            v_mov_b32_dpp v{o}, v148 row_ror:8 row_mask:0xf bank_mask:0x3
            v_mov_b32_dpp v{o+1}, v150 row_ror:8 row_mask:0xf bank_mask:0xc
            v_mov_b32_dpp v{o+2}, v149 row_ror:8 row_mask:0xf bank_mask:0x3
            v_mov_b32_dpp v{o+3}, v151 row_ror:8 row_mask:0xf bank_mask:0xc
            """)
            if tau == 1: E(f"s_add_u32 s58, s58, 262144")
            E.vm(f"buffer_store_dwordx4 v[{o}:{o+3}], v{VYS}, {WSRD}, s58 offen sc1", 'yst')
        stamp('yst')
        if S1POLL == 1001: s1poll()
        if POST: s1check()

    def rest():
        conv()
        B = BK['b']
        def yload(i):
            c2, k = i >> 2, i & 3
            return f"buffer_load_dword v{Y+i}, v10, {WSRD}, s{59 if c2 == 0 else 24} offen" + (f" offset:{512*k}" if k else "") + " sc1"
        E("s_add_u32 s24, s59, 16384")
        B.emit(opt.get('bk_a', 0))
        for i in range(8): E.vm(yload(i), 'y')
        n_y = opt.get('bk_y', 0)
        B.emit(n_y)
        assert 'w1_3' not in E.seen, 'slot 0 is still in use'
        for i in range(8): E(f"v_accvgpr_read_b32 v{X+i}, a{A_Q+i}")
        R_pre(0)
        stamp('qst')
        B.emit(opt.get('bk_q', 0))
        E.wait_vm('y')
        marker_check([Y + i for i in range(8)], yload, 'y')
        stamp('yok')
        B.emit(opt.get('bk_r0', 16))
        for i in range(8): E(f"v_accvgpr_write_b32 a{A_Y+i}, v{Y+i}")
        def w1left():
            n = 0; k = 0
            for o in B.ops:
                if o[1]:
                    k += 1
                    if getattr(o[2], 'info', None) is None: n = k
            return n
        R_post(0, early=lambda: B.emit(max(opt.get('bk_r1', 0), w1left())), late=None)
        assert all(('w1_%d' % p) in E.seen for p in range(4)) and not any(getattr(o[2], 'info', None) is None for o in B.ops), 'W1 tiles 0..3 must be under way before the XN stores'
        Rpub(0)
        layer(0)
        poll_issue(VP8, S_FX2L, 0, 'px2')
        if P1:
            unpack(T, 20, 8)
            E(f"""s_lshr_b32 s24, s{S_C}, 3
            s_mul_i32 s24, s24, {7*131072}
            s_and_b32 s25, s{S_C}, 7
            s_lshl_b32 s25, s25, 17
            s_sub_u32 s24, s24, s25
            s_add_u32 s{S_XMD}, s24, {WS_Y}""")
        poll_check(VP8, S_FX2L, 0, 'px2')
        for r_, c_ in ((S_FXNS, 16*256), (S_FXNL, 16*256), (S_FHS, 16*1024), (S_FHL, 16*1024)): E(f"s_add_u32 s{r_}, s{r_}, {c_}")
        stamp('x2ok')
        sadd(S_T0, S_R, WS_XN); sadd(S_T1, S_R, WS_XN + 4096)
        E.vm(f"buffer_load_dwordx4 v[{X}:{X+3}], v{VR}, {WSRD}, s{S_T0} offen" + LSC, 'x2l')
        E.vm(f"buffer_load_dwordx4 v[{X+4}:{X+7}], v{VR}, {WSRD}, s{S_T1} offen" + LSC, 'x2l')
        for i in range(8): E(f"v_accvgpr_read_b32 v{Y+i}, a{A_Y+i}")
        E.wait_vm('x2l')
        R_pre(1)
        R_post(1)
        Rpub(1)
        layer(1)
        E.wait_vm_all()

    def s0cmp(val): return "\n".join([f"v_xor_b32 v{S0R+i}, s{val}, v{S0R+i}" for i in range(4)] +
                                     [f"v_or3_b32 v{S0R}, v{S0R}, v{S0R+1}, v{S0R+2}", f"v_or_b32 v{S0R}, v{S0R}, v{S0R+3}"])
    if PREPE:
        assert RAWPOS >= 1 and E.vm_after('s0') == NKV
        E(f"s_cmp_lt_u32 s{S_W}, 2\ns_cbranch_scc1 L_pe0")
        prep_part(rawwait=1 + NKV)
        E(f"s_waitcnt vmcnt({NKV + 4*len(HLATE) + 15})\ns_branch L_pe1\nL_pe0:\ns_waitcnt vmcnt({NKV})\nL_pe1:")
        E.vmq = []
    else: E.wait_vm('s0')
    E(s0cmp(S_XCC))
    E(f"v_cmp_ne_u32 vcc, 0, v{S0R}")
    E("s_branch L_s0s" if force_slow else "s_cbranch_vccnz L_s0s")
    E("L_s0b:")
    E.out_of_line(f"""
    L_s0s:
    s_mov_b32 s{S_T3}, 0
    L_s0l:
    v_cmp_lt_u32 vcc, 7, v{S0R}
    s_cmp_gt_u32 s{S_T3}, 0x2000
    s_cbranch_vccz L_slow
    s_cbranch_scc1 L_s0b
    buffer_load_dwordx4 v[{S0R}:{S0R+3}], v30, {WSRD}, 0 offen sc1
    s_add_u32 s{S_T3}, s{S_T3}, 1
    s_waitcnt vmcnt(0)
    {s0cmp(S_XCC)}
    v_cmp_ne_u32 vcc, 0, v{S0R}
    {'s_branch L_s0l' if force_slow else 's_cbranch_vccnz L_s0l'}
    s_branch L_s0b""")
    stamp('s0')
    Efast = E
    Es = Emit(); Es.vmq = []; Es.dsq = list(E.dsq); Es.seen = set(E.seen); Es.nl = 100000
    E = Es; MODE['slow'] = True
    E(f"""
    L_slow:
    s_mov_b32 s{S_EXP}, 2
    s_waitcnt vmcnt(0)
    buffer_wbl2 sc1
    s_waitcnt vmcnt(0)
    s_barrier
    s_add_u32 s24, s86, {FL_S0B}
    buffer_store_dword v{VONE}, v{VT0}, {WSRD}, s24 offen sc1
    s_mov_b32 s25, {FL_S0B - FL_S0}
    s_mov_b32 s{S_T3}, 0
    L_s0bl:
    buffer_load_dwordx4 v[{S0R}:{S0R+3}], v30, {WSRD}, s25 offen sc1
    s_add_u32 s{S_T3}, s{S_T3}, 1
    s_waitcnt vmcnt(0)
    {s0cmp(S_N)}
    v_cmp_ne_u32 vcc, 0, v{S0R}
    s_cmp_gt_u32 s{S_T3}, 0x2000
    s_cbranch_scc1 L_s0bx
    s_cbranch_vccnz L_s0bl
    L_s0bx:
    buffer_inv sc1
    s_waitcnt vmcnt(0)
    """)
    rest()
    E("s_branch L_fin")
    E = Efast; MODE['slow'] = False
    rest()
    E("L_fin:")
    if stamps:
        stamp('end')
        n = len(names)
        E("s_memrealtime s[24:25]")
        E("s_waitcnt lgkmcnt(0)")
        for k in (n - 2, n - 1): E(f"v_writelane_b32 v{VSTAMP}, s{SP[k & 1]}, {k}")
        E(f"""
        v_writelane_b32 v{VSTAMP}, s100, 61
        v_writelane_b32 v{VSTAMP}, s24, 62
        v_writelane_b32 v{VSTAMP}, s{S_EXP}, 63
        s_lshl_b32 s25, s2, 10
        s_lshl_b32 s26, s{S_W}, 8
        s_add_u32 s25, s25, s26
        s_add_u32 s25, s25, {WS_STAMP}
        v_lshrrev_b32 v20, 2, v{VL16}
        buffer_store_dword v{VSTAMP}, v20, {WSRD}, s25 offen
        s_waitcnt vmcnt(0)
        """)
        assert n < 60
        print('k3 stamps:', ','.join(names))
        open('last_stamps.txt', 'w').write(','.join(names))
    E("L_end:")
    E("s_endpgm")
    main = hazard_pass(E.L[1:], verbose=opt.get('verbose', False))
    tail = list(E.tail) + ['L_codeend:'] + hazard_pass(Es.L) + list(Es.tail)
    txt = E.L[0] + '\n' + '\n'.join(('    ' + l if not l.endswith(':') else l) for l in main) + '\n'
    txt += '\n'.join(('    ' + l if not l.endswith(':') else l) for l in tail) + '\n'
    txt += "    s_endpgm\n"
    return txt + kd(name, 512, 102, accum=256)

if __name__ == '__main__':
    st = 'stamps' in sys.argv; slow = 'slow' in sys.argv
    opt = {'verbose': 'v' in sys.argv}
    for a in sys.argv[2:]:
        if '=' in a:
            k_, v_ = a.split('=')
            opt[k_] = v_.split(',') if k_ == 'st' else (v_ if k_.startswith('fl') else int(v_))
    kname = NAME + '_kernel'
    txt = KERNARG_COMMENT
    txt += f"; @launch grid=(256,1,1) block=(256,1,1) lds={K1_LDS}\n"
    txt += TARGET + gen(kname, stamps=st, force_slow=slow, opt=opt)
    txt += ".text\n.fill 64, 4, 0xbf800000\n"
    open(sys.argv[1], 'w').write(txt)
```

```python
import sys
sys.path.insert(0, 'gen')
from emit import *
from layout3 import *
from common import head, kd, TARGET, KERNARG_COMMENT, NAME

K1_LDS = 163840
SLOT = 32768
SCR = SLOT
STATS = SLOT + 24576
OOB = 0x80000000
VL16, VA1, VA2, VP8, VP16, VF0, VR = 1, 2, 3, 4, 5, 6, 7
VSTW, VSTR = 11, 12
VRW = [13, 14, 15]; VRR = 16
VPOLL, VONE, VSTAMP = 17, 18, 19
RING = 32
ACC = [64, 80, 96, 112]
XR = 128
A_WD = 0; A_Y = 224; A_T4 = 232
S_WS = 4; S_Q = 8; S_OUT = 12
S_W, S_ROLE, S_C, S_TH, S_J, S_EXP, S_XCC, S_W1K = 16, 17, 18, 19, 20, 21, 22, 23
S_R, S_XNL, S_HST, S_HLD, S_XML, S_W1, S_FXNS, S_FXNL, S_FHS, S_FHL, S_FX2S, S_FX2L = range(34, 46)
S_T0, S_T1, S_T2, S_T3, S_HI = 46, 47, 48, 49, 31
S_LN2 = 98
S_DA, S_XA = 50, 3
S_HA = [96, 97]; S_HS = [94, 95]
LA = 6
def vr(b, n=1): return f"v{b}" if n == 1 else f"v[{b}:{b+n-1}]"
def ar(b, n=1): return f"a{b}" if n == 1 else f"a[{b}:{b+n-1}]"

LAYERS = [
    dict(tau=[0, 1, 2, 3, 4, 5, 6], slot=[2, 3, 4, 0, 1, 2, 3]),
    dict(tau=[5, 6, 2, 3, 4, 0, 1], slot=[2, 3, 4, 0, 1, 2, 3]),
]
LOG2E = 0x3fb8aa3b; LN2 = 0x3f317218
A_H = 236

S_N = 51
VWD = 28
S_WDB = 30
S_WDR = 64
A_Q = 232
HC_J = 4160; HC_CH = 4*HC_J
XRB = 2*HC_CH
XR_P = 4640; XR_CH = 9472
TBS = 1056
KT = 2*SLOT; VT = KT + 9*TBS
PST = 3*SLOT
S_QO, S_PST = 87, 94
S_G, S_M, S_CB, S_CP, S_D, S_E = 88, 89, 84, 85, 62, 63
POISON = 0xffffffff


def gen(name, stamps=False, force_slow=False, opt=None):
    opt = opt or {}
    E = Emit()
    LSC = ' sc1' if opt.get('lsc', 1) else ''
    names = []
    DEF = ['start', 'join', 'b0', 'kvst', 's0', 'xiss', 'prep', 'xok', 'bx', 'rho1', 'rho2', 'rho3', 's1', 'mfend', 'red2', 'yst', 'qst', 'yok', 'R0st', 'R0pub', 'L0xnok', 'L0g1', 'L0s96', 'L0s224', 'L0g2end', 'L0st', 'x2ok', 'R1st', 'R1pub', 'L1xnok', 'L1g1', 'L1s96', 'L1s224', 'L1g2end', 'L1st', 'end']
    enabled = set(opt.get('st', DEF)) | {'start', 'end'}
    MODE = {'slow': False}
    SP = [90, 92]
    def stamp(nm):
        if stamps and nm in enabled and not MODE['slow']:
            n = len(names); names.append(nm)
            if n >= 2: E(f"v_writelane_b32 v{VSTAMP}, s{SP[n & 1]}, {n-2}")
            E(f"s_memtime s[{SP[n & 1]}:{SP[n & 1]+1}]")
    def stamp_dup(nm):
        if stamps and nm in names and not MODE['slow']:
            n = names.index(nm)
            if n >= 2: E(f"v_writelane_b32 v{VSTAMP}, s{SP[n & 1]}, {n-2}")
            E(f"s_memtime s[{SP[n & 1]}:{SP[n & 1]+1}]")
    WSRD = f"s[{S_WS}:{S_WS+3}]"
    def NT(k): return ' nt' if (opt.get('nt', 0) >> 'trhq'.index(k)) & 1 else ''
    def FL(kind, L):
        v = opt.get(f'fl{kind}{L}', opt.get(f'fl{kind}', ''))
        return (' ' + v.replace('+', ' ')) if v else ''

    def sadd(dst, base, const):
        if const == 0: E(f"s_mov_b32 s{dst}, s{base}")
        else: E(f"s_add_u32 s{dst}, s{base}, {const}")
    def dma_stream(tau, slot, tag, ilist=range(8)):
        ops = []; cur = None
        for i in ilist:
            if cur != (i >> 2):
                cur = i >> 2
                ops.append((4, False, lambda g=cur: E(f"s_add_u32 m0, s{S_W1K}, {slot*SLOT + g*4096}")))
                ops.append((4, False, lambda g=cur: sadd(S_DA, S_W1, tau*32768 + g*4096)))
            off = (i & 3)*1024
            ops.append((4, True, lambda off=off: E.vm(f"buffer_load_dwordx4 v{VL16}, {WSRD}, s{S_DA} offen" + (f" offset:{off}" if off else "") + " lds", tag)))
        return ops
    def wd_stream(kps):
        ops = []
        for kp in kps:
            if opt.get('rot', 0): f = lambda kp=kp: E(f"s_add_u32 s26, s{S_WDR + kp//7}, {(kp % 7)*2048}")
            else: f = lambda kp=kp: E(f"s_add_u32 s26, s{S_WDB}, {kp*2048}")
            f.info = ('wd', kp); ops.append((4, False, f))
            for pd in range(2):
                f = lambda kp=kp, pd=pd: E.vm(f"buffer_load_dwordx4 {ar(A_WD + 8*kp + 4*pd, 4)}, v{VWD+pd}, {WSRD}, s26 offen" + (LSC if opt.get('wdsc', 1) else ''), f'wd{kp}')
                f.info = ('wd', kp); ops.append((4, True, f))
        return ops
    class Bulk:
        def __init__(self, ops): self.ops = list(ops)
        def take(self, n):
            out = []
            while n > 0 and self.ops:
                o = self.ops.pop(0); out.append(o)
                if o[1]: n -= 1
            return out
        def emit(self, n):
            for (_, _, f) in self.take(n): f()
            assert not self.ops or not self.ops[0][1] or getattr(self.ops[0][2], 'info', None) is None, 'Wd loads come in pairs'
        def left(self): return sum(1 for o in self.ops if o[1])
    def publish(sbase, const, tag, wait=True):
        o = f" offset:{const}" if const else ""
        if MODE['slow']:
            E.wait_vm_all()
            E("buffer_wbl2 sc1\ns_waitcnt vmcnt(0)")
            E.vm(f"buffer_store_dword v{VONE}, v{VF0}, {WSRD}, s{sbase} offen{o} sc1", None)
            return
        if wait: E.wait_vm(tag)
        E.vm(f"buffer_store_dword v{VONE}, v{VF0}, {WSRD}, s{sbase} offen{o}", None)
    def poll_issue(voff, sbase, const, tag, dst=VPOLL):
        o = f" offset:{const}" if const else ""
        if MODE['slow']: E.seen.add(tag); return
        E.vm(f"buffer_load_dword v{dst}, v{voff}, {WSRD}, s{sbase} offen{o} sc1", tag)
    def poll_check(voff, sbase, const, tag, dst=VPOLL, wait=True):
        o = f" offset:{const}" if const else ""
        ls = E.label('L_polls'); lb = E.label('L_pollb'); ll = E.label('L_polll')
        if MODE['slow']:
            E.wait_vm_all()
            E(f"""
            s_mov_b32 s{S_T3}, 0
            {ll}:
            buffer_inv sc1
            s_waitcnt vmcnt(0)
            buffer_load_dword v{dst}, v{voff}, {WSRD}, s{sbase} offen{o} sc1
            s_add_u32 s{S_T3}, s{S_T3}, 1
            s_waitcnt vmcnt(0)
            v_cmp_ne_u32 vcc, s{S_N}, v{dst}
            s_cmp_gt_u32 s{S_T3}, 0x2000
            s_cbranch_scc1 {lb}
            s_cbranch_vccnz {ll}
            {lb}:
            buffer_inv sc1
            s_waitcnt vmcnt(0)""")
            return
        if wait: E.wait_vm(tag)
        E(f"v_cmp_ne_u32 vcc, s{S_N}, v{dst}")
        E(f"s_cbranch_vccnz {ls}")
        E(f"{lb}:")
        E.out_of_line(f"""
        {ls}:
        s_mov_b32 s{S_T3}, 0
        {ll}:
        buffer_load_dword v{dst}, v{voff}, {WSRD}, s{sbase} offen{o} sc1
        s_add_u32 s{S_T3}, s{S_T3}, 1
        s_waitcnt vmcnt(0)
        v_cmp_ne_u32 vcc, s{S_N}, v{dst}
        s_nop 4
        s_cbranch_vccz {lb}
        s_cmp_lt_u32 s{S_T3}, 0x2000
        s_cbranch_scc1 {ll}
        s_branch {lb}""")
    def all_flags_check(dst, voff, sval, tag, lim=0x2000):
        ls = E.label('L_afs'); lb = E.label('L_afb'); ll = E.label('L_afl')
        def cmp4():
            return "\n".join([f"v_xor_b32 v{dst+i}, s{sval}, v{dst+i}" for i in range(4)] +
                             [f"v_or3_b32 v{dst}, v{dst}, v{dst+1}, v{dst+2}", f"v_or_b32 v{dst}, v{dst}, v{dst+3}", f"v_cmp_ne_u32 vcc, 0, v{dst}"])
        E.wait_vm(tag)
        E(cmp4())
        E(f"s_cbranch_vccnz {ls}\n{lb}:")
        E.out_of_line(f"""
        {ls}:
        s_mov_b32 s{S_T3}, 0
        {ll}:
        buffer_load_dwordx4 v[{dst}:{dst+3}], v{voff}, {WSRD}, 0 offen sc1
        s_add_u32 s{S_T3}, s{S_T3}, 1
        {f's_add_u32 s{S_EXP}, s{S_EXP}, {1 << (12 if tag == "s1" else 18)}' if stamps and opt.get('cnt') else ''}
        s_waitcnt vmcnt(0)
        {cmp4()}
        s_nop 4
        s_cbranch_vccz {lb}
        s_cmp_lt_u32 s{S_T3}, {lim}
        s_cbranch_scc1 {ll}
        s_branch {lb}""")

    KSRD, VSRD, HSRD, PSRD, WDSRD = "s[52:55]", "s[64:67]", "s[76:79]", "s[68:71]", "s[52:55]"
    VPS, VPW = 224, 225
    VFT = 231
    SPLIT = opt.get('split', 0)
    YSPL = SPLIT == 1
    WDC = SPLIT == 2 or (SPLIT and opt.get('wdc', 0))
    PUBB = opt.get('pubb', 0)
    S1BP = opt.get('s1bp', 0)
    NPS = 7 if YSPL else 11 if SPLIT else 15
    FL_S1B = 0x6000; FL_S1C = 0x18000
    P1 = opt.get('p1', 0)
    GSH = 18 if P1 else 19
    NKV = 2 if P1 else 4
    MKALL = opt.get('mkall', 0)
    assert MKALL or not P1
    MKPOS = opt.get('mkpos', 0)
    MKW = opt.get('mkw', 0)
    MKF = '' if MKALL == 2 else ' sc1'
    MKPRE = "" if not MKALL else f"""v_lshlrev_b32 v33, 12, v21
    v_lshl_add_u32 v33, v22, 4, v33
    v_mov_b32 v36, -1
    v_mov_b32 v37, -1
    v_mov_b32 v38, -1
    v_mov_b32 v39, -1
    s_lshl_b32 s95, s{S_G}, {GSH}
    s_lshl_b32 s27, s{S_M}, 7
    s_sub_u32 s95, s95, s27
    s_lshl_b32 s27, s{S_W}, {(18 if MKW else 17) - P1}
    s_add_u32 s95, s95, s27
    s_add_u32 s95, s95, {WS_KVT + 3968}"""
    def markers4(fix=True):
        if fix: E(srd_fix(S_WS, WS_SRD_BYTES))
        n = (8 if MKW else 4) >> P1
        if MKW: E(f"s_cmp_ge_u32 s{S_W}, 2\ns_cbranch_scc1 L_mkw")
        for i in range(n if not opt.get('nomk') else 0):
            E(f"buffer_store_dwordx4 v[36:39], v33, {WSRD}, s95 offen{MKF}")
            if i < n - 1: E("s_add_u32 s95, s95, 32768")
        if MKW: E("L_mkw:")
    def srd_fix(b, size): return f"s_and_b32 s{b+1}, s{b+1}, 0xffff\ns_mov_b32 s{b+2}, {size}\ns_mov_b32 s{b+3}, 0x20000"
    E.L.append(head(name).rstrip())
    E(f"""
    s_cmp_ge_u32 s2, 256
    s_cbranch_scc1 L_end
    s_load_dwordx2 s[52:53], s[0:1], 8
    s_load_dwordx2 s[64:65], s[0:1], 16
    s_load_dwordx2 s[4:5], s[0:1], 96
    s_load_dwordx8 s[56:63], s[0:1], 24
    s_load_dwordx8 s[68:75], s[0:1], 56
    s_load_dwordx2 s[8:9], s[0:1], 0
    """)
    S0SC = opt.get('s0sc', 0)
    if S0SC: E("s_load_dwordx2 s[96:97], s[0:1], 88")
    if stamps: E("s_memrealtime s[100:101]")
    stamp('start')
    E(f"""
    v_lshrrev_b32 v20, 6, v0
    v_and_b32 v8, 63, v0                     ; lane
    s_and_b32 s{S_G}, s2, 7
    s_lshr_b32 s{S_M}, s2, 3
    v_readfirstlane_b32 s{S_W}, v20
    v_lshlrev_b32 v{VL16}, 4, v8
    v_lshrrev_b32 v21, 3, v8
    v_and_b32 v22, 7, v8
    s_lshl_b32 s{S_CB}, s{S_G}, 6
    s_lshl_b32 s24, s{S_M}, 1
    s_add_u32 s{S_CB}, s{S_CB}, s24
    s_lshl_b32 s24, s{S_G}, 9
    s_lshl_b32 s25, s{S_W}, 7
    s_add_u32 s24, s24, s25
    v_lshlrev_b32 v30, 4, v21
    v_add_u32 v30, s24, v30
    ; raw weight blocks (waves 2 and 3): 8 rows x 128 bytes each
    s_lshr_b32 s24, s2, 2                    ; kg
    s_and_b32 s25, s2, 3                     ; fq
    s_mul_i32 s26, s24, 28672
    s_mul_i32 s27, s25, 896
    s_add_u32 s26, s26, s27
    v_mul_u32_u24 v{VPS}, 3584, v21
    v_lshl_add_u32 v{VPS}, v22, 4, v{VPS}
    v_add_u32 v{VPS}, s26, v{VPS}
    v_lshlrev_b32 v{VPW}, 10, v21
    v_lshl_add_u32 v{VPW}, v22, 4, v{VPW}
    s_and_b32 s25, s{S_W}, 1
    s_lshl_b32 s26, s2, 13
    s_lshl_b32 s27, s25, 9
    s_add_u32 s26, s26, s27
    v_add_u32 v{VPW}, s26, v{VPW}
    s_mul_i32 s26, s25, {11*1024}
    s_add_u32 s{S_PST}, s26, {PST}
    {MKPRE}
    s_cmp_eq_u32 s{S_W}, 3
    s_cbranch_scc1 L_w3
    ; k / v staging tiles: row = lane >> 3, 16-byte segment = lane & 7
    v_lshlrev_b32 v32, 10, v21
    v_lshl_add_u32 v32, v22, 4, v32
    s_lshl_b32 s24, s{S_M}, 16
    s_lshl_b32 s25, s{S_G}, 7
    s_add_u32 s24, s24, s25
    v_add_u32 v32, s24, v32
    s_cmp_eq_u32 s{S_W}, 2
    s_cbranch_scc1 L_w2
    s_cmp_eq_u32 s{S_W}, 1
    s_cbranch_scc1 L_w1
    """)
    SK = 56
    def skload(): E(f"global_load_dwordx4 v[{SK}:{SK+3}], v30, s[56:57]")
    def h_dma(js, sch, slds):
        for j in js:
            E(f"s_add_u32 s26, s{sch}, {4 + 4*j}\ns_add_u32 m0, s{slds}, {j*HC_J + 64}\ns_nop 0")
            for q_ in range(4):
                E(f"buffer_load_dwordx4 v{VL16}, {HSRD}, s26 offen" + (f" offset:{1024*q_}" if q_ else "") + NT('h') + " lds")
    def prep_dma():
        for i in range(7):
            E(f"s_add_u32 m0, s{S_PST}, {1024*i - 128*i}")
            E(f"s_nop 0\nbuffer_load_dwordx4 v{VPS}, {PSRD}, 0 offen" + (f" offset:{128*i}" if i else "") + NT('r') + " lds")
        for i in range(4):
            E(f"s_add_u32 m0, s{S_PST}, {1024*(7+i) - 128*i}")
            E(f"s_nop 0\nbuffer_load_dwordx4 v{VPW}, {WDSRD}, 0 offen" + (f" offset:{128*i}" if i else "") + NT('r') + " lds")
    HEARLY = [0, 1, 2, 3] if opt.get('hpos', 0) == 0 else [0]
    HLATE = [j for j in range(4) if j not in HEARLY]
    def tile_path(lst):
        for j, (kind, blk) in enumerate(lst):
            c = (blk*8192 - (4096 if kind == 'k' else 1024)) & 0xffffffff
            E(f"v_add_u32 v{40+j}, {c:#x}, v32")
        E("s_waitcnt lgkmcnt(0)")
        E(f"s_load_dword s{S_E}, s[4:5], {FL_EPOCH}")
        if MKALL and MKPOS == 0: markers4()
        if any(k == 'k' for k, _ in lst): E(srd_fix(52, 2097152))
        if any(k == 'v' for k, _ in lst): E(srd_fix(64, 2097152))
        for j, (kind, blk) in enumerate(lst):
            E(f"s_mov_b32 m0, {(KT if kind == 'k' else VT) + blk*TBS}\ns_nop 0")
            E(f"buffer_load_dwordx4 v{40+j}, {KSRD if kind == 'k' else VSRD}, 0 offen{NT('t')} lds")
    tile_path([('k', b) for b in range(6)])
    E("s_branch L_w01\nL_w1:")
    tile_path([('k', b) for b in (6, 7, 8)] + [('v', b) for b in (0, 1, 2)])
    E("L_w01:")
    stamp('e1'); stamp('e2')
    skload()
    E(f"""
    s_mov_b32 s76, s58
    s_mov_b32 s77, s59
    {srd_fix(76, 2097152)}
    s_add_u32 s24, s{S_CB}, s{S_W}
    s_lshl_b32 s24, s24, 12                  ; channel * 4096
    s_mul_i32 s25, s{S_W}, {HC_CH}
    """)
    h_dma(HEARLY, 24, 25)
    RT = opt.get('rtouch', 0)
    def rtouch():
        E(f"buffer_load_dword v233, v233, {PSRD}, 0 offen")
        E(f"buffer_load_dword v234, v234, {WDSRD}, 0 offen")
    if RT:
        E(f"""
        s_cmp_eq_u32 s{S_W}, 1
        s_cselect_b32 s68, s70, s68
        s_cselect_b32 s69, s71, s69
        {srd_fix(68, 1835008)}
        s_mov_b32 s52, s72
        s_mov_b32 s53, s73
        {srd_fix(52, 1835008)}
        s_lshr_b32 s24, s2, 2
        s_add_u32 s24, s24, 32
        s_mul_i32 s24, s24, 28672
        s_and_b32 s25, s2, 3
        s_mul_i32 s25, s25, 896
        s_add_u32 s24, s24, s25
        s_add_u32 s25, s2, 128
        s_lshl_b32 s25, s25, 13
        s_lshl_b32 s26, s{S_W}, 9
        s_add_u32 s25, s25, s26
        s_cmp_ge_u32 s2, 128
        s_cselect_b32 s24, {OOB}, s24
        s_cselect_b32 s25, {OOB}, s25
        v_min_u32 v233, 6, v21
        v_lshlrev_b32 v233, 7, v233
        v_mul_u32_u24 v234, 3584, v22
        v_add_u32 v233, v233, v234
        v_add_u32 v233, s24, v233
        v_and_b32 v234, 3, v21
        v_lshlrev_b32 v234, 7, v234
        v_lshl_add_u32 v234, v22, 10, v234
        v_add_u32 v234, s25, v234
        """)
        if RT == 1: rtouch()
    E("s_branch L_join\nL_w2:")
    tile_path([('v', b) for b in range(3, 9)])
    stamp_dup('e1'); stamp_dup('e2')
    skload()
    E("s_branch L_w23\nL_w3:")
    if MKALL:
        MK2 = 0
        E(f"""
        s_waitcnt lgkmcnt(0)
        s_mov_b32 s68, s70
        s_mov_b32 s69, s71
        s_load_dword s{S_E}, s[4:5], {FL_EPOCH}
        """)
        if MKPOS == 0: markers4()
        stamp_dup('e1')
    else:
        MK4 = opt.get('mk4', 1)
        E(f"""
        v_lshlrev_b32 v33, 12, v21
        v_lshl_add_u32 v33, v22, 4, v33
        v_mov_b32 v36, -1
        v_mov_b32 v37, -1
        v_mov_b32 v38, -1
        v_mov_b32 v39, -1
        s_lshl_b32 s26, s{S_G}, 19
        s_lshl_b32 s27, s{S_M}, 7
        s_sub_u32 s26, s26, s27
        s_add_u32 s26, s26, {WS_KVT + 3968}
        s_waitcnt lgkmcnt(0)
        {srd_fix(S_WS, WS_SRD_BYTES)}
        s_load_dword s{S_E}, s[4:5], {FL_EPOCH}
        """)
        for i in range(16):
            E((f"buffer_store_dwordx4 v[36:39], v33, {WSRD}, s26 offen" if MK4 else f"buffer_store_dword v36, v33, {WSRD}, s26 offen") + (' sc1' if opt.get('mksc', 0) else ''))
            if i < 15: E("s_add_u32 s26, s26, 32768")
        stamp_dup('e1')
        E(f"""
        s_getreg_b32 s24, hwreg(HW_REG_XCC_ID, 0, 4)
        s_and_b32 s25, s2, 63
        s_lshl_b32 s25, s25, 7
        s_lshr_b32 s26, s2, 6
        s_lshl_b32 s26, s26, 2
        s_add_u32 s25, s25, s26
        s_add_u32 s25, s25, {FL_S0}
        s_and_b32 s24, s24, 7
        v_mov_b32 v{VF0}, {OOB}
        v_cmp_eq_u32 vcc, 0, v8
        v_mov_b32 v31, 0
        s_mov_b32 s68, s70
        s_mov_b32 s69, s71
        v_cndmask_b32 v{VF0}, v{VF0}, v31, vcc
        s_waitcnt lgkmcnt(0)
        s_mul_i32 s26, s{S_E}, 0x9e3779b1
        s_add_u32 s26, s26, 0x7f4a7c15
        s_and_b32 s26, s26, 0xfffffff0
        s_or_b32 s24, s24, s26
        v_mov_b32 v31, s24
        s_waitcnt vmcnt(0)
        buffer_store_dword v31, v{VF0}, {WSRD}, s25 offen sc1
        """)
        MK2 = opt.get('mk2', 0)
        if MK2 == 3: skload()
        if MK2:
            E(f"""
            s_lshl_b32 s26, s{S_G}, 19
            s_lshl_b32 s27, s{S_M}, 7
            s_sub_u32 s26, s26, s27
            s_add_u32 s26, s26, {WS_KVT + 3968}
            """)
            for i in range(16):
                E(f"buffer_store_dwordx4 v[36:39], v33, {WSRD}, s26 offen sc1")
                if i < 15: E("s_add_u32 s26, s26, 32768")
    stamp_dup('e2')
    if MK2 != 3: skload()
    E(f"""
    L_w23:
    {srd_fix(68, 1835008)}
    s_mov_b32 s52, s72
    s_mov_b32 s53, s73
    {srd_fix(52, 1835008)}
    """)
    RAWPOS = opt.get('rawpos', 0)
    RAWTHR = opt.get('rawthr', 0)
    if RAWPOS == 0: prep_dma()
    if RAWTHR:
        assert RAWPOS == 1 and MKPOS == 0
        E(f"s_cmp_lt_u32 s2, {RAWTHR}\ns_cbranch_scc1 L_join")
        prep_dma()
    E("L_join:")
    stamp('join')
    if opt.get('tw'):
        E(f"s_waitcnt vmcnt({opt['tw']})")
        stamp('tw')
    HEAD = 60
    PFL = opt.get('pfl', 15)
    E(f"""
    {srd_fix(S_WS, WS_SRD_BYTES)}
    s_lshr_b32 s{S_CP}, s{S_CB}, 1
    s_mov_b32 s76, s58
    s_mov_b32 s77, s59
    {srd_fix(76, 2097152)}
    s_lshl_b32 s24, s{S_CB}, 1
    s_load_dword s{S_D}, s[60:61], s24
    v_and_b32 v23, 31, v0
    v_lshrrev_b32 v24, 7, v0
    v_bfe_u32 v25, v0, 5, 2
    v_lshl_add_u32 v26, v25, 1, v23
    v_add_u32 v26, -30, v26
    v_add_u32 v27, s{S_CB}, v24
    v_lshlrev_b32 v27, 12, v27
    v_lshl_add_u32 v27, v26, 1, v27
    v_cmp_gt_i32 vcc, 0, v26
    v_mov_b32 v31, -16
    v_mul_u32_u24 v61, {HC_CH}, v24
    v_cndmask_b32 v27, v27, v31, vcc
    buffer_load_ushort v{HEAD}, v27, {HSRD}, 0 offen
    v_mul_u32_u24 v31, {HC_J}, v25
    v_add_u32 v61, v61, v31
    v_lshl_add_u32 v61, v23, 1, v61
    s_getpc_b64 s[32:33]
    L_pc:
    s_lshl_b32 s24, s{S_M}, 2
    s_add_u32 s24, s24, s{S_W}
    {'s_and_b32 s24, s24, 31' if PFL == 15 else 's_nop 0'}
    s_lshl_b32 s24, s24, {11 if PFL == 15 else 9}
    v_and_b32 v31, {PFL}, v8
    v_lshlrev_b32 v31, 7, v31
    v_add_u32 v31, s24, v31
    v_min_u32 v31, L_codeend-L_pc-64, v31
    global_load_dword v255, v31, s[32:33]
    """)
    stamp('i_a')
    E(f"""
    s_mov_b32 s{S_OUT}, s74
    s_mov_b32 s{S_OUT+1}, s75
    ; block-stage ids ; q fragment offsets: token = 128 c + 8 role + tok, channels 128 w + 64 c2 + 16 ks + 8 hi ..
    s_and_b32 s{S_ROLE}, s{S_M}, 15
    s_lshr_b32 s24, s{S_M}, 4
    s_lshl_b32 s24, s24, 3
    s_add_u32 s{S_C}, s{S_G}, s24
    s_lshr_b32 s{S_TH}, s{S_ROLE}, 3
    s_and_b32 s{S_J}, s{S_ROLE}, 7
    v_and_b32 v20, 7, v8                     ; tok
    v_bfe_u32 v21, v8, 3, 1                  ; hi
    v_lshrrev_b32 v22, 4, v8                 ; ks
    v_lshlrev_b32 v9, 10, v20
    v_lshl_add_u32 v9, v22, 5, v9
    v_lshl_add_u32 v9, v21, 4, v9
    s_lshl_b32 s24, s{S_C}, 7
    s_lshl_b32 s25, s{S_ROLE}, 3
    s_add_u32 s24, s24, s25
    s_lshl_b32 s24, s24, 10
    s_lshl_b32 s25, s{S_W}, 8
    s_add_u32 s{S_QO}, s24, s25
    {srd_fix(S_Q, 2097152)}
    """)
    ROTP = "" if not opt.get('rot', 0) else f"""s_lshr_b32 s96, s{S_C}, 3
    s_lshl_b32 s96, s96, 1
    s_lshr_b32 s97, s{S_W}, 1
    s_add_u32 s96, s96, s97
    s_sub_u32 s29, s29, s96
    s_and_b32 s29, s29, 3"""
    E(f"""
    s_getreg_b32 s{S_XCC}, hwreg(HW_REG_XCC_ID, 0, 4)
    s_lshl_b32 s{S_W1K}, s{S_W}, 13
    s_mul_i32 s{S_W1}, s{S_ROLE}, {229376 if not opt.get('xw1same') else 0}
    s_add_u32 s{S_W1}, s{S_W1}, s{S_W1K}
    s_add_u32 s{S_W1}, s{S_W1}, {WS_W1F}
    s_and_b32 s{S_OUT+1}, s{S_OUT+1}, 0xffff
    s_mov_b32 s{S_OUT+2}, 2097152
    s_mov_b32 s{S_OUT+3}, 0x20000
    s_mov_b32 s{S_HI}, 0xffff0000
    s_mov_b32 s{S_LN2}, {LN2:#x}
    s_mov_b32 s{S_LN2+1}, {LN2:#x}
    s_mov_b32 s{S_EXP}, 1
    s_and_b32 s{S_XCC}, s{S_XCC}, 7
    v_add_u32 v{VA1}, 65536, v{VL16}
    v_add_u32 v{VA2}, 131072, v{VL16}
    v_lshlrev_b32 v{VP8}, 2, v20
    v_and_b32 v{VP16}, 15, v8
    v_lshlrev_b32 v{VP16}, 2, v{VP16}
    v_mov_b32 v{VF0}, {OOB}
    v_cmp_eq_u32 vcc, 0, v8
    v_mov_b32 v31, 0
    s_lshr_b32 s30, s{S_ROLE}, 2             ; tt_r
    s_and_b32 s24, s{S_ROLE}, 3
    v_cndmask_b32 v{VF0}, v{VF0}, v31, vcc
    s_lshl_b32 s25, s24, 7
    v_lshlrev_b32 v{VR}, 10, v22
    v_lshl_add_u32 v{VR}, v21, 9, v{VR}
    v_lshl_add_u32 v{VR}, v20, 4, v{VR}
    v_add_u32 v{VR}, s25, v{VR}
    ; stats addresses
    v_lshlrev_b32 v{VSTR}, 5, v20
    v_add_u32 v{VSTR}, {STATS}, v{VSTR}
    v_and_b32 v31, 1, v22
    v_lshl_add_u32 v{VSTW}, v31, 2, v{VSTR}
    s_lshl_b32 s25, s{S_W}, 3
    v_add_u32 v{VSTW}, s25, v{VSTW}
    v_lshlrev_b32 v10, 12, v22
    v_lshl_add_u32 v10, v21, 11, v10
    v_lshl_add_u32 v10, v20, 2, v10
    s_lshl_b32 s25, s{S_G}, {GSH}
    s_lshr_b32 s26, s{S_C}, 3
    s_lshl_b32 s26, s26, 17
    s_add_u32 s25, s25, s26
    s_lshl_b32 s26, s30, 15
    s_add_u32 s{S_R}, s25, s26
    s_lshl_b32 s26, s{S_W}, 13
    s_add_u32 s{S_R}, s{S_R}, s26
    s_lshl_b32 s26, s{S_W}, 15
    s_add_u32 s{S_XNL}, s25, s26             ; XB + w*32768
    s_lshl_b32 s26, s{S_C}, 2
    s_add_u32 s27, s26, s{S_W}
    s_mul_i32 s27, s27, 114688
    s_lshr_b32 s28, s{S_ROLE}, 2
    s_mul_i32 s28, s28, 28
    s_and_b32 s29, s{S_ROLE}, 3
    {ROTP}
    s_add_u32 s28, s28, s29
    s_lshl_b32 s28, s28, 10
    s_add_u32 s{S_HST}, s27, s28             ; (4c+w)*114688 + ((role>>2)*28 + (role&3))*1024 ; tile tau at +4096 tau
    s_lshl_b32 s27, s{S_TH}, 1
    s_add_u32 s27, s27, s26
    s_mul_i32 s27, s27, 114688
    s_mul_i32 s28, s{S_W}, 28672
    s_add_u32 s{S_HLD}, s27, s28             ; (4c+2th)*114688 + 28w*1024
    s_and_b32 s26, s{S_W}, 1
    s_lshl_b32 s26, s26, 1
    s_lshr_b32 s27, s{S_W}, 1
    s_add_u32 s26, s26, s27
    s_lshl_b32 s27, s{S_J}, 2
    s_add_u32 s26, s26, s27                  ; kappa_o = 4j + 2(w&1) + (w>>1)
    s_lshl_b32 s27, s26, 10
    s_lshl_b32 s28, s{S_TH}, 16
    s_add_u32 s27, s27, s28
    s_add_u32 s{S_XML}, s27, s25
    ; flags
    s_lshl_b32 s25, s{S_C}, 8
    s_lshl_b32 s27, s30, 6
    s_add_u32 s27, s27, s25
    s_lshl_b32 s28, s24, 4
    s_add_u32 s27, s27, s28
    s_lshl_b32 s28, s{S_W}, 2
    s_add_u32 s{S_FXNS}, s27, s28
    s_lshl_b32 s27, s{S_W}, 6
    s_add_u32 s{S_FXNL}, s25, s27            ; c*256 + w*64
    s_lshl_b32 s25, s{S_C}, 10
    s_lshr_b32 s27, s{S_W}, 1
    s_lshl_b32 s27, s27, 7
    s_add_u32 s27, s27, s25
    s_lshl_b32 s29, s{S_ROLE}, 3
    s_add_u32 s27, s27, s29
    s_and_b32 s29, s{S_W}, 1
    s_lshl_b32 s29, s29, 2
    s_add_u32 s{S_FHS}, s27, s29             ; c*1024 + (w>>1)*128 + role*8 + (w&1)*4
    s_lshl_b32 s27, s{S_TH}, 7
    s_add_u32 s27, s27, s25
    s_lshl_b32 s29, s{S_W}, 5
    s_add_u32 s{S_FHL}, s27, s29             ; c*1024 + th*128 + w*32
    s_lshl_b32 s25, s{S_C}, 9
    s_lshl_b32 s27, s{S_TH}, 7
    s_add_u32 s27, s27, s25
    s_lshl_b32 s29, s{S_J}, 4
    s_add_u32 s27, s27, s29
    s_add_u32 s{S_FX2S}, s27, s28            ; c*512 + th*128 + j*16 + w*4
    s_lshr_b32 s27, s30, 1
    s_lshl_b32 s27, s27, 7
    s_add_u32 s27, s27, s25
    s_lshl_b32 s29, s{S_W}, 5
    s_add_u32 s{S_FX2L}, s27, s29            ; c*512 + (tt_r>>1)*128 + w*32
    s_add_u32 s{S_FXNS}, s{S_FXNS}, {FL_XN}
    s_add_u32 s{S_FXNL}, s{S_FXNL}, {FL_XN}
    s_add_u32 s{S_FHS}, s{S_FHS}, {FL_H}
    s_add_u32 s{S_FHL}, s{S_FHL}, {FL_H}
    s_add_u32 s{S_FX2S}, s{S_FX2S}, {FL_X2}
    s_add_u32 s{S_FX2L}, s{S_FX2L}, {FL_X2}
    s_mul_i32 s25, s{S_W}, 6144
    s_add_u32 s25, s25, {SCR}
    v_add_u32 v{VRR}, s25, v{VL16}
    """)
    for m in (1, 2, 3):
        E(f"""
        s_xor_b32 s25, s{S_W}, {m}
        s_mul_i32 s25, s25, 6144
        s_add_u32 s25, s25, {SCR + (m-1)*2048}
        v_add_u32 v{VRW[m-1]}, s25, v{VL16}
        """)
    E(f"""
    s_lshl_b32 s{S_WDB}, s{S_J}, 2
    s_add_u32 s{S_WDB}, s{S_WDB}, s{S_W}
    s_mul_i32 s{S_WDB}, s{S_WDB}, 57344
    s_add_u32 s{S_WDB}, s{S_WDB}, {WS_WDF}
    s_lshr_b32 s25, s{S_W}, 1
    s_lshl_b32 s25, s25, 8
    v_xor_b32 v31, s25, v{VL16}
    s_and_b32 s25, s{S_W}, 1
    s_lshl_b32 s25, s25, 10
    v_add_u32 v{VWD}, s25, v31
    s_xor_b32 s25, s25, 1024
    v_add_u32 v{VWD+1}, s25, v31
    """)
    stamp('pre')
    E(f"""
    s_waitcnt lgkmcnt(0)
    s_mul_i32 s{S_N}, s{S_E}, 0x9e3779b1
    s_add_u32 s{S_N}, s{S_N}, 0x7f4a7c15
    s_and_b32 s{S_N}, s{S_N}, 0xfffffff0
    s_or_b32 s{S_XCC}, s{S_XCC}, s{S_N}
    v_mov_b32 v{VONE}, s{S_N}
    ; flag slot of this work-group in the [64][4] arrays
    s_and_b32 s86, s2, 63
    s_lshl_b32 s86, s86, 7
    s_lshr_b32 s24, s2, 6
    s_lshl_b32 s24, s24, 2
    s_add_u32 s86, s86, s24
    """)
    if opt.get('ftouch', 0):
        E(f"""
        s_lshl_b32 s24, s{S_ROLE}, 1
        v_add_u32 v20, s24, v8
        v_min_u32 v20, 23, v20
        v_lshrrev_b32 v21, 1, v20
        v_and_b32 v22, 1, v20
        v_lshlrev_b32 v21, 12, v21
        v_lshl_add_u32 v21, v22, 7, v21
        s_lshl_b32 s24, s{S_C}, 8
        s_add_u32 s24, s24, {FL_XN}
        v_add_u32 v21, s24, v21
        v_subrev_u32 v22, 4, v20
        v_lshrrev_b32 v23, 3, v22
        v_and_b32 v22, 7, v22
        v_lshlrev_b32 v23, 14, v23
        v_lshl_add_u32 v23, v22, 7, v23
        s_lshl_b32 s24, s{S_C}, 10
        s_add_u32 s24, s24, {FL_H}
        v_add_u32 v23, s24, v23
        v_cmp_lt_u32 vcc, 3, v20
        v_cndmask_b32 v21, v21, v23, vcc
        v_subrev_u32 v22, 20, v20
        v_lshlrev_b32 v22, 7, v22
        s_lshl_b32 s24, s{S_C}, 9
        s_add_u32 s24, s24, {FL_X2}
        v_add_u32 v22, s24, v22                  ; X2 + c*512 + line*128
        v_cmp_lt_u32 vcc, 19, v20
        v_cndmask_b32 v21, v21, v22, vcc
        v_cmp_lt_u32 vcc, 1, v8
        v_mov_b32 v22, {OOB}
        v_cndmask_b32 v{VFT}, v21, v22, vcc
        """)
    stamp('setup')

    VA_, VB_ = 62, 63
    VXW, VKVW, VYS, VT0, VS1P, VEP = 22, 248, 249, 250, 253, 254
    VTR, W1D, WDD, VYP, VS1F = 226, 227, 228, 229, 230
    S_XL = 72
    S_W1DST, S_WDDST, S_YP, S_S1F = 64, 65, 66, 67
    E(f"""
    ; weight images (waves 2 and 3): raw 8-row blocks go to LDS, come back transposed and are stored as MFMA fragments
    s_cmp_eq_u32 s{S_W}, 3
    s_cselect_b32 s28, 256, 0
    s_cselect_b32 s29, 4, 0                  ; first Wd block of this wave
    s_lshr_b32 s24, s2, 2                    ; kg
    s_and_b32 s25, s2, 3                     ; fq
    v_bfe_u32 v20, v8, 2, 2
    v_lshlrev_b32 v{VTR}, 7, v20
    v_lshrrev_b32 v21, 4, v8                 ; g
    v_lshl_add_u32 v{VTR}, v21, 5, v{VTR}
    v_and_b32 v20, 3, v8
    v_lshl_add_u32 v{VTR}, v20, 3, v{VTR}
    v_add_u32 v{VTR}, s{S_PST}, v{VTR}
    v_and_b32 v20, 3, v8
    v_bfe_u32 v23, v8, 2, 1
    v_lshl_or_b32 v20, v23, 3, v20
    v_bfe_u32 v23, v8, 3, 1
    v_lshl_or_b32 v20, v23, 2, v20
    v_lshlrev_b32 v20, 4, v20                ; row * 16
    v_lshl_add_u32 v{W1D}, v21, 15, v20      ; + g * 32768
    s_mul_i32 s26, s25, {28*32768}
    s_lshr_b32 s27, s24, 1
    s_lshl_b32 s27, s27, 10
    s_add_u32 s26, s26, s27
    s_and_b32 s27, s24, 1
    s_lshl_b32 s27, s27, 9
    s_add_u32 s26, s26, s27
    s_add_u32 s26, s26, s28
    s_add_u32 s{S_W1DST}, s26, {WS_W1F}
    v_lshrrev_b32 v23, 1, v21
    v_lshl_add_u32 v{WDD}, v23, 10, v20      ; + dt * 1024
    v_and_b32 v23, 1, v21
    v_lshl_add_u32 v{WDD}, v23, 8, v{WDD}    ; + 16 rows
    s_lshr_b32 s24, s2, 1                    ; kf
    s_mul_i32 s25, s24, 2341
    s_lshr_b32 s25, s25, 16                  ; kf / 28
    s_mul_i32 s26, s25, 28
    s_sub_u32 s26, s24, s26
    s_mul_i32 s25, s25, 57344
    s_lshl_b32 s26, s26, 11
    s_add_u32 s25, s25, s26
    s_and_b32 s26, s2, 1
    s_lshl_b32 s26, s26, 9
    s_add_u32 s25, s25, s26
    s_mul_i32 s26, s29, 229376
    s_add_u32 s25, s25, s26
    s_add_u32 s25, s25, {WS_WDF}
    s_cmp_ge_u32 s2, 224
    s_cselect_b32 s{S_WDDST}, 0xf0000000, s25
    ; markers of the Y rows: waves 2 and 3 take eight clusters each
    v_lshrrev_b32 v{VYP}, 5, v8
    v_and_b32 v20, 31, v8
    v_lshlrev_b32 v{VYP}, 17, v{VYP}
    v_lshl_add_u32 v{VYP}, v20, 4, v{VYP}
    s_lshl_b32 s24, s{S_CP}, 9
    s_lshl_b32 s25, s29, 18
    s_add_u32 s24, s24, s25
    s_add_u32 s{S_YP}, s24, {WS_Y}
    ; images-complete flag: index 2 b + (w & 1) -> line index & 127, dword index >> 7
    s_lshl_b32 s24, s2, 1
    s_and_b32 s25, s{S_W}, 1
    s_add_u32 s24, s24, s25
    s_and_b32 s25, s24, 127
    s_lshl_b32 s25, s25, 7
    s_lshr_b32 s24, s24, 7
    s_lshl_b32 s24, s24, 2
    s_add_u32 s24, s24, s25
    s_add_u32 s{S_S1F}, s24, {FL_S1}
    s_cmp_ge_u32 s{S_W}, 2
    s_cselect_b32 s24, 0, {OOB}
    v_or_b32 v{VS1F}, s24, v{VF0}
    {f'v_or_b32 v{WDD}, s24, v{WDD}' if SPLIT else ''}
    s_lshl_b32 s24, s{S_W}, 12
    s_add_u32 s24, s24, {FL_S1}
    v_and_b32 v20, 31, v8
    v_lshlrev_b32 v{VS1P}, 7, v20
    v_add_u32 v{VS1P}, s24, v{VS1P}
    v_and_b32 v20, 15, v8                    ; r
    v_lshrrev_b32 v21, 4, v8                 ; g
    v_and_b32 v22, 3, v8                     ; j'
    v_bfe_u32 v23, v8, 2, 2                  ; q
    s_lshr_b32 s24, s{S_W}, 1                ; ch
    s_and_b32 s25, s{S_W}, 1
    s_lshl_b32 s25, s25, 8
    s_mul_i32 s26, s24, {HC_CH}
    s_add_u32 s26, s26, s25
    v_mul_u32_u24 v24, {HC_J}, v22
    v_add_u32 v25, v21, v23
    v_lshl_add_u32 v24, v25, 4, v24
    v_add_u32 v{VA_}, s26, v24
    s_mul_i32 s26, s24, {XR_CH}
    s_add_u32 s26, s26, s25
    s_add_u32 s26, s26, {XRB + 16*252 - 3584}
    v_and_b32 v22, 7, v8                     ; n'
    v_bfe_u32 v23, v8, 3, 1                  ; par'
    v_mul_u32_u24 v24, {XR_P}, v23
    v_lshlrev_b32 v25, 6, v22
    v_sub_u32 v24, v24, v25
    v_lshl_add_u32 v24, v21, 4, v24
    v_add_u32 v{VB_}, s26, v24
    v_lshrrev_b32 v20, 6, v0
    v_and_b32 v20, 1, v20
    v_mul_u32_u24 v20, {XR_CH}, v20
    v_bfe_u32 v21, v0, 5, 1
    v_mul_u32_u24 v21, {XR_P}, v21
    v_add_u32 v20, v20, v21
    v_and_b32 v21, 31, v0
    v_lshl_add_u32 v20, v21, 4, v20
    v_add_u32 v20, {XRB + 4096}, v20
    v_mov_b32 v24, 0
    v_mov_b32 v25, 0
    v_mov_b32 v26, 0
    v_mov_b32 v27, 0
    """)
    E.ds("ds_write_b128 v20, v[24:27]", 'pad')
    E(f"""
    ; kv stage: thread = (channel pair cp = 8 w + (lane >> 3), token group tg = lane & 7) ; stores at cp*16384 + 4080 - 128 m - 16 tg
    v_lshrrev_b32 v20, 3, v0                 ; cp
    v_and_b32 v21, 7, v8                     ; tg
    v_lshlrev_b32 v53, {14 - P1}, v20
    v_lshlrev_b32 v23, 4, v21
    v_sub_u32 v53, v53, v23
    s_lshl_b32 s24, s{S_M}, 7
    s_sub_u32 s24, 4080, s24
    v_add_u32 v53, s24, v53
    ; staging tile reads
    v_mul_u32_u24 v54, {TBS}, v21
    v_lshl_add_u32 v54, v20, 2, v54
    v_add_u32 v55, {VT}, v54
    v_add_u32 v54, {KT}, v54
    ; group flag poll: line 8 l + gamma
    v_and_b32 v30, 7, v8
    v_lshlrev_b32 v30, 10, v30
    s_lshl_b32 s24, s{S_G}, 7
    s_add_u32 s24, s24, {FL_S0}
    v_add_u32 v30, s24, v30
    s_and_b32 s25, s{S_W}, 1
    s_mul_i32 s24, s25, {XR_CH}
    s_add_u32 s24, s24, {XRB}
    v_add_u32 v{VXW}, s24, v{VL16}
    s_add_u32 s24, s{S_CB}, s25
    s_lshl_b32 s24, s24, {13 - P1}
    s_add_u32 s{S_XL}, s24, {WS_KVT}
    s_add_u32 s{S_XL+1}, s24, {WS_KVT + 4096}
    ; epilogue lanes: n' = l&7, par' = (l>>3)&1, g = l>>4 ; base token s_b = 256 t + 32 n' + 8 g ; t = 2 w + tau
    v_and_b32 v20, 7, v8                     ; n'
    v_bfe_u32 v21, v8, 3, 1                  ; par'
    v_lshrrev_b32 v23, 4, v8                 ; g
    v_lshlrev_b32 v31, 6, v20
    v_lshl_add_u32 v31, v23, 4, v31          ; 64 n' + 16 g
    v_mul_u32_u24 v{VKVW}, {XR_P}, v21
    v_sub_u32 v{VKVW}, v{VKVW}, v31
    s_lshl_b32 s24, s{S_W}, 10
    s_sub_u32 s24, {XRB + 4080 - 512}, s24
    v_add_u32 v{VKVW}, s24, v{VKVW}          ; kv window (tau = 1 ; tau = 0 at +512)
    v_lshrrev_b32 v31, 2, v20
    v_lshlrev_b32 v{VYS}, 17, v31
    v_and_b32 v31, 3, v20
    v_lshl_add_u32 v{VYS}, v31, 7, v{VYS}
    v_lshl_add_u32 v{VYS}, v23, 5, v{VYS}
    v_lshl_add_u32 v{VYS}, v21, 4, v{VYS}    ; (n'>>2)*131072 + (n'&3)*128 + g*32 + par'*16
    s_lshl_b32 s24, s{S_CP}, 9
    s_lshl_b32 s25, s{S_W}, 19
    s_add_u32 s24, s24, s25
    s_add_u32 s58, s24, {WS_Y}               ; + cp*512 + 2w*262144
    s_lshl_b32 s24, s{S_C}, 17
    s_lshl_b32 s25, s{S_ROLE}, 5
    s_add_u32 s24, s24, s25
    s_lshl_b32 s25, s{S_W}, 15
    s_add_u32 s24, s24, s25
    s_add_u32 s59, s24, {WS_Y}               ; + c*131072 + role*32 + 64w*512
    s_lshl_b32 s60, s{S_D}, 16
    s_and_b32 s61, s{S_D}, 0xffff0000
    v_mov_b32 v{VT0}, {OOB}
    v_mov_b32 v31, 0
    v_cmp_eq_u32 vcc, 0, v0
    s_lshl_b32 s24, s{S_G}, {GSH}
    s_add_u32 s80, s24, {WS_KVT}
    v_cndmask_b32 v{VT0}, v{VT0}, v31, vcc
    s_cmp_eq_u32 s2, 0
    s_cselect_b32 s24, {FL_EPOCH}, {OOB}
    v_add_u32 v{VEP}, s24, v{VT0}
    v_or_b32 v{VEP}, v{VEP}, v{VT0}
    s_add_u32 s81, s80, 4096
    s_add_u32 s82, s80, 8192
    s_add_u32 s83, s80, 12288
    """)
    stamp('setup2')
    def s0publish(lbl):
        E(f"""
        s_cmp_lg_u32 s{S_W}, 0
        s_cbranch_scc1 {lbl}
        v_mov_b32 v31, s{S_XCC}
        s_add_u32 s25, s86, {FL_S0}
        buffer_store_dword v31, v{VF0}, {WSRD}, s25 offen sc1
        """)
        if S0SC:
            E(f"""
            s_and_b32 s24, s{S_XCC}, 7
            s_mul_i32 s25, s24, s24
            s_lshl_b32 s25, s25, 16
            s_lshl_b32 s24, s24, 6
            s_add_u32 s24, s24, s25
            s_add_u32 s24, s24, 1
            s_lshl_b32 s25, s{S_G}, 2
            v_mov_b32 v34, s24
            v_mov_b32 v35, s25
            s_mov_b64 exec, 1
            global_atomic_add v35, v34, s[96:97]
            s_mov_b64 exec, -1
            """)
        E(f"""
        {lbl}:
        """)
    if MKALL and MKPOS == 0:
        E(f"""
        s_cmp_ge_u32 s{S_W}, 2
        s_cbranch_scc1 L_bm2
        s_waitcnt vmcnt({6 + 1 + 4*len(HEARLY) + 2 + (2 if RT == 1 else 0)})
        s_branch L_bmx
        L_bm2:
        {f's_cmp_ge_u32 s2, {RAWTHR}' if RAWTHR else ''}
        {'s_cbranch_scc1 L_bm4' if RAWTHR else ''}
        s_cmp_eq_u32 s{S_W}, 3
        s_cbranch_scc1 L_bm3
        s_waitcnt vmcnt({9 + (11 if RAWPOS == 0 else 0)})
        s_branch L_bmx
        L_bm3:
        s_waitcnt vmcnt({3 + (11 if RAWPOS == 0 else 0)})
        """)
        if RAWTHR:
            E(f"""
            s_branch L_bmx
            L_bm4:
            s_cmp_eq_u32 s{S_W}, 3
            s_cbranch_scc1 L_bm5
            s_waitcnt vmcnt(20)
            s_branch L_bmx
            L_bm5:
            s_waitcnt vmcnt(14)
            """)
        E("""
        L_bmx:
        s_barrier
        """)
        s0publish('L_bmy')
        stamp('bm')
    if MKPOS == 1:
        markers4(fix=False)
        stamp('bm')
    if opt.get('ftouch', 0) == 1:
        l_ = E.label('L_ft')
        E(f"s_cmp_lg_u32 s{S_W}, 0\ns_cbranch_scc1 {l_}\nbuffer_load_dword v{VFT}, v{VFT}, {WSRD}, 0 offen\n{l_}:")
    FTW = FTW2 = ""
    NX0 = (1 if opt.get('ftouch', 0) == 1 else 0) + (1 if MKALL and MKPOS == 0 else 0) + (1 if S0SC else 0)
    NY01 = (4*len(HEARLY) + 2 + (2 if RT else 0)) if MKPOS != 1 else 0
    if RT == 2:
        E(f"s_cmp_ge_u32 s{S_W}, 2\ns_cbranch_scc1 L_rt2")
        rtouch()
        E("L_rt2:")
    if NX0:
        FTW = f"s_cmp_eq_u32 s{S_W}, 0\ns_cbranch_scc1 L_g2c"
        FTW2 = f"L_g2c:\ns_waitcnt vmcnt({NY01 + NX0})\ns_branch L_g2x"
    E(f"""
    s_cmp_ge_u32 s{S_W}, 2
    s_cbranch_scc1 L_g2b
    {FTW}
    s_waitcnt vmcnt({NY01})
    s_branch L_g2x
    {FTW2}
    L_g2b:
    """)
    def kvtouch():
        E(f"""
        v_lshlrev_b32 v{VFT+1}, 12, v8
        s_lshl_b32 s26, s{S_G}, 19
        s_lshl_b32 s27, s{S_M}, 7
        s_sub_u32 s26, s26, s27
        s_add_u32 s26, s26, {WS_KVT + 3968}
        s_add_u32 s27, s26, 262144
        buffer_load_dword v{VFT+2}, v{VFT+1}, {WSRD}, s26 offen
        buffer_load_dword v{VFT+3}, v{VFT+1}, {WSRD}, s27 offen
        """)
    MKT = opt.get('mkt', 0)
    if RAWTHR:
        E(f"s_cmp_lt_u32 s2, {RAWTHR}\ns_cbranch_scc1 L_g2f\ns_waitcnt vmcnt(13)\ns_branch L_g2x\nL_g2f:")
    if RAWPOS == 1:
        E(srd_fix(68, 1835008))
        if MKT == 2:
            E(f"s_cmp_lg_u32 s{S_W}, 3\ns_cbranch_scc1 L_g2e")
            kvtouch()
            E("L_g2e:")
        prep_dma()
        if MKT == 1:
            E(f"s_cmp_lg_u32 s{S_W}, 3\ns_cbranch_scc1 L_g2d")
            kvtouch()
            E("s_waitcnt vmcnt(13)\ns_branch L_g2x\nL_g2d:")
        if MKT == 2:
            E(f"s_cmp_lg_u32 s{S_W}, 3\ns_cbranch_scc1 L_g2d")
            E("s_waitcnt vmcnt(13)\ns_branch L_g2x\nL_g2d:")
    E(f"""
    s_waitcnt vmcnt({13 if RAWPOS == 0 else 11 if RAWPOS == 1 else 2 if MKPOS != 1 else 0})
    L_g2x:
    """)
    stamp('i_b')
    if MKPOS == 2: markers4(fix=False)
    E.vmq = []
    E.wait_ds('pad')
    E("s_barrier")
    if MKPOS == 1: s0publish('L_bmy')
    stamp('b0')
    S0R = 24
    def s0poll():
        if S0SC:
            E(f"""s_lshl_b32 s28, s{S_G}, 2
            s_cmp_lt_u32 s{S_W}, 2
            s_cbranch_scc0 L_s0pv
            s_load_dword s29, s[96:97], s28 glc
            s_branch L_s0pw
            L_s0pv:""")
        E.vm(f"buffer_load_dwordx4 v[{S0R}:{S0R+3}], v30, {WSRD}, 0 offen sc1", 's0')
        if S0SC: E("L_s0pw:")
    S0AT = opt.get('s0at', 1)
    if S0AT == 0: s0poll()
    KR, VRW_ = 32, 44
    for x in range(0, 8, 2): E.ds(f"ds_read2_b32 v[{KR+x}:{KR+x+1}], v54 offset0:{32*x} offset1:{32*(x+1)}", 'kv')
    E(f"v_add_u32 v20, {TBS}, v54\nv_add_u32 v21, {TBS}, v55")
    for x in range(8, 12, 2): E.ds(f"ds_read2_b32 v[{KR+x}:{KR+x+1}], v20 offset0:{32*(x-8)} offset1:{32*(x-7)}", 'kv')
    for x in range(0, 8, 2): E.ds(f"ds_read2_b32 v[{VRW_+x}:{VRW_+x+1}], v55 offset0:{32*x} offset1:{32*(x+1)}", 'kv')
    E.ds(f"ds_read_b32 v{VRW_+8}, v21", 'kv')
    if RAWPOS == 2:
        E(f"s_cmp_lt_u32 s{S_W}, 2\ns_cbranch_scc1 L_rw2")
        E(srd_fix(68, 1835008))
        prep_dma()
        E("L_rw2:")
    E(f"""
    v_lshlrev_b32 v136, 16, v{SK}
    v_lshlrev_b32 v137, 16, v{SK+2}
    v_and_b32 v138, s{S_HI}, v{SK}
    v_and_b32 v139, s{S_HI}, v{SK+2}
    v_lshlrev_b32 v140, 16, v{SK+1}
    v_lshlrev_b32 v141, 16, v{SK+3}
    v_and_b32 v142, s{S_HI}, v{SK+1}
    v_and_b32 v143, s{S_HI}, v{SK+3}
    """)
    E.wait_ds('kv')
    for i in range(12): E(f"v_lshlrev_b32 v{96+2*i}, 16, v{KR+i}\nv_and_b32 v{97+2*i}, s{S_HI}, v{KR+i}")
    if S0AT == 1: s0poll()
    for i in range(9): E(f"v_lshlrev_b32 v{164+2*i}, 16, v{VRW_+i}\nv_and_b32 v{165+2*i}, s{S_HI}, v{VRW_+i}")
    def K(x): return f"v[{96+2*x}:{97+2*x}]"
    def KV(i): return 144 + 2*i
    KVI = range(1, 9) if P1 else range(9)
    for i in KVI: E(f"v_pk_mul_f32 v[{KV(i)}:{KV(i)+1}], v[136:137], {K(i+3)}")
    if S0AT == 2: s0poll()
    for tap in (1, 2, 3):
        for i in KVI: E(f"v_pk_fma_f32 v[{KV(i)}:{KV(i)+1}], v[{136+2*tap}:{137+2*tap}], {K(i+3-tap)}, v[{KV(i)}:{KV(i)+1}]")
    if S0AT == 3: s0poll()
    for i in KVI: E(f"v_pk_mul_f32 v[{KV(i)}:{KV(i)+1}], v[{KV(i)}:{KV(i)+1}], v[{164+2*i}:{165+2*i}]")
    if MKPOS == 2:
        assert S0AT == 4
        if RAWPOS == 2 and not MKW:
            E(f"s_cmp_ge_u32 s{S_W}, 2\ns_cbranch_scc1 L_mq2\ns_waitcnt vmcnt(0)\ns_branch L_mq3\nL_mq2:\ns_waitcnt vmcnt(11)\nL_mq3:")
        elif MKW:
            E(f"s_cmp_ge_u32 s{S_W}, 2\ns_cbranch_scc1 L_mq2\ns_waitcnt vmcnt(0)\nL_mq2:")
        else: E("s_waitcnt vmcnt(0)")
        stamp('mq')
        E("s_barrier")
        s0publish('L_bmy')
        stamp('bm')
    if S0AT == 4: s0poll()
    for c in range(2):
        for par in range(1 if P1 else 2):
            b = KR + 8*c + 4*par
            for d in range(4): E(f"v_cvt_pk_bf16_f32 v{b+d}, v{KV(8-par-2*d)+c}, v{KV(7-par-2*d)+c}")
            E.vm(f"buffer_store_dwordx4 v[{b}:{b+3}], v53, {WSRD}, s{80 + (c if P1 else 2*c + par)} offen" + FL('kv', 0), 'kvst')
    stamp('kvst')

    X, Y = 128, 136
    XF, YF, T = 144, 160, 176
    def stats(src, rnd, between=None, scale=False, pre=None):
        P, Q = 192, 194
        E(f"v_pk_add_f32 v[{P}:{P+1}], v[{src}:{src+1}], v[{src+2}:{src+3}]")
        E(f"v_pk_mul_f32 v[{Q}:{Q+1}], v[{src}:{src+1}], v[{src}:{src+1}]")
        for i in range(1, 8):
            E(f"v_pk_fma_f32 v[{Q}:{Q+1}], v[{src+2*i}:{src+2*i+1}], v[{src+2*i}:{src+2*i+1}], v[{Q}:{Q+1}]")
            if i >= 2: E(f"v_pk_add_f32 v[{P}:{P+1}], v[{P}:{P+1}], v[{src+2*i}:{src+2*i+1}]")
        E(f"""
        v_add_f32 v{P}, v{P}, v{P+1}
        v_add_f32 v{Q}, v{Q}, v{Q+1}
        v_permlane16_swap_b32 v{P}, v{Q}
        v_add_f32 v{P}, v{P}, v{Q}
        v_add_f32_dpp v{P}, v{P}, v{P} row_ror:8 row_mask:0xf bank_mask:0xf
        v_mov_b32 v{P+1}, v{P}
        v_permlane32_swap_b32 v{P}, v{P+1}
        v_add_f32 v{P}, v{P}, v{P+1}
        s_mov_b64 exec, 0x00ff00ff
        """)
        E.ds(f"ds_write_b32 v{VSTW}, v{P} offset:{rnd*256}", 'stw')
        E("s_mov_b64 exec, -1")
        E.wait_ds('stw')
        if pre: pre()
        E("s_barrier")
        E.ds(f"ds_read_b128 v[196:199], v{VSTR} offset:{rnd*256}", 'str')
        E.ds(f"ds_read_b128 v[200:203], v{VSTR} offset:{rnd*256+16}", 'str')
        if between: between()
        E.wait_ds('str')
        E(f"""
        v_pk_add_f32 v[196:197], v[196:197], v[198:199]
        v_pk_add_f32 v[200:201], v[200:201], v[202:203]
        v_pk_add_f32 v[196:197], v[196:197], v[200:201]
        v_mul_f32 v196, 0x3b000000, v196
        v_mul_f32 v197, 0x3b000000, v197
        v_fma_f32 v197, -v196, v196, v197
        v_max_f32 v197, 0, v197
        v_add_f32 v197, 0x3727c5ac, v197
        v_rsq_f32 v204, v197
        s_nop 0
        """)
        if scale: E(f"v_mul_f32 v204, {LOG2E:#x}, v204")
        E("v_mul_f32_e64 v206, -v196, v204")
    def norm(dst, src):
        for i in range(8):
            E(f"v_pk_fma_f32 v[{dst+2*i}:{dst+2*i+1}], v[{src+2*i}:{src+2*i+1}], v[204:205], v[206:207] op_sel_hi:[1,0,0]")
    def unpack(dst, src, n):
        for i in range(n):
            E(f"v_lshlrev_b32 v{dst+2*i}, 16, v{src+i}")
            E(f"v_and_b32 v{dst+2*i+1}, s{S_HI}, v{src+i}")
    S_XMD = 64
    def R_pre(L, between=None, pre=None):
        unpack(XF, X, 8)
        if P1 and L == 1:
            for i in range(8): E(f"v_pk_add_f32 v[{XF+2*i}:{XF+2*i+1}], v[{XF+2*i}:{XF+2*i+1}], v[{T+2*i}:{T+2*i+1}]")
            if opt.get('x2r', 0):
                for i in range(8): E(f"v_cvt_pk_bf16_f32 v{X+i}, v{XF+2*i}, v{XF+2*i+1}")
                unpack(XF, X, 8)
        stats(XF, 0, between, pre=pre)
        norm(T, XF)
        stamp(f'R{L}s1')
    def R_post(L, early=None, late=None, pre=None):
        unpack(YF, Y, 8)
        for i in range(8):
            E(f"v_pk_fma_f32 v[{XF+2*i}:{XF+2*i+1}], v[{T+2*i}:{T+2*i+1}], v[{YF+2*i}:{YF+2*i+1}], v[{XF+2*i}:{XF+2*i+1}]")
        M = 20 if (P1 and L == 0) else 208
        for i in range(8): E(f"v_cvt_pk_bf16_f32 v{M+i}, v{XF+2*i}, v{XF+2*i+1}")
        def xmst():
            if P1 and L == 0: return
            if P1: E(f"s_add_u32 s{S_T0}, s{S_R}, s{S_XMD}\ns_add_u32 s{S_T1}, s{S_T0}, 4096")
            else: sadd(S_T0, S_R, WS_XM); sadd(S_T1, S_R, WS_XM + 4096)
            E.vm(f"buffer_store_dwordx4 v[{M}:{M+3}], v{VR}, {WSRD}, s{S_T0} offen" + FL('xm', L), 'rst')
            E.vm(f"buffer_store_dwordx4 v[{M+4}:{M+7}], v{VR}, {WSRD}, s{S_T1} offen" + FL('xm', L), 'rst')
        def behind():
            xmst()
            E.vm(f"buffer_store_dword v{VONE}, v{VEP}, {WSRD}, 0 offen sc1", 'ep')
            if late: late()
        XML = P1 and L == 1 and opt.get('xmlate', 0)
        if L == 1 and not XML: xmst()
        if early: early()
        stats(XF, 1, between=behind if L == 0 else late, scale=True, pre=pre)
        norm(T, XF)
        N = 216
        for i in range(8): E(f"v_cvt_pk_bf16_f32 v{N+i}, v{T+2*i}, v{T+2*i+1}")
        sadd(S_T0, S_R, WS_XN); sadd(S_T1, S_R, WS_XN + 4096)
        E.vm(f"buffer_store_dwordx4 v[{N}:{N+3}], v{VR}, {WSRD}, s{S_T0} offen" + FL('xn', L), 'rst')
        E.vm(f"buffer_store_dwordx4 v[{N+4}:{N+7}], v{VR}, {WSRD}, s{S_T1} offen" + FL('xn', L), 'rst')
        if XML:
            for i in range(8): E(f"v_accvgpr_write_b32 a{A_Y+i}, v{M+i}")
        stamp(f'R{L}st')
    def Rpub(L):
        publish(S_FXNS, 0, 'rst')
        E("s_barrier")
        stamp(f'R{L}pub')

    ORDER = {}
    def g2_order():
        stA = [0, 1, 2]; stB = [3, 4, 5]; stC = [6]
        def blocks(tt, ps): return [(tt, rho, p) for p in ps for rho in range(4)]
        b1 = blocks(1, stB); nb1 = opt.get('b1_first', 4)
        return blocks(0, stA) + blocks(1, stA) + blocks(0, stB) + b1[:nb1] + blocks(0, stC) + b1[nb1:] + blocks(1, stC)
    def wd_kseq(L):
        kseq = []
        for (tt, rho, p) in g2_order():
            kp = rho*7 + LAYERS[L]['tau'][p]
            if kp not in kseq: kseq.append(kp)
        if opt.get('rot', 0): kseq.sort(key=lambda kp: kp // 7)
        return kseq
    def make_bulk():
        c = LAYERS[0]; ops = []
        ks = wd_kseq(0); npre = opt.get('wd_pre', 0)
        if opt.get('w1rot', 0):
            assert c['tau'][:3] == [0, 1, 2] and c['slot'][:3] == [2, 3, 4]
            ops.append((4, False, lambda: E(f"s_lshr_b32 s66, s{S_C}, 3\ns_mul_i32 s67, s66, 61440\ns_mul_i32 s66, s66, 36864")))
            for u in range(6):
                f_ = (u >> 1)*32768 + (u & 1)*4096
                ins = 's_add_u32' if u < 3 else 's_sub_u32'; d_ = 67 if u % 3 == 1 else 66
                ops.append((4, False, lambda f_=f_, ins=ins, d_=d_: E(f"s_add_u32 m0, s{S_W1K}, {2*SLOT + f_}\n{ins} m0, m0, s{d_}")))
                ops.append((4, False, lambda f_=f_, ins=ins, d_=d_: (sadd(S_DA, S_W1, f_), E(f"{ins} s{S_DA}, s{S_DA}, s{d_}"))))
                for i in range(4):
                    ops.append((4, True, lambda off=i*1024, u=u: E.vm(f"buffer_load_dwordx4 v{VL16}, {WSRD}, s{S_DA} offen" + (f" offset:{off}" if off else "") + " lds", f'w1_{u >> 1}')))
        else:
            for p in range(3): ops += dma_stream(c['tau'][p], c['slot'][p], f'w1_{p}')
        ops += wd_stream(ks[:npre])
        ops += dma_stream(c['tau'][3], c['slot'][3], 'w1_3')
        if not opt.get('nowd', 0): ops += wd_stream(ks[npre:])
        return Bulk(ops)
    BK = {}

    def layer(L):
        cfg = LAYERS[L]; tau = cfg['tau']; slot = cfg['slot']
        O = lambda k, d: opt.get(f'{k}{L}', opt.get(k, d))
        G2 = 224; NS = 336; lastslot = NS - 1
        BUD = O('bud', 24); VGAP = O('vgap', 2)
        F = {}; cost = [0]*(NS + 64); vslots = set()
        for i in range(G2):
            if i + LA < G2: cost[i] += 4
            if i % 2 == 0: cost[i] += 4
            if i < 96 and i % 3 == 0 and i > 0: cost[i] += 4
        for i in range(G2, NS, 2): cost[i] += 4
        RANK = {'m': 0, 's': 1, 'v': 2}
        def at(i, f, c=4, k='v'): F.setdefault(i, ([], [], []))[RANK[k]].append(f); cost[i] += c
        last = {'k': 'm', 't': -1}
        def put(t, f, c=4, k='v', vm=False, chain=False):
            if vm: k = 'm'
            if chain:
                t = max(t, last['t'] + (1 if RANK[k] < RANK[last['k']] else 0))
            while cost[t] + c > BUD or (vm and any((t + d) in vslots for d in range(-VGAP + 1, VGAP))): t += 1
            if vm: vslots.add(t)
            at(t, f, c, k); last['k'] = k; last['t'] = t
            return t
        def stream(t, ops):
            first = True
            for (c, vm, f) in ops:
                t = put(t, f, c, 's', vm, chain=not first); first = False
            return t
        def T_(s): return lambda: E(s)
        def barrier(): E("s_barrier")
        poll_issue(VP16, S_FXNL, 0, f'pxn{L}')
        if L == 0: BK['b'].emit(opt.get('bk_pub', 0))
        poll_check(VP16, S_FXNL, 0, f'pxn{L}')
        stamp(f'L{L}xnok')
        def xops(k):
            ops = []
            if k % 4 == 0: ops.append((4, False, lambda: sadd(S_XA, S_XNL, WS_XN + (k >> 2)*4096)))
            off = (k & 3)*1024
            ops.append((4, True, lambda: E.vm(f"buffer_load_dwordx4 v[{XR+4*k}:{XR+4*k+3}], v{VL16}, {WSRD}, s{S_XA} offen" + (f" offset:{off}" if off else "") + LSC, f'x{L}_{k}')))
            return ops
        n_up = O('nup', 5)
        for k in range(n_up):
            for (_, _, f) in xops(k): f()
        seq = []
        for k in range(32):
            for p in range(3): seq.append(('g1', p, k))
        for p in range(3, 7):
            for k in range(32): seq.append(('g1', p, k))
        accp = [0, 1, 2, 3, 0, 1, 2]
        def a_addr(p, k):
            s = slot[p]
            base = [VL16, VL16, VA1, VA1, VA2][s]
            off = (s & 1)*SLOT + k*1024 if s < 4 else k*1024
            return base, off
        def rd(i):
            _, p, k = seq[i]
            b, off = a_addr(p, k)
            r = RING + 4*(i % 8)
            E.ds(f"ds_read_b128 v[{r}:{r+3}], v{b} offset:{off}", f'a{L}_{i}')
        order = g2_order()
        assert len(order) == 56
        last0 = max(n for n, b in enumerate(order) if b[0] == 0)
        acc2 = {0: [ACC[0], ACC[1]], 1: [ACC[3], ACC[2]]}
        NH = 37
        def hreg(n):
            q = n % NH
            return ar(A_H + 4*q, 4) if q < 5 else vr(XR + 4*(q - 5), 4)
        def epilogue(p, o):
            c = ACC[accp[p]]
            for e in range(8):
                at(o + e, T_(f"v_exp_f32_e64 v{c+e}, -v{c+e}"), 8)
                at(o + e + 1, T_(f"v_add_f32 v{c+e}, 1.0, v{c+e}"))
                at(o + 8 + e, T_(f"v_rcp_f32 v{c+e}, v{c+e}"), 8)
                at(o + 9 + e, T_(f"v_mul_f32 v{c+e}, v{c+e}, v{c+8+e}"))
        def epilogue2(p, o):
            c = ACC[accp[p]]
            t = 0
            for k in range(4):
                t = put(max(t, o + 11 + 2*k), T_(f"v_cvt_pk_bf16_f32 v{c+8+k}, v{c+2*k}, v{c+2*k+1}"))
            stage = 'A' if p < 3 else ('B' if p < 6 else 'C')
            put(o + 10, T_(f"s_add_u32 s{S_HS[p & 1]}, s{S_HST}, {WS_H + tau[p]*4096}"), k='s')
            return put(t + 1, lambda: E.vm(f"buffer_store_dwordx4 v[{c+8}:{c+11}], v{VL16}, {WSRD}, s{S_HS[p & 1]} offen" + FL('h', L), f'h{stage}{L}'), vm=True)
        eo = [99, 115, 131, 147, 163, 196, 228]
        for p in range(7): epilogue(p, eo[p])
        est = [epilogue2(p, eo[p]) for p in range(7)]
        assert est[0] < 126 and est[1] < 158 and est[2] < 190 and est[5] < 222 and est[6] < 248, est
        at(121, lambda: (E.wait_vm(f'w4{L}'), barrier()), 8, 's')
        at(96, barrier, 4, 's')
        at(153, lambda: (E.wait_vm(f'w5{L}'), barrier()), 8, 's')
        at(185, lambda: (E.wait_vm(f'w6{L}'), barrier()), 8, 's')
        t = 0
        for k in range(n_up, 32):
            t = stream(max(t + (1 if k % 4 == 0 and k > n_up else 0), O('xsp', 2)*(k - n_up)), xops(k))
        XML = P1 and L == 1 and opt.get('xmlate', 0)
        if XML:
            t = stream(t + 1, [(4, False, lambda: E(f"s_add_u32 s{S_XA}, s{S_R}, s{S_XMD}")),
                               (4, True, lambda: E.vm(f"buffer_store_dwordx4 {ar(A_Y, 4)}, v{VR}, {WSRD}, s{S_XA} offen sc1", 'xms')),
                               (4, False, lambda: E(f"s_add_u32 s{S_XA}, s{S_XA}, 4096")),
                               (4, True, lambda: E.vm(f"buffer_store_dwordx4 {ar(A_Y+4, 4)}, v{VR}, {WSRD}, s{S_XA} offen sc1", 'xms'))])
        t = stream(t + 1, dma_stream(tau[4], slot[4], f'w4{L}'))
        w4end = t
        t = stream(97, dma_stream(tau[5], slot[5], f'w5{L}'))
        w5end = t
        t = stream(t + 1, dma_stream(tau[6], slot[6], f'w6{L}'))
        w6end = t
        assert w4end < 108 and w5end < 140 and w6end < 172, (w4end, w5end, w6end)
        if L == 0 and opt.get('htg'):
            def ht_ops(p0, np_):
                ops = [(4, False, lambda x=x: E(x)) for x in (f"v_lshrrev_b32 v30, 3, v8", f"v_min_u32 v30, {np_-1}, v30", f"v_lshlrev_b32 v30, 12, v30", f"v_and_b32 v31, 7, v8", f"v_lshl_add_u32 v30, v31, 7, v30")]
                return ops + [(4, False, lambda: E(f"s_add_u32 s{S_T2}, s{S_HST}, {WS_H + tau[p0]*4096}")),
                        (4, True, lambda: E.vm(f"buffer_load_dword v31, v30, {WSRD}, s{S_T2} offen", 'ht'))]
            assert tau == list(range(7))
            m = opt['htg']
            if m == 1:
                stream(w4end - 6, ht_ops(0, 3)); stream(w5end - 6, ht_ops(3, 4))
            elif m == 2:
                stream(w4end - 6, ht_ops(0, 7))
            elif m == 3:
                stream(2, ht_ops(0, 7))
        if L == 0 and WDC and not opt.get('wcr', 0):
            assert all(getattr(o[2], 'info', None) is not None for o in BK['b'].ops) and len(BK['b'].ops) == 28*3, 'no Wd load in front of the S1C check'
            def wc_cmp(first):
                return "\n".join(["v_accvgpr_read_b32 v30, a232", "v_accvgpr_read_b32 v31, a233", f"v_xor_b32 v30, s{S_N}, v30", f"v_xor_b32 v31, s{S_N}, v31", "v_or_b32 v30, v30, v31",
                                  "v_accvgpr_read_b32 v31, a234", f"v_xor_b32 v31, s{S_N}, v31", "v_or_b32 v30, v30, v31",
                                  "v_accvgpr_read_b32 v31, a235", f"v_xor_b32 v31, s{S_N}, v31", "v_or_b32 v30, v30, v31", "v_cmp_ne_u32 vcc, 0, v30"])
            wld = f"buffer_load_dwordx4 a[232:235], v9, {WSRD}, 0 offen sc1"
            E(f"v_lshlrev_b32 v9, 7, v8\nv_add_u32 v9, {FL_S1C}, v9")
            E.vm(wld, 'wcp')
            t = put(O('wcc', 40), lambda: E.wait_vm('wcp'), k='s')
            for ln in wc_cmp(0).split('\n'): t = put(t, T_(ln), chain=True)
            def wc_branch():
                ls = E.label('L_wcs'); lb = E.label('L_wcb'); ll = E.label('L_wcl')
                E(f"s_cbranch_vccnz {ls}\n{lb}:")
                E.out_of_line(f"""
                {ls}:
                s_mov_b32 s{S_T3}, 0
                {ll}:
                {wld}
                s_add_u32 s{S_T3}, s{S_T3}, 1
                s_waitcnt vmcnt(0)
                {wc_cmp(1)}
                s_nop 4
                s_cbranch_vccz {lb}
                s_cmp_lt_u32 s{S_T3}, 0x2000
                s_cbranch_scc1 {ll}
                s_branch {lb}""")
            t = put(t + 2, wc_branch, k='s')
            assert t < O('wd_at', 70) - 1, t
        XM0 = 20; XM1 = 24
        def xm_ops(tt):
            return [(4, False, (lambda: sadd(S_XA, S_XML, WS_XM + tt*32768)) if not P1 else (lambda: E(f"s_add_u32 s{S_XA}, s{S_XML if tt == 0 else S_XA}, {f's{S_XMD}' if tt == 0 else 32768}"))),
                    (4, True, lambda: E.vm(f"buffer_load_dwordx4 v[{XM0+4*tt}:{XM0+4*tt+3}], v{VL16}, {WSRD}, s{S_XA} offen" + LSC, f'xm{L}'))]
        NOXM = P1 and L == 0
        if not NOXM: stream(stream(O('xm_at', 152) if not XML else 186, xm_ops(0)) + 1, xm_ops(1))
        fh = 0
        pub = {}; chk = {}
        for (st_, k, e) in (('A', 0, est[2]), ('B', 1, est[5]), ('C', 2, est[6])):
            tp = put(O('pub' + st_, e + 12), lambda st_=st_: E.wait_vm(f'h{st_}{L}'), k='s')
            tp = put(tp, lambda st_=st_, k=k: publish(S_FHS, fh + 256*k, f'h{st_}{L}', wait=False), 4, 'm', chain=True)
            tq = put(O('poll' + st_, tp + 8), lambda st_=st_, k=k: poll_issue(VP8, S_FHL, fh + 256*k, f'p{st_}{L}'), 4, 'm')
            tc = put(O('chk' + st_, tq + (12 if st_ == 'A' else 14)), lambda st_=st_: E.wait_vm(f'p{st_}{L}'), k='s')
            tc = put(tc, lambda st_=st_, k=k: poll_check(VP8, S_FHL, fh + 256*k, f'p{st_}{L}', wait=False), 8, 'v', chain=True)
            pub[st_] = tp; chk[st_] = tc
        if XML: assert pub['A'] > 121 and chk['A'] < 185
        hslot = {}
        for n0 in range(0, 56, 4):
            tt, _, p = order[n0]
            sreg = S_HA[(n0 >> 2) & 1]
            rdy = chk['A' if p < 3 else 'B' if p < 6 else 'C'] + 1
            prev = max([hslot[m] for m in range(max(0, n0 - 8), max(0, n0 - 4))], default=0)
            ta = put(max(prev, rdy - 3), lambda tt=tt, p=p, sreg=sreg: E(f"s_add_u32 s{sreg}, s{S_HLD}, {WS_H + tt*114688 + tau[p]*4096}"), k='s') + 1
            for n in range(n0, n0 + 4):
                assert order[n][0] == tt and order[n][2] == p and order[n][1] == n - n0
                q = n % NH
                if n < NH: free = 0 if q < 5 else 192 + (q - 5) + 1
                else: free = G2 + 2*(n - NH) + 2
                off = (n - n0)*1024
                hslot[n] = put(max(rdy, free, ta), lambda n=n, sreg=sreg, off=off: E.vm(f"buffer_load_dwordx4 {hreg(n)}, v{VL16}, {WSRD}, s{sreg} offen" + (f" offset:{off}" if off else "") + LSC, f'h{L}_{n}'), vm=True)
                assert hslot[n] < G2 + 2*n - 6, (L, n, hslot[n])
        if opt.get('verbose'): print('L', L, 'est', est, 'w', w4end, w5end, w6end, 'pub', pub, 'chk', chk, 'h', [hslot[n] for n in range(56)])
        if L == 0:
            firstuse = {}
            for n, (tt, rho, p) in enumerate(order): firstuse.setdefault(rho*7 + tau[p], G2 + 2*n)
            t = O('wd_at', 70)
            rest_ops = BK['b'].ops; BK['b'].ops = []
            kcur = None
            for (c_, vm_, f_) in rest_ops:
                info = getattr(f_, 'info', None)
                assert info is not None and info[0] == 'wd', 'only Wd loads may be left for G1'
                if not vm_:
                    at(t - 1, f_, 0, 's')
                else:
                    while t in vslots: t += 1
                    assert t < firstuse[info[1]] - 8, ('Wd deadline', info, t)
                    at(t, f_, 0, 'm'); t += O('wd_sp', 2)
            if opt.get('verbose'): print('last Wd load at', t)
        RB = RING
        def red_write_ops(tt):
            ops = []
            for m in (1, 3, 2):
                pd, g = m & 1, m >> 1
                src = acc2[tt][pd] + 8*g
                for hlf in range(2):
                    ops.append(lambda m=m, src=src, hlf=hlf: E.ds(f"ds_write_b128 v{VRW[m-1]}, v[{src+4*hlf}:{src+4*hlf+3}] offset:{1024*hlf}", f'rw{L}{tt}'))
            return ops
        def red_read_ops(tt):
            ops = []
            for m in range(3):
                for hlf in range(2):
                    ops.append(lambda m=m, hlf=hlf: E.ds(f"ds_read_b128 v[{RB+8*m+4*hlf}:{RB+8*m+4*hlf+3}], v{VRR} offset:{2048*m+1024*hlf}", f'rr{L}{tt}'))
            return ops
        def out_store(tt, src):
            if L == 0:
                sadd(S_T0, S_XML, WS_XN + tt*32768)
                E.vm(f"buffer_store_dwordx4 v[{src}:{src+3}], v{VL16}, {WSRD}, s{S_T0} offen", f'x2{tt}')
            else:
                sadd(S_T0, 30, tt*32768)
                E.vm(f"buffer_store_dwordx4 v[{src}:{src+3}], v28, s[{S_OUT}:{S_OUT+3}], s{S_T0} offen" + (FL('o', L) or FL(f'ot{tt}', '')), f'o2{tt}')
        if L == 1:
            def out_setup():
                return [T_(x) for x in f"""v_and_b32 v28, 31, v0
                v_lshlrev_b32 v28, 10, v28
                v_bfe_u32 v29, v0, 5, 1
                v_lshl_add_u32 v28, v29, 4, v28
                s_lshl_b32 s30, s{S_C}, 17
                s_lshl_b32 s25, s{S_TH}, 16
                s_add_u32 s30, s30, s25
                s_and_b32 s25, s{S_W}, 1
                s_lshl_b32 s25, s25, 1
                s_lshr_b32 s26, s{S_W}, 1
                s_add_u32 s25, s25, s26
                s_lshl_b32 s26, s{S_J}, 2
                s_add_u32 s25, s25, s26
                s_lshl_b32 s25, s25, 5
                s_add_u32 s30, s30, s25""".split('\n')]
            t = 72
            for f in out_setup(): t = put(t, f, k='v', chain=True)
        XU = RB + 24
        if not NOXM:
            t = put(G2 + (26 if not XML else O('xmw', 40)), lambda: E.wait_vm(f'xm{L}'), k='s')
            for e in range(4):
                t = put(t, T_(f"v_lshlrev_b32 v{XU+2*e}, 16, v{XM1+e}"))
                t = put(t, T_(f"v_and_b32 v{XU+1+2*e}, s{S_HI}, v{XM1+e}"))
        m0_last = G2 + 2*last0 + 1
        t = m0_last + 5
        for f in red_write_ops(0): t = put(t, f, 8, 'm')
        t = put(t + 1, lambda: (E.wait_ds(f'rw{L}0'), barrier()), 8, 's')
        t += 1
        for f in red_read_ops(0): t = put(t, f, 4, 'm')
        own = acc2[0][0]
        t = put(t + 3, lambda: E.wait_ds(f'rr{L}0'), k='s')
        tb = t
        for e in range(8): t = put(t, T_(f"v_add_f32 v{RB+e}, v{RB+e}, v{RB+8+e}"))
        for e in range(8): t = put(t, T_(f"v_add_f32 v{own+e}, v{own+e}, v{RB+16+e}"))
        for e in range(4 if not NOXM else 0):
            t = put(t, T_(f"v_lshlrev_b32 v{RB+8+2*e}, 16, v{XM0+e}"))
            t = put(t, T_(f"v_and_b32 v{RB+9+2*e}, s{S_HI}, v{XM0+e}"))
        for e in range(8): t = put(t, T_(f"v_add_f32 v{own+e}, v{own+e}, v{RB+e}"))
        for e in range(8): t = put(t, T_(f"v_fma_f32 v{own+e}, v{own+e}, s{S_LN2}, v{RB+8+e}" if not NOXM else f"v_mul_f32 v{own+e}, s{S_LN2}, v{own+e}"))
        for e in range(4): t = put(t, T_(f"v_cvt_pk_bf16_f32 v{RB+e}, v{own+2*e}, v{own+2*e+1}"))
        t = put(t + 1, lambda: out_store(0, RB), 8, 'm')
        if opt.get('verbose'): print('tt0 reduction done at', t)
        put(tb + 1, barrier, k='s')
        E.wait_vm(f'x{L}_0')
        stamp(f'L{L}g1')
        for i in range(LA): rd(i)
        def emit_fill(i, mid=None):
            fm, fs, fv = F.pop(i, ([], [], []))
            if mid: mid()
            for f in fm + fs + fv: f()
        for i in range(224):
            _, p, k = seq[i]
            stamp(f'L{L}s{i}')
            if p < 3 and (i % 3) == 0 and k > 0: E.wait_vm(f'x{L}_{k}')
            if i % 2 == 0: E.wait_ds(f'a{L}_{i+1}')
            r = RING + 4*(i % 8)
            c = ACC[accp[p]]
            E(f"v_mfma_f32_32x32x16_bf16 v[{c}:{c+15}], {vr(r, 4)}, v[{XR+4*k}:{XR+4*k+3}], {'0' if k == 0 else f'v[{c}:{c+15}]'}")
            emit_fill(i, (lambda: rd(i + LA)) if i + LA < 224 else None)
        seen_kp = set()
        for n in range(56):
            tt, rho, p = order[n]
            kp = rho*7 + tau[p]
            firstb = not any(o[0] == tt for o in order[:n])
            for ii, pd in enumerate((1, 0) if n in (last0, 55) else (0, 1)):
                i = G2 + 2*n + ii
                stamp(f'L{L}s{i}')
                if ii == 0:
                    E.wait_vm(f'h{L}_{n}')
                    if L == 0 and kp not in seen_kp and not opt.get('nowd', 0): E.wait_vm(f'wd{kp}'); seen_kp.add(kp)
                c = acc2[tt][pd]
                E(f"v_mfma_f32_32x32x16_bf16 v[{c}:{c+15}], {ar(A_WD + 8*kp + 4*pd, 4)}, {hreg(n)}, {'0' if firstb else f'v[{c}:{c+15}]'}")
                emit_fill(i)
        stamp(f'L{L}g2end')
        for i in sorted(F.keys()):
            assert i > lastslot, i
            emit_fill(i)
        for f in red_write_ops(1): f()
        E.wait_ds(f'rw{L}1'); E("s_barrier")
        for f in red_read_ops(1): f()
        own = acc2[1][0]
        E.wait_ds(f'rr{L}1')
        for e in range(0, 8, 2): E(f"v_pk_add_f32 v[{RB+e}:{RB+e+1}], v[{RB+e}:{RB+e+1}], v[{RB+8+e}:{RB+9+e}]")
        for e in range(0, 8, 2): E(f"v_pk_add_f32 v[{own+e}:{own+e+1}], v[{own+e}:{own+e+1}], v[{RB+16+e}:{RB+17+e}]")
        for e in range(0, 8, 2): E(f"v_pk_add_f32 v[{own+e}:{own+e+1}], v[{own+e}:{own+e+1}], v[{RB+e}:{RB+e+1}]")
        for e in range(0, 8, 2):
            if NOXM: E(f"v_pk_mul_f32 v[{own+e}:{own+e+1}], v[{own+e}:{own+e+1}], s[{S_LN2}:{S_LN2+1}]")
            else: E(f"v_pk_fma_f32 v[{own+e}:{own+e+1}], v[{own+e}:{own+e+1}], s[{S_LN2}:{S_LN2+1}], v[{XU+e}:{XU+e+1}]")
        for e in range(4): E(f"v_cvt_pk_bf16_f32 v{RB+e}, v{own+2*e}, v{own+2*e+1}")
        out_store(1, RB)
        stamp(f'L{L}st')
        if L == 0:
            publish(S_FX2S, 0, 'x21')
            stamp('x2pub')

    def marker_check(regs_, reload_, tagname):
        ls = E.label('L_mks'); lb = E.label('L_mkb')
        t = 31
        r = list(regs_)
        E(f"v_max3_u32 v{t}, v{r[0]}, v{r[1]}, v{r[2]}"); k = 3
        while k + 1 < len(r): E(f"v_max3_u32 v{t}, v{t}, v{r[k]}, v{r[k+1]}"); k += 2
        if k < len(r): E(f"v_max_u32 v{t}, v{t}, v{r[k]}")
        E(f"v_cmp_eq_u32 vcc, -1, v{t}\ns_cbranch_vccnz {ls}\n{lb}:")
        ll = E.label('L_mkl')
        txt = f"{ls}:\ns_mov_b32 s{S_T3}, 0\n{ll}:\n"
        for i, x in enumerate(r):
            l2 = E.label('L_mkn')
            txt += f"""v_cmp_eq_u32 vcc, -1, v{x}
            s_cbranch_vccz {l2}
            {reload_(i)}
            {l2}:
            """
        txt += f"s_add_u32 s{S_T3}, s{S_T3}, 1\ns_waitcnt vmcnt(0)\n"
        if stamps and opt.get('cnt'): txt += f"s_add_u32 s{S_EXP}, s{S_EXP}, {16 if tagname == 'y' else 256}\n"
        txt += f"v_max3_u32 v{t}, v{r[0]}, v{r[1]}, v{r[2]}\n"; k = 3
        while k + 1 < len(r): txt += f"v_max3_u32 v{t}, v{t}, v{r[k]}, v{r[k+1]}\n"; k += 2
        if k < len(r): txt += f"v_max_u32 v{t}, v{t}, v{r[k]}\n"
        txt += f"""v_cmp_eq_u32 vcc, -1, v{t}
        s_cmp_gt_u32 s{S_T3}, 0x2000
        s_cbranch_vccz {lb}
        s_cbranch_scc0 {ll}
        s_branch {lb}
        """
        E.out_of_line(txt)

    def q16_poll(fl, tag):
        E(f"s_mov_b32 s25, {fl}")
        E.vm(f"buffer_load_dword v{VPOLL}, v30, {WSRD}, s25 offen sc1", tag)
    def q16_check(fl, tag):
        ls = E.label('L_qs'); lb = E.label('L_qb'); ll = E.label('L_ql')
        E.wait_vm(tag)
        E(f"v_cmp_ne_u32 vcc, s{S_N}, v{VPOLL}\ns_cbranch_vccnz {ls}\n{lb}:")
        E.out_of_line(f"""
        {ls}:
        s_mov_b32 s{S_T3}, 0
        s_mov_b32 s25, {fl}
        {ll}:
        buffer_load_dword v{VPOLL}, v30, {WSRD}, s25 offen sc1
        s_add_u32 s{S_T3}, s{S_T3}, 1
        {f's_add_u32 s{S_EXP}, s{S_EXP}, {1 << 18}' if stamps and opt.get('cnt') else ''}
        s_waitcnt vmcnt(0)
        v_cmp_ne_u32 vcc, s{S_N}, v{VPOLL}
        s_nop 4
        s_cbranch_vccz {lb}
        s_cmp_lt_u32 s{S_T3}, 0x2000
        s_cbranch_scc1 {ll}
        s_branch {lb}""")
        stamp(tag)
    SBR = 160
    def s1b_poll():
        E(f"v_lshlrev_b32 v30, 7, v8\nv_add_u32 v30, {FL_S1B}, v30")
        E.vm(f"buffer_load_dwordx4 v[{SBR}:{SBR+3}], v30, {WSRD}, 0 offen sc1", 's1bp')
    def s1b_check():
        all_flags_check(SBR, 30, S_N, 's1bp')
        stamp('s1b')
    PREPE = opt.get('prepe', 0)
    def prep_part(rawwait=None):
        PB = 64
        for i in range(4): E(f"v_mov_b32 v{108+i}, -1")
        def trd(n):
            if SPLIT and n >= 7:
                E(f"ds_read_b64_tr_b16 {ar(4*(n-7), 2)}, v{VTR} offset:{1024*n}")
                E(f"ds_read_b64_tr_b16 {ar(4*(n-7)+2, 2)}, v{VTR} offset:{1024*n + 512}")
                return
            E(f"ds_read_b64_tr_b16 v[{PB+4*n}:{PB+4*n+1}], v{VTR} offset:{1024*n}")
            E(f"ds_read_b64_tr_b16 v[{PB+4*n+2}:{PB+4*n+3}], v{VTR} offset:{1024*n + 512}")
        def pst(n):
            if n < 7:
                if n: E(f"s_add_u32 s{S_W1DST}, s{S_W1DST}, 131072")
                E(f"buffer_store_dwordx4 v[{PB+4*n}:{PB+4*n+3}], v{W1D}, {WSRD}, s{S_W1DST} offen sc1")
            else:
                if n > 7: E(f"s_add_u32 s{S_WDDST}, s{S_WDDST}, 229376")
                E(f"buffer_store_dwordx4 v[{PB+4*n}:{PB+4*n+3}], v{WDD}, {WSRD}, s{S_WDDST} offen sc1")
        stamp_dup('xiss')
        if HLATE:
            E(f"""
            s_and_b32 s25, s{S_W}, 1
            s_add_u32 s24, s{S_CB}, s25
            s_lshl_b32 s24, s24, 12
            s_mul_i32 s25, s25, {HC_CH}
            """)
            h_dma(HLATE, 24, 25)
        if rawwait is not None: E(f"s_waitcnt vmcnt({rawwait + 4*len(HLATE)})")
        for n in range(4): trd(n)
        for n in range(11):
            if n + 4 < 11: trd(n + 4)
            if SPLIT and n >= 7: continue
            E(f"s_waitcnt lgkmcnt({2*min(4, 10 - n)})")
            if n >= 7 and opt.get('xnowd'): E(f"buffer_store_dword v{PB}, v{VT0}, {WSRD}, 0 offen offset:64")
            else: pst(n)
        for i in range(4 if not YSPL else 0):
            if i: E(f"s_add_u32 s{S_YP}, s{S_YP}, 262144")
            if opt.get('xnoym'): E(f"buffer_store_dword v{PB}, v{VT0}, {WSRD}, 0 offen offset:64")
            else: E(f"buffer_store_dwordx4 v[108:111], v{VYP}, {WSRD}, s{S_YP} offen sc1")
    def conv():
        lx = E.label('L_xp'); lbx = E.label('L_bx')
        E(f"ds_write_b16 v61, v{HEAD}")
        E(f"s_cmp_ge_u32 s{S_W}, 2\ns_cbranch_scc1 {lx}")
        XG = 64
        def xload(i): return f"buffer_load_dwordx4 v[{XG+4*i}:{XG+4*i+3}], v{VL16}, {WSRD}, s{S_XL + (i >> 2)} offen" + (f" offset:{1024*(i & 3)}" if i & 3 else "") + " sc1"
        NX = 4 if P1 else 8
        for i in range(NX): E(xload(i))
        stamp('xiss')
        ACCc = 192
        for i in range(32): E(f"v_mov_b32 v{ACCc+i}, 0")
        E("s_waitcnt vmcnt(0)")
        marker_check([XG + 4*i for i in range(NX)], xload, 'x')
        stamp('xok')
        if P1:
            for i in range(4): E(f"ds_write_b128 v{VXW}, v[{XG+4*i}:{XG+4*i+3}] offset:{i*1024}")
            for i in range(4):
                if i < 3: E(f"v_mov_b32_dpp v{96+i}, v{XG+4*(i+1)} wave_rol:1 row_mask:0xf bank_mask:0xf")
                else: E(f"v_mov_b32 v{96+i}, 0")
            for i in range(4):
                for d in range(3): E(f"v_alignbit_b32 v{XG+16+4*i+d}, v{XG+4*i+d+1}, v{XG+4*i+d}, 16")
            for i in range(4): E(f"v_mov_b32_dpp v{96+i}, v{XG+4*i} wave_shl:1 row_mask:0xf bank_mask:0xf")
            for i in range(4):
                E(f"v_alignbit_b32 v{XG+16+4*i+3}, v{96+i}, v{XG+4*i+3}, 16")
            for i in range(4): E(f"ds_write_b128 v{VXW}, v[{XG+16+4*i}:{XG+16+4*i+3}] offset:{XR_P + i*1024}")
        else:
            for i in range(8): E(f"ds_write_b128 v{VXW}, v[{XG+4*i}:{XG+4*i+3}] offset:{(i >> 2)*XR_P + (i & 3)*1024}")
        E(f"s_branch {lbx}\n{lx}:")
        if not PREPE: prep_part()
        else: stamp_dup('xiss')
        stamp_dup('xok')
        for i in range(32): E(f"v_mov_b32 v{ACCc+i}, 0")
        if HLATE: E(f"s_waitcnt vmcnt({NPS})")
        S1PRE = opt.get('s1pre', 0)
        if S1PRE:
            assert YSPL
            E(f"s_waitcnt vmcnt(0)\nbuffer_store_dword v{VONE}, v{VS1F}, {WSRD}, s{S_S1F} offen sc1")
        E(f"{lbx}:")
        E("s_waitcnt lgkmcnt(0)")
        E.vmq = []; E.dsq = []
        E("s_barrier")
        stamp('bx')
        def AF(st, g): return 64 + 32*st + 4*g
        def BF(st, u): return 128 + 32*st + 4*u
        def rdA(st, g, rho): return f"ds_read_b128 v[{AF(st,g)}:{AF(st,g)+3}], v{VA_} offset:{512*g + 64*rho}"
        def rdB(st, u, rho): return f"ds_read_b128 v[{BF(st,u)}:{BF(st,u)+3}], v{VB_} offset:{512*(7-u) + 64*rho}"
        pairs = [(t, g) for t in range(8) for g in range(t+1)]
        order = []
        for t in range(8): order.append(('B', t)); order.append(('A', t))
        def mf(st, t, g):
            return f"v_mfma_f32_16x16x32_bf16 v[{ACCc+4*t}:{ACCc+4*t+3}], v[{AF(st,g)}:{AF(st,g)+3}], v[{BF(st,t-g)}:{BF(st,t-g)+3}], v[{ACCc+4*t}:{ACCc+4*t+3}]"
        S1AT = opt.get('s1at', 24); S1POLL = opt.get('s1poll', 96); S1CHK = opt.get('s1chk', 118)
        acts = {}
        def act(i, f): acts.setdefault(i, []).append(f)
        def s1publish():
            if SPLIT: E(f"s_waitcnt vmcnt({len(E.vmq)})")
            else: E("s_waitcnt vmcnt(0)"); E.vmq = []
            E.vm(f"buffer_store_dword v{VONE}, v{VS1F}, {WSRD}, s{S_S1F} offen sc1", 's1st')
        def s1poll():
            E.vm(f"buffer_load_dwordx4 v[24:27], v{VS1P}, {WSRD}, 0 offen sc1", 's1')
            if YSPL and S1BP == 2: s1b_poll()
        def s1check(bar=True):
            all_flags_check(24, VS1P, S_N, 's1')
            if YSPL and S1BP == 2: s1b_check()
            if bar: E("s_barrier")
            stamp('s1')
        def qload():
            E.vm(f"buffer_load_dwordx4 {ar(A_Q, 4)}, v9, s[{S_Q}:{S_Q+3}], s{S_QO} offen" + NT('q'), 'q')
            E.vm(f"buffer_load_dwordx4 {ar(A_Q+4, 4)}, v9, s[{S_Q}:{S_Q+3}], s{S_QO} offen offset:128" + NT('q'), 'q')
        if not S1PRE: act(S1AT, s1publish)
        act(opt.get('qat', 40), qload)
        if SPLIT:
            m0 = opt.get('ymat', 72); sp = opt.get('ymsp', 2)
            if YSPL:
                act(m0 - 1, lambda: E("\n".join(f"v_mov_b32 v{24+i}, -1" for i in range(4)) + "\ns_add_u32 s24, s58, 262144"))
                act(m0, lambda: E.vm(f"buffer_store_dwordx4 v[24:27], v{VYS}, {WSRD}, s58 offen sc1", 'ym'))
                act(m0 + sp, lambda: E.vm(f"buffer_store_dwordx4 v[24:27], v{VYS}, {WSRD}, s24 offen sc1", 'ym'))
            w0 = opt.get('wdpat', m0 + 2*sp)
            for n in range(4):
                act(w0 + n*sp, lambda n=n: (E(f"s_add_u32 s{S_WDDST}, s{S_WDDST}, 229376") if n else None, E.vm(f"buffer_store_dwordx4 {ar(4*n, 4)}, v{WDD}, {WSRD}, s{S_WDDST} offen sc1", 'wds' if WDC else 'ym')))
        def htouch():
            m = opt['ht']
            E(f"v_lshrrev_b32 v246, 3, v8\nv_lshlrev_b32 v246, 12, v246\nv_and_b32 v247, {m}, v8\nv_lshl_add_u32 v246, v247, 7, v246")
            E(f"s_add_u32 s24, s{S_HST}, {WS_H}")
            E(f"s_mov_b32 exec_hi, 0x00ffffff")
            E.vm(f"buffer_load_dword v247, v246, {WSRD}, s24 offen", 'ht')
            E(f"s_mov_b64 exec, -1")
        if 'ht' in opt: act(opt.get('htat', 20), htouch)
        POST = S1CHK >= 1000
        if S1POLL < 1000: act(S1POLL, s1poll)
        B = BK['b'] = make_bulk()
        if not POST:
            act(S1CHK, s1check)
            nm = opt.get('bk_m', 5)
            for k in range(nm): act(S1CHK + 2 + k*opt.get('bk_msp', 4), lambda: B.emit(1))
            assert S1CHK + 2 + nm*opt.get('bk_msp', 4) <= 148
        def do(i):
            for f in acts.pop(i, []): f()
        for rho in range(4):
            st = rho & 1
            nxt = []
            if rho < 3: nxt = [(rdB(st^1, x, rho+1) if k == 'B' else rdA(st^1, x, rho+1)) for (k, x) in order]
            if rho == 0:
                reads = [(rdB(0, x, 0) if k == 'B' else rdA(0, x, 0)) for (k, x) in order]
                for r_ in reads[:14]: E(r_)
                issued = 14; done = 0
                allq = reads + nxt
                for idx, (t, g) in enumerate(pairs):
                    if g == 0:
                        E(f"s_waitcnt lgkmcnt({issued - 2*(t+1)})"); done = 2*(t+1)
                    E(mf(0, t, g))
                    do(idx)
                    if t == 7 and g == 4:
                        done += 6
                        E(f"s_waitcnt lgkmcnt({issued - done})")
                    if issued < len(allq) and issued - done < 14:
                        E(allq[issued]); issued += 1
                assert issued == len(allq)
            else:
                E("s_waitcnt lgkmcnt(0)")
                k = 0
                for idx, (t, g) in enumerate(pairs):
                    E(mf(st, t, g))
                    do(36*rho + idx)
                    if nxt and idx % 2 == 0 and k < 16:
                        E(nxt[k]); k += 1
            if rho < 3: stamp(f'rho{rho+1}')
        for i in sorted(acts): do(i)
        stamp('mfend')
        if opt.get('rot', 0):
            E(f"s_lshr_b32 s25, s{S_C}, 3\ns_lshl_b32 s25, s25, 1\ns_add_u32 s25, s25, s{S_TH}")
            for r_ in range(4):
                E(f"""s_add_u32 s24, s25, {r_}
                s_and_b32 s24, s24, 3
                s_mul_i32 s24, s24, {7*2048}
                s_add_u32 s{S_WDR + r_}, s{S_WDB}, s24""")
        def s1b_publish(fl, tag):
            E(f"s_add_u32 s24, s86, {fl}")
            E.vm(f"buffer_store_dword v{VONE}, v{VT0}, {WSRD}, s24 offen sc1", tag)
        if YSPL and PUBB == 1: E.wait_vm('ym')
        E("s_barrier")
        if YSPL and PUBB == 1: s1b_publish(FL_S1B, 's1b')
        E(f"""
        v_add_u32 v20, s{S_W1K}, v{VL16}
        s_lshl_b32 s24, s{S_W}, 11
        v_add_u32 v21, s24, v{VL16}
        s_nop 4
        """)
        for t in range(8): E.ds(f"ds_write_b128 v20, v[{ACCc+4*t}:{ACCc+4*t+3}] offset:{1024*t}", 'rdw')
        E.wait_ds('rdw')
        if YSPL and PUBB == 0: E.wait_vm('ym')
        if WDC: E.wait_vm('wds')
        if S1CHK == 1002: s1check(bar=False)
        E("s_barrier")
        if YSPL and PUBB == 0: s1b_publish(FL_S1B, 's1b')
        if WDC: s1b_publish(FL_S1C, 's1c')
        stamp('red2')
        if S1POLL == 1000: s1poll()
        if not POST or S1CHK == 1002: B.emit(opt.get('bk_red', 0))
        for tau in range(2):
            for src in range(4):
                E.ds(f"ds_read_b128 v[{64+32*tau+4*src}:{67+32*tau+4*src}], v21 offset:{8192*src + 1024*tau}", f'rdr{tau}')
            for ch in range(2):
                E.ds(f"ds_read_b128 v[{128+8*tau+4*ch}:{131+8*tau+4*ch}], v{VKVW} offset:{ch*XR_CH + 512*(1-tau)}", f'rdr{tau}')
        for tau in range(2):
            E.wait_ds(f'rdr{tau}')
            base = 64 + 32*tau
            for ch in range(2):
                kvr = 128 + 8*tau + 4*ch
                for r in range(4): E(f"v_add_f32 v{base+8*ch+r}, v{base+8*ch+r}, v{base+8*ch+r+4}")
                for d in range(4): E(f"v_lshlrev_b32 v{kvr+d}, 16, v{kvr+d}")
                for r in range(4): E(f"v_fmac_f32 v{base+8*ch+r}, s{60+ch}, v{kvr+3-r}")
            for r in range(4): E(f"v_cvt_pk_bf16_f32 v{148+r}, v{base+r}, v{base+8+r}")
            o = 152 + 4*tau
            E(f"""
            v_mov_b32 v{o}, v150
            v_mov_b32 v{o+1}, v148
            v_mov_b32 v{o+2}, v151
            v_mov_b32 v{o+3}, v149
            v_mov_b32_dpp v{o}, v148 row_ror:8 row_mask:0xf bank_mask:0x3
            v_mov_b32_dpp v{o+1}, v150 row_ror:8 row_mask:0xf bank_mask:0xc
            v_mov_b32_dpp v{o+2}, v149 row_ror:8 row_mask:0xf bank_mask:0x3
            v_mov_b32_dpp v{o+3}, v151 row_ror:8 row_mask:0xf bank_mask:0xc
            """)
            if tau == 1: E(f"s_add_u32 s58, s58, 262144")
            E.vm(f"buffer_store_dwordx4 v[{o}:{o+3}], v{VYS}, {WSRD}, s58 offen " + opt.get('flyst', 'sc1').replace('+', ' '), 'yst')
        stamp('yst')
        if opt.get('xyack'): E.wait_vm('yst'); stamp('yack')
        if S1POLL == 1001: s1poll()
        if POST and S1CHK != 1002: s1check()

    def rest():
        conv()
        B = BK['b']
        def yload(i):
            c2, k = i >> 2, i & 3
            return f"buffer_load_dword v{Y+i}, v10, {WSRD}, s{59 if c2 == 0 else 24} offen" + (f" offset:{512*k}" if k else "") + " sc1"
        E("s_add_u32 s24, s59, 16384")
        if opt.get('xw1t'):
            B.emit(4); E("s_waitcnt vmcnt(10)"); stamp('w4')
            B.emit(4); E("s_waitcnt vmcnt(10)"); stamp('w8'); E("s_waitcnt vmcnt(8)"); stamp('wy')
            B.emit(4); E("s_waitcnt vmcnt(8)"); stamp('w12')
            B.emit(4); E("s_waitcnt vmcnt(8)"); stamp('w16'); E("s_waitcnt vmcnt(4)"); stamp('w20'); E("s_waitcnt vmcnt(0)"); stamp('w24')
        if YSPL and S1BP == 0: s1b_poll()
        B.emit(opt.get('bk_a', 0))
        stamp('bka')
        if YSPL and S1BP == 1: s1b_poll()
        Q16 = S1BP == 3 or opt.get('wcr', 0)
        if Q16: E(f"v_lshrrev_b32 v30, 2, v8\nv_lshlrev_b32 v30, 7, v30\nv_and_b32 v31, 3, v8\nv_lshl_add_u32 v30, v31, 2, v30\ns_lshl_b32 s25, s{S_W}, 11\nv_add_u32 v30, s25, v30")
        if YSPL and S1BP == 3: q16_poll(FL_S1B, 's1b')
        if YSPL and S1BP != 2:
            B.emit(opt.get('bk_b', 0))
            stamp('bkb')
            if S1BP != 3: s1b_check()
        def yissue():
            if opt.get('xnoy'): E(f"v_mov_b32 v10, 0")
            for i in range(8): E.vm(yload(i) if opt.get('ysc', 1) else yload(i).replace(' sc1', ''), 'y')
            stamp('yiss')
            if WDC and opt.get('wcr', 0): q16_poll(FL_S1C, 's1c')
            B.emit(opt.get('bk_y', 0))
            stamp('bky')
        if S1BP != 3:
            yissue()
            assert 'w1_3' not in E.seen, 'slot 0 is still in use'
        for i in range(8): E(f"v_accvgpr_read_b32 v{X+i}, a{A_Q+i}")
        if S1BP == 3:
            assert 'w1_3' not in E.seen, 'slot 0 is still in use'
            R_pre(0, pre=lambda: q16_check(FL_S1B, 's1b'), between=yissue)
        else: R_pre(0)
        stamp('qst')
        B.emit(opt.get('bk_q', 0))
        E.wait_vm('y')
        marker_check([Y + i for i in range(8)], yload, 'y')
        stamp('yok')
        B.emit(opt.get('bk_r0', 16))
        for i in range(8): E(f"v_accvgpr_write_b32 a{A_Y+i}, v{Y+i}")
        def w1left():
            n = 0; k = 0
            for o in B.ops:
                if o[1]:
                    k += 1
                    if getattr(o[2], 'info', None) is None: n = k
            return n
        R_post(0, early=lambda: B.emit(max(opt.get('bk_r1', 0), w1left())), late=None, pre=(lambda: q16_check(FL_S1C, 's1c')) if WDC and opt.get('wcr', 0) else None)
        assert all(('w1_%d' % p) in E.seen for p in range(4)) and not any(getattr(o[2], 'info', None) is None for o in B.ops), 'W1 tiles 0..3 must be under way before the XN stores'
        Rpub(0)
        layer(0)
        poll_issue(VP8, S_FX2L, 0, 'px2')
        if P1:
            unpack(T, 20, 8)
            E(f"""s_lshr_b32 s24, s{S_C}, 3
            s_mul_i32 s24, s24, {7*131072}
            s_and_b32 s25, s{S_C}, 7
            s_lshl_b32 s25, s25, 17
            s_sub_u32 s24, s24, s25
            s_add_u32 s{S_XMD}, s24, {WS_Y}""")
        poll_check(VP8, S_FX2L, 0, 'px2')
        for r_, c_ in ((S_FXNS, 16*256), (S_FXNL, 16*256), (S_FHS, 16*1024), (S_FHL, 16*1024)): E(f"s_add_u32 s{r_}, s{r_}, {c_}")
        stamp('x2ok')
        sadd(S_T0, S_R, WS_XN); sadd(S_T1, S_R, WS_XN + 4096)
        E.vm(f"buffer_load_dwordx4 v[{X}:{X+3}], v{VR}, {WSRD}, s{S_T0} offen" + LSC, 'x2l')
        E.vm(f"buffer_load_dwordx4 v[{X+4}:{X+7}], v{VR}, {WSRD}, s{S_T1} offen" + LSC, 'x2l')
        for i in range(8): E(f"v_accvgpr_read_b32 v{Y+i}, a{A_Y+i}")
        E.wait_vm('x2l')
        R_pre(1)
        R_post(1)
        Rpub(1)
        layer(1)
        E.wait_vm_all()

    def s0cmp(val): return "\n".join([f"v_xor_b32 v{S0R+i}, s{val}, v{S0R+i}" for i in range(4)] +
                                     [f"v_or3_b32 v{S0R}, v{S0R}, v{S0R+1}, v{S0R+2}", f"v_or_b32 v{S0R}, v{S0R}, v{S0R+3}"])
    if PREPE:
        assert RAWPOS >= 1 and E.vm_after('s0') == NKV
        E(f"s_cmp_lt_u32 s{S_W}, 2\ns_cbranch_scc1 L_pe0")
        prep_part(rawwait=1 + NKV)
        E(f"s_waitcnt vmcnt({NKV + 4*len(HLATE) + NPS})\ns_branch L_pe1\nL_pe0:")
        if S0SC:
            E(f"""s_and_b32 s24, s{S_XCC}, 7
            s_mul_i32 s25, s24, s24
            s_lshl_b32 s25, s25, 16
            s_lshl_b32 s24, s24, 6
            s_add_u32 s24, s24, s25
            s_add_u32 s24, s24, 1
            s_lshl_b32 s24, s24, 5
            s_waitcnt lgkmcnt(0)
            s_cmp_eq_u32 s29, s24
            {'' if force_slow else 's_cbranch_scc1 L_s0b'}
            buffer_load_dwordx4 v[{S0R}:{S0R+3}], v30, {WSRD}, 0 offen sc1
            {f's_add_u32 s{S_EXP}, s{S_EXP}, {1 << 24}' if stamps and opt.get('cnt') else ''}
            s_waitcnt vmcnt(0)
            L_pe1:""")
        elif opt.get('xnos0'): E("s_branch L_s0b\nL_pe1:")
        else: E(f"s_waitcnt vmcnt({NKV})\nL_pe1:")
        E.vmq = []
    else: E.wait_vm('s0')
    E(s0cmp(S_XCC))
    E(f"v_cmp_ne_u32 vcc, 0, v{S0R}")
    E("s_branch L_s0s" if force_slow else "s_cbranch_vccnz L_s0s")
    E("L_s0b:")
    E.out_of_line(f"""
    L_s0s:
    s_mov_b32 s{S_T3}, 0
    L_s0l:
    v_cmp_lt_u32 vcc, 7, v{S0R}
    s_cmp_gt_u32 s{S_T3}, 0x2000
    s_cbranch_vccz L_slow
    s_cbranch_scc1 L_s0b
    buffer_load_dwordx4 v[{S0R}:{S0R+3}], v30, {WSRD}, 0 offen sc1
    s_add_u32 s{S_T3}, s{S_T3}, 1
    {f's_add_u32 s{S_EXP}, s{S_EXP}, {1 << 24}' if stamps and opt.get('cnt') else ''}
    s_waitcnt vmcnt(0)
    {s0cmp(S_XCC)}
    v_cmp_ne_u32 vcc, 0, v{S0R}
    {'s_branch L_s0l' if force_slow else 's_cbranch_vccnz L_s0l'}
    s_branch L_s0b""")
    stamp('s0')
    Efast = E
    Es = Emit(); Es.vmq = []; Es.dsq = list(E.dsq); Es.seen = set(E.seen); Es.nl = 100000
    E = Es; MODE['slow'] = True
    E(f"""
    L_slow:
    s_mov_b32 s{S_EXP}, 2
    s_waitcnt vmcnt(0)
    buffer_wbl2 sc1
    s_waitcnt vmcnt(0)
    s_barrier
    s_add_u32 s24, s86, {FL_S0B}
    buffer_store_dword v{VONE}, v{VT0}, {WSRD}, s24 offen sc1
    s_mov_b32 s25, {FL_S0B - FL_S0}
    s_mov_b32 s{S_T3}, 0
    L_s0bl:
    buffer_load_dwordx4 v[{S0R}:{S0R+3}], v30, {WSRD}, s25 offen sc1
    s_add_u32 s{S_T3}, s{S_T3}, 1
    s_waitcnt vmcnt(0)
    {s0cmp(S_N)}
    v_cmp_ne_u32 vcc, 0, v{S0R}
    s_cmp_gt_u32 s{S_T3}, 0x2000
    s_cbranch_scc1 L_s0bx
    s_cbranch_vccnz L_s0bl
    L_s0bx:
    buffer_inv sc1
    s_waitcnt vmcnt(0)
    """)
    rest()
    E("s_branch L_fin")
    E = Efast; MODE['slow'] = False
    rest()
    E("L_fin:")
    if stamps:
        stamp('end')
        n = len(names)
        E("s_memrealtime s[24:25]")
        E("s_waitcnt lgkmcnt(0)")
        for k in (n - 2, n - 1): E(f"v_writelane_b32 v{VSTAMP}, s{SP[k & 1]}, {k}")
        E(f"""
        v_writelane_b32 v{VSTAMP}, s100, 61
        v_writelane_b32 v{VSTAMP}, s24, 62
        v_writelane_b32 v{VSTAMP}, s{S_EXP}, 63
        s_lshl_b32 s25, s2, 10
        s_lshl_b32 s26, s{S_W}, 8
        s_add_u32 s25, s25, s26
        s_add_u32 s25, s25, {WS_STAMP}
        v_lshrrev_b32 v20, 2, v{VL16}
        buffer_store_dword v{VSTAMP}, v20, {WSRD}, s25 offen
        s_waitcnt vmcnt(0)
        """)
        assert n < 60
        print('k3 stamps:', ','.join(names))
        open('last_stamps.txt', 'w').write(','.join(names))
    E("L_end:")
    E("s_endpgm")
    main = hazard_pass(E.L[1:], verbose=opt.get('verbose', False))
    tail = list(E.tail) + ['L_codeend:'] + hazard_pass(Es.L) + list(Es.tail)
    txt = E.L[0] + '\n' + '\n'.join(('    ' + l if not l.endswith(':') else l) for l in main) + '\n'
    txt += '\n'.join(('    ' + l if not l.endswith(':') else l) for l in tail) + '\n'
    txt += "    s_endpgm\n"
    return txt + kd(name, 512, 102, accum=256)

if __name__ == '__main__':
    st = 'stamps' in sys.argv; slow = 'slow' in sys.argv
    opt = {'verbose': 'v' in sys.argv}
    for a in sys.argv[2:]:
        if '=' in a:
            k_, v_ = a.split('=')
            opt[k_] = v_.split(',') if k_ == 'st' else (v_ if k_.startswith('fl') else int(v_))
    kname = NAME + '_kernel'
    txt = KERNARG_COMMENT
    txt += f"; @launch grid=(256,1,1) block=(256,1,1) lds={K1_LDS}\n"
    txt += TARGET + gen(kname, stamps=st, force_slow=slow, opt=opt)
    txt += ".text\n.fill 64, 4, 0xbf800000\n"
    open(sys.argv[1], 'w').write(txt)
```

```python
import sys
sys.path.insert(0, 'gen')
from emit import *
from layout3 import *
from common import head, kd, TARGET, KERNARG_COMMENT, NAME

K1_LDS = 163840
SLOT = 32768
SCR = SLOT
STATS = SLOT + 24576
OOB = 0x80000000
VL16, VA1, VA2, VP8, VP16, VF0, VR = 1, 2, 3, 4, 5, 6, 7
VSTW, VSTR = 11, 12
VRW = [13, 14, 15]; VRR = 16
VPOLL, VONE, VSTAMP = 17, 18, 19
RING = 32
ACC = [64, 80, 96, 112]
XR = 128
A_WD = 0; A_Y = 224; A_T4 = 232
S_WS = 4; S_Q = 8; S_OUT = 12
S_W, S_ROLE, S_C, S_TH, S_J, S_EXP, S_XCC, S_W1K = 16, 17, 18, 19, 20, 21, 22, 23
S_R, S_XNL, S_HST, S_HLD, S_XML, S_W1, S_FXNS, S_FXNL, S_FHS, S_FHL, S_FX2S, S_FX2L = range(34, 46)
S_T0, S_T1, S_T2, S_T3, S_HI = 46, 47, 48, 49, 31
S_LN2 = 98
S_DA, S_XA = 50, 3
S_HA = [96, 97]; S_HS = [94, 95]
LA = 6
def vr(b, n=1): return f"v{b}" if n == 1 else f"v[{b}:{b+n-1}]"
def ar(b, n=1): return f"a{b}" if n == 1 else f"a[{b}:{b+n-1}]"

LAYERS = [
    dict(tau=[0, 1, 2, 3, 4, 5, 6], slot=[2, 3, 4, 0, 1, 2, 3]),
    dict(tau=[5, 6, 2, 3, 4, 0, 1], slot=[2, 3, 4, 0, 1, 2, 3]),
]
LOG2E = 0x3fb8aa3b; LN2 = 0x3f317218
A_H = 236

S_N = 51
VWD = 28
S_WDB = 30
S_WDR = 64
A_Q = 232
HC_J = 4160; HC_CH = 4*HC_J
XRB = 2*HC_CH
XR_P = 4640; XR_CH = 9472
TBS = 1056
KT = 2*SLOT; VT = KT + 9*TBS
PST = 3*SLOT
S_QO, S_PST = 87, 94
S_G, S_M, S_CB, S_CP, S_D, S_E = 88, 89, 84, 85, 62, 63
POISON = 0xffffffff


def gen(name, stamps=False, force_slow=False, opt=None):
    opt = opt or {}
    E = Emit()
    LSC = ' sc1' if opt.get('lsc', 1) else ''
    names = []
    DEF = ['start', 'join', 'b0', 'kvst', 's0', 'xiss', 'prep', 'xok', 'bx', 'rho1', 'rho2', 'rho3', 's1', 'mfend', 'red2', 'yst', 'qst', 'yok', 'R0st', 'R0pub', 'L0xnok', 'L0g1', 'L0s96', 'L0s224', 'L0g2end', 'L0st', 'x2ok', 'R1st', 'R1pub', 'L1xnok', 'L1g1', 'L1s96', 'L1s224', 'L1g2end', 'L1st', 'end']
    enabled = set(opt.get('st', DEF)) | {'start', 'end'}
    MODE = {'slow': False}
    SP = [90, 92]
    def stamp(nm):
        if stamps and nm in enabled and not MODE['slow']:
            n = len(names); names.append(nm)
            if n >= 2: E(f"v_writelane_b32 v{VSTAMP}, s{SP[n & 1]}, {n-2}")
            E(f"s_memtime s[{SP[n & 1]}:{SP[n & 1]+1}]")
    def stamp_dup(nm):
        if stamps and nm in names and not MODE['slow']:
            n = names.index(nm)
            if n >= 2: E(f"v_writelane_b32 v{VSTAMP}, s{SP[n & 1]}, {n-2}")
            E(f"s_memtime s[{SP[n & 1]}:{SP[n & 1]+1}]")
    WSRD = f"s[{S_WS}:{S_WS+3}]"
    def NT(k): return ' nt' if (opt.get('nt', 0) >> 'trhq'.index(k)) & 1 else ''
    def FL(kind, L):
        v = opt.get(f'fl{kind}{L}', opt.get(f'fl{kind}', ''))
        return (' ' + v.replace('+', ' ')) if v else ''

    def sadd(dst, base, const):
        if const == 0: E(f"s_mov_b32 s{dst}, s{base}")
        else: E(f"s_add_u32 s{dst}, s{base}, {const}")
    def dma_stream(tau, slot, tag, ilist=range(8)):
        ops = []; cur = None
        for i in ilist:
            if cur != (i >> 2):
                cur = i >> 2
                ops.append((4, False, lambda g=cur: E(f"s_add_u32 m0, s{S_W1K}, {slot*SLOT + g*4096}")))
                ops.append((4, False, lambda g=cur: sadd(S_DA, S_W1, tau*32768 + g*4096)))
            off = (i & 3)*1024
            k_ = 1 if tag.startswith('w1_') else 2 if tag.endswith('0') else 4
            ops.append((4, True, lambda off=off, k_=k_: E.vm(f"buffer_load_dwordx4 v{VL16}, {WSRD}, s{S_DA} offen" + (f" offset:{off}" if off else "") + (" nt" if opt.get('w1nt', 0) & k_ else "") + " lds", tag)))
        return ops
    def wd_stream(kps):
        ops = []
        for kp in kps:
            if opt.get('rot', 0): f = lambda kp=kp: E(f"s_add_u32 s26, s{S_WDR + kp//7}, {(kp % 7)*2048}")
            else: f = lambda kp=kp: E(f"s_add_u32 s26, s{S_WDB}, {kp*2048}")
            f.info = ('wd', kp); ops.append((4, False, f))
            for pd in range(2):
                f = lambda kp=kp, pd=pd: E.vm(f"buffer_load_dwordx4 {ar(A_WD + 8*kp + 4*pd, 4)}, v{VWD+pd}, {WSRD}, s26 offen" + (LSC if opt.get('wdsc', 1) else '') + (' nt' if opt.get('wdnt', 0) else ''), f'wd{kp}')
                f.info = ('wd', kp); ops.append((4, True, f))
        return ops
    class Bulk:
        def __init__(self, ops): self.ops = list(ops)
        def take(self, n):
            out = []
            while n > 0 and self.ops:
                o = self.ops.pop(0); out.append(o)
                if o[1]: n -= 1
            return out
        def emit(self, n):
            for (_, _, f) in self.take(n): f()
            assert not self.ops or not self.ops[0][1] or getattr(self.ops[0][2], 'info', None) is None, 'Wd loads come in pairs'
        def left(self): return sum(1 for o in self.ops if o[1])
    def publish(sbase, const, tag, wait=True):
        o = f" offset:{const}" if const else ""
        if MODE['slow']:
            E.wait_vm_all()
            E("buffer_wbl2 sc1\ns_waitcnt vmcnt(0)")
            E.vm(f"buffer_store_dword v{VONE}, v{VF0}, {WSRD}, s{sbase} offen{o} sc1", None)
            return
        if wait: E.wait_vm(tag)
        E.vm(f"buffer_store_dword v{VONE}, v{VF0}, {WSRD}, s{sbase} offen{o}", None)
    def poll_issue(voff, sbase, const, tag, dst=VPOLL):
        o = f" offset:{const}" if const else ""
        if MODE['slow']: E.seen.add(tag); return
        E.vm(f"buffer_load_dword v{dst}, v{voff}, {WSRD}, s{sbase} offen{o} sc1", tag)
    def poll_check(voff, sbase, const, tag, dst=VPOLL, wait=True):
        o = f" offset:{const}" if const else ""
        ls = E.label('L_polls'); lb = E.label('L_pollb'); ll = E.label('L_polll')
        if MODE['slow']:
            E.wait_vm_all()
            E(f"""
            s_mov_b32 s{S_T3}, 0
            {ll}:
            buffer_inv sc1
            s_waitcnt vmcnt(0)
            buffer_load_dword v{dst}, v{voff}, {WSRD}, s{sbase} offen{o} sc1
            s_add_u32 s{S_T3}, s{S_T3}, 1
            s_waitcnt vmcnt(0)
            v_cmp_ne_u32 vcc, s{S_N}, v{dst}
            s_cmp_gt_u32 s{S_T3}, 0x2000
            s_cbranch_scc1 {lb}
            s_cbranch_vccnz {ll}
            {lb}:
            buffer_inv sc1
            s_waitcnt vmcnt(0)""")
            return
        if wait: E.wait_vm(tag)
        E(f"v_cmp_ne_u32 vcc, s{S_N}, v{dst}")
        E(f"s_cbranch_vccnz {ls}")
        E(f"{lb}:")
        E.out_of_line(f"""
        {ls}:
        s_mov_b32 s{S_T3}, 0
        {ll}:
        buffer_load_dword v{dst}, v{voff}, {WSRD}, s{sbase} offen{o} sc1
        s_add_u32 s{S_T3}, s{S_T3}, 1
        s_waitcnt vmcnt(0)
        v_cmp_ne_u32 vcc, s{S_N}, v{dst}
        s_nop 4
        s_cbranch_vccz {lb}
        s_cmp_lt_u32 s{S_T3}, 0x2000
        s_cbranch_scc1 {ll}
        s_branch {lb}""")
    def all_flags_check(dst, voff, sval, tag, lim=0x2000):
        ls = E.label('L_afs'); lb = E.label('L_afb'); ll = E.label('L_afl')
        def cmp4():
            return "\n".join([f"v_xor_b32 v{dst+i}, s{sval}, v{dst+i}" for i in range(4)] +
                             [f"v_or3_b32 v{dst}, v{dst}, v{dst+1}, v{dst+2}", f"v_or_b32 v{dst}, v{dst}, v{dst+3}", f"v_cmp_ne_u32 vcc, 0, v{dst}"])
        E.wait_vm(tag)
        E(cmp4())
        E(f"s_cbranch_vccnz {ls}\n{lb}:")
        E.out_of_line(f"""
        {ls}:
        s_mov_b32 s{S_T3}, 0
        {ll}:
        buffer_load_dwordx4 v[{dst}:{dst+3}], v{voff}, {WSRD}, 0 offen sc1
        s_add_u32 s{S_T3}, s{S_T3}, 1
        {f's_add_u32 s{S_EXP}, s{S_EXP}, {1 << (12 if tag == "s1" else 18)}' if stamps and opt.get('cnt') else ''}
        s_waitcnt vmcnt(0)
        {cmp4()}
        s_nop 4
        s_cbranch_vccz {lb}
        s_cmp_lt_u32 s{S_T3}, {lim}
        s_cbranch_scc1 {ll}
        s_branch {lb}""")

    KSRD, VSRD, HSRD, PSRD, WDSRD = "s[52:55]", "s[64:67]", "s[76:79]", "s[68:71]", "s[52:55]"
    VPS, VPW = 224, 225
    VFT = 231
    SPLIT = opt.get('split', 0)
    YSPL = SPLIT == 1
    YL = opt.get('yl', 32); assert YL in (32, 16, 8) and (YL == 32 or YSPL)
    VYS_ = 249
    if YL == 32:
        YLD = "v_lshlrev_b32 v10, 12, v22\nv_lshl_add_u32 v10, v21, 11, v10\nv_lshl_add_u32 v10, v20, 2, v10"
        YST = f"""v_lshl_add_u32 v{VYS_}, v31, 7, v{VYS_}
        v_lshl_add_u32 v{VYS_}, v23, 5, v{VYS_}
        v_lshl_add_u32 v{VYS_}, v21, 4, v{VYS_}    ; (n'>>2)*131072 + (n'&3)*128 + g*32 + par'*16
        s_lshl_b32 s24, s85, 9
        s_lshl_b32 s25, s{S_W}, 19
        s_add_u32 s24, s24, s25
        s_add_u32 s58, s24, {WS_Y}               ; + cp*512 + 2w*262144
        s_lshl_b32 s24, s{S_C}, 17
        s_lshl_b32 s25, s{S_ROLE}, 5
        s_add_u32 s24, s24, s25
        s_lshl_b32 s25, s{S_W}, 15
        s_add_u32 s24, s24, s25
        s_add_u32 s59, s24, {WS_Y}               ; + c*131072 + role*32 + 64w*512"""
        YC2, YK = 16384, 512
    elif YL == 16:
        YLD = "v_lshlrev_b32 v10, 9, v22\nv_lshl_add_u32 v10, v21, 6, v10\nv_lshl_add_u32 v10, v20, 2, v10"
        YST = f"""v_lshl_add_u32 v{VYS_}, v31, 15, v{VYS_}
        v_lshrrev_b32 v31, 1, v23
        v_lshl_add_u32 v{VYS_}, v31, 14, v{VYS_}
        v_and_b32 v31, 1, v23
        v_lshl_add_u32 v{VYS_}, v31, 5, v{VYS_}
        v_lshl_add_u32 v{VYS_}, v21, 4, v{VYS_}    ; (n'>>2)*131072 + (2 (n'&3) + (g>>1))*16384 + (g&1)*32 + par'*16
        s_lshr_b32 s24, s85, 3
        s_lshl_b32 s24, s24, 9
        s_and_b32 s25, s85, 3
        s_lshl_b32 s25, s25, 7
        s_add_u32 s24, s24, s25
        s_bfe_u32 s25, s85, 0x10002
        s_lshl_b32 s25, s25, 6
        s_add_u32 s24, s24, s25
        s_lshl_b32 s25, s{S_W}, 19
        s_add_u32 s24, s24, s25
        s_add_u32 s58, s24, {WS_Y}
        s_lshl_b32 s24, s{S_C}, 17
        s_lshr_b32 s25, s{S_ROLE}, 1
        s_lshl_b32 s25, s25, 14
        s_add_u32 s24, s24, s25
        s_and_b32 s25, s{S_ROLE}, 1
        s_lshl_b32 s25, s25, 5
        s_add_u32 s24, s24, s25
        s_lshl_b32 s25, s{S_W}, 12
        s_add_u32 s24, s24, s25
        s_add_u32 s59, s24, {WS_Y}"""
        YC2, YK = 2048, 128
    else:
        YLD = "v_lshrrev_b32 v10, 1, v22\nv_lshlrev_b32 v10, 9, v10\nv_and_b32 v31, 1, v22\nv_lshl_add_u32 v10, v31, 6, v10\nv_lshl_add_u32 v10, v21, 5, v10\nv_lshl_add_u32 v10, v20, 2, v10"
        YST = f"""v_lshl_add_u32 v{VYS_}, v31, 15, v{VYS_}
        v_lshl_add_u32 v{VYS_}, v23, 13, v{VYS_}
        v_lshl_add_u32 v{VYS_}, v21, 4, v{VYS_}    ; (n'>>2)*131072 + (4 (n'&3) + g)*8192 + par'*16
        s_lshr_b32 s24, s85, 4
        s_lshl_b32 s24, s24, 9
        s_and_b32 s25, s85, 3
        s_lshl_b32 s25, s25, 7
        s_add_u32 s24, s24, s25
        s_bfe_u32 s25, s85, 0x20002
        s_lshl_b32 s25, s25, 5
        s_add_u32 s24, s24, s25
        s_lshl_b32 s25, s{S_W}, 19
        s_add_u32 s24, s24, s25
        s_add_u32 s58, s24, {WS_Y}
        s_lshl_b32 s24, s{S_C}, 17
        s_lshl_b32 s25, s{S_ROLE}, 13
        s_add_u32 s24, s24, s25
        s_lshl_b32 s25, s{S_W}, 11
        s_add_u32 s24, s24, s25
        s_add_u32 s59, s24, {WS_Y}"""
        YC2, YK = 1024, 128
    WDC = SPLIT == 2 or (SPLIT and opt.get('wdc', 0))
    PUBB = opt.get('pubb', 0)
    S1BP = opt.get('s1bp', 0)
    NPS = 7 if YSPL else 11 if SPLIT else 15
    FL_S1B = 0x6000; FL_S1C = 0x18000
    P1 = opt.get('p1', 0)
    GSH = 18 if P1 else 19
    NKV = 2 if P1 else 4
    MKALL = opt.get('mkall', 0)
    assert MKALL or not P1
    MKPOS = opt.get('mkpos', 0)
    MKW = opt.get('mkw', 0)
    MKF = '' if MKALL == 2 else ' sc1'
    MKPRE = "" if not MKALL else f"""v_lshlrev_b32 v33, 12, v21
    v_lshl_add_u32 v33, v22, 4, v33
    v_mov_b32 v36, -1
    v_mov_b32 v37, -1
    v_mov_b32 v38, -1
    v_mov_b32 v39, -1
    s_lshl_b32 s95, s{S_G}, {GSH}
    s_lshl_b32 s27, s{S_M}, 7
    s_sub_u32 s95, s95, s27
    s_lshl_b32 s27, s{S_W}, {(18 if MKW else 17) - P1}
    s_add_u32 s95, s95, s27
    s_add_u32 s95, s95, {WS_KVT + 3968}"""
    def markers4(fix=True):
        if fix: E(srd_fix(S_WS, WS_SRD_BYTES))
        n = (8 if MKW else 4) >> P1
        if MKW: E(f"s_cmp_ge_u32 s{S_W}, 2\ns_cbranch_scc1 L_mkw")
        for i in range(n if not opt.get('nomk') else 0):
            E(f"buffer_store_dwordx4 v[36:39], v33, {WSRD}, s95 offen{MKF}")
            if i < n - 1: E("s_add_u32 s95, s95, 32768")
        if MKW: E("L_mkw:")
    def srd_fix(b, size): return f"s_and_b32 s{b+1}, s{b+1}, 0xffff\ns_mov_b32 s{b+2}, {size}\ns_mov_b32 s{b+3}, 0x20000"
    E.L.append(head(name).rstrip())
    E(f"""
    s_cmp_ge_u32 s2, 256
    s_cbranch_scc1 L_end
    s_load_dwordx2 s[52:53], s[0:1], 8
    s_load_dwordx2 s[64:65], s[0:1], 16
    s_load_dwordx2 s[4:5], s[0:1], 96
    s_load_dwordx8 s[56:63], s[0:1], 24
    s_load_dwordx8 s[68:75], s[0:1], 56
    s_load_dwordx2 s[8:9], s[0:1], 0
    """)
    S0SC = opt.get('s0sc', 0)
    if S0SC: E("s_load_dwordx2 s[96:97], s[0:1], 88")
    if stamps: E("s_memrealtime s[100:101]")
    stamp('start')
    E(f"""
    v_lshrrev_b32 v20, 6, v0
    v_and_b32 v8, 63, v0                     ; lane
    s_and_b32 s{S_G}, s2, 7
    s_lshr_b32 s{S_M}, s2, 3
    v_readfirstlane_b32 s{S_W}, v20
    v_lshlrev_b32 v{VL16}, 4, v8
    v_lshrrev_b32 v21, 3, v8
    v_and_b32 v22, 7, v8
    s_lshl_b32 s{S_CB}, s{S_G}, 6
    s_lshl_b32 s24, s{S_M}, 1
    s_add_u32 s{S_CB}, s{S_CB}, s24
    s_lshl_b32 s24, s{S_G}, 9
    s_lshl_b32 s25, s{S_W}, 7
    s_add_u32 s24, s24, s25
    v_lshlrev_b32 v30, 4, v21
    v_add_u32 v30, s24, v30
    ; raw weight blocks (waves 2 and 3): 8 rows x 128 bytes each
    s_lshr_b32 s24, s2, 2                    ; kg
    s_and_b32 s25, s2, 3                     ; fq
    s_mul_i32 s26, s24, 28672
    s_mul_i32 s27, s25, 896
    s_add_u32 s26, s26, s27
    v_mul_u32_u24 v{VPS}, 3584, v21
    v_lshl_add_u32 v{VPS}, v22, 4, v{VPS}
    v_add_u32 v{VPS}, s26, v{VPS}
    v_lshlrev_b32 v{VPW}, 10, v21
    v_lshl_add_u32 v{VPW}, v22, 4, v{VPW}
    s_and_b32 s25, s{S_W}, 1
    s_lshl_b32 s26, s2, 13
    s_lshl_b32 s27, s25, 9
    s_add_u32 s26, s26, s27
    v_add_u32 v{VPW}, s26, v{VPW}
    s_mul_i32 s26, s25, {11*1024}
    s_add_u32 s{S_PST}, s26, {PST}
    {MKPRE}
    s_cmp_eq_u32 s{S_W}, 3
    s_cbranch_scc1 L_w3
    ; k / v staging tiles: row = lane >> 3, 16-byte segment = lane & 7
    v_lshlrev_b32 v32, 10, v21
    v_lshl_add_u32 v32, v22, 4, v32
    s_lshl_b32 s24, s{S_M}, 16
    s_lshl_b32 s25, s{S_G}, 7
    s_add_u32 s24, s24, s25
    v_add_u32 v32, s24, v32
    s_cmp_eq_u32 s{S_W}, 2
    s_cbranch_scc1 L_w2
    s_cmp_eq_u32 s{S_W}, 1
    s_cbranch_scc1 L_w1
    """)
    SK = 56
    def skload(): E(f"global_load_dwordx4 v[{SK}:{SK+3}], v30, s[56:57]")
    def h_dma(js, sch, slds):
        for j in js:
            E(f"s_add_u32 s26, s{sch}, {4 + 4*j}\ns_add_u32 m0, s{slds}, {j*HC_J + 64}\ns_nop 0")
            for q_ in range(4):
                E(f"buffer_load_dwordx4 v{VL16}, {HSRD}, s26 offen" + (f" offset:{1024*q_}" if q_ else "") + NT('h') + " lds")
    def prep_dma():
        for i in range(7):
            E(f"s_add_u32 m0, s{S_PST}, {1024*i - 128*i}")
            E(f"s_nop 0\nbuffer_load_dwordx4 v{VPS}, {PSRD}, 0 offen" + (f" offset:{128*i}" if i else "") + NT('r') + " lds")
        for i in range(4):
            E(f"s_add_u32 m0, s{S_PST}, {1024*(7+i) - 128*i}")
            E(f"s_nop 0\nbuffer_load_dwordx4 v{VPW}, {WDSRD}, 0 offen" + (f" offset:{128*i}" if i else "") + NT('r') + " lds")
    HEARLY = [0, 1, 2, 3] if opt.get('hpos', 0) == 0 else [0]
    HLATE = [j for j in range(4) if j not in HEARLY]
    def tile_path(lst):
        for j, (kind, blk) in enumerate(lst):
            c = (blk*8192 - (4096 if kind == 'k' else 1024)) & 0xffffffff
            E(f"v_add_u32 v{40+j}, {c:#x}, v32")
        E("s_waitcnt lgkmcnt(0)")
        E(f"s_load_dword s{S_E}, s[4:5], {FL_EPOCH}")
        if MKALL and MKPOS == 0: markers4()
        if any(k == 'k' for k, _ in lst): E(srd_fix(52, 2097152))
        if any(k == 'v' for k, _ in lst): E(srd_fix(64, 2097152))
        for j, (kind, blk) in enumerate(lst):
            E(f"s_mov_b32 m0, {(KT if kind == 'k' else VT) + blk*TBS}\ns_nop 0")
            E(f"buffer_load_dwordx4 v{40+j}, {KSRD if kind == 'k' else VSRD}, 0 offen{NT('t')} lds")
    tile_path([('k', b) for b in range(6)])
    E("s_branch L_w01\nL_w1:")
    tile_path([('k', b) for b in (6, 7, 8)] + [('v', b) for b in (0, 1, 2)])
    E("L_w01:")
    stamp('e1'); stamp('e2')
    skload()
    E(f"""
    s_mov_b32 s76, s58
    s_mov_b32 s77, s59
    {srd_fix(76, 2097152)}
    s_add_u32 s24, s{S_CB}, s{S_W}
    s_lshl_b32 s24, s24, 12                  ; channel * 4096
    s_mul_i32 s25, s{S_W}, {HC_CH}
    """)
    h_dma(HEARLY, 24, 25)
    RT = opt.get('rtouch', 0)
    def rtouch():
        E(f"buffer_load_dword v233, v233, {PSRD}, 0 offen")
        E(f"buffer_load_dword v234, v234, {WDSRD}, 0 offen")
    if RT:
        E(f"""
        s_cmp_eq_u32 s{S_W}, 1
        s_cselect_b32 s68, s70, s68
        s_cselect_b32 s69, s71, s69
        {srd_fix(68, 1835008)}
        s_mov_b32 s52, s72
        s_mov_b32 s53, s73
        {srd_fix(52, 1835008)}
        s_lshr_b32 s24, s2, 2
        s_add_u32 s24, s24, 32
        s_mul_i32 s24, s24, 28672
        s_and_b32 s25, s2, 3
        s_mul_i32 s25, s25, 896
        s_add_u32 s24, s24, s25
        s_add_u32 s25, s2, 128
        s_lshl_b32 s25, s25, 13
        s_lshl_b32 s26, s{S_W}, 9
        s_add_u32 s25, s25, s26
        s_cmp_ge_u32 s2, 128
        s_cselect_b32 s24, {OOB}, s24
        s_cselect_b32 s25, {OOB}, s25
        v_min_u32 v233, 6, v21
        v_lshlrev_b32 v233, 7, v233
        v_mul_u32_u24 v234, 3584, v22
        v_add_u32 v233, v233, v234
        v_add_u32 v233, s24, v233
        v_and_b32 v234, 3, v21
        v_lshlrev_b32 v234, 7, v234
        v_lshl_add_u32 v234, v22, 10, v234
        v_add_u32 v234, s25, v234
        """)
        if RT == 1: rtouch()
    E("s_branch L_join\nL_w2:")
    tile_path([('v', b) for b in range(3, 9)])
    stamp_dup('e1'); stamp_dup('e2')
    skload()
    E("s_branch L_w23\nL_w3:")
    if MKALL:
        MK2 = 0
        E(f"""
        s_waitcnt lgkmcnt(0)
        s_mov_b32 s68, s70
        s_mov_b32 s69, s71
        s_load_dword s{S_E}, s[4:5], {FL_EPOCH}
        """)
        if MKPOS == 0: markers4()
        stamp_dup('e1')
    else:
        MK4 = opt.get('mk4', 1)
        E(f"""
        v_lshlrev_b32 v33, 12, v21
        v_lshl_add_u32 v33, v22, 4, v33
        v_mov_b32 v36, -1
        v_mov_b32 v37, -1
        v_mov_b32 v38, -1
        v_mov_b32 v39, -1
        s_lshl_b32 s26, s{S_G}, 19
        s_lshl_b32 s27, s{S_M}, 7
        s_sub_u32 s26, s26, s27
        s_add_u32 s26, s26, {WS_KVT + 3968}
        s_waitcnt lgkmcnt(0)
        {srd_fix(S_WS, WS_SRD_BYTES)}
        s_load_dword s{S_E}, s[4:5], {FL_EPOCH}
        """)
        for i in range(16):
            E((f"buffer_store_dwordx4 v[36:39], v33, {WSRD}, s26 offen" if MK4 else f"buffer_store_dword v36, v33, {WSRD}, s26 offen") + (' sc1' if opt.get('mksc', 0) else ''))
            if i < 15: E("s_add_u32 s26, s26, 32768")
        stamp_dup('e1')
        E(f"""
        s_getreg_b32 s24, hwreg(HW_REG_XCC_ID, 0, 4)
        s_and_b32 s25, s2, 63
        s_lshl_b32 s25, s25, 7
        s_lshr_b32 s26, s2, 6
        s_lshl_b32 s26, s26, 2
        s_add_u32 s25, s25, s26
        s_add_u32 s25, s25, {FL_S0}
        s_and_b32 s24, s24, 7
        v_mov_b32 v{VF0}, {OOB}
        v_cmp_eq_u32 vcc, 0, v8
        v_mov_b32 v31, 0
        s_mov_b32 s68, s70
        s_mov_b32 s69, s71
        v_cndmask_b32 v{VF0}, v{VF0}, v31, vcc
        s_waitcnt lgkmcnt(0)
        s_mul_i32 s26, s{S_E}, 0x9e3779b1
        s_add_u32 s26, s26, 0x7f4a7c15
        s_and_b32 s26, s26, 0xfffffff0
        s_or_b32 s24, s24, s26
        v_mov_b32 v31, s24
        s_waitcnt vmcnt(0)
        buffer_store_dword v31, v{VF0}, {WSRD}, s25 offen sc1
        """)
        MK2 = opt.get('mk2', 0)
        if MK2 == 3: skload()
        if MK2:
            E(f"""
            s_lshl_b32 s26, s{S_G}, 19
            s_lshl_b32 s27, s{S_M}, 7
            s_sub_u32 s26, s26, s27
            s_add_u32 s26, s26, {WS_KVT + 3968}
            """)
            for i in range(16):
                E(f"buffer_store_dwordx4 v[36:39], v33, {WSRD}, s26 offen sc1")
                if i < 15: E("s_add_u32 s26, s26, 32768")
    stamp_dup('e2')
    if MK2 != 3: skload()
    E(f"""
    L_w23:
    {srd_fix(68, 1835008)}
    s_mov_b32 s52, s72
    s_mov_b32 s53, s73
    {srd_fix(52, 1835008)}
    """)
    RAWPOS = opt.get('rawpos', 0)
    RAWTHR = opt.get('rawthr', 0)
    if RAWPOS == 0: prep_dma()
    if RAWTHR:
        assert RAWPOS == 1 and MKPOS == 0
        E(f"s_cmp_lt_u32 s2, {RAWTHR}\ns_cbranch_scc1 L_join")
        prep_dma()
    E("L_join:")
    stamp('join')
    if opt.get('tw'):
        E(f"s_waitcnt vmcnt({opt['tw']})")
        stamp('tw')
    HEAD = 60
    PFL = opt.get('pfl', 15)
    E(f"""
    {srd_fix(S_WS, WS_SRD_BYTES)}
    s_lshr_b32 s{S_CP}, s{S_CB}, 1
    s_mov_b32 s76, s58
    s_mov_b32 s77, s59
    {srd_fix(76, 2097152)}
    s_lshl_b32 s24, s{S_CB}, 1
    s_load_dword s{S_D}, s[60:61], s24
    v_and_b32 v23, 31, v0
    v_lshrrev_b32 v24, 7, v0
    v_bfe_u32 v25, v0, 5, 2
    v_lshl_add_u32 v26, v25, 1, v23
    v_add_u32 v26, -30, v26
    v_add_u32 v27, s{S_CB}, v24
    v_lshlrev_b32 v27, 12, v27
    v_lshl_add_u32 v27, v26, 1, v27
    v_cmp_gt_i32 vcc, 0, v26
    v_mov_b32 v31, -16
    v_mul_u32_u24 v61, {HC_CH}, v24
    v_cndmask_b32 v27, v27, v31, vcc
    buffer_load_ushort v{HEAD}, v27, {HSRD}, 0 offen
    v_mul_u32_u24 v31, {HC_J}, v25
    v_add_u32 v61, v61, v31
    v_lshl_add_u32 v61, v23, 1, v61
    s_getpc_b64 s[32:33]
    L_pc:
    s_lshl_b32 s24, s{S_M}, 2
    s_add_u32 s24, s24, s{S_W}
    {'s_and_b32 s24, s24, 31' if PFL == 15 else 's_nop 0'}
    s_lshl_b32 s24, s24, {11 if PFL == 15 else 9}
    v_and_b32 v31, {PFL}, v8
    v_lshlrev_b32 v31, 7, v31
    v_add_u32 v31, s24, v31
    v_min_u32 v31, L_codeend-L_pc-64, v31
    global_load_dword v255, v31, s[32:33]
    """)
    stamp('i_a')
    E(f"""
    s_mov_b32 s{S_OUT}, s74
    s_mov_b32 s{S_OUT+1}, s75
    ; block-stage ids ; q fragment offsets: token = 128 c + 8 role + tok, channels 128 w + 64 c2 + 16 ks + 8 hi ..
    s_and_b32 s{S_ROLE}, s{S_M}, 15
    s_lshr_b32 s24, s{S_M}, 4
    s_lshl_b32 s24, s24, 3
    s_add_u32 s{S_C}, s{S_G}, s24
    s_lshr_b32 s{S_TH}, s{S_ROLE}, 3
    s_and_b32 s{S_J}, s{S_ROLE}, 7
    v_and_b32 v20, 7, v8                     ; tok
    v_bfe_u32 v21, v8, 3, 1                  ; hi
    v_lshrrev_b32 v22, 4, v8                 ; ks
    v_lshlrev_b32 v9, 10, v20
    v_lshl_add_u32 v9, v22, 5, v9
    v_lshl_add_u32 v9, v21, 4, v9
    s_lshl_b32 s24, s{S_C}, 7
    s_lshl_b32 s25, s{S_ROLE}, 3
    s_add_u32 s24, s24, s25
    s_lshl_b32 s24, s24, 10
    s_lshl_b32 s25, s{S_W}, 8
    s_add_u32 s{S_QO}, s24, s25
    {srd_fix(S_Q, 2097152)}
    """)
    ROTP = "" if not opt.get('rot', 0) else f"""s_lshr_b32 s96, s{S_C}, 3
    s_lshl_b32 s96, s96, 1
    s_lshr_b32 s97, s{S_W}, 1
    s_add_u32 s96, s96, s97
    s_sub_u32 s29, s29, s96
    s_and_b32 s29, s29, 3"""
    E(f"""
    s_getreg_b32 s{S_XCC}, hwreg(HW_REG_XCC_ID, 0, 4)
    s_lshl_b32 s{S_W1K}, s{S_W}, 13
    s_mul_i32 s{S_W1}, s{S_ROLE}, {229376 if not opt.get('xw1same') else 0}
    s_add_u32 s{S_W1}, s{S_W1}, s{S_W1K}
    s_add_u32 s{S_W1}, s{S_W1}, {WS_W1F}
    s_and_b32 s{S_OUT+1}, s{S_OUT+1}, 0xffff
    s_mov_b32 s{S_OUT+2}, 2097152
    s_mov_b32 s{S_OUT+3}, 0x20000
    s_mov_b32 s{S_HI}, 0xffff0000
    s_mov_b32 s{S_LN2}, {LN2:#x}
    s_mov_b32 s{S_LN2+1}, {LN2:#x}
    s_mov_b32 s{S_EXP}, 1
    s_and_b32 s{S_XCC}, s{S_XCC}, 7
    v_add_u32 v{VA1}, 65536, v{VL16}
    v_add_u32 v{VA2}, 131072, v{VL16}
    v_lshlrev_b32 v{VP8}, 2, v20
    v_and_b32 v{VP16}, 15, v8
    v_lshlrev_b32 v{VP16}, 2, v{VP16}
    v_mov_b32 v{VF0}, {OOB}
    v_cmp_eq_u32 vcc, 0, v8
    v_mov_b32 v31, 0
    s_lshr_b32 s30, s{S_ROLE}, 2             ; tt_r
    s_and_b32 s24, s{S_ROLE}, 3
    v_cndmask_b32 v{VF0}, v{VF0}, v31, vcc
    s_lshl_b32 s25, s24, 7
    v_lshlrev_b32 v{VR}, 10, v22
    v_lshl_add_u32 v{VR}, v21, 9, v{VR}
    v_lshl_add_u32 v{VR}, v20, 4, v{VR}
    v_add_u32 v{VR}, s25, v{VR}
    ; stats addresses
    v_lshlrev_b32 v{VSTR}, 5, v20
    v_add_u32 v{VSTR}, {STATS}, v{VSTR}
    v_and_b32 v31, 1, v22
    v_lshl_add_u32 v{VSTW}, v31, 2, v{VSTR}
    s_lshl_b32 s25, s{S_W}, 3
    v_add_u32 v{VSTW}, s25, v{VSTW}
    {YLD}
    s_lshl_b32 s25, s{S_G}, {GSH}
    s_lshr_b32 s26, s{S_C}, 3
    s_lshl_b32 s26, s26, 17
    s_add_u32 s25, s25, s26
    s_lshl_b32 s26, s30, 15
    s_add_u32 s{S_R}, s25, s26
    s_lshl_b32 s26, s{S_W}, 13
    s_add_u32 s{S_R}, s{S_R}, s26
    s_lshl_b32 s26, s{S_W}, 15
    s_add_u32 s{S_XNL}, s25, s26             ; XB + w*32768
    s_lshl_b32 s26, s{S_C}, 2
    s_add_u32 s27, s26, s{S_W}
    s_mul_i32 s27, s27, 114688
    s_lshr_b32 s28, s{S_ROLE}, 2
    s_mul_i32 s28, s28, 28
    s_and_b32 s29, s{S_ROLE}, 3
    {ROTP}
    s_add_u32 s28, s28, s29
    s_lshl_b32 s28, s28, 10
    s_add_u32 s{S_HST}, s27, s28             ; (4c+w)*114688 + ((role>>2)*28 + (role&3))*1024 ; tile tau at +4096 tau
    s_lshl_b32 s27, s{S_TH}, 1
    s_add_u32 s27, s27, s26
    s_mul_i32 s27, s27, 114688
    s_mul_i32 s28, s{S_W}, 28672
    s_add_u32 s{S_HLD}, s27, s28             ; (4c+2th)*114688 + 28w*1024
    s_and_b32 s26, s{S_W}, 1
    s_lshl_b32 s26, s26, 1
    s_lshr_b32 s27, s{S_W}, 1
    s_add_u32 s26, s26, s27
    s_lshl_b32 s27, s{S_J}, 2
    s_add_u32 s26, s26, s27                  ; kappa_o = 4j + 2(w&1) + (w>>1)
    s_lshl_b32 s27, s26, 10
    s_lshl_b32 s28, s{S_TH}, 16
    s_add_u32 s27, s27, s28
    s_add_u32 s{S_XML}, s27, s25
    ; flags
    s_lshl_b32 s25, s{S_C}, 8
    s_lshl_b32 s27, s30, 6
    s_add_u32 s27, s27, s25
    s_lshl_b32 s28, s24, 4
    s_add_u32 s27, s27, s28
    s_lshl_b32 s28, s{S_W}, 2
    s_add_u32 s{S_FXNS}, s27, s28
    s_lshl_b32 s27, s{S_W}, 6
    s_add_u32 s{S_FXNL}, s25, s27            ; c*256 + w*64
    s_lshl_b32 s25, s{S_C}, 10
    s_lshr_b32 s27, s{S_W}, 1
    s_lshl_b32 s27, s27, 7
    s_add_u32 s27, s27, s25
    s_lshl_b32 s29, s{S_ROLE}, 3
    s_add_u32 s27, s27, s29
    s_and_b32 s29, s{S_W}, 1
    s_lshl_b32 s29, s29, 2
    s_add_u32 s{S_FHS}, s27, s29             ; c*1024 + (w>>1)*128 + role*8 + (w&1)*4
    s_lshl_b32 s27, s{S_TH}, 7
    s_add_u32 s27, s27, s25
    s_lshl_b32 s29, s{S_W}, 5
    s_add_u32 s{S_FHL}, s27, s29             ; c*1024 + th*128 + w*32
    s_lshl_b32 s25, s{S_C}, 9
    s_lshl_b32 s27, s{S_TH}, 7
    s_add_u32 s27, s27, s25
    s_lshl_b32 s29, s{S_J}, 4
    s_add_u32 s27, s27, s29
    s_add_u32 s{S_FX2S}, s27, s28            ; c*512 + th*128 + j*16 + w*4
    s_lshr_b32 s27, s30, 1
    s_lshl_b32 s27, s27, 7
    s_add_u32 s27, s27, s25
    s_lshl_b32 s29, s{S_W}, 5
    s_add_u32 s{S_FX2L}, s27, s29            ; c*512 + (tt_r>>1)*128 + w*32
    s_add_u32 s{S_FXNS}, s{S_FXNS}, {FL_XN}
    s_add_u32 s{S_FXNL}, s{S_FXNL}, {FL_XN}
    s_add_u32 s{S_FHS}, s{S_FHS}, {FL_H}
    s_add_u32 s{S_FHL}, s{S_FHL}, {FL_H}
    s_add_u32 s{S_FX2S}, s{S_FX2S}, {FL_X2}
    s_add_u32 s{S_FX2L}, s{S_FX2L}, {FL_X2}
    s_mul_i32 s25, s{S_W}, 6144
    s_add_u32 s25, s25, {SCR}
    v_add_u32 v{VRR}, s25, v{VL16}
    """)
    for m in (1, 2, 3):
        E(f"""
        s_xor_b32 s25, s{S_W}, {m}
        s_mul_i32 s25, s25, 6144
        s_add_u32 s25, s25, {SCR + (m-1)*2048}
        v_add_u32 v{VRW[m-1]}, s25, v{VL16}
        """)
    E(f"""
    s_lshl_b32 s{S_WDB}, s{S_J}, 2
    s_add_u32 s{S_WDB}, s{S_WDB}, s{S_W}
    s_mul_i32 s{S_WDB}, s{S_WDB}, 57344
    s_add_u32 s{S_WDB}, s{S_WDB}, {WS_WDF}
    s_lshr_b32 s25, s{S_W}, 1
    s_lshl_b32 s25, s25, 8
    v_xor_b32 v31, s25, v{VL16}
    s_and_b32 s25, s{S_W}, 1
    s_lshl_b32 s25, s25, 10
    v_add_u32 v{VWD}, s25, v31
    s_xor_b32 s25, s25, 1024
    v_add_u32 v{VWD+1}, s25, v31
    """)
    stamp('pre')
    E(f"""
    s_waitcnt lgkmcnt(0)
    s_mul_i32 s{S_N}, s{S_E}, 0x9e3779b1
    s_add_u32 s{S_N}, s{S_N}, 0x7f4a7c15
    s_and_b32 s{S_N}, s{S_N}, 0xfffffff0
    s_or_b32 s{S_XCC}, s{S_XCC}, s{S_N}
    v_mov_b32 v{VONE}, s{S_N}
    ; flag slot of this work-group in the [64][4] arrays
    s_and_b32 s86, s2, 63
    s_lshl_b32 s86, s86, 7
    s_lshr_b32 s24, s2, 6
    s_lshl_b32 s24, s24, 2
    s_add_u32 s86, s86, s24
    """)
    if opt.get('ftouch', 0):
        E(f"""
        s_lshl_b32 s24, s{S_ROLE}, 1
        v_add_u32 v20, s24, v8
        v_min_u32 v20, 23, v20
        v_lshrrev_b32 v21, 1, v20
        v_and_b32 v22, 1, v20
        v_lshlrev_b32 v21, 12, v21
        v_lshl_add_u32 v21, v22, 7, v21
        s_lshl_b32 s24, s{S_C}, 8
        s_add_u32 s24, s24, {FL_XN}
        v_add_u32 v21, s24, v21
        v_subrev_u32 v22, 4, v20
        v_lshrrev_b32 v23, 3, v22
        v_and_b32 v22, 7, v22
        v_lshlrev_b32 v23, 14, v23
        v_lshl_add_u32 v23, v22, 7, v23
        s_lshl_b32 s24, s{S_C}, 10
        s_add_u32 s24, s24, {FL_H}
        v_add_u32 v23, s24, v23
        v_cmp_lt_u32 vcc, 3, v20
        v_cndmask_b32 v21, v21, v23, vcc
        v_subrev_u32 v22, 20, v20
        v_lshlrev_b32 v22, 7, v22
        s_lshl_b32 s24, s{S_C}, 9
        s_add_u32 s24, s24, {FL_X2}
        v_add_u32 v22, s24, v22                  ; X2 + c*512 + line*128
        v_cmp_lt_u32 vcc, 19, v20
        v_cndmask_b32 v21, v21, v22, vcc
        v_cmp_lt_u32 vcc, 1, v8
        v_mov_b32 v22, {OOB}
        v_cndmask_b32 v{VFT}, v21, v22, vcc
        """)
    stamp('setup')

    VA_, VB_ = 62, 63
    VXW, VKVW, VYS, VT0, VS1P, VEP = 22, 248, 249, 250, 253, 254
    VTR, W1D, WDD, VYP, VS1F = 226, 227, 228, 229, 230
    S_XL = 72
    S_W1DST, S_WDDST, S_YP, S_S1F = 64, 65, 66, 67
    E(f"""
    ; weight images (waves 2 and 3): raw 8-row blocks go to LDS, come back transposed and are stored as MFMA fragments
    s_cmp_eq_u32 s{S_W}, 3
    s_cselect_b32 s28, 256, 0
    s_cselect_b32 s29, 4, 0                  ; first Wd block of this wave
    s_lshr_b32 s24, s2, 2                    ; kg
    s_and_b32 s25, s2, 3                     ; fq
    v_bfe_u32 v20, v8, 2, 2
    v_lshlrev_b32 v{VTR}, 7, v20
    v_lshrrev_b32 v21, 4, v8                 ; g
    v_lshl_add_u32 v{VTR}, v21, 5, v{VTR}
    v_and_b32 v20, 3, v8
    v_lshl_add_u32 v{VTR}, v20, 3, v{VTR}
    v_add_u32 v{VTR}, s{S_PST}, v{VTR}
    v_and_b32 v20, 3, v8
    v_bfe_u32 v23, v8, 2, 1
    v_lshl_or_b32 v20, v23, 3, v20
    v_bfe_u32 v23, v8, 3, 1
    v_lshl_or_b32 v20, v23, 2, v20
    v_lshlrev_b32 v20, 4, v20                ; row * 16
    v_lshl_add_u32 v{W1D}, v21, 15, v20      ; + g * 32768
    s_mul_i32 s26, s25, {28*32768}
    s_lshr_b32 s27, s24, 1
    s_lshl_b32 s27, s27, 10
    s_add_u32 s26, s26, s27
    s_and_b32 s27, s24, 1
    s_lshl_b32 s27, s27, 9
    s_add_u32 s26, s26, s27
    s_add_u32 s26, s26, s28
    s_add_u32 s{S_W1DST}, s26, {WS_W1F}
    v_lshrrev_b32 v23, 1, v21
    v_lshl_add_u32 v{WDD}, v23, 10, v20      ; + dt * 1024
    v_and_b32 v23, 1, v21
    v_lshl_add_u32 v{WDD}, v23, 8, v{WDD}    ; + 16 rows
    s_lshr_b32 s24, s2, 1                    ; kf
    s_mul_i32 s25, s24, 2341
    s_lshr_b32 s25, s25, 16                  ; kf / 28
    s_mul_i32 s26, s25, 28
    s_sub_u32 s26, s24, s26
    s_mul_i32 s25, s25, 57344
    s_lshl_b32 s26, s26, 11
    s_add_u32 s25, s25, s26
    s_and_b32 s26, s2, 1
    s_lshl_b32 s26, s26, 9
    s_add_u32 s25, s25, s26
    s_mul_i32 s26, s29, 229376
    s_add_u32 s25, s25, s26
    s_add_u32 s25, s25, {WS_WDF}
    s_cmp_ge_u32 s2, 224
    s_cselect_b32 s{S_WDDST}, 0xf0000000, s25
    ; markers of the Y rows: waves 2 and 3 take eight clusters each
    v_lshrrev_b32 v{VYP}, 5, v8
    v_and_b32 v20, 31, v8
    v_lshlrev_b32 v{VYP}, 17, v{VYP}
    v_lshl_add_u32 v{VYP}, v20, 4, v{VYP}
    s_lshl_b32 s24, s{S_CP}, 9
    s_lshl_b32 s25, s29, 18
    s_add_u32 s24, s24, s25
    s_add_u32 s{S_YP}, s24, {WS_Y}
    ; images-complete flag: index 2 b + (w & 1) -> line index & 127, dword index >> 7
    s_lshl_b32 s24, s2, 1
    s_and_b32 s25, s{S_W}, 1
    s_add_u32 s24, s24, s25
    s_and_b32 s25, s24, 127
    s_lshl_b32 s25, s25, 7
    s_lshr_b32 s24, s24, 7
    s_lshl_b32 s24, s24, 2
    s_add_u32 s24, s24, s25
    s_add_u32 s{S_S1F}, s24, {FL_S1}
    s_cmp_ge_u32 s{S_W}, 2
    s_cselect_b32 s24, 0, {OOB}
    v_or_b32 v{VS1F}, s24, v{VF0}
    {f'v_or_b32 v{WDD}, s24, v{WDD}' if SPLIT else ''}
    s_lshl_b32 s24, s{S_W}, 12
    s_add_u32 s24, s24, {FL_S1}
    v_and_b32 v20, 31, v8
    v_lshlrev_b32 v{VS1P}, 7, v20
    v_add_u32 v{VS1P}, s24, v{VS1P}
    v_and_b32 v20, 15, v8                    ; r
    v_lshrrev_b32 v21, 4, v8                 ; g
    v_and_b32 v22, 3, v8                     ; j'
    v_bfe_u32 v23, v8, 2, 2                  ; q
    s_lshr_b32 s24, s{S_W}, 1                ; ch
    s_and_b32 s25, s{S_W}, 1
    s_lshl_b32 s25, s25, 8
    s_mul_i32 s26, s24, {HC_CH}
    s_add_u32 s26, s26, s25
    v_mul_u32_u24 v24, {HC_J}, v22
    v_add_u32 v25, v21, v23
    v_lshl_add_u32 v24, v25, 4, v24
    v_add_u32 v{VA_}, s26, v24
    s_mul_i32 s26, s24, {XR_CH}
    s_add_u32 s26, s26, s25
    s_add_u32 s26, s26, {XRB + 16*252 - 3584}
    v_and_b32 v22, 7, v8                     ; n'
    v_bfe_u32 v23, v8, 3, 1                  ; par'
    v_mul_u32_u24 v24, {XR_P}, v23
    v_lshlrev_b32 v25, 6, v22
    v_sub_u32 v24, v24, v25
    v_lshl_add_u32 v24, v21, 4, v24
    v_add_u32 v{VB_}, s26, v24
    v_lshrrev_b32 v20, 6, v0
    v_and_b32 v20, 1, v20
    v_mul_u32_u24 v20, {XR_CH}, v20
    v_bfe_u32 v21, v0, 5, 1
    v_mul_u32_u24 v21, {XR_P}, v21
    v_add_u32 v20, v20, v21
    v_and_b32 v21, 31, v0
    v_lshl_add_u32 v20, v21, 4, v20
    v_add_u32 v20, {XRB + 4096}, v20
    v_mov_b32 v24, 0
    v_mov_b32 v25, 0
    v_mov_b32 v26, 0
    v_mov_b32 v27, 0
    """)
    E.ds("ds_write_b128 v20, v[24:27]", 'pad')
    WDD_M = opt.get('wdd', 0)
    VDR, VDT = 240, 241
    if WDD_M: E(f"""
    v_lshrrev_b32 v20, 3, v8
    v_and_b32 v21, 7, v8
    v_bfe_u32 v23, v8, 4, 1
    v_lshlrev_b32 v23, 2, v23
    v_xor_b32 v21, v21, v23
    v_lshlrev_b32 v20, 10, v20
    v_lshl_add_u32 v20, v21, 4, v20
    s_lshl_b32 s24, s{S_J}, 7
    v_add_u32 v{VDR}, s24, v20
    v_lshrrev_b32 v20, 5, v8
    v_lshlrev_b32 v20, 10, v20               ; hi * 1024
    v_bfe_u32 v21, v8, 2, 2
    v_lshl_add_u32 v20, v21, 7, v20          ; r * 128
    v_bfe_u32 v21, v8, 3, 1                  ; (r >> 1) & 1
    s_and_b32 s24, s{S_W}, 1
    v_xor_b32 v21, s24, v21
    v_lshl_add_u32 v20, v21, 6, v20
    v_bfe_u32 v21, v8, 4, 1
    s_lshr_b32 s24, s{S_W}, 1
    v_xor_b32 v21, s24, v21
    v_lshl_add_u32 v20, v21, 5, v20
    v_and_b32 v21, 1, v8
    v_lshl_add_u32 v20, v21, 4, v20
    v_bfe_u32 v21, v8, 1, 1
    v_lshl_add_u32 v20, v21, 3, v20
    s_add_u32 s24, s{S_W1K}, {4*SLOT}
    v_add_u32 v{VDT}, s24, v20
    v_xor_b32 v{VDT+1}, 64, v{VDT}
    s_mul_i32 s74, s{S_W}, {448*1024}
    """)
    E(f"""
    ; kv stage: thread = (channel pair cp = 8 w + (lane >> 3), token group tg = lane & 7) ; stores at cp*16384 + 4080 - 128 m - 16 tg
    v_lshrrev_b32 v20, 3, v0                 ; cp
    v_and_b32 v21, 7, v8                     ; tg
    v_lshlrev_b32 v53, {14 - P1}, v20
    v_lshlrev_b32 v23, 4, v21
    v_sub_u32 v53, v53, v23
    s_lshl_b32 s24, s{S_M}, 7
    s_sub_u32 s24, 4080, s24
    v_add_u32 v53, s24, v53
    ; staging tile reads
    v_mul_u32_u24 v54, {TBS}, v21
    v_lshl_add_u32 v54, v20, 2, v54
    v_add_u32 v55, {VT}, v54
    v_add_u32 v54, {KT}, v54
    ; group flag poll: line 8 l + gamma
    v_and_b32 v30, 7, v8
    v_lshlrev_b32 v30, 10, v30
    s_lshl_b32 s24, s{S_G}, 7
    s_add_u32 s24, s24, {FL_S0}
    v_add_u32 v30, s24, v30
    s_and_b32 s25, s{S_W}, 1
    s_mul_i32 s24, s25, {XR_CH}
    s_add_u32 s24, s24, {XRB}
    v_add_u32 v{VXW}, s24, v{VL16}
    s_add_u32 s24, s{S_CB}, s25
    s_lshl_b32 s24, s24, {13 - P1}
    s_add_u32 s{S_XL}, s24, {WS_KVT}
    s_add_u32 s{S_XL+1}, s24, {WS_KVT + 4096}
    ; epilogue lanes: n' = l&7, par' = (l>>3)&1, g = l>>4 ; base token s_b = 256 t + 32 n' + 8 g ; t = 2 w + tau
    v_and_b32 v20, 7, v8                     ; n'
    v_bfe_u32 v21, v8, 3, 1                  ; par'
    v_lshrrev_b32 v23, 4, v8                 ; g
    v_lshlrev_b32 v31, 6, v20
    v_lshl_add_u32 v31, v23, 4, v31          ; 64 n' + 16 g
    v_mul_u32_u24 v{VKVW}, {XR_P}, v21
    v_sub_u32 v{VKVW}, v{VKVW}, v31
    s_lshl_b32 s24, s{S_W}, 10
    s_sub_u32 s24, {XRB + 4080 - 512}, s24
    v_add_u32 v{VKVW}, s24, v{VKVW}          ; kv window (tau = 1 ; tau = 0 at +512)
    v_lshrrev_b32 v31, 2, v20
    v_lshlrev_b32 v{VYS}, 17, v31
    v_and_b32 v31, 3, v20
    {YST}
    s_lshl_b32 s60, s{S_D}, 16
    s_and_b32 s61, s{S_D}, 0xffff0000
    v_mov_b32 v{VT0}, {OOB}
    v_mov_b32 v31, 0
    v_cmp_eq_u32 vcc, 0, v0
    s_lshl_b32 s24, s{S_G}, {GSH}
    s_add_u32 s80, s24, {WS_KVT}
    v_cndmask_b32 v{VT0}, v{VT0}, v31, vcc
    s_cmp_eq_u32 s2, 0
    s_cselect_b32 s24, {FL_EPOCH}, {OOB}
    v_add_u32 v{VEP}, s24, v{VT0}
    v_or_b32 v{VEP}, v{VEP}, v{VT0}
    s_add_u32 s81, s80, 4096
    s_add_u32 s82, s80, 8192
    s_add_u32 s83, s80, 12288
    """)
    stamp('setup2')
    def s0publish(lbl):
        E(f"""
        s_cmp_lg_u32 s{S_W}, 0
        s_cbranch_scc1 {lbl}
        v_mov_b32 v31, s{S_XCC}
        s_add_u32 s25, s86, {FL_S0}
        buffer_store_dword v31, v{VF0}, {WSRD}, s25 offen sc1
        """)
        if S0SC:
            E(f"""
            s_and_b32 s24, s{S_XCC}, 7
            s_mul_i32 s25, s24, s24
            s_lshl_b32 s25, s25, 16
            s_lshl_b32 s24, s24, 6
            s_add_u32 s24, s24, s25
            s_add_u32 s24, s24, 1
            s_lshl_b32 s25, s{S_G}, 2
            v_mov_b32 v34, s24
            v_mov_b32 v35, s25
            s_mov_b64 exec, 1
            global_atomic_add v35, v34, s[96:97]
            s_mov_b64 exec, -1
            """)
        E(f"""
        {lbl}:
        """)
    if MKALL and MKPOS == 0:
        E(f"""
        s_cmp_ge_u32 s{S_W}, 2
        s_cbranch_scc1 L_bm2
        s_waitcnt vmcnt({6 + 1 + 4*len(HEARLY) + 2 + (2 if RT == 1 else 0)})
        s_branch L_bmx
        L_bm2:
        {f's_cmp_ge_u32 s2, {RAWTHR}' if RAWTHR else ''}
        {'s_cbranch_scc1 L_bm4' if RAWTHR else ''}
        s_cmp_eq_u32 s{S_W}, 3
        s_cbranch_scc1 L_bm3
        s_waitcnt vmcnt({9 + (11 if RAWPOS == 0 else 0)})
        s_branch L_bmx
        L_bm3:
        s_waitcnt vmcnt({3 + (11 if RAWPOS == 0 else 0)})
        """)
        if RAWTHR:
            E(f"""
            s_branch L_bmx
            L_bm4:
            s_cmp_eq_u32 s{S_W}, 3
            s_cbranch_scc1 L_bm5
            s_waitcnt vmcnt(20)
            s_branch L_bmx
            L_bm5:
            s_waitcnt vmcnt(14)
            """)
        E("""
        L_bmx:
        s_barrier
        """)
        s0publish('L_bmy')
        stamp('bm')
    if MKPOS == 1:
        markers4(fix=False)
        stamp('bm')
    if opt.get('ftouch', 0) == 1:
        l_ = E.label('L_ft')
        E(f"s_cmp_lg_u32 s{S_W}, 0\ns_cbranch_scc1 {l_}\nbuffer_load_dword v{VFT}, v{VFT}, {WSRD}, 0 offen\n{l_}:")
    FTW = FTW2 = ""
    NX0 = (1 if opt.get('ftouch', 0) == 1 else 0) + (1 if MKALL and MKPOS == 0 else 0) + (1 if S0SC else 0)
    NY01 = (4*len(HEARLY) + 2 + (2 if RT else 0)) if MKPOS != 1 else 0
    if RT == 2:
        E(f"s_cmp_ge_u32 s{S_W}, 2\ns_cbranch_scc1 L_rt2")
        rtouch()
        E("L_rt2:")
    if NX0:
        FTW = f"s_cmp_eq_u32 s{S_W}, 0\ns_cbranch_scc1 L_g2c"
        FTW2 = f"L_g2c:\ns_waitcnt vmcnt({NY01 + NX0})\ns_branch L_g2x"
    E(f"""
    s_cmp_ge_u32 s{S_W}, 2
    s_cbranch_scc1 L_g2b
    {FTW}
    s_waitcnt vmcnt({NY01})
    s_branch L_g2x
    {FTW2}
    L_g2b:
    """)
    def kvtouch():
        E(f"""
        v_lshlrev_b32 v{VFT+1}, 12, v8
        s_lshl_b32 s26, s{S_G}, 19
        s_lshl_b32 s27, s{S_M}, 7
        s_sub_u32 s26, s26, s27
        s_add_u32 s26, s26, {WS_KVT + 3968}
        s_add_u32 s27, s26, 262144
        buffer_load_dword v{VFT+2}, v{VFT+1}, {WSRD}, s26 offen
        buffer_load_dword v{VFT+3}, v{VFT+1}, {WSRD}, s27 offen
        """)
    MKT = opt.get('mkt', 0)
    if RAWTHR:
        E(f"s_cmp_lt_u32 s2, {RAWTHR}\ns_cbranch_scc1 L_g2f\ns_waitcnt vmcnt(13)\ns_branch L_g2x\nL_g2f:")
    if RAWPOS == 1:
        E(srd_fix(68, 1835008))
        if MKT == 2:
            E(f"s_cmp_lg_u32 s{S_W}, 3\ns_cbranch_scc1 L_g2e")
            kvtouch()
            E("L_g2e:")
        prep_dma()
        if MKT == 1:
            E(f"s_cmp_lg_u32 s{S_W}, 3\ns_cbranch_scc1 L_g2d")
            kvtouch()
            E("s_waitcnt vmcnt(13)\ns_branch L_g2x\nL_g2d:")
        if MKT == 2:
            E(f"s_cmp_lg_u32 s{S_W}, 3\ns_cbranch_scc1 L_g2d")
            E("s_waitcnt vmcnt(13)\ns_branch L_g2x\nL_g2d:")
    E(f"""
    s_waitcnt vmcnt({13 if RAWPOS == 0 else 11 if RAWPOS == 1 else 2 if MKPOS != 1 else 0})
    L_g2x:
    """)
    stamp('i_b')
    if MKPOS == 2: markers4(fix=False)
    E.vmq = []
    E.wait_ds('pad')
    E("s_barrier")
    if MKPOS == 1: s0publish('L_bmy')
    stamp('b0')
    S0R = 24
    def s0poll():
        if S0SC:
            E(f"""s_lshl_b32 s28, s{S_G}, 2
            s_cmp_lt_u32 s{S_W}, 2
            s_cbranch_scc0 L_s0pv
            s_load_dword s29, s[96:97], s28 glc
            s_branch L_s0pw
            L_s0pv:""")
        E.vm(f"buffer_load_dwordx4 v[{S0R}:{S0R+3}], v30, {WSRD}, 0 offen sc1", 's0')
        if S0SC: E("L_s0pw:")
    S0AT = opt.get('s0at', 1)
    if S0AT == 0: s0poll()
    KR, VRW_ = 32, 44
    for x in range(0, 8, 2): E.ds(f"ds_read2_b32 v[{KR+x}:{KR+x+1}], v54 offset0:{32*x} offset1:{32*(x+1)}", 'kv')
    E(f"v_add_u32 v20, {TBS}, v54\nv_add_u32 v21, {TBS}, v55")
    for x in range(8, 12, 2): E.ds(f"ds_read2_b32 v[{KR+x}:{KR+x+1}], v20 offset0:{32*(x-8)} offset1:{32*(x-7)}", 'kv')
    for x in range(0, 8, 2): E.ds(f"ds_read2_b32 v[{VRW_+x}:{VRW_+x+1}], v55 offset0:{32*x} offset1:{32*(x+1)}", 'kv')
    E.ds(f"ds_read_b32 v{VRW_+8}, v21", 'kv')
    if RAWPOS == 2:
        E(f"s_cmp_lt_u32 s{S_W}, 2\ns_cbranch_scc1 L_rw2")
        E(srd_fix(68, 1835008))
        prep_dma()
        E("L_rw2:")
    E(f"""
    v_lshlrev_b32 v136, 16, v{SK}
    v_lshlrev_b32 v137, 16, v{SK+2}
    v_and_b32 v138, s{S_HI}, v{SK}
    v_and_b32 v139, s{S_HI}, v{SK+2}
    v_lshlrev_b32 v140, 16, v{SK+1}
    v_lshlrev_b32 v141, 16, v{SK+3}
    v_and_b32 v142, s{S_HI}, v{SK+1}
    v_and_b32 v143, s{S_HI}, v{SK+3}
    """)
    E.wait_ds('kv')
    for i in range(12): E(f"v_lshlrev_b32 v{96+2*i}, 16, v{KR+i}\nv_and_b32 v{97+2*i}, s{S_HI}, v{KR+i}")
    if S0AT == 1: s0poll()
    for i in range(9): E(f"v_lshlrev_b32 v{164+2*i}, 16, v{VRW_+i}\nv_and_b32 v{165+2*i}, s{S_HI}, v{VRW_+i}")
    def K(x): return f"v[{96+2*x}:{97+2*x}]"
    def KV(i): return 144 + 2*i
    KVI = range(1, 9) if P1 else range(9)
    for i in KVI: E(f"v_pk_mul_f32 v[{KV(i)}:{KV(i)+1}], v[136:137], {K(i+3)}")
    if S0AT == 2: s0poll()
    for tap in (1, 2, 3):
        for i in KVI: E(f"v_pk_fma_f32 v[{KV(i)}:{KV(i)+1}], v[{136+2*tap}:{137+2*tap}], {K(i+3-tap)}, v[{KV(i)}:{KV(i)+1}]")
    if S0AT == 3: s0poll()
    for i in KVI: E(f"v_pk_mul_f32 v[{KV(i)}:{KV(i)+1}], v[{KV(i)}:{KV(i)+1}], v[{164+2*i}:{165+2*i}]")
    if MKPOS == 2:
        assert S0AT == 4
        if RAWPOS == 2 and not MKW:
            E(f"s_cmp_ge_u32 s{S_W}, 2\ns_cbranch_scc1 L_mq2\ns_waitcnt vmcnt(0)\ns_branch L_mq3\nL_mq2:\ns_waitcnt vmcnt(11)\nL_mq3:")
        elif MKW:
            E(f"s_cmp_ge_u32 s{S_W}, 2\ns_cbranch_scc1 L_mq2\ns_waitcnt vmcnt(0)\nL_mq2:")
        else: E("s_waitcnt vmcnt(0)")
        stamp('mq')
        E("s_barrier")
        s0publish('L_bmy')
        stamp('bm')
    if S0AT == 4: s0poll()
    for c in range(2):
        for par in range(1 if P1 else 2):
            b = KR + 8*c + 4*par
            for d in range(4): E(f"v_cvt_pk_bf16_f32 v{b+d}, v{KV(8-par-2*d)+c}, v{KV(7-par-2*d)+c}")
            E.vm(f"buffer_store_dwordx4 v[{b}:{b+3}], v53, {WSRD}, s{80 + (c if P1 else 2*c + par)} offen" + FL('kv', 0), 'kvst')
    stamp('kvst')

    X, Y = 128, 136
    XF, YF, T = 144, 160, 176
    def stats(src, rnd, between=None, scale=False, pre=None):
        P, Q = 192, 194
        E(f"v_pk_add_f32 v[{P}:{P+1}], v[{src}:{src+1}], v[{src+2}:{src+3}]")
        E(f"v_pk_mul_f32 v[{Q}:{Q+1}], v[{src}:{src+1}], v[{src}:{src+1}]")
        for i in range(1, 8):
            E(f"v_pk_fma_f32 v[{Q}:{Q+1}], v[{src+2*i}:{src+2*i+1}], v[{src+2*i}:{src+2*i+1}], v[{Q}:{Q+1}]")
            if i >= 2: E(f"v_pk_add_f32 v[{P}:{P+1}], v[{P}:{P+1}], v[{src+2*i}:{src+2*i+1}]")
        E(f"""
        v_add_f32 v{P}, v{P}, v{P+1}
        v_add_f32 v{Q}, v{Q}, v{Q+1}
        v_permlane16_swap_b32 v{P}, v{Q}
        v_add_f32 v{P}, v{P}, v{Q}
        v_add_f32_dpp v{P}, v{P}, v{P} row_ror:8 row_mask:0xf bank_mask:0xf
        v_mov_b32 v{P+1}, v{P}
        v_permlane32_swap_b32 v{P}, v{P+1}
        v_add_f32 v{P}, v{P}, v{P+1}
        s_mov_b64 exec, 0x00ff00ff
        """)
        E.ds(f"ds_write_b32 v{VSTW}, v{P} offset:{rnd*256}", 'stw')
        E("s_mov_b64 exec, -1")
        E.wait_ds('stw')
        if pre: pre()
        E("s_barrier")
        E.ds(f"ds_read_b128 v[196:199], v{VSTR} offset:{rnd*256}", 'str')
        E.ds(f"ds_read_b128 v[200:203], v{VSTR} offset:{rnd*256+16}", 'str')
        if between: between()
        E.wait_ds('str')
        E(f"""
        v_pk_add_f32 v[196:197], v[196:197], v[198:199]
        v_pk_add_f32 v[200:201], v[200:201], v[202:203]
        v_pk_add_f32 v[196:197], v[196:197], v[200:201]
        v_mul_f32 v196, 0x3b000000, v196
        v_mul_f32 v197, 0x3b000000, v197
        v_fma_f32 v197, -v196, v196, v197
        v_max_f32 v197, 0, v197
        v_add_f32 v197, 0x3727c5ac, v197
        v_rsq_f32 v204, v197
        s_nop 0
        """)
        if scale: E(f"v_mul_f32 v204, {LOG2E:#x}, v204")
        E("v_mul_f32_e64 v206, -v196, v204")
    def norm(dst, src):
        for i in range(8):
            E(f"v_pk_fma_f32 v[{dst+2*i}:{dst+2*i+1}], v[{src+2*i}:{src+2*i+1}], v[204:205], v[206:207] op_sel_hi:[1,0,0]")
    def unpack(dst, src, n):
        for i in range(n):
            E(f"v_lshlrev_b32 v{dst+2*i}, 16, v{src+i}")
            E(f"v_and_b32 v{dst+2*i+1}, s{S_HI}, v{src+i}")
    S_XMD = 64
    def R_pre(L, between=None, pre=None):
        unpack(XF, X, 8)
        if P1 and L == 1:
            for i in range(8): E(f"v_pk_add_f32 v[{XF+2*i}:{XF+2*i+1}], v[{XF+2*i}:{XF+2*i+1}], v[{T+2*i}:{T+2*i+1}]")
            if opt.get('x2r', 0):
                for i in range(8): E(f"v_cvt_pk_bf16_f32 v{X+i}, v{XF+2*i}, v{XF+2*i+1}")
                unpack(XF, X, 8)
        stats(XF, 0, between, pre=pre)
        norm(T, XF)
        stamp(f'R{L}s1')
    def R_post(L, early=None, late=None, pre=None):
        RO = opt.get('ropt', 0)
        if not (RO and L == 1): unpack(YF, Y, 8)
        for i in range(8):
            E(f"v_pk_fma_f32 v[{XF+2*i}:{XF+2*i+1}], v[{T+2*i}:{T+2*i+1}], v[{YF+2*i}:{YF+2*i+1}], v[{XF+2*i}:{XF+2*i+1}]")
        M = 20 if (P1 and L == 0) else 208
        MLATE = RO and P1 and (L == 0 or opt.get('xmlate', 0))
        def mcvt():
            for i in range(8): E(f"v_cvt_pk_bf16_f32 v{M+i}, v{XF+2*i}, v{XF+2*i+1}")
        if not MLATE: mcvt()
        def xmst():
            if P1 and L == 0: return
            if P1: E(f"s_add_u32 s{S_T0}, s{S_R}, s{S_XMD}\ns_add_u32 s{S_T1}, s{S_T0}, 4096")
            else: sadd(S_T0, S_R, WS_XM); sadd(S_T1, S_R, WS_XM + 4096)
            E.vm(f"buffer_store_dwordx4 v[{M}:{M+3}], v{VR}, {WSRD}, s{S_T0} offen" + FL('xm', L), 'rst')
            E.vm(f"buffer_store_dwordx4 v[{M+4}:{M+7}], v{VR}, {WSRD}, s{S_T1} offen" + FL('xm', L), 'rst')
        def behind():
            xmst()
            E.vm(f"buffer_store_dword v{VONE}, v{VEP}, {WSRD}, 0 offen sc1", 'ep')
            if late: late()
        XML = P1 and L == 1 and opt.get('xmlate', 0)
        if L == 1 and not XML: xmst()
        if early: early()
        stats(XF, 1, between=behind if L == 0 else late, scale=True, pre=pre)
        norm(T, XF)
        N = 216
        for i in range(8): E(f"v_cvt_pk_bf16_f32 v{N+i}, v{T+2*i}, v{T+2*i+1}")
        sadd(S_T0, S_R, WS_XN); sadd(S_T1, S_R, WS_XN + 4096)
        E.vm(f"buffer_store_dwordx4 v[{N}:{N+3}], v{VR}, {WSRD}, s{S_T0} offen" + FL('xn', L), 'rst')
        E.vm(f"buffer_store_dwordx4 v[{N+4}:{N+7}], v{VR}, {WSRD}, s{S_T1} offen" + FL('xn', L), 'rst')
        if MLATE: mcvt()
        if XML:
            for i in range(8): E(f"v_accvgpr_write_b32 a{A_Y+i}, v{M+i}")
        stamp(f'R{L}st')
    def Rpub(L):
        publish(S_FXNS, 0, 'rst')
        E("s_barrier")
        stamp(f'R{L}pub')

    ORDER = {}
    def g2_order():
        stA = [0, 1, 2]; stB = [3, 4, 5]; stC = [6]
        def blocks(tt, ps): return [(tt, rho, p) for p in ps for rho in range(4)]
        b1 = blocks(1, stB); nb1 = opt.get('b1_first', 4)
        return blocks(0, stA) + blocks(1, stA) + blocks(0, stB) + b1[:nb1] + blocks(0, stC) + b1[nb1:] + blocks(1, stC)
    def wd_kseq(L):
        kseq = []
        for (tt, rho, p) in g2_order():
            kp = rho*7 + LAYERS[L]['tau'][p]
            if kp not in kseq: kseq.append(kp)
        if opt.get('rot', 0): kseq.sort(key=lambda kp: kp // 7)
        return kseq
    def make_bulk():
        c = LAYERS[0]; ops = []
        ks = wd_kseq(0); npre = opt.get('wd_pre', 0)
        if opt.get('w1rot', 0):
            assert c['tau'][:3] == [0, 1, 2] and c['slot'][:3] == [2, 3, 4]
            ops.append((4, False, lambda: E(f"s_lshr_b32 s66, s{S_C}, 3\ns_mul_i32 s67, s66, 61440\ns_mul_i32 s66, s66, 36864")))
            for u in range(6):
                f_ = (u >> 1)*32768 + (u & 1)*4096
                ins = 's_add_u32' if u < 3 else 's_sub_u32'; d_ = 67 if u % 3 == 1 else 66
                ops.append((4, False, lambda f_=f_, ins=ins, d_=d_: E(f"s_add_u32 m0, s{S_W1K}, {2*SLOT + f_}\n{ins} m0, m0, s{d_}")))
                ops.append((4, False, lambda f_=f_, ins=ins, d_=d_: (sadd(S_DA, S_W1, f_), E(f"{ins} s{S_DA}, s{S_DA}, s{d_}"))))
                for i in range(4):
                    ops.append((4, True, lambda off=i*1024, u=u: E.vm(f"buffer_load_dwordx4 v{VL16}, {WSRD}, s{S_DA} offen" + (f" offset:{off}" if off else "") + " lds", f'w1_{u >> 1}')))
        else:
            for p in range(3): ops += dma_stream(c['tau'][p], c['slot'][p], f'w1_{p}')
        ops += wd_stream(ks[:npre])
        ops += dma_stream(c['tau'][3], c['slot'][3], 'w1_3')
        if not opt.get('nowd', 0): ops += wd_stream(ks[max(npre, 4*opt.get('wdd', 0)):])
        return Bulk(ops)
    BK = {}

    def layer(L):
        cfg = LAYERS[L]; tau = cfg['tau']; slot = cfg['slot']
        O = lambda k, d: opt.get(f'{k}{L}', opt.get(k, d))
        G2 = 224; NS = 336; lastslot = NS - 1
        BUD = O('bud', 24); VGAP = O('vgap', 2)
        F = {}; cost = [0]*(NS + 64); vslots = set()
        for i in range(G2):
            if i + LA < G2: cost[i] += 4
            if i % 2 == 0: cost[i] += 4
            if i < 96 and i % 3 == 0 and i > 0: cost[i] += 4
        for i in range(G2, NS, 2): cost[i] += 4
        RANK = {'m': 0, 's': 1, 'v': 2}
        def at(i, f, c=4, k='v'): F.setdefault(i, ([], [], []))[RANK[k]].append(f); cost[i] += c
        last = {'k': 'm', 't': -1}
        def put(t, f, c=4, k='v', vm=False, chain=False):
            if vm: k = 'm'
            if chain:
                t = max(t, last['t'] + (1 if RANK[k] < RANK[last['k']] else 0))
            while cost[t] + c > BUD or (vm and any((t + d) in vslots for d in range(-VGAP + 1, VGAP))): t += 1
            if vm: vslots.add(t)
            at(t, f, c, k); last['k'] = k; last['t'] = t
            return t
        def stream(t, ops):
            first = True
            for (c, vm, f) in ops:
                t = put(t, f, c, 's', vm, chain=not first); first = False
            return t
        def T_(s): return lambda: E(s)
        def barrier(): E("s_barrier")
        poll_issue(VP16, S_FXNL, 0, f'pxn{L}')
        if L == 0: BK['b'].emit(opt.get('bk_pub', 0))
        poll_check(VP16, S_FXNL, 0, f'pxn{L}')
        stamp(f'L{L}xnok')
        def xops(k):
            ops = []
            if k % 4 == 0: ops.append((4, False, lambda: sadd(S_XA, S_XNL, WS_XN + (k >> 2)*4096)))
            off = (k & 3)*1024
            ops.append((4, True, lambda: E.vm(f"buffer_load_dwordx4 v[{XR+4*k}:{XR+4*k+3}], v{VL16}, {WSRD}, s{S_XA} offen" + (f" offset:{off}" if off else "") + LSC, f'x{L}_{k}')))
            return ops
        n_up = O('nup', 5)
        for k in range(n_up):
            for (_, _, f) in xops(k): f()
        seq = []
        for k in range(32):
            for p in range(3): seq.append(('g1', p, k))
        for p in range(3, 7):
            for k in range(32): seq.append(('g1', p, k))
        accp = [0, 1, 2, 3, 0, 1, 2]
        def a_addr(p, k):
            s = slot[p]
            base = [VL16, VL16, VA1, VA1, VA2][s]
            off = (s & 1)*SLOT + k*1024 if s < 4 else k*1024
            return base, off
        def rd(i):
            _, p, k = seq[i]
            b, off = a_addr(p, k)
            r = RING + 4*(i % 8)
            E.ds(f"ds_read_b128 v[{r}:{r+3}], v{b} offset:{off}", f'a{L}_{i}')
        order = g2_order()
        assert len(order) == 56
        last0 = max(n for n, b in enumerate(order) if b[0] == 0)
        acc2 = {0: [ACC[0], ACC[1]], 1: [ACC[3], ACC[2]]}
        NH = 37
        def hreg(n):
            q = n % NH
            return ar(A_H + 4*q, 4) if q < 5 else vr(XR + 4*(q - 5), 4)
        def epilogue(p, o):
            c = ACC[accp[p]]
            for e in range(8):
                at(o + e, T_(f"v_exp_f32_e64 v{c+e}, -v{c+e}"), 8)
                at(o + e + 1, T_(f"v_add_f32 v{c+e}, 1.0, v{c+e}"))
                at(o + 8 + e, T_(f"v_rcp_f32 v{c+e}, v{c+e}"), 8)
                at(o + 9 + e, T_(f"v_mul_f32 v{c+e}, v{c+e}, v{c+8+e}"))
        def epilogue2(p, o):
            c = ACC[accp[p]]
            t = 0
            for k in range(4):
                t = put(max(t, o + 11 + 2*k), T_(f"v_cvt_pk_bf16_f32 v{c+8+k}, v{c+2*k}, v{c+2*k+1}"))
            stage = 'A' if p < 3 else ('B' if p < 6 else 'C')
            put(o + 10, T_(f"s_add_u32 s{S_HS[p & 1]}, s{S_HST}, {WS_H + tau[p]*4096}"), k='s')
            return put(t + 1, lambda: E.vm(f"buffer_store_dwordx4 v[{c+8}:{c+11}], v{VL16}, {WSRD}, s{S_HS[p & 1]} offen" + FL('h', L), f'h{stage}{L}'), vm=True)
        eo = [99, 115, 131, 147, 163, 196, 228]
        for p in range(7): epilogue(p, eo[p])
        est = [epilogue2(p, eo[p]) for p in range(7)]
        assert est[0] < 126 and est[1] < 158 and est[2] < 190 and est[5] < 222 and est[6] < 248, est
        at(121, lambda: (E.wait_vm(f'w4{L}'), barrier()), 8, 's')
        at(96, barrier, 4, 's')
        at(153, lambda: (E.wait_vm(f'w5{L}'), barrier()), 8, 's')
        at(185, lambda: (E.wait_vm(f'w6{L}'), barrier()), 8, 's')
        t = 0
        for k in range(n_up, 32):
            t = stream(max(t + (1 if k % 4 == 0 and k > n_up else 0), O('xsp', 2)*(k - n_up)), xops(k))
        XML = P1 and L == 1 and opt.get('xmlate', 0)
        if XML:
            t = stream(t + 1, [(4, False, lambda: E(f"s_add_u32 s{S_XA}, s{S_R}, s{S_XMD}")),
                               (4, True, lambda: E.vm(f"buffer_store_dwordx4 {ar(A_Y, 4)}, v{VR}, {WSRD}, s{S_XA} offen sc1", 'xms')),
                               (4, False, lambda: E(f"s_add_u32 s{S_XA}, s{S_XA}, 4096")),
                               (4, True, lambda: E.vm(f"buffer_store_dwordx4 {ar(A_Y+4, 4)}, v{VR}, {WSRD}, s{S_XA} offen sc1", 'xms'))])
        t = stream(t + 1, dma_stream(tau[4], slot[4], f'w4{L}'))
        w4end = t
        t = stream(97, dma_stream(tau[5], slot[5], f'w5{L}'))
        w5end = t
        t = stream(t + 1, dma_stream(tau[6], slot[6], f'w6{L}'))
        w6end = t
        assert w4end < 108 and w5end < 140 and w6end < 172, (w4end, w5end, w6end)
        if L == 0 and opt.get('htg'):
            def ht_ops(p0, np_):
                ops = [(4, False, lambda x=x: E(x)) for x in (f"v_lshrrev_b32 v30, 3, v8", f"v_min_u32 v30, {np_-1}, v30", f"v_lshlrev_b32 v30, 12, v30", f"v_and_b32 v31, 7, v8", f"v_lshl_add_u32 v30, v31, 7, v30")]
                return ops + [(4, False, lambda: E(f"s_add_u32 s{S_T2}, s{S_HST}, {WS_H + tau[p0]*4096}")),
                        (4, True, lambda: E.vm(f"buffer_load_dword v31, v30, {WSRD}, s{S_T2} offen", 'ht'))]
            assert tau == list(range(7))
            m = opt['htg']
            if m == 1:
                stream(w4end - 6, ht_ops(0, 3)); stream(w5end - 6, ht_ops(3, 4))
            elif m == 2:
                stream(w4end - 6, ht_ops(0, 7))
            elif m == 3:
                stream(2, ht_ops(0, 7))
        if L == 0 and WDC and not opt.get('wcr', 0):
            assert all(getattr(o[2], 'info', None) is not None for o in BK['b'].ops) and len(BK['b'].ops) == 28*3, 'no Wd load in front of the S1C check'
            def wc_cmp(first):
                return "\n".join(["v_accvgpr_read_b32 v30, a232", "v_accvgpr_read_b32 v31, a233", f"v_xor_b32 v30, s{S_N}, v30", f"v_xor_b32 v31, s{S_N}, v31", "v_or_b32 v30, v30, v31",
                                  "v_accvgpr_read_b32 v31, a234", f"v_xor_b32 v31, s{S_N}, v31", "v_or_b32 v30, v30, v31",
                                  "v_accvgpr_read_b32 v31, a235", f"v_xor_b32 v31, s{S_N}, v31", "v_or_b32 v30, v30, v31", "v_cmp_ne_u32 vcc, 0, v30"])
            wld = f"buffer_load_dwordx4 a[232:235], v9, {WSRD}, 0 offen sc1"
            E(f"v_lshlrev_b32 v9, 7, v8\nv_add_u32 v9, {FL_S1C}, v9")
            E.vm(wld, 'wcp')
            t = put(O('wcc', 40), lambda: E.wait_vm('wcp'), k='s')
            for ln in wc_cmp(0).split('\n'): t = put(t, T_(ln), chain=True)
            def wc_branch():
                ls = E.label('L_wcs'); lb = E.label('L_wcb'); ll = E.label('L_wcl')
                E(f"s_cbranch_vccnz {ls}\n{lb}:")
                E.out_of_line(f"""
                {ls}:
                s_mov_b32 s{S_T3}, 0
                {ll}:
                {wld}
                s_add_u32 s{S_T3}, s{S_T3}, 1
                s_waitcnt vmcnt(0)
                {wc_cmp(1)}
                s_nop 4
                s_cbranch_vccz {lb}
                s_cmp_lt_u32 s{S_T3}, 0x2000
                s_cbranch_scc1 {ll}
                s_branch {lb}""")
            t = put(t + 2, wc_branch, k='s')
            assert t < O('wd_at', 70) - 1, t
        XM0 = 20; XM1 = 24
        def xm_ops(tt):
            return [(4, False, (lambda: sadd(S_XA, S_XML, WS_XM + tt*32768)) if not P1 else (lambda: E(f"s_add_u32 s{S_XA}, s{S_XML if tt == 0 else S_XA}, {f's{S_XMD}' if tt == 0 else 32768}"))),
                    (4, True, lambda: E.vm(f"buffer_load_dwordx4 v[{XM0+4*tt}:{XM0+4*tt+3}], v{VL16}, {WSRD}, s{S_XA} offen" + LSC, f'xm{L}'))]
        NOXM = P1 and L == 0
        if not NOXM: stream(stream(O('xm_at', 152) if not XML else 186, xm_ops(0)) + 1, xm_ops(1))
        fh = 0
        pub = {}; chk = {}
        for (st_, k, e) in (('A', 0, est[2]), ('B', 1, est[5]), ('C', 2, est[6])):
            tp = put(O('pub' + st_, e + 12), lambda st_=st_: E.wait_vm(f'h{st_}{L}'), k='s')
            tp = put(tp, lambda st_=st_, k=k: publish(S_FHS, fh + 256*k, f'h{st_}{L}', wait=False), 4, 'm', chain=True)
            tq = put(O('poll' + st_, tp + 8), lambda st_=st_, k=k: poll_issue(VP8, S_FHL, fh + 256*k, f'p{st_}{L}'), 4, 'm')
            tc = put(O('chk' + st_, tq + (12 if st_ == 'A' else 14)), lambda st_=st_: E.wait_vm(f'p{st_}{L}'), k='s')
            tc = put(tc, lambda st_=st_, k=k: poll_check(VP8, S_FHL, fh + 256*k, f'p{st_}{L}', wait=False), 8, 'v', chain=True)
            pub[st_] = tp; chk[st_] = tc
        if XML: assert pub['A'] > 121 and chk['A'] < 185
        if L == 0 and opt.get('x2m', 0) and not MODE['slow']:
            assert chk['A'] < 185 and P1
            pre = [f"s_lshr_b32 s{S_T2}, s{S_W}, 1", f"s_cmp_eq_u32 s{S_T2}, s{S_TH}", f"s_cselect_b32 s{S_T2}, 0, {OOB}", f"v_add_u32 v30, s{S_T2}, v{VR}",
                   f"s_lshl_b32 s{S_T2}, s{S_W}, 13", f"s_sub_u32 s{S_T1}, s{S_R}, s{S_T2}", f"s_and_b32 s{S_T2}, s{S_W}, 1", f"s_lshl_b32 s{S_T2}, s{S_T2}, 14",
                   f"s_add_u32 s{S_T1}, s{S_T1}, s{S_T2}", f"s_add_u32 s{S_T1}, s{S_T1}, {WS_XN}"] + [f"v_accvgpr_write_b32 a{232+e}, -1" for e in range(4)]
            t = O('x2p', 188) - 20
            t = put(t, T_("\n".join(pre[:3])), 12, 's')
            for ln in pre[3:]: t = put(t, T_(ln), 4, 's' if ln.startswith('s_') else 'v', chain=True)
            t = max(t + 1, O('x2p', 188))
            for i_ in range(4):
                if i_: t = put(t, T_(f"s_add_u32 s{S_T1}, s{S_T1}, 4096"), 4, 's', chain=True)
                t = put(t + (1 if i_ else 0), lambda: E.vm(f"buffer_store_dwordx4 a[232:235], v30, {WSRD}, s{S_T1} offen", 'x2p'), vm=True, chain=True)
            assert 185 < O('x2p', 188) and t < est[6], t
        hslot = {}
        for n0 in range(0, 56, 4):
            tt, _, p = order[n0]
            sreg = S_HA[(n0 >> 2) & 1]
            rdy = chk['A' if p < 3 else 'B' if p < 6 else 'C'] + 1
            prev = max([hslot[m] for m in range(max(0, n0 - 8), max(0, n0 - 4))], default=0)
            ta = put(max(prev, rdy - 3), lambda tt=tt, p=p, sreg=sreg: E(f"s_add_u32 s{sreg}, s{S_HLD}, {WS_H + tt*114688 + tau[p]*4096}"), k='s') + 1
            for n in range(n0, n0 + 4):
                assert order[n][0] == tt and order[n][2] == p and order[n][1] == n - n0
                q = n % NH
                if n < NH: free = 0 if q < 5 else 192 + (q - 5) + 1
                else: free = G2 + 2*(n - NH) + 2
                off = (n - n0)*1024
                hslot[n] = put(max(rdy, free, ta), lambda n=n, sreg=sreg, off=off: E.vm(f"buffer_load_dwordx4 {hreg(n)}, v{VL16}, {WSRD}, s{sreg} offen" + (f" offset:{off}" if off else "") + LSC, f'h{L}_{n}'), vm=True)
                assert hslot[n] < G2 + 2*n - 6, (L, n, hslot[n])
        if opt.get('verbose'): print('L', L, 'est', est, 'w', w4end, w5end, w6end, 'pub', pub, 'chk', chk, 'h', [hslot[n] for n in range(56)])
        if L == 0:
            firstuse = {}
            for n, (tt, rho, p) in enumerate(order): firstuse.setdefault(rho*7 + tau[p], G2 + 2*n)
            t = O('wd_at', 70)
            if opt.get('wdt', 0):
                assert WDC and opt.get('wcr', 0)
                ta = O('wdt_at', 40); tsp = O('wdt_sp', 4)
                assert ta + tsp < t - 2
                pre = [f"s_lshr_b32 s26, s{S_C}, 3", "s_lshl_b32 s26, s26, 1", f"s_add_u32 s26, s26, s{S_TH}", "s_mul_i32 s26, s26, 14336", f"s_add_u32 s26, s26, s{S_WDB}",
                       "v_lshlrev_b32 v240, 7, v8", "v_min_u32 v241, 47, v8", "v_lshlrev_b32 v241, 7, v241", "v_add_u32 v241, 8192, v241"]
                for i_, ln in enumerate(pre): at(ta - 12 + i_, T_(ln), 4, 's' if ln.startswith('s_') else 'v')
                for i_ in range(2):
                    tt_ = ta + i_*tsp
                    while tt_ in vslots: tt_ += 1
                    vslots.add(tt_)
                    at(tt_, lambda i_=i_: E.vm(f"buffer_load_dword v{240+i_}, v{240+i_}, {WSRD}, s26 offen", 'wdt'), 4, 'm')
                    assert tt_ < t - 1
            rest_ops = BK['b'].ops; BK['b'].ops = []
            kcur = None
            for (c_, vm_, f_) in rest_ops:
                info = getattr(f_, 'info', None)
                assert info is not None and info[0] == 'wd', 'only Wd loads may be left for G1'
                if not vm_:
                    at(t - 1, f_, 0, 's')
                else:
                    while t in vslots: t += 1
                    assert t < firstuse[info[1]] - 8, ('Wd deadline', info, t)
                    at(t, f_, 0, 'm'); t += O('wd_sp', 2)
            if opt.get('verbose'): print('last Wd load at', t)
        RB = RING
        def red_write_ops(tt):
            ops = []
            for m in (1, 3, 2):
                pd, g = m & 1, m >> 1
                src = acc2[tt][pd] + 8*g
                for hlf in range(2):
                    ops.append(lambda m=m, src=src, hlf=hlf: E.ds(f"ds_write_b128 v{VRW[m-1]}, v[{src+4*hlf}:{src+4*hlf+3}] offset:{1024*hlf}", f'rw{L}{tt}'))
            return ops
        def red_read_ops(tt):
            ops = []
            for m in range(3):
                for hlf in range(2):
                    ops.append(lambda m=m, hlf=hlf: E.ds(f"ds_read_b128 v[{RB+8*m+4*hlf}:{RB+8*m+4*hlf+3}], v{VRR} offset:{2048*m+1024*hlf}", f'rr{L}{tt}'))
            return ops
        def out_store(tt, src):
            if L == 0:
                sadd(S_T0, S_XML, WS_XN + tt*32768)
                E.vm(f"buffer_store_dwordx4 v[{src}:{src+3}], v{VL16}, {WSRD}, s{S_T0} offen", f'x2{tt}')
            else:
                sadd(S_T0, 30, tt*32768)
                E.vm(f"buffer_store_dwordx4 v[{src}:{src+3}], v28, s[{S_OUT}:{S_OUT+3}], s{S_T0} offen" + (FL('o', L) or FL(f'ot{tt}', '')), f'o2{tt}')
        if L == 1:
            def out_setup():
                return [T_(x) for x in f"""v_and_b32 v28, 31, v0
                v_lshlrev_b32 v28, 10, v28
                v_bfe_u32 v29, v0, 5, 1
                v_lshl_add_u32 v28, v29, 4, v28
                s_lshl_b32 s30, s{S_C}, 17
                s_lshl_b32 s25, s{S_TH}, 16
                s_add_u32 s30, s30, s25
                s_and_b32 s25, s{S_W}, 1
                s_lshl_b32 s25, s25, 1
                s_lshr_b32 s26, s{S_W}, 1
                s_add_u32 s25, s25, s26
                s_lshl_b32 s26, s{S_J}, 2
                s_add_u32 s25, s25, s26
                s_lshl_b32 s25, s25, 5
                s_add_u32 s30, s30, s25""".split('\n')]
            t = 72
            for f in out_setup(): t = put(t, f, k='v', chain=True)
        XU = RB + 24
        if not NOXM:
            t = put(G2 + (26 if not XML else O('xmw', 40)), lambda: E.wait_vm(f'xm{L}'), k='s')
            for e in range(4):
                t = put(t, T_(f"v_lshlrev_b32 v{XU+2*e}, 16, v{XM1+e}"))
                t = put(t, T_(f"v_and_b32 v{XU+1+2*e}, s{S_HI}, v{XM1+e}"))
        m0_last = G2 + 2*last0 + 1
        t = m0_last + 5
        for f in red_write_ops(0): t = put(t, f, 8, 'm')
        t = put(t + 1, lambda: (E.wait_ds(f'rw{L}0'), barrier()), 8, 's')
        t += 1
        for f in red_read_ops(0): t = put(t, f, 4, 'm')
        own = acc2[0][0]
        t = put(t + 3, lambda: E.wait_ds(f'rr{L}0'), k='s')
        tb = t
        for e in range(8): t = put(t, T_(f"v_add_f32 v{RB+e}, v{RB+e}, v{RB+8+e}"))
        for e in range(8): t = put(t, T_(f"v_add_f32 v{own+e}, v{own+e}, v{RB+16+e}"))
        for e in range(4 if not NOXM else 0):
            t = put(t, T_(f"v_lshlrev_b32 v{RB+8+2*e}, 16, v{XM0+e}"))
            t = put(t, T_(f"v_and_b32 v{RB+9+2*e}, s{S_HI}, v{XM0+e}"))
        for e in range(8): t = put(t, T_(f"v_add_f32 v{own+e}, v{own+e}, v{RB+e}"))
        for e in range(8): t = put(t, T_(f"v_fma_f32 v{own+e}, v{own+e}, s{S_LN2}, v{RB+8+e}" if not NOXM else f"v_mul_f32 v{own+e}, s{S_LN2}, v{own+e}"))
        for e in range(4): t = put(t, T_(f"v_cvt_pk_bf16_f32 v{RB+e}, v{own+2*e}, v{own+2*e+1}"))
        t = put(t + 1, lambda: out_store(0, RB), 8, 'm')
        if opt.get('verbose'): print('tt0 reduction done at', t)
        put(tb + 1, barrier, k='s')
        E.wait_vm(f'x{L}_0')
        stamp(f'L{L}g1')
        for i in range(LA): rd(i)
        def emit_fill(i, mid=None):
            fm, fs, fv = F.pop(i, ([], [], []))
            if mid: mid()
            for f in fm + fs + fv: f()
        for i in range(224):
            _, p, k = seq[i]
            stamp(f'L{L}s{i}')
            if p < 3 and (i % 3) == 0 and k > 0: E.wait_vm(f'x{L}_{k}')
            if i % 2 == 0: E.wait_ds(f'a{L}_{i+1}')
            r = RING + 4*(i % 8)
            c = ACC[accp[p]]
            E(f"v_mfma_f32_32x32x16_bf16 v[{c}:{c+15}], {vr(r, 4)}, v[{XR+4*k}:{XR+4*k+3}], {'0' if k == 0 else f'v[{c}:{c+15}]'}")
            emit_fill(i, (lambda: rd(i + LA)) if i + LA < 224 else None)
        seen_kp = set()
        for n in range(56):
            tt, rho, p = order[n]
            kp = rho*7 + tau[p]
            firstb = not any(o[0] == tt for o in order[:n])
            for ii, pd in enumerate((1, 0) if n in (last0, 55) else (0, 1)):
                i = G2 + 2*n + ii
                stamp(f'L{L}s{i}')
                if ii == 0:
                    E.wait_vm(f'h{L}_{n}')
                    if L == 0 and kp not in seen_kp and not opt.get('nowd', 0) and kp not in wd_kseq(0)[:4*WDD_M]: E.wait_vm(f'wd{kp}'); seen_kp.add(kp)
                c = acc2[tt][pd]
                E(f"v_mfma_f32_32x32x16_bf16 v[{c}:{c+15}], {ar(A_WD + 8*kp + 4*pd, 4)}, {hreg(n)}, {'0' if firstb else f'v[{c}:{c+15}]'}")
                emit_fill(i)
        stamp(f'L{L}g2end')
        for i in sorted(F.keys()):
            assert i > lastslot, i
            emit_fill(i)
        for f in red_write_ops(1): f()
        E.wait_ds(f'rw{L}1'); E("s_barrier")
        for f in red_read_ops(1): f()
        own = acc2[1][0]
        E.wait_ds(f'rr{L}1')
        for e in range(0, 8, 2): E(f"v_pk_add_f32 v[{RB+e}:{RB+e+1}], v[{RB+e}:{RB+e+1}], v[{RB+8+e}:{RB+9+e}]")
        for e in range(0, 8, 2): E(f"v_pk_add_f32 v[{own+e}:{own+e+1}], v[{own+e}:{own+e+1}], v[{RB+16+e}:{RB+17+e}]")
        for e in range(0, 8, 2): E(f"v_pk_add_f32 v[{own+e}:{own+e+1}], v[{own+e}:{own+e+1}], v[{RB+e}:{RB+e+1}]")
        for e in range(0, 8, 2):
            if NOXM: E(f"v_pk_mul_f32 v[{own+e}:{own+e+1}], v[{own+e}:{own+e+1}], s[{S_LN2}:{S_LN2+1}]")
            else: E(f"v_pk_fma_f32 v[{own+e}:{own+e+1}], v[{own+e}:{own+e+1}], s[{S_LN2}:{S_LN2+1}], v[{XU+e}:{XU+e+1}]")
        for e in range(4): E(f"v_cvt_pk_bf16_f32 v{RB+e}, v{own+2*e}, v{own+2*e+1}")
        out_store(1, RB)
        stamp(f'L{L}st')
        if L == 0 and not (opt.get('x2m', 0) and not MODE['slow']):
            publish(S_FX2S, 0, 'x21')
            stamp('x2pub')

    def marker_check(regs_, reload_, tagname):
        ls = E.label('L_mks'); lb = E.label('L_mkb')
        t = 31
        r = list(regs_)
        E(f"v_max3_u32 v{t}, v{r[0]}, v{r[1]}, v{r[min(2, len(r) - 1)]}"); k = 3
        while k + 1 < len(r): E(f"v_max3_u32 v{t}, v{t}, v{r[k]}, v{r[k+1]}"); k += 2
        if k < len(r): E(f"v_max_u32 v{t}, v{t}, v{r[k]}")
        E(f"v_cmp_eq_u32 vcc, -1, v{t}\ns_cbranch_vccnz {ls}\n{lb}:")
        ll = E.label('L_mkl')
        txt = f"{ls}:\ns_mov_b32 s{S_T3}, 0\n{ll}:\n"
        for i, x in enumerate(r):
            l2 = E.label('L_mkn')
            txt += f"""v_cmp_eq_u32 vcc, -1, v{x}
            s_cbranch_vccz {l2}
            {reload_(i)}
            {l2}:
            """
        txt += f"s_add_u32 s{S_T3}, s{S_T3}, 1\ns_waitcnt vmcnt(0)\n"
        if stamps and opt.get('cnt'): txt += f"s_add_u32 s{S_EXP}, s{S_EXP}, {16 if tagname == 'y' else 256}\n"
        txt += f"v_max3_u32 v{t}, v{r[0]}, v{r[1]}, v{r[min(2, len(r) - 1)]}\n"; k = 3
        while k + 1 < len(r): txt += f"v_max3_u32 v{t}, v{t}, v{r[k]}, v{r[k+1]}\n"; k += 2
        if k < len(r): txt += f"v_max_u32 v{t}, v{t}, v{r[k]}\n"
        txt += f"""v_cmp_eq_u32 vcc, -1, v{t}
        s_cmp_gt_u32 s{S_T3}, 0x2000
        s_cbranch_vccz {lb}
        s_cbranch_scc0 {ll}
        s_branch {lb}
        """
        E.out_of_line(txt)

    def q16_poll(fl, tag):
        E(f"s_mov_b32 s25, {fl}")
        E.vm(f"buffer_load_dword v{VPOLL}, v30, {WSRD}, s25 offen sc1", tag)
    def q16_check(fl, tag):
        ls = E.label('L_qs'); lb = E.label('L_qb'); ll = E.label('L_ql')
        E.wait_vm(tag)
        E(f"v_cmp_ne_u32 vcc, s{S_N}, v{VPOLL}\ns_cbranch_vccnz {ls}\n{lb}:")
        E.out_of_line(f"""
        {ls}:
        s_mov_b32 s{S_T3}, 0
        s_mov_b32 s25, {fl}
        {ll}:
        buffer_load_dword v{VPOLL}, v30, {WSRD}, s25 offen sc1
        s_add_u32 s{S_T3}, s{S_T3}, 1
        {f's_add_u32 s{S_EXP}, s{S_EXP}, {1 << 18}' if stamps and opt.get('cnt') else ''}
        s_waitcnt vmcnt(0)
        v_cmp_ne_u32 vcc, s{S_N}, v{VPOLL}
        s_nop 4
        s_cbranch_vccz {lb}
        s_cmp_lt_u32 s{S_T3}, 0x2000
        s_cbranch_scc1 {ll}
        s_branch {lb}""")
        stamp(tag)
    SBR = 160
    def s1b_poll():
        E(f"v_lshlrev_b32 v30, 7, v8\nv_add_u32 v30, {FL_S1B}, v30")
        E.vm(f"buffer_load_dwordx4 v[{SBR}:{SBR+3}], v30, {WSRD}, 0 offen sc1", 's1bp')
    def s1b_check():
        all_flags_check(SBR, 30, S_N, 's1bp')
        stamp('s1b')
    PREPE = opt.get('prepe', 0)
    def prep_part(rawwait=None):
        PB = 64
        for i in range(4): E(f"v_mov_b32 v{108+i}, -1")
        def trd(n):
            if SPLIT and n >= 7:
                E(f"ds_read_b64_tr_b16 {ar(4*(n-7), 2)}, v{VTR} offset:{1024*n}")
                E(f"ds_read_b64_tr_b16 {ar(4*(n-7)+2, 2)}, v{VTR} offset:{1024*n + 512}")
                return
            E(f"ds_read_b64_tr_b16 v[{PB+4*n}:{PB+4*n+1}], v{VTR} offset:{1024*n}")
            E(f"ds_read_b64_tr_b16 v[{PB+4*n+2}:{PB+4*n+3}], v{VTR} offset:{1024*n + 512}")
        def pst(n):
            if n < 7:
                if n: E(f"s_add_u32 s{S_W1DST}, s{S_W1DST}, 131072")
                E(f"buffer_store_dwordx4 v[{PB+4*n}:{PB+4*n+3}], v{W1D}, {WSRD}, s{S_W1DST} offen sc1")
            else:
                if n > 7: E(f"s_add_u32 s{S_WDDST}, s{S_WDDST}, 229376")
                E(f"buffer_store_dwordx4 v[{PB+4*n}:{PB+4*n+3}], v{WDD}, {WSRD}, s{S_WDDST} offen sc1")
        stamp_dup('xiss')
        if HLATE:
            E(f"""
            s_and_b32 s25, s{S_W}, 1
            s_add_u32 s24, s{S_CB}, s25
            s_lshl_b32 s24, s24, 12
            s_mul_i32 s25, s25, {HC_CH}
            """)
            h_dma(HLATE, 24, 25)
        if rawwait is not None: E(f"s_waitcnt vmcnt({rawwait + 4*len(HLATE)})")
        for n in range(4): trd(n)
        for n in range(11):
            if n + 4 < 11: trd(n + 4)
            if SPLIT and n >= 7: continue
            E(f"s_waitcnt lgkmcnt({2*min(4, 10 - n)})")
            if n >= 7 and opt.get('xnowd'): E(f"buffer_store_dword v{PB}, v{VT0}, {WSRD}, 0 offen offset:64")
            else: pst(n)
        for i in range(4 if not YSPL else 0):
            if i: E(f"s_add_u32 s{S_YP}, s{S_YP}, 262144")
            if opt.get('xnoym'): E(f"buffer_store_dword v{PB}, v{VT0}, {WSRD}, 0 offen offset:64")
            else: E(f"buffer_store_dwordx4 v[108:111], v{VYP}, {WSRD}, s{S_YP} offen sc1")
    def conv():
        lx = E.label('L_xp'); lbx = E.label('L_bx')
        if WDD_M: E("s_load_dwordx2 s[76:77], s[0:1], 72")
        E(f"ds_write_b16 v61, v{HEAD}")
        E(f"s_cmp_ge_u32 s{S_W}, 2\ns_cbranch_scc1 {lx}")
        XG = 64
        def xload(i): return f"buffer_load_dwordx4 v[{XG+4*i}:{XG+4*i+3}], v{VL16}, {WSRD}, s{S_XL + (i >> 2)} offen" + (f" offset:{1024*(i & 3)}" if i & 3 else "") + " sc1"
        NX = 4 if P1 else 8
        for i in range(NX): E(xload(i))
        stamp('xiss')
        ACCc = 192
        for i in range(32): E(f"v_mov_b32 v{ACCc+i}, 0")
        E("s_waitcnt vmcnt(0)")
        marker_check([XG + 4*i for i in range(NX)], xload, 'x')
        stamp('xok')
        if P1:
            for i in range(4): E(f"ds_write_b128 v{VXW}, v[{XG+4*i}:{XG+4*i+3}] offset:{i*1024}")
            for i in range(4):
                if i < 3: E(f"v_mov_b32_dpp v{96+i}, v{XG+4*(i+1)} wave_rol:1 row_mask:0xf bank_mask:0xf")
                else: E(f"v_mov_b32 v{96+i}, 0")
            for i in range(4):
                for d in range(3): E(f"v_alignbit_b32 v{XG+16+4*i+d}, v{XG+4*i+d+1}, v{XG+4*i+d}, 16")
            for i in range(4): E(f"v_mov_b32_dpp v{96+i}, v{XG+4*i} wave_shl:1 row_mask:0xf bank_mask:0xf")
            for i in range(4):
                E(f"v_alignbit_b32 v{XG+16+4*i+3}, v{96+i}, v{XG+4*i+3}, 16")
            for i in range(4): E(f"ds_write_b128 v{VXW}, v[{XG+16+4*i}:{XG+16+4*i+3}] offset:{XR_P + i*1024}")
        else:
            for i in range(8): E(f"ds_write_b128 v{VXW}, v[{XG+4*i}:{XG+4*i+3}] offset:{(i >> 2)*XR_P + (i & 3)*1024}")
        E(f"s_branch {lbx}\n{lx}:")
        if not PREPE: prep_part()
        else: stamp_dup('xiss')
        stamp_dup('xok')
        for i in range(32): E(f"v_mov_b32 v{ACCc+i}, 0")
        if HLATE: E(f"s_waitcnt vmcnt({NPS})")
        S1PRE = opt.get('s1pre', 0)
        if S1PRE:
            assert YSPL
            E(f"s_waitcnt vmcnt(0)\nbuffer_store_dword v{VONE}, v{VS1F}, {WSRD}, s{S_S1F} offen sc1")
        E(f"{lbx}:")
        E("s_waitcnt lgkmcnt(0)")
        E.vmq = []; E.dsq = []
        if WDD_M: E(srd_fix(76, 1835008))
        E("s_barrier")
        stamp('bx')
        def AF(st, g): return 64 + 32*st + 4*g
        def BF(st, u): return 128 + 32*st + 4*u
        def rdA(st, g, rho): return f"ds_read_b128 v[{AF(st,g)}:{AF(st,g)+3}], v{VA_} offset:{512*g + 64*rho}"
        def rdB(st, u, rho): return f"ds_read_b128 v[{BF(st,u)}:{BF(st,u)+3}], v{VB_} offset:{512*(7-u) + 64*rho}"
        pairs = [(t, g) for t in range(8) for g in range(t+1)]
        order = []
        for t in range(8): order.append(('B', t)); order.append(('A', t))
        def mf(st, t, g):
            return f"v_mfma_f32_16x16x32_bf16 v[{ACCc+4*t}:{ACCc+4*t+3}], v[{AF(st,g)}:{AF(st,g)+3}], v[{BF(st,t-g)}:{BF(st,t-g)+3}], v[{ACCc+4*t}:{ACCc+4*t+3}]"
        S1AT = opt.get('s1at', 24); S1POLL = opt.get('s1poll', 96); S1CHK = opt.get('s1chk', 118)
        acts = {}
        def act(i, f): acts.setdefault(i, []).append(f)
        def s1publish():
            if SPLIT: E(f"s_waitcnt vmcnt({len(E.vmq)})")
            else: E("s_waitcnt vmcnt(0)"); E.vmq = []
            E.vm(f"buffer_store_dword v{VONE}, v{VS1F}, {WSRD}, s{S_S1F} offen sc1", 's1st')
        def s1poll():
            E.vm(f"buffer_load_dwordx4 v[24:27], v{VS1P}, {WSRD}, 0 offen sc1", 's1')
            if YSPL and S1BP == 2: s1b_poll()
        def s1check(bar=True):
            all_flags_check(24, VS1P, S_N, 's1')
            if YSPL and S1BP == 2: s1b_check()
            if bar: E("s_barrier")
            stamp('s1')
        def qload():
            E.vm(f"buffer_load_dwordx4 {ar(A_Q, 4)}, v9, s[{S_Q}:{S_Q+3}], s{S_QO} offen" + NT('q'), 'q')
            E.vm(f"buffer_load_dwordx4 {ar(A_Q+4, 4)}, v9, s[{S_Q}:{S_Q+3}], s{S_QO} offen offset:128" + NT('q'), 'q')
        if not S1PRE: act(S1AT, s1publish)
        act(opt.get('qat', 40), qload)
        if SPLIT:
            m0 = opt.get('ymat', 72); sp = opt.get('ymsp', 2)
            if YSPL:
                act(m0 - 1, lambda: E("\n".join(f"v_mov_b32 v{24+i}, -1" for i in range(4)) + "\ns_add_u32 s24, s58, 262144"))
                act(m0, lambda: E.vm(f"buffer_store_dwordx4 v[24:27], v{VYS}, {WSRD}, s58 offen sc1", 'ym'))
                act(m0 + sp, lambda: E.vm(f"buffer_store_dwordx4 v[24:27], v{VYS}, {WSRD}, s24 offen sc1", 'ym'))
            w0 = opt.get('wdpat', m0 + 2*sp)
            for n in range(4):
                act(w0 + n*sp, lambda n=n: (E(f"s_add_u32 s{S_WDDST}, s{S_WDDST}, 229376") if n else None, E.vm(f"buffer_store_dwordx4 {ar(4*n, 4)}, v{WDD}, {WSRD}, s{S_WDDST} offen sc1", 'wds' if WDC else 'ym')))
        if WDD_M:
            assert SPLIT
            r0 = opt.get('wdrat', 16); rsp = opt.get('wdrsp', 2)
            for b in range(8*WDD_M):
                kp = wd_kseq(0)[b >> 1]
                act(r0 + b*rsp, lambda b=b, kp=kp: (E(f"s_add_u32 m0, s{S_W1K}, {(4 - (b >> 3))*SLOT + (b & 7)*1024}\ns_add_u32 s26, s74, {kp*16384 + (b & 1)*8192}"),
                                                    E.vm(f"buffer_load_dwordx4 v{VDR}, s[76:79], s26 offen lds", 'wraw')))
        def htouch():
            m = opt['ht']
            E(f"v_lshrrev_b32 v246, 3, v8\nv_lshlrev_b32 v246, 12, v246\nv_and_b32 v247, {m}, v8\nv_lshl_add_u32 v246, v247, 7, v246")
            E(f"s_add_u32 s24, s{S_HST}, {WS_H}")
            E(f"s_mov_b32 exec_hi, 0x00ffffff")
            E.vm(f"buffer_load_dword v247, v246, {WSRD}, s24 offen", 'ht')
            E(f"s_mov_b64 exec, -1")
        if 'ht' in opt: act(opt.get('htat', 20), htouch)
        POST = S1CHK >= 1000
        if S1POLL < 1000: act(S1POLL, s1poll)
        B = BK['b'] = make_bulk()
        if not POST:
            act(S1CHK, s1check)
            nm = opt.get('bk_m', 5)
            for k in range(nm): act(S1CHK + 2 + k*opt.get('bk_msp', 4), lambda: B.emit(1))
            assert S1CHK + 2 + nm*opt.get('bk_msp', 4) <= 148
        def do(i):
            for f in acts.pop(i, []): f()
        for rho in range(4):
            st = rho & 1
            nxt = []
            if rho < 3: nxt = [(rdB(st^1, x, rho+1) if k == 'B' else rdA(st^1, x, rho+1)) for (k, x) in order]
            if rho == 0:
                reads = [(rdB(0, x, 0) if k == 'B' else rdA(0, x, 0)) for (k, x) in order]
                for r_ in reads[:14]: E(r_)
                issued = 14; done = 0
                allq = reads + nxt
                for idx, (t, g) in enumerate(pairs):
                    if g == 0:
                        E(f"s_waitcnt lgkmcnt({issued - 2*(t+1)})"); done = 2*(t+1)
                    E(mf(0, t, g))
                    do(idx)
                    if t == 7 and g == 4:
                        done += 6
                        E(f"s_waitcnt lgkmcnt({issued - done})")
                    if issued < len(allq) and issued - done < 14:
                        E(allq[issued]); issued += 1
                assert issued == len(allq)
            else:
                E("s_waitcnt lgkmcnt(0)")
                k = 0
                for idx, (t, g) in enumerate(pairs):
                    E(mf(st, t, g))
                    do(36*rho + idx)
                    if nxt and idx % 2 == 0 and k < 16:
                        E(nxt[k]); k += 1
            if rho < 3: stamp(f'rho{rho+1}')
        for i in sorted(acts): do(i)
        stamp('mfend')
        if opt.get('rot', 0):
            E(f"s_lshr_b32 s25, s{S_C}, 3\ns_lshl_b32 s25, s25, 1\ns_add_u32 s25, s25, s{S_TH}")
            for r_ in range(4):
                E(f"""s_add_u32 s24, s25, {r_}
                s_and_b32 s24, s24, 3
                s_mul_i32 s24, s24, {7*2048}
                s_add_u32 s{S_WDR + r_}, s{S_WDB}, s24""")
        def s1b_publish(fl, tag):
            E(f"s_add_u32 s24, s86, {fl}")
            E.vm(f"buffer_store_dword v{VONE}, v{VT0}, {WSRD}, s24 offen sc1", tag)
        if YSPL and PUBB == 1: E.wait_vm('ym')
        E("s_barrier")
        if YSPL and PUBB == 1: s1b_publish(FL_S1B, 's1b')
        E(f"""
        v_add_u32 v20, s{S_W1K}, v{VL16}
        s_lshl_b32 s24, s{S_W}, 11
        v_add_u32 v21, s24, v{VL16}
        s_nop 4
        """)
        for t in range(8): E.ds(f"ds_write_b128 v20, v[{ACCc+4*t}:{ACCc+4*t+3}] offset:{1024*t}", 'rdw')
        E.wait_ds('rdw')
        if YSPL and PUBB == 0: E.wait_vm('ym')
        if WDC: E.wait_vm('wds')
        if S1CHK == 1002: s1check(bar=False)
        E("s_barrier")
        if YSPL and PUBB == 0: s1b_publish(FL_S1B, 's1b')
        if WDC: s1b_publish(FL_S1C, 's1c')
        stamp('red2')
        if S1POLL == 1000: s1poll()
        if not POST or S1CHK == 1002: B.emit(opt.get('bk_red', 0))
        for tau in range(2):
            for src in range(4):
                E.ds(f"ds_read_b128 v[{64+32*tau+4*src}:{67+32*tau+4*src}], v21 offset:{8192*src + 1024*tau}", f'rdr{tau}')
            for ch in range(2):
                E.ds(f"ds_read_b128 v[{128+8*tau+4*ch}:{131+8*tau+4*ch}], v{VKVW} offset:{ch*XR_CH + 512*(1-tau)}", f'rdr{tau}')
        for tau in range(2):
            E.wait_ds(f'rdr{tau}')
            base = 64 + 32*tau
            for ch in range(2):
                kvr = 128 + 8*tau + 4*ch
                for r in range(4): E(f"v_add_f32 v{base+8*ch+r}, v{base+8*ch+r}, v{base+8*ch+r+4}")
                for d in range(4): E(f"v_lshlrev_b32 v{kvr+d}, 16, v{kvr+d}")
                for r in range(4): E(f"v_fmac_f32 v{base+8*ch+r}, s{60+ch}, v{kvr+3-r}")
            for r in range(4): E(f"v_cvt_pk_bf16_f32 v{148+r}, v{base+r}, v{base+8+r}")
            o = 152 + 4*tau
            E(f"""
            v_mov_b32 v{o}, v150
            v_mov_b32 v{o+1}, v148
            v_mov_b32 v{o+2}, v151
            v_mov_b32 v{o+3}, v149
            v_mov_b32_dpp v{o}, v148 row_ror:8 row_mask:0xf bank_mask:0x3
            v_mov_b32_dpp v{o+1}, v150 row_ror:8 row_mask:0xf bank_mask:0xc
            v_mov_b32_dpp v{o+2}, v149 row_ror:8 row_mask:0xf bank_mask:0x3
            v_mov_b32_dpp v{o+3}, v151 row_ror:8 row_mask:0xf bank_mask:0xc
            """)
            if tau == 1: E(f"s_add_u32 s58, s58, 262144")
            E.vm(f"buffer_store_dwordx4 v[{o}:{o+3}], v{VYS}, {WSRD}, s58 offen " + opt.get('flyst', 'sc1').replace('+', ' '), 'yst')
        stamp('yst')
        if opt.get('xyack'): E.wait_vm('yst'); stamp('yack')
        if S1POLL == 1001: s1poll()
        if POST and S1CHK != 1002: s1check()

    def wdd_read(mi):
        E.wait_vm('wraw')
        for kpi in range(4):
            kp = wd_kseq(0)[4*mi + kpi]
            for pd in range(2):
                for h in range(2):
                    E.ds(f"ds_read_b64_tr_b16 {ar(A_WD + 8*kp + 4*pd + 2*h, 2)}, v{VDT+pd} offset:{kpi*2048 + 512*h}", f'wdd{mi}')
        if mi + 1 < WDD_M: E(f"v_subrev_u32 v{VDT}, {SLOT}, v{VDT}\nv_subrev_u32 v{VDT+1}, {SLOT}, v{VDT+1}")
    def rest():
        conv()
        B = BK['b']
        if WDD_M:
            assert WDD_M <= 2 or opt.get('bk_red', 0) == 0
            for mi in range(WDD_M): wdd_read(mi)
            E.wait_ds(f'wdd{WDD_M - 1}')
        def yload(i):
            c2, k = i >> 2, i & 3
            return f"buffer_load_dword v{Y+i}, v10, {WSRD}, s{59 if c2 == 0 else 24} offen" + (f" offset:{YK*k}" if k else "") + " sc1"
        E(f"s_add_u32 s24, s59, {YC2}")
        if opt.get('xw1t'):
            B.emit(4); E("s_waitcnt vmcnt(10)"); stamp('w4')
            B.emit(4); E("s_waitcnt vmcnt(10)"); stamp('w8'); E("s_waitcnt vmcnt(8)"); stamp('wy')
            B.emit(4); E("s_waitcnt vmcnt(8)"); stamp('w12')
            B.emit(4); E("s_waitcnt vmcnt(8)"); stamp('w16'); E("s_waitcnt vmcnt(4)"); stamp('w20'); E("s_waitcnt vmcnt(0)"); stamp('w24')
        if YSPL and S1BP == 0: s1b_poll()
        B.emit(opt.get('bk_a', 0))
        stamp('bka')
        if YSPL and S1BP == 1: s1b_poll()
        Q16 = S1BP == 3 or opt.get('wcr', 0)
        if Q16: E(f"v_lshrrev_b32 v30, 2, v8\nv_lshlrev_b32 v30, 7, v30\nv_and_b32 v31, 3, v8\nv_lshl_add_u32 v30, v31, 2, v30\ns_lshl_b32 s25, s{S_W}, 11\nv_add_u32 v30, s25, v30")
        if YSPL and S1BP == 3: q16_poll(FL_S1B, 's1b')
        if YSPL and S1BP != 2:
            B.emit(opt.get('bk_b', 0))
            stamp('bkb')
            if S1BP != 3: s1b_check()
        def yissue():
            if opt.get('xnoy'): E(f"v_mov_b32 v10, 0")
            for i in range(8): E.vm(yload(i) if opt.get('ysc', 1) else yload(i).replace(' sc1', ''), 'y')
            stamp('yiss')
            if WDC and opt.get('wcr', 0): q16_poll(FL_S1C, 's1c')
            B.emit(opt.get('bk_y', 0))
            stamp('bky')
        if S1BP != 3:
            yissue()
            assert 'w1_3' not in E.seen, 'slot 0 is still in use'
        for i in range(8): E(f"v_accvgpr_read_b32 v{X+i}, a{A_Q+i}")
        if S1BP == 3:
            assert 'w1_3' not in E.seen, 'slot 0 is still in use'
            R_pre(0, pre=lambda: q16_check(FL_S1B, 's1b'), between=yissue)
        else: R_pre(0)
        stamp('qst')
        B.emit(opt.get('bk_q', 0))
        E.wait_vm('y')
        marker_check([Y + i for i in range(8)], yload, 'y')
        stamp('yok')
        B.emit(opt.get('bk_r0', 16))
        for i in range(8): E(f"v_accvgpr_write_b32 a{A_Y+i}, v{Y+i}")
        def w1left():
            n = 0; k = 0
            for o in B.ops:
                if o[1]:
                    k += 1
                    if getattr(o[2], 'info', None) is None: n = k
            return n
        R_post(0, early=lambda: B.emit(max(opt.get('bk_r1', 0), w1left())), late=None, pre=(lambda: q16_check(FL_S1C, 's1c')) if WDC and opt.get('wcr', 0) else None)
        assert all(('w1_%d' % p) in E.seen for p in range(4)) and not any(getattr(o[2], 'info', None) is None for o in B.ops), 'W1 tiles 0..3 must be under way before the XN stores'
        B.emit(opt.get('bk_xn', 0))
        Rpub(0)
        layer(0)
        X2M = opt.get('x2m', 0) and not MODE['slow']
        def x2load(i): return f"buffer_load_dwordx4 v[{X+4*i}:{X+4*i+3}], v{VR}, {WSRD}, s{S_T0+i} offen" + LSC
        if X2M:
            sadd(S_T0, S_R, WS_XN); sadd(S_T1, S_R, WS_XN + 4096)
            for i in range(2): E.vm(x2load(i), 'x2l')
        else: poll_issue(VP8, S_FX2L, 0, 'px2')
        if P1:
            unpack(T, 20, 8)
            E(f"""s_lshr_b32 s24, s{S_C}, 3
            s_mul_i32 s24, s24, {7*131072}
            s_and_b32 s25, s{S_C}, 7
            s_lshl_b32 s25, s25, 17
            s_sub_u32 s24, s24, s25
            s_add_u32 s{S_XMD}, s24, {WS_Y}""")
        if not X2M: poll_check(VP8, S_FX2L, 0, 'px2')
        for r_, c_ in ((S_FXNS, 16*256), (S_FXNL, 16*256), (S_FHS, 16*1024), (S_FHL, 16*1024)): E(f"s_add_u32 s{r_}, s{r_}, {c_}")
        if not X2M:
            stamp('x2ok')
            sadd(S_T0, S_R, WS_XN); sadd(S_T1, S_R, WS_XN + 4096)
            for i in range(2): E.vm(x2load(i), 'x2l')
        for i in range(8): E(f"v_accvgpr_read_b32 v{Y+i}, a{A_Y+i}")
        if opt.get('ropt', 0): unpack(YF, Y, 8)
        E.wait_vm('x2l')
        if X2M:
            marker_check([X, X + 4], x2load, 'x2')
            stamp('x2ok')
        else: stamp_dup('x2d')
        R_pre(1)
        R_post(1)
        Rpub(1)
        layer(1)
        E.wait_vm_all()

    def s0cmp(val): return "\n".join([f"v_xor_b32 v{S0R+i}, s{val}, v{S0R+i}" for i in range(4)] +
                                     [f"v_or3_b32 v{S0R}, v{S0R}, v{S0R+1}, v{S0R+2}", f"v_or_b32 v{S0R}, v{S0R}, v{S0R+3}"])
    if PREPE:
        assert RAWPOS >= 1 and E.vm_after('s0') == NKV
        E(f"s_cmp_lt_u32 s{S_W}, 2\ns_cbranch_scc1 L_pe0")
        prep_part(rawwait=1 + NKV)
        E(f"s_waitcnt vmcnt({NKV + 4*len(HLATE) + NPS})\ns_branch L_pe1\nL_pe0:")
        if S0SC:
            E(f"""s_and_b32 s24, s{S_XCC}, 7
            s_mul_i32 s25, s24, s24
            s_lshl_b32 s25, s25, 16
            s_lshl_b32 s24, s24, 6
            s_add_u32 s24, s24, s25
            s_add_u32 s24, s24, 1
            s_lshl_b32 s24, s24, 5
            s_waitcnt lgkmcnt(0)
            s_cmp_eq_u32 s29, s24
            {'' if force_slow else 's_cbranch_scc1 L_s0b'}
            buffer_load_dwordx4 v[{S0R}:{S0R+3}], v30, {WSRD}, 0 offen sc1
            {f's_add_u32 s{S_EXP}, s{S_EXP}, {1 << 24}' if stamps and opt.get('cnt') else ''}
            s_waitcnt vmcnt(0)
            L_pe1:""")
        elif opt.get('xnos0'): E("s_branch L_s0b\nL_pe1:")
        else: E(f"s_waitcnt vmcnt({NKV})\nL_pe1:")
        E.vmq = []
    else: E.wait_vm('s0')
    E(s0cmp(S_XCC))
    E(f"v_cmp_ne_u32 vcc, 0, v{S0R}")
    E("s_branch L_s0s" if force_slow else "s_cbranch_vccnz L_s0s")
    E("L_s0b:")
    E.out_of_line(f"""
    L_s0s:
    s_mov_b32 s{S_T3}, 0
    L_s0l:
    v_cmp_lt_u32 vcc, 7, v{S0R}
    s_cmp_gt_u32 s{S_T3}, 0x2000
    s_cbranch_vccz L_slow
    s_cbranch_scc1 L_s0b
    buffer_load_dwordx4 v[{S0R}:{S0R+3}], v30, {WSRD}, 0 offen sc1
    s_add_u32 s{S_T3}, s{S_T3}, 1
    {f's_add_u32 s{S_EXP}, s{S_EXP}, {1 << 24}' if stamps and opt.get('cnt') else ''}
    s_waitcnt vmcnt(0)
    {s0cmp(S_XCC)}
    v_cmp_ne_u32 vcc, 0, v{S0R}
    {'s_branch L_s0l' if force_slow else 's_cbranch_vccnz L_s0l'}
    s_branch L_s0b""")
    stamp('s0')
    Efast = E
    Es = Emit(); Es.vmq = []; Es.dsq = list(E.dsq); Es.seen = set(E.seen); Es.nl = 100000
    E = Es; MODE['slow'] = True
    E(f"""
    L_slow:
    s_mov_b32 s{S_EXP}, 2
    s_waitcnt vmcnt(0)
    buffer_wbl2 sc1
    s_waitcnt vmcnt(0)
    s_barrier
    s_add_u32 s24, s86, {FL_S0B}
    buffer_store_dword v{VONE}, v{VT0}, {WSRD}, s24 offen sc1
    s_mov_b32 s25, {FL_S0B - FL_S0}
    s_mov_b32 s{S_T3}, 0
    L_s0bl:
    buffer_load_dwordx4 v[{S0R}:{S0R+3}], v30, {WSRD}, s25 offen sc1
    s_add_u32 s{S_T3}, s{S_T3}, 1
    s_waitcnt vmcnt(0)
    {s0cmp(S_N)}
    v_cmp_ne_u32 vcc, 0, v{S0R}
    s_cmp_gt_u32 s{S_T3}, 0x2000
    s_cbranch_scc1 L_s0bx
    s_cbranch_vccnz L_s0bl
    L_s0bx:
    buffer_inv sc1
    s_waitcnt vmcnt(0)
    """)
    rest()
    E("s_branch L_fin")
    E = Efast; MODE['slow'] = False
    rest()
    E("L_fin:")
    if stamps:
        stamp('end')
        n = len(names)
        E("s_memrealtime s[24:25]")
        E("s_waitcnt lgkmcnt(0)")
        for k in (n - 2, n - 1): E(f"v_writelane_b32 v{VSTAMP}, s{SP[k & 1]}, {k}")
        E(f"""
        v_writelane_b32 v{VSTAMP}, s100, 61
        v_writelane_b32 v{VSTAMP}, s24, 62
        v_writelane_b32 v{VSTAMP}, s{S_EXP}, 63
        s_lshl_b32 s25, s2, 10
        s_lshl_b32 s26, s{S_W}, 8
        s_add_u32 s25, s25, s26
        s_add_u32 s25, s25, {WS_STAMP}
        v_lshrrev_b32 v20, 2, v{VL16}
        buffer_store_dword v{VSTAMP}, v20, {WSRD}, s25 offen
        s_waitcnt vmcnt(0)
        """)
        assert n < 60
        print('k3 stamps:', ','.join(names))
        open('last_stamps.txt', 'w').write(','.join(names))
    E("L_end:")
    E("s_endpgm")
    main = hazard_pass(E.L[1:], verbose=opt.get('verbose', False))
    tail = list(E.tail) + ['L_codeend:'] + hazard_pass(Es.L) + list(Es.tail)
    txt = E.L[0] + '\n' + '\n'.join(('    ' + l if not l.endswith(':') else l) for l in main) + '\n'
    txt += '\n'.join(('    ' + l if not l.endswith(':') else l) for l in tail) + '\n'
    txt += "    s_endpgm\n"
    return txt + kd(name, 512, 102, accum=256)

if __name__ == '__main__':
    st = 'stamps' in sys.argv; slow = 'slow' in sys.argv
    opt = {'verbose': 'v' in sys.argv}
    for a in sys.argv[2:]:
        if '=' in a:
            k_, v_ = a.split('=')
            opt[k_] = v_.split(',') if k_ == 'st' else (v_ if k_.startswith('fl') else int(v_))
    kname = NAME + '_kernel'
    txt = KERNARG_COMMENT
    txt += f"; @launch grid=(256,1,1) block=(256,1,1) lds={K1_LDS}\n"
    txt += TARGET + gen(kname, stamps=st, force_slow=slow, opt=opt)
    txt += ".text\n.fill 64, 4, 0xbf800000\n"
    open(sys.argv[1], 'w').write(txt)
```

```python
import sys
sys.path.insert(0, 'gen')
from emit import *
from layout3 import *
from common import head, kd, TARGET, KERNARG_COMMENT, NAME

K1_LDS = 163840
SLOT = 32768
SCR = SLOT
STATS = SLOT + 24576
OOB = 0x80000000
VL16, VA1, VA2, VP8, VP16, VF0, VR = 1, 2, 3, 4, 5, 6, 7
VSTW, VSTR = 11, 12
VRW = [13, 14, 15]; VRR = 16
VPOLL, VONE, VSTAMP = 17, 18, 19
RING = 32
ACC = [64, 80, 96, 112]
XR = 128
A_WD = 0; A_Y = 224; A_T4 = 232
S_WS = 4; S_Q = 8; S_OUT = 12
S_W, S_ROLE, S_C, S_TH, S_J, S_EXP, S_XCC, S_W1K = 16, 17, 18, 19, 20, 21, 22, 23
S_R, S_XNL, S_HST, S_HLD, S_XML, S_W1, S_FXNS, S_FXNL, S_FHS, S_FHL, S_FX2S, S_FX2L = range(34, 46)
S_T0, S_T1, S_T2, S_T3, S_HI = 46, 47, 48, 49, 31
S_LN2 = 98
S_DA, S_XA = 50, 3
S_HA = [96, 97]; S_HS = [94, 95]
LA = 6
def vr(b, n=1): return f"v{b}" if n == 1 else f"v[{b}:{b+n-1}]"
def ar(b, n=1): return f"a{b}" if n == 1 else f"a[{b}:{b+n-1}]"

LAYERS = [
    dict(tau=[0, 1, 2, 3, 4, 5, 6], slot=[2, 3, 4, 0, 1, 2, 3]),
    dict(tau=[5, 6, 2, 3, 4, 0, 1], slot=[2, 3, 4, 0, 1, 2, 3]),
]
LOG2E = 0x3fb8aa3b; LN2 = 0x3f317218
A_H = 236

S_N = 51
VWD = 28
S_WDB = 30
S_WDR = 64
A_Q = 232
HC_J = 4160; HC_CH = 4*HC_J
XRB = 2*HC_CH
XR_P = 4640; XR_CH = 9472
TBS = 1056
KT = 2*SLOT; VT = KT + 9*TBS
PST = 3*SLOT
S_QO, S_PST = 87, 94
S_G, S_M, S_CB, S_CP, S_D, S_E = 88, 89, 84, 85, 62, 63
POISON = 0xffffffff


def gen(name, stamps=False, force_slow=False, opt=None):
    opt = opt or {}
    E = Emit()
    LSC = ' sc1' if opt.get('lsc', 1) else ''
    names = []
    DEF = ['start', 'join', 'b0', 'kvst', 's0', 'xiss', 'prep', 'xok', 'bx', 'rho1', 'rho2', 'rho3', 's1', 'mfend', 'red2', 'yst', 'qst', 'yok', 'R0st', 'R0pub', 'L0xnok', 'L0g1', 'L0s96', 'L0s224', 'L0g2end', 'L0st', 'x2ok', 'R1st', 'R1pub', 'L1xnok', 'L1g1', 'L1s96', 'L1s224', 'L1g2end', 'L1st', 'end']
    enabled = set(opt.get('st', DEF)) | {'start', 'end'}
    MODE = {'slow': False}
    SP = [90, 92]
    def stamp(nm):
        if stamps and nm in enabled and not MODE['slow']:
            n = len(names); names.append(nm)
            if n >= 2: E(f"v_writelane_b32 v{VSTAMP}, s{SP[n & 1]}, {n-2}")
            E(f"s_memtime s[{SP[n & 1]}:{SP[n & 1]+1}]")
    def stamp_dup(nm):
        if stamps and nm in names and not MODE['slow']:
            n = names.index(nm)
            if n >= 2: E(f"v_writelane_b32 v{VSTAMP}, s{SP[n & 1]}, {n-2}")
            E(f"s_memtime s[{SP[n & 1]}:{SP[n & 1]+1}]")
    WSRD = f"s[{S_WS}:{S_WS+3}]"
    def NT(k): return ' nt' if (opt.get('nt', 0) >> 'trhq'.index(k)) & 1 else ''
    def FL(kind, L):
        v = opt.get(f'fl{kind}{L}', opt.get(f'fl{kind}', ''))
        return (' ' + v.replace('+', ' ')) if v else ''

    def sadd(dst, base, const):
        if const == 0: E(f"s_mov_b32 s{dst}, s{base}")
        else: E(f"s_add_u32 s{dst}, s{base}, {const}")
    def dma_stream(tau, slot, tag, ilist=range(8)):
        ops = []; cur = None
        for i in ilist:
            if cur != (i >> 2):
                cur = i >> 2
                ops.append((4, False, lambda g=cur: E(f"s_add_u32 m0, s{S_W1K}, {slot*SLOT + g*4096}")))
                ops.append((4, False, lambda g=cur: sadd(S_DA, S_W1, tau*32768 + g*4096)))
            off = (i & 3)*1024
            k_ = 1 if tag.startswith('w1_') else 2 if tag.endswith('0') else 4
            ops.append((4, True, lambda off=off, k_=k_: E.vm(f"buffer_load_dwordx4 v{VL16}, {WSRD}, s{S_DA} offen" + (f" offset:{off}" if off else "") + (" nt" if opt.get('w1nt', 0) & k_ else "") + " lds", tag)))
        return ops
    def wd_stream(kps):
        ops = []
        for kp in kps:
            if opt.get('rot', 0): f = lambda kp=kp: E(f"s_add_u32 s26, s{S_WDR + kp//7}, {(kp % 7)*2048}")
            else: f = lambda kp=kp: E(f"s_add_u32 s26, s{S_WDB}, {kp*2048}")
            f.info = ('wd', kp); ops.append((4, False, f))
            for pd in range(2):
                f = lambda kp=kp, pd=pd: E.vm(f"buffer_load_dwordx4 {ar(A_WD + 8*kp + 4*pd, 4)}, v{VWD+pd}, {WSRD}, s26 offen" + (LSC if opt.get('wdsc', 1) else '') + (' nt' if opt.get('wdnt', 0) else ''), f'wd{kp}')
                f.info = ('wd', kp); ops.append((4, True, f))
        return ops
    class Bulk:
        def __init__(self, ops): self.ops = list(ops)
        def take(self, n):
            out = []
            while n > 0 and self.ops:
                o = self.ops.pop(0); out.append(o)
                if o[1]: n -= 1
            return out
        def emit(self, n):
            for (_, _, f) in self.take(n): f()
            assert not self.ops or not self.ops[0][1] or getattr(self.ops[0][2], 'info', None) is None, 'Wd loads come in pairs'
        def left(self): return sum(1 for o in self.ops if o[1])
    def publish(sbase, const, tag, wait=True):
        o = f" offset:{const}" if const else ""
        if MODE['slow']:
            E.wait_vm_all()
            E("buffer_wbl2 sc1\ns_waitcnt vmcnt(0)")
            E.vm(f"buffer_store_dword v{VONE}, v{VF0}, {WSRD}, s{sbase} offen{o} sc1", None)
            return
        if wait: E.wait_vm(tag)
        E.vm(f"buffer_store_dword v{VONE}, v{VF0}, {WSRD}, s{sbase} offen{o}", None)
    def poll_issue(voff, sbase, const, tag, dst=VPOLL):
        o = f" offset:{const}" if const else ""
        if MODE['slow']: E.seen.add(tag); return
        E.vm(f"buffer_load_dword v{dst}, v{voff}, {WSRD}, s{sbase} offen{o} sc1", tag)
    def poll_check(voff, sbase, const, tag, dst=VPOLL, wait=True):
        o = f" offset:{const}" if const else ""
        ls = E.label('L_polls'); lb = E.label('L_pollb'); ll = E.label('L_polll')
        if MODE['slow']:
            E.wait_vm_all()
            E(f"""
            s_mov_b32 s{S_T3}, 0
            {ll}:
            buffer_inv sc1
            s_waitcnt vmcnt(0)
            buffer_load_dword v{dst}, v{voff}, {WSRD}, s{sbase} offen{o} sc1
            s_add_u32 s{S_T3}, s{S_T3}, 1
            s_waitcnt vmcnt(0)
            v_cmp_ne_u32 vcc, s{S_N}, v{dst}
            s_cmp_gt_u32 s{S_T3}, 0x2000
            s_cbranch_scc1 {lb}
            s_cbranch_vccnz {ll}
            {lb}:
            buffer_inv sc1
            s_waitcnt vmcnt(0)""")
            return
        if wait: E.wait_vm(tag)
        E(f"v_cmp_ne_u32 vcc, s{S_N}, v{dst}")
        E(f"s_cbranch_vccnz {ls}")
        E(f"{lb}:")
        E.out_of_line(f"""
        {ls}:
        s_mov_b32 s{S_T3}, 0
        {ll}:
        buffer_load_dword v{dst}, v{voff}, {WSRD}, s{sbase} offen{o} sc1
        s_add_u32 s{S_T3}, s{S_T3}, 1
        s_waitcnt vmcnt(0)
        v_cmp_ne_u32 vcc, s{S_N}, v{dst}
        s_nop 4
        s_cbranch_vccz {lb}
        s_cmp_lt_u32 s{S_T3}, 0x2000
        s_cbranch_scc1 {ll}
        s_branch {lb}""")
    def all_flags_check(dst, voff, sval, tag, lim=0x2000):
        ls = E.label('L_afs'); lb = E.label('L_afb'); ll = E.label('L_afl')
        def cmp4():
            return "\n".join([f"v_xor_b32 v{dst+i}, s{sval}, v{dst+i}" for i in range(4)] +
                             [f"v_or3_b32 v{dst}, v{dst}, v{dst+1}, v{dst+2}", f"v_or_b32 v{dst}, v{dst}, v{dst+3}", f"v_cmp_ne_u32 vcc, 0, v{dst}"])
        E.wait_vm(tag)
        E(cmp4())
        E(f"s_cbranch_vccnz {ls}\n{lb}:")
        E.out_of_line(f"""
        {ls}:
        s_mov_b32 s{S_T3}, 0
        {ll}:
        buffer_load_dwordx4 v[{dst}:{dst+3}], v{voff}, {WSRD}, 0 offen sc1
        s_add_u32 s{S_T3}, s{S_T3}, 1
        {f's_add_u32 s{S_EXP}, s{S_EXP}, {1 << (12 if tag == "s1" else 18)}' if stamps and opt.get('cnt') else ''}
        s_waitcnt vmcnt(0)
        {cmp4()}
        s_nop 4
        s_cbranch_vccz {lb}
        s_cmp_lt_u32 s{S_T3}, {lim}
        s_cbranch_scc1 {ll}
        s_branch {lb}""")

    KSRD, VSRD, HSRD, PSRD, WDSRD = "s[52:55]", "s[64:67]", "s[76:79]", "s[68:71]", "s[52:55]"
    VPS, VPW = 224, 225
    VFT = 231
    SPLIT = opt.get('split', 0)
    YSPL = SPLIT == 1
    YL = opt.get('yl', 32); assert YL in (32, 16, 8) and (YL == 32 or YSPL)
    VYS_ = 249
    if YL == 32:
        YLD = "v_lshlrev_b32 v10, 12, v22\nv_lshl_add_u32 v10, v21, 11, v10\nv_lshl_add_u32 v10, v20, 2, v10"
        YST = f"""v_lshl_add_u32 v{VYS_}, v31, 7, v{VYS_}
        v_lshl_add_u32 v{VYS_}, v23, 5, v{VYS_}
        v_lshl_add_u32 v{VYS_}, v21, 4, v{VYS_}    ; (n'>>2)*131072 + (n'&3)*128 + g*32 + par'*16
        s_lshl_b32 s24, s85, 9
        s_lshl_b32 s25, s{S_W}, 19
        s_add_u32 s24, s24, s25
        s_add_u32 s58, s24, {WS_Y}               ; + cp*512 + 2w*262144
        s_lshl_b32 s24, s{S_C}, 17
        s_lshl_b32 s25, s{S_ROLE}, 5
        s_add_u32 s24, s24, s25
        s_lshl_b32 s25, s{S_W}, 15
        s_add_u32 s24, s24, s25
        s_add_u32 s59, s24, {WS_Y}               ; + c*131072 + role*32 + 64w*512"""
        YC2, YK = 16384, 512
    elif YL == 16:
        YLD = "v_lshlrev_b32 v10, 9, v22\nv_lshl_add_u32 v10, v21, 6, v10\nv_lshl_add_u32 v10, v20, 2, v10"
        YST = f"""v_lshl_add_u32 v{VYS_}, v31, 15, v{VYS_}
        v_lshrrev_b32 v31, 1, v23
        v_lshl_add_u32 v{VYS_}, v31, 14, v{VYS_}
        v_and_b32 v31, 1, v23
        v_lshl_add_u32 v{VYS_}, v31, 5, v{VYS_}
        v_lshl_add_u32 v{VYS_}, v21, 4, v{VYS_}    ; (n'>>2)*131072 + (2 (n'&3) + (g>>1))*16384 + (g&1)*32 + par'*16
        s_lshr_b32 s24, s85, 3
        s_lshl_b32 s24, s24, 9
        s_and_b32 s25, s85, 3
        s_lshl_b32 s25, s25, 7
        s_add_u32 s24, s24, s25
        s_bfe_u32 s25, s85, 0x10002
        s_lshl_b32 s25, s25, 6
        s_add_u32 s24, s24, s25
        s_lshl_b32 s25, s{S_W}, 19
        s_add_u32 s24, s24, s25
        s_add_u32 s58, s24, {WS_Y}
        s_lshl_b32 s24, s{S_C}, 17
        s_lshr_b32 s25, s{S_ROLE}, 1
        s_lshl_b32 s25, s25, 14
        s_add_u32 s24, s24, s25
        s_and_b32 s25, s{S_ROLE}, 1
        s_lshl_b32 s25, s25, 5
        s_add_u32 s24, s24, s25
        s_lshl_b32 s25, s{S_W}, 12
        s_add_u32 s24, s24, s25
        s_add_u32 s59, s24, {WS_Y}"""
        YC2, YK = 2048, 128
    else:
        YLD = "v_lshrrev_b32 v10, 1, v22\nv_lshlrev_b32 v10, 9, v10\nv_and_b32 v31, 1, v22\nv_lshl_add_u32 v10, v31, 6, v10\nv_lshl_add_u32 v10, v21, 5, v10\nv_lshl_add_u32 v10, v20, 2, v10"
        YST = f"""v_lshl_add_u32 v{VYS_}, v31, 15, v{VYS_}
        v_lshl_add_u32 v{VYS_}, v23, 13, v{VYS_}
        v_lshl_add_u32 v{VYS_}, v21, 4, v{VYS_}    ; (n'>>2)*131072 + (4 (n'&3) + g)*8192 + par'*16
        s_lshr_b32 s24, s85, 4
        s_lshl_b32 s24, s24, 9
        s_and_b32 s25, s85, 3
        s_lshl_b32 s25, s25, 7
        s_add_u32 s24, s24, s25
        s_bfe_u32 s25, s85, 0x20002
        s_lshl_b32 s25, s25, 5
        s_add_u32 s24, s24, s25
        s_lshl_b32 s25, s{S_W}, 19
        s_add_u32 s24, s24, s25
        s_add_u32 s58, s24, {WS_Y}
        s_lshl_b32 s24, s{S_C}, 17
        s_lshl_b32 s25, s{S_ROLE}, 13
        s_add_u32 s24, s24, s25
        s_lshl_b32 s25, s{S_W}, 11
        s_add_u32 s24, s24, s25
        s_add_u32 s59, s24, {WS_Y}"""
        YC2, YK = 1024, 128
    WDC = SPLIT == 2 or (SPLIT and opt.get('wdc', 0))
    PUBB = opt.get('pubb', 0)
    S1BP = opt.get('s1bp', 0)
    NPS = 7 if YSPL else 11 if SPLIT else 15
    FL_S1B = 0x6000; FL_S1C = 0x18000
    P1 = opt.get('p1', 0)
    GSH = 18 if P1 else 19
    NKV = 2 if P1 else 4
    MKALL = opt.get('mkall', 0)
    assert MKALL or not P1
    MKPOS = opt.get('mkpos', 0)
    MKW = opt.get('mkw', 0)
    MKF = '' if MKALL == 2 else ' sc1'
    MKPRE = "" if not MKALL else f"""v_lshlrev_b32 v33, 12, v21
    v_lshl_add_u32 v33, v22, 4, v33
    v_mov_b32 v36, -1
    v_mov_b32 v37, -1
    v_mov_b32 v38, -1
    v_mov_b32 v39, -1
    s_lshl_b32 s95, s{S_G}, {GSH}
    s_lshl_b32 s27, s{S_M}, 7
    s_sub_u32 s95, s95, s27
    s_lshl_b32 s27, s{S_W}, {(18 if MKW else 17) - P1}
    s_add_u32 s95, s95, s27
    s_add_u32 s95, s95, {WS_KVT + 3968}"""
    def markers4(fix=True):
        if fix: E(srd_fix(S_WS, WS_SRD_BYTES))
        n = (8 if MKW else 4) >> P1
        if MKW: E(f"s_cmp_ge_u32 s{S_W}, 2\ns_cbranch_scc1 L_mkw")
        for i in range(n if not opt.get('nomk') else 0):
            E(f"buffer_store_dwordx4 v[36:39], v33, {WSRD}, s95 offen{MKF}")
            if i < n - 1: E("s_add_u32 s95, s95, 32768")
        if MKW: E("L_mkw:")
    def srd_fix(b, size): return f"s_and_b32 s{b+1}, s{b+1}, 0xffff\ns_mov_b32 s{b+2}, {size}\ns_mov_b32 s{b+3}, 0x20000"
    E.L.append(head(name).rstrip())
    E(f"""
    s_cmp_ge_u32 s2, 256
    s_cbranch_scc1 L_end
    s_load_dwordx2 s[52:53], s[0:1], 8
    s_load_dwordx2 s[64:65], s[0:1], 16
    s_load_dwordx2 s[4:5], s[0:1], 96
    s_load_dwordx8 s[56:63], s[0:1], 24
    s_load_dwordx8 s[68:75], s[0:1], 56
    s_load_dwordx2 s[8:9], s[0:1], 0
    """)
    S0SC = opt.get('s0sc', 0)
    if S0SC: E("s_load_dwordx2 s[96:97], s[0:1], 88")
    if stamps: E("s_memrealtime s[100:101]")
    stamp('start')
    E(f"""
    v_lshrrev_b32 v20, 6, v0
    v_and_b32 v8, 63, v0                     ; lane
    s_and_b32 s{S_G}, s2, 7
    s_lshr_b32 s{S_M}, s2, 3
    v_readfirstlane_b32 s{S_W}, v20
    v_lshlrev_b32 v{VL16}, 4, v8
    v_lshrrev_b32 v21, 3, v8
    v_and_b32 v22, 7, v8
    s_lshl_b32 s{S_CB}, s{S_G}, 6
    s_lshl_b32 s24, s{S_M}, 1
    s_add_u32 s{S_CB}, s{S_CB}, s24
    s_lshl_b32 s24, s{S_G}, 9
    s_lshl_b32 s25, s{S_W}, 7
    s_add_u32 s24, s24, s25
    v_lshlrev_b32 v30, 4, v21
    v_add_u32 v30, s24, v30
    ; raw weight blocks (waves 2 and 3): 8 rows x 128 bytes each
    s_lshr_b32 s24, s2, 2                    ; kg
    s_and_b32 s25, s2, 3                     ; fq
    s_mul_i32 s26, s24, 28672
    s_mul_i32 s27, s25, 896
    s_add_u32 s26, s26, s27
    v_mul_u32_u24 v{VPS}, 3584, v21
    v_lshl_add_u32 v{VPS}, v22, 4, v{VPS}
    v_add_u32 v{VPS}, s26, v{VPS}
    v_lshlrev_b32 v{VPW}, 10, v21
    v_lshl_add_u32 v{VPW}, v22, 4, v{VPW}
    s_and_b32 s25, s{S_W}, 1
    s_lshl_b32 s26, s2, 13
    s_lshl_b32 s27, s25, 9
    s_add_u32 s26, s26, s27
    v_add_u32 v{VPW}, s26, v{VPW}
    s_mul_i32 s26, s25, {11*1024}
    s_add_u32 s{S_PST}, s26, {PST}
    {MKPRE}
    s_cmp_eq_u32 s{S_W}, 3
    s_cbranch_scc1 L_w3
    ; k / v staging tiles: row = lane >> 3, 16-byte segment = lane & 7
    v_lshlrev_b32 v32, 10, v21
    v_lshl_add_u32 v32, v22, 4, v32
    s_lshl_b32 s24, s{S_M}, 16
    s_lshl_b32 s25, s{S_G}, 7
    s_add_u32 s24, s24, s25
    v_add_u32 v32, s24, v32
    s_cmp_eq_u32 s{S_W}, 2
    s_cbranch_scc1 L_w2
    s_cmp_eq_u32 s{S_W}, 1
    s_cbranch_scc1 L_w1
    """)
    SK = 56
    def skload(): E(f"global_load_dwordx4 v[{SK}:{SK+3}], v30, s[56:57]")
    def h_dma(js, sch, slds):
        for j in js:
            E(f"s_add_u32 s26, s{sch}, {4 + 4*j}\ns_add_u32 m0, s{slds}, {j*HC_J + 64}\ns_nop 0")
            for q_ in range(4):
                E(f"buffer_load_dwordx4 v{VL16}, {HSRD}, s26 offen" + (f" offset:{1024*q_}" if q_ else "") + NT('h') + " lds")
    def prep_dma():
        for i in range(7):
            E(f"s_add_u32 m0, s{S_PST}, {1024*i - 128*i}")
            E(f"s_nop 0\nbuffer_load_dwordx4 v{VPS}, {PSRD}, 0 offen" + (f" offset:{128*i}" if i else "") + NT('r') + " lds")
        for i in range(4):
            E(f"s_add_u32 m0, s{S_PST}, {1024*(7+i) - 128*i}")
            E(f"s_nop 0\nbuffer_load_dwordx4 v{VPW}, {WDSRD}, 0 offen" + (f" offset:{128*i}" if i else "") + NT('r') + " lds")
    HEARLY = [0, 1, 2, 3] if opt.get('hpos', 0) == 0 else [0]
    HLATE = [j for j in range(4) if j not in HEARLY]
    def tile_path(lst):
        for j, (kind, blk) in enumerate(lst):
            c = (blk*8192 - (4096 if kind == 'k' else 1024)) & 0xffffffff
            E(f"v_add_u32 v{40+j}, {c:#x}, v32")
        E("s_waitcnt lgkmcnt(0)")
        E(f"s_load_dword s{S_E}, s[4:5], {FL_EPOCH}")
        if MKALL and MKPOS == 0: markers4()
        if any(k == 'k' for k, _ in lst): E(srd_fix(52, 2097152))
        if any(k == 'v' for k, _ in lst): E(srd_fix(64, 2097152))
        for j, (kind, blk) in enumerate(lst):
            E(f"s_mov_b32 m0, {(KT if kind == 'k' else VT) + blk*TBS}\ns_nop 0")
            E(f"buffer_load_dwordx4 v{40+j}, {KSRD if kind == 'k' else VSRD}, 0 offen{NT('t')} lds")
    tile_path([('k', b) for b in range(6)])
    E("s_branch L_w01\nL_w1:")
    tile_path([('k', b) for b in (6, 7, 8)] + [('v', b) for b in (0, 1, 2)])
    E("L_w01:")
    stamp('e1'); stamp('e2')
    skload()
    E(f"""
    s_mov_b32 s76, s58
    s_mov_b32 s77, s59
    {srd_fix(76, 2097152)}
    s_add_u32 s24, s{S_CB}, s{S_W}
    s_lshl_b32 s24, s24, 12                  ; channel * 4096
    s_mul_i32 s25, s{S_W}, {HC_CH}
    """)
    h_dma(HEARLY, 24, 25)
    RT = opt.get('rtouch', 0)
    def rtouch():
        E(f"buffer_load_dword v233, v233, {PSRD}, 0 offen")
        E(f"buffer_load_dword v234, v234, {WDSRD}, 0 offen")
    if RT:
        E(f"""
        s_cmp_eq_u32 s{S_W}, 1
        s_cselect_b32 s68, s70, s68
        s_cselect_b32 s69, s71, s69
        {srd_fix(68, 1835008)}
        s_mov_b32 s52, s72
        s_mov_b32 s53, s73
        {srd_fix(52, 1835008)}
        s_lshr_b32 s24, s2, 2
        s_add_u32 s24, s24, 32
        s_mul_i32 s24, s24, 28672
        s_and_b32 s25, s2, 3
        s_mul_i32 s25, s25, 896
        s_add_u32 s24, s24, s25
        s_add_u32 s25, s2, 128
        s_lshl_b32 s25, s25, 13
        s_lshl_b32 s26, s{S_W}, 9
        s_add_u32 s25, s25, s26
        s_cmp_ge_u32 s2, 128
        s_cselect_b32 s24, {OOB}, s24
        s_cselect_b32 s25, {OOB}, s25
        v_min_u32 v233, 6, v21
        v_lshlrev_b32 v233, 7, v233
        v_mul_u32_u24 v234, 3584, v22
        v_add_u32 v233, v233, v234
        v_add_u32 v233, s24, v233
        v_and_b32 v234, 3, v21
        v_lshlrev_b32 v234, 7, v234
        v_lshl_add_u32 v234, v22, 10, v234
        v_add_u32 v234, s25, v234
        """)
        if RT == 1: rtouch()
    E("s_branch L_join\nL_w2:")
    tile_path([('v', b) for b in range(3, 9)])
    stamp_dup('e1'); stamp_dup('e2')
    skload()
    E("s_branch L_w23\nL_w3:")
    if MKALL:
        MK2 = 0
        E(f"""
        s_waitcnt lgkmcnt(0)
        s_mov_b32 s68, s70
        s_mov_b32 s69, s71
        s_load_dword s{S_E}, s[4:5], {FL_EPOCH}
        """)
        if MKPOS == 0: markers4()
        stamp_dup('e1')
    else:
        MK4 = opt.get('mk4', 1)
        E(f"""
        v_lshlrev_b32 v33, 12, v21
        v_lshl_add_u32 v33, v22, 4, v33
        v_mov_b32 v36, -1
        v_mov_b32 v37, -1
        v_mov_b32 v38, -1
        v_mov_b32 v39, -1
        s_lshl_b32 s26, s{S_G}, 19
        s_lshl_b32 s27, s{S_M}, 7
        s_sub_u32 s26, s26, s27
        s_add_u32 s26, s26, {WS_KVT + 3968}
        s_waitcnt lgkmcnt(0)
        {srd_fix(S_WS, WS_SRD_BYTES)}
        s_load_dword s{S_E}, s[4:5], {FL_EPOCH}
        """)
        for i in range(16):
            E((f"buffer_store_dwordx4 v[36:39], v33, {WSRD}, s26 offen" if MK4 else f"buffer_store_dword v36, v33, {WSRD}, s26 offen") + (' sc1' if opt.get('mksc', 0) else ''))
            if i < 15: E("s_add_u32 s26, s26, 32768")
        stamp_dup('e1')
        E(f"""
        s_getreg_b32 s24, hwreg(HW_REG_XCC_ID, 0, 4)
        s_and_b32 s25, s2, 63
        s_lshl_b32 s25, s25, 7
        s_lshr_b32 s26, s2, 6
        s_lshl_b32 s26, s26, 2
        s_add_u32 s25, s25, s26
        s_add_u32 s25, s25, {FL_S0}
        s_and_b32 s24, s24, 7
        v_mov_b32 v{VF0}, {OOB}
        v_cmp_eq_u32 vcc, 0, v8
        v_mov_b32 v31, 0
        s_mov_b32 s68, s70
        s_mov_b32 s69, s71
        v_cndmask_b32 v{VF0}, v{VF0}, v31, vcc
        s_waitcnt lgkmcnt(0)
        s_mul_i32 s26, s{S_E}, 0x9e3779b1
        s_add_u32 s26, s26, 0x7f4a7c15
        s_and_b32 s26, s26, 0xfffffff0
        s_or_b32 s24, s24, s26
        v_mov_b32 v31, s24
        s_waitcnt vmcnt(0)
        buffer_store_dword v31, v{VF0}, {WSRD}, s25 offen sc1
        """)
        MK2 = opt.get('mk2', 0)
        if MK2 == 3: skload()
        if MK2:
            E(f"""
            s_lshl_b32 s26, s{S_G}, 19
            s_lshl_b32 s27, s{S_M}, 7
            s_sub_u32 s26, s26, s27
            s_add_u32 s26, s26, {WS_KVT + 3968}
            """)
            for i in range(16):
                E(f"buffer_store_dwordx4 v[36:39], v33, {WSRD}, s26 offen sc1")
                if i < 15: E("s_add_u32 s26, s26, 32768")
    stamp_dup('e2')
    if MK2 != 3: skload()
    E(f"""
    L_w23:
    {srd_fix(68, 1835008)}
    s_mov_b32 s52, s72
    s_mov_b32 s53, s73
    {srd_fix(52, 1835008)}
    """)
    RAWPOS = opt.get('rawpos', 0)
    RAWTHR = opt.get('rawthr', 0)
    if RAWPOS == 0: prep_dma()
    if RAWTHR:
        assert RAWPOS == 1 and MKPOS == 0
        E(f"s_cmp_lt_u32 s2, {RAWTHR}\ns_cbranch_scc1 L_join")
        prep_dma()
    E("L_join:")
    stamp('join')
    if opt.get('tw'):
        E(f"s_waitcnt vmcnt({opt['tw']})")
        stamp('tw')
    HEAD = 60
    PFL = opt.get('pfl', 15)
    E(f"""
    {srd_fix(S_WS, WS_SRD_BYTES)}
    s_lshr_b32 s{S_CP}, s{S_CB}, 1
    s_mov_b32 s76, s58
    s_mov_b32 s77, s59
    {srd_fix(76, 2097152)}
    s_lshl_b32 s24, s{S_CB}, 1
    s_load_dword s{S_D}, s[60:61], s24
    v_and_b32 v23, 31, v0
    v_lshrrev_b32 v24, 7, v0
    v_bfe_u32 v25, v0, 5, 2
    v_lshl_add_u32 v26, v25, 1, v23
    v_add_u32 v26, -30, v26
    v_add_u32 v27, s{S_CB}, v24
    v_lshlrev_b32 v27, 12, v27
    v_lshl_add_u32 v27, v26, 1, v27
    v_cmp_gt_i32 vcc, 0, v26
    v_mov_b32 v31, -16
    v_mul_u32_u24 v61, {HC_CH}, v24
    v_cndmask_b32 v27, v27, v31, vcc
    buffer_load_ushort v{HEAD}, v27, {HSRD}, 0 offen
    v_mul_u32_u24 v31, {HC_J}, v25
    v_add_u32 v61, v61, v31
    v_lshl_add_u32 v61, v23, 1, v61
    s_getpc_b64 s[32:33]
    L_pc:
    s_lshl_b32 s24, s{S_M}, 2
    s_add_u32 s24, s24, s{S_W}
    {'s_and_b32 s24, s24, 31' if PFL == 15 else 's_nop 0'}
    s_lshl_b32 s24, s24, {11 if PFL == 15 else 9}
    v_and_b32 v31, {PFL}, v8
    v_lshlrev_b32 v31, 7, v31
    v_add_u32 v31, s24, v31
    v_min_u32 v31, L_codeend-L_pc-64, v31
    global_load_dword v255, v31, s[32:33]
    """)
    stamp('i_a')
    E(f"""
    s_mov_b32 s{S_OUT}, s74
    s_mov_b32 s{S_OUT+1}, s75
    ; block-stage ids ; q fragment offsets: token = 128 c + 8 role + tok, channels 128 w + 64 c2 + 16 ks + 8 hi ..
    s_and_b32 s{S_ROLE}, s{S_M}, 15
    s_lshr_b32 s24, s{S_M}, 4
    s_lshl_b32 s24, s24, 3
    s_add_u32 s{S_C}, s{S_G}, s24
    s_lshr_b32 s{S_TH}, s{S_ROLE}, 3
    s_and_b32 s{S_J}, s{S_ROLE}, 7
    v_and_b32 v20, 7, v8                     ; tok
    v_bfe_u32 v21, v8, 3, 1                  ; hi
    v_lshrrev_b32 v22, 4, v8                 ; ks
    v_lshlrev_b32 v9, 10, v20
    v_lshl_add_u32 v9, v22, 5, v9
    v_lshl_add_u32 v9, v21, 4, v9
    s_lshl_b32 s24, s{S_C}, 7
    s_lshl_b32 s25, s{S_ROLE}, 3
    s_add_u32 s24, s24, s25
    s_lshl_b32 s24, s24, 10
    s_lshl_b32 s25, s{S_W}, 8
    s_add_u32 s{S_QO}, s24, s25
    {srd_fix(S_Q, 2097152)}
    """)
    ROTP = "" if not opt.get('rot', 0) else f"""s_lshr_b32 s96, s{S_C}, 3
    s_lshl_b32 s96, s96, 1
    s_lshr_b32 s97, s{S_W}, 1
    s_add_u32 s96, s96, s97
    s_sub_u32 s29, s29, s96
    s_and_b32 s29, s29, 3"""
    E(f"""
    s_getreg_b32 s{S_XCC}, hwreg(HW_REG_XCC_ID, 0, 4)
    s_lshl_b32 s{S_W1K}, s{S_W}, 13
    s_mul_i32 s{S_W1}, s{S_ROLE}, {229376 if not opt.get('xw1same') else 0}
    s_add_u32 s{S_W1}, s{S_W1}, s{S_W1K}
    s_add_u32 s{S_W1}, s{S_W1}, {WS_W1F}
    s_and_b32 s{S_OUT+1}, s{S_OUT+1}, 0xffff
    s_mov_b32 s{S_OUT+2}, 2097152
    s_mov_b32 s{S_OUT+3}, 0x20000
    s_mov_b32 s{S_HI}, 0xffff0000
    s_mov_b32 s{S_LN2}, {LN2:#x}
    s_mov_b32 s{S_LN2+1}, {LN2:#x}
    s_mov_b32 s{S_EXP}, 1
    s_and_b32 s{S_XCC}, s{S_XCC}, 7
    v_add_u32 v{VA1}, 65536, v{VL16}
    v_add_u32 v{VA2}, 131072, v{VL16}
    v_lshlrev_b32 v{VP8}, 2, v20
    v_and_b32 v{VP16}, 15, v8
    v_lshlrev_b32 v{VP16}, 2, v{VP16}
    v_mov_b32 v{VF0}, {OOB}
    v_cmp_eq_u32 vcc, 0, v8
    v_mov_b32 v31, 0
    s_lshr_b32 s30, s{S_ROLE}, 2             ; tt_r
    s_and_b32 s24, s{S_ROLE}, 3
    v_cndmask_b32 v{VF0}, v{VF0}, v31, vcc
    s_lshl_b32 s25, s24, 7
    v_lshlrev_b32 v{VR}, 10, v22
    v_lshl_add_u32 v{VR}, v21, 9, v{VR}
    v_lshl_add_u32 v{VR}, v20, 4, v{VR}
    v_add_u32 v{VR}, s25, v{VR}
    ; stats addresses
    v_lshlrev_b32 v{VSTR}, 5, v20
    v_add_u32 v{VSTR}, {STATS}, v{VSTR}
    v_and_b32 v31, 1, v22
    v_lshl_add_u32 v{VSTW}, v31, 2, v{VSTR}
    s_lshl_b32 s25, s{S_W}, 3
    v_add_u32 v{VSTW}, s25, v{VSTW}
    {YLD}
    s_lshl_b32 s25, s{S_G}, {GSH}
    s_lshr_b32 s26, s{S_C}, 3
    s_lshl_b32 s26, s26, 17
    s_add_u32 s25, s25, s26
    s_lshl_b32 s26, s30, 15
    s_add_u32 s{S_R}, s25, s26
    s_lshl_b32 s26, s{S_W}, 13
    s_add_u32 s{S_R}, s{S_R}, s26
    s_lshl_b32 s26, s{S_W}, 15
    s_add_u32 s{S_XNL}, s25, s26             ; XB + w*32768
    s_lshl_b32 s26, s{S_C}, 2
    s_add_u32 s27, s26, s{S_W}
    s_mul_i32 s27, s27, 114688
    s_lshr_b32 s28, s{S_ROLE}, 2
    s_mul_i32 s28, s28, 28
    s_and_b32 s29, s{S_ROLE}, 3
    {ROTP}
    s_add_u32 s28, s28, s29
    s_lshl_b32 s28, s28, 10
    s_add_u32 s{S_HST}, s27, s28             ; (4c+w)*114688 + ((role>>2)*28 + (role&3))*1024 ; tile tau at +4096 tau
    s_lshl_b32 s27, s{S_TH}, 1
    s_add_u32 s27, s27, s26
    s_mul_i32 s27, s27, 114688
    s_mul_i32 s28, s{S_W}, 28672
    s_add_u32 s{S_HLD}, s27, s28             ; (4c+2th)*114688 + 28w*1024
    s_and_b32 s26, s{S_W}, 1
    s_lshl_b32 s26, s26, 1
    s_lshr_b32 s27, s{S_W}, 1
    s_add_u32 s26, s26, s27
    s_lshl_b32 s27, s{S_J}, 2
    s_add_u32 s26, s26, s27                  ; kappa_o = 4j + 2(w&1) + (w>>1)
    s_lshl_b32 s27, s26, 10
    s_lshl_b32 s28, s{S_TH}, 16
    s_add_u32 s27, s27, s28
    s_add_u32 s{S_XML}, s27, s25
    ; flags
    s_lshl_b32 s25, s{S_C}, 8
    s_lshl_b32 s27, s30, 6
    s_add_u32 s27, s27, s25
    s_lshl_b32 s28, s24, 4
    s_add_u32 s27, s27, s28
    s_lshl_b32 s28, s{S_W}, 2
    s_add_u32 s{S_FXNS}, s27, s28
    s_lshl_b32 s27, s{S_W}, 6
    s_add_u32 s{S_FXNL}, s25, s27            ; c*256 + w*64
    s_lshl_b32 s25, s{S_C}, 10
    s_lshr_b32 s27, s{S_W}, 1
    s_lshl_b32 s27, s27, 7
    s_add_u32 s27, s27, s25
    s_lshl_b32 s29, s{S_ROLE}, 3
    s_add_u32 s27, s27, s29
    s_and_b32 s29, s{S_W}, 1
    s_lshl_b32 s29, s29, 2
    s_add_u32 s{S_FHS}, s27, s29             ; c*1024 + (w>>1)*128 + role*8 + (w&1)*4
    s_lshl_b32 s27, s{S_TH}, 7
    s_add_u32 s27, s27, s25
    s_lshl_b32 s29, s{S_W}, 5
    s_add_u32 s{S_FHL}, s27, s29             ; c*1024 + th*128 + w*32
    s_lshl_b32 s25, s{S_C}, 9
    s_lshl_b32 s27, s{S_TH}, 7
    s_add_u32 s27, s27, s25
    s_lshl_b32 s29, s{S_J}, 4
    s_add_u32 s27, s27, s29
    s_add_u32 s{S_FX2S}, s27, s28            ; c*512 + th*128 + j*16 + w*4
    s_lshr_b32 s27, s30, 1
    s_lshl_b32 s27, s27, 7
    s_add_u32 s27, s27, s25
    s_lshl_b32 s29, s{S_W}, 5
    s_add_u32 s{S_FX2L}, s27, s29            ; c*512 + (tt_r>>1)*128 + w*32
    s_add_u32 s{S_FXNS}, s{S_FXNS}, {FL_XN}
    s_add_u32 s{S_FXNL}, s{S_FXNL}, {FL_XN}
    s_add_u32 s{S_FHS}, s{S_FHS}, {FL_H}
    s_add_u32 s{S_FHL}, s{S_FHL}, {FL_H}
    s_add_u32 s{S_FX2S}, s{S_FX2S}, {FL_X2}
    s_add_u32 s{S_FX2L}, s{S_FX2L}, {FL_X2}
    s_mul_i32 s25, s{S_W}, 6144
    s_add_u32 s25, s25, {SCR}
    v_add_u32 v{VRR}, s25, v{VL16}
    """)
    for m in (1, 2, 3):
        E(f"""
        s_xor_b32 s25, s{S_W}, {m}
        s_mul_i32 s25, s25, 6144
        s_add_u32 s25, s25, {SCR + (m-1)*2048}
        v_add_u32 v{VRW[m-1]}, s25, v{VL16}
        """)
    E(f"""
    s_lshl_b32 s{S_WDB}, s{S_J}, 2
    s_add_u32 s{S_WDB}, s{S_WDB}, s{S_W}
    s_mul_i32 s{S_WDB}, s{S_WDB}, 57344
    s_add_u32 s{S_WDB}, s{S_WDB}, {WS_WDF}
    s_lshr_b32 s25, s{S_W}, 1
    s_lshl_b32 s25, s25, 8
    v_xor_b32 v31, s25, v{VL16}
    s_and_b32 s25, s{S_W}, 1
    s_lshl_b32 s25, s25, 10
    v_add_u32 v{VWD}, s25, v31
    s_xor_b32 s25, s25, 1024
    v_add_u32 v{VWD+1}, s25, v31
    """)
    stamp('pre')
    E(f"""
    s_waitcnt lgkmcnt(0)
    s_mul_i32 s{S_N}, s{S_E}, 0x9e3779b1
    s_add_u32 s{S_N}, s{S_N}, 0x7f4a7c15
    s_and_b32 s{S_N}, s{S_N}, 0xfffffff0
    s_or_b32 s{S_XCC}, s{S_XCC}, s{S_N}
    v_mov_b32 v{VONE}, s{S_N}
    ; flag slot of this work-group in the [64][4] arrays
    s_and_b32 s86, s2, 63
    s_lshl_b32 s86, s86, 7
    s_lshr_b32 s24, s2, 6
    s_lshl_b32 s24, s24, 2
    s_add_u32 s86, s86, s24
    """)
    if opt.get('ftouch', 0):
        E(f"""
        s_lshl_b32 s24, s{S_ROLE}, 1
        v_add_u32 v20, s24, v8
        v_min_u32 v20, 23, v20
        v_lshrrev_b32 v21, 1, v20
        v_and_b32 v22, 1, v20
        v_lshlrev_b32 v21, 12, v21
        v_lshl_add_u32 v21, v22, 7, v21
        s_lshl_b32 s24, s{S_C}, 8
        s_add_u32 s24, s24, {FL_XN}
        v_add_u32 v21, s24, v21
        v_subrev_u32 v22, 4, v20
        v_lshrrev_b32 v23, 3, v22
        v_and_b32 v22, 7, v22
        v_lshlrev_b32 v23, 14, v23
        v_lshl_add_u32 v23, v22, 7, v23
        s_lshl_b32 s24, s{S_C}, 10
        s_add_u32 s24, s24, {FL_H}
        v_add_u32 v23, s24, v23
        v_cmp_lt_u32 vcc, 3, v20
        v_cndmask_b32 v21, v21, v23, vcc
        v_subrev_u32 v22, 20, v20
        v_lshlrev_b32 v22, 7, v22
        s_lshl_b32 s24, s{S_C}, 9
        s_add_u32 s24, s24, {FL_X2}
        v_add_u32 v22, s24, v22                  ; X2 + c*512 + line*128
        v_cmp_lt_u32 vcc, 19, v20
        v_cndmask_b32 v21, v21, v22, vcc
        v_cmp_lt_u32 vcc, 1, v8
        v_mov_b32 v22, {OOB}
        v_cndmask_b32 v{VFT}, v21, v22, vcc
        """)
    stamp('setup')

    VA_, VB_ = 62, 63
    VXW, VKVW, VYS, VT0, VS1P, VEP = 22, 248, 249, 250, 253, 254
    VTR, W1D, WDD, VYP, VS1F = 226, 227, 228, 229, 230
    S_XL = 72
    S_W1DST, S_WDDST, S_YP, S_S1F = 64, 65, 66, 67
    E(f"""
    ; weight images (waves 2 and 3): raw 8-row blocks go to LDS, come back transposed and are stored as MFMA fragments
    s_cmp_eq_u32 s{S_W}, 3
    s_cselect_b32 s28, 256, 0
    s_cselect_b32 s29, 4, 0                  ; first Wd block of this wave
    s_lshr_b32 s24, s2, 2                    ; kg
    s_and_b32 s25, s2, 3                     ; fq
    v_bfe_u32 v20, v8, 2, 2
    v_lshlrev_b32 v{VTR}, 7, v20
    v_lshrrev_b32 v21, 4, v8                 ; g
    v_lshl_add_u32 v{VTR}, v21, 5, v{VTR}
    v_and_b32 v20, 3, v8
    v_lshl_add_u32 v{VTR}, v20, 3, v{VTR}
    v_add_u32 v{VTR}, s{S_PST}, v{VTR}
    v_and_b32 v20, 3, v8
    v_bfe_u32 v23, v8, 2, 1
    v_lshl_or_b32 v20, v23, 3, v20
    v_bfe_u32 v23, v8, 3, 1
    v_lshl_or_b32 v20, v23, 2, v20
    v_lshlrev_b32 v20, 4, v20                ; row * 16
    v_lshl_add_u32 v{W1D}, v21, 15, v20      ; + g * 32768
    s_mul_i32 s26, s25, {28*32768}
    s_lshr_b32 s27, s24, 1
    s_lshl_b32 s27, s27, 10
    s_add_u32 s26, s26, s27
    s_and_b32 s27, s24, 1
    s_lshl_b32 s27, s27, 9
    s_add_u32 s26, s26, s27
    s_add_u32 s26, s26, s28
    s_add_u32 s{S_W1DST}, s26, {WS_W1F}
    v_lshrrev_b32 v23, 1, v21
    v_lshl_add_u32 v{WDD}, v23, 10, v20      ; + dt * 1024
    v_and_b32 v23, 1, v21
    v_lshl_add_u32 v{WDD}, v23, 8, v{WDD}    ; + 16 rows
    s_lshr_b32 s24, s2, 1                    ; kf
    s_mul_i32 s25, s24, 2341
    s_lshr_b32 s25, s25, 16                  ; kf / 28
    s_mul_i32 s26, s25, 28
    s_sub_u32 s26, s24, s26
    s_mul_i32 s25, s25, 57344
    s_lshl_b32 s26, s26, 11
    s_add_u32 s25, s25, s26
    s_and_b32 s26, s2, 1
    s_lshl_b32 s26, s26, 9
    s_add_u32 s25, s25, s26
    s_mul_i32 s26, s29, 229376
    s_add_u32 s25, s25, s26
    s_add_u32 s25, s25, {WS_WDF}
    s_cmp_ge_u32 s2, 224
    s_cselect_b32 s{S_WDDST}, 0xf0000000, s25
    ; markers of the Y rows: waves 2 and 3 take eight clusters each
    v_lshrrev_b32 v{VYP}, 5, v8
    v_and_b32 v20, 31, v8
    v_lshlrev_b32 v{VYP}, 17, v{VYP}
    v_lshl_add_u32 v{VYP}, v20, 4, v{VYP}
    s_lshl_b32 s24, s{S_CP}, 9
    s_lshl_b32 s25, s29, 18
    s_add_u32 s24, s24, s25
    s_add_u32 s{S_YP}, s24, {WS_Y}
    ; images-complete flag: index 2 b + (w & 1) -> line index & 127, dword index >> 7
    s_lshl_b32 s24, s2, 1
    s_and_b32 s25, s{S_W}, 1
    s_add_u32 s24, s24, s25
    s_and_b32 s25, s24, 127
    s_lshl_b32 s25, s25, 7
    s_lshr_b32 s24, s24, 7
    s_lshl_b32 s24, s24, 2
    s_add_u32 s24, s24, s25
    s_add_u32 s{S_S1F}, s24, {FL_S1}
    s_cmp_ge_u32 s{S_W}, 2
    s_cselect_b32 s24, 0, {OOB}
    v_or_b32 v{VS1F}, s24, v{VF0}
    {f'v_or_b32 v{WDD}, s24, v{WDD}' if SPLIT else ''}
    s_lshl_b32 s24, s{S_W}, 12
    s_add_u32 s24, s24, {FL_S1}
    v_and_b32 v20, 31, v8
    v_lshlrev_b32 v{VS1P}, 7, v20
    v_add_u32 v{VS1P}, s24, v{VS1P}
    v_and_b32 v20, 15, v8                    ; r
    v_lshrrev_b32 v21, 4, v8                 ; g
    v_and_b32 v22, 3, v8                     ; j'
    v_bfe_u32 v23, v8, 2, 2                  ; q
    s_lshr_b32 s24, s{S_W}, 1                ; ch
    s_and_b32 s25, s{S_W}, 1
    s_lshl_b32 s25, s25, 8
    s_mul_i32 s26, s24, {HC_CH}
    s_add_u32 s26, s26, s25
    v_mul_u32_u24 v24, {HC_J}, v22
    v_add_u32 v25, v21, v23
    v_lshl_add_u32 v24, v25, 4, v24
    v_add_u32 v{VA_}, s26, v24
    s_mul_i32 s26, s24, {XR_CH}
    s_add_u32 s26, s26, s25
    s_add_u32 s26, s26, {XRB + 16*252 - 3584}
    v_and_b32 v22, 7, v8                     ; n'
    v_bfe_u32 v23, v8, 3, 1                  ; par'
    v_mul_u32_u24 v24, {XR_P}, v23
    v_lshlrev_b32 v25, 6, v22
    v_sub_u32 v24, v24, v25
    v_lshl_add_u32 v24, v21, 4, v24
    v_add_u32 v{VB_}, s26, v24
    v_lshrrev_b32 v20, 6, v0
    v_and_b32 v20, 1, v20
    v_mul_u32_u24 v20, {XR_CH}, v20
    v_bfe_u32 v21, v0, 5, 1
    v_mul_u32_u24 v21, {XR_P}, v21
    v_add_u32 v20, v20, v21
    v_and_b32 v21, 31, v0
    v_lshl_add_u32 v20, v21, 4, v20
    v_add_u32 v20, {XRB + 4096}, v20
    v_mov_b32 v24, 0
    v_mov_b32 v25, 0
    v_mov_b32 v26, 0
    v_mov_b32 v27, 0
    """)
    E.ds("ds_write_b128 v20, v[24:27]", 'pad')
    WDD_M = opt.get('wdd', 0)
    VDR, VDT = 240, 241
    if WDD_M: E(f"""
    v_lshrrev_b32 v20, 3, v8
    v_and_b32 v21, 7, v8
    v_bfe_u32 v23, v8, 4, 1
    v_lshlrev_b32 v23, 2, v23
    v_xor_b32 v21, v21, v23
    v_lshlrev_b32 v20, 10, v20
    v_lshl_add_u32 v20, v21, 4, v20
    s_lshl_b32 s24, s{S_J}, 7
    v_add_u32 v{VDR}, s24, v20
    v_lshrrev_b32 v20, 5, v8
    v_lshlrev_b32 v20, 10, v20               ; hi * 1024
    v_bfe_u32 v21, v8, 2, 2
    v_lshl_add_u32 v20, v21, 7, v20          ; r * 128
    v_bfe_u32 v21, v8, 3, 1                  ; (r >> 1) & 1
    s_and_b32 s24, s{S_W}, 1
    v_xor_b32 v21, s24, v21
    v_lshl_add_u32 v20, v21, 6, v20
    v_bfe_u32 v21, v8, 4, 1
    s_lshr_b32 s24, s{S_W}, 1
    v_xor_b32 v21, s24, v21
    v_lshl_add_u32 v20, v21, 5, v20
    v_and_b32 v21, 1, v8
    v_lshl_add_u32 v20, v21, 4, v20
    v_bfe_u32 v21, v8, 1, 1
    v_lshl_add_u32 v20, v21, 3, v20
    s_add_u32 s24, s{S_W1K}, {4*SLOT}
    v_add_u32 v{VDT}, s24, v20
    v_xor_b32 v{VDT+1}, 64, v{VDT}
    s_mul_i32 s74, s{S_W}, {448*1024}
    """)
    E(f"""
    ; kv stage: thread = (channel pair cp = 8 w + (lane >> 3), token group tg = lane & 7) ; stores at cp*16384 + 4080 - 128 m - 16 tg
    v_lshrrev_b32 v20, 3, v0                 ; cp
    v_and_b32 v21, 7, v8                     ; tg
    v_lshlrev_b32 v53, {14 - P1}, v20
    v_lshlrev_b32 v23, 4, v21
    v_sub_u32 v53, v53, v23
    s_lshl_b32 s24, s{S_M}, 7
    s_sub_u32 s24, 4080, s24
    v_add_u32 v53, s24, v53
    ; staging tile reads
    v_mul_u32_u24 v54, {TBS}, v21
    v_lshl_add_u32 v54, v20, 2, v54
    v_add_u32 v55, {VT}, v54
    v_add_u32 v54, {KT}, v54
    ; group flag poll: line 8 l + gamma
    v_and_b32 v30, 7, v8
    v_lshlrev_b32 v30, 10, v30
    s_lshl_b32 s24, s{S_G}, 7
    s_add_u32 s24, s24, {FL_S0}
    v_add_u32 v30, s24, v30
    s_and_b32 s25, s{S_W}, 1
    s_mul_i32 s24, s25, {XR_CH}
    s_add_u32 s24, s24, {XRB}
    v_add_u32 v{VXW}, s24, v{VL16}
    s_add_u32 s24, s{S_CB}, s25
    s_lshl_b32 s24, s24, {13 - P1}
    s_add_u32 s{S_XL}, s24, {WS_KVT}
    s_add_u32 s{S_XL+1}, s24, {WS_KVT + 4096}
    ; epilogue lanes: n' = l&7, par' = (l>>3)&1, g = l>>4 ; base token s_b = 256 t + 32 n' + 8 g ; t = 2 w + tau
    v_and_b32 v20, 7, v8                     ; n'
    v_bfe_u32 v21, v8, 3, 1                  ; par'
    v_lshrrev_b32 v23, 4, v8                 ; g
    v_lshlrev_b32 v31, 6, v20
    v_lshl_add_u32 v31, v23, 4, v31          ; 64 n' + 16 g
    v_mul_u32_u24 v{VKVW}, {XR_P}, v21
    v_sub_u32 v{VKVW}, v{VKVW}, v31
    s_lshl_b32 s24, s{S_W}, 10
    s_sub_u32 s24, {XRB + 4080 - 512}, s24
    v_add_u32 v{VKVW}, s24, v{VKVW}          ; kv window (tau = 1 ; tau = 0 at +512)
    v_lshrrev_b32 v31, 2, v20
    v_lshlrev_b32 v{VYS}, 17, v31
    v_and_b32 v31, 3, v20
    {YST}
    s_lshl_b32 s60, s{S_D}, 16
    s_and_b32 s61, s{S_D}, 0xffff0000
    v_mov_b32 v{VT0}, {OOB}
    v_mov_b32 v31, 0
    v_cmp_eq_u32 vcc, 0, v0
    s_lshl_b32 s24, s{S_G}, {GSH}
    s_add_u32 s80, s24, {WS_KVT}
    v_cndmask_b32 v{VT0}, v{VT0}, v31, vcc
    s_cmp_eq_u32 s2, 0
    s_cselect_b32 s24, {FL_EPOCH}, {OOB}
    v_add_u32 v{VEP}, s24, v{VT0}
    v_or_b32 v{VEP}, v{VEP}, v{VT0}
    s_add_u32 s81, s80, 4096
    s_add_u32 s82, s80, 8192
    s_add_u32 s83, s80, 12288
    """)
    stamp('setup2')
    def s0publish(lbl):
        E(f"""
        s_cmp_lg_u32 s{S_W}, 0
        s_cbranch_scc1 {lbl}
        v_mov_b32 v31, s{S_XCC}
        s_add_u32 s25, s86, {FL_S0}
        buffer_store_dword v31, v{VF0}, {WSRD}, s25 offen sc1
        """)
        if S0SC:
            E(f"""
            s_and_b32 s24, s{S_XCC}, 7
            s_mul_i32 s25, s24, s24
            s_lshl_b32 s25, s25, 16
            s_lshl_b32 s24, s24, 6
            s_add_u32 s24, s24, s25
            s_add_u32 s24, s24, 1
            s_lshl_b32 s25, s{S_G}, 2
            v_mov_b32 v34, s24
            v_mov_b32 v35, s25
            s_mov_b64 exec, 1
            global_atomic_add v35, v34, s[96:97]
            s_mov_b64 exec, -1
            """)
        E(f"""
        {lbl}:
        """)
    if MKALL and MKPOS == 0:
        E(f"""
        s_cmp_ge_u32 s{S_W}, 2
        s_cbranch_scc1 L_bm2
        s_waitcnt vmcnt({6 + 1 + 4*len(HEARLY) + 2 + (2 if RT == 1 else 0)})
        s_branch L_bmx
        L_bm2:
        {f's_cmp_ge_u32 s2, {RAWTHR}' if RAWTHR else ''}
        {'s_cbranch_scc1 L_bm4' if RAWTHR else ''}
        s_cmp_eq_u32 s{S_W}, 3
        s_cbranch_scc1 L_bm3
        s_waitcnt vmcnt({9 + (11 if RAWPOS == 0 else 0)})
        s_branch L_bmx
        L_bm3:
        s_waitcnt vmcnt({3 + (11 if RAWPOS == 0 else 0)})
        """)
        if RAWTHR:
            E(f"""
            s_branch L_bmx
            L_bm4:
            s_cmp_eq_u32 s{S_W}, 3
            s_cbranch_scc1 L_bm5
            s_waitcnt vmcnt(20)
            s_branch L_bmx
            L_bm5:
            s_waitcnt vmcnt(14)
            """)
        E("""
        L_bmx:
        s_barrier
        """)
        s0publish('L_bmy')
        stamp('bm')
    if MKPOS == 1:
        markers4(fix=False)
        stamp('bm')
    if opt.get('ftouch', 0) == 1:
        l_ = E.label('L_ft')
        E(f"s_cmp_lg_u32 s{S_W}, 0\ns_cbranch_scc1 {l_}\nbuffer_load_dword v{VFT}, v{VFT}, {WSRD}, 0 offen\n{l_}:")
    FTW = FTW2 = ""
    NX0 = (1 if opt.get('ftouch', 0) == 1 else 0) + (1 if MKALL and MKPOS == 0 else 0) + (1 if S0SC else 0)
    NY01 = (4*len(HEARLY) + 2 + (2 if RT else 0)) if MKPOS != 1 else 0
    if RT == 2:
        E(f"s_cmp_ge_u32 s{S_W}, 2\ns_cbranch_scc1 L_rt2")
        rtouch()
        E("L_rt2:")
    if NX0:
        FTW = f"s_cmp_eq_u32 s{S_W}, 0\ns_cbranch_scc1 L_g2c"
        FTW2 = f"L_g2c:\ns_waitcnt vmcnt({NY01 + NX0})\ns_branch L_g2x"
    E(f"""
    s_cmp_ge_u32 s{S_W}, 2
    s_cbranch_scc1 L_g2b
    {FTW}
    s_waitcnt vmcnt({NY01})
    s_branch L_g2x
    {FTW2}
    L_g2b:
    """)
    def kvtouch():
        E(f"""
        v_lshlrev_b32 v{VFT+1}, 12, v8
        s_lshl_b32 s26, s{S_G}, 19
        s_lshl_b32 s27, s{S_M}, 7
        s_sub_u32 s26, s26, s27
        s_add_u32 s26, s26, {WS_KVT + 3968}
        s_add_u32 s27, s26, 262144
        buffer_load_dword v{VFT+2}, v{VFT+1}, {WSRD}, s26 offen
        buffer_load_dword v{VFT+3}, v{VFT+1}, {WSRD}, s27 offen
        """)
    MKT = opt.get('mkt', 0)
    if RAWTHR:
        E(f"s_cmp_lt_u32 s2, {RAWTHR}\ns_cbranch_scc1 L_g2f\ns_waitcnt vmcnt(13)\ns_branch L_g2x\nL_g2f:")
    if RAWPOS == 1:
        E(srd_fix(68, 1835008))
        if MKT == 2:
            E(f"s_cmp_lg_u32 s{S_W}, 3\ns_cbranch_scc1 L_g2e")
            kvtouch()
            E("L_g2e:")
        prep_dma()
        if MKT == 1:
            E(f"s_cmp_lg_u32 s{S_W}, 3\ns_cbranch_scc1 L_g2d")
            kvtouch()
            E("s_waitcnt vmcnt(13)\ns_branch L_g2x\nL_g2d:")
        if MKT == 2:
            E(f"s_cmp_lg_u32 s{S_W}, 3\ns_cbranch_scc1 L_g2d")
            E("s_waitcnt vmcnt(13)\ns_branch L_g2x\nL_g2d:")
    E(f"""
    s_waitcnt vmcnt({13 if RAWPOS == 0 else 11 if RAWPOS == 1 else 2 if MKPOS != 1 else 0})
    L_g2x:
    """)
    stamp('i_b')
    if MKPOS == 2: markers4(fix=False)
    E.vmq = []
    E.wait_ds('pad')
    E("s_barrier")
    if MKPOS == 1: s0publish('L_bmy')
    stamp('b0')
    S0R = 24
    def s0poll():
        if S0SC:
            E(f"""s_lshl_b32 s28, s{S_G}, 2
            s_cmp_lt_u32 s{S_W}, 2
            s_cbranch_scc0 L_s0pv
            s_load_dword s29, s[96:97], s28 glc
            s_branch L_s0pw
            L_s0pv:""")
        E.vm(f"buffer_load_dwordx4 v[{S0R}:{S0R+3}], v30, {WSRD}, 0 offen sc1", 's0')
        if S0SC: E("L_s0pw:")
    S0AT = opt.get('s0at', 1)
    if S0AT == 0: s0poll()
    KR, VRW_ = 32, 44
    for x in range(0, 8, 2): E.ds(f"ds_read2_b32 v[{KR+x}:{KR+x+1}], v54 offset0:{32*x} offset1:{32*(x+1)}", 'kv')
    E(f"v_add_u32 v20, {TBS}, v54\nv_add_u32 v21, {TBS}, v55")
    for x in range(8, 12, 2): E.ds(f"ds_read2_b32 v[{KR+x}:{KR+x+1}], v20 offset0:{32*(x-8)} offset1:{32*(x-7)}", 'kv')
    for x in range(0, 8, 2): E.ds(f"ds_read2_b32 v[{VRW_+x}:{VRW_+x+1}], v55 offset0:{32*x} offset1:{32*(x+1)}", 'kv')
    E.ds(f"ds_read_b32 v{VRW_+8}, v21", 'kv')
    if RAWPOS == 2:
        E(f"s_cmp_lt_u32 s{S_W}, 2\ns_cbranch_scc1 L_rw2")
        E(srd_fix(68, 1835008))
        prep_dma()
        E("L_rw2:")
    E(f"""
    v_lshlrev_b32 v136, 16, v{SK}
    v_lshlrev_b32 v137, 16, v{SK+2}
    v_and_b32 v138, s{S_HI}, v{SK}
    v_and_b32 v139, s{S_HI}, v{SK+2}
    v_lshlrev_b32 v140, 16, v{SK+1}
    v_lshlrev_b32 v141, 16, v{SK+3}
    v_and_b32 v142, s{S_HI}, v{SK+1}
    v_and_b32 v143, s{S_HI}, v{SK+3}
    """)
    E.wait_ds('kv')
    for i in range(12): E(f"v_lshlrev_b32 v{96+2*i}, 16, v{KR+i}\nv_and_b32 v{97+2*i}, s{S_HI}, v{KR+i}")
    if S0AT == 1: s0poll()
    for i in range(9): E(f"v_lshlrev_b32 v{164+2*i}, 16, v{VRW_+i}\nv_and_b32 v{165+2*i}, s{S_HI}, v{VRW_+i}")
    def K(x): return f"v[{96+2*x}:{97+2*x}]"
    def KV(i): return 144 + 2*i
    KVI = range(1, 9) if P1 else range(9)
    for i in KVI: E(f"v_pk_mul_f32 v[{KV(i)}:{KV(i)+1}], v[136:137], {K(i+3)}")
    if S0AT == 2: s0poll()
    for tap in (1, 2, 3):
        for i in KVI: E(f"v_pk_fma_f32 v[{KV(i)}:{KV(i)+1}], v[{136+2*tap}:{137+2*tap}], {K(i+3-tap)}, v[{KV(i)}:{KV(i)+1}]")
    if S0AT == 3: s0poll()
    for i in KVI: E(f"v_pk_mul_f32 v[{KV(i)}:{KV(i)+1}], v[{KV(i)}:{KV(i)+1}], v[{164+2*i}:{165+2*i}]")
    if MKPOS == 2:
        assert S0AT == 4
        if RAWPOS == 2 and not MKW:
            E(f"s_cmp_ge_u32 s{S_W}, 2\ns_cbranch_scc1 L_mq2\ns_waitcnt vmcnt(0)\ns_branch L_mq3\nL_mq2:\ns_waitcnt vmcnt(11)\nL_mq3:")
        elif MKW:
            E(f"s_cmp_ge_u32 s{S_W}, 2\ns_cbranch_scc1 L_mq2\ns_waitcnt vmcnt(0)\nL_mq2:")
        else: E("s_waitcnt vmcnt(0)")
        stamp('mq')
        E("s_barrier")
        s0publish('L_bmy')
        stamp('bm')
    if S0AT == 4: s0poll()
    for c in range(2):
        for par in range(1 if P1 else 2):
            b = KR + 8*c + 4*par
            for d in range(4): E(f"v_cvt_pk_bf16_f32 v{b+d}, v{KV(8-par-2*d)+c}, v{KV(7-par-2*d)+c}")
            E.vm(f"buffer_store_dwordx4 v[{b}:{b+3}], v53, {WSRD}, s{80 + (c if P1 else 2*c + par)} offen" + FL('kv', 0), 'kvst')
    stamp('kvst')

    X, Y = 128, 136
    XF, YF, T = 144, 160, 176
    def stats(src, rnd, between=None, scale=False, pre=None):
        P, Q = 192, 194
        E(f"v_pk_add_f32 v[{P}:{P+1}], v[{src}:{src+1}], v[{src+2}:{src+3}]")
        E(f"v_pk_mul_f32 v[{Q}:{Q+1}], v[{src}:{src+1}], v[{src}:{src+1}]")
        for i in range(1, 8):
            E(f"v_pk_fma_f32 v[{Q}:{Q+1}], v[{src+2*i}:{src+2*i+1}], v[{src+2*i}:{src+2*i+1}], v[{Q}:{Q+1}]")
            if i >= 2: E(f"v_pk_add_f32 v[{P}:{P+1}], v[{P}:{P+1}], v[{src+2*i}:{src+2*i+1}]")
        E(f"""
        v_add_f32 v{P}, v{P}, v{P+1}
        v_add_f32 v{Q}, v{Q}, v{Q+1}
        v_permlane16_swap_b32 v{P}, v{Q}
        v_add_f32 v{P}, v{P}, v{Q}
        v_add_f32_dpp v{P}, v{P}, v{P} row_ror:8 row_mask:0xf bank_mask:0xf
        v_mov_b32 v{P+1}, v{P}
        v_permlane32_swap_b32 v{P}, v{P+1}
        v_add_f32 v{P}, v{P}, v{P+1}
        s_mov_b64 exec, 0x00ff00ff
        """)
        E.ds(f"ds_write_b32 v{VSTW}, v{P} offset:{rnd*256}", 'stw')
        E("s_mov_b64 exec, -1")
        E.wait_ds('stw')
        if pre: pre()
        E("s_barrier")
        E.ds(f"ds_read_b128 v[196:199], v{VSTR} offset:{rnd*256}", 'str')
        E.ds(f"ds_read_b128 v[200:203], v{VSTR} offset:{rnd*256+16}", 'str')
        if between: between()
        E.wait_ds('str')
        E(f"""
        v_pk_add_f32 v[196:197], v[196:197], v[198:199]
        v_pk_add_f32 v[200:201], v[200:201], v[202:203]
        v_pk_add_f32 v[196:197], v[196:197], v[200:201]
        v_mul_f32 v196, 0x3b000000, v196
        v_mul_f32 v197, 0x3b000000, v197
        v_fma_f32 v197, -v196, v196, v197
        v_max_f32 v197, 0, v197
        v_add_f32 v197, 0x3727c5ac, v197
        v_rsq_f32 v204, v197
        s_nop 0
        """)
        if scale: E(f"v_mul_f32 v204, {LOG2E:#x}, v204")
        E("v_mul_f32_e64 v206, -v196, v204")
    def norm(dst, src):
        for i in range(8):
            E(f"v_pk_fma_f32 v[{dst+2*i}:{dst+2*i+1}], v[{src+2*i}:{src+2*i+1}], v[204:205], v[206:207] op_sel_hi:[1,0,0]")
    def unpack(dst, src, n):
        for i in range(n):
            E(f"v_lshlrev_b32 v{dst+2*i}, 16, v{src+i}")
            E(f"v_and_b32 v{dst+2*i+1}, s{S_HI}, v{src+i}")
    S_XMD = 64
    def R_pre(L, between=None, pre=None):
        unpack(XF, X, 8)
        if P1 and L == 1:
            for i in range(8): E(f"v_pk_add_f32 v[{XF+2*i}:{XF+2*i+1}], v[{XF+2*i}:{XF+2*i+1}], v[{T+2*i}:{T+2*i+1}]")
            if opt.get('x2r', 0):
                for i in range(8): E(f"v_cvt_pk_bf16_f32 v{X+i}, v{XF+2*i}, v{XF+2*i+1}")
                unpack(XF, X, 8)
        stats(XF, 0, between, pre=pre)
        norm(T, XF)
        stamp(f'R{L}s1')
    def R_post(L, early=None, late=None, pre=None):
        RO = opt.get('ropt', 0)
        if not (RO and L == 1): unpack(YF, Y, 8)
        for i in range(8):
            E(f"v_pk_fma_f32 v[{XF+2*i}:{XF+2*i+1}], v[{T+2*i}:{T+2*i+1}], v[{YF+2*i}:{YF+2*i+1}], v[{XF+2*i}:{XF+2*i+1}]")
        M = 20 if (P1 and L == 0) else 208
        MLATE = RO and P1 and (L == 0 or opt.get('xmlate', 0))
        def mcvt():
            for i in range(8): E(f"v_cvt_pk_bf16_f32 v{M+i}, v{XF+2*i}, v{XF+2*i+1}")
        if not MLATE: mcvt()
        def xmst():
            if P1 and L == 0: return
            if P1: E(f"s_add_u32 s{S_T0}, s{S_R}, s{S_XMD}\ns_add_u32 s{S_T1}, s{S_T0}, 4096")
            else: sadd(S_T0, S_R, WS_XM); sadd(S_T1, S_R, WS_XM + 4096)
            E.vm(f"buffer_store_dwordx4 v[{M}:{M+3}], v{VR}, {WSRD}, s{S_T0} offen" + FL('xm', L), 'rst')
            E.vm(f"buffer_store_dwordx4 v[{M+4}:{M+7}], v{VR}, {WSRD}, s{S_T1} offen" + FL('xm', L), 'rst')
        def behind():
            xmst()
            E.vm(f"buffer_store_dword v{VONE}, v{VEP}, {WSRD}, 0 offen sc1", 'ep')
            if late: late()
        XML = P1 and L == 1 and opt.get('xmlate', 0)
        if L == 1 and not XML: xmst()
        if early: early()
        stats(XF, 1, between=behind if L == 0 else late, scale=True, pre=pre)
        norm(T, XF)
        N = 216
        for i in range(8): E(f"v_cvt_pk_bf16_f32 v{N+i}, v{T+2*i}, v{T+2*i+1}")
        sadd(S_T0, S_R, WS_XN); sadd(S_T1, S_R, WS_XN + 4096)
        E.vm(f"buffer_store_dwordx4 v[{N}:{N+3}], v{VR}, {WSRD}, s{S_T0} offen" + FL('xn', L), 'rst')
        E.vm(f"buffer_store_dwordx4 v[{N+4}:{N+7}], v{VR}, {WSRD}, s{S_T1} offen" + FL('xn', L), 'rst')
        if MLATE: mcvt()
        if XML:
            for i in range(8): E(f"v_accvgpr_write_b32 a{A_Y+i}, v{M+i}")
        stamp(f'R{L}st')
    def Rpub(L):
        publish(S_FXNS, 0, 'rst')
        E("s_barrier")
        stamp(f'R{L}pub')

    ORDER = {}
    def g2_order():
        stA = [0, 1, 2]; stB = [3, 4, 5]; stC = [6]
        def blocks(tt, ps): return [(tt, rho, p) for p in ps for rho in range(4)]
        b1 = blocks(1, stB); nb1 = opt.get('b1_first', 4)
        return blocks(0, stA) + blocks(1, stA) + blocks(0, stB) + b1[:nb1] + blocks(0, stC) + b1[nb1:] + blocks(1, stC)
    def wd_kseq(L):
        kseq = []
        for (tt, rho, p) in g2_order():
            kp = rho*7 + LAYERS[L]['tau'][p]
            if kp not in kseq: kseq.append(kp)
        if opt.get('rot', 0): kseq.sort(key=lambda kp: kp // 7)
        return kseq
    def make_bulk():
        c = LAYERS[0]; ops = []
        ks = wd_kseq(0); npre = opt.get('wd_pre', 0)
        if opt.get('w1rot', 0):
            assert c['tau'][:3] == [0, 1, 2] and c['slot'][:3] == [2, 3, 4]
            ops.append((4, False, lambda: E(f"s_lshr_b32 s66, s{S_C}, 3\ns_mul_i32 s67, s66, 61440\ns_mul_i32 s66, s66, 36864")))
            for u in range(6):
                f_ = (u >> 1)*32768 + (u & 1)*4096
                ins = 's_add_u32' if u < 3 else 's_sub_u32'; d_ = 67 if u % 3 == 1 else 66
                ops.append((4, False, lambda f_=f_, ins=ins, d_=d_: E(f"s_add_u32 m0, s{S_W1K}, {2*SLOT + f_}\n{ins} m0, m0, s{d_}")))
                ops.append((4, False, lambda f_=f_, ins=ins, d_=d_: (sadd(S_DA, S_W1, f_), E(f"{ins} s{S_DA}, s{S_DA}, s{d_}"))))
                for i in range(4):
                    ops.append((4, True, lambda off=i*1024, u=u: E.vm(f"buffer_load_dwordx4 v{VL16}, {WSRD}, s{S_DA} offen" + (f" offset:{off}" if off else "") + " lds", f'w1_{u >> 1}')))
        else:
            for p in range(3): ops += dma_stream(c['tau'][p], c['slot'][p], f'w1_{p}')
        ops += wd_stream(ks[:npre])
        ops += dma_stream(c['tau'][3], c['slot'][3], 'w1_3')
        if not opt.get('nowd', 0): ops += wd_stream(ks[max(npre, 4*opt.get('wdd', 0)):])
        return Bulk(ops)
    BK = {}

    def layer(L):
        cfg = LAYERS[L]; tau = cfg['tau']; slot = cfg['slot']
        O = lambda k, d: opt.get(f'{k}{L}', opt.get(k, d))
        G2 = 224; NS = 336; lastslot = NS - 1
        BUD = O('bud', 24); VGAP = O('vgap', 2)
        F = {}; cost = [0]*(NS + 64); vslots = set()
        for i in range(G2):
            if i + LA < G2: cost[i] += 4
            if i % 2 == 0: cost[i] += 4
            if i < 96 and i % 3 == 0 and i > 0: cost[i] += 4
        for i in range(G2, NS, 2): cost[i] += 4
        RANK = {'m': 0, 's': 1, 'v': 2}
        def at(i, f, c=4, k='v'): F.setdefault(i, ([], [], []))[RANK[k]].append(f); cost[i] += c
        last = {'k': 'm', 't': -1}
        def put(t, f, c=4, k='v', vm=False, chain=False):
            if vm: k = 'm'
            if chain:
                t = max(t, last['t'] + (1 if RANK[k] < RANK[last['k']] else 0))
            while cost[t] + c > BUD or (vm and any((t + d) in vslots for d in range(-VGAP + 1, VGAP))): t += 1
            if vm: vslots.add(t)
            at(t, f, c, k); last['k'] = k; last['t'] = t
            return t
        def stream(t, ops):
            first = True
            for (c, vm, f) in ops:
                t = put(t, f, c, 's', vm, chain=not first); first = False
            return t
        def T_(s): return lambda: E(s)
        def barrier(): E("s_barrier")
        poll_issue(VP16, S_FXNL, 0, f'pxn{L}')
        if L == 0: BK['b'].emit(opt.get('bk_pub', 0))
        poll_check(VP16, S_FXNL, 0, f'pxn{L}')
        stamp(f'L{L}xnok')
        def xops(k):
            ops = []
            if k % 4 == 0: ops.append((4, False, lambda: sadd(S_XA, S_XNL, WS_XN + (k >> 2)*4096)))
            off = (k & 3)*1024
            ops.append((4, True, lambda: E.vm(f"buffer_load_dwordx4 v[{XR+4*k}:{XR+4*k+3}], v{VL16}, {WSRD}, s{S_XA} offen" + (f" offset:{off}" if off else "") + LSC, f'x{L}_{k}')))
            return ops
        n_up = O('nup', 5)
        for k in range(n_up):
            for (_, _, f) in xops(k): f()
        seq = []
        for k in range(32):
            for p in range(3): seq.append(('g1', p, k))
        for p in range(3, 7):
            for k in range(32): seq.append(('g1', p, k))
        accp = [0, 1, 2, 3, 0, 1, 2]
        def a_addr(p, k):
            s = slot[p]
            base = [VL16, VL16, VA1, VA1, VA2][s]
            off = (s & 1)*SLOT + k*1024 if s < 4 else k*1024
            return base, off
        def rd(i):
            _, p, k = seq[i]
            b, off = a_addr(p, k)
            r = RING + 4*(i % 8)
            E.ds(f"ds_read_b128 v[{r}:{r+3}], v{b} offset:{off}", f'a{L}_{i}')
        order = g2_order()
        assert len(order) == 56
        last0 = max(n for n, b in enumerate(order) if b[0] == 0)
        acc2 = {0: [ACC[0], ACC[1]], 1: [ACC[3], ACC[2]]}
        NH = 37
        def hreg(n):
            q = n % NH
            return ar(A_H + 4*q, 4) if q < 5 else vr(XR + 4*(q - 5), 4)
        def epilogue(p, o):
            c = ACC[accp[p]]
            for e in range(8):
                at(o + e, T_(f"v_exp_f32_e64 v{c+e}, -v{c+e}"), 8)
                at(o + e + 1, T_(f"v_add_f32 v{c+e}, 1.0, v{c+e}"))
                at(o + 8 + e, T_(f"v_rcp_f32 v{c+e}, v{c+e}"), 8)
                at(o + 9 + e, T_(f"v_mul_f32 v{c+e}, v{c+e}, v{c+8+e}"))
        def epilogue2(p, o):
            c = ACC[accp[p]]
            t = 0
            for k in range(4):
                t = put(max(t, o + 11 + 2*k), T_(f"v_cvt_pk_bf16_f32 v{c+8+k}, v{c+2*k}, v{c+2*k+1}"))
            stage = 'A' if p < 3 else ('B' if p < 6 else 'C')
            put(o + 10, T_(f"s_add_u32 s{S_HS[p & 1]}, s{S_HST}, {WS_H + tau[p]*4096}"), k='s')
            return put(t + 1, lambda: E.vm(f"buffer_store_dwordx4 v[{c+8}:{c+11}], v{VL16}, {WSRD}, s{S_HS[p & 1]} offen" + FL('h', L), f'h{stage}{L}'), vm=True)
        eo = [99, 115, 131, 147, 163, 196, 228]
        for p in range(7): epilogue(p, eo[p])
        est = [epilogue2(p, eo[p]) for p in range(7)]
        assert est[0] < 126 and est[1] < 158 and est[2] < 190 and est[5] < 222 and est[6] < 248, est
        at(121, lambda: (E.wait_vm(f'w4{L}'), barrier()), 8, 's')
        at(96, barrier, 4, 's')
        at(153, lambda: (E.wait_vm(f'w5{L}'), barrier()), 8, 's')
        at(185, lambda: (E.wait_vm(f'w6{L}'), barrier()), 8, 's')
        t = 0
        for k in range(n_up, 32):
            t = stream(max(t + (1 if k % 4 == 0 and k > n_up else 0), O('xsp', 2)*(k - n_up)), xops(k))
        XML = P1 and L == 1 and opt.get('xmlate', 0)
        if XML:
            t = stream(t + 1, [(4, False, lambda: E(f"s_add_u32 s{S_XA}, s{S_R}, s{S_XMD}")),
                               (4, True, lambda: E.vm(f"buffer_store_dwordx4 {ar(A_Y, 4)}, v{VR}, {WSRD}, s{S_XA} offen sc1", 'xms')),
                               (4, False, lambda: E(f"s_add_u32 s{S_XA}, s{S_XA}, 4096")),
                               (4, True, lambda: E.vm(f"buffer_store_dwordx4 {ar(A_Y+4, 4)}, v{VR}, {WSRD}, s{S_XA} offen sc1", 'xms'))])
        t = stream(t + 1, dma_stream(tau[4], slot[4], f'w4{L}'))
        w4end = t
        t = stream(97, dma_stream(tau[5], slot[5], f'w5{L}'))
        w5end = t
        t = stream(t + 1, dma_stream(tau[6], slot[6], f'w6{L}'))
        w6end = t
        assert w4end < 108 and w5end < 140 and w6end < 172, (w4end, w5end, w6end)
        if L == 0 and opt.get('htg'):
            def ht_ops(p0, np_):
                ops = [(4, False, lambda x=x: E(x)) for x in (f"v_lshrrev_b32 v30, 3, v8", f"v_min_u32 v30, {np_-1}, v30", f"v_lshlrev_b32 v30, 12, v30", f"v_and_b32 v31, 7, v8", f"v_lshl_add_u32 v30, v31, 7, v30")]
                return ops + [(4, False, lambda: E(f"s_add_u32 s{S_T2}, s{S_HST}, {WS_H + tau[p0]*4096}")),
                        (4, True, lambda: E.vm(f"buffer_load_dword v31, v30, {WSRD}, s{S_T2} offen", 'ht'))]
            assert tau == list(range(7))
            m = opt['htg']
            if m == 1:
                stream(w4end - 6, ht_ops(0, 3)); stream(w5end - 6, ht_ops(3, 4))
            elif m == 2:
                stream(w4end - 6, ht_ops(0, 7))
            elif m == 3:
                stream(2, ht_ops(0, 7))
        if L == 0 and WDC and not opt.get('wcr', 0):
            assert all(getattr(o[2], 'info', None) is not None for o in BK['b'].ops) and len(BK['b'].ops) == 28*3, 'no Wd load in front of the S1C check'
            def wc_cmp(first):
                return "\n".join(["v_accvgpr_read_b32 v30, a232", "v_accvgpr_read_b32 v31, a233", f"v_xor_b32 v30, s{S_N}, v30", f"v_xor_b32 v31, s{S_N}, v31", "v_or_b32 v30, v30, v31",
                                  "v_accvgpr_read_b32 v31, a234", f"v_xor_b32 v31, s{S_N}, v31", "v_or_b32 v30, v30, v31",
                                  "v_accvgpr_read_b32 v31, a235", f"v_xor_b32 v31, s{S_N}, v31", "v_or_b32 v30, v30, v31", "v_cmp_ne_u32 vcc, 0, v30"])
            wld = f"buffer_load_dwordx4 a[232:235], v9, {WSRD}, 0 offen sc1"
            E(f"v_lshlrev_b32 v9, 7, v8\nv_add_u32 v9, {FL_S1C}, v9")
            E.vm(wld, 'wcp')
            t = put(O('wcc', 40), lambda: E.wait_vm('wcp'), k='s')
            for ln in wc_cmp(0).split('\n'): t = put(t, T_(ln), chain=True)
            def wc_branch():
                ls = E.label('L_wcs'); lb = E.label('L_wcb'); ll = E.label('L_wcl')
                E(f"s_cbranch_vccnz {ls}\n{lb}:")
                E.out_of_line(f"""
                {ls}:
                s_mov_b32 s{S_T3}, 0
                {ll}:
                {wld}
                s_add_u32 s{S_T3}, s{S_T3}, 1
                s_waitcnt vmcnt(0)
                {wc_cmp(1)}
                s_nop 4
                s_cbranch_vccz {lb}
                s_cmp_lt_u32 s{S_T3}, 0x2000
                s_cbranch_scc1 {ll}
                s_branch {lb}""")
            t = put(t + 2, wc_branch, k='s')
            assert t < O('wd_at', 70) - 1, t
        XM0 = 20; XM1 = 24
        def xm_ops(tt):
            return [(4, False, (lambda: sadd(S_XA, S_XML, WS_XM + tt*32768)) if not P1 else (lambda: E(f"s_add_u32 s{S_XA}, s{S_XML if tt == 0 else S_XA}, {f's{S_XMD}' if tt == 0 else 32768}"))),
                    (4, True, lambda: E.vm(f"buffer_load_dwordx4 v[{XM0+4*tt}:{XM0+4*tt+3}], v{VL16}, {WSRD}, s{S_XA} offen" + LSC, f'xm{L}'))]
        NOXM = P1 and L == 0
        if not NOXM: stream(stream(O('xm_at', 152) if not XML else 186, xm_ops(0)) + 1, xm_ops(1))
        fh = 0
        pub = {}; chk = {}
        for (st_, k, e) in (('A', 0, est[2]), ('B', 1, est[5]), ('C', 2, est[6])):
            tp = put(O('pub' + st_, e + 12), lambda st_=st_: E.wait_vm(f'h{st_}{L}'), k='s')
            tp = put(tp, lambda st_=st_, k=k: publish(S_FHS, fh + 256*k, f'h{st_}{L}', wait=False), 4, 'm', chain=True)
            tq = put(O('poll' + st_, tp + 8), lambda st_=st_, k=k: poll_issue(VP8, S_FHL, fh + 256*k, f'p{st_}{L}'), 4, 'm')
            tc = put(O('chk' + st_, tq + (12 if st_ == 'A' else 14)), lambda st_=st_: E.wait_vm(f'p{st_}{L}'), k='s')
            tc = put(tc, lambda st_=st_, k=k: poll_check(VP8, S_FHL, fh + 256*k, f'p{st_}{L}', wait=False), 8, 'v', chain=True)
            pub[st_] = tp; chk[st_] = tc
        if XML: assert pub['A'] > 121 and chk['A'] < 185
        if L == 0 and opt.get('x2m', 0) and not MODE['slow']:
            assert chk['A'] < 185 and P1
            pre = [f"s_lshr_b32 s{S_T2}, s{S_W}, 1", f"s_cmp_eq_u32 s{S_T2}, s{S_TH}", f"s_cselect_b32 s{S_T2}, 0, {OOB}", f"v_add_u32 v30, s{S_T2}, v{VR}",
                   f"s_lshl_b32 s{S_T2}, s{S_W}, 13", f"s_sub_u32 s{S_T1}, s{S_R}, s{S_T2}", f"s_and_b32 s{S_T2}, s{S_W}, 1", f"s_lshl_b32 s{S_T2}, s{S_T2}, 14",
                   f"s_add_u32 s{S_T1}, s{S_T1}, s{S_T2}", f"s_add_u32 s{S_T1}, s{S_T1}, {WS_XN}"] + [f"v_accvgpr_write_b32 a{232+e}, -1" for e in range(4)]
            t = O('x2p', 188) - 20
            t = put(t, T_("\n".join(pre[:3])), 12, 's')
            for ln in pre[3:]: t = put(t, T_(ln), 4, 's' if ln.startswith('s_') else 'v', chain=True)
            t = max(t + 1, O('x2p', 188))
            for i_ in range(4):
                if i_: t = put(t, T_(f"s_add_u32 s{S_T1}, s{S_T1}, 4096"), 4, 's', chain=True)
                t = put(t + (1 if i_ else 0), lambda: E.vm(f"buffer_store_dwordx4 a[232:235], v30, {WSRD}, s{S_T1} offen", 'x2p'), vm=True, chain=True)
            assert 185 < O('x2p', 188) and t < est[6], t
        hslot = {}
        for n0 in range(0, 56, 4):
            tt, _, p = order[n0]
            sreg = S_HA[(n0 >> 2) & 1]
            rdy = chk['A' if p < 3 else 'B' if p < 6 else 'C'] + 1
            prev = max([hslot[m] for m in range(max(0, n0 - 8), max(0, n0 - 4))], default=0)
            ta = put(max(prev, rdy - 3), lambda tt=tt, p=p, sreg=sreg: E(f"s_add_u32 s{sreg}, s{S_HLD}, {WS_H + tt*114688 + tau[p]*4096}"), k='s') + 1
            for n in range(n0, n0 + 4):
                assert order[n][0] == tt and order[n][2] == p and order[n][1] == n - n0
                q = n % NH
                if n < NH: free = 0 if q < 5 else 192 + (q - 5) + 1
                else: free = G2 + 2*(n - NH) + 2
                off = (n - n0)*1024
                hslot[n] = put(max(rdy, free, ta), lambda n=n, sreg=sreg, off=off: E.vm(f"buffer_load_dwordx4 {hreg(n)}, v{VL16}, {WSRD}, s{sreg} offen" + (f" offset:{off}" if off else "") + LSC, f'h{L}_{n}'), vm=True)
                assert hslot[n] < G2 + 2*n - 6, (L, n, hslot[n])
        if opt.get('verbose'): print('L', L, 'est', est, 'w', w4end, w5end, w6end, 'pub', pub, 'chk', chk, 'h', [hslot[n] for n in range(56)])
        if L == 1 and opt.get('wbat', 0) and not MODE['slow']:
            def wb_():
                l1 = E.label('L_wb'); l2 = E.label('L_wbx')
                E(f"s_or_b32 s{S_T2}, s{S_ROLE}, s{S_W}\ns_cmp_eq_u32 s{S_T2}, {opt.get('wbwho', 0)}\ns_cbranch_scc1 {l1}")
                E.vm(f"buffer_load_dword v31, v{VF0}, {WSRD}, s{S_T1} offen", 'wb')
                E(f"s_branch {l2}\n{l1}:\nbuffer_wbl2 sc1\n{l2}:")
            t = put(opt['wbat'] - 2, T_(f"s_mov_b32 s{S_T1}, {OOB}"), 4, 's')
            put(max(t + 1, opt['wbat']), wb_, 16, 's', vm=True)
        if L == 0:
            firstuse = {}
            for n, (tt, rho, p) in enumerate(order): firstuse.setdefault(rho*7 + tau[p], G2 + 2*n)
            t = O('wd_at', 70)
            if opt.get('wdt', 0):
                assert WDC and opt.get('wcr', 0)
                ta = O('wdt_at', 40); tsp = O('wdt_sp', 4)
                assert ta + tsp < t - 2
                pre = [f"s_lshr_b32 s26, s{S_C}, 3", "s_lshl_b32 s26, s26, 1", f"s_add_u32 s26, s26, s{S_TH}", "s_mul_i32 s26, s26, 14336", f"s_add_u32 s26, s26, s{S_WDB}",
                       "v_lshlrev_b32 v240, 7, v8", "v_min_u32 v241, 47, v8", "v_lshlrev_b32 v241, 7, v241", "v_add_u32 v241, 8192, v241"]
                for i_, ln in enumerate(pre): at(ta - 12 + i_, T_(ln), 4, 's' if ln.startswith('s_') else 'v')
                for i_ in range(2):
                    tt_ = ta + i_*tsp
                    while tt_ in vslots: tt_ += 1
                    vslots.add(tt_)
                    at(tt_, lambda i_=i_: E.vm(f"buffer_load_dword v{240+i_}, v{240+i_}, {WSRD}, s26 offen", 'wdt'), 4, 'm')
                    assert tt_ < t - 1
            rest_ops = BK['b'].ops; BK['b'].ops = []
            kcur = None
            for (c_, vm_, f_) in rest_ops:
                info = getattr(f_, 'info', None)
                assert info is not None and info[0] == 'wd', 'only Wd loads may be left for G1'
                if not vm_:
                    at(t - 1, f_, 0, 's')
                else:
                    while t in vslots: t += 1
                    assert t < firstuse[info[1]] - 8, ('Wd deadline', info, t)
                    at(t, f_, 0, 'm'); t += O('wd_sp', 2)
            if opt.get('verbose'): print('last Wd load at', t)
        RB = RING
        def red_write_ops(tt):
            ops = []
            for m in (1, 3, 2):
                pd, g = m & 1, m >> 1
                src = acc2[tt][pd] + 8*g
                for hlf in range(2):
                    ops.append(lambda m=m, src=src, hlf=hlf: E.ds(f"ds_write_b128 v{VRW[m-1]}, v[{src+4*hlf}:{src+4*hlf+3}] offset:{1024*hlf}", f'rw{L}{tt}'))
            return ops
        def red_read_ops(tt):
            ops = []
            for m in range(3):
                for hlf in range(2):
                    ops.append(lambda m=m, hlf=hlf: E.ds(f"ds_read_b128 v[{RB+8*m+4*hlf}:{RB+8*m+4*hlf+3}], v{VRR} offset:{2048*m+1024*hlf}", f'rr{L}{tt}'))
            return ops
        def out_store(tt, src):
            if L == 0:
                sadd(S_T0, S_XML, WS_XN + tt*32768)
                E.vm(f"buffer_store_dwordx4 v[{src}:{src+3}], v{VL16}, {WSRD}, s{S_T0} offen", f'x2{tt}')
            else:
                sadd(S_T0, 30, tt*32768)
                E.vm(f"buffer_store_dwordx4 v[{src}:{src+3}], v28, s[{S_OUT}:{S_OUT+3}], s{S_T0} offen" + (FL('o', L) or FL(f'ot{tt}', '')), f'o2{tt}')
        if L == 1:
            def out_setup():
                return [T_(x) for x in f"""v_and_b32 v28, 31, v0
                v_lshlrev_b32 v28, 10, v28
                v_bfe_u32 v29, v0, 5, 1
                v_lshl_add_u32 v28, v29, 4, v28
                s_lshl_b32 s30, s{S_C}, 17
                s_lshl_b32 s25, s{S_TH}, 16
                s_add_u32 s30, s30, s25
                s_and_b32 s25, s{S_W}, 1
                s_lshl_b32 s25, s25, 1
                s_lshr_b32 s26, s{S_W}, 1
                s_add_u32 s25, s25, s26
                s_lshl_b32 s26, s{S_J}, 2
                s_add_u32 s25, s25, s26
                s_lshl_b32 s25, s25, 5
                s_add_u32 s30, s30, s25""".split('\n')]
            t = 72
            for f in out_setup(): t = put(t, f, k='v', chain=True)
        XU = RB + 24
        if not NOXM:
            t = put(G2 + (26 if not XML else O('xmw', 40)), lambda: E.wait_vm(f'xm{L}'), k='s')
            for e in range(4):
                t = put(t, T_(f"v_lshlrev_b32 v{XU+2*e}, 16, v{XM1+e}"))
                t = put(t, T_(f"v_and_b32 v{XU+1+2*e}, s{S_HI}, v{XM1+e}"))
        m0_last = G2 + 2*last0 + 1
        t = m0_last + 5
        for f in red_write_ops(0): t = put(t, f, 8, 'm')
        t = put(t + 1, lambda: (E.wait_ds(f'rw{L}0'), barrier()), 8, 's')
        t += 1
        for f in red_read_ops(0): t = put(t, f, 4, 'm')
        own = acc2[0][0]
        t = put(t + 3, lambda: E.wait_ds(f'rr{L}0'), k='s')
        tb = t
        for e in range(8): t = put(t, T_(f"v_add_f32 v{RB+e}, v{RB+e}, v{RB+8+e}"))
        for e in range(8): t = put(t, T_(f"v_add_f32 v{own+e}, v{own+e}, v{RB+16+e}"))
        for e in range(4 if not NOXM else 0):
            t = put(t, T_(f"v_lshlrev_b32 v{RB+8+2*e}, 16, v{XM0+e}"))
            t = put(t, T_(f"v_and_b32 v{RB+9+2*e}, s{S_HI}, v{XM0+e}"))
        for e in range(8): t = put(t, T_(f"v_add_f32 v{own+e}, v{own+e}, v{RB+e}"))
        for e in range(8): t = put(t, T_(f"v_fma_f32 v{own+e}, v{own+e}, s{S_LN2}, v{RB+8+e}" if not NOXM else f"v_mul_f32 v{own+e}, s{S_LN2}, v{own+e}"))
        for e in range(4): t = put(t, T_(f"v_cvt_pk_bf16_f32 v{RB+e}, v{own+2*e}, v{own+2*e+1}"))
        t = put(t + 1, lambda: out_store(0, RB), 8, 'm')
        if opt.get('verbose'): print('tt0 reduction done at', t)
        put(tb + 1, barrier, k='s')
        E.wait_vm(f'x{L}_0')
        stamp(f'L{L}g1')
        for i in range(LA): rd(i)
        def emit_fill(i, mid=None):
            fm, fs, fv = F.pop(i, ([], [], []))
            if mid: mid()
            for f in fm + fs + fv: f()
        for i in range(224):
            _, p, k = seq[i]
            stamp(f'L{L}s{i}')
            if p < 3 and (i % 3) == 0 and k > 0: E.wait_vm(f'x{L}_{k}')
            if i % 2 == 0: E.wait_ds(f'a{L}_{i+1}')
            r = RING + 4*(i % 8)
            c = ACC[accp[p]]
            E(f"v_mfma_f32_32x32x16_bf16 v[{c}:{c+15}], {vr(r, 4)}, v[{XR+4*k}:{XR+4*k+3}], {'0' if k == 0 else f'v[{c}:{c+15}]'}")
            emit_fill(i, (lambda: rd(i + LA)) if i + LA < 224 else None)
        seen_kp = set()
        for n in range(56):
            tt, rho, p = order[n]
            kp = rho*7 + tau[p]
            firstb = not any(o[0] == tt for o in order[:n])
            for ii, pd in enumerate((1, 0) if n in (last0, 55) else (0, 1)):
                i = G2 + 2*n + ii
                stamp(f'L{L}s{i}')
                if ii == 0:
                    E.wait_vm(f'h{L}_{n}')
                    if L == 0 and kp not in seen_kp and not opt.get('nowd', 0) and kp not in wd_kseq(0)[:4*WDD_M]: E.wait_vm(f'wd{kp}'); seen_kp.add(kp)
                c = acc2[tt][pd]
                E(f"v_mfma_f32_32x32x16_bf16 v[{c}:{c+15}], {ar(A_WD + 8*kp + 4*pd, 4)}, {hreg(n)}, {'0' if firstb else f'v[{c}:{c+15}]'}")
                emit_fill(i)
        stamp(f'L{L}g2end')
        for i in sorted(F.keys()):
            assert i > lastslot, i
            emit_fill(i)
        for f in red_write_ops(1): f()
        E.wait_ds(f'rw{L}1'); E("s_barrier")
        for f in red_read_ops(1): f()
        own = acc2[1][0]
        E.wait_ds(f'rr{L}1')
        for e in range(0, 8, 2): E(f"v_pk_add_f32 v[{RB+e}:{RB+e+1}], v[{RB+e}:{RB+e+1}], v[{RB+8+e}:{RB+9+e}]")
        for e in range(0, 8, 2): E(f"v_pk_add_f32 v[{own+e}:{own+e+1}], v[{own+e}:{own+e+1}], v[{RB+16+e}:{RB+17+e}]")
        for e in range(0, 8, 2): E(f"v_pk_add_f32 v[{own+e}:{own+e+1}], v[{own+e}:{own+e+1}], v[{RB+e}:{RB+e+1}]")
        for e in range(0, 8, 2):
            if NOXM: E(f"v_pk_mul_f32 v[{own+e}:{own+e+1}], v[{own+e}:{own+e+1}], s[{S_LN2}:{S_LN2+1}]")
            else: E(f"v_pk_fma_f32 v[{own+e}:{own+e+1}], v[{own+e}:{own+e+1}], s[{S_LN2}:{S_LN2+1}], v[{XU+e}:{XU+e+1}]")
        for e in range(4): E(f"v_cvt_pk_bf16_f32 v{RB+e}, v{own+2*e}, v{own+2*e+1}")
        out_store(1, RB)
        stamp(f'L{L}st')
        if L == 0 and not (opt.get('x2m', 0) and not MODE['slow']):
            publish(S_FX2S, 0, 'x21')
            stamp('x2pub')

    def marker_check(regs_, reload_, tagname):
        ls = E.label('L_mks'); lb = E.label('L_mkb')
        t = 31
        r = list(regs_)
        E(f"v_max3_u32 v{t}, v{r[0]}, v{r[1]}, v{r[min(2, len(r) - 1)]}"); k = 3
        while k + 1 < len(r): E(f"v_max3_u32 v{t}, v{t}, v{r[k]}, v{r[k+1]}"); k += 2
        if k < len(r): E(f"v_max_u32 v{t}, v{t}, v{r[k]}")
        E(f"v_cmp_eq_u32 vcc, -1, v{t}\ns_cbranch_vccnz {ls}\n{lb}:")
        ll = E.label('L_mkl')
        txt = f"{ls}:\ns_mov_b32 s{S_T3}, 0\n{ll}:\n"
        for i, x in enumerate(r):
            l2 = E.label('L_mkn')
            txt += f"""v_cmp_eq_u32 vcc, -1, v{x}
            s_cbranch_vccz {l2}
            {reload_(i)}
            {l2}:
            """
        txt += f"s_add_u32 s{S_T3}, s{S_T3}, 1\ns_waitcnt vmcnt(0)\n"
        if stamps and opt.get('cnt'): txt += f"s_add_u32 s{S_EXP}, s{S_EXP}, {16 if tagname == 'y' else 256}\n"
        txt += f"v_max3_u32 v{t}, v{r[0]}, v{r[1]}, v{r[min(2, len(r) - 1)]}\n"; k = 3
        while k + 1 < len(r): txt += f"v_max3_u32 v{t}, v{t}, v{r[k]}, v{r[k+1]}\n"; k += 2
        if k < len(r): txt += f"v_max_u32 v{t}, v{t}, v{r[k]}\n"
        txt += f"""v_cmp_eq_u32 vcc, -1, v{t}
        s_cmp_gt_u32 s{S_T3}, 0x2000
        s_cbranch_vccz {lb}
        s_cbranch_scc0 {ll}
        s_branch {lb}
        """
        E.out_of_line(txt)

    def q16_poll(fl, tag):
        E(f"s_mov_b32 s25, {fl}")
        E.vm(f"buffer_load_dword v{VPOLL}, v30, {WSRD}, s25 offen sc1", tag)
    def q16_check(fl, tag):
        ls = E.label('L_qs'); lb = E.label('L_qb'); ll = E.label('L_ql')
        E.wait_vm(tag)
        E(f"v_cmp_ne_u32 vcc, s{S_N}, v{VPOLL}\ns_cbranch_vccnz {ls}\n{lb}:")
        E.out_of_line(f"""
        {ls}:
        s_mov_b32 s{S_T3}, 0
        s_mov_b32 s25, {fl}
        {ll}:
        buffer_load_dword v{VPOLL}, v30, {WSRD}, s25 offen sc1
        s_add_u32 s{S_T3}, s{S_T3}, 1
        {f's_add_u32 s{S_EXP}, s{S_EXP}, {1 << 18}' if stamps and opt.get('cnt') else ''}
        s_waitcnt vmcnt(0)
        v_cmp_ne_u32 vcc, s{S_N}, v{VPOLL}
        s_nop 4
        s_cbranch_vccz {lb}
        s_cmp_lt_u32 s{S_T3}, 0x2000
        s_cbranch_scc1 {ll}
        s_branch {lb}""")
        stamp(tag)
    SBR = 160
    def s1b_poll():
        E(f"v_lshlrev_b32 v30, 7, v8\nv_add_u32 v30, {FL_S1B}, v30")
        E.vm(f"buffer_load_dwordx4 v[{SBR}:{SBR+3}], v30, {WSRD}, 0 offen sc1", 's1bp')
    def s1b_check():
        all_flags_check(SBR, 30, S_N, 's1bp')
        stamp('s1b')
    PREPE = opt.get('prepe', 0)
    def prep_part(rawwait=None):
        PB = 64
        for i in range(4): E(f"v_mov_b32 v{108+i}, -1")
        def trd(n):
            if SPLIT and n >= 7:
                E(f"ds_read_b64_tr_b16 {ar(4*(n-7), 2)}, v{VTR} offset:{1024*n}")
                E(f"ds_read_b64_tr_b16 {ar(4*(n-7)+2, 2)}, v{VTR} offset:{1024*n + 512}")
                return
            E(f"ds_read_b64_tr_b16 v[{PB+4*n}:{PB+4*n+1}], v{VTR} offset:{1024*n}")
            E(f"ds_read_b64_tr_b16 v[{PB+4*n+2}:{PB+4*n+3}], v{VTR} offset:{1024*n + 512}")
        def pst(n):
            if n < 7:
                if n: E(f"s_add_u32 s{S_W1DST}, s{S_W1DST}, 131072")
                E(f"buffer_store_dwordx4 v[{PB+4*n}:{PB+4*n+3}], v{W1D}, {WSRD}, s{S_W1DST} offen sc1")
            else:
                if n > 7: E(f"s_add_u32 s{S_WDDST}, s{S_WDDST}, 229376")
                E(f"buffer_store_dwordx4 v[{PB+4*n}:{PB+4*n+3}], v{WDD}, {WSRD}, s{S_WDDST} offen sc1")
        stamp_dup('xiss')
        if HLATE:
            E(f"""
            s_and_b32 s25, s{S_W}, 1
            s_add_u32 s24, s{S_CB}, s25
            s_lshl_b32 s24, s24, 12
            s_mul_i32 s25, s25, {HC_CH}
            """)
            h_dma(HLATE, 24, 25)
        if rawwait is not None: E(f"s_waitcnt vmcnt({rawwait + 4*len(HLATE)})")
        for n in range(4): trd(n)
        for n in range(11):
            if n + 4 < 11: trd(n + 4)
            if SPLIT and n >= 7: continue
            E(f"s_waitcnt lgkmcnt({2*min(4, 10 - n)})")
            if n >= 7 and opt.get('xnowd'): E(f"buffer_store_dword v{PB}, v{VT0}, {WSRD}, 0 offen offset:64")
            else: pst(n)
        for i in range(4 if not YSPL else 0):
            if i: E(f"s_add_u32 s{S_YP}, s{S_YP}, 262144")
            if opt.get('xnoym'): E(f"buffer_store_dword v{PB}, v{VT0}, {WSRD}, 0 offen offset:64")
            else: E(f"buffer_store_dwordx4 v[108:111], v{VYP}, {WSRD}, s{S_YP} offen sc1")
    def conv():
        lx = E.label('L_xp'); lbx = E.label('L_bx')
        if WDD_M: E("s_load_dwordx2 s[76:77], s[0:1], 72")
        E(f"ds_write_b16 v61, v{HEAD}")
        E(f"s_cmp_ge_u32 s{S_W}, 2\ns_cbranch_scc1 {lx}")
        XG = 64
        def xload(i): return f"buffer_load_dwordx4 v[{XG+4*i}:{XG+4*i+3}], v{VL16}, {WSRD}, s{S_XL + (i >> 2)} offen" + (f" offset:{1024*(i & 3)}" if i & 3 else "") + " sc1"
        NX = 4 if P1 else 8
        for i in range(NX): E(xload(i))
        stamp('xiss')
        ACCc = 192
        for i in range(32): E(f"v_mov_b32 v{ACCc+i}, 0")
        E("s_waitcnt vmcnt(0)")
        marker_check([XG + 4*i for i in range(NX)], xload, 'x')
        stamp('xok')
        if P1:
            for i in range(4): E(f"ds_write_b128 v{VXW}, v[{XG+4*i}:{XG+4*i+3}] offset:{i*1024}")
            for i in range(4):
                if i < 3: E(f"v_mov_b32_dpp v{96+i}, v{XG+4*(i+1)} wave_rol:1 row_mask:0xf bank_mask:0xf")
                else: E(f"v_mov_b32 v{96+i}, 0")
            for i in range(4):
                for d in range(3): E(f"v_alignbit_b32 v{XG+16+4*i+d}, v{XG+4*i+d+1}, v{XG+4*i+d}, 16")
            for i in range(4): E(f"v_mov_b32_dpp v{96+i}, v{XG+4*i} wave_shl:1 row_mask:0xf bank_mask:0xf")
            for i in range(4):
                E(f"v_alignbit_b32 v{XG+16+4*i+3}, v{96+i}, v{XG+4*i+3}, 16")
            for i in range(4): E(f"ds_write_b128 v{VXW}, v[{XG+16+4*i}:{XG+16+4*i+3}] offset:{XR_P + i*1024}")
        else:
            for i in range(8): E(f"ds_write_b128 v{VXW}, v[{XG+4*i}:{XG+4*i+3}] offset:{(i >> 2)*XR_P + (i & 3)*1024}")
        E(f"s_branch {lbx}\n{lx}:")
        if not PREPE: prep_part()
        else: stamp_dup('xiss')
        stamp_dup('xok')
        for i in range(32): E(f"v_mov_b32 v{ACCc+i}, 0")
        if HLATE: E(f"s_waitcnt vmcnt({NPS})")
        S1PRE = opt.get('s1pre', 0)
        if S1PRE:
            assert YSPL
            E(f"s_waitcnt vmcnt(0)\nbuffer_store_dword v{VONE}, v{VS1F}, {WSRD}, s{S_S1F} offen sc1")
        E(f"{lbx}:")
        E("s_waitcnt lgkmcnt(0)")
        E.vmq = []; E.dsq = []
        if WDD_M: E(srd_fix(76, 1835008))
        E("s_barrier")
        stamp('bx')
        def AF(st, g): return 64 + 32*st + 4*g
        def BF(st, u): return 128 + 32*st + 4*u
        def rdA(st, g, rho): return f"ds_read_b128 v[{AF(st,g)}:{AF(st,g)+3}], v{VA_} offset:{512*g + 64*rho}"
        def rdB(st, u, rho): return f"ds_read_b128 v[{BF(st,u)}:{BF(st,u)+3}], v{VB_} offset:{512*(7-u) + 64*rho}"
        pairs = [(t, g) for t in range(8) for g in range(t+1)]
        order = []
        for t in range(8): order.append(('B', t)); order.append(('A', t))
        def mf(st, t, g):
            return f"v_mfma_f32_16x16x32_bf16 v[{ACCc+4*t}:{ACCc+4*t+3}], v[{AF(st,g)}:{AF(st,g)+3}], v[{BF(st,t-g)}:{BF(st,t-g)+3}], v[{ACCc+4*t}:{ACCc+4*t+3}]"
        S1AT = opt.get('s1at', 24); S1POLL = opt.get('s1poll', 96); S1CHK = opt.get('s1chk', 118)
        acts = {}
        def act(i, f): acts.setdefault(i, []).append(f)
        def s1publish():
            if SPLIT: E(f"s_waitcnt vmcnt({len(E.vmq)})")
            else: E("s_waitcnt vmcnt(0)"); E.vmq = []
            E.vm(f"buffer_store_dword v{VONE}, v{VS1F}, {WSRD}, s{S_S1F} offen sc1", 's1st')
        def s1poll():
            E.vm(f"buffer_load_dwordx4 v[24:27], v{VS1P}, {WSRD}, 0 offen sc1", 's1')
            if YSPL and S1BP == 2: s1b_poll()
        def s1check(bar=True):
            all_flags_check(24, VS1P, S_N, 's1')
            if YSPL and S1BP == 2: s1b_check()
            if bar: E("s_barrier")
            stamp('s1')
        def qload():
            E.vm(f"buffer_load_dwordx4 {ar(A_Q, 4)}, v9, s[{S_Q}:{S_Q+3}], s{S_QO} offen" + NT('q'), 'q')
            E.vm(f"buffer_load_dwordx4 {ar(A_Q+4, 4)}, v9, s[{S_Q}:{S_Q+3}], s{S_QO} offen offset:128" + NT('q'), 'q')
        if not S1PRE: act(S1AT, s1publish)
        act(opt.get('qat', 40), qload)
        if SPLIT:
            m0 = opt.get('ymat', 72); sp = opt.get('ymsp', 2)
            if YSPL:
                act(m0 - 1, lambda: E("\n".join(f"v_mov_b32 v{24+i}, -1" for i in range(4)) + "\ns_add_u32 s24, s58, 262144"))
                act(m0, lambda: E.vm(f"buffer_store_dwordx4 v[24:27], v{VYS}, {WSRD}, s58 offen sc1", 'ym'))
                act(m0 + sp, lambda: E.vm(f"buffer_store_dwordx4 v[24:27], v{VYS}, {WSRD}, s24 offen sc1", 'ym'))
            w0 = opt.get('wdpat', m0 + 2*sp)
            for n in range(4):
                act(w0 + n*sp, lambda n=n: (E(f"s_add_u32 s{S_WDDST}, s{S_WDDST}, 229376") if n else None, E.vm(f"buffer_store_dwordx4 {ar(4*n, 4)}, v{WDD}, {WSRD}, s{S_WDDST} offen sc1", 'wds' if WDC else 'ym')))
        if WDD_M:
            assert SPLIT
            r0 = opt.get('wdrat', 16); rsp = opt.get('wdrsp', 2)
            for b in range(8*WDD_M):
                kp = wd_kseq(0)[b >> 1]
                act(r0 + b*rsp, lambda b=b, kp=kp: (E(f"s_add_u32 m0, s{S_W1K}, {(4 - (b >> 3))*SLOT + (b & 7)*1024}\ns_add_u32 s26, s74, {kp*16384 + (b & 1)*8192}"),
                                                    E.vm(f"buffer_load_dwordx4 v{VDR}, s[76:79], s26 offen lds", 'wraw')))
        def htouch():
            m = opt['ht']
            E(f"v_lshrrev_b32 v246, 3, v8\nv_lshlrev_b32 v246, 12, v246\nv_and_b32 v247, {m}, v8\nv_lshl_add_u32 v246, v247, 7, v246")
            E(f"s_add_u32 s24, s{S_HST}, {WS_H}")
            E(f"s_mov_b32 exec_hi, 0x00ffffff")
            E.vm(f"buffer_load_dword v247, v246, {WSRD}, s24 offen", 'ht')
            E(f"s_mov_b64 exec, -1")
        if 'ht' in opt: act(opt.get('htat', 20), htouch)
        POST = S1CHK >= 1000
        if S1POLL < 1000: act(S1POLL, s1poll)
        B = BK['b'] = make_bulk()
        if not POST:
            act(S1CHK, s1check)
            nm = opt.get('bk_m', 5)
            for k in range(nm): act(S1CHK + 2 + k*opt.get('bk_msp', 4), lambda: B.emit(1))
            assert S1CHK + 2 + nm*opt.get('bk_msp', 4) <= 148
        def do(i):
            for f in acts.pop(i, []): f()
        for rho in range(4):
            st = rho & 1
            nxt = []
            if rho < 3: nxt = [(rdB(st^1, x, rho+1) if k == 'B' else rdA(st^1, x, rho+1)) for (k, x) in order]
            if rho == 0:
                reads = [(rdB(0, x, 0) if k == 'B' else rdA(0, x, 0)) for (k, x) in order]
                for r_ in reads[:14]: E(r_)
                issued = 14; done = 0
                allq = reads + nxt
                for idx, (t, g) in enumerate(pairs):
                    if g == 0:
                        E(f"s_waitcnt lgkmcnt({issued - 2*(t+1)})"); done = 2*(t+1)
                    E(mf(0, t, g))
                    do(idx)
                    if t == 7 and g == 4:
                        done += 6
                        E(f"s_waitcnt lgkmcnt({issued - done})")
                    if issued < len(allq) and issued - done < 14:
                        E(allq[issued]); issued += 1
                assert issued == len(allq)
            else:
                E("s_waitcnt lgkmcnt(0)")
                k = 0
                for idx, (t, g) in enumerate(pairs):
                    E(mf(st, t, g))
                    do(36*rho + idx)
                    if nxt and idx % 2 == 0 and k < 16:
                        E(nxt[k]); k += 1
            if rho < 3: stamp(f'rho{rho+1}')
        for i in sorted(acts): do(i)
        stamp('mfend')
        if opt.get('rot', 0):
            E(f"s_lshr_b32 s25, s{S_C}, 3\ns_lshl_b32 s25, s25, 1\ns_add_u32 s25, s25, s{S_TH}")
            for r_ in range(4):
                E(f"""s_add_u32 s24, s25, {r_}
                s_and_b32 s24, s24, 3
                s_mul_i32 s24, s24, {7*2048}
                s_add_u32 s{S_WDR + r_}, s{S_WDB}, s24""")
        def s1b_publish(fl, tag):
            E(f"s_add_u32 s24, s86, {fl}")
            E.vm(f"buffer_store_dword v{VONE}, v{VT0}, {WSRD}, s24 offen sc1", tag)
        if YSPL and PUBB == 1: E.wait_vm('ym')
        E("s_barrier")
        if YSPL and PUBB == 1: s1b_publish(FL_S1B, 's1b')
        E(f"""
        v_add_u32 v20, s{S_W1K}, v{VL16}
        s_lshl_b32 s24, s{S_W}, 11
        v_add_u32 v21, s24, v{VL16}
        s_nop 4
        """)
        for t in range(8): E.ds(f"ds_write_b128 v20, v[{ACCc+4*t}:{ACCc+4*t+3}] offset:{1024*t}", 'rdw')
        E.wait_ds('rdw')
        if YSPL and PUBB == 0: E.wait_vm('ym')
        if WDC: E.wait_vm('wds')
        if S1CHK == 1002: s1check(bar=False)
        E("s_barrier")
        if YSPL and PUBB == 0: s1b_publish(FL_S1B, 's1b')
        if WDC: s1b_publish(FL_S1C, 's1c')
        stamp('red2')
        if S1POLL == 1000: s1poll()
        if not POST or S1CHK == 1002: B.emit(opt.get('bk_red', 0))
        for tau in range(2):
            for src in range(4):
                E.ds(f"ds_read_b128 v[{64+32*tau+4*src}:{67+32*tau+4*src}], v21 offset:{8192*src + 1024*tau}", f'rdr{tau}')
            for ch in range(2):
                E.ds(f"ds_read_b128 v[{128+8*tau+4*ch}:{131+8*tau+4*ch}], v{VKVW} offset:{ch*XR_CH + 512*(1-tau)}", f'rdr{tau}')
        for tau in range(2):
            E.wait_ds(f'rdr{tau}')
            base = 64 + 32*tau
            for ch in range(2):
                kvr = 128 + 8*tau + 4*ch
                for r in range(4): E(f"v_add_f32 v{base+8*ch+r}, v{base+8*ch+r}, v{base+8*ch+r+4}")
                for d in range(4): E(f"v_lshlrev_b32 v{kvr+d}, 16, v{kvr+d}")
                for r in range(4): E(f"v_fmac_f32 v{base+8*ch+r}, s{60+ch}, v{kvr+3-r}")
            for r in range(4): E(f"v_cvt_pk_bf16_f32 v{148+r}, v{base+r}, v{base+8+r}")
            o = 152 + 4*tau
            E(f"""
            v_mov_b32 v{o}, v150
            v_mov_b32 v{o+1}, v148
            v_mov_b32 v{o+2}, v151
            v_mov_b32 v{o+3}, v149
            v_mov_b32_dpp v{o}, v148 row_ror:8 row_mask:0xf bank_mask:0x3
            v_mov_b32_dpp v{o+1}, v150 row_ror:8 row_mask:0xf bank_mask:0xc
            v_mov_b32_dpp v{o+2}, v149 row_ror:8 row_mask:0xf bank_mask:0x3
            v_mov_b32_dpp v{o+3}, v151 row_ror:8 row_mask:0xf bank_mask:0xc
            """)
            if tau == 1: E(f"s_add_u32 s58, s58, 262144")
            E.vm(f"buffer_store_dwordx4 v[{o}:{o+3}], v{VYS}, {WSRD}, s58 offen " + opt.get('flyst', 'sc1').replace('+', ' '), 'yst')
        stamp('yst')
        if opt.get('xyack'): E.wait_vm('yst'); stamp('yack')
        if S1POLL == 1001: s1poll()
        if POST and S1CHK != 1002: s1check()

    def wdd_read(mi):
        E.wait_vm('wraw')
        for kpi in range(4):
            kp = wd_kseq(0)[4*mi + kpi]
            for pd in range(2):
                for h in range(2):
                    E.ds(f"ds_read_b64_tr_b16 {ar(A_WD + 8*kp + 4*pd + 2*h, 2)}, v{VDT+pd} offset:{kpi*2048 + 512*h}", f'wdd{mi}')
        if mi + 1 < WDD_M: E(f"v_subrev_u32 v{VDT}, {SLOT}, v{VDT}\nv_subrev_u32 v{VDT+1}, {SLOT}, v{VDT+1}")
    def rest():
        conv()
        B = BK['b']
        if WDD_M:
            assert WDD_M <= 2 or opt.get('bk_red', 0) == 0
            for mi in range(WDD_M): wdd_read(mi)
            E.wait_ds(f'wdd{WDD_M - 1}')
        def yload(i):
            c2, k = i >> 2, i & 3
            return f"buffer_load_dword v{Y+i}, v10, {WSRD}, s{59 if c2 == 0 else 24} offen" + (f" offset:{YK*k}" if k else "") + " sc1"
        E(f"s_add_u32 s24, s59, {YC2}")
        if opt.get('xw1t'):
            B.emit(4); E("s_waitcnt vmcnt(10)"); stamp('w4')
            B.emit(4); E("s_waitcnt vmcnt(10)"); stamp('w8'); E("s_waitcnt vmcnt(8)"); stamp('wy')
            B.emit(4); E("s_waitcnt vmcnt(8)"); stamp('w12')
            B.emit(4); E("s_waitcnt vmcnt(8)"); stamp('w16'); E("s_waitcnt vmcnt(4)"); stamp('w20'); E("s_waitcnt vmcnt(0)"); stamp('w24')
        if YSPL and S1BP == 0: s1b_poll()
        B.emit(opt.get('bk_a', 0))
        stamp('bka')
        if YSPL and S1BP == 1: s1b_poll()
        Q16 = S1BP == 3 or opt.get('wcr', 0)
        if Q16: E(f"v_lshrrev_b32 v30, 2, v8\nv_lshlrev_b32 v30, 7, v30\nv_and_b32 v31, 3, v8\nv_lshl_add_u32 v30, v31, 2, v30\ns_lshl_b32 s25, s{S_W}, 11\nv_add_u32 v30, s25, v30")
        if YSPL and S1BP == 3: q16_poll(FL_S1B, 's1b')
        if YSPL and S1BP != 2:
            B.emit(opt.get('bk_b', 0))
            stamp('bkb')
            if S1BP != 3: s1b_check()
        def yissue():
            if opt.get('xnoy'): E(f"v_mov_b32 v10, 0")
            for i in range(8): E.vm(yload(i) if opt.get('ysc', 1) else yload(i).replace(' sc1', ''), 'y')
            stamp('yiss')
            if WDC and opt.get('wcr', 0): q16_poll(FL_S1C, 's1c')
            B.emit(opt.get('bk_y', 0))
            stamp('bky')
        if S1BP != 3:
            yissue()
            assert 'w1_3' not in E.seen, 'slot 0 is still in use'
        for i in range(8): E(f"v_accvgpr_read_b32 v{X+i}, a{A_Q+i}")
        if S1BP == 3:
            assert 'w1_3' not in E.seen, 'slot 0 is still in use'
            R_pre(0, pre=lambda: q16_check(FL_S1B, 's1b'), between=yissue)
        else: R_pre(0)
        stamp('qst')
        B.emit(opt.get('bk_q', 0))
        E.wait_vm('y')
        marker_check([Y + i for i in range(8)], yload, 'y')
        stamp('yok')
        B.emit(opt.get('bk_r0', 16))
        for i in range(8): E(f"v_accvgpr_write_b32 a{A_Y+i}, v{Y+i}")
        def w1left():
            n = 0; k = 0
            for o in B.ops:
                if o[1]:
                    k += 1
                    if getattr(o[2], 'info', None) is None: n = k
            return n
        R_post(0, early=lambda: B.emit(max(opt.get('bk_r1', 0), w1left())), late=None, pre=(lambda: q16_check(FL_S1C, 's1c')) if WDC and opt.get('wcr', 0) else None)
        assert all(('w1_%d' % p) in E.seen for p in range(4)) and not any(getattr(o[2], 'info', None) is None for o in B.ops), 'W1 tiles 0..3 must be under way before the XN stores'
        B.emit(opt.get('bk_xn', 0))
        Rpub(0)
        layer(0)
        X2M = opt.get('x2m', 0) and not MODE['slow']
        def x2load(i): return f"buffer_load_dwordx4 v[{X+4*i}:{X+4*i+3}], v{VR}, {WSRD}, s{S_T0+i} offen" + LSC
        if X2M:
            sadd(S_T0, S_R, WS_XN); sadd(S_T1, S_R, WS_XN + 4096)
            for i in range(2): E.vm(x2load(i), 'x2l')
        else: poll_issue(VP8, S_FX2L, 0, 'px2')
        if P1:
            unpack(T, 20, 8)
            E(f"""s_lshr_b32 s24, s{S_C}, 3
            s_mul_i32 s24, s24, {7*131072}
            s_and_b32 s25, s{S_C}, 7
            s_lshl_b32 s25, s25, 17
            s_sub_u32 s24, s24, s25
            s_add_u32 s{S_XMD}, s24, {WS_Y}""")
        if not X2M: poll_check(VP8, S_FX2L, 0, 'px2')
        for r_, c_ in ((S_FXNS, 16*256), (S_FXNL, 16*256), (S_FHS, 16*1024), (S_FHL, 16*1024)): E(f"s_add_u32 s{r_}, s{r_}, {c_}")
        if not X2M:
            stamp('x2ok')
            sadd(S_T0, S_R, WS_XN); sadd(S_T1, S_R, WS_XN + 4096)
            for i in range(2): E.vm(x2load(i), 'x2l')
        for i in range(8): E(f"v_accvgpr_read_b32 v{Y+i}, a{A_Y+i}")
        if opt.get('ropt', 0): unpack(YF, Y, 8)
        E.wait_vm('x2l')
        if X2M:
            marker_check([X, X + 4], x2load, 'x2')
            stamp('x2ok')
        else: stamp_dup('x2d')
        R_pre(1)
        R_post(1)
        Rpub(1)
        layer(1)
        E.wait_vm_all()

    def s0cmp(val): return "\n".join([f"v_xor_b32 v{S0R+i}, s{val}, v{S0R+i}" for i in range(4)] +
                                     [f"v_or3_b32 v{S0R}, v{S0R}, v{S0R+1}, v{S0R+2}", f"v_or_b32 v{S0R}, v{S0R}, v{S0R+3}"])
    if PREPE:
        assert RAWPOS >= 1 and E.vm_after('s0') == NKV
        E(f"s_cmp_lt_u32 s{S_W}, 2\ns_cbranch_scc1 L_pe0")
        prep_part(rawwait=1 + NKV)
        E(f"s_waitcnt vmcnt({NKV + 4*len(HLATE) + NPS})\ns_branch L_pe1\nL_pe0:")
        if S0SC:
            E(f"""s_and_b32 s24, s{S_XCC}, 7
            s_mul_i32 s25, s24, s24
            s_lshl_b32 s25, s25, 16
            s_lshl_b32 s24, s24, 6
            s_add_u32 s24, s24, s25
            s_add_u32 s24, s24, 1
            s_lshl_b32 s24, s24, 5
            s_waitcnt lgkmcnt(0)
            s_cmp_eq_u32 s29, s24
            {'' if force_slow else 's_cbranch_scc1 L_s0b'}
            buffer_load_dwordx4 v[{S0R}:{S0R+3}], v30, {WSRD}, 0 offen sc1
            {f's_add_u32 s{S_EXP}, s{S_EXP}, {1 << 24}' if stamps and opt.get('cnt') else ''}
            s_waitcnt vmcnt(0)
            L_pe1:""")
        elif opt.get('xnos0'): E("s_branch L_s0b\nL_pe1:")
        else: E(f"s_waitcnt vmcnt({NKV})\nL_pe1:")
        E.vmq = []
    else: E.wait_vm('s0')
    E(s0cmp(S_XCC))
    E(f"v_cmp_ne_u32 vcc, 0, v{S0R}")
    E("s_branch L_s0s" if force_slow else "s_cbranch_vccnz L_s0s")
    E("L_s0b:")
    E.out_of_line(f"""
    L_s0s:
    s_mov_b32 s{S_T3}, 0
    L_s0l:
    v_cmp_lt_u32 vcc, 7, v{S0R}
    s_cmp_gt_u32 s{S_T3}, 0x2000
    s_cbranch_vccz L_slow
    s_cbranch_scc1 L_s0b
    buffer_load_dwordx4 v[{S0R}:{S0R+3}], v30, {WSRD}, 0 offen sc1
    s_add_u32 s{S_T3}, s{S_T3}, 1
    {f's_add_u32 s{S_EXP}, s{S_EXP}, {1 << 24}' if stamps and opt.get('cnt') else ''}
    s_waitcnt vmcnt(0)
    {s0cmp(S_XCC)}
    v_cmp_ne_u32 vcc, 0, v{S0R}
    {'s_branch L_s0l' if force_slow else 's_cbranch_vccnz L_s0l'}
    s_branch L_s0b""")
    stamp('s0')
    Efast = E
    Es = Emit(); Es.vmq = []; Es.dsq = list(E.dsq); Es.seen = set(E.seen); Es.nl = 100000
    E = Es; MODE['slow'] = True
    E(f"""
    L_slow:
    s_mov_b32 s{S_EXP}, 2
    s_waitcnt vmcnt(0)
    buffer_wbl2 sc1
    s_waitcnt vmcnt(0)
    s_barrier
    s_add_u32 s24, s86, {FL_S0B}
    buffer_store_dword v{VONE}, v{VT0}, {WSRD}, s24 offen sc1
    s_mov_b32 s25, {FL_S0B - FL_S0}
    s_mov_b32 s{S_T3}, 0
    L_s0bl:
    buffer_load_dwordx4 v[{S0R}:{S0R+3}], v30, {WSRD}, s25 offen sc1
    s_add_u32 s{S_T3}, s{S_T3}, 1
    s_waitcnt vmcnt(0)
    {s0cmp(S_N)}
    v_cmp_ne_u32 vcc, 0, v{S0R}
    s_cmp_gt_u32 s{S_T3}, 0x2000
    s_cbranch_scc1 L_s0bx
    s_cbranch_vccnz L_s0bl
    L_s0bx:
    buffer_inv sc1
    s_waitcnt vmcnt(0)
    """)
    rest()
    E("s_branch L_fin")
    E = Efast; MODE['slow'] = False
    rest()
    E("L_fin:")
    if stamps:
        stamp('end')
        n = len(names)
        E("s_memrealtime s[24:25]")
        E("s_waitcnt lgkmcnt(0)")
        for k in (n - 2, n - 1): E(f"v_writelane_b32 v{VSTAMP}, s{SP[k & 1]}, {k}")
        E(f"""
        v_writelane_b32 v{VSTAMP}, s100, 61
        v_writelane_b32 v{VSTAMP}, s24, 62
        v_writelane_b32 v{VSTAMP}, s{S_EXP}, 63
        s_lshl_b32 s25, s2, 10
        s_lshl_b32 s26, s{S_W}, 8
        s_add_u32 s25, s25, s26
        s_add_u32 s25, s25, {WS_STAMP}
        v_lshrrev_b32 v20, 2, v{VL16}
        buffer_store_dword v{VSTAMP}, v20, {WSRD}, s25 offen
        s_waitcnt vmcnt(0)
        """)
        assert n < 60
        print('k3 stamps:', ','.join(names))
        open('last_stamps.txt', 'w').write(','.join(names))
    E("L_end:")
    E("s_endpgm")
    main = hazard_pass(E.L[1:], verbose=opt.get('verbose', False))
    tail = list(E.tail) + ['L_codeend:'] + hazard_pass(Es.L) + list(Es.tail)
    txt = E.L[0] + '\n' + '\n'.join(('    ' + l if not l.endswith(':') else l) for l in main) + '\n'
    txt += '\n'.join(('    ' + l if not l.endswith(':') else l) for l in tail) + '\n'
    txt += "    s_endpgm\n"
    return txt + kd(name, 512, 102, accum=256)

if __name__ == '__main__':
    st = 'stamps' in sys.argv; slow = 'slow' in sys.argv
    opt = {'verbose': 'v' in sys.argv}
    for a in sys.argv[2:]:
        if '=' in a:
            k_, v_ = a.split('=')
            opt[k_] = v_.split(',') if k_ == 'st' else (v_ if k_.startswith('fl') else int(v_))
    kname = NAME + '_kernel'
    txt = KERNARG_COMMENT
    txt += f"; @launch grid=(256,1,1) block=(256,1,1) lds={K1_LDS}\n"
    txt += TARGET + gen(kname, stamps=st, force_slow=slow, opt=opt)
    txt += ".text\n.fill 64, 4, 0xbf800000\n"
    open(sys.argv[1], 'w').write(txt)
```

```python
import sys
sys.path.insert(0, 'gen')
from emit import *
from layout3 import *
from common import head, kd, TARGET, KERNARG_COMMENT, NAME

K1_LDS = 163840
SLOT = 32768
SCR = SLOT
STATS = SLOT + 24576
OOB = 0x80000000
VL16, VA1, VA2, VP8, VP16, VF0, VR = 1, 2, 3, 4, 5, 6, 7
VSTW, VSTR = 11, 12
VRW = [13, 14, 15]; VRR = 16
VPOLL, VONE, VSTAMP = 17, 18, 19
RING = 32
ACC = [64, 80, 96, 112]
XR = 128
A_WD = 0; A_Y = 224; A_T4 = 232
S_WS = 4; S_Q = 8; S_OUT = 12
S_W, S_ROLE, S_C, S_TH, S_J, S_EXP, S_XCC, S_W1K = 16, 17, 18, 19, 20, 21, 22, 23
S_R, S_XNL, S_HST, S_HLD, S_XML, S_W1, S_FXNS, S_FXNL, S_FHS, S_FHL, S_FX2S, S_FX2L = range(34, 46)
S_T0, S_T1, S_T2, S_T3, S_HI = 46, 47, 48, 49, 31
S_LN2 = 98
S_DA, S_XA = 50, 3
S_HA = [96, 97]; S_HS = [94, 95]
LA = 6
def vr(b, n=1): return f"v{b}" if n == 1 else f"v[{b}:{b+n-1}]"
def ar(b, n=1): return f"a{b}" if n == 1 else f"a[{b}:{b+n-1}]"

LAYERS = [
    dict(tau=[0, 1, 2, 3, 4, 5, 6], slot=[2, 3, 4, 0, 1, 2, 3]),
    dict(tau=[5, 6, 2, 3, 4, 0, 1], slot=[2, 3, 4, 0, 1, 2, 3]),
]
LOG2E = 0x3fb8aa3b; LN2 = 0x3f317218
A_H = 236

S_N = 51
VWD = 28
S_WDB = 30
S_WDR = 64
A_Q = 232
HC_J = 4160; HC_CH = 4*HC_J
XRB = 2*HC_CH
XR_P = 4640; XR_CH = 9472
TBS = 1056
KT = 2*SLOT; VT = KT + 9*TBS
PST = 3*SLOT
S_QO, S_PST = 87, 94
S_G, S_M, S_CB, S_CP, S_D, S_E = 88, 89, 84, 85, 62, 63
POISON = 0xffffffff


def gen(name, stamps=False, force_slow=False, opt=None):
    opt = opt or {}
    E = Emit()
    LSC = ' sc1' if opt.get('lsc', 1) else ''
    names = []
    DEF = ['start', 'join', 'b0', 'kvst', 's0', 'xiss', 'prep', 'xok', 'bx', 'rho1', 'rho2', 'rho3', 's1', 'mfend', 'red2', 'yst', 'qst', 'yok', 'R0st', 'R0pub', 'L0xnok', 'L0g1', 'L0s96', 'L0s224', 'L0g2end', 'L0st', 'x2ok', 'R1st', 'R1pub', 'L1xnok', 'L1g1', 'L1s96', 'L1s224', 'L1g2end', 'L1st', 'end']
    enabled = set(opt.get('st', DEF)) | {'start', 'end'}
    MODE = {'slow': False}
    SP = [90, 92]
    def stamp(nm):
        if stamps and nm in enabled and not MODE['slow']:
            n = len(names); names.append(nm)
            if n >= 2: E(f"v_writelane_b32 v{VSTAMP}, s{SP[n & 1]}, {n-2}")
            E(f"s_memtime s[{SP[n & 1]}:{SP[n & 1]+1}]")
    def stamp_dup(nm):
        if stamps and nm in names and not MODE['slow']:
            n = names.index(nm)
            if n >= 2: E(f"v_writelane_b32 v{VSTAMP}, s{SP[n & 1]}, {n-2}")
            E(f"s_memtime s[{SP[n & 1]}:{SP[n & 1]+1}]")
    WSRD = f"s[{S_WS}:{S_WS+3}]"
    def NT(k): return ' nt' if (opt.get('nt', 0) >> 'trhq'.index(k)) & 1 else ''
    def FL(kind, L):
        v = opt.get(f'fl{kind}{L}', opt.get(f'fl{kind}', ''))
        return (' ' + v.replace('+', ' ')) if v else ''

    def sadd(dst, base, const):
        if const == 0: E(f"s_mov_b32 s{dst}, s{base}")
        else: E(f"s_add_u32 s{dst}, s{base}, {const}")
    def dma_stream(tau, slot, tag, ilist=range(8)):
        ops = []; cur = None
        for i in ilist:
            if cur != (i >> 2):
                cur = i >> 2
                ops.append((4, False, lambda g=cur: E(f"s_add_u32 m0, s{S_W1K}, {slot*SLOT + g*4096}")))
                ops.append((4, False, lambda g=cur: sadd(S_DA, S_W1, tau*32768 + g*4096)))
            off = (i & 3)*1024
            k_ = 1 if tag.startswith('w1_') else 2 if tag.endswith('0') else 4
            ops.append((4, True, lambda off=off, k_=k_: E.vm(f"buffer_load_dwordx4 v{VL16}, {WSRD}, s{S_DA} offen" + (f" offset:{off}" if off else "") + (" nt" if opt.get('w1nt', 0) & k_ else "") + " lds", tag)))
        return ops
    def wd_stream(kps):
        ops = []
        for kp in kps:
            if opt.get('rot', 0): f = lambda kp=kp: E(f"s_add_u32 s26, s{S_WDR + kp//7}, {(kp % 7)*2048}")
            else: f = lambda kp=kp: E(f"s_add_u32 s26, s{S_WDB}, {kp*2048}")
            f.info = ('wd', kp); ops.append((4, False, f))
            for pd in range(2):
                f = lambda kp=kp, pd=pd: E.vm(f"buffer_load_dwordx4 {ar(A_WD + 8*kp + 4*pd, 4)}, v{VWD+pd}, {WSRD}, s26 offen" + (LSC if opt.get('wdsc', 1) else '') + (' nt' if opt.get('wdnt', 0) else ''), f'wd{kp}')
                f.info = ('wd', kp); ops.append((4, True, f))
        return ops
    class Bulk:
        def __init__(self, ops): self.ops = list(ops)
        def take(self, n):
            out = []
            while n > 0 and self.ops:
                o = self.ops.pop(0); out.append(o)
                if o[1]: n -= 1
            return out
        def emit(self, n):
            for (_, _, f) in self.take(n): f()
            assert not self.ops or not self.ops[0][1] or getattr(self.ops[0][2], 'info', None) is None, 'Wd loads come in pairs'
        def left(self): return sum(1 for o in self.ops if o[1])
    def publish(sbase, const, tag, wait=True):
        o = f" offset:{const}" if const else ""
        if MODE['slow']:
            E.wait_vm_all()
            E("buffer_wbl2 sc1\ns_waitcnt vmcnt(0)")
            E.vm(f"buffer_store_dword v{VONE}, v{VF0}, {WSRD}, s{sbase} offen{o} sc1", None)
            return
        if wait: E.wait_vm(tag)
        E.vm(f"buffer_store_dword v{VONE}, v{VF0}, {WSRD}, s{sbase} offen{o}", None)
    def poll_issue(voff, sbase, const, tag, dst=VPOLL):
        o = f" offset:{const}" if const else ""
        if MODE['slow']: E.seen.add(tag); return
        E.vm(f"buffer_load_dword v{dst}, v{voff}, {WSRD}, s{sbase} offen{o} sc1", tag)
    def poll_check(voff, sbase, const, tag, dst=VPOLL, wait=True):
        o = f" offset:{const}" if const else ""
        ls = E.label('L_polls'); lb = E.label('L_pollb'); ll = E.label('L_polll')
        if MODE['slow']:
            E.wait_vm_all()
            E(f"""
            s_mov_b32 s{S_T3}, 0
            {ll}:
            buffer_inv sc1
            s_waitcnt vmcnt(0)
            buffer_load_dword v{dst}, v{voff}, {WSRD}, s{sbase} offen{o} sc1
            s_add_u32 s{S_T3}, s{S_T3}, 1
            s_waitcnt vmcnt(0)
            v_cmp_ne_u32 vcc, s{S_N}, v{dst}
            s_cmp_gt_u32 s{S_T3}, 0x2000
            s_cbranch_scc1 {lb}
            s_cbranch_vccnz {ll}
            {lb}:
            buffer_inv sc1
            s_waitcnt vmcnt(0)""")
            return
        if wait: E.wait_vm(tag)
        E(f"v_cmp_ne_u32 vcc, s{S_N}, v{dst}")
        E(f"s_cbranch_vccnz {ls}")
        E(f"{lb}:")
        E.out_of_line(f"""
        {ls}:
        s_mov_b32 s{S_T3}, 0
        {ll}:
        buffer_load_dword v{dst}, v{voff}, {WSRD}, s{sbase} offen{o} sc1
        s_add_u32 s{S_T3}, s{S_T3}, 1
        s_waitcnt vmcnt(0)
        v_cmp_ne_u32 vcc, s{S_N}, v{dst}
        s_nop 4
        s_cbranch_vccz {lb}
        s_cmp_lt_u32 s{S_T3}, 0x2000
        s_cbranch_scc1 {ll}
        s_branch {lb}""")
    def all_flags_check(dst, voff, sval, tag, lim=0x2000):
        ls = E.label('L_afs'); lb = E.label('L_afb'); ll = E.label('L_afl')
        def cmp4():
            return "\n".join([f"v_xor_b32 v{dst+i}, s{sval}, v{dst+i}" for i in range(4)] +
                             [f"v_or3_b32 v{dst}, v{dst}, v{dst+1}, v{dst+2}", f"v_or_b32 v{dst}, v{dst}, v{dst+3}", f"v_cmp_ne_u32 vcc, 0, v{dst}"])
        E.wait_vm(tag)
        E(cmp4())
        E(f"s_cbranch_vccnz {ls}\n{lb}:")
        E.out_of_line(f"""
        {ls}:
        s_mov_b32 s{S_T3}, 0
        {ll}:
        buffer_load_dwordx4 v[{dst}:{dst+3}], v{voff}, {WSRD}, 0 offen sc1
        s_add_u32 s{S_T3}, s{S_T3}, 1
        {f's_add_u32 s{S_EXP}, s{S_EXP}, {1 << (12 if tag == "s1" else 18)}' if stamps and opt.get('cnt') else ''}
        s_waitcnt vmcnt(0)
        {cmp4()}
        s_nop 4
        s_cbranch_vccz {lb}
        s_cmp_lt_u32 s{S_T3}, {lim}
        s_cbranch_scc1 {ll}
        s_branch {lb}""")

    KSRD, VSRD, HSRD, PSRD, WDSRD = "s[52:55]", "s[64:67]", "s[76:79]", "s[68:71]", "s[52:55]"
    VPS, VPW = 224, 225
    VFT = 231
    SPLIT = opt.get('split', 0)
    YSPL = SPLIT == 1
    YL = opt.get('yl', 32); assert YL in (32, 16, 8) and (YL == 32 or YSPL)
    VYS_ = 249
    if YL == 32:
        YLD = "v_lshlrev_b32 v10, 12, v22\nv_lshl_add_u32 v10, v21, 11, v10\nv_lshl_add_u32 v10, v20, 2, v10"
        YST = f"""v_lshl_add_u32 v{VYS_}, v31, 7, v{VYS_}
        v_lshl_add_u32 v{VYS_}, v23, 5, v{VYS_}
        v_lshl_add_u32 v{VYS_}, v21, 4, v{VYS_}    ; (n'>>2)*131072 + (n'&3)*128 + g*32 + par'*16
        s_lshl_b32 s24, s85, 9
        s_lshl_b32 s25, s{S_W}, 19
        s_add_u32 s24, s24, s25
        s_add_u32 s58, s24, {WS_Y}               ; + cp*512 + 2w*262144
        s_lshl_b32 s24, s{S_C}, 17
        s_lshl_b32 s25, s{S_ROLE}, 5
        s_add_u32 s24, s24, s25
        s_lshl_b32 s25, s{S_W}, 15
        s_add_u32 s24, s24, s25
        s_add_u32 s59, s24, {WS_Y}               ; + c*131072 + role*32 + 64w*512"""
        YC2, YK = 16384, 512
    elif YL == 16:
        YLD = "v_lshlrev_b32 v10, 9, v22\nv_lshl_add_u32 v10, v21, 6, v10\nv_lshl_add_u32 v10, v20, 2, v10"
        YST = f"""v_lshl_add_u32 v{VYS_}, v31, 15, v{VYS_}
        v_lshrrev_b32 v31, 1, v23
        v_lshl_add_u32 v{VYS_}, v31, 14, v{VYS_}
        v_and_b32 v31, 1, v23
        v_lshl_add_u32 v{VYS_}, v31, 5, v{VYS_}
        v_lshl_add_u32 v{VYS_}, v21, 4, v{VYS_}    ; (n'>>2)*131072 + (2 (n'&3) + (g>>1))*16384 + (g&1)*32 + par'*16
        s_lshr_b32 s24, s85, 3
        s_lshl_b32 s24, s24, 9
        s_and_b32 s25, s85, 3
        s_lshl_b32 s25, s25, 7
        s_add_u32 s24, s24, s25
        s_bfe_u32 s25, s85, 0x10002
        s_lshl_b32 s25, s25, 6
        s_add_u32 s24, s24, s25
        s_lshl_b32 s25, s{S_W}, 19
        s_add_u32 s24, s24, s25
        s_add_u32 s58, s24, {WS_Y}
        s_lshl_b32 s24, s{S_C}, 17
        s_lshr_b32 s25, s{S_ROLE}, 1
        s_lshl_b32 s25, s25, 14
        s_add_u32 s24, s24, s25
        s_and_b32 s25, s{S_ROLE}, 1
        s_lshl_b32 s25, s25, 5
        s_add_u32 s24, s24, s25
        s_lshl_b32 s25, s{S_W}, 12
        s_add_u32 s24, s24, s25
        s_add_u32 s59, s24, {WS_Y}"""
        YC2, YK = 2048, 128
    else:
        YLD = "v_lshrrev_b32 v10, 1, v22\nv_lshlrev_b32 v10, 9, v10\nv_and_b32 v31, 1, v22\nv_lshl_add_u32 v10, v31, 6, v10\nv_lshl_add_u32 v10, v21, 5, v10\nv_lshl_add_u32 v10, v20, 2, v10"
        YST = f"""v_lshl_add_u32 v{VYS_}, v31, 15, v{VYS_}
        v_lshl_add_u32 v{VYS_}, v23, 13, v{VYS_}
        v_lshl_add_u32 v{VYS_}, v21, 4, v{VYS_}    ; (n'>>2)*131072 + (4 (n'&3) + g)*8192 + par'*16
        s_lshr_b32 s24, s85, 4
        s_lshl_b32 s24, s24, 9
        s_and_b32 s25, s85, 3
        s_lshl_b32 s25, s25, 7
        s_add_u32 s24, s24, s25
        s_bfe_u32 s25, s85, 0x20002
        s_lshl_b32 s25, s25, 5
        s_add_u32 s24, s24, s25
        s_lshl_b32 s25, s{S_W}, 19
        s_add_u32 s24, s24, s25
        s_add_u32 s58, s24, {WS_Y}
        s_lshl_b32 s24, s{S_C}, 17
        s_lshl_b32 s25, s{S_ROLE}, 13
        s_add_u32 s24, s24, s25
        s_lshl_b32 s25, s{S_W}, 11
        s_add_u32 s24, s24, s25
        s_add_u32 s59, s24, {WS_Y}"""
        YC2, YK = 1024, 128
    WDC = SPLIT == 2 or (SPLIT and opt.get('wdc', 0))
    PUBB = opt.get('pubb', 0)
    S1BP = opt.get('s1bp', 0)
    NPS = 7 if YSPL else 11 if SPLIT else 15
    FL_S1B = 0x6000; FL_S1C = 0x18000
    P1 = opt.get('p1', 0)
    GSH = 18 if P1 else 19
    NKV = 2 if P1 else 4
    MKALL = opt.get('mkall', 0)
    assert MKALL or not P1
    MKPOS = opt.get('mkpos', 0)
    MKW = opt.get('mkw', 0)
    MKF = '' if MKALL == 2 else ' sc1'
    MKPRE = "" if not MKALL else f"""v_lshlrev_b32 v33, 12, v21
    v_lshl_add_u32 v33, v22, 4, v33
    v_mov_b32 v36, -1
    v_mov_b32 v37, -1
    v_mov_b32 v38, -1
    v_mov_b32 v39, -1
    s_lshl_b32 s95, s{S_G}, {GSH}
    s_lshl_b32 s27, s{S_M}, 7
    s_sub_u32 s95, s95, s27
    s_lshl_b32 s27, s{S_W}, {(18 if MKW else 17) - P1}
    s_add_u32 s95, s95, s27
    s_add_u32 s95, s95, {WS_KVT + 3968}"""
    def markers4(fix=True):
        if fix: E(srd_fix(S_WS, WS_SRD_BYTES))
        n = (8 if MKW else 4) >> P1
        if MKW: E(f"s_cmp_ge_u32 s{S_W}, 2\ns_cbranch_scc1 L_mkw")
        for i in range(n if not opt.get('nomk') else 0):
            E(f"buffer_store_dwordx4 v[36:39], v33, {WSRD}, s95 offen{MKF}")
            if i < n - 1: E("s_add_u32 s95, s95, 32768")
        if MKW: E("L_mkw:")
    def srd_fix(b, size): return f"s_and_b32 s{b+1}, s{b+1}, 0xffff\ns_mov_b32 s{b+2}, {size}\ns_mov_b32 s{b+3}, 0x20000"
    E.L.append(head(name).rstrip())
    E(f"""
    s_cmp_ge_u32 s2, 256
    s_cbranch_scc1 L_end
    s_load_dwordx2 s[52:53], s[0:1], 8
    s_load_dwordx2 s[64:65], s[0:1], 16
    s_load_dwordx2 s[4:5], s[0:1], 96
    s_load_dwordx8 s[56:63], s[0:1], 24
    s_load_dwordx8 s[68:75], s[0:1], 56
    s_load_dwordx2 s[8:9], s[0:1], 0
    """)
    S0SC = opt.get('s0sc', 0)
    if S0SC: E("s_load_dwordx2 s[96:97], s[0:1], 88")
    if stamps: E("s_memrealtime s[100:101]")
    stamp('start')
    E(f"""
    v_lshrrev_b32 v20, 6, v0
    v_and_b32 v8, 63, v0                     ; lane
    s_and_b32 s{S_G}, s2, 7
    s_lshr_b32 s{S_M}, s2, 3
    v_readfirstlane_b32 s{S_W}, v20
    v_lshlrev_b32 v{VL16}, 4, v8
    v_lshrrev_b32 v21, 3, v8
    v_and_b32 v22, 7, v8
    s_lshl_b32 s{S_CB}, s{S_G}, 6
    s_lshl_b32 s24, s{S_M}, 1
    s_add_u32 s{S_CB}, s{S_CB}, s24
    s_lshl_b32 s24, s{S_G}, 9
    s_lshl_b32 s25, s{S_W}, 7
    s_add_u32 s24, s24, s25
    v_lshlrev_b32 v30, 4, v21
    v_add_u32 v30, s24, v30
    ; raw weight blocks (waves 2 and 3): 8 rows x 128 bytes each
    s_lshr_b32 s24, s2, 2                    ; kg
    s_and_b32 s25, s2, 3                     ; fq
    s_mul_i32 s26, s24, 28672
    s_mul_i32 s27, s25, 896
    s_add_u32 s26, s26, s27
    v_mul_u32_u24 v{VPS}, 3584, v21
    v_lshl_add_u32 v{VPS}, v22, 4, v{VPS}
    v_add_u32 v{VPS}, s26, v{VPS}
    v_lshlrev_b32 v{VPW}, 10, v21
    v_lshl_add_u32 v{VPW}, v22, 4, v{VPW}
    s_and_b32 s25, s{S_W}, 1
    s_lshl_b32 s26, s2, 13
    s_lshl_b32 s27, s25, 9
    s_add_u32 s26, s26, s27
    v_add_u32 v{VPW}, s26, v{VPW}
    s_mul_i32 s26, s25, {11*1024}
    s_add_u32 s{S_PST}, s26, {PST}
    {MKPRE}
    s_cmp_eq_u32 s{S_W}, 3
    s_cbranch_scc1 L_w3
    ; k / v staging tiles: row = lane >> 3, 16-byte segment = lane & 7
    v_lshlrev_b32 v32, 10, v21
    v_lshl_add_u32 v32, v22, 4, v32
    s_lshl_b32 s24, s{S_M}, 16
    s_lshl_b32 s25, s{S_G}, 7
    s_add_u32 s24, s24, s25
    v_add_u32 v32, s24, v32
    s_cmp_eq_u32 s{S_W}, 2
    s_cbranch_scc1 L_w2
    s_cmp_eq_u32 s{S_W}, 1
    s_cbranch_scc1 L_w1
    """)
    SK = 56
    def skload(): E(f"global_load_dwordx4 v[{SK}:{SK+3}], v30, s[56:57]")
    def h_dma(js, sch, slds):
        for j in js:
            E(f"s_add_u32 s26, s{sch}, {4 + 4*j}\ns_add_u32 m0, s{slds}, {j*HC_J + 64}\ns_nop 0")
            for q_ in range(4):
                E(f"buffer_load_dwordx4 v{VL16}, {HSRD}, s26 offen" + (f" offset:{1024*q_}" if q_ else "") + NT('h') + " lds")
    def prep_dma():
        for i in range(7):
            E(f"s_add_u32 m0, s{S_PST}, {1024*i - 128*i}")
            E(f"s_nop 0\nbuffer_load_dwordx4 v{VPS}, {PSRD}, 0 offen" + (f" offset:{128*i}" if i else "") + NT('r') + " lds")
        for i in range(4):
            E(f"s_add_u32 m0, s{S_PST}, {1024*(7+i) - 128*i}")
            E(f"s_nop 0\nbuffer_load_dwordx4 v{VPW}, {WDSRD}, 0 offen" + (f" offset:{128*i}" if i else "") + NT('r') + " lds")
    HEARLY = [0, 1, 2, 3] if opt.get('hpos', 0) == 0 else [0]
    HLATE = [j for j in range(4) if j not in HEARLY]
    def tile_path(lst):
        for j, (kind, blk) in enumerate(lst):
            c = (blk*8192 - (4096 if kind == 'k' else 1024)) & 0xffffffff
            E(f"v_add_u32 v{40+j}, {c:#x}, v32")
        E("s_waitcnt lgkmcnt(0)")
        E(f"s_load_dword s{S_E}, s[4:5], {FL_EPOCH}")
        if MKALL and MKPOS == 0: markers4()
        if any(k == 'k' for k, _ in lst): E(srd_fix(52, 2097152))
        if any(k == 'v' for k, _ in lst): E(srd_fix(64, 2097152))
        for j, (kind, blk) in enumerate(lst):
            E(f"s_mov_b32 m0, {(KT if kind == 'k' else VT) + blk*TBS}\ns_nop 0")
            E(f"buffer_load_dwordx4 v{40+j}, {KSRD if kind == 'k' else VSRD}, 0 offen{NT('t')} lds")
    tile_path([('k', b) for b in range(6)])
    E("s_branch L_w01\nL_w1:")
    tile_path([('k', b) for b in (6, 7, 8)] + [('v', b) for b in (0, 1, 2)])
    E("L_w01:")
    stamp('e1'); stamp('e2')
    skload()
    E(f"""
    s_mov_b32 s76, s58
    s_mov_b32 s77, s59
    {srd_fix(76, 2097152)}
    s_add_u32 s24, s{S_CB}, s{S_W}
    s_lshl_b32 s24, s24, 12                  ; channel * 4096
    s_mul_i32 s25, s{S_W}, {HC_CH}
    """)
    h_dma(HEARLY, 24, 25)
    RT = opt.get('rtouch', 0)
    def rtouch():
        E(f"buffer_load_dword v233, v233, {PSRD}, 0 offen")
        E(f"buffer_load_dword v234, v234, {WDSRD}, 0 offen")
    if RT:
        E(f"""
        s_cmp_eq_u32 s{S_W}, 1
        s_cselect_b32 s68, s70, s68
        s_cselect_b32 s69, s71, s69
        {srd_fix(68, 1835008)}
        s_mov_b32 s52, s72
        s_mov_b32 s53, s73
        {srd_fix(52, 1835008)}
        s_lshr_b32 s24, s2, 2
        s_add_u32 s24, s24, 32
        s_mul_i32 s24, s24, 28672
        s_and_b32 s25, s2, 3
        s_mul_i32 s25, s25, 896
        s_add_u32 s24, s24, s25
        s_add_u32 s25, s2, 128
        s_lshl_b32 s25, s25, 13
        s_lshl_b32 s26, s{S_W}, 9
        s_add_u32 s25, s25, s26
        s_cmp_ge_u32 s2, 128
        s_cselect_b32 s24, {OOB}, s24
        s_cselect_b32 s25, {OOB}, s25
        v_min_u32 v233, 6, v21
        v_lshlrev_b32 v233, 7, v233
        v_mul_u32_u24 v234, 3584, v22
        v_add_u32 v233, v233, v234
        v_add_u32 v233, s24, v233
        v_and_b32 v234, 3, v21
        v_lshlrev_b32 v234, 7, v234
        v_lshl_add_u32 v234, v22, 10, v234
        v_add_u32 v234, s25, v234
        """)
        if RT == 1: rtouch()
    E("s_branch L_join\nL_w2:")
    tile_path([('v', b) for b in range(3, 9)])
    stamp_dup('e1'); stamp_dup('e2')
    skload()
    E("s_branch L_w23\nL_w3:")
    if MKALL:
        MK2 = 0
        E(f"""
        s_waitcnt lgkmcnt(0)
        s_mov_b32 s68, s70
        s_mov_b32 s69, s71
        s_load_dword s{S_E}, s[4:5], {FL_EPOCH}
        """)
        if MKPOS == 0: markers4()
        stamp_dup('e1')
    else:
        MK4 = opt.get('mk4', 1)
        E(f"""
        v_lshlrev_b32 v33, 12, v21
        v_lshl_add_u32 v33, v22, 4, v33
        v_mov_b32 v36, -1
        v_mov_b32 v37, -1
        v_mov_b32 v38, -1
        v_mov_b32 v39, -1
        s_lshl_b32 s26, s{S_G}, 19
        s_lshl_b32 s27, s{S_M}, 7
        s_sub_u32 s26, s26, s27
        s_add_u32 s26, s26, {WS_KVT + 3968}
        s_waitcnt lgkmcnt(0)
        {srd_fix(S_WS, WS_SRD_BYTES)}
        s_load_dword s{S_E}, s[4:5], {FL_EPOCH}
        """)
        for i in range(16):
            E((f"buffer_store_dwordx4 v[36:39], v33, {WSRD}, s26 offen" if MK4 else f"buffer_store_dword v36, v33, {WSRD}, s26 offen") + (' sc1' if opt.get('mksc', 0) else ''))
            if i < 15: E("s_add_u32 s26, s26, 32768")
        stamp_dup('e1')
        E(f"""
        s_getreg_b32 s24, hwreg(HW_REG_XCC_ID, 0, 4)
        s_and_b32 s25, s2, 63
        s_lshl_b32 s25, s25, 7
        s_lshr_b32 s26, s2, 6
        s_lshl_b32 s26, s26, 2
        s_add_u32 s25, s25, s26
        s_add_u32 s25, s25, {FL_S0}
        s_and_b32 s24, s24, 7
        v_mov_b32 v{VF0}, {OOB}
        v_cmp_eq_u32 vcc, 0, v8
        v_mov_b32 v31, 0
        s_mov_b32 s68, s70
        s_mov_b32 s69, s71
        v_cndmask_b32 v{VF0}, v{VF0}, v31, vcc
        s_waitcnt lgkmcnt(0)
        s_mul_i32 s26, s{S_E}, 0x9e3779b1
        s_add_u32 s26, s26, 0x7f4a7c15
        s_and_b32 s26, s26, 0xfffffff0
        s_or_b32 s24, s24, s26
        v_mov_b32 v31, s24
        s_waitcnt vmcnt(0)
        buffer_store_dword v31, v{VF0}, {WSRD}, s25 offen sc1
        """)
        MK2 = opt.get('mk2', 0)
        if MK2 == 3: skload()
        if MK2:
            E(f"""
            s_lshl_b32 s26, s{S_G}, 19
            s_lshl_b32 s27, s{S_M}, 7
            s_sub_u32 s26, s26, s27
            s_add_u32 s26, s26, {WS_KVT + 3968}
            """)
            for i in range(16):
                E(f"buffer_store_dwordx4 v[36:39], v33, {WSRD}, s26 offen sc1")
                if i < 15: E("s_add_u32 s26, s26, 32768")
    stamp_dup('e2')
    if MK2 != 3: skload()
    E(f"""
    L_w23:
    {srd_fix(68, 1835008)}
    s_mov_b32 s52, s72
    s_mov_b32 s53, s73
    {srd_fix(52, 1835008)}
    """)
    RAWPOS = opt.get('rawpos', 0)
    RAWTHR = opt.get('rawthr', 0)
    if RAWPOS == 0: prep_dma()
    if RAWTHR:
        assert RAWPOS == 1 and MKPOS == 0
        E(f"s_cmp_lt_u32 s2, {RAWTHR}\ns_cbranch_scc1 L_join")
        prep_dma()
    E("L_join:")
    stamp('join')
    if opt.get('tw'):
        E(f"s_waitcnt vmcnt({opt['tw']})")
        stamp('tw')
    HEAD = 60
    PFL = opt.get('pfl', 15)
    E(f"""
    {srd_fix(S_WS, WS_SRD_BYTES)}
    s_lshr_b32 s{S_CP}, s{S_CB}, 1
    s_mov_b32 s76, s58
    s_mov_b32 s77, s59
    {srd_fix(76, 2097152)}
    s_lshl_b32 s24, s{S_CB}, 1
    s_load_dword s{S_D}, s[60:61], s24
    v_and_b32 v23, 31, v0
    v_lshrrev_b32 v24, 7, v0
    v_bfe_u32 v25, v0, 5, 2
    v_lshl_add_u32 v26, v25, 1, v23
    v_add_u32 v26, -30, v26
    v_add_u32 v27, s{S_CB}, v24
    v_lshlrev_b32 v27, 12, v27
    v_lshl_add_u32 v27, v26, 1, v27
    v_cmp_gt_i32 vcc, 0, v26
    v_mov_b32 v31, -16
    v_mul_u32_u24 v61, {HC_CH}, v24
    v_cndmask_b32 v27, v27, v31, vcc
    buffer_load_ushort v{HEAD}, v27, {HSRD}, 0 offen
    v_mul_u32_u24 v31, {HC_J}, v25
    v_add_u32 v61, v61, v31
    v_lshl_add_u32 v61, v23, 1, v61
    s_getpc_b64 s[32:33]
    L_pc:
    s_lshl_b32 s24, s{S_M}, 2
    s_add_u32 s24, s24, s{S_W}
    {'s_and_b32 s24, s24, 31' if PFL == 15 else 's_nop 0'}
    s_lshl_b32 s24, s24, {11 if PFL == 15 else 9}
    v_and_b32 v31, {PFL}, v8
    v_lshlrev_b32 v31, 7, v31
    v_add_u32 v31, s24, v31
    v_min_u32 v31, L_codeend-L_pc-64, v31
    global_load_dword v255, v31, s[32:33]
    """)
    stamp('i_a')
    E(f"""
    s_mov_b32 s{S_OUT}, s74
    s_mov_b32 s{S_OUT+1}, s75
    ; block-stage ids ; q fragment offsets: token = 128 c + 8 role + tok, channels 128 w + 64 c2 + 16 ks + 8 hi ..
    s_and_b32 s{S_ROLE}, s{S_M}, 15
    s_lshr_b32 s24, s{S_M}, 4
    s_lshl_b32 s24, s24, 3
    s_add_u32 s{S_C}, s{S_G}, s24
    s_lshr_b32 s{S_TH}, s{S_ROLE}, 3
    s_and_b32 s{S_J}, s{S_ROLE}, 7
    v_and_b32 v20, 7, v8                     ; tok
    v_bfe_u32 v21, v8, 3, 1                  ; hi
    v_lshrrev_b32 v22, 4, v8                 ; ks
    v_lshlrev_b32 v9, 10, v20
    v_lshl_add_u32 v9, v22, 5, v9
    v_lshl_add_u32 v9, v21, 4, v9
    s_lshl_b32 s24, s{S_C}, 7
    s_lshl_b32 s25, s{S_ROLE}, 3
    s_add_u32 s24, s24, s25
    s_lshl_b32 s24, s24, 10
    s_lshl_b32 s25, s{S_W}, 8
    s_add_u32 s{S_QO}, s24, s25
    {srd_fix(S_Q, 2097152)}
    """)
    ROTP = "" if not opt.get('rot', 0) else f"""s_lshr_b32 s96, s{S_C}, 3
    s_lshl_b32 s96, s96, 1
    s_lshr_b32 s97, s{S_W}, 1
    s_add_u32 s96, s96, s97
    s_sub_u32 s29, s29, s96
    s_and_b32 s29, s29, 3"""
    E(f"""
    s_getreg_b32 s{S_XCC}, hwreg(HW_REG_XCC_ID, 0, 4)
    s_lshl_b32 s{S_W1K}, s{S_W}, 13
    s_mul_i32 s{S_W1}, s{S_ROLE}, {229376 if not opt.get('xw1same') else 0}
    s_add_u32 s{S_W1}, s{S_W1}, s{S_W1K}
    s_add_u32 s{S_W1}, s{S_W1}, {WS_W1F}
    s_and_b32 s{S_OUT+1}, s{S_OUT+1}, 0xffff
    s_mov_b32 s{S_OUT+2}, 2097152
    s_mov_b32 s{S_OUT+3}, 0x20000
    s_mov_b32 s{S_HI}, 0xffff0000
    s_mov_b32 s{S_LN2}, {LN2:#x}
    s_mov_b32 s{S_LN2+1}, {LN2:#x}
    s_mov_b32 s{S_EXP}, 1
    s_and_b32 s{S_XCC}, s{S_XCC}, 7
    v_add_u32 v{VA1}, 65536, v{VL16}
    v_add_u32 v{VA2}, 131072, v{VL16}
    v_lshlrev_b32 v{VP8}, 2, v20
    v_and_b32 v{VP16}, 15, v8
    v_lshlrev_b32 v{VP16}, 2, v{VP16}
    v_mov_b32 v{VF0}, {OOB}
    v_cmp_eq_u32 vcc, 0, v8
    v_mov_b32 v31, 0
    s_lshr_b32 s30, s{S_ROLE}, 2             ; tt_r
    s_and_b32 s24, s{S_ROLE}, 3
    v_cndmask_b32 v{VF0}, v{VF0}, v31, vcc
    s_lshl_b32 s25, s24, 7
    v_lshlrev_b32 v{VR}, 10, v22
    v_lshl_add_u32 v{VR}, v21, 9, v{VR}
    v_lshl_add_u32 v{VR}, v20, 4, v{VR}
    v_add_u32 v{VR}, s25, v{VR}
    ; stats addresses
    v_lshlrev_b32 v{VSTR}, 5, v20
    v_add_u32 v{VSTR}, {STATS}, v{VSTR}
    v_and_b32 v31, 1, v22
    v_lshl_add_u32 v{VSTW}, v31, 2, v{VSTR}
    s_lshl_b32 s25, s{S_W}, 3
    v_add_u32 v{VSTW}, s25, v{VSTW}
    {YLD}
    s_lshl_b32 s25, s{S_G}, {GSH}
    s_lshr_b32 s26, s{S_C}, 3
    s_lshl_b32 s26, s26, 17
    s_add_u32 s25, s25, s26
    s_lshl_b32 s26, s30, 15
    s_add_u32 s{S_R}, s25, s26
    s_lshl_b32 s26, s{S_W}, 13
    s_add_u32 s{S_R}, s{S_R}, s26
    s_lshl_b32 s26, s{S_W}, 15
    s_add_u32 s{S_XNL}, s25, s26             ; XB + w*32768
    s_lshl_b32 s26, s{S_C}, 2
    s_add_u32 s27, s26, s{S_W}
    s_mul_i32 s27, s27, 114688
    s_lshr_b32 s28, s{S_ROLE}, 2
    s_mul_i32 s28, s28, 28
    s_and_b32 s29, s{S_ROLE}, 3
    {ROTP}
    s_add_u32 s28, s28, s29
    s_lshl_b32 s28, s28, 10
    s_add_u32 s{S_HST}, s27, s28             ; (4c+w)*114688 + ((role>>2)*28 + (role&3))*1024 ; tile tau at +4096 tau
    s_lshl_b32 s27, s{S_TH}, 1
    s_add_u32 s27, s27, s26
    s_mul_i32 s27, s27, 114688
    s_mul_i32 s28, s{S_W}, 28672
    s_add_u32 s{S_HLD}, s27, s28             ; (4c+2th)*114688 + 28w*1024
    s_and_b32 s26, s{S_W}, 1
    s_lshl_b32 s26, s26, 1
    s_lshr_b32 s27, s{S_W}, 1
    s_add_u32 s26, s26, s27
    s_lshl_b32 s27, s{S_J}, 2
    s_add_u32 s26, s26, s27                  ; kappa_o = 4j + 2(w&1) + (w>>1)
    s_lshl_b32 s27, s26, 10
    s_lshl_b32 s28, s{S_TH}, 16
    s_add_u32 s27, s27, s28
    s_add_u32 s{S_XML}, s27, s25
    ; flags
    s_lshl_b32 s25, s{S_C}, 8
    s_lshl_b32 s27, s30, 6
    s_add_u32 s27, s27, s25
    s_lshl_b32 s28, s24, 4
    s_add_u32 s27, s27, s28
    s_lshl_b32 s28, s{S_W}, 2
    s_add_u32 s{S_FXNS}, s27, s28
    s_lshl_b32 s27, s{S_W}, 6
    s_add_u32 s{S_FXNL}, s25, s27            ; c*256 + w*64
    s_lshl_b32 s25, s{S_C}, 10
    s_lshr_b32 s27, s{S_W}, 1
    s_lshl_b32 s27, s27, 7
    s_add_u32 s27, s27, s25
    s_lshl_b32 s29, s{S_ROLE}, 3
    s_add_u32 s27, s27, s29
    s_and_b32 s29, s{S_W}, 1
    s_lshl_b32 s29, s29, 2
    s_add_u32 s{S_FHS}, s27, s29             ; c*1024 + (w>>1)*128 + role*8 + (w&1)*4
    s_lshl_b32 s27, s{S_TH}, 7
    s_add_u32 s27, s27, s25
    s_lshl_b32 s29, s{S_W}, 5
    s_add_u32 s{S_FHL}, s27, s29             ; c*1024 + th*128 + w*32
    s_lshl_b32 s25, s{S_C}, 9
    s_lshl_b32 s27, s{S_TH}, 7
    s_add_u32 s27, s27, s25
    s_lshl_b32 s29, s{S_J}, 4
    s_add_u32 s27, s27, s29
    s_add_u32 s{S_FX2S}, s27, s28            ; c*512 + th*128 + j*16 + w*4
    s_lshr_b32 s27, s30, 1
    s_lshl_b32 s27, s27, 7
    s_add_u32 s27, s27, s25
    s_lshl_b32 s29, s{S_W}, 5
    s_add_u32 s{S_FX2L}, s27, s29            ; c*512 + (tt_r>>1)*128 + w*32
    s_add_u32 s{S_FXNS}, s{S_FXNS}, {FL_XN}
    s_add_u32 s{S_FXNL}, s{S_FXNL}, {FL_XN}
    s_add_u32 s{S_FHS}, s{S_FHS}, {FL_H}
    s_add_u32 s{S_FHL}, s{S_FHL}, {FL_H}
    s_add_u32 s{S_FX2S}, s{S_FX2S}, {FL_X2}
    s_add_u32 s{S_FX2L}, s{S_FX2L}, {FL_X2}
    s_mul_i32 s25, s{S_W}, 6144
    s_add_u32 s25, s25, {SCR}
    v_add_u32 v{VRR}, s25, v{VL16}
    """)
    for m in (1, 2, 3):
        E(f"""
        s_xor_b32 s25, s{S_W}, {m}
        s_mul_i32 s25, s25, 6144
        s_add_u32 s25, s25, {SCR + (m-1)*2048}
        v_add_u32 v{VRW[m-1]}, s25, v{VL16}
        """)
    E(f"""
    s_lshl_b32 s{S_WDB}, s{S_J}, 2
    s_add_u32 s{S_WDB}, s{S_WDB}, s{S_W}
    s_mul_i32 s{S_WDB}, s{S_WDB}, 57344
    s_add_u32 s{S_WDB}, s{S_WDB}, {WS_WDF}
    s_lshr_b32 s25, s{S_W}, 1
    s_lshl_b32 s25, s25, 8
    v_xor_b32 v31, s25, v{VL16}
    s_and_b32 s25, s{S_W}, 1
    s_lshl_b32 s25, s25, 10
    v_add_u32 v{VWD}, s25, v31
    s_xor_b32 s25, s25, 1024
    v_add_u32 v{VWD+1}, s25, v31
    """)
    stamp('pre')
    E(f"""
    s_waitcnt lgkmcnt(0)
    s_mul_i32 s{S_N}, s{S_E}, 0x9e3779b1
    s_add_u32 s{S_N}, s{S_N}, 0x7f4a7c15
    s_and_b32 s{S_N}, s{S_N}, 0xfffffff0
    s_or_b32 s{S_XCC}, s{S_XCC}, s{S_N}
    v_mov_b32 v{VONE}, s{S_N}
    ; flag slot of this work-group in the [64][4] arrays
    s_and_b32 s86, s2, 63
    s_lshl_b32 s86, s86, 7
    s_lshr_b32 s24, s2, 6
    s_lshl_b32 s24, s24, 2
    s_add_u32 s86, s86, s24
    """)
    if opt.get('ftouch', 0):
        E(f"""
        s_lshl_b32 s24, s{S_ROLE}, 1
        v_add_u32 v20, s24, v8
        v_min_u32 v20, 23, v20
        v_lshrrev_b32 v21, 1, v20
        v_and_b32 v22, 1, v20
        v_lshlrev_b32 v21, 12, v21
        v_lshl_add_u32 v21, v22, 7, v21
        s_lshl_b32 s24, s{S_C}, 8
        s_add_u32 s24, s24, {FL_XN}
        v_add_u32 v21, s24, v21
        v_subrev_u32 v22, 4, v20
        v_lshrrev_b32 v23, 3, v22
        v_and_b32 v22, 7, v22
        v_lshlrev_b32 v23, 14, v23
        v_lshl_add_u32 v23, v22, 7, v23
        s_lshl_b32 s24, s{S_C}, 10
        s_add_u32 s24, s24, {FL_H}
        v_add_u32 v23, s24, v23
        v_cmp_lt_u32 vcc, 3, v20
        v_cndmask_b32 v21, v21, v23, vcc
        v_subrev_u32 v22, 20, v20
        v_lshlrev_b32 v22, 7, v22
        s_lshl_b32 s24, s{S_C}, 9
        s_add_u32 s24, s24, {FL_X2}
        v_add_u32 v22, s24, v22                  ; X2 + c*512 + line*128
        v_cmp_lt_u32 vcc, 19, v20
        v_cndmask_b32 v21, v21, v22, vcc
        v_cmp_lt_u32 vcc, 1, v8
        v_mov_b32 v22, {OOB}
        v_cndmask_b32 v{VFT}, v21, v22, vcc
        """)
    stamp('setup')

    VA_, VB_ = 62, 63
    VXW, VKVW, VYS, VT0, VS1P, VEP = 22, 248, 249, 250, 253, 254
    VTR, W1D, WDD, VYP, VS1F = 226, 227, 228, 229, 230
    S_XL = 72
    S_W1DST, S_WDDST, S_YP, S_S1F = 64, 65, 66, 67
    E(f"""
    ; weight images (waves 2 and 3): raw 8-row blocks go to LDS, come back transposed and are stored as MFMA fragments
    s_cmp_eq_u32 s{S_W}, 3
    s_cselect_b32 s28, 256, 0
    s_cselect_b32 s29, 4, 0                  ; first Wd block of this wave
    s_lshr_b32 s24, s2, 2                    ; kg
    s_and_b32 s25, s2, 3                     ; fq
    v_bfe_u32 v20, v8, 2, 2
    v_lshlrev_b32 v{VTR}, 7, v20
    v_lshrrev_b32 v21, 4, v8                 ; g
    v_lshl_add_u32 v{VTR}, v21, 5, v{VTR}
    v_and_b32 v20, 3, v8
    v_lshl_add_u32 v{VTR}, v20, 3, v{VTR}
    v_add_u32 v{VTR}, s{S_PST}, v{VTR}
    v_and_b32 v20, 3, v8
    v_bfe_u32 v23, v8, 2, 1
    v_lshl_or_b32 v20, v23, 3, v20
    v_bfe_u32 v23, v8, 3, 1
    v_lshl_or_b32 v20, v23, 2, v20
    v_lshlrev_b32 v20, 4, v20                ; row * 16
    v_lshl_add_u32 v{W1D}, v21, 15, v20      ; + g * 32768
    s_mul_i32 s26, s25, {28*32768}
    s_lshr_b32 s27, s24, 1
    s_lshl_b32 s27, s27, 10
    s_add_u32 s26, s26, s27
    s_and_b32 s27, s24, 1
    s_lshl_b32 s27, s27, 9
    s_add_u32 s26, s26, s27
    s_add_u32 s26, s26, s28
    s_add_u32 s{S_W1DST}, s26, {WS_W1F}
    v_lshrrev_b32 v23, 1, v21
    v_lshl_add_u32 v{WDD}, v23, 10, v20      ; + dt * 1024
    v_and_b32 v23, 1, v21
    v_lshl_add_u32 v{WDD}, v23, 8, v{WDD}    ; + 16 rows
    s_lshr_b32 s24, s2, 1                    ; kf
    s_mul_i32 s25, s24, 2341
    s_lshr_b32 s25, s25, 16                  ; kf / 28
    s_mul_i32 s26, s25, 28
    s_sub_u32 s26, s24, s26
    s_mul_i32 s25, s25, 57344
    s_lshl_b32 s26, s26, 11
    s_add_u32 s25, s25, s26
    s_and_b32 s26, s2, 1
    s_lshl_b32 s26, s26, 9
    s_add_u32 s25, s25, s26
    s_mul_i32 s26, s29, 229376
    s_add_u32 s25, s25, s26
    s_add_u32 s25, s25, {WS_WDF}
    s_cmp_ge_u32 s2, 224
    s_cselect_b32 s{S_WDDST}, 0xf0000000, s25
    ; markers of the Y rows: waves 2 and 3 take eight clusters each
    v_lshrrev_b32 v{VYP}, 5, v8
    v_and_b32 v20, 31, v8
    v_lshlrev_b32 v{VYP}, 17, v{VYP}
    v_lshl_add_u32 v{VYP}, v20, 4, v{VYP}
    s_lshl_b32 s24, s{S_CP}, 9
    s_lshl_b32 s25, s29, 18
    s_add_u32 s24, s24, s25
    s_add_u32 s{S_YP}, s24, {WS_Y}
    ; images-complete flag: index 2 b + (w & 1) -> line index & 127, dword index >> 7
    s_lshl_b32 s24, s2, 1
    s_and_b32 s25, s{S_W}, 1
    s_add_u32 s24, s24, s25
    s_and_b32 s25, s24, 127
    s_lshl_b32 s25, s25, 7
    s_lshr_b32 s24, s24, 7
    s_lshl_b32 s24, s24, 2
    s_add_u32 s24, s24, s25
    s_add_u32 s{S_S1F}, s24, {FL_S1}
    s_cmp_ge_u32 s{S_W}, 2
    s_cselect_b32 s24, 0, {OOB}
    v_or_b32 v{VS1F}, s24, v{VF0}
    {f'v_or_b32 v{WDD}, s24, v{WDD}' if SPLIT else ''}
    s_lshl_b32 s24, s{S_W}, 12
    s_add_u32 s24, s24, {FL_S1}
    v_and_b32 v20, 31, v8
    v_lshlrev_b32 v{VS1P}, 7, v20
    v_add_u32 v{VS1P}, s24, v{VS1P}
    v_and_b32 v20, 15, v8                    ; r
    v_lshrrev_b32 v21, 4, v8                 ; g
    v_and_b32 v22, 3, v8                     ; j'
    v_bfe_u32 v23, v8, 2, 2                  ; q
    s_lshr_b32 s24, s{S_W}, 1                ; ch
    s_and_b32 s25, s{S_W}, 1
    s_lshl_b32 s25, s25, 8
    s_mul_i32 s26, s24, {HC_CH}
    s_add_u32 s26, s26, s25
    v_mul_u32_u24 v24, {HC_J}, v22
    v_add_u32 v25, v21, v23
    v_lshl_add_u32 v24, v25, 4, v24
    v_add_u32 v{VA_}, s26, v24
    s_mul_i32 s26, s24, {XR_CH}
    s_add_u32 s26, s26, s25
    s_add_u32 s26, s26, {XRB + 16*252 - 3584}
    v_and_b32 v22, 7, v8                     ; n'
    v_bfe_u32 v23, v8, 3, 1                  ; par'
    v_mul_u32_u24 v24, {XR_P}, v23
    v_lshlrev_b32 v25, 6, v22
    v_sub_u32 v24, v24, v25
    v_lshl_add_u32 v24, v21, 4, v24
    v_add_u32 v{VB_}, s26, v24
    v_lshrrev_b32 v20, 6, v0
    v_and_b32 v20, 1, v20
    v_mul_u32_u24 v20, {XR_CH}, v20
    v_bfe_u32 v21, v0, 5, 1
    v_mul_u32_u24 v21, {XR_P}, v21
    v_add_u32 v20, v20, v21
    v_and_b32 v21, 31, v0
    v_lshl_add_u32 v20, v21, 4, v20
    v_add_u32 v20, {XRB + 4096}, v20
    v_mov_b32 v24, 0
    v_mov_b32 v25, 0
    v_mov_b32 v26, 0
    v_mov_b32 v27, 0
    """)
    E.ds("ds_write_b128 v20, v[24:27]", 'pad')
    WDD_M = opt.get('wdd', 0)
    VDR, VDT = 240, 241
    if WDD_M: E(f"""
    v_lshrrev_b32 v20, 3, v8
    v_and_b32 v21, 7, v8
    v_bfe_u32 v23, v8, 4, 1
    v_lshlrev_b32 v23, 2, v23
    v_xor_b32 v21, v21, v23
    v_lshlrev_b32 v20, 10, v20
    v_lshl_add_u32 v20, v21, 4, v20
    s_lshl_b32 s24, s{S_J}, 7
    v_add_u32 v{VDR}, s24, v20
    v_lshrrev_b32 v20, 5, v8
    v_lshlrev_b32 v20, 10, v20               ; hi * 1024
    v_bfe_u32 v21, v8, 2, 2
    v_lshl_add_u32 v20, v21, 7, v20          ; r * 128
    v_bfe_u32 v21, v8, 3, 1                  ; (r >> 1) & 1
    s_and_b32 s24, s{S_W}, 1
    v_xor_b32 v21, s24, v21
    v_lshl_add_u32 v20, v21, 6, v20
    v_bfe_u32 v21, v8, 4, 1
    s_lshr_b32 s24, s{S_W}, 1
    v_xor_b32 v21, s24, v21
    v_lshl_add_u32 v20, v21, 5, v20
    v_and_b32 v21, 1, v8
    v_lshl_add_u32 v20, v21, 4, v20
    v_bfe_u32 v21, v8, 1, 1
    v_lshl_add_u32 v20, v21, 3, v20
    s_add_u32 s24, s{S_W1K}, {4*SLOT}
    v_add_u32 v{VDT}, s24, v20
    v_xor_b32 v{VDT+1}, 64, v{VDT}
    s_mul_i32 s74, s{S_W}, {448*1024}
    """)
    E(f"""
    ; kv stage: thread = (channel pair cp = 8 w + (lane >> 3), token group tg = lane & 7) ; stores at cp*16384 + 4080 - 128 m - 16 tg
    v_lshrrev_b32 v20, 3, v0                 ; cp
    v_and_b32 v21, 7, v8                     ; tg
    v_lshlrev_b32 v53, {14 - P1}, v20
    v_lshlrev_b32 v23, 4, v21
    v_sub_u32 v53, v53, v23
    s_lshl_b32 s24, s{S_M}, 7
    s_sub_u32 s24, 4080, s24
    v_add_u32 v53, s24, v53
    ; staging tile reads
    v_mul_u32_u24 v54, {TBS}, v21
    v_lshl_add_u32 v54, v20, 2, v54
    v_add_u32 v55, {VT}, v54
    v_add_u32 v54, {KT}, v54
    ; group flag poll: line 8 l + gamma
    v_and_b32 v30, 7, v8
    v_lshlrev_b32 v30, 10, v30
    s_lshl_b32 s24, s{S_G}, 7
    s_add_u32 s24, s24, {FL_S0}
    v_add_u32 v30, s24, v30
    s_and_b32 s25, s{S_W}, 1
    s_mul_i32 s24, s25, {XR_CH}
    s_add_u32 s24, s24, {XRB}
    v_add_u32 v{VXW}, s24, v{VL16}
    s_add_u32 s24, s{S_CB}, s25
    s_lshl_b32 s24, s24, {13 - P1}
    s_add_u32 s{S_XL}, s24, {WS_KVT}
    s_add_u32 s{S_XL+1}, s24, {WS_KVT + 4096}
    ; epilogue lanes: n' = l&7, par' = (l>>3)&1, g = l>>4 ; base token s_b = 256 t + 32 n' + 8 g ; t = 2 w + tau
    v_and_b32 v20, 7, v8                     ; n'
    v_bfe_u32 v21, v8, 3, 1                  ; par'
    v_lshrrev_b32 v23, 4, v8                 ; g
    v_lshlrev_b32 v31, 6, v20
    v_lshl_add_u32 v31, v23, 4, v31          ; 64 n' + 16 g
    v_mul_u32_u24 v{VKVW}, {XR_P}, v21
    v_sub_u32 v{VKVW}, v{VKVW}, v31
    s_lshl_b32 s24, s{S_W}, 10
    s_sub_u32 s24, {XRB + 4080 - 512}, s24
    v_add_u32 v{VKVW}, s24, v{VKVW}          ; kv window (tau = 1 ; tau = 0 at +512)
    v_lshrrev_b32 v31, 2, v20
    v_lshlrev_b32 v{VYS}, 17, v31
    v_and_b32 v31, 3, v20
    {YST}
    s_lshl_b32 s60, s{S_D}, 16
    s_and_b32 s61, s{S_D}, 0xffff0000
    v_mov_b32 v{VT0}, {OOB}
    v_mov_b32 v31, 0
    v_cmp_eq_u32 vcc, 0, v0
    s_lshl_b32 s24, s{S_G}, {GSH}
    s_add_u32 s80, s24, {WS_KVT}
    v_cndmask_b32 v{VT0}, v{VT0}, v31, vcc
    s_cmp_eq_u32 s2, 0
    s_cselect_b32 s24, {FL_EPOCH}, {OOB}
    v_add_u32 v{VEP}, s24, v{VT0}
    v_or_b32 v{VEP}, v{VEP}, v{VT0}
    s_add_u32 s81, s80, 4096
    s_add_u32 s82, s80, 8192
    s_add_u32 s83, s80, 12288
    """)
    stamp('setup2')
    def s0publish(lbl):
        E(f"""
        s_cmp_lg_u32 s{S_W}, 0
        s_cbranch_scc1 {lbl}
        v_mov_b32 v31, s{S_XCC}
        s_add_u32 s25, s86, {FL_S0}
        buffer_store_dword v31, v{VF0}, {WSRD}, s25 offen sc1
        """)
        if S0SC:
            E(f"""
            s_and_b32 s24, s{S_XCC}, 7
            s_mul_i32 s25, s24, s24
            s_lshl_b32 s25, s25, 16
            s_lshl_b32 s24, s24, 6
            s_add_u32 s24, s24, s25
            s_add_u32 s24, s24, 1
            s_lshl_b32 s25, s{S_G}, 2
            v_mov_b32 v34, s24
            v_mov_b32 v35, s25
            s_mov_b64 exec, 1
            global_atomic_add v35, v34, s[96:97]
            s_mov_b64 exec, -1
            """)
        E(f"""
        {lbl}:
        """)
    if MKALL and MKPOS == 0:
        E(f"""
        s_cmp_ge_u32 s{S_W}, 2
        s_cbranch_scc1 L_bm2
        s_waitcnt vmcnt({6 + 1 + 4*len(HEARLY) + 2 + (2 if RT == 1 else 0)})
        s_branch L_bmx
        L_bm2:
        {f's_cmp_ge_u32 s2, {RAWTHR}' if RAWTHR else ''}
        {'s_cbranch_scc1 L_bm4' if RAWTHR else ''}
        s_cmp_eq_u32 s{S_W}, 3
        s_cbranch_scc1 L_bm3
        s_waitcnt vmcnt({9 + (11 if RAWPOS == 0 else 0)})
        s_branch L_bmx
        L_bm3:
        s_waitcnt vmcnt({3 + (11 if RAWPOS == 0 else 0)})
        """)
        if RAWTHR:
            E(f"""
            s_branch L_bmx
            L_bm4:
            s_cmp_eq_u32 s{S_W}, 3
            s_cbranch_scc1 L_bm5
            s_waitcnt vmcnt(20)
            s_branch L_bmx
            L_bm5:
            s_waitcnt vmcnt(14)
            """)
        E("""
        L_bmx:
        s_barrier
        """)
        s0publish('L_bmy')
        stamp('bm')
    if MKPOS == 1:
        markers4(fix=False)
        stamp('bm')
    if opt.get('ftouch', 0) == 1:
        l_ = E.label('L_ft')
        E(f"s_cmp_lg_u32 s{S_W}, 0\ns_cbranch_scc1 {l_}\nbuffer_load_dword v{VFT}, v{VFT}, {WSRD}, 0 offen\n{l_}:")
    FTW = FTW2 = ""
    NX0 = (1 if opt.get('ftouch', 0) == 1 else 0) + (1 if MKALL and MKPOS == 0 else 0) + (1 if S0SC else 0)
    NY01 = (4*len(HEARLY) + 2 + (2 if RT else 0)) if MKPOS != 1 else 0
    if RT == 2:
        E(f"s_cmp_ge_u32 s{S_W}, 2\ns_cbranch_scc1 L_rt2")
        rtouch()
        E("L_rt2:")
    if NX0:
        FTW = f"s_cmp_eq_u32 s{S_W}, 0\ns_cbranch_scc1 L_g2c"
        FTW2 = f"L_g2c:\ns_waitcnt vmcnt({NY01 + NX0})\ns_branch L_g2x"
    E(f"""
    s_cmp_ge_u32 s{S_W}, 2
    s_cbranch_scc1 L_g2b
    {FTW}
    s_waitcnt vmcnt({NY01})
    s_branch L_g2x
    {FTW2}
    L_g2b:
    """)
    def kvtouch():
        E(f"""
        v_lshlrev_b32 v{VFT+1}, 12, v8
        s_lshl_b32 s26, s{S_G}, 19
        s_lshl_b32 s27, s{S_M}, 7
        s_sub_u32 s26, s26, s27
        s_add_u32 s26, s26, {WS_KVT + 3968}
        s_add_u32 s27, s26, 262144
        buffer_load_dword v{VFT+2}, v{VFT+1}, {WSRD}, s26 offen
        buffer_load_dword v{VFT+3}, v{VFT+1}, {WSRD}, s27 offen
        """)
    MKT = opt.get('mkt', 0)
    if RAWTHR:
        E(f"s_cmp_lt_u32 s2, {RAWTHR}\ns_cbranch_scc1 L_g2f\ns_waitcnt vmcnt(13)\ns_branch L_g2x\nL_g2f:")
    if RAWPOS == 1:
        E(srd_fix(68, 1835008))
        if MKT == 2:
            E(f"s_cmp_lg_u32 s{S_W}, 3\ns_cbranch_scc1 L_g2e")
            kvtouch()
            E("L_g2e:")
        prep_dma()
        if MKT == 1:
            E(f"s_cmp_lg_u32 s{S_W}, 3\ns_cbranch_scc1 L_g2d")
            kvtouch()
            E("s_waitcnt vmcnt(13)\ns_branch L_g2x\nL_g2d:")
        if MKT == 2:
            E(f"s_cmp_lg_u32 s{S_W}, 3\ns_cbranch_scc1 L_g2d")
            E("s_waitcnt vmcnt(13)\ns_branch L_g2x\nL_g2d:")
    E(f"""
    s_waitcnt vmcnt({13 if RAWPOS == 0 else 11 if RAWPOS == 1 else 2 if MKPOS != 1 else 0})
    L_g2x:
    """)
    stamp('i_b')
    if MKPOS == 2: markers4(fix=False)
    E.vmq = []
    E.wait_ds('pad')
    E("s_barrier")
    if MKPOS == 1: s0publish('L_bmy')
    stamp('b0')
    S0R = 24
    def s0poll():
        if S0SC:
            E(f"""s_lshl_b32 s28, s{S_G}, 2
            s_cmp_lt_u32 s{S_W}, 2
            s_cbranch_scc0 L_s0pv
            s_load_dword s29, s[96:97], s28 glc
            s_branch L_s0pw
            L_s0pv:""")
        E.vm(f"buffer_load_dwordx4 v[{S0R}:{S0R+3}], v30, {WSRD}, 0 offen sc1", 's0')
        if S0SC: E("L_s0pw:")
    S0AT = opt.get('s0at', 1)
    if S0AT == 0: s0poll()
    KR, VRW_ = 32, 44
    for x in range(0, 8, 2): E.ds(f"ds_read2_b32 v[{KR+x}:{KR+x+1}], v54 offset0:{32*x} offset1:{32*(x+1)}", 'kv')
    E(f"v_add_u32 v20, {TBS}, v54\nv_add_u32 v21, {TBS}, v55")
    for x in range(8, 12, 2): E.ds(f"ds_read2_b32 v[{KR+x}:{KR+x+1}], v20 offset0:{32*(x-8)} offset1:{32*(x-7)}", 'kv')
    for x in range(0, 8, 2): E.ds(f"ds_read2_b32 v[{VRW_+x}:{VRW_+x+1}], v55 offset0:{32*x} offset1:{32*(x+1)}", 'kv')
    E.ds(f"ds_read_b32 v{VRW_+8}, v21", 'kv')
    if RAWPOS == 2:
        E(f"s_cmp_lt_u32 s{S_W}, 2\ns_cbranch_scc1 L_rw2")
        E(srd_fix(68, 1835008))
        prep_dma()
        E("L_rw2:")
    E(f"""
    v_lshlrev_b32 v136, 16, v{SK}
    v_lshlrev_b32 v137, 16, v{SK+2}
    v_and_b32 v138, s{S_HI}, v{SK}
    v_and_b32 v139, s{S_HI}, v{SK+2}
    v_lshlrev_b32 v140, 16, v{SK+1}
    v_lshlrev_b32 v141, 16, v{SK+3}
    v_and_b32 v142, s{S_HI}, v{SK+1}
    v_and_b32 v143, s{S_HI}, v{SK+3}
    """)
    E.wait_ds('kv')
    for i in range(12): E(f"v_lshlrev_b32 v{96+2*i}, 16, v{KR+i}\nv_and_b32 v{97+2*i}, s{S_HI}, v{KR+i}")
    if S0AT == 1: s0poll()
    for i in range(9): E(f"v_lshlrev_b32 v{164+2*i}, 16, v{VRW_+i}\nv_and_b32 v{165+2*i}, s{S_HI}, v{VRW_+i}")
    def K(x): return f"v[{96+2*x}:{97+2*x}]"
    def KV(i): return 144 + 2*i
    KVI = range(1, 9) if P1 else range(9)
    for i in KVI: E(f"v_pk_mul_f32 v[{KV(i)}:{KV(i)+1}], v[136:137], {K(i+3)}")
    if S0AT == 2: s0poll()
    for tap in (1, 2, 3):
        for i in KVI: E(f"v_pk_fma_f32 v[{KV(i)}:{KV(i)+1}], v[{136+2*tap}:{137+2*tap}], {K(i+3-tap)}, v[{KV(i)}:{KV(i)+1}]")
    if S0AT == 3: s0poll()
    for i in KVI: E(f"v_pk_mul_f32 v[{KV(i)}:{KV(i)+1}], v[{KV(i)}:{KV(i)+1}], v[{164+2*i}:{165+2*i}]")
    if MKPOS == 2:
        assert S0AT == 4
        if RAWPOS == 2 and not MKW:
            E(f"s_cmp_ge_u32 s{S_W}, 2\ns_cbranch_scc1 L_mq2\ns_waitcnt vmcnt(0)\ns_branch L_mq3\nL_mq2:\ns_waitcnt vmcnt(11)\nL_mq3:")
        elif MKW:
            E(f"s_cmp_ge_u32 s{S_W}, 2\ns_cbranch_scc1 L_mq2\ns_waitcnt vmcnt(0)\nL_mq2:")
        else: E("s_waitcnt vmcnt(0)")
        stamp('mq')
        E("s_barrier")
        s0publish('L_bmy')
        stamp('bm')
    if S0AT == 4: s0poll()
    for c in range(2):
        for par in range(1 if P1 else 2):
            b = KR + 8*c + 4*par
            for d in range(4): E(f"v_cvt_pk_bf16_f32 v{b+d}, v{KV(8-par-2*d)+c}, v{KV(7-par-2*d)+c}")
            E.vm(f"buffer_store_dwordx4 v[{b}:{b+3}], v53, {WSRD}, s{80 + (c if P1 else 2*c + par)} offen" + FL('kv', 0), 'kvst')
    stamp('kvst')

    X, Y = 128, 136
    XF, YF, T = 144, 160, 176
    def stats(src, rnd, between=None, scale=False, pre=None):
        P, Q = 192, 194
        E(f"v_pk_add_f32 v[{P}:{P+1}], v[{src}:{src+1}], v[{src+2}:{src+3}]")
        E(f"v_pk_mul_f32 v[{Q}:{Q+1}], v[{src}:{src+1}], v[{src}:{src+1}]")
        for i in range(1, 8):
            E(f"v_pk_fma_f32 v[{Q}:{Q+1}], v[{src+2*i}:{src+2*i+1}], v[{src+2*i}:{src+2*i+1}], v[{Q}:{Q+1}]")
            if i >= 2: E(f"v_pk_add_f32 v[{P}:{P+1}], v[{P}:{P+1}], v[{src+2*i}:{src+2*i+1}]")
        E(f"""
        v_add_f32 v{P}, v{P}, v{P+1}
        v_add_f32 v{Q}, v{Q}, v{Q+1}
        v_permlane16_swap_b32 v{P}, v{Q}
        v_add_f32 v{P}, v{P}, v{Q}
        v_add_f32_dpp v{P}, v{P}, v{P} row_ror:8 row_mask:0xf bank_mask:0xf
        v_mov_b32 v{P+1}, v{P}
        v_permlane32_swap_b32 v{P}, v{P+1}
        v_add_f32 v{P}, v{P}, v{P+1}
        s_mov_b64 exec, 0x00ff00ff
        """)
        E.ds(f"ds_write_b32 v{VSTW}, v{P} offset:{rnd*256}", 'stw')
        E("s_mov_b64 exec, -1")
        E.wait_ds('stw')
        if pre: pre()
        E("s_barrier")
        E.ds(f"ds_read_b128 v[196:199], v{VSTR} offset:{rnd*256}", 'str')
        E.ds(f"ds_read_b128 v[200:203], v{VSTR} offset:{rnd*256+16}", 'str')
        if between: between()
        E.wait_ds('str')
        E(f"""
        v_pk_add_f32 v[196:197], v[196:197], v[198:199]
        v_pk_add_f32 v[200:201], v[200:201], v[202:203]
        v_pk_add_f32 v[196:197], v[196:197], v[200:201]
        v_mul_f32 v196, 0x3b000000, v196
        v_mul_f32 v197, 0x3b000000, v197
        v_fma_f32 v197, -v196, v196, v197
        v_max_f32 v197, 0, v197
        v_add_f32 v197, 0x3727c5ac, v197
        v_rsq_f32 v204, v197
        s_nop 0
        """)
        if scale: E(f"v_mul_f32 v204, {LOG2E:#x}, v204")
        E("v_mul_f32_e64 v206, -v196, v204")
    def norm(dst, src):
        for i in range(8):
            E(f"v_pk_fma_f32 v[{dst+2*i}:{dst+2*i+1}], v[{src+2*i}:{src+2*i+1}], v[204:205], v[206:207] op_sel_hi:[1,0,0]")
    def unpack(dst, src, n):
        for i in range(n):
            E(f"v_lshlrev_b32 v{dst+2*i}, 16, v{src+i}")
            E(f"v_and_b32 v{dst+2*i+1}, s{S_HI}, v{src+i}")
    S_XMD = 64
    def R_pre(L, between=None, pre=None):
        unpack(XF, X, 8)
        if P1 and L == 1:
            for i in range(8): E(f"v_pk_add_f32 v[{XF+2*i}:{XF+2*i+1}], v[{XF+2*i}:{XF+2*i+1}], v[{T+2*i}:{T+2*i+1}]")
            if opt.get('x2r', 0):
                for i in range(8): E(f"v_cvt_pk_bf16_f32 v{X+i}, v{XF+2*i}, v{XF+2*i+1}")
                unpack(XF, X, 8)
        stats(XF, 0, between, pre=pre)
        norm(T, XF)
        stamp(f'R{L}s1')
    def R_post(L, early=None, late=None, pre=None):
        RO = opt.get('ropt', 0)
        if not (RO and L == 1): unpack(YF, Y, 8)
        for i in range(8):
            E(f"v_pk_fma_f32 v[{XF+2*i}:{XF+2*i+1}], v[{T+2*i}:{T+2*i+1}], v[{YF+2*i}:{YF+2*i+1}], v[{XF+2*i}:{XF+2*i+1}]")
        M = 20 if (P1 and L == 0) else 208
        MLATE = RO and P1 and (L == 0 or opt.get('xmlate', 0))
        def mcvt():
            for i in range(8): E(f"v_cvt_pk_bf16_f32 v{M+i}, v{XF+2*i}, v{XF+2*i+1}")
        if not MLATE: mcvt()
        def xmst():
            if P1 and L == 0: return
            if P1: E(f"s_add_u32 s{S_T0}, s{S_R}, s{S_XMD}\ns_add_u32 s{S_T1}, s{S_T0}, 4096")
            else: sadd(S_T0, S_R, WS_XM); sadd(S_T1, S_R, WS_XM + 4096)
            E.vm(f"buffer_store_dwordx4 v[{M}:{M+3}], v{VR}, {WSRD}, s{S_T0} offen" + FL('xm', L), 'rst')
            E.vm(f"buffer_store_dwordx4 v[{M+4}:{M+7}], v{VR}, {WSRD}, s{S_T1} offen" + FL('xm', L), 'rst')
        def behind():
            xmst()
            E.vm(f"buffer_store_dword v{VONE}, v{VEP}, {WSRD}, 0 offen sc1", 'ep')
            if late: late()
        XML = P1 and L == 1 and opt.get('xmlate', 0)
        if L == 1 and not XML: xmst()
        if early: early()
        stats(XF, 1, between=behind if L == 0 else late, scale=True, pre=pre)
        norm(T, XF)
        N = 216
        for i in range(8): E(f"v_cvt_pk_bf16_f32 v{N+i}, v{T+2*i}, v{T+2*i+1}")
        sadd(S_T0, S_R, WS_XN); sadd(S_T1, S_R, WS_XN + 4096)
        E.vm(f"buffer_store_dwordx4 v[{N}:{N+3}], v{VR}, {WSRD}, s{S_T0} offen" + FL('xn', L), 'rst')
        E.vm(f"buffer_store_dwordx4 v[{N+4}:{N+7}], v{VR}, {WSRD}, s{S_T1} offen" + FL('xn', L), 'rst')
        if MLATE: mcvt()
        if XML:
            for i in range(8): E(f"v_accvgpr_write_b32 a{A_Y+i}, v{M+i}")
        stamp(f'R{L}st')
    def Rpub(L):
        publish(S_FXNS, 0, 'rst')
        E("s_barrier")
        stamp(f'R{L}pub')

    ORDER = {}
    def g2_order():
        stA = [0, 1, 2]; stB = [3, 4, 5]; stC = [6]
        def blocks(tt, ps): return [(tt, rho, p) for p in ps for rho in range(4)]
        b1 = blocks(1, stB); nb1 = opt.get('b1_first', 4)
        return blocks(0, stA) + blocks(1, stA) + blocks(0, stB) + b1[:nb1] + blocks(0, stC) + b1[nb1:] + blocks(1, stC)
    def wd_kseq(L):
        kseq = []
        for (tt, rho, p) in g2_order():
            kp = rho*7 + LAYERS[L]['tau'][p]
            if kp not in kseq: kseq.append(kp)
        if opt.get('rot', 0): kseq.sort(key=lambda kp: kp // 7)
        return kseq
    def make_bulk():
        c = LAYERS[0]; ops = []
        ks = wd_kseq(0); npre = opt.get('wd_pre', 0)
        if opt.get('w1rot', 0):
            assert c['tau'][:3] == [0, 1, 2] and c['slot'][:3] == [2, 3, 4]
            ops.append((4, False, lambda: E(f"s_lshr_b32 s66, s{S_C}, 3\ns_mul_i32 s67, s66, 61440\ns_mul_i32 s66, s66, 36864")))
            for u in range(6):
                f_ = (u >> 1)*32768 + (u & 1)*4096
                ins = 's_add_u32' if u < 3 else 's_sub_u32'; d_ = 67 if u % 3 == 1 else 66
                ops.append((4, False, lambda f_=f_, ins=ins, d_=d_: E(f"s_add_u32 m0, s{S_W1K}, {2*SLOT + f_}\n{ins} m0, m0, s{d_}")))
                ops.append((4, False, lambda f_=f_, ins=ins, d_=d_: (sadd(S_DA, S_W1, f_), E(f"{ins} s{S_DA}, s{S_DA}, s{d_}"))))
                for i in range(4):
                    ops.append((4, True, lambda off=i*1024, u=u: E.vm(f"buffer_load_dwordx4 v{VL16}, {WSRD}, s{S_DA} offen" + (f" offset:{off}" if off else "") + " lds", f'w1_{u >> 1}')))
        else:
            for p in range(3): ops += dma_stream(c['tau'][p], c['slot'][p], f'w1_{p}')
        ops += wd_stream(ks[:npre])
        ops += dma_stream(c['tau'][3], c['slot'][3], 'w1_3')
        if not opt.get('nowd', 0): ops += wd_stream(ks[max(npre, 4*opt.get('wdd', 0)):])
        return Bulk(ops)
    BK = {}

    def layer(L):
        cfg = LAYERS[L]; tau = cfg['tau']; slot = cfg['slot']
        O = lambda k, d: opt.get(f'{k}{L}', opt.get(k, d))
        G2 = 224; NS = 336; lastslot = NS - 1
        BUD = O('bud', 24); VGAP = O('vgap', 2)
        F = {}; cost = [0]*(NS + 64); vslots = set()
        for i in range(G2):
            if i + LA < G2: cost[i] += 4
            if i % 2 == 0: cost[i] += 4
            if i < 96 and i % 3 == 0 and i > 0: cost[i] += 4
        for i in range(G2, NS, 2): cost[i] += 4
        RANK = {'m': 0, 's': 1, 'v': 2}
        def at(i, f, c=4, k='v'): F.setdefault(i, ([], [], []))[RANK[k]].append(f); cost[i] += c
        last = {'k': 'm', 't': -1}
        def put(t, f, c=4, k='v', vm=False, chain=False):
            if vm: k = 'm'
            if chain:
                t = max(t, last['t'] + (1 if RANK[k] < RANK[last['k']] else 0))
            while cost[t] + c > BUD or (vm and any((t + d) in vslots for d in range(-VGAP + 1, VGAP))): t += 1
            if vm: vslots.add(t)
            at(t, f, c, k); last['k'] = k; last['t'] = t
            return t
        def stream(t, ops):
            first = True
            for (c, vm, f) in ops:
                t = put(t, f, c, 's', vm, chain=not first); first = False
            return t
        def T_(s): return lambda: E(s)
        def barrier(): E("s_barrier")
        poll_issue(VP16, S_FXNL, 0, f'pxn{L}')
        if L == 0: BK['b'].emit(opt.get('bk_pub', 0))
        poll_check(VP16, S_FXNL, 0, f'pxn{L}')
        stamp(f'L{L}xnok')
        def xops(k):
            ops = []
            if k % 4 == 0: ops.append((4, False, lambda: sadd(S_XA, S_XNL, WS_XN + (k >> 2)*4096)))
            off = (k & 3)*1024
            ops.append((4, True, lambda: E.vm(f"buffer_load_dwordx4 v[{XR+4*k}:{XR+4*k+3}], v{VL16}, {WSRD}, s{S_XA} offen" + (f" offset:{off}" if off else "") + LSC, f'x{L}_{k}')))
            return ops
        n_up = O('nup', 5)
        for k in range(n_up):
            for (_, _, f) in xops(k): f()
        seq = []
        for k in range(32):
            for p in range(3): seq.append(('g1', p, k))
        for p in range(3, 7):
            for k in range(32): seq.append(('g1', p, k))
        accp = [0, 1, 2, 3, 0, 1, 2]
        def a_addr(p, k):
            s = slot[p]
            base = [VL16, VL16, VA1, VA1, VA2][s]
            off = (s & 1)*SLOT + k*1024 if s < 4 else k*1024
            return base, off
        def rd(i):
            _, p, k = seq[i]
            b, off = a_addr(p, k)
            r = RING + 4*(i % 8)
            E.ds(f"ds_read_b128 v[{r}:{r+3}], v{b} offset:{off}", f'a{L}_{i}')
        order = g2_order()
        assert len(order) == 56
        last0 = max(n for n, b in enumerate(order) if b[0] == 0)
        acc2 = {0: [ACC[0], ACC[1]], 1: [ACC[3], ACC[2]]}
        NH = 37
        def hreg(n):
            q = n % NH
            return ar(A_H + 4*q, 4) if q < 5 else vr(XR + 4*(q - 5), 4)
        def epilogue(p, o):
            c = ACC[accp[p]]
            for e in range(8):
                at(o + e, T_(f"v_exp_f32_e64 v{c+e}, -v{c+e}"), 8)
                at(o + e + 1, T_(f"v_add_f32 v{c+e}, 1.0, v{c+e}"))
                at(o + 8 + e, T_(f"v_rcp_f32 v{c+e}, v{c+e}"), 8)
                at(o + 9 + e, T_(f"v_mul_f32 v{c+e}, v{c+e}, v{c+8+e}"))
        def epilogue2(p, o):
            c = ACC[accp[p]]
            t = 0
            for k in range(4):
                t = put(max(t, o + 11 + 2*k), T_(f"v_cvt_pk_bf16_f32 v{c+8+k}, v{c+2*k}, v{c+2*k+1}"))
            stage = 'A' if p < 3 else ('B' if p < 6 else 'C')
            put(o + 10, T_(f"s_add_u32 s{S_HS[p & 1]}, s{S_HST}, {WS_H + tau[p]*4096}"), k='s')
            return put(t + 1, lambda: E.vm(f"buffer_store_dwordx4 v[{c+8}:{c+11}], v{VL16}, {WSRD}, s{S_HS[p & 1]} offen" + FL('h', L), f'h{stage}{L}'), vm=True)
        eo = [99, 115, 131, 147, 163, 196, 228]
        for p in range(7): epilogue(p, eo[p])
        est = [epilogue2(p, eo[p]) for p in range(7)]
        assert est[0] < 126 and est[1] < 158 and est[2] < 190 and est[5] < 222 and est[6] < 248, est
        at(121, lambda: (E.wait_vm(f'w4{L}'), barrier()), 8, 's')
        at(96, barrier, 4, 's')
        at(153, lambda: (E.wait_vm(f'w5{L}'), barrier()), 8, 's')
        at(185, lambda: (E.wait_vm(f'w6{L}'), barrier()), 8, 's')
        t = 0
        for k in range(n_up, 32):
            t = stream(max(t + (1 if k % 4 == 0 and k > n_up else 0), O('xsp', 2)*(k - n_up)), xops(k))
        XML = P1 and L == 1 and opt.get('xmlate', 0)
        if XML:
            t = stream(t + 1, [(4, False, lambda: E(f"s_add_u32 s{S_XA}, s{S_R}, s{S_XMD}")),
                               (4, True, lambda: E.vm(f"buffer_store_dwordx4 {ar(A_Y, 4)}, v{VR}, {WSRD}, s{S_XA} offen sc1", 'xms')),
                               (4, False, lambda: E(f"s_add_u32 s{S_XA}, s{S_XA}, 4096")),
                               (4, True, lambda: E.vm(f"buffer_store_dwordx4 {ar(A_Y+4, 4)}, v{VR}, {WSRD}, s{S_XA} offen sc1", 'xms'))])
        t = stream(t + 1, dma_stream(tau[4], slot[4], f'w4{L}'))
        w4end = t
        t = stream(97, dma_stream(tau[5], slot[5], f'w5{L}'))
        w5end = t
        t = stream(t + 1, dma_stream(tau[6], slot[6], f'w6{L}'))
        w6end = t
        assert w4end < 108 and w5end < 140 and w6end < 172, (w4end, w5end, w6end)
        if L == 0 and opt.get('htg'):
            def ht_ops(p0, np_):
                ops = [(4, False, lambda x=x: E(x)) for x in (f"v_lshrrev_b32 v30, 3, v8", f"v_min_u32 v30, {np_-1}, v30", f"v_lshlrev_b32 v30, 12, v30", f"v_and_b32 v31, 7, v8", f"v_lshl_add_u32 v30, v31, 7, v30")]
                return ops + [(4, False, lambda: E(f"s_add_u32 s{S_T2}, s{S_HST}, {WS_H + tau[p0]*4096}")),
                        (4, True, lambda: E.vm(f"buffer_load_dword v31, v30, {WSRD}, s{S_T2} offen", 'ht'))]
            assert tau == list(range(7))
            m = opt['htg']
            if m == 1:
                stream(w4end - 6, ht_ops(0, 3)); stream(w5end - 6, ht_ops(3, 4))
            elif m == 2:
                stream(w4end - 6, ht_ops(0, 7))
            elif m == 3:
                stream(2, ht_ops(0, 7))
        if L == 0 and WDC and not opt.get('wcr', 0):
            assert all(getattr(o[2], 'info', None) is not None for o in BK['b'].ops) and len(BK['b'].ops) == 28*3, 'no Wd load in front of the S1C check'
            def wc_cmp(first):
                return "\n".join(["v_accvgpr_read_b32 v30, a232", "v_accvgpr_read_b32 v31, a233", f"v_xor_b32 v30, s{S_N}, v30", f"v_xor_b32 v31, s{S_N}, v31", "v_or_b32 v30, v30, v31",
                                  "v_accvgpr_read_b32 v31, a234", f"v_xor_b32 v31, s{S_N}, v31", "v_or_b32 v30, v30, v31",
                                  "v_accvgpr_read_b32 v31, a235", f"v_xor_b32 v31, s{S_N}, v31", "v_or_b32 v30, v30, v31", "v_cmp_ne_u32 vcc, 0, v30"])
            wld = f"buffer_load_dwordx4 a[232:235], v9, {WSRD}, 0 offen sc1"
            E(f"v_lshlrev_b32 v9, 7, v8\nv_add_u32 v9, {FL_S1C}, v9")
            E.vm(wld, 'wcp')
            t = put(O('wcc', 40), lambda: E.wait_vm('wcp'), k='s')
            for ln in wc_cmp(0).split('\n'): t = put(t, T_(ln), chain=True)
            def wc_branch():
                ls = E.label('L_wcs'); lb = E.label('L_wcb'); ll = E.label('L_wcl')
                E(f"s_cbranch_vccnz {ls}\n{lb}:")
                E.out_of_line(f"""
                {ls}:
                s_mov_b32 s{S_T3}, 0
                {ll}:
                {wld}
                s_add_u32 s{S_T3}, s{S_T3}, 1
                s_waitcnt vmcnt(0)
                {wc_cmp(1)}
                s_nop 4
                s_cbranch_vccz {lb}
                s_cmp_lt_u32 s{S_T3}, 0x2000
                s_cbranch_scc1 {ll}
                s_branch {lb}""")
            t = put(t + 2, wc_branch, k='s')
            assert t < O('wd_at', 70) - 1, t
        XM0 = 20; XM1 = 24
        def xm_ops(tt):
            return [(4, False, (lambda: sadd(S_XA, S_XML, WS_XM + tt*32768)) if not P1 else (lambda: E(f"s_add_u32 s{S_XA}, s{S_XML if tt == 0 else S_XA}, {f's{S_XMD}' if tt == 0 else 32768}"))),
                    (4, True, lambda: E.vm(f"buffer_load_dwordx4 v[{XM0+4*tt}:{XM0+4*tt+3}], v{VL16}, {WSRD}, s{S_XA} offen" + LSC, f'xm{L}'))]
        NOXM = P1 and L == 0
        if not NOXM: stream(stream(O('xm_at', 152) if not XML else 186, xm_ops(0)) + 1, xm_ops(1))
        fh = 0
        pub = {}; chk = {}
        for (st_, k, e) in (('A', 0, est[2]), ('B', 1, est[5]), ('C', 2, est[6])):
            tp = put(O('pub' + st_, e + 12), lambda st_=st_: E.wait_vm(f'h{st_}{L}'), k='s')
            tp = put(tp, lambda st_=st_, k=k: publish(S_FHS, fh + 256*k, f'h{st_}{L}', wait=False), 4, 'm', chain=True)
            tq = put(O('poll' + st_, tp + 8), lambda st_=st_, k=k: poll_issue(VP8, S_FHL, fh + 256*k, f'p{st_}{L}'), 4, 'm')
            tc = put(O('chk' + st_, tq + (12 if st_ == 'A' else 14)), lambda st_=st_: E.wait_vm(f'p{st_}{L}'), k='s')
            tc = put(tc, lambda st_=st_, k=k: poll_check(VP8, S_FHL, fh + 256*k, f'p{st_}{L}', wait=False), 8, 'v', chain=True)
            pub[st_] = tp; chk[st_] = tc
        if XML: assert pub['A'] > 121 and chk['A'] < 185
        if L == 0 and opt.get('x2m', 0) and not MODE['slow']:
            assert chk['A'] < 185 and P1
            pre = [f"s_lshr_b32 s{S_T2}, s{S_W}, 1", f"s_cmp_eq_u32 s{S_T2}, s{S_TH}", f"s_cselect_b32 s{S_T2}, 0, {OOB}", f"v_add_u32 v30, s{S_T2}, v{VR}",
                   f"s_lshl_b32 s{S_T2}, s{S_W}, 13", f"s_sub_u32 s{S_T1}, s{S_R}, s{S_T2}", f"s_and_b32 s{S_T2}, s{S_W}, 1", f"s_lshl_b32 s{S_T2}, s{S_T2}, 14",
                   f"s_add_u32 s{S_T1}, s{S_T1}, s{S_T2}", f"s_add_u32 s{S_T1}, s{S_T1}, {WS_XN}"] + [f"v_accvgpr_write_b32 a{232+e}, -1" for e in range(4)]
            t = O('x2p', 188) - 20
            t = put(t, T_("\n".join(pre[:3])), 12, 's')
            for ln in pre[3:]: t = put(t, T_(ln), 4, 's' if ln.startswith('s_') else 'v', chain=True)
            t = max(t + 1, O('x2p', 188))
            for i_ in range(4):
                if i_: t = put(t, T_(f"s_add_u32 s{S_T1}, s{S_T1}, 4096"), 4, 's', chain=True)
                t = put(t + (1 if i_ else 0), lambda: E.vm(f"buffer_store_dwordx4 a[232:235], v30, {WSRD}, s{S_T1} offen", 'x2p'), vm=True, chain=True)
            assert 185 < O('x2p', 188) and t < est[6], t
        hslot = {}
        for n0 in range(0, 56, 4):
            tt, _, p = order[n0]
            sreg = S_HA[(n0 >> 2) & 1]
            rdy = chk['A' if p < 3 else 'B' if p < 6 else 'C'] + 1
            prev = max([hslot[m] for m in range(max(0, n0 - 8), max(0, n0 - 4))], default=0)
            ta = put(max(prev, rdy - 3), lambda tt=tt, p=p, sreg=sreg: E(f"s_add_u32 s{sreg}, s{S_HLD}, {WS_H + tt*114688 + tau[p]*4096}"), k='s') + 1
            for n in range(n0, n0 + 4):
                assert order[n][0] == tt and order[n][2] == p and order[n][1] == n - n0
                q = n % NH
                if n < NH: free = 0 if q < 5 else 192 + (q - 5) + 1
                else: free = G2 + 2*(n - NH) + 2
                off = (n - n0)*1024
                hslot[n] = put(max(rdy, free, ta), lambda n=n, sreg=sreg, off=off: E.vm(f"buffer_load_dwordx4 {hreg(n)}, v{VL16}, {WSRD}, s{sreg} offen" + (f" offset:{off}" if off else "") + LSC, f'h{L}_{n}'), vm=True)
                assert hslot[n] < G2 + 2*n - 6, (L, n, hslot[n])
        if opt.get('verbose'): print('L', L, 'est', est, 'w', w4end, w5end, w6end, 'pub', pub, 'chk', chk, 'h', [hslot[n] for n in range(56)])
        if L == 1 and opt.get('wbat', 0) and not MODE['slow']:
            def wb_():
                l1 = E.label('L_wb'); l2 = E.label('L_wbx')
                one = f"s_lshr_b32 s{S_T0}, s{S_C}, 3\ns_or_b32 s{S_T2}, s{S_T2}, s{S_T0}\n" if opt.get('wbone', 0) else ""
                msk = f"s_and_b32 s{S_T2}, s{S_T2}, {opt['wbmask']}\n" if 'wbmask' in opt else ""
                E(f"s_lshl_b32 s{S_T2}, s{S_W}, 4\ns_or_b32 s{S_T2}, s{S_T2}, s{S_ROLE}\n{one}{msk}s_cmp_eq_u32 s{S_T2}, {opt.get('wbwho', 0)}\ns_cbranch_scc1 {l1}")
                E.vm(f"buffer_load_dword v31, v{VF0}, {WSRD}, s{S_T1} offen", 'wb')
                E(f"s_branch {l2}\n{l1}:\nbuffer_wbl2 sc1\n{l2}:")
            t = put(opt['wbat'] - 2, T_(f"s_mov_b32 s{S_T1}, {OOB}"), 4, 's')
            put(max(t + 1, opt['wbat']), wb_, 16, 's', vm=True)
        if L == 0:
            firstuse = {}
            for n, (tt, rho, p) in enumerate(order): firstuse.setdefault(rho*7 + tau[p], G2 + 2*n)
            t = O('wd_at', 70)
            if opt.get('wdt', 0):
                assert WDC and opt.get('wcr', 0)
                ta = O('wdt_at', 40); tsp = O('wdt_sp', 4)
                assert ta + tsp < t - 2
                pre = [f"s_lshr_b32 s26, s{S_C}, 3", "s_lshl_b32 s26, s26, 1", f"s_add_u32 s26, s26, s{S_TH}", "s_mul_i32 s26, s26, 14336", f"s_add_u32 s26, s26, s{S_WDB}",
                       "v_lshlrev_b32 v240, 7, v8", "v_min_u32 v241, 47, v8", "v_lshlrev_b32 v241, 7, v241", "v_add_u32 v241, 8192, v241"]
                for i_, ln in enumerate(pre): at(ta - 12 + i_, T_(ln), 4, 's' if ln.startswith('s_') else 'v')
                for i_ in range(2):
                    tt_ = ta + i_*tsp
                    while tt_ in vslots: tt_ += 1
                    vslots.add(tt_)
                    at(tt_, lambda i_=i_: E.vm(f"buffer_load_dword v{240+i_}, v{240+i_}, {WSRD}, s26 offen", 'wdt'), 4, 'm')
                    assert tt_ < t - 1
            rest_ops = BK['b'].ops; BK['b'].ops = []
            kcur = None
            for (c_, vm_, f_) in rest_ops:
                info = getattr(f_, 'info', None)
                assert info is not None and info[0] == 'wd', 'only Wd loads may be left for G1'
                if not vm_:
                    at(t - 1, f_, 0, 's')
                else:
                    while t in vslots: t += 1
                    assert t < firstuse[info[1]] - 8, ('Wd deadline', info, t)
                    at(t, f_, 0, 'm'); t += O('wd_sp', 2)
            if opt.get('verbose'): print('last Wd load at', t)
        RB = RING
        def red_write_ops(tt):
            ops = []
            for m in (1, 3, 2):
                pd, g = m & 1, m >> 1
                src = acc2[tt][pd] + 8*g
                for hlf in range(2):
                    ops.append(lambda m=m, src=src, hlf=hlf: E.ds(f"ds_write_b128 v{VRW[m-1]}, v[{src+4*hlf}:{src+4*hlf+3}] offset:{1024*hlf}", f'rw{L}{tt}'))
            return ops
        def red_read_ops(tt):
            ops = []
            for m in range(3):
                for hlf in range(2):
                    ops.append(lambda m=m, hlf=hlf: E.ds(f"ds_read_b128 v[{RB+8*m+4*hlf}:{RB+8*m+4*hlf+3}], v{VRR} offset:{2048*m+1024*hlf}", f'rr{L}{tt}'))
            return ops
        def out_store(tt, src):
            if L == 0:
                sadd(S_T0, S_XML, WS_XN + tt*32768)
                E.vm(f"buffer_store_dwordx4 v[{src}:{src+3}], v{VL16}, {WSRD}, s{S_T0} offen", f'x2{tt}')
            else:
                sadd(S_T0, 30, tt*32768)
                E.vm(f"buffer_store_dwordx4 v[{src}:{src+3}], v28, s[{S_OUT}:{S_OUT+3}], s{S_T0} offen" + (FL('o', L) or FL(f'ot{tt}', '')), f'o2{tt}')
        if L == 1:
            def out_setup():
                return [T_(x) for x in f"""v_and_b32 v28, 31, v0
                v_lshlrev_b32 v28, 10, v28
                v_bfe_u32 v29, v0, 5, 1
                v_lshl_add_u32 v28, v29, 4, v28
                s_lshl_b32 s30, s{S_C}, 17
                s_lshl_b32 s25, s{S_TH}, 16
                s_add_u32 s30, s30, s25
                s_and_b32 s25, s{S_W}, 1
                s_lshl_b32 s25, s25, 1
                s_lshr_b32 s26, s{S_W}, 1
                s_add_u32 s25, s25, s26
                s_lshl_b32 s26, s{S_J}, 2
                s_add_u32 s25, s25, s26
                s_lshl_b32 s25, s25, 5
                s_add_u32 s30, s30, s25""".split('\n')]
            t = 72
            for f in out_setup(): t = put(t, f, k='v', chain=True)
        XU = RB + 24
        if not NOXM:
            t = put(G2 + (26 if not XML else O('xmw', 40)), lambda: E.wait_vm(f'xm{L}'), k='s')
            for e in range(4):
                t = put(t, T_(f"v_lshlrev_b32 v{XU+2*e}, 16, v{XM1+e}"))
                t = put(t, T_(f"v_and_b32 v{XU+1+2*e}, s{S_HI}, v{XM1+e}"))
        m0_last = G2 + 2*last0 + 1
        t = m0_last + 5
        for f in red_write_ops(0): t = put(t, f, 8, 'm')
        t = put(t + 1, lambda: (E.wait_ds(f'rw{L}0'), barrier()), 8, 's')
        t += 1
        for f in red_read_ops(0): t = put(t, f, 4, 'm')
        own = acc2[0][0]
        t = put(t + 3, lambda: E.wait_ds(f'rr{L}0'), k='s')
        tb = t
        for e in range(8): t = put(t, T_(f"v_add_f32 v{RB+e}, v{RB+e}, v{RB+8+e}"))
        for e in range(8): t = put(t, T_(f"v_add_f32 v{own+e}, v{own+e}, v{RB+16+e}"))
        for e in range(4 if not NOXM else 0):
            t = put(t, T_(f"v_lshlrev_b32 v{RB+8+2*e}, 16, v{XM0+e}"))
            t = put(t, T_(f"v_and_b32 v{RB+9+2*e}, s{S_HI}, v{XM0+e}"))
        for e in range(8): t = put(t, T_(f"v_add_f32 v{own+e}, v{own+e}, v{RB+e}"))
        for e in range(8): t = put(t, T_(f"v_fma_f32 v{own+e}, v{own+e}, s{S_LN2}, v{RB+8+e}" if not NOXM else f"v_mul_f32 v{own+e}, s{S_LN2}, v{own+e}"))
        for e in range(4): t = put(t, T_(f"v_cvt_pk_bf16_f32 v{RB+e}, v{own+2*e}, v{own+2*e+1}"))
        t = put(t + 1, lambda: out_store(0, RB), 8, 'm')
        if opt.get('verbose'): print('tt0 reduction done at', t)
        put(tb + 1, barrier, k='s')
        E.wait_vm(f'x{L}_0')
        stamp(f'L{L}g1')
        for i in range(LA): rd(i)
        def emit_fill(i, mid=None):
            fm, fs, fv = F.pop(i, ([], [], []))
            if mid: mid()
            for f in fm + fs + fv: f()
        for i in range(224):
            _, p, k = seq[i]
            stamp(f'L{L}s{i}')
            if p < 3 and (i % 3) == 0 and k > 0: E.wait_vm(f'x{L}_{k}')
            if i % 2 == 0: E.wait_ds(f'a{L}_{i+1}')
            r = RING + 4*(i % 8)
            c = ACC[accp[p]]
            E(f"v_mfma_f32_32x32x16_bf16 v[{c}:{c+15}], {vr(r, 4)}, v[{XR+4*k}:{XR+4*k+3}], {'0' if k == 0 else f'v[{c}:{c+15}]'}")
            emit_fill(i, (lambda: rd(i + LA)) if i + LA < 224 else None)
        seen_kp = set()
        for n in range(56):
            tt, rho, p = order[n]
            kp = rho*7 + tau[p]
            firstb = not any(o[0] == tt for o in order[:n])
            for ii, pd in enumerate((1, 0) if n in (last0, 55) else (0, 1)):
                i = G2 + 2*n + ii
                stamp(f'L{L}s{i}')
                if ii == 0:
                    E.wait_vm(f'h{L}_{n}')
                    if L == 0 and kp not in seen_kp and not opt.get('nowd', 0) and kp not in wd_kseq(0)[:4*WDD_M]: E.wait_vm(f'wd{kp}'); seen_kp.add(kp)
                c = acc2[tt][pd]
                E(f"v_mfma_f32_32x32x16_bf16 v[{c}:{c+15}], {ar(A_WD + 8*kp + 4*pd, 4)}, {hreg(n)}, {'0' if firstb else f'v[{c}:{c+15}]'}")
                emit_fill(i)
        stamp(f'L{L}g2end')
        for i in sorted(F.keys()):
            assert i > lastslot, i
            emit_fill(i)
        for f in red_write_ops(1): f()
        E.wait_ds(f'rw{L}1'); E("s_barrier")
        for f in red_read_ops(1): f()
        own = acc2[1][0]
        E.wait_ds(f'rr{L}1')
        for e in range(0, 8, 2): E(f"v_pk_add_f32 v[{RB+e}:{RB+e+1}], v[{RB+e}:{RB+e+1}], v[{RB+8+e}:{RB+9+e}]")
        for e in range(0, 8, 2): E(f"v_pk_add_f32 v[{own+e}:{own+e+1}], v[{own+e}:{own+e+1}], v[{RB+16+e}:{RB+17+e}]")
        for e in range(0, 8, 2): E(f"v_pk_add_f32 v[{own+e}:{own+e+1}], v[{own+e}:{own+e+1}], v[{RB+e}:{RB+e+1}]")
        for e in range(0, 8, 2):
            if NOXM: E(f"v_pk_mul_f32 v[{own+e}:{own+e+1}], v[{own+e}:{own+e+1}], s[{S_LN2}:{S_LN2+1}]")
            else: E(f"v_pk_fma_f32 v[{own+e}:{own+e+1}], v[{own+e}:{own+e+1}], s[{S_LN2}:{S_LN2+1}], v[{XU+e}:{XU+e+1}]")
        for e in range(4): E(f"v_cvt_pk_bf16_f32 v{RB+e}, v{own+2*e}, v{own+2*e+1}")
        out_store(1, RB)
        if L == 1 and opt.get('wbend', 0) and not MODE['slow']:
            l2 = E.label('L_wbe')
            E(f"s_lshl_b32 s{S_T2}, s{S_W}, 4\ns_or_b32 s{S_T2}, s{S_T2}, s{S_ROLE}\ns_and_b32 s{S_T2}, s{S_T2}, {opt.get('wbemask', 63)}\ns_cmp_lg_u32 s{S_T2}, 0\ns_cbranch_scc1 {l2}\nbuffer_wbl2 sc1\n{l2}:")
        stamp(f'L{L}st')
        if L == 0 and not (opt.get('x2m', 0) and not MODE['slow']):
            publish(S_FX2S, 0, 'x21')
            stamp('x2pub')

    def marker_check(regs_, reload_, tagname):
        ls = E.label('L_mks'); lb = E.label('L_mkb')
        t = 31
        r = list(regs_)
        E(f"v_max3_u32 v{t}, v{r[0]}, v{r[1]}, v{r[min(2, len(r) - 1)]}"); k = 3
        while k + 1 < len(r): E(f"v_max3_u32 v{t}, v{t}, v{r[k]}, v{r[k+1]}"); k += 2
        if k < len(r): E(f"v_max_u32 v{t}, v{t}, v{r[k]}")
        E(f"v_cmp_eq_u32 vcc, -1, v{t}\ns_cbranch_vccnz {ls}\n{lb}:")
        ll = E.label('L_mkl')
        txt = f"{ls}:\ns_mov_b32 s{S_T3}, 0\n{ll}:\n"
        for i, x in enumerate(r):
            l2 = E.label('L_mkn')
            txt += f"""v_cmp_eq_u32 vcc, -1, v{x}
            s_cbranch_vccz {l2}
            {reload_(i)}
            {l2}:
            """
        txt += f"s_add_u32 s{S_T3}, s{S_T3}, 1\ns_waitcnt vmcnt(0)\n"
        if stamps and opt.get('cnt'): txt += f"s_add_u32 s{S_EXP}, s{S_EXP}, {16 if tagname == 'y' else 256}\n"
        txt += f"v_max3_u32 v{t}, v{r[0]}, v{r[1]}, v{r[min(2, len(r) - 1)]}\n"; k = 3
        while k + 1 < len(r): txt += f"v_max3_u32 v{t}, v{t}, v{r[k]}, v{r[k+1]}\n"; k += 2
        if k < len(r): txt += f"v_max_u32 v{t}, v{t}, v{r[k]}\n"
        txt += f"""v_cmp_eq_u32 vcc, -1, v{t}
        s_cmp_gt_u32 s{S_T3}, 0x2000
        s_cbranch_vccz {lb}
        s_cbranch_scc0 {ll}
        s_branch {lb}
        """
        E.out_of_line(txt)

    def q16_poll(fl, tag):
        E(f"s_mov_b32 s25, {fl}")
        E.vm(f"buffer_load_dword v{VPOLL}, v30, {WSRD}, s25 offen sc1", tag)
    def q16_check(fl, tag):
        ls = E.label('L_qs'); lb = E.label('L_qb'); ll = E.label('L_ql')
        E.wait_vm(tag)
        E(f"v_cmp_ne_u32 vcc, s{S_N}, v{VPOLL}\ns_cbranch_vccnz {ls}\n{lb}:")
        E.out_of_line(f"""
        {ls}:
        s_mov_b32 s{S_T3}, 0
        s_mov_b32 s25, {fl}
        {ll}:
        buffer_load_dword v{VPOLL}, v30, {WSRD}, s25 offen sc1
        s_add_u32 s{S_T3}, s{S_T3}, 1
        {f's_add_u32 s{S_EXP}, s{S_EXP}, {1 << 18}' if stamps and opt.get('cnt') else ''}
        s_waitcnt vmcnt(0)
        v_cmp_ne_u32 vcc, s{S_N}, v{VPOLL}
        s_nop 4
        s_cbranch_vccz {lb}
        s_cmp_lt_u32 s{S_T3}, 0x2000
        s_cbranch_scc1 {ll}
        s_branch {lb}""")
        stamp(tag)
    SBR = 160
    def s1b_poll():
        E(f"v_lshlrev_b32 v30, 7, v8\nv_add_u32 v30, {FL_S1B}, v30")
        E.vm(f"buffer_load_dwordx4 v[{SBR}:{SBR+3}], v30, {WSRD}, 0 offen sc1", 's1bp')
    def s1b_check():
        all_flags_check(SBR, 30, S_N, 's1bp')
        stamp('s1b')
    PREPE = opt.get('prepe', 0)
    def prep_part(rawwait=None):
        PB = 64
        for i in range(4): E(f"v_mov_b32 v{108+i}, -1")
        def trd(n):
            if SPLIT and n >= 7:
                E(f"ds_read_b64_tr_b16 {ar(4*(n-7), 2)}, v{VTR} offset:{1024*n}")
                E(f"ds_read_b64_tr_b16 {ar(4*(n-7)+2, 2)}, v{VTR} offset:{1024*n + 512}")
                return
            E(f"ds_read_b64_tr_b16 v[{PB+4*n}:{PB+4*n+1}], v{VTR} offset:{1024*n}")
            E(f"ds_read_b64_tr_b16 v[{PB+4*n+2}:{PB+4*n+3}], v{VTR} offset:{1024*n + 512}")
        def pst(n):
            if n < 7:
                if n: E(f"s_add_u32 s{S_W1DST}, s{S_W1DST}, 131072")
                E(f"buffer_store_dwordx4 v[{PB+4*n}:{PB+4*n+3}], v{W1D}, {WSRD}, s{S_W1DST} offen sc1")
            else:
                if n > 7: E(f"s_add_u32 s{S_WDDST}, s{S_WDDST}, 229376")
                E(f"buffer_store_dwordx4 v[{PB+4*n}:{PB+4*n+3}], v{WDD}, {WSRD}, s{S_WDDST} offen sc1")
        stamp_dup('xiss')
        if HLATE:
            E(f"""
            s_and_b32 s25, s{S_W}, 1
            s_add_u32 s24, s{S_CB}, s25
            s_lshl_b32 s24, s24, 12
            s_mul_i32 s25, s25, {HC_CH}
            """)
            h_dma(HLATE, 24, 25)
        if rawwait is not None: E(f"s_waitcnt vmcnt({rawwait + 4*len(HLATE)})")
        for n in range(4): trd(n)
        for n in range(11):
            if n + 4 < 11: trd(n + 4)
            if SPLIT and n >= 7: continue
            E(f"s_waitcnt lgkmcnt({2*min(4, 10 - n)})")
            if n >= 7 and opt.get('xnowd'): E(f"buffer_store_dword v{PB}, v{VT0}, {WSRD}, 0 offen offset:64")
            else: pst(n)
        for i in range(4 if not YSPL else 0):
            if i: E(f"s_add_u32 s{S_YP}, s{S_YP}, 262144")
            if opt.get('xnoym'): E(f"buffer_store_dword v{PB}, v{VT0}, {WSRD}, 0 offen offset:64")
            else: E(f"buffer_store_dwordx4 v[108:111], v{VYP}, {WSRD}, s{S_YP} offen sc1")
    def conv():
        lx = E.label('L_xp'); lbx = E.label('L_bx')
        if WDD_M: E("s_load_dwordx2 s[76:77], s[0:1], 72")
        E(f"ds_write_b16 v61, v{HEAD}")
        E(f"s_cmp_ge_u32 s{S_W}, 2\ns_cbranch_scc1 {lx}")
        XG = 64
        def xload(i): return f"buffer_load_dwordx4 v[{XG+4*i}:{XG+4*i+3}], v{VL16}, {WSRD}, s{S_XL + (i >> 2)} offen" + (f" offset:{1024*(i & 3)}" if i & 3 else "") + " sc1"
        NX = 4 if P1 else 8
        for i in range(NX): E(xload(i))
        stamp('xiss')
        ACCc = 192
        for i in range(32): E(f"v_mov_b32 v{ACCc+i}, 0")
        E("s_waitcnt vmcnt(0)")
        marker_check([XG + 4*i for i in range(NX)], xload, 'x')
        stamp('xok')
        if P1:
            for i in range(4): E(f"ds_write_b128 v{VXW}, v[{XG+4*i}:{XG+4*i+3}] offset:{i*1024}")
            for i in range(4):
                if i < 3: E(f"v_mov_b32_dpp v{96+i}, v{XG+4*(i+1)} wave_rol:1 row_mask:0xf bank_mask:0xf")
                else: E(f"v_mov_b32 v{96+i}, 0")
            for i in range(4):
                for d in range(3): E(f"v_alignbit_b32 v{XG+16+4*i+d}, v{XG+4*i+d+1}, v{XG+4*i+d}, 16")
            for i in range(4): E(f"v_mov_b32_dpp v{96+i}, v{XG+4*i} wave_shl:1 row_mask:0xf bank_mask:0xf")
            for i in range(4):
                E(f"v_alignbit_b32 v{XG+16+4*i+3}, v{96+i}, v{XG+4*i+3}, 16")
            for i in range(4): E(f"ds_write_b128 v{VXW}, v[{XG+16+4*i}:{XG+16+4*i+3}] offset:{XR_P + i*1024}")
        else:
            for i in range(8): E(f"ds_write_b128 v{VXW}, v[{XG+4*i}:{XG+4*i+3}] offset:{(i >> 2)*XR_P + (i & 3)*1024}")
        E(f"s_branch {lbx}\n{lx}:")
        if not PREPE: prep_part()
        else: stamp_dup('xiss')
        stamp_dup('xok')
        for i in range(32): E(f"v_mov_b32 v{ACCc+i}, 0")
        if HLATE: E(f"s_waitcnt vmcnt({NPS})")
        S1PRE = opt.get('s1pre', 0)
        if S1PRE:
            assert YSPL
            E(f"s_waitcnt vmcnt(0)\nbuffer_store_dword v{VONE}, v{VS1F}, {WSRD}, s{S_S1F} offen sc1")
        E(f"{lbx}:")
        E("s_waitcnt lgkmcnt(0)")
        E.vmq = []; E.dsq = []
        if WDD_M: E(srd_fix(76, 1835008))
        E("s_barrier")
        stamp('bx')
        def AF(st, g): return 64 + 32*st + 4*g
        def BF(st, u): return 128 + 32*st + 4*u
        def rdA(st, g, rho): return f"ds_read_b128 v[{AF(st,g)}:{AF(st,g)+3}], v{VA_} offset:{512*g + 64*rho}"
        def rdB(st, u, rho): return f"ds_read_b128 v[{BF(st,u)}:{BF(st,u)+3}], v{VB_} offset:{512*(7-u) + 64*rho}"
        pairs = [(t, g) for t in range(8) for g in range(t+1)]
        order = []
        for t in range(8): order.append(('B', t)); order.append(('A', t))
        def mf(st, t, g):
            return f"v_mfma_f32_16x16x32_bf16 v[{ACCc+4*t}:{ACCc+4*t+3}], v[{AF(st,g)}:{AF(st,g)+3}], v[{BF(st,t-g)}:{BF(st,t-g)+3}], v[{ACCc+4*t}:{ACCc+4*t+3}]"
        S1AT = opt.get('s1at', 24); S1POLL = opt.get('s1poll', 96); S1CHK = opt.get('s1chk', 118)
        acts = {}
        def act(i, f): acts.setdefault(i, []).append(f)
        def s1publish():
            if SPLIT: E(f"s_waitcnt vmcnt({len(E.vmq)})")
            else: E("s_waitcnt vmcnt(0)"); E.vmq = []
            E.vm(f"buffer_store_dword v{VONE}, v{VS1F}, {WSRD}, s{S_S1F} offen sc1", 's1st')
        def s1poll():
            E.vm(f"buffer_load_dwordx4 v[24:27], v{VS1P}, {WSRD}, 0 offen sc1", 's1')
            if YSPL and S1BP == 2: s1b_poll()
        def s1check(bar=True):
            all_flags_check(24, VS1P, S_N, 's1')
            if YSPL and S1BP == 2: s1b_check()
            if bar: E("s_barrier")
            stamp('s1')
        def qload():
            E.vm(f"buffer_load_dwordx4 {ar(A_Q, 4)}, v9, s[{S_Q}:{S_Q+3}], s{S_QO} offen" + NT('q'), 'q')
            E.vm(f"buffer_load_dwordx4 {ar(A_Q+4, 4)}, v9, s[{S_Q}:{S_Q+3}], s{S_QO} offen offset:128" + NT('q'), 'q')
        if not S1PRE: act(S1AT, s1publish)
        act(opt.get('qat', 40), qload)
        if SPLIT:
            m0 = opt.get('ymat', 72); sp = opt.get('ymsp', 2)
            if YSPL:
                act(m0 - 1, lambda: E("\n".join(f"v_mov_b32 v{24+i}, -1" for i in range(4)) + "\ns_add_u32 s24, s58, 262144"))
                act(m0, lambda: E.vm(f"buffer_store_dwordx4 v[24:27], v{VYS}, {WSRD}, s58 offen sc1", 'ym'))
                act(m0 + sp, lambda: E.vm(f"buffer_store_dwordx4 v[24:27], v{VYS}, {WSRD}, s24 offen sc1", 'ym'))
            w0 = opt.get('wdpat', m0 + 2*sp)
            for n in range(4):
                act(w0 + n*sp, lambda n=n: (E(f"s_add_u32 s{S_WDDST}, s{S_WDDST}, 229376") if n else None, E.vm(f"buffer_store_dwordx4 {ar(4*n, 4)}, v{WDD}, {WSRD}, s{S_WDDST} offen sc1", 'wds' if WDC else 'ym')))
        if WDD_M:
            assert SPLIT
            r0 = opt.get('wdrat', 16); rsp = opt.get('wdrsp', 2)
            for b in range(8*WDD_M):
                kp = wd_kseq(0)[b >> 1]
                act(r0 + b*rsp, lambda b=b, kp=kp: (E(f"s_add_u32 m0, s{S_W1K}, {(4 - (b >> 3))*SLOT + (b & 7)*1024}\ns_add_u32 s26, s74, {kp*16384 + (b & 1)*8192}"),
                                                    E.vm(f"buffer_load_dwordx4 v{VDR}, s[76:79], s26 offen lds", 'wraw')))
        def htouch():
            m = opt['ht']
            E(f"v_lshrrev_b32 v246, 3, v8\nv_lshlrev_b32 v246, 12, v246\nv_and_b32 v247, {m}, v8\nv_lshl_add_u32 v246, v247, 7, v246")
            E(f"s_add_u32 s24, s{S_HST}, {WS_H}")
            E(f"s_mov_b32 exec_hi, 0x00ffffff")
            E.vm(f"buffer_load_dword v247, v246, {WSRD}, s24 offen", 'ht')
            E(f"s_mov_b64 exec, -1")
        if 'ht' in opt: act(opt.get('htat', 20), htouch)
        POST = S1CHK >= 1000
        if S1POLL < 1000: act(S1POLL, s1poll)
        B = BK['b'] = make_bulk()
        if not POST:
            act(S1CHK, s1check)
            nm = opt.get('bk_m', 5)
            for k in range(nm): act(S1CHK + 2 + k*opt.get('bk_msp', 4), lambda: B.emit(1))
            assert S1CHK + 2 + nm*opt.get('bk_msp', 4) <= 148
        def do(i):
            for f in acts.pop(i, []): f()
        for rho in range(4):
            st = rho & 1
            nxt = []
            if rho < 3: nxt = [(rdB(st^1, x, rho+1) if k == 'B' else rdA(st^1, x, rho+1)) for (k, x) in order]
            if rho == 0:
                reads = [(rdB(0, x, 0) if k == 'B' else rdA(0, x, 0)) for (k, x) in order]
                for r_ in reads[:14]: E(r_)
                issued = 14; done = 0
                allq = reads + nxt
                for idx, (t, g) in enumerate(pairs):
                    if g == 0:
                        E(f"s_waitcnt lgkmcnt({issued - 2*(t+1)})"); done = 2*(t+1)
                    E(mf(0, t, g))
                    do(idx)
                    if t == 7 and g == 4:
                        done += 6
                        E(f"s_waitcnt lgkmcnt({issued - done})")
                    if issued < len(allq) and issued - done < 14:
                        E(allq[issued]); issued += 1
                assert issued == len(allq)
            else:
                E("s_waitcnt lgkmcnt(0)")
                k = 0
                for idx, (t, g) in enumerate(pairs):
                    E(mf(st, t, g))
                    do(36*rho + idx)
                    if nxt and idx % 2 == 0 and k < 16:
                        E(nxt[k]); k += 1
            if rho < 3: stamp(f'rho{rho+1}')
        for i in sorted(acts): do(i)
        stamp('mfend')
        if opt.get('rot', 0):
            E(f"s_lshr_b32 s25, s{S_C}, 3\ns_lshl_b32 s25, s25, 1\ns_add_u32 s25, s25, s{S_TH}")
            for r_ in range(4):
                E(f"""s_add_u32 s24, s25, {r_}
                s_and_b32 s24, s24, 3
                s_mul_i32 s24, s24, {7*2048}
                s_add_u32 s{S_WDR + r_}, s{S_WDB}, s24""")
        def s1b_publish(fl, tag):
            E(f"s_add_u32 s24, s86, {fl}")
            E.vm(f"buffer_store_dword v{VONE}, v{VT0}, {WSRD}, s24 offen sc1", tag)
        if YSPL and PUBB == 1: E.wait_vm('ym')
        E("s_barrier")
        if YSPL and PUBB == 1: s1b_publish(FL_S1B, 's1b')
        E(f"""
        v_add_u32 v20, s{S_W1K}, v{VL16}
        s_lshl_b32 s24, s{S_W}, 11
        v_add_u32 v21, s24, v{VL16}
        s_nop 4
        """)
        for t in range(8): E.ds(f"ds_write_b128 v20, v[{ACCc+4*t}:{ACCc+4*t+3}] offset:{1024*t}", 'rdw')
        E.wait_ds('rdw')
        if YSPL and PUBB == 0: E.wait_vm('ym')
        if WDC: E.wait_vm('wds')
        if S1CHK == 1002: s1check(bar=False)
        E("s_barrier")
        if YSPL and PUBB == 0: s1b_publish(FL_S1B, 's1b')
        if WDC: s1b_publish(FL_S1C, 's1c')
        stamp('red2')
        if S1POLL == 1000: s1poll()
        if not POST or S1CHK == 1002: B.emit(opt.get('bk_red', 0))
        for tau in range(2):
            for src in range(4):
                E.ds(f"ds_read_b128 v[{64+32*tau+4*src}:{67+32*tau+4*src}], v21 offset:{8192*src + 1024*tau}", f'rdr{tau}')
            for ch in range(2):
                E.ds(f"ds_read_b128 v[{128+8*tau+4*ch}:{131+8*tau+4*ch}], v{VKVW} offset:{ch*XR_CH + 512*(1-tau)}", f'rdr{tau}')
        for tau in range(2):
            E.wait_ds(f'rdr{tau}')
            base = 64 + 32*tau
            for ch in range(2):
                kvr = 128 + 8*tau + 4*ch
                for r in range(4): E(f"v_add_f32 v{base+8*ch+r}, v{base+8*ch+r}, v{base+8*ch+r+4}")
                for d in range(4): E(f"v_lshlrev_b32 v{kvr+d}, 16, v{kvr+d}")
                for r in range(4): E(f"v_fmac_f32 v{base+8*ch+r}, s{60+ch}, v{kvr+3-r}")
            for r in range(4): E(f"v_cvt_pk_bf16_f32 v{148+r}, v{base+r}, v{base+8+r}")
            o = 152 + 4*tau
            E(f"""
            v_mov_b32 v{o}, v150
            v_mov_b32 v{o+1}, v148
            v_mov_b32 v{o+2}, v151
            v_mov_b32 v{o+3}, v149
            v_mov_b32_dpp v{o}, v148 row_ror:8 row_mask:0xf bank_mask:0x3
            v_mov_b32_dpp v{o+1}, v150 row_ror:8 row_mask:0xf bank_mask:0xc
            v_mov_b32_dpp v{o+2}, v149 row_ror:8 row_mask:0xf bank_mask:0x3
            v_mov_b32_dpp v{o+3}, v151 row_ror:8 row_mask:0xf bank_mask:0xc
            """)
            if tau == 1: E(f"s_add_u32 s58, s58, 262144")
            E.vm(f"buffer_store_dwordx4 v[{o}:{o+3}], v{VYS}, {WSRD}, s58 offen " + opt.get('flyst', 'sc1').replace('+', ' '), 'yst')
        stamp('yst')
        if opt.get('xyack'): E.wait_vm('yst'); stamp('yack')
        if S1POLL == 1001: s1poll()
        if POST and S1CHK != 1002: s1check()

    def wdd_read(mi):
        E.wait_vm('wraw')
        for kpi in range(4):
            kp = wd_kseq(0)[4*mi + kpi]
            for pd in range(2):
                for h in range(2):
                    E.ds(f"ds_read_b64_tr_b16 {ar(A_WD + 8*kp + 4*pd + 2*h, 2)}, v{VDT+pd} offset:{kpi*2048 + 512*h}", f'wdd{mi}')
        if mi + 1 < WDD_M: E(f"v_subrev_u32 v{VDT}, {SLOT}, v{VDT}\nv_subrev_u32 v{VDT+1}, {SLOT}, v{VDT+1}")
    def rest():
        conv()
        B = BK['b']
        if WDD_M:
            assert WDD_M <= 2 or opt.get('bk_red', 0) == 0
            for mi in range(WDD_M): wdd_read(mi)
            E.wait_ds(f'wdd{WDD_M - 1}')
        def yload(i):
            c2, k = i >> 2, i & 3
            return f"buffer_load_dword v{Y+i}, v10, {WSRD}, s{59 if c2 == 0 else 24} offen" + (f" offset:{YK*k}" if k else "") + " sc1"
        E(f"s_add_u32 s24, s59, {YC2}")
        if opt.get('xw1t'):
            B.emit(4); E("s_waitcnt vmcnt(10)"); stamp('w4')
            B.emit(4); E("s_waitcnt vmcnt(10)"); stamp('w8'); E("s_waitcnt vmcnt(8)"); stamp('wy')
            B.emit(4); E("s_waitcnt vmcnt(8)"); stamp('w12')
            B.emit(4); E("s_waitcnt vmcnt(8)"); stamp('w16'); E("s_waitcnt vmcnt(4)"); stamp('w20'); E("s_waitcnt vmcnt(0)"); stamp('w24')
        if YSPL and S1BP == 0: s1b_poll()
        B.emit(opt.get('bk_a', 0))
        stamp('bka')
        if YSPL and S1BP == 1: s1b_poll()
        Q16 = S1BP == 3 or opt.get('wcr', 0)
        if Q16: E(f"v_lshrrev_b32 v30, 2, v8\nv_lshlrev_b32 v30, 7, v30\nv_and_b32 v31, 3, v8\nv_lshl_add_u32 v30, v31, 2, v30\ns_lshl_b32 s25, s{S_W}, 11\nv_add_u32 v30, s25, v30")
        if YSPL and S1BP == 3: q16_poll(FL_S1B, 's1b')
        if YSPL and S1BP != 2:
            B.emit(opt.get('bk_b', 0))
            stamp('bkb')
            if S1BP != 3: s1b_check()
        def yissue():
            if opt.get('xnoy'): E(f"v_mov_b32 v10, 0")
            for i in range(8): E.vm(yload(i) if opt.get('ysc', 1) else yload(i).replace(' sc1', ''), 'y')
            stamp('yiss')
            if WDC and opt.get('wcr', 0): q16_poll(FL_S1C, 's1c')
            B.emit(opt.get('bk_y', 0))
            stamp('bky')
        if S1BP != 3:
            yissue()
            assert 'w1_3' not in E.seen, 'slot 0 is still in use'
        for i in range(8): E(f"v_accvgpr_read_b32 v{X+i}, a{A_Q+i}")
        if S1BP == 3:
            assert 'w1_3' not in E.seen, 'slot 0 is still in use'
            R_pre(0, pre=lambda: q16_check(FL_S1B, 's1b'), between=yissue)
        else: R_pre(0)
        stamp('qst')
        B.emit(opt.get('bk_q', 0))
        E.wait_vm('y')
        marker_check([Y + i for i in range(8)], yload, 'y')
        stamp('yok')
        B.emit(opt.get('bk_r0', 16))
        for i in range(8): E(f"v_accvgpr_write_b32 a{A_Y+i}, v{Y+i}")
        def w1left():
            n = 0; k = 0
            for o in B.ops:
                if o[1]:
                    k += 1
                    if getattr(o[2], 'info', None) is None: n = k
            return n
        R_post(0, early=lambda: B.emit(max(opt.get('bk_r1', 0), w1left())), late=None, pre=(lambda: q16_check(FL_S1C, 's1c')) if WDC and opt.get('wcr', 0) else None)
        assert all(('w1_%d' % p) in E.seen for p in range(4)) and not any(getattr(o[2], 'info', None) is None for o in B.ops), 'W1 tiles 0..3 must be under way before the XN stores'
        B.emit(opt.get('bk_xn', 0))
        Rpub(0)
        layer(0)
        X2M = opt.get('x2m', 0) and not MODE['slow']
        def x2load(i): return f"buffer_load_dwordx4 v[{X+4*i}:{X+4*i+3}], v{VR}, {WSRD}, s{S_T0+i} offen" + LSC
        if X2M:
            sadd(S_T0, S_R, WS_XN); sadd(S_T1, S_R, WS_XN + 4096)
            for i in range(2): E.vm(x2load(i), 'x2l')
        else: poll_issue(VP8, S_FX2L, 0, 'px2')
        if P1:
            unpack(T, 20, 8)
            E(f"""s_lshr_b32 s24, s{S_C}, 3
            s_mul_i32 s24, s24, {7*131072}
            s_and_b32 s25, s{S_C}, 7
            s_lshl_b32 s25, s25, 17
            s_sub_u32 s24, s24, s25
            s_add_u32 s{S_XMD}, s24, {WS_Y}""")
        if not X2M: poll_check(VP8, S_FX2L, 0, 'px2')
        for r_, c_ in ((S_FXNS, 16*256), (S_FXNL, 16*256), (S_FHS, 16*1024), (S_FHL, 16*1024)): E(f"s_add_u32 s{r_}, s{r_}, {c_}")
        if not X2M:
            stamp('x2ok')
            sadd(S_T0, S_R, WS_XN); sadd(S_T1, S_R, WS_XN + 4096)
            for i in range(2): E.vm(x2load(i), 'x2l')
        for i in range(8): E(f"v_accvgpr_read_b32 v{Y+i}, a{A_Y+i}")
        if opt.get('ropt', 0): unpack(YF, Y, 8)
        E.wait_vm('x2l')
        if X2M:
            marker_check([X, X + 4], x2load, 'x2')
            stamp('x2ok')
        else: stamp_dup('x2d')
        R_pre(1)
        R_post(1)
        Rpub(1)
        layer(1)
        E.wait_vm_all()

    def s0cmp(val): return "\n".join([f"v_xor_b32 v{S0R+i}, s{val}, v{S0R+i}" for i in range(4)] +
                                     [f"v_or3_b32 v{S0R}, v{S0R}, v{S0R+1}, v{S0R+2}", f"v_or_b32 v{S0R}, v{S0R}, v{S0R+3}"])
    if PREPE:
        assert RAWPOS >= 1 and E.vm_after('s0') == NKV
        E(f"s_cmp_lt_u32 s{S_W}, 2\ns_cbranch_scc1 L_pe0")
        prep_part(rawwait=1 + NKV)
        E(f"s_waitcnt vmcnt({NKV + 4*len(HLATE) + NPS})\ns_branch L_pe1\nL_pe0:")
        if S0SC:
            E(f"""s_and_b32 s24, s{S_XCC}, 7
            s_mul_i32 s25, s24, s24
            s_lshl_b32 s25, s25, 16
            s_lshl_b32 s24, s24, 6
            s_add_u32 s24, s24, s25
            s_add_u32 s24, s24, 1
            s_lshl_b32 s24, s24, 5
            s_waitcnt lgkmcnt(0)
            s_cmp_eq_u32 s29, s24
            {'' if force_slow else 's_cbranch_scc1 L_s0b'}
            buffer_load_dwordx4 v[{S0R}:{S0R+3}], v30, {WSRD}, 0 offen sc1
            {f's_add_u32 s{S_EXP}, s{S_EXP}, {1 << 24}' if stamps and opt.get('cnt') else ''}
            s_waitcnt vmcnt(0)
            L_pe1:""")
        elif opt.get('xnos0'): E("s_branch L_s0b\nL_pe1:")
        else: E(f"s_waitcnt vmcnt({NKV})\nL_pe1:")
        E.vmq = []
    else: E.wait_vm('s0')
    E(s0cmp(S_XCC))
    E(f"v_cmp_ne_u32 vcc, 0, v{S0R}")
    E("s_branch L_s0s" if force_slow else "s_cbranch_vccnz L_s0s")
    E("L_s0b:")
    E.out_of_line(f"""
    L_s0s:
    s_mov_b32 s{S_T3}, 0
    L_s0l:
    v_cmp_lt_u32 vcc, 7, v{S0R}
    s_cmp_gt_u32 s{S_T3}, 0x2000
    s_cbranch_vccz L_slow
    s_cbranch_scc1 L_s0b
    buffer_load_dwordx4 v[{S0R}:{S0R+3}], v30, {WSRD}, 0 offen sc1
    s_add_u32 s{S_T3}, s{S_T3}, 1
    {f's_add_u32 s{S_EXP}, s{S_EXP}, {1 << 24}' if stamps and opt.get('cnt') else ''}
    s_waitcnt vmcnt(0)
    {s0cmp(S_XCC)}
    v_cmp_ne_u32 vcc, 0, v{S0R}
    {'s_branch L_s0l' if force_slow else 's_cbranch_vccnz L_s0l'}
    s_branch L_s0b""")
    stamp('s0')
    Efast = E
    Es = Emit(); Es.vmq = []; Es.dsq = list(E.dsq); Es.seen = set(E.seen); Es.nl = 100000
    E = Es; MODE['slow'] = True
    E(f"""
    L_slow:
    s_mov_b32 s{S_EXP}, 2
    s_waitcnt vmcnt(0)
    buffer_wbl2 sc1
    s_waitcnt vmcnt(0)
    s_barrier
    s_add_u32 s24, s86, {FL_S0B}
    buffer_store_dword v{VONE}, v{VT0}, {WSRD}, s24 offen sc1
    s_mov_b32 s25, {FL_S0B - FL_S0}
    s_mov_b32 s{S_T3}, 0
    L_s0bl:
    buffer_load_dwordx4 v[{S0R}:{S0R+3}], v30, {WSRD}, s25 offen sc1
    s_add_u32 s{S_T3}, s{S_T3}, 1
    s_waitcnt vmcnt(0)
    {s0cmp(S_N)}
    v_cmp_ne_u32 vcc, 0, v{S0R}
    s_cmp_gt_u32 s{S_T3}, 0x2000
    s_cbranch_scc1 L_s0bx
    s_cbranch_vccnz L_s0bl
    L_s0bx:
    buffer_inv sc1
    s_waitcnt vmcnt(0)
    """)
    rest()
    E("s_branch L_fin")
    E = Efast; MODE['slow'] = False
    rest()
    E("L_fin:")
    if stamps:
        stamp('end')
        n = len(names)
        E("s_memrealtime s[24:25]")
        E("s_waitcnt lgkmcnt(0)")
        for k in (n - 2, n - 1): E(f"v_writelane_b32 v{VSTAMP}, s{SP[k & 1]}, {k}")
        E(f"""
        v_writelane_b32 v{VSTAMP}, s100, 61
        v_writelane_b32 v{VSTAMP}, s24, 62
        v_writelane_b32 v{VSTAMP}, s{S_EXP}, 63
        s_lshl_b32 s25, s2, 10
        s_lshl_b32 s26, s{S_W}, 8
        s_add_u32 s25, s25, s26
        s_add_u32 s25, s25, {WS_STAMP}
        v_lshrrev_b32 v20, 2, v{VL16}
        buffer_store_dword v{VSTAMP}, v20, {WSRD}, s25 offen
        s_waitcnt vmcnt(0)
        """)
        assert n < 60
        print('k3 stamps:', ','.join(names))
        open('last_stamps.txt', 'w').write(','.join(names))
    E("L_end:")
    E("s_endpgm")
    main = hazard_pass(E.L[1:], verbose=opt.get('verbose', False))
    tail = list(E.tail) + ['L_codeend:'] + hazard_pass(Es.L) + list(Es.tail)
    txt = E.L[0] + '\n' + '\n'.join(('    ' + l if not l.endswith(':') else l) for l in main) + '\n'
    txt += '\n'.join(('    ' + l if not l.endswith(':') else l) for l in tail) + '\n'
    txt += "    s_endpgm\n"
    return txt + kd(name, 512, 102, accum=256)

if __name__ == '__main__':
    st = 'stamps' in sys.argv; slow = 'slow' in sys.argv
    opt = {'verbose': 'v' in sys.argv}
    for a in sys.argv[2:]:
        if '=' in a:
            k_, v_ = a.split('=')
            opt[k_] = v_.split(',') if k_ == 'st' else (v_ if k_.startswith('fl') else int(v_))
    kname = NAME + '_kernel'
    txt = KERNARG_COMMENT
    txt += f"; @launch grid=(256,1,1) block=(256,1,1) lds={K1_LDS}\n"
    txt += TARGET + gen(kname, stamps=st, force_slow=slow, opt=opt)
    txt += ".text\n.fill 64, 4, 0xbf800000\n"
    open(sys.argv[1], 'w').write(txt)
```
